```python
import torch

def _softmax(x, axis=-1):
    return torch.softmax(x, dim=axis)
def _gelu(x):
    return torch.nn.functional.gelu(x, approximate="tanh")
def _silu(x):
    return torch.nn.functional.silu(x)
def _sigmoid(x):
    return torch.sigmoid(x)
def _layernorm(x, axis=-1, eps=1e-5):
    m = x.mean(dim=axis, keepdim=True)
    v = x.var(dim=axis, keepdim=True, unbiased=False)
    return (x - m) / torch.sqrt(v + eps)
def _scatter_add(tgt, idx, src, axis=0):
    return tgt.clone().index_add_(axis, idx, src)
def _segment_sum(src, seg, n):
    out = torch.zeros((n,) + src.shape[1:], dtype=src.dtype)
    return out.index_add_(0, seg, src)
def _pad(x, pw):
    flat = tuple(v for pair in reversed(pw) for v in pair)
    return torch.nn.functional.pad(x, flat)

kernel_name = 'sequential_preLN__sliding_local_dilated__geglu_ffn__prompt'

def setup_inputs():

    _w = (lambda a: (lambda t: t.to(torch.bfloat16) if t.is_floating_point() else t)(torch.as_tensor(a)))
    def _A_setup():
        B, S, D = 1, 2048, 512
        return {
            "x": _w((lambda *s: torch.randn(*s, dtype=torch.bfloat16) * 0.05)(B, S, D)),
            "wqkv": _w((lambda *s: torch.randn(*s, dtype=torch.bfloat16) * 0.05)(D, 3 * D)),
            "wo": _w((lambda *s: torch.randn(*s, dtype=torch.bfloat16) * 0.05)(D, D)),
        }
    _A_in = _A_setup()

    def _B_setup():
        B, S, D, F = 1, 2048, 512, 1376
        return {
            "x": _w((lambda *s: torch.randn(*s, dtype=torch.bfloat16) * 0.05)(B, S, D)),
            "w_gate": _w((lambda *s: torch.randn(*s, dtype=torch.bfloat16) * 0.05)(D, F)),
            "w_up": _w((lambda *s: torch.randn(*s, dtype=torch.bfloat16) * 0.05)(D, F)),
            "w_down": _w((lambda *s: torch.randn(*s, dtype=torch.bfloat16) * 0.05)(F, D)),
        }
    _B_in = _B_setup()

    return {
        "A_x": _A_in["x"],
        "A_wqkv": _A_in["wqkv"],
        "A_wo": _A_in["wo"],
        "B_x": _B_in["x"],
        "B_w_gate": _B_in["w_gate"],
        "B_w_up": _B_in["w_up"],
        "B_w_down": _B_in["w_down"],
    }

def reference(A_x, A_wqkv, A_wo, B_x, B_w_gate, B_w_up, B_w_down):
    def _A_ref(x, wqkv, wo):
        B, S, D = x.shape
        H = 32; Dh = D // H
        W, dil = 8, 2
        qkv = (lambda x, *d: x.permute(*d))((x @ wqkv).reshape(B, S, 3, H, Dh), 2, 0, 3, 1, 4)
        q, k, v = qkv[0], qkv[1], qkv[2]
        scale = Dh ** -0.5
        pos = torch.arange(S)
        off = torch.arange(W) * dil
        idx = pos[:, None] - off[None, :]
        mask = idx >= 0
        idx_c = torch.where(mask, idx, 0).reshape(-1)
        kg = k[:, :, idx_c, :].reshape(B, H, S, W, Dh)
        vg = v[:, :, idx_c, :].reshape(B, H, S, W, Dh)
        logits = torch.einsum("bhsd,bhswd->bhsw", q, kg) * scale
        logits = torch.where(mask[None, None, :, :], logits, -1e9)
        attn = _softmax(logits, axis=-1)
        o = torch.einsum("bhsw,bhswd->bhsd", attn, vg)
        return (lambda x, *d: x.permute(*d))(o, 0, 2, 1, 3).reshape(B, S, D) @ wo

    def _B_ref(x, w_gate, w_up, w_down):
        return (_gelu(x @ w_gate) * (x @ w_up)) @ w_down

    x = A_x
    h = x + _A_ref(_layernorm(x, axis=-1), A_wqkv, A_wo)
    h2 = h + _B_ref(_layernorm(h, axis=-1), B_w_gate, B_w_up, B_w_down)
    return h2
```

```python
import re

_REG = re.compile(r'^(-|abs\()?([vas])(\d+)\)?$')
_RNG = re.compile(r'^(-|abs\()?([vas])\[(\d+):(\d+)\]\)?$')

def regs_of(tok):
    tok = tok.strip()
    m = _REG.match(tok)
    if m: return [(m.group(2), int(m.group(3)))]
    m = _RNG.match(tok)
    if m: return [(m.group(2), i) for i in range(int(m.group(3)), int(m.group(4)) + 1)]
    if tok in ('vcc',): return [('s', 106), ('s', 107)]
    if tok == 'vcc_lo': return [('s', 106)]
    if tok == 'vcc_hi': return [('s', 107)]
    if tok == 'm0': return [('s', 124)]
    if tok == 'exec': return [('s', 126), ('s', 127)]
    if tok == 'exec_lo': return [('s', 126)]
    if tok == 'exec_hi': return [('s', 127)]
    return []

def split_ops(s):
    out, depth, cur = [], 0, ''
    for ch in s:
        if ch in '[(': depth += 1
        if ch in '])': depth -= 1
        if ch == ',' and depth == 0:
            out.append(cur.strip()); cur = ''
        else: cur += ch
    if cur.strip(): out.append(cur.strip())
    return out

TRANS = ('v_exp_f32', 'v_log_f32', 'v_rcp_f32', 'v_rsq_f32', 'v_sqrt_f32')

class Ins:
    __slots__ = ('text', 'mn', 'kind', 'defs', 'uses', 'tag', 'srcC', 'srcAB', 'passes', 'dpp', 'wide_store', 'arg', 'store_data')
    def __init__(self, text, tag=None):
        self.text = text.strip(); self.tag = tag
        self.defs = set(); self.uses = set(); self.srcC = set(); self.srcAB = set()
        self.passes = 0; self.dpp = False; self.wide_store = False; self.arg = None; self.store_data = set()
        t = self.text
        if t.startswith('@'):
            p = t.split()
            self.mn = p[0]; self.kind = 'pseudo'; self.arg = p[1:]
            return
        if t.endswith(':') or t.startswith('.') or t.startswith(';'):
            self.mn = t; self.kind = 'label' if t.endswith(':') else 'dir'
            return
        p = t.split(None, 1)
        mn = self.mn = p[0]
        rest = p[1] if len(p) > 1 else ''
        ops = split_ops(rest)
        mods = []
        if ops:
            q = ops[-1].split()
            ops[-1] = q[0]; mods = q[1:]
        R = lambda i: set(regs_of(ops[i])) if i < len(ops) else set()
        allr = lambda a: set().union(*[R(i) for i in range(a, len(ops))]) if len(ops) > a else set()
        if mn.startswith('v_mfma'):
            self.kind = 'mfma'
            self.defs = R(0); self.srcAB = R(1) | R(2); self.srcC = R(3); self.uses = self.srcAB | self.srcC
            self.passes = 8 if '32x32' in mn else (2 if '4x4x4' in mn else 4)
        elif mn.startswith('ds_'):
            self.kind = 'ds'
            if mn.startswith('ds_read') or mn.startswith('ds_bpermute') or mn.startswith('ds_swizzle'):
                self.defs = R(0); self.uses = allr(1)
            else:
                self.uses = allr(0)
        elif mn.startswith('buffer_') or mn.startswith('global_'):
            self.kind = 'vmem'
            if 'lds' in mods:
                self.uses = allr(0) | {('s', 124)}
                self.arg = 'dma'
            elif '_load' in mn:
                self.defs = R(0); self.uses = allr(1)
            else:
                self.uses = allr(0)
                if mn.startswith('buffer_store'): self.store_data = R(0)
                elif mn.startswith('global_store'): self.store_data = R(1)
                self.wide_store = mn.endswith('x4') or mn.endswith('x3')
        elif mn.startswith('s_load') or mn.startswith('s_memtime') or mn.startswith('s_memrealtime') or mn.startswith('s_atomic'):
            self.kind = 'smem'
            if mn.startswith('s_atomic'):
                self.uses = allr(0); self.defs = R(0) if 'glc' in mods else set()
            else:
                self.defs = R(0); self.uses = allr(1)
        elif mn.startswith('s_'):
            self.kind = 'salu'
            if mn in ('s_waitcnt', 's_nop', 's_barrier', 's_endpgm', 's_setprio', 's_sleep', 's_branch') or mn.startswith('s_cbranch'):
                if 'vcc' in mn: self.uses = {('s', 106), ('s', 107)}
            elif mn.startswith('s_cmp') or mn.startswith('s_bitcmp'):
                self.uses = allr(0)
            else:
                self.defs = R(0); self.uses = allr(1)
                if mn.startswith('s_addk') or mn.startswith('s_mulk') or mn.startswith('s_cmov'): self.uses |= R(0)
                if 'saveexec' in mn: self.defs |= {('s', 126), ('s', 127)}
        elif mn.startswith('v_'):
            self.kind = 'valu'
            self.dpp = mn.endswith('_dpp')
            self.defs = R(0); self.uses = allr(1)
            if mn.startswith('v_fmac') or mn.startswith('v_dot2c') or mn.startswith('v_writelane') or self.dpp: self.uses |= R(0)
            if mn.startswith('v_permlane'):
                self.defs |= R(1); self.uses |= R(0)
            if '_co_' in mn: self.defs |= R(1)
        else:
            raise ValueError('unknown instruction: ' + t)
    def is_trans(self): return self.mn.split('_e32')[0] in TRANS
    def slots(self):
        if self.kind in ('pseudo', 'label', 'dir'): return 0
        if self.mn == 's_nop': return int(self.text.split()[1]) + 1
        return 1

class Asm:
    def __init__(self):
        self.L = []
    def __call__(self, text, tag=None):
        for ln in text.split('\n'):
            ln = ln.strip()
            if ln: self.L.append(Ins(ln, tag))
        return self
    def ext(self, other):
        self.L.extend(other.L if isinstance(other, Asm) else other)

def resolve_waits(L, junk='v255', junkaddr='v254'):
    out = []
    vm = []
    lg = []
    minlg = 0
    raw = False
    done_tags = set()
    def do_wait(nvm, nlg):
        nonlocal vm, lg
        parts = []
        if nlg is not None and nlg == 0 and minlg and not any(e[2] for e in lg):
            d = Ins(f'ds_read_b32 {junk}, {junkaddr}')
            out.append(d); lg.append((set(), None, False)); nlg = 1
        if nvm is not None:
            nvm = min(nvm, 62); parts.append(f'vmcnt({nvm})')
            k = len(vm) - nvm
            if k > 0:
                for e in vm[:k]: done_tags.add(e[1])
                vm = vm[k:]
        if nlg is not None:
            nlg = min(nlg, 14); parts.append(f'lgkmcnt({nlg})')
            if nlg == 0:
                for e in lg: done_tags.add(e[1])
                lg = []
            else:
                lds = [e for e in lg if not e[2]]
                k = len(lds) - nlg
                if k > 0:
                    rm = lds[:k]
                    for e in rm: done_tags.add(e[1])
                    lg = [e for e in lg if not any(e is r for r in rm)]
        if parts:
            out.append(Ins('s_waitcnt ' + ' '.join(parts)))
    def need_lg(idx):
        if lg[idx][2]: return 0
        return sum(1 for e in lg[idx+1:] if not e[2])
    for ins in L:
        if ins.kind == 'pseudo':
            a = ins.arg
            if ins.mn == '@waitvm':
                idx = [i for i, e in enumerate(vm) if e[1] == a[0]]
                if idx: do_wait(len(vm) - 1 - idx[-1], None)
                else: assert a[0] in done_tags, 'unknown tag ' + a[0]
            elif ins.mn == '@waitlg':
                idx = [i for i, e in enumerate(lg) if e[1] == a[0]]
                if idx: do_wait(None, need_lg(idx[-1]))
                else: assert a[0] in done_tags, 'unknown tag ' + a[0]
            elif ins.mn == '@waitvm0':
                if vm: do_wait(0, None)
            elif ins.mn == '@waitlg0':
                if lg: do_wait(None, 0)
            elif ins.mn == '@drained_vm':
                for e in vm: done_tags.add(e[1])
                vm = []
            elif ins.mn == '@drained_lg':
                for e in lg: done_tags.add(e[1])
                lg = []
            elif ins.mn == '@minlg': minlg = int(a[0])
            elif ins.mn == '@raw': raw = bool(int(a[0]))
            elif ins.mn == '@assert_lg_done':
                assert not any(e[1] == a[0] for e in lg), 'lg tag still outstanding ' + a[0]
            else: raise ValueError(ins.text)
            continue
        if raw:
            out.append(ins); continue
        touch = ins.defs | ins.uses
        nvm = nlg = None
        if touch:
            for i in range(len(vm) - 1, -1, -1):
                if vm[i][0] & touch:
                    nvm = len(vm) - 1 - i; break
            for i in range(len(lg)):
                if lg[i][0] & touch:
                    n = need_lg(i)
                    nlg = n if nlg is None else min(nlg, n)
        if nvm is not None or nlg is not None: do_wait(nvm, nlg)
        out.append(ins)
        if ins.kind == 'vmem':
            vm.append((set(ins.defs), ins.tag))
            assert len(vm) <= 63, 'too many outstanding vmem ops'
        elif ins.kind == 'ds': lg.append((set(ins.defs), ins.tag, False))
        elif ins.kind == 'smem': lg.append((set(ins.defs), ins.tag, True))
    return out

XDL_VALU = {2: 5, 4: 8, 8: 12}
XDL_COVL = {2: 4, 4: 6, 8: 10}
XDL_CWAR = {2: 1, 4: 3, 8: 7}

def required_gap(p, c):
    need = 0
    vd = {r for r in p.defs if r[0] in 'va'}
    sd = {r for r in p.defs if r[0] == 's'}
    if p.kind == 'mfma':
        if c.kind == 'mfma':
            if vd & c.srcAB: need = max(need, XDL_VALU[p.passes])
            if vd & c.srcC:
                if vd == c.srcC and p.passes == c.passes: need = max(need, 2 if p.passes == 2 else 0)
                else: need = max(need, XDL_COVL[p.passes])
            elif vd & c.defs: need = max(need, XDL_COVL[p.passes])
        elif c.kind in ('valu', 'vmem', 'ds'):
            if vd & (c.uses | c.defs): need = max(need, XDL_VALU[p.passes])
            if p.srcC & c.defs: need = max(need, XDL_CWAR[p.passes])
    elif p.kind == 'valu':
        if c.kind == 'mfma':
            if vd & c.uses: need = max(need, 2)
            if sd & {('s', 126), ('s', 127)}: need = max(need, 4)
        if c.kind == 'valu':
            if c.dpp and vd & c.uses: need = max(need, 2)
            if c.mn.startswith('v_permlane') and vd & c.uses: need = max(need, 2)
            if (c.mn.startswith('v_readfirstlane') or c.mn.startswith('v_readlane')) and vd & c.uses: need = max(need, 1)
            if p.is_trans() and vd & c.uses: need = max(need, 1)
            if sd & c.uses: need = max(need, 4 if 'lane' in c.mn else 2)
            if ('sdwa' in p.mn or 'op_sel' in p.text) and not p.mn.startswith('v_pk') and vd & (c.uses | c.defs): need = max(need, 1)
        if c.kind == 'vmem' and sd & c.uses: need = max(need, 5)
        if c.kind in ('salu', 'smem') and sd & c.uses: need = max(need, 1)
        if p.is_trans() and c.kind in ('vmem', 'ds') and vd & c.uses: need = max(need, 1)
    elif p.kind == 'salu':
        if ('s', 124) in sd and c.kind == 'vmem' and c.arg == 'dma': need = max(need, 1)
    elif p.kind == 'vmem':
        if p.wide_store and (p.store_data & c.defs): need = max(need, 2)
    elif p.kind == 'ds':
        pass
    return need

def pad_hazards(L):
    out = []
    nn = 0
    for ins in L:
        if ins.kind in ('label', 'dir'):
            out.append(ins); continue
        need = 0; dist = 0
        for p in reversed(out):
            if dist >= 12: break
            if p.kind in ('label', 'dir'): continue
            g = required_gap(p, ins)
            if g - dist > need: need = g - dist
            dist += p.slots()
        if need > 0:
            out.append(Ins(f's_nop {need-1}')); nn += need
        out.append(ins)
    return out, nn

class RegAlloc:
    def __init__(self, pfx, lo, hi):
        self.pfx = pfx; self.free = set(range(lo, hi)); self.hi = 0
    def alloc(self, n=1, align=1):
        if n >= 2 and align == 1: align = 2
        for b in sorted(self.free):
            if b % align == 0 and all((b + i) in self.free for i in range(n)):
                for i in range(n): self.free.discard(b + i)
                self.hi = max(self.hi, b + n)
                return Reg(self.pfx, b, n, self)
        raise RuntimeError(f'out of {self.pfx} registers (n={n})')
    def at(self, b, n):
        assert all((b + i) in self.free for i in range(n)), f'{self.pfx}{b}+{n} busy'
        for i in range(n): self.free.discard(b + i)
        self.hi = max(self.hi, b + n)
        return Reg(self.pfx, b, n, self)

class Reg:
    def __init__(self, pfx, b, n, owner=None):
        self.pfx, self.b, self.n, self.owner = pfx, b, n, owner
    def __str__(self):
        return f'{self.pfx}{self.b}' if self.n == 1 else f'{self.pfx}[{self.b}:{self.b+self.n-1}]'
    __repr__ = __str__
    def __format__(self, spec): return str(self)
    def __getitem__(self, i):
        if isinstance(i, slice):
            a, b = i.start or 0, self.n if i.stop is None else i.stop
            assert 0 <= a < b <= self.n
            return Reg(self.pfx, self.b + a, b - a)
        assert 0 <= i < self.n, (i, self.n)
        return Reg(self.pfx, self.b + i, 1)
    def sub(self, a, n): return self[a:a+n]
    def free(self):
        for i in range(self.n):
            assert (self.b + i) not in self.owner.free
            self.owner.free.add(self.b + i)
```

```python
import sys, math, struct
from asmlib import *

NAME = 'sequential_preLN__sliding_local_dilated__geglu_ffn__prompt'
KB = 1024
WS_O, WS_H, WS_ST, WS_FL, WS_G, WS_TS = 0, 2 << 20, 4 << 20, (4 << 20) + (256 << 10), 5 << 20, 16 << 20
WS_SIZE = 17 << 20
FL_SLOW = 64 << 10
PITCH3 = 2752
BLK = 4096
L_HALO = 0
L_X = 4 * BLK
L_W = 10 * BLK
L_SCR = 39 * BLK
SCR_TB = L_SCR
SCR_HP = L_SCR + 1280
SCR_MODE = L_SCR + 1792
SCR_CS = L_SCR + 2048
def f2u(x): return struct.unpack('<I', struct.pack('<f', x))[0]
def fhex(x): return hex(f2u(x))
LOG2E = 1.4426950408889634

DEF = dict(stamps=False, order='pair', BI=8, LA=6, dma_gap=2, GLA=10, b_epi=6, b_post1=4, b_o=6, b_post2=0, stop=None,
           pub_delay=10, poll_lead=8, cs_early=False, force_slow=False)

class Gen:
    def __init__(self, **kw):
        self.o = dict(DEF); self.o.update(kw)
        self.A = Asm(); self.tail = Asm()
        self.V = RegAlloc('v', 1, 254); self.AG = RegAlloc('a', 0, 256); self.S = RegAlloc('s', 60, 100)
        self.nstamp = 0; self.stamp_names = []
        self.nlabel = 0
        self.free_blocks = list(range(28, 39))
        self.stream = []
        self.loc = {}
        self.issued = []

    def stamp(self, name, A=None):
        if not self.o['stamps']: return
        A = A if A is not None else self.A
        r = self.sstamp.sub(2 * (self.nstamp % 2), 2)
        A(f'@raw 1\ns_memtime {r}\ns_waitcnt lgkmcnt(0)\nv_writelane_b32 {self.vstamp}, {r[0]}, {self.nstamp}\n@raw 0\n@drained_lg')
        self.stamp_names.append(name); self.nstamp += 1

    def prologue(self):
        A, V, S = self.A, self.V, self.S
        s = self.s = {}
        for n in 'W C M SB G BLK W1K T0 T1 T2 T3 FL PF'.split(): s[n] = S.alloc()
        self.sstamp = S.alloc(4, 2); self.vstamp = V.alloc()
        self.X, self.WQ, self.WO, self.W3, self.WD, self.OUT, self.WS, self.WSF, self.WSS = [f's[{24+4*i}:{27+4*i}]' for i in range(9)]
        A('s_load_dwordx16 s[4:19], s[0:1], 0\ns_load_dwordx4 s[20:23], s[0:1], 64')
        A('s_cmp_lt_u32 s2, 256\ns_cbranch_scc1 L_go\ns_endpgm\nL_go:')
        vL = self.vL = V.alloc(); t0 = V.alloc(2); t1 = V.alloc()
        A(f's_getpc_b64 s[24:25]\nL_pc:')
        A(f'v_and_b32 {vL}, 63, v0\nv_lshrrev_b32 {t1}, 6, v0')
        A(f's_lshr_b32 {s["T0"]}, s2, 3')
        A(f'v_readfirstlane_b32 {s["W"]}, {t1}')
        A(f'v_lshl_add_u32 {t1}, {s["T0"]}, 2, {t1}\nv_lshl_add_u32 {t1}, {t1}, 2, {vL}\nv_lshlrev_b32 {t1}, 7, {t1}')
        A(f'v_min_u32 {t1}, L_code_end-L_pc-4, {t1}')
        A(f'v_mov_b32 {t0[1]}, s25\nv_add_co_u32 {t0[0]}, vcc, s24, {t1}\nv_addc_co_u32 {t0[1]}, vcc, 0, {t0[1]}, vcc')
        A(f's_mov_b64 exec, 15\nglobal_load_dword v255, {t0}, off\ns_mov_b64 exec, -1')
        if self.o['stamps']:
            A(f'v_mov_b32 {self.vstamp}, 0')
            A(f'@raw 1\ns_memtime s[100:101]\n@raw 0')
        A(f's_and_b32 {s["M"]}, {s["T0"]}, 15\ns_and_b32 {s["C"]}, {s["T0"]}, 7\ns_lshr_b32 {s["SB"]}, {s["M"]}, 3')
        A(f's_and_b32 {s["T1"]}, s2, 7\ns_lshr_b32 {s["T0"]}, {s["T0"]}, 4\ns_lshl_b32 {s["G"]}, {s["T1"]}, 1\ns_add_u32 {s["G"]}, {s["G"]}, {s["T0"]}')
        A(f's_lshl_b32 {s["BLK"]}, {s["G"]}, 1\ns_add_u32 {s["BLK"]}, {s["BLK"]}, {s["SB"]}\ns_lshl_b32 {s["W1K"]}, {s["W"]}, 10')
        A(f'v_mov_b32 v254, {SCR_MODE + 16}')
        t0.free()
        e = V.alloc(); ch = V.alloc(); t2 = V.alloc()
        A(f'v_lshrrev_b32 {e}, 3, {vL}\nv_and_b32 {ch}, 7, {vL}')
        self.vHa = V.alloc(); self.vHb = V.alloc(); self.vXa = V.alloc(); self.vXb = V.alloc(); self.vW1 = V.alloc(); self.vW2 = V.alloc()
        A(f'v_lshrrev_b32 {t1}, 4, {vL}\nv_xor_b32 {t1}, {t1}, {ch}\nv_lshlrev_b32 {t1}, 4, {t1}')
        A(f's_lshl_b32 {s["T0"]}, {s["BLK"]}, 6\ns_sub_u32 {s["T1"]}, {s["T0"]}, 16')
        A(f'v_add_u32 {t2}, {s["T1"]}, {e}\nv_max_i32 {self.vHa}, 2, {t2}\nv_lshl_add_u32 {self.vHa}, {self.vHa}, 10, {t1}')
        A(f'v_add_u32 {t2}, 7, {t2}\nv_max_i32 {self.vHb}, 2, {t2}\nv_lshl_add_u32 {self.vHb}, {self.vHb}, 10, {t1}\nv_xor_b32 {self.vHb}, 64, {self.vHb}')
        A(f's_lshl_b32 {s["T1"]}, {s["W"]}, 4\ns_add_u32 {s["T1"]}, {s["T1"]}, {s["T0"]}')
        A(f'v_add_u32 {t2}, {s["T1"]}, {e}\nv_lshl_add_u32 {self.vXa}, {t2}, 10, {t1}\nv_add_u32 {self.vXb}, {7*1024}, {self.vXa}\nv_xor_b32 {self.vXb}, 64, {self.vXb}')
        A(f's_and_b32 {s["T1"]}, {s["W"]}, 1\ns_lshl_b32 {s["T1"]}, {s["T1"]}, 2')
        A(f'v_lshrrev_b32 {t1}, 3, {vL}\nv_and_b32 {t1}, 2, {t1}\nv_or_b32 {t1}, {s["T1"]}, {t1}\nv_xor_b32 {t1}, {t1}, {ch}\nv_lshlrev_b32 {t1}, 4, {t1}')
        A(f's_lshl_b32 {s["T1"]}, {s["W"]}, 3\nv_add_u32 {t2}, {s["T1"]}, {e}')
        A(f'v_lshl_add_u32 {self.vW2}, {t2}, 10, {t1}\nv_mul_u32_u24 {t2}, 3072, {t2}\nv_add_u32 {self.vW1}, {t2}, {t1}')
        fz = V.alloc(); ww = V.alloc()
        A(f'v_and_b32 {ww}, 3, {vL}')
        A(f's_lshl_b32 {s["T1"]}, {s["SB"]}, 7\ns_lshl_b32 {s["T2"]}, {s["C"]}, 4\ns_add_u32 {s["T1"]}, {s["T1"]}, {s["T2"]}')
        A(f'v_lshl_add_u32 {fz}, {ww}, 2, {s["T1"]}')
        A(f's_lshl_b32 {s["T1"]}, {s["SB"]}, 8\ns_lshl_b32 {s["T2"]}, {s["C"]}, 3\ns_add_u32 {s["T1"]}, {s["T1"]}, {s["T2"]}\ns_add_u32 {s["T1"]}, {s["T1"]}, 256')
        A(f'v_lshrrev_b32 {t1}, 1, {ww}\nv_lshl_add_u32 {t1}, {t1}, 7, {s["T1"]}\nv_and_b32 {t2}, 1, {ww}\nv_lshl_add_u32 {t1}, {t2}, 2, {t1}')
        A(f'v_cmp_lt_u32 vcc, 3, {vL}\nv_cndmask_b32 {fz}, {fz}, {t1}, vcc')
        A(f's_lshl_b32 {s["T1"]}, {s["M"]}, 2\ns_add_u32 {s["T1"]}, {s["T1"]}, 768\nv_lshl_add_u32 {t1}, {ww}, 7, {s["T1"]}')
        A(f'v_cmp_lt_u32 vcc, 7, {vL}\nv_cndmask_b32 {fz}, {fz}, {t1}, vcc')
        self.vFz = fz
        A(f's_lshl_b32 {s["FL"]}, {s["G"]}, 11\ns_add_u32 {s["FL"]}, {s["FL"]}, {WS_FL}\ns_add_u32 {s["T3"]}, {s["FL"]}, {FL_SLOW}')
        A(f'v_mov_b32 {t2}, 0')
        A('@waitlg0')
        def srd(b, lo, size):
            A(f's_mov_b32 s{b}, s{lo}\ns_mov_b32 s{b+1}, s{lo+1}\ns_mov_b32 s{b+2}, {size}\ns_mov_b32 s{b+3}, 0x20000')
        srd(48, 22, WS_SIZE)
        srd(24, 4, 2048*1024)
        A(f's_lshl_b32 {s["T1"]}, 0x111, {s["W"]}\ns_mov_b32 exec_lo, {s["T1"]}\ns_mov_b32 exec_hi, 0')
        A(f'buffer_store_dword {t2}, {fz}, {self.WS}, {s["FL"]} offen')
        A(f'buffer_store_dword {t2}, {fz}, {self.WS}, {s["T3"]} offen sc1', tag='fz')
        A('s_mov_b64 exec, -1')
        srd(28, 6, 512*3072)
        for r in (e, ch, t1, t2, ww): r.free()

    def p1_chunk_dma(self, i):
        s = self.s; sl = i % 3; g = []
        kc, so = self.sKC, self.sSO
        tag = f'ch{i}'
        g.append([Ins(f's_add_u32 {kc}, {s["C"]}, {i}'), Ins(f's_and_b32 {kc}, {kc}, 7')])
        g.append([Ins(f's_lshl_b32 {so}, {kc}, 7'), Ins(f's_add_u32 m0, {self.sW2K}, {L_X + sl*8192}')])
        g.append([Ins(f's_mul_i32 {kc}, {kc}, {64*3072}'), Ins(f'buffer_load_dwordx4 {self.vXa}, {self.X}, {so} offen lds', tag)])
        g.append([Ins(f's_add_u32 {kc}, {kc}, {self.sC128}'), Ins(f'buffer_load_dwordx4 {self.vXb}, {self.X}, {so} offen offset:1024 lds', tag)])
        for st in range(2):
            g.append([Ins(f's_add_u32 m0, {self.sW3K}, {L_W + sl*24576 + st*12288}')])
            for p in range(3):
                g.append([Ins(f'buffer_load_dwordx4 {self.vW1}, {self.WQ}, {kc} offen offset:{p*1024} lds', tag)])
            if st == 0: g.append([Ins(f's_add_u32 {kc}, {kc}, {32*3072}')])
        return g

    def p1_reads(self, i, st, buf):
        sl = i % 3; r = []
        W, X, O = buf
        r.append(Ins(f'ds_read_b128 {O}, {self.aXo[st]} offset:{sl*8192}'))
        for p in range(3):
            for a in range(2):
                r.append(Ins(f'ds_read_b64_tr_b16 {W[p].sub(2*a, 2)}, {self.aW1} offset:{sl*24576 + st*12288 + p*1024 + a*512}'))
            if p == 0:
                r.append(Ins(f'ds_read_b128 {X[0]}, {self.aX[st]} offset:{L_HALO + i*2048}'))
                for t in range(1, 5):
                    r.append(Ins(f'ds_read_b128 {X[t]}, {self.aX[st]} offset:{L_X + sl*8192 + (t-1)*2048}'))
        return r

    def p1_mfmas(self, buf, first):
        W, X, O = buf
        m = []
        c = lambda acc: '0' if first else str(acc)
        m.append(Ins(f'v_mfma_f32_16x16x32_bf16 {self.stG}, {O}, {O}, {c(self.stG)}'))
        m.append(Ins(f'v_mfma_f32_16x16x32_bf16 {self.stS}, {self.ones}, {O}, {c(self.stS)}'))
        for p, acc in enumerate((self.aQ, self.aK, self.aV)):
            for t in range(5):
                if p < 2: m.append(Ins(f'v_mfma_f32_16x16x32_bf16 {acc[t]}, {W[p]}, {X[t]}, {c(acc[t])}'))
                else: m.append(Ins(f'v_mfma_f32_16x16x32_bf16 {acc[t]}, {X[t]}, {W[p]}, {c(acc[t])}'))
        return m

    def stats_code(self, sq, sm, out4):
        L = []
        a = lambda t: L.append(Ins(t))
        a(f'v_mul_f32 {sm}, {fhex(-1/512)}, {sm}')
        a(f'v_fma_f32 {sq}, {sq}, {self.sInv512}, {self.vEps}')
        a(f'v_cvt_pk_bf16_f32 {out4[1]}, {sm}, {sm}')
        a(f'v_fma_f32 {sq}, -{sm}, {sm}, {sq}')
        a(f'v_and_b32 {out4[0]}, 0xffff0000, {out4[1]}')
        a(f'v_max_f32 {sq}, {sq}, {self.vEps}')
        a(f'v_rsq_f32 {out4[2]}, {sq}')
        a(f'v_mul_f32 {out4[3]}, {fhex(0.25*LOG2E)}, {out4[2]}')
        return L

    def diag_code(self, G4, dst):
        return [Ins(f'v_cndmask_b32 {G4[0]}, {G4[0]}, {G4[1]}, {self.mB0}'), Ins(f'v_cndmask_b32 {G4[2]}, {G4[2]}, {G4[3]}, {self.mB0}'),
                Ins(f'v_cndmask_b32 {dst}, {G4[0]}, {G4[2]}, {self.mB1}')]

    def weave16(self, mf, groups):
        A = self.A; groups = list(groups)
        for m in mf:
            A.L.append(m)
            if groups: A.ext(groups.pop(0))
        for g in groups: A.ext(g)

    def phase1(self):
        A, V, S, AG, s, vL = self.A, self.V, self.S, self.AG, self.s, self.vL
        self.sKC = S.alloc(); self.sSO = S.alloc(); self.sW2K = S.alloc(); self.sW3K = S.alloc(); self.sC128 = S.alloc(); self.sInv512 = S.alloc()
        A(f's_lshl_b32 {self.sW2K}, {s["W"]}, 11\ns_mul_i32 {self.sW3K}, {s["W"]}, 3072\ns_lshl_b32 {self.sC128}, {s["C"]}, 7')
        for q in range(2):
            A(f's_lshl_b32 {s["T0"]}, {s["W"]}, 1\ns_add_u32 {s["T0"]}, {s["T0"]}, {s["C"]}\ns_add_u32 {s["T0"]}, {s["T0"]}, {q}\ns_and_b32 {s["T0"]}, {s["T0"]}, 7\ns_lshl_b32 {s["T0"]}, {s["T0"]}, 7')
            A(f's_lshl_b32 {s["T1"]}, {s["W"]}, 12\ns_add_u32 m0, {s["T1"]}, {L_HALO + q*2048}')
            A(f's_mov_b32 exec_lo, 0xffffff00')
            A(f'buffer_load_dwordx4 {self.vHa}, {self.X}, {s["T0"]} offen lds', tag='halo')
            A(f's_mov_b32 exec_lo, -1')
            A(f'buffer_load_dwordx4 {self.vHb}, {self.X}, {s["T0"]} offen offset:1024 lds', tag='halo')
        for i in range(2):
            for g in self.p1_chunk_dma(i): A.ext(g)
        self.vHa.free(); self.vHb.free()
        def srd(b, lo, size):
            A(f's_mov_b32 s{b}, s{lo}\ns_mov_b32 s{b+1}, s{lo+1}\ns_mov_b32 s{b+2}, {size}\ns_mov_b32 s{b+3}, 0x20000')
        srd(32, 8, 512*1024); srd(40, 16, 1376*1024); srd(44, 18, 2048*1024); srd(52, 22, 0); srd(56, 22, 0)
        A(f's_cmp_lt_u32 {s["W"]}, 2\ns_cselect_b32 s36, s12, s14\ns_cselect_b32 s37, s13, s15\ns_mov_b32 s39, 0x20000')
        A(f's_cmp_lt_u32 {s["M"]}, 15\ns_cselect_b32 s38, {512*PITCH3}, 0')
        S.free |= set(range(4, 20))
        A(f's_mov_b32 {self.sInv512}, {fhex(1/512)}')
        self.vEps = V.alloc(); A(f'v_mov_b32 {self.vEps}, {fhex(1e-5)}')
        j = self.vJ = V.alloc(); g = self.vG = V.alloc(); t1 = V.alloc(); t2 = V.alloc(); t3 = V.alloc()
        A(f'v_and_b32 {j}, 15, {vL}\nv_lshrrev_b32 {g}, 4, {vL}')
        self.aX = [V.alloc(), V.alloc()]; self.aXo = [V.alloc(), V.alloc()]; self.aW1 = V.alloc()
        A(f'v_lshrrev_b32 {t1}, 1, {j}\nv_xor_b32 {t1}, {t1}, {g}\nv_lshlrev_b32 {t1}, 4, {t1}\nv_lshl_add_u32 {self.aX[0]}, {j}, 7, {t1}\nv_xor_b32 {self.aX[1]}, 64, {self.aX[0]}')
        A(f's_add_u32 {s["T0"]}, {self.sW2K}, {L_X}\nv_add_u32 {self.aXo[0]}, {s["T0"]}, {self.aX[0]}\nv_add_u32 {self.aXo[1]}, {s["T0"]}, {self.aX[1]}')
        self.vTRf = V.alloc(); self.vTRb = V.alloc()
        A(f'v_bfe_u32 {t1}, {vL}, 3, 2\nv_lshlrev_b32 {self.vTRf}, 5, {t1}')
        A(f'v_bfe_u32 {t1}, {vL}, 2, 2\nv_and_b32 {t2}, 3, {vL}\nv_lshlrev_b32 {t2}, 3, {t2}\nv_lshl_add_u32 {self.vTRb}, {t1}, 7, {t2}')
        A(f's_lshl_b32 {s["T0"]}, {s["W"]}, 5\nv_xor_b32 {t1}, {s["T0"]}, {self.vTRf}\nv_mul_u32_u24 {t2}, 3072, {g}\nv_add3_u32 {self.aW1}, {t1}, {t2}, {self.vTRb}\nv_add_u32 {self.aW1}, {L_W}, {self.aW1}')
        self.mB0 = S.alloc(2); self.mB1 = S.alloc(2); self.mDiag = S.alloc(2); self.mOwnA = S.alloc(2); self.mOwnB = S.alloc(2)
        A(f's_mov_b32 {self.mB0[0]}, 0xaaaaaaaa\ns_mov_b32 {self.mB0[1]}, 0xaaaaaaaa\ns_mov_b32 {self.mB1[0]}, 0xcccccccc\ns_mov_b32 {self.mB1[1]}, 0xcccccccc')
        A(f's_mov_b32 {self.mDiag[0]}, 0x00f0000f\ns_mov_b32 {self.mDiag[1]}, 0xf0000f00')
        def lanemask(fn):
            v = sum(1 << l for l in range(64) if fn(l & 15, l >> 4)); return v & 0xffffffff, v >> 32
        oa = lanemask(lambda jj, gg: 4*gg + (jj & 1) <= jj); ob = lanemask(lambda jj, gg: 4*gg + 2 + (jj & 1) <= jj)
        A(f's_mov_b32 {self.mOwnA[0]}, {hex(oa[0])}\ns_mov_b32 {self.mOwnA[1]}, {hex(oa[1])}\ns_mov_b32 {self.mOwnB[0]}, {hex(ob[0])}\ns_mov_b32 {self.mOwnB[1]}, {hex(ob[1])}')
        self.ones = V.alloc(4, 2)
        for k in range(4): A(f'v_mov_b32 {self.ones[k]}, 0x3f803f80')
        A(f's_lshl_b32 {s["T0"]}, {s["W"]}, 12\nv_lshrrev_b32 {t1}, 3, {vL}\nv_lshlrev_b32 {t1}, 11, {t1}\nv_and_b32 {t2}, 7, {vL}\nv_lshl_add_u32 {t1}, {t2}, 4, {t1}\nv_add_u32 {t1}, {s["T0"]}, {t1}')
        A(f's_mov_b64 exec, 0xffff\nds_write_b128 {t1}, {self.ones} offset:{L_HALO}\ns_mov_b64 exec, -1')
        A(f'v_mov_b32 {t2}, 0\nv_lshlrev_b32 {t1}, 2, v0\nv_add_u32 {t1}, {SCR_CS}, {t1}\nds_write_b32 {t1}, {t2}')
        A('@waitlg0\n@waitvm fz\ns_barrier')
        A(f's_getreg_b32 {s["T0"]}, hwreg(HW_REG_XCC_ID, 0, 4)\ns_mul_i32 {s["T1"]}, {s["T0"]}, {s["T0"]}\ns_lshl_b32 {s["T1"]}, {s["T1"]}, 13\ns_lshl_b32 {s["T0"]}, {s["T0"]}, 5')
        self.sCen = S.alloc(); self.sCoff = S.alloc(); self.sCv = S.alloc()
        A(f's_add_u32 {self.sCen}, {s["T0"]}, {s["T1"]}\ns_add_u32 {self.sCen}, {self.sCen}, 1\ns_lshl_b32 {self.sCoff}, {s["G"]}, 4')
        A(f's_cmp_lg_u32 {s["W"]}, 0\ns_cbranch_scc1 L_nocen\n@raw 1\ns_atomic_add {self.sCen}, s[20:21], {self.sCoff}\n@raw 0\nL_nocen:')
        if not self.o['stamps']: A('@minlg 1')
        self.stamp('census')
        self.aQ = [V.alloc(4, 2) for _ in range(5)]; self.aK = [V.alloc(4, 2) for _ in range(5)]; self.aV = [V.alloc(4, 2) for _ in range(5)]
        self.stG = V.alloc(4, 2); self.stS = V.alloc(4, 2)
        bufs = [([AG.alloc(4, 4) for _ in range(3)], [AG.alloc(4, 4) for _ in range(5)], AG.alloc(4, 4)) for _ in range(2)]
        hb = bufs[1][1]
        A(f's_lshl_b32 {s["T0"]}, {s["W"]}, 12\nv_add_u32 {t1}, {s["T0"]}, {self.aX[0]}\nv_add_u32 {t2}, {s["T0"]}, {self.aX[1]}')
        A('@waitvm halo')
        self.stamp('halo landed')
        for q in range(4): A(f'ds_read_b128 {hb[q]}, {(t1, t2)[q & 1]} offset:{L_HALO + (q >> 1)*2048}')
        for gq in self.p1_chunk_dma(2): A.ext(gq)
        for q in range(4):
            A(f'v_mfma_f32_16x16x32_bf16 {self.stG}, {hb[q]}, {hb[q]}, {self.stG if q else 0}')
            A(f'v_mfma_f32_16x16x32_bf16 {self.stS}, {self.ones}, {hb[q]}, {self.stS if q else 0}')
        A(f's_lshl_b32 {s["T0"]}, {s["W"]}, 3\ns_add_u32 {s["T0"]}, {s["T0"]}, {SCR_HP}\nv_lshl_add_u32 {t3}, {j}, 5, {s["T0"]}')
        A.ext(self.diag_code(self.stG, self.stS[1]))
        A(f's_mov_b64 exec, {self.mDiag}\nds_write_b64 {t3}, {self.stS.sub(0, 2)}\ns_mov_b64 exec, -1')
        ra = [V.alloc() for _ in range(4)]
        self.resx = V.alloc(8, 2)
        A(f'v_lshrrev_b32 {t1}, 1, {j}\nv_lshrrev_b32 {t2}, 1, {g}\nv_xor_b32 {t1}, {t1}, {t2}\nv_lshlrev_b32 {t1}, 4, {t1}\nv_and_b32 {t2}, 1, {g}\nv_lshl_add_u32 {t1}, {t2}, 3, {t1}')
        A(f'v_lshl_add_u32 {t1}, {j}, 7, {t1}\ns_add_u32 {s["T0"]}, {self.sW2K}, {L_X}\nv_add_u32 {ra[0]}, {s["T0"]}, {t1}')
        for ct in range(1, 4): A(f'v_xor_b32 {ra[ct]}, {ct*32}, {ra[0]}')
        aTB = self.aTB = V.alloc()
        A(f'v_lshlrev_b32 {aTB}, 4, {j}\nv_add_u32 {aTB}, {SCR_TB}, {aTB}\nv_lshlrev_b32 {t3}, 5, {j}\nv_add_u32 {t3}, {SCR_HP}, {t3}')
        A('@waitlg0\n@waitvm ch0\ns_barrier')
        self.stamp('chunk0 visible')
        A.ext(self.p1_reads(0, 0, bufs[0]))
        hp = V.alloc(8, 2); tb4 = V.alloc(4, 2)
        A(f'ds_read_b128 {hp.sub(0, 4)}, {t3}\nds_read_b128 {hp.sub(4, 4)}, {t3} offset:16')
        for ct in range(4): A(f'ds_read_b64 {self.resx.sub(2*ct, 2)}, {ra[ct]}')
        A(f'v_pk_add_f32 {hp.sub(0, 2)}, {hp.sub(0, 2)}, {hp.sub(2, 2)}\nv_pk_add_f32 {hp.sub(4, 2)}, {hp.sub(4, 2)}, {hp.sub(6, 2)}\nv_pk_add_f32 {hp.sub(0, 2)}, {hp.sub(0, 2)}, {hp.sub(4, 2)}')
        A.ext(self.stats_code(hp[1], hp[0], tb4))
        A(f'ds_write_b128 {aTB}, {tb4}')
        for r in ra: r.free()
        hp.free()
        self.build_stream()
        pend = []
        for n in range(16):
            i, st = n >> 1, n & 1
            A('@waitlg0')
            if st == 1:
                if i < 7:
                    A(f'@waitvm ch{i+1}\ns_barrier')
                    if i == 4: A('@minlg 0')
                    if i + 3 < 8: pend += self.p1_chunk_dma(i + 3)
                    if i == 5:
                        self.free_blocks += [23, 24, 25, 26, 27]
                        pend += self.touch1()
                        for _ in range(8): pend += self.dma_next()
                    if i == 6:
                        for _ in range(8): pend += self.dma_next()
                        self.free_blocks += [22, 8, 9] + list(range(10, 16)) + [4, 5]
            mf = self.p1_mfmas(bufs[n & 1], n == 0)
            groups = []
            if n < 15:
                rd = self.p1_reads((n + 1) >> 1, (n + 1) & 1, bufs[(n + 1) & 1])
                for k in range(17):
                    gq = []
                    take = pend and (k >= 12 or k % 3 == 2)
                    d = pend.pop(0) if take else []
                    gq += [x for x in d if x.kind == 'salu']
                    if k < 12: gq.append(rd[k])
                    gq += [x for x in d if x.kind != 'salu']
                    groups.append(gq)
                if n == 12:
                    groups[16] += [Ins('@raw 1'), Ins(f's_load_dword {self.sCv}, s[20:21], {self.sCoff} glc'), Ins('@raw 0')]
            else:
                code = self.diag_code(self.stG, self.stS[1]) + self.stats_code(self.stS[1], self.stS[0], tb4)
                code += [Ins(f's_lshl_b32 {s["T0"]}, {s["W"]}, 8'), Ins(f'v_add_u32 {t3}, {s["T0"]}, {aTB}'), Ins(f's_mov_b64 exec, {self.mDiag}'),
                         Ins(f'ds_write_b128 {t3}, {tb4} offset:256'), Ins('s_mov_b64 exec, -1')]
                groups = [[] for _ in range(5)]
                for k in range(5):
                    if pend: groups[k] = pend.pop(0)
                groups += [code[0:2], code[2:4], code[4:6], code[6:8], code[8:10], code[10:13], code[13:16]]
            self.weave16(mf, groups)
        for gq in pend: A.ext(gq)
        self.stamp('p1 gemm done')
        for b in bufs:
            for r in b[0] + b[1] + [b[2]]: r.free()
        A(f'@raw 1\ns_waitcnt lgkmcnt(0)\n@raw 0\n@drained_lg')
        A(f's_and_b32 {s["T0"]}, {self.sCv}, 31\ns_cmp_lt_u32 {s["T0"]}, 16\ns_cbranch_scc1 L_cen_slow\nL_cen_ok:')
        T = self.tail
        T(f'L_cen_slow:\ns_mov_b32 {s["T1"]}, 0x8000\nL_cen_loop:\ns_load_dword {self.sCv}, s[20:21], {self.sCoff} glc\ns_waitcnt lgkmcnt(0)')
        T(f's_sub_u32 {s["T1"]}, {s["T1"]}, 1\ns_cbranch_scc1 L_cen_ok\ns_and_b32 {s["T0"]}, {self.sCv}, 31\ns_cmp_lt_u32 {s["T0"]}, 16\ns_cbranch_scc1 L_cen_loop\ns_branch L_cen_ok')
        A('s_barrier')
        self.free_blocks += list(range(16, 22)) + [6, 7, 0, 1, 2, 3]
        tb = [V.alloc(4, 2) for _ in range(5)]
        for t in range(5): A(f'ds_read_b128 {tb[t]}, {aTB} offset:{t*256}')
        A(f's_lshl_b32 {s["T0"]}, {self.sCen}, 4\ns_cmp_eq_u32 {s["T0"]}, {self.sCv}')
        if self.o['force_slow']: A('s_cmp_eq_u32 0, 1')
        A(f's_cselect_b32 s54, {WS_SIZE}, 0\ns_cselect_b32 s58, 0, {WS_SIZE}\ns_cselect_b32 {s["T0"]}, 0, {FL_SLOW}\ns_add_u32 {s["FL"]}, {s["FL"]}, {s["T0"]}')
        for _ in range(self.o['b_epi']):
            for gq in self.dma_next(): A.ext(gq)
        ka = V.alloc(); kb = V.alloc()
        A(f'v_and_b32 {t1}, 1, {j}\nv_lshl_add_u32 {t1}, {g}, 2, {t1}\nv_lshlrev_b32 {t1}, 4, {t1}\nv_add_u32 {t1}, {SCR_TB + 8}, {t1}\nv_add_u32 {t2}, 256, {t1}')
        A(f'v_cndmask_b32 {ka}, {t1}, {t2}, {self.mOwnA}\nv_cndmask_b32 {kb}, {t1}, {t2}, {self.mOwnB}')
        rk = [None] + [V.alloc(2) for _ in range(4)]
        for t in range(1, 5): A(f'ds_read_b32 {rk[t][0]}, {ka} offset:{(t-1)*256}\nds_read_b32 {rk[t][1]}, {kb} offset:{(t-1)*256 + 32}')
        ka.free(); kb.free()
        csq = V.alloc(4, 2); csk = V.alloc(4, 2); csv = V.alloc(2, 2)
        for r in range(4): A(f'v_mov_b32_dpp {csk[r]}, {self.aK[0][r]} row_newbcast:0 row_mask:0xf bank_mask:0xf')
        for r in range(4): A(f'v_mov_b32_dpp {csq[r]}, {self.aQ[0][r]} row_newbcast:0 row_mask:0xf bank_mask:0xf')
        A(f'v_cvt_pk_bf16_f32 {t1}, {self.aV[0][0]}, {self.aV[0][0]}\nv_mov_b32 {csv[0]}, 0\nv_and_b32 {t1}, 0xffff0000, {t1}\nv_mov_b32 {csv[1]}, 0\nv_sub_f32 {t2}, {self.aV[0][0]}, {t1}')
        A(f's_mov_b64 exec, 0xffff\nv_cvt_pk_bf16_f32 {csv[1]}, {t1}, {t2}\ns_mov_b64 exec, -1')
        Kp = V.alloc(10, 2); Qp = V.alloc(10, 2); Vp = V.alloc(10, 2)
        def fix(acc, cs, t, dst):
            for h in range(2):
                A(f'v_pk_fma_f32 {acc[t].sub(2*h, 2)}, {cs.sub(2*h, 2)}, {tb[t].sub(0, 2)}, {acc[t].sub(2*h, 2)} op_sel_hi:[1,0,1]')
            for h in range(2):
                A(f'v_cvt_pk_bf16_f32 {dst[2*t + h]}, {acc[t][2*h]}, {acc[t][2*h+1]}')
        fix(self.aK, csk, 0, Kp)
        for t in range(1, 5):
            fix(self.aK, csk, t, Kp); fix(self.aQ, csq, t, Qp)
        zs = [None] + [V.alloc(2) for _ in range(4)]
        for t in range(1, 5): A(f'v_pk_mul_f32 {zs[t]}, {rk[t]}, {tb[t].sub(2, 2)} op_sel:[0,1] op_sel_hi:[1,1]')
        So, Sp = self.aQ, self.aK
        for t in range(1, 5):
            A(f'v_mfma_f32_16x16x16_bf16 {Sp[t]}, {Kp.sub(2*t-2, 2)}, {Qp.sub(2*t, 2)}, 0')
            A(f'v_mfma_f32_16x16x16_bf16 {So[t]}, {Kp.sub(2*t, 2)}, {Qp.sub(2*t, 2)}, 0')
        z = [None] + [V.alloc(2) for _ in range(4)]
        bias = V.alloc(2); sel = V.alloc(4)
        vm = [Ins(f'v_mfma_f32_16x16x16_bf16 {self.aV[t]}, {tb[t].sub(0, 2)}, {csv}, {self.aV[t]}') for t in range(5)]
        A(f's_cmp_eq_u32 {s["BLK"]}, 0\ns_cselect_b32 {s["T0"]}, {fhex(-1e30)}, 0')
        A.L.append(vm[0])
        A(f'v_mov_b32 {t1}, {s["T0"]}\nv_mov_b32 {t3}, 0x0c0c0c0c')
        A.L.append(vm[1])
        A(f'v_cndmask_b32 {bias[0]}, {t1}, 0, {self.mOwnA}\nv_cndmask_b32 {bias[1]}, {t1}, 0, {self.mOwnB}')
        A.L.append(vm[2])
        A(f'v_mov_b32 {t1}, 0x0c0c0100\nv_mov_b32 {t2}, 0x01000c0c')
        A.L.append(vm[3])
        A(f'v_cndmask_b32 {t1}, {t1}, {t2}, {self.mB0}')
        A.L.append(vm[4])
        A(f'v_cndmask_b32 {sel[0]}, {t1}, {t3}, {self.mOwnA}\nv_cndmask_b32 {sel[2]}, {t3}, {t1}, {self.mOwnA}')
        A(f'v_mov_b32 {t1}, 0x0c0c0302\nv_mov_b32 {t2}, 0x03020c0c\nv_cndmask_b32 {t1}, {t1}, {t2}, {self.mB0}')
        A(f'v_cndmask_b32 {sel[1]}, {t1}, {t3}, {self.mOwnB}\nv_cndmask_b32 {sel[3]}, {t3}, {t1}, {self.mOwnB}')
        for t in range(1, 5):
            for h, mk in ((0, self.mOwnA), (1, self.mOwnB)):
                A(f'v_cndmask_b32 {Sp[t][2*h]}, {Sp[t][2*h]}, {Sp[t][2*h+1]}, {self.mB0}\nv_cndmask_b32 {So[t][2*h]}, {So[t][2*h]}, {So[t][2*h+1]}, {self.mB0}')
                A(f'v_cndmask_b32 {z[t][h]}, {Sp[t][2*h]}, {So[t][2*h]}, {mk}')
        A(f'v_pk_fma_f32 {z[1]}, {z[1]}, {zs[1]}, {bias}')
        for t in range(2, 5): A(f'v_pk_mul_f32 {z[t]}, {z[t]}, {zs[t]}')
        red = [None] + [V.alloc(2) for _ in range(4)]
        vcv = [Ins(f'v_cvt_pk_bf16_f32 {Vp[2*t+h]}, {self.aV[t][2*h]}, {self.aV[t][2*h+1]}') for t in range(5) for h in range(2)]
        def fill(n):
            for _ in range(n):
                if vcv: A.L.append(vcv.pop(0))
        def allreduce(op, mid=None):
            r = [None] + [red[t][0] for t in range(1, 5)]
            for t in (1, 3, 2, 4): A(f'{op} {r[t]}, {z[t][0]}, {z[t][1]}')
            A(f'v_permlane32_swap_b32 {r[1]}, {r[3]}'); fill(1)
            A(f'v_permlane32_swap_b32 {r[2]}, {r[4]}')
            A(f'{op} {r[1]}, {r[1]}, {r[3]}\n{op} {r[2]}, {r[2]}, {r[4]}'); fill(2)
            A(f'v_permlane16_swap_b32 {r[1]}, {r[2]}')
            if mid:
                A(f'{op} {r[1]}, {r[1]}, {r[2]}\n{mid} {r[2]}, {r[1]}\n{mid} {r[1]}, {r[1]}')
            else:
                A(f'{op} {red[1][1]}, {r[1]}, {r[2]}\n{op} {r[2]}, {r[1]}, {r[2]}\nv_mov_b32 {r[1]}, {red[1][1]}')
            fill(2)
            A(f'v_permlane16_swap_b32 {r[1]}, {r[2]}')
            A(f'v_mov_b32 {r[3]}, {r[1]}\nv_mov_b32 {r[4]}, {r[2]}'); fill(1)
            A(f'v_permlane32_swap_b32 {r[1]}, {r[3]}\nv_permlane32_swap_b32 {r[2]}, {r[4]}')
        allreduce('v_max_f32')
        for t in range(1, 5): A(f'v_pk_add_f32 {z[t]}, {z[t]}, {red[t]} op_sel_hi:[1,0] neg_lo:[0,1] neg_hi:[0,1]')
        for t in range(1, 5): A(f'v_exp_f32 {z[t][0]}, {z[t][0]}\nv_exp_f32 {z[t][1]}, {z[t][1]}')
        allreduce('v_add_f32', 'v_rcp_f32')
        fill(10)
        for t in range(1, 5): A(f'v_pk_mul_f32 {z[t]}, {z[t]}, {rk[t]}')
        for t in range(1, 5): A(f'v_pk_mul_f32 {z[t]}, {z[t]}, {red[t]} op_sel_hi:[1,0]')
        for t in range(1, 5): A(f'v_cvt_pk_bf16_f32 {z[t][0]}, {z[t][0]}, {z[t][1]}')
        P = Sp; O = So
        for t in range(1, 5):
            for q in range(4): A(f'v_perm_b32 {P[t][q]}, {z[t][0]}, {z[t][0]}, {sel[q]}')
            if t > 1: A(f'v_mfma_f32_16x16x32_bf16 {O[t-1]}, {Vp.sub(2*t-4, 4)}, {P[t-1]}, 0')
        A(f's_lshl_b32 {s["T0"]}, {s["BLK"]}, 16\ns_lshl_b32 {s["T1"]}, {s["C"]}, 13')
        A(f'v_mfma_f32_16x16x32_bf16 {O[4]}, {Vp.sub(6, 4)}, {P[4]}, 0')
        A(f's_add_u32 {s["T0"]}, {s["T0"]}, {s["T1"]}\ns_add_u32 {s["T0"]}, {s["T0"]}, {self.sW2K}')
        self.vL16 = V.alloc(); A(f'v_lshlrev_b32 {self.vL16}, 4, {vL}')
        of = [self.aV[0], self.aV[1]]
        for pr in range(2):
            for q in range(2):
                t = 1 + 2*pr + q
                for h in range(2): A(f'v_cvt_pk_bf16_f32 {of[pr][2*q+h]}, {O[t][2*h]}, {O[t][2*h+1]}')
            A(f'v_permlane16_swap_b32 {of[pr][0]}, {of[pr][2]}\nv_permlane16_swap_b32 {of[pr][1]}, {of[pr][3]}')
            self.store2(A, 'dwordx4', of[pr], self.vL16, s["T0"], WS_O + pr*1024, 'ost')
        self.stamp('o stored')
        for r in tb + rk[1:] + zs[1:] + z[1:] + red[1:] + [csq, csk, csv, Kp, Qp, Vp, bias, sel, tb4, self.stG, self.stS, aTB, self.aW1] + self.aQ + self.aK + self.aV + self.aX + self.aXo: r.free()
        for r in (self.vXa, self.vXb, self.vW1, self.mOwnA, self.mOwnB, self.sCen, self.sCoff, self.sCv, self.sW3K): r.free()
        self.t1, self.t2, self.t3 = t1, t2, t3

    def store2(self, A, w, data, voff, soff, off, tag):
        assert off < 4096
        o = f' offset:{off}' if off else ''
        A(f'buffer_store_{w} {data}, {voff}, {self.WSF}, {soff} offen{o}', tag=tag)
        A(f'buffer_store_{w} {data}, {voff}, {self.WSS}, {soff} offen{o} sc1', tag=tag)

    def signal(self, kind, val):
        s = self.s; L = Asm()
        L(f's_lshl_b32 exec_lo, {1 << (4*kind)}, {s["W"]}\ns_mov_b32 exec_hi, 0\nv_mov_b32 {self.vFv}, {val}')
        self.store2(L, 'dword', self.vFv, self.vFz, s["FL"], 0, 'flag')
        L('s_mov_b64 exec, -1')
        return L.L

    def poll_block(self, A, addr, val):
        s = self.s; n = self.nlabel; self.nlabel += 1
        A(f's_mov_b32 {s["T3"]}, 0x20000\n@raw 1\nL_poll{n}:\nbuffer_load_dword {self.vPv}, {addr}, {self.WS}, {s["FL"]} offen sc1\ns_waitcnt vmcnt(0)')
        A(f'v_cmp_gt_u32 vcc, {val}, {self.vPv}\ns_sub_u32 {s["T3"]}, {s["T3"]}, 1\ns_cbranch_scc1 L_pd{n}\ns_cbranch_vccnz L_poll{n}\nL_pd{n}:\n@raw 0')

    def touch1(self):
        V, s, vL = self.V, self.s, self.vL
        L = Asm(); a = V.alloc(); b = V.alloc()
        L(f's_lshl_b32 {s["T0"]}, {s["BLK"]}, 16\ns_lshl_b32 {s["T1"]}, {s["C"]}, 13\ns_add_u32 {s["T0"]}, {s["T0"]}, {s["T1"]}\ns_add_u32 {s["T0"]}, {s["T0"]}, {self.sW2K}')
        L(f'v_mov_b32 {a}, {s["T0"]}')
        L(f's_lshr_b32 {s["T1"]}, {s["W"]}, 1\ns_lshl_b32 {s["T0"]}, {s["BLK"]}, 1\ns_add_u32 {s["T0"]}, {s["T0"]}, {s["T1"]}\ns_lshl_b32 {s["T0"]}, {s["T0"]}, 15')
        L(f's_lshl_b32 {s["T1"]}, {s["C"]}, 12\ns_add_u32 {s["T0"]}, {s["T0"]}, {s["T1"]}\ns_and_b32 {s["T1"]}, {self.sW2K}, 2048\ns_add_u32 {s["T0"]}, {s["T0"]}, {s["T1"]}\ns_add_u32 {s["T0"]}, {s["T0"]}, {WS_H}')
        L(f's_mov_b64 exec, 0xffff0000\nv_mov_b32 {a}, {s["T0"]}\ns_mov_b32 exec_lo, 0\ns_mov_b32 exec_hi, -1\nv_mov_b32 {a}, {s["FL"]}\ns_mov_b64 exec, -1')
        L(f'v_lshl_add_u32 {a}, {self.vJ}, 7, {a}')
        L(f's_lshl_b32 {s["T0"]}, {s["G"]}, 13\ns_lshl_b32 {s["T1"]}, {s["M"]}, 9\ns_add_u32 {s["T0"]}, {s["T0"]}, {s["T1"]}\ns_lshl_b32 {s["T1"]}, {s["W"]}, 7\ns_add_u32 {s["T0"]}, {s["T0"]}, {s["T1"]}\ns_add_u32 {s["T0"]}, {s["T0"]}, {WS_ST}')
        L(f's_mov_b32 exec_lo, 0\ns_mov_b32 exec_hi, 0xfffffc00\nv_mov_b32 {a}, {s["T0"]}\ns_mov_b32 exec_lo, -1\ns_mov_b32 exec_hi, 0x7ff')
        L(f'buffer_load_dword {b}, {a}, {self.WS}, 0 offen sc1\ns_mov_b64 exec, -1')
        self.touch_regs = (a, b)
        self.A.ext(L)
        return []

    def build_stream(self):
        st = [('W2', i) for i in range(16)]
        for q in range(8): st += [('F1', 2*q), ('H1', q), ('F1', 2*q + 1)]
        st += [('S2', i) for i in range(16)] + [('S3', q) for q in range(8)]
        st += [('W4', i) for i in range(43)]
        self.stream = st
        self.sD = self.S.alloc()
        A, V, S, s, vL = self.A, self.V, self.S, self.s, self.vL
        self.vF = V.alloc(); self.vH = V.alloc(); self.vD = V.alloc()
        a = V.alloc(); b = V.alloc(); c = V.alloc()
        self.sBF = S.alloc(2); self.sBH = S.alloc(2); self.sR2 = S.alloc(4); self.sR3 = S.alloc(); self.sU = S.alloc(2)
        A(f's_and_b32 {s["PF"]}, {s["M"]}, 1\ns_mul_i32 {s["T0"]}, {s["M"]}, 192\ns_mul_i32 {s["T1"]}, {s["PF"]}, {PITCH3}')
        A(f's_add_u32 {s["T2"]}, {s["T0"]}, {s["T1"]}\ns_sub_u32 {s["T3"]}, {s["T0"]}, {s["T1"]}\ns_add_u32 {s["T3"]}, {s["T3"]}, {PITCH3}')
        A(f's_and_b32 {self.sR3}, {s["G"]}, 1\ns_lshl_b32 {self.sR3}, {self.sR3}, 2\ns_mul_i32 {s["T0"]}, {self.sR3}, {64*PITCH3}\ns_sub_u32 {s["T1"]}, {256*PITCH3}, {s["T0"]}')
        A(f's_add_u32 {self.sBF[0]}, {s["T2"]}, {s["T0"]}\ns_add_u32 {self.sBF[1]}, {s["T2"]}, {s["T1"]}\ns_add_u32 {self.sBH[0]}, {s["T3"]}, {s["T0"]}\ns_add_u32 {self.sBH[1]}, {s["T3"]}, {s["T1"]}')
        for k in range(4): A(f's_xor_b32 {s["T0"]}, {s["BLK"]}, {k}\ns_and_b32 {s["T0"]}, {s["T0"]}, 3\ns_lshl_b32 {s["T0"]}, {s["T0"]}, 17\ns_add_u32 {self.sR2[k]}, {s["T0"]}, {self.sC128}')
        A(f's_and_b32 {s["T0"]}, {s["W"]}, 1\ns_and_b32 {s["T1"]}, {s["W"]}, 2')
        A(f'v_lshrrev_b32 {a}, 4, {vL}\nv_lshlrev_b32 {a}, 3, {a}\nv_bfe_u32 {b}, {vL}, 3, 1\nv_add_u32 {a}, {a}, {b}\nv_lshl_add_u32 {a}, {s["T0"]}, 1, {a}\nv_mul_u32_u24 {a}, {2*PITCH3}, {a}')
        A(f'v_bfe_u32 {b}, {vL}, 4, 1\nv_or_b32 {b}, {s["T1"]}, {b}\nv_lshlrev_b32 {b}, 1, {b}\nv_and_b32 {c}, 7, {vL}\nv_xor_b32 {b}, {b}, {c}\nv_lshl_add_u32 {self.vF}, {b}, 4, {a}')
        A(f'v_bfe_u32 {a}, {vL}, 3, 2\nv_lshlrev_b32 {a}, 3, {a}\nv_lshrrev_b32 {b}, 5, {vL}\nv_lshl_add_u32 {a}, {b}, 1, {a}\nv_bfe_u32 {b}, {vL}, 2, 1\nv_add_u32 {a}, {a}, {b}\nv_lshl_add_u32 {a}, {s["T0"]}, 2, {a}\nv_mul_u32_u24 {a}, {2*PITCH3}, {a}')
        A(f'v_and_b32 {b}, 3, {vL}\nv_xor_b32 {b}, {s["T1"]}, {b}\nv_lshl_add_u32 {self.vH}, {b}, 4, {a}')
        A(f'v_lshrrev_b32 {a}, 3, {vL}\nv_lshl_add_u32 {a}, {s["T0"]}, 3, {a}\nv_bfe_u32 {b}, {vL}, 4, 1\nv_lshlrev_b32 {b}, 2, {b}\nv_xor_b32 {b}, {b}, {c}\nv_lshlrev_b32 {b}, 4, {b}\nv_lshl_add_u32 {self.vD}, {a}, 10, {b}')
        A(f's_lshl_b32 {s["T1"]}, {s["T1"]}, 13\ns_add_u32 {self.sU[0]}, {s["T1"]}, {self.sC128}\ns_mul_i32 {s["T1"]}, {s["T1"]}, 6\ns_add_u32 {self.sU[1]}, {s["T1"]}, {self.sC128}')
        for r in (a, b, c): r.free()

    @staticmethod
    def p4_unit(i):
        if i < 15: return 0, 6*i
        if i < 29: return 0, 6*(i - 15) + 2
        if i < 36: return 1, 12*(i - 29) + 4
        return 1, 12*(i - 36) + 5

    def dma_next(self):
        if not self.stream or not self.free_blocks: return []
        key = self.stream.pop(0); b = self.free_blocks.pop(0)
        self.loc[key] = b; self.issued.append(key)
        s, D = self.s, self.sD; kind, i = key; tag = f'{kind}_{i}'
        pre = []
        if kind == 'W2':
            assert 23 <= b <= 38
            pre = [f's_add_u32 {D}, {self.sR2[i >> 2]}, {(i & 3) << 15}']
            ld = f'buffer_load_dwordx4 {self.vW2}, {self.WO}, {D} offen lds'
        elif kind in ('F1', 'S2', 'H1', 'S3'):
            full = kind in ('F1', 'S2')
            cp = i >> 1 if full else i
            base = self.sBF if kind in ('F1', 'S3') else self.sBH
            add = {'F1': 0, 'H1': 0, 'S2': 64, 'S3': 128}[kind] + (8*PITCH3*(i & 1) if full else 0)
            pre = [f's_add_u32 {D}, {base[cp >> 2]}, {(cp & 3)*64*PITCH3 + add}']
            if key == ('S2', 0): pre += [f's_cmp_lt_u32 {s["M"]}, 14', f's_cselect_b32 s38, s38, 0']
            ld = f'buffer_load_dwordx4 {self.vF if full else self.vH}, {self.W3}, {D} offen lds'
        else:
            sel, u = self.p4_unit(i)
            pre = [f's_add_u32 {D}, {self.sU[sel]}, {u*16384}']
            ld = f'buffer_load_dwordx4 {self.vD}, {self.WD}, {D} offen lds'
        g = [Ins(f's_add_u32 m0, {s["W1K"]}, {b*BLK}')] + [Ins(x) for x in pre] + [Ins(ld, tag)]
        return [g]

    def phase2(self):
        A, V, S, AG, s, vL = self.A, self.V, self.S, self.AG, self.s, self.vL
        t1, t2, t3, j, g = self.t1, self.t2, self.t3, self.vJ, self.vG
        self.vFv = V.alloc(); self.vPv = V.alloc()
        aw = [V.alloc() for _ in range(4)]
        A(f'v_lshl_add_u32 {t1}, {g}, 10, {self.vTRb}\nv_add_u32 {t1}, {23*BLK}, {t1}')
        for ct in range(4): A(f'v_xor_b32 {t2}, {ct*32}, {self.vTRf}\nv_add_u32 {aw[ct]}, {t1}, {t2}')
        pa = V.alloc(); oa = V.alloc()
        A(f's_lshl_b32 {s["T0"]}, {s["SB"]}, 7\nv_and_b32 {t1}, 31, {vL}\nv_lshl_add_u32 {pa}, {t1}, 2, {s["T0"]}')
        A(f's_lshr_b32 {s["T0"]}, {s["W"]}, 1\ns_lshl_b32 {s["T0"]}, {s["T0"]}, 10\ns_and_b32 {s["T1"]}, {s["W"]}, 1\ns_lshl_b32 {s["T1"]}, {s["T1"]}, 8')
        hv = V.alloc()
        A(f'v_and_b32 {t1}, 1, {g}\nv_lshlrev_b32 {t1}, 9, {t1}\nv_lshl_add_u32 {t1}, {j}, 4, {t1}\nv_lshrrev_b32 {t2}, 1, {g}\nv_lshl_add_u32 {t1}, {t2}, 11, {t1}\nv_add_u32 {hv}, {s["T1"]}, {t1}\nv_add_u32 {oa}, {s["T0"]}, {hv}')
        assert ('W2', 15) in self.loc
        A(f's_lshl_b32 {s["T0"]}, {s["BLK"]}, 16')
        for k in range(4): A(f's_lshr_b32 {s["T1"]}, {self.sR2[k]}, 17\ns_lshl_b32 {s["T1"]}, {s["T1"]}, 14\ns_add_u32 {self.sR2[k]}, {s["T1"]}, {s["T0"]}')
        acc = [V.alloc(4, 2) for _ in range(4)]
        for ct in range(4):
            for h in range(2):
                A(f'v_lshlrev_b32 {acc[ct][2*h]}, 16, {self.resx[2*ct+h]}\nv_and_b32 {acc[ct][2*h+1]}, 0xffff0000, {self.resx[2*ct+h]}')
        A('@waitvm ost')
        for r in self.touch_regs: r.free()
        self.stamp('o drained')
        A.ext(self.signal(0, 1))
        A('@waitvm W2_15\ns_barrier')
        for _ in range(self.o['b_post1']):
            for gq in self.dma_next(): A.ext(gq)
        Wf = [[AG.alloc(4, 4) for _ in range(4)] for _ in range(16)]
        def rd(i):
            off = (self.loc[('W2', i)] - 23)*BLK
            return [Ins(f'ds_read_b64_tr_b16 {Wf[i][ct].sub(2*a, 2)}, {aw[ct]} offset:{off + a*512}') for ct in range(4) for a in range(2)]
        npre = self.o.get('w2pre', 7)
        for i in range(npre): A.ext(rd(i))
        self.poll_block(A, pa, 1); A('@drained_vm')
        self.stamp('sync1 done')
        Of = [V.alloc(4, 2) for _ in range(16)]
        for i in range(16):
            A(f's_add_u32 {s["T1"]}, {self.sR2[i >> 2]}, {(i & 3) << 12}')
            A(f'buffer_load_dwordx4 {Of[i]}, {oa}, {self.WS}, {s["T1"]} offen sc1')
        for _ in range(self.o['b_o']):
            for gq in self.dma_next(): A.ext(gq)
        rest = []
        for i in range(npre, 16): rest += rd(i)
        A.ext(rest[:16]); rest = rest[16:]
        for i in range(16):
            for ct in range(4):
                A(f'v_mfma_f32_16x16x32_bf16 {acc[ct]}, {Wf[i][ct]}, {Of[i]}, {acc[ct]}')
                k = 2 if ct & 1 else 1
                A.ext(rest[:k]); rest = rest[k:]
        assert not rest
        self.stamp('p2 gemm done')
        A(f's_lshr_b32 {s["T1"]}, {s["W"]}, 1\ns_lshl_b32 {s["T0"]}, {s["BLK"]}, 1\ns_add_u32 {s["T2"]}, {s["T0"]}, {s["T1"]}\ns_lshl_b32 {s["T0"]}, {s["T2"]}, 15')
        A(f's_lshl_b32 {s["T1"]}, {s["C"]}, 12\ns_add_u32 {s["T0"]}, {s["T0"]}, {s["T1"]}\ns_add_u32 {s["T0"]}, {s["T0"]}, {WS_H}')
        hf = [Of[0], Of[1]]
        for par in range(2):
            for ct in range(4): A(f'v_cvt_pk_bf16_f32 {hf[par][ct]}, {acc[ct][par]}, {acc[ct][2+par]}')
            self.store2(A, 'dwordx4', hf[par], hv, s["T0"], par*1024, 'hst')
        G4, S4 = Of[2], Of[3]
        for par in range(2):
            A(f'v_mfma_f32_16x16x32_bf16 {G4}, {hf[par]}, {hf[par]}, {G4 if par else 0}')
            A(f'v_mfma_f32_16x16x32_bf16 {S4}, {self.ones}, {hf[par]}, {S4 if par else 0}')
        A(f's_lshl_b32 {s["T0"]}, {s["T2"]}, 11\ns_bfe_u32 {s["T1"]}, {s["C"]}, 0x10001\ns_lshl_b32 {s["T1"]}, {s["T1"]}, 10\ns_add_u32 {s["T0"]}, {s["T0"]}, {s["T1"]}')
        A(f's_lshr_b32 {s["T1"]}, {s["C"]}, 2\ns_lshl_b32 {s["T1"]}, {s["T1"]}, 9\ns_add_u32 {s["T0"]}, {s["T0"]}, {s["T1"]}\ns_and_b32 {s["T1"]}, {s["W"]}, 1\ns_lshl_b32 {s["T1"]}, {s["T1"]}, 8\ns_add_u32 {s["T0"]}, {s["T0"]}, {s["T1"]}')
        A(f's_and_b32 {s["T1"]}, {s["C"]}, 1\ns_lshl_b32 {s["T1"]}, {s["T1"]}, 3\ns_add_u32 {s["T0"]}, {s["T0"]}, {s["T1"]}\ns_add_u32 {s["T0"]}, {s["T0"]}, {WS_ST}')
        A(f'v_lshlrev_b32 {t1}, 4, {j}')
        A.ext(self.diag_code(G4, S4[1]))
        A(f's_mov_b64 exec, {self.mDiag}')
        self.store2(A, 'dwordx2', S4.sub(0, 2), t1, s["T0"], 0, 'hst')
        A('s_mov_b64 exec, -1')
        self.stamp('h stored')
        A('s_barrier')
        w2b = sorted(self.loc[('W2', i)] for i in range(16))
        self.resb = w2b[0]; assert w2b[1] == w2b[0] + 1
        self.free_blocks += w2b[2:]
        rp = Of[4].b; rp = Reg('v', Of[4].b, 8); assert Of[5].b == Of[4].b + 4
        for ct in range(4):
            for h in range(2): A(f'v_cvt_pk_bf16_f32 {rp[2*ct+h]}, {acc[ct][2*h]}, {acc[ct][2*h+1]}')
        A(f's_add_u32 {s["T0"]}, {self.sW2K}, {self.resb*BLK}\nv_lshlrev_b32 {t1}, 7, {j}\nv_lshl_add_u32 {t1}, {g}, 3, {t1}\nv_add_u32 {t1}, {s["T0"]}, {t1}')
        for ct in range(4): A(f'ds_write_b64 {t1}, {rp.sub(2*ct, 2)} offset:{ct*32}')
        A('@waitvm hst')
        self.stamp('h drained')
        A.ext(self.signal(1, 1))
        for _ in range(self.o['b_post2']):
            for gq in self.dma_next(): A.ext(gq)
        A('@waitlg0')
        for r in aw + [pa, oa, hv] + acc + Of + [x for y in Wf for x in y] + [self.vW2, self.mB0, self.mB1, self.mDiag, self.sR2]: r.free()

    def phase34(self):
        A, V, S, AG, s, vL, o = self.A, self.V, self.S, self.AG, self.s, self.vL, self.o
        t1, t2, t3, j, g = self.t1, self.t2, self.t3, self.vJ, self.vG
        def windows(base):
            r = [base, V.alloc(), V.alloc()]
            A(f'v_add_u32 {r[1]}, 0x10000, {base}\nv_add_u32 {r[2]}, 0x20000, {base}')
            return r
        aF, aH, aD = [], [], []
        A(f'v_and_b32 {t1}, 1, {g}\nv_lshlrev_b32 {t1}, 11, {t1}\nv_lshrrev_b32 {t2}, 1, {g}\nv_lshl_add_u32 {t3}, {t2}, 10, {t1}\nv_add_u32 {t3}, {t3}, {self.vTRb}')
        for uu in range(4):
            b = V.alloc(); A(f'v_xor_b32 {b}, {uu*32}, {self.vTRf}\nv_add_u32 {b}, {b}, {t3}'); aF.append(windows(b))
        A(f'v_lshl_add_u32 {t3}, {t2}, 9, {t1}\nv_bfe_u32 {t1}, {vL}, 2, 2\nv_lshl_add_u32 {t3}, {t1}, 6, {t3}\nv_and_b32 {t1}, 3, {vL}\nv_lshl_add_u32 {t3}, {t1}, 3, {t3}\nv_and_b32 {t1}, 1, {g}\nv_lshl_add_u32 {t3}, {t1}, 5, {t3}')
        for uu in range(2):
            b = V.alloc(); A(f'v_xor_b32 {b}, {uu*32}, {t3}'); aH.append(windows(b))
        A(f'v_bfe_u32 {t1}, {vL}, 2, 2\nv_lshl_add_u32 {t1}, {t2}, 2, {t1}\nv_lshlrev_b32 {t3}, 7, {t1}\nv_bfe_u32 {t1}, {vL}, 3, 1\nv_lshl_add_u32 {t3}, {t1}, 6, {t3}')
        A(f'v_and_b32 {t1}, 1, {vL}\nv_lshl_add_u32 {t3}, {t1}, 5, {t3}\nv_and_b32 {t1}, 1, {g}\nv_lshl_add_u32 {t3}, {t1}, 4, {t3}\nv_bfe_u32 {t1}, {vL}, 1, 1\nv_lshl_add_u32 {t3}, {t1}, 3, {t3}')
        A(f's_lshr_b32 {s["T0"]}, {s["W"]}, 1\ns_mul_i32 {s["T1"]}, {s["T0"]}, {2048 + 64}')
        for k in range(2):
            b = V.alloc(); A(f'v_xor_b32 {b}, {s["T1"]}, {t3}')
            if k: A(f'v_xor_b32 {b}, 64, {b}')
            aD.append(windows(b))
        A(f's_and_b32 {s["T1"]}, {s["W"]}, 2\nv_and_b32 {t1}, 1, {g}\nv_or_b32 {t1}, {s["T1"]}, {t1}\nv_lshlrev_b32 {t1}, 5, {t1}')
        b = V.alloc(); A(f'v_xor_b32 {b}, {t1}, {self.vL16}\nv_add_u32 {b}, {s["W1K"]}, {b}'); aCF = windows(b)
        b = V.alloc(); A(f's_lshl_b32 {s["T1"]}, {s["T1"]}, 4\nv_xor_b32 {b}, {s["T1"]}, {self.vL16}\nv_add_u32 {b}, {s["W1K"]}, {b}'); aCH = windows(b)
        delta = V.alloc(4, 2)
        for d in range(4):
            A(f'v_mov_b32 {delta[d]}, 0\nv_cmp_eq_u32 vcc, {2*d}, {j}\nv_mov_b32 {t1}, 0x3f80\nv_cndmask_b32 {delta[d]}, {delta[d]}, {t1}, vcc')
            A(f'v_cmp_eq_u32 vcc, {2*d+1}, {j}\nv_mov_b32 {t1}, 0x3f800000\nv_cndmask_b32 {delta[d]}, {delta[d]}, {t1}, vcc')
        aAF = V.alloc(); aAH = V.alloc(); aCR = V.alloc()
        A(f's_lshl_b32 {s["T1"]}, {s["T0"]}, 9\ns_add_u32 {s["T1"]}, {s["T1"]}, {SCR_CS}\nv_lshl_add_u32 {t1}, {g}, 4, {s["T1"]}')
        A(f'v_and_b32 {t2}, 7, {j}\nv_lshl_add_u32 {aAF}, {t2}, 5, {t1}\nv_and_b32 {t2}, 3, {j}\nv_lshl_add_u32 {aAH}, {t2}, 5, {t1}')
        A(f'v_and_b32 {t1}, 1, {g}\nv_lshlrev_b32 {t1}, 9, {t1}\nv_lshl_add_u32 {t1}, {j}, 2, {t1}\nv_add_u32 {aCR}, {SCR_CS}, {t1}')
        cA = [V.alloc(4, 2), V.alloc(4, 2)]; cB = V.alloc(4, 2)
        for r in (cA[0], cA[1], cB):
            for k in range(4): A(f'v_mov_b32 {r[k]}, 0')
        pa2 = V.alloc(); pa3 = V.alloc(); aRes = V.alloc()
        A(f's_lshl_b32 {s["T1"]}, {s["W"]}, 7\ns_add_u32 {s["T1"]}, {s["T1"]}, 256\nv_lshl_add_u32 {pa2}, {j}, 2, {s["T1"]}')
        sT4 = S.alloc(); sGst = S.alloc(); sGld = S.alloc(2); sHF = S.alloc(); sHH = S.alloc(); sL = S.alloc()
        A(f's_and_b32 {s["T2"]}, {s["W"]}, 1\ns_lshl_b32 {sT4}, {s["SB"]}, 1\ns_add_u32 {sT4}, {sT4}, {s["T2"]}')
        A(f's_lshl_b32 {s["T1"]}, {sT4}, 7\ns_add_u32 {s["T1"]}, {s["T1"]}, 768\nv_lshl_add_u32 {pa3}, {j}, 2, {s["T1"]}')
        A(f's_lshl_b32 {s["T2"]}, {s["T2"]}, 12\ns_lshl_b32 {s["T1"]}, {s["T0"]}, 6\ns_add_u32 {s["T1"]}, {s["T1"]}, {s["T2"]}\ns_add_u32 {s["T1"]}, {s["T1"]}, {self.resb*BLK}')
        A(f'v_and_b32 {t1}, 31, {vL}\nv_lshlrev_b32 {t1}, 7, {t1}\nv_lshrrev_b32 {t2}, 5, {vL}\nv_lshl_add_u32 {t1}, {t2}, 5, {t1}\nv_add_u32 {aRes}, {s["T1"]}, {t1}')
        A(f's_mul_i32 {s["T1"]}, {s["G"]}, {384*KB}\ns_add_u32 {s["T1"]}, {s["T1"]}, {WS_G}')
        A(f's_mul_i32 {sGst}, {s["W"]}, {96*KB}\ns_add_u32 {sGst}, {sGst}, {s["T1"]}\ns_mul_i32 {s["T2"]}, {s["M"]}, {6*KB}\ns_add_u32 {sGst}, {sGst}, {s["T2"]}')
        A(f's_mul_i32 {s["T2"]}, {sT4}, {96*KB}\ns_add_u32 {s["T1"]}, {s["T1"]}, {s["T2"]}\ns_lshl_b32 {s["T2"]}, {s["T0"]}, 10\ns_add_u32 {sGld[0]}, {s["T1"]}, {s["T2"]}\ns_mul_i32 {s["T2"]}, {s["T2"]}, 6\ns_add_u32 {sGld[1]}, {s["T1"]}, {s["T2"]}')
        A(f's_lshl_b32 {s["T1"]}, {s["G"]}, 2\ns_add_u32 {sL}, {s["T1"]}, {s["W"]}\ns_lshl_b32 {s["T1"]}, {sL}, 15\ns_add_u32 {s["T1"]}, {s["T1"]}, {WS_H}')
        A(f's_lshl_b32 {s["T2"]}, {s["PF"]}, 10\ns_add_u32 {sHF}, {s["T1"]}, {s["T2"]}\ns_xor_b32 {sHH}, {sHF}, 1024')
        self.vTRb.free(); self.vTRf.free()
        acc = [V.alloc(16, 2) for _ in range(6)]
        HB = {('F', i): AG.at(8*i, 4) for i in range(16)}; HB.update({('H', i): AG.at(8*i + 4, 4) for i in range(16)})
        ops = []
        def op3(u, ty, i):
            if ty == 'F':
                if u < 4: key, ad, st, ex = ('F1', i), aF[u], 512, 0
                else: key, ad, st, ex = ('S3', i >> 1), aH[u - 4], 256, (i & 1)*1024
            else:
                if u < 2: key, ad, st, ex = ('H1', i >> 1), aH[u], 256, (i & 1)*1024
                else: key, ad, st, ex = ('S2', i), aF[u - 2], 512, 0
            ops.append(dict(k='m', u=u, key=key, ad=ad, st=st, ex=ex, B=HB[(ty, i)]))
        if o['order'] == 'pair':
            for i in range(16):
                for ty in 'FH':
                    for u in (0, 1): op3(u, ty, i)
            for u in (2, 3):
                pass
            for i in range(16):
                for u in (2, 3): op3(u, 'F', i)
            for i in range(16):
                for u in (2, 3): op3(u, 'H', i)
        else:
            for i in range(16):
                for u in range(4): op3(u, 'F', i)
                for u in (0, 1): op3(u, 'H', i)
            for i in range(16):
                for u in (2, 3): op3(u, 'H', i)
        for i in range(16):
            for u in (4, 5): op3(u, 'H', i)
        for u in (4, 5):
            for i in range(16): op3(u, 'F', i)
        n3 = len(ops)
        NG = o.get('NG', 16)
        GB = [AG.alloc(4, 4) for _ in range(NG)]
        accK, accS = acc[0], acc[1]
        for i in range(43):
            for k in range(2): ops.append(dict(k='m', u=6 + k, key=('W4', i), ad=aD[k], st=1024, ex=0, B=GB[i % NG], gi=i))
        csacc = {c: V.alloc(4, 2) for c in ('F1', 'H1', 'S2', 'S3')}
        seen = set(); ops2 = []; cnt = {}
        for p in ops:
            if p['key'][0] != 'W4' and p['key'] not in seen:
                seen.add(p['key']); c = p['key'][0]; cnt[c] = cnt.get(c, 0) + 1
                ops2.append(dict(k='c', key=p['key'], first=cnt[c] == 1, last=cnt[c] == (16 if c in ('F1', 'S2') else 8)))
            ops2.append(p)
        ops = ops2
        NR = o.get('NR', 14)
        RB = [AG.alloc(4, 4) for _ in range(NR)]
        for n, p in enumerate(ops): p['R'] = RB[n % NR]; p['n'] = n
        last_use = {}
        for p in ops: last_use[p['key']] = p['n']
        last_op = {}
        for p in ops:
            if p['k'] == 'm': last_op[p['u']] = p['n']
        first4 = min(p['n'] for p in ops if p.get('u', 0) >= 6)
        def reads(p):
            b = self.loc[p['key']]; w, off = b >> 4, (b & 15)*BLK
            if p['k'] == 'c':
                ad = aCF if p['key'][0] in ('F1', 'S2') else aCH
                return [Ins(f'ds_read_b128 {p["R"]}, {ad[w]} offset:{off}', f'r{p["n"]}')]
            return [Ins(f'ds_read_b64_tr_b16 {p["R"].sub(2*a, 2)}, {p["ad"][w]} offset:{off + p["ex"] + a*p["st"]}', f'r{p["n"]}') for a in range(2)]
        started = set()
        def mfma(p):
            if p['k'] == 'c':
                c = csacc[p['key'][0]]
                return Ins(f'v_mfma_f32_16x16x32_bf16 {c}, {delta}, {p["R"]}, {0 if p["first"] else c}')
            a = acc[p['u']] if p['u'] < 6 else (accK, accS)[p['u'] - 6]
            z = p['u'] not in started and p['u'] != 6
            started.add(p['u'])
            return Ins(f'v_mfma_f32_32x32x16_bf16 {a}, {p["R"]}, {p["B"]}, {0 if z else a}')
        LA, BI = o['LA'], o['BI']
        N = len(ops)
        bars = list(range(0, N, BI))
        def bar_code(n):
            L = Asm()
            need = [ops[q]['key'] for q in range(n, min(N, n + BI + LA))]
            while any(k not in self.loc for k in need):
                gq = self.dma_next(); assert gq, f'LDS full at op {n}'
                for x in gq: L.ext(x)
                self.forced += 1
            newest = max(need, key=self.issued.index)
            L(f'@waitvm {newest[0]}_{newest[1]}\ns_barrier')
            return L
        self.forced = 0
        A.ext(bar_code(0))
        res = self.resx
        A(f'ds_read_b128 {res.sub(0, 4)}, {aRes}\nds_read_b128 {res.sub(4, 4)}, {aRes} offset:16')
        for q in range(LA): A.ext(reads(ops[q]))
        self.poll_block(A, pa2, 1); A('@drained_vm')
        self.stamp('sync2 done')
        for cp in range(8):
            A(f's_xor_b32 {s["T0"]}, {self.sR3}, {cp}\ns_lshl_b32 {s["T0"]}, {s["T0"]}, 12\ns_add_u32 {s["T1"]}, {s["T0"]}, {sHF}\ns_add_u32 {s["T2"]}, {s["T0"]}, {sHH}')
            for gp in range(2):
                A(f'buffer_load_dwordx4 {HB[("F", 2*cp+gp)]}, {self.vL16}, {self.WS}, {s["T1"]} offen offset:{gp*2048} sc1')
                A(f'buffer_load_dwordx4 {HB[("H", 2*cp+gp)]}, {self.vL16}, {self.WS}, {s["T2"]} offen offset:{gp*2048} sc1')
            if cp in o.get('h_dma_mix', ()):
                for gq in self.dma_next(): A.ext(gq)
        sp = V.alloc(8, 2)
        A(f's_lshl_b32 {s["T0"]}, {sL}, 11\ns_add_u32 {s["T0"]}, {s["T0"]}, {WS_ST}')
        A(f'buffer_load_dwordx4 {sp.sub(0, 4)}, {self.vL16}, {self.WS}, {s["T0"]} offen sc1\nbuffer_load_dwordx4 {sp.sub(4, 4)}, {self.vL16}, {self.WS}, {s["T0"]} offen offset:1024 sc1')
        A(f'v_lshlrev_b32 {t1}, 7, {vL}\ns_mov_b32 exec_hi, 0xffff\nbuffer_load_dword {t2}, {t1}, {self.WS}, {sGst} offen sc1\ns_mov_b32 exec_hi, -1')
        c1 = V.alloc(); c3 = V.alloc(); iv = V.alloc(); tt = V.alloc(8, 2); go = [V.alloc(4, 2), V.alloc(4, 2)]
        K1 = -2*math.sqrt(2/math.pi)*LOG2E; K3 = K1*0.044715
        valu = []
        def q(n, text, tag=None):
            L = Asm(); L(text, tag); valu.append((n, L.L))
        def qi(n, text):
            for ln in text.split('\n'): q(n, ln)
        n_st = o.get('n_stats', 56)
        qi(n_st, f'v_add_f32 {sp[0]}, {sp[0]}, {sp[2]}\nv_add_f32 {sp[1]}, {sp[1]}, {sp[3]}\nv_add_f32 {sp[4]}, {sp[4]}, {sp[6]}\nv_add_f32 {sp[5]}, {sp[5]}, {sp[7]}')
        qi(n_st, f'v_add_f32 {sp[0]}, {sp[0]}, {sp[4]}\nv_add_f32 {sp[1]}, {sp[1]}, {sp[5]}\nv_mov_b32 {sp[2]}, {sp[0]}\nv_mov_b32 {sp[3]}, {sp[1]}')
        qi(n_st, f'v_permlane32_swap_b32 {sp[0]}, {sp[2]}\nv_permlane32_swap_b32 {sp[1]}, {sp[3]}\nv_add_f32 {sp[0]}, {sp[0]}, {sp[2]}\nv_add_f32 {sp[1]}, {sp[1]}, {sp[3]}')
        qi(n_st, f'v_mul_f32 {sp[0]}, {fhex(-1/512)}, {sp[0]}\nv_fma_f32 {sp[1]}, {sp[1]}, {self.sInv512}, {self.vEps}\nv_fma_f32 {iv}, -{sp[0]}, {sp[0]}, {sp[1]}\nv_max_f32 {iv}, {iv}, {self.vEps}')
        q(n_st, f's_mov_b32 exec_hi, 0\nv_cvt_pk_bf16_f32 {cB[0]}, {sp[0]}, {sp[0]}\ns_mov_b32 exec_hi, -1')
        qi(n_st, f'v_rsq_f32 {sp[2]}, {iv}\nv_nop\nv_mul_f32 {c1}, {fhex(K1)}, {sp[2]}\nv_mul_f32 {sp[3]}, {sp[2]}, {sp[2]}\nv_mul_f32 {c3}, {fhex(0.044715)}, {c1}\nv_mul_f32 {c3}, {c3}, {sp[3]}')
        cs_last = {p['key'][0]: p['n'] for p in ops if p['k'] == 'c' and p['last']}
        events = []
        def nextbar(n): return ((n + BI - 1)//BI)*BI
        add_done = {}
        self.cs_sched = {}
        for c in ('F1', 'H1', 'S2', 'S3'):
            sh = {'F1': 0, 'H1': 0, 'S2': 128, 'S3': 256}[c]
            ad = aAF if c in ('F1', 'S2') else aAH
            txt = 's_mov_b32 exec_hi, 0\n' + '\n'.join(f'ds_add_f32 {ad}, {csacc[c][r]} offset:{sh + 4*r}' for r in range(4)) + '\ns_mov_b32 exec_hi, -1'
            self.cs_sched[cs_last[c] + 2] = self.cs_sched.get(cs_last[c] + 2, []) + [(txt, 'add' + c)]
            add_done[c] = nextbar(cs_last[c] + 4)
        need_cls = {0: ('F1', 'H1'), 1: ('F1', 'H1'), 2: ('F1', 'S2'), 3: ('F1', 'S2'), 4: ('S2', 'S3'), 5: ('S2', 'S3')}
        pubs = {1: 1, 3: 2, 4: 3, 5: 4}
        for u in range(6):
            nb = max(add_done[c] for c in need_cls[u]); ca = cA[u & 1]; a = acc[u]; out = go[u & 1]
            q(nb, f'ds_read_b32 {ca[0]}, {aCR} offset:{u*64}')
            qi(nb + 2, f'v_cvt_pk_bf16_f32 {t1}, {ca[0]}, {ca[0]}\nv_and_b32 {t1}, 0xffff0000, {t1}\nv_sub_f32 {ca[0]}, {ca[0]}, {t1}\nv_cvt_pk_bf16_f32 {ca[0]}, {t1}, {ca[0]}')
            valu.append((max(nb + 2, last_op[u]), 'corr', Ins(f'v_mfma_f32_32x32x16_bf16 {a}, {ca}, {cB}, {a}')))
            st = []
            for txt in ('v_mul_f32 {t}, {a}, {a}', 'v_fma_f32 {t}, {t}, {c3}, {c1}', 'v_mul_f32 {t}, {t}, {a}', 'v_exp_f32 {t}, {t}', 'v_mul_f32 {b}, {a}, {b}', 'v_fma_f32 {t}, {t}, {iv}, {iv}', 'v_rcp_f32 {t}, {t}', 'v_mul_f32 {b}, {b}, {t}'):
                st.append([txt.format(t=tt[v], a=a[v], b=a[8+v], c1=c1, c3=c3, iv=iv) for v in range(8)])
            seq = st[0] + st[1] + st[2]
            for v in range(8): seq += [st[3][v], st[4][v]]
            seq += [st[5][0]]
            for v in range(8):
                if v < 7: seq.append(st[5][v+1])
                seq.append(st[6][v])
            seq += st[7] + [f'v_cvt_pk_bf16_f32 {out[d]}, {a[8+2*d]}, {a[9+2*d]}' for d in range(4)]
            for ln in seq: q(0, ln)
            L = Asm()
            if u == 4: L(f's_add_u32 {sGst}, {sGst}, 4096')
            self.store2(L, 'dwordx4', out, self.vL16, sGst, (u & 3)*1024, f'gst{u}')
            valu.append((0, L.L))
            if u in pubs: valu.append((0, 'pub', u))
            if u == 1:
                for d in range(8): qi(0, f'v_lshlrev_b32 {accK[2*d]}, 16, {res[d]}\nv_and_b32 {accK[2*d+1]}, 0xffff0000, {res[d]}')
                valu.append((0, 'mark', 'acc4'))
        gl_at = {}
        for i in range(43):
            n = max(first4 + 2*(i - o['GLA']), 0)
            gl_at.setdefault(n, []).append(i)
        stage_first = {0: 1, 15: 2, 29: 3, 36: 4}
        poll_at = {}
        for n, l in gl_at.items():
            for i in l:
                if i in stage_first: poll_at[n - o['poll_lead']] = stage_first[i]
        timed = []
        marks = set(); pubdone = {}
        last_dma = -99; hold = 0
        freed = set()
        for n in range(N):
            p = ops[n]
            if n == first4:
                assert 'acc4' in marks, 'phase-4 accumulators not ready'
                self.stamp('p3 mfma done')
            A.L.append(mfma(p))
            budget = o.get('bud', 6) if p['k'] == 'm' else 2
            sal, dsr, vme, val = [], [], [], []
            if (n + 1) % BI == 0 and n + 1 < N:
                for c in add_done:
                    if add_done[c] == n + 1: sal.append(Ins(f'@waitlg add{c}'))
                sal += bar_code(n + 1).L
                for k, lu in last_use.items():
                    if lu <= n and k not in freed and k in self.loc:
                        freed.add(k); self.free_blocks.append(self.loc[k])
                if 'res' not in freed:
                    freed.add('res'); self.free_blocks += [self.resb, self.resb + 1]
                budget -= 1
            elif n % 2 == 0 and n + 2 < N: sal.append(Ins(f'@waitlg r{n+2}'))
            if n + LA < N:
                r = reads(ops[n + LA]); dsr += r; budget -= len(r)
            for txt, tag in self.cs_sched.get(n, []):
                L = Asm(); L(txt, tag); dsr += L.L; budget -= 6
            if n in poll_at:
                vme.append(Ins(f'buffer_load_dword {self.vPv}, {pa3}, {self.WS}, {s["FL"]} offen sc1')); budget -= 1
            for i in gl_at.get(n, []):
                if i in stage_first:
                    assert pubdone.get(stage_first[i], 1 << 30) <= n, f'stage {stage_first[i]} waited before own publication (op {n}) {pubdone} first4={first4}'
                    k = self.nlabel; self.nlabel += 1
                    L = Asm(); L(f'v_cmp_gt_u32 vcc, {stage_first[i]}, {self.vPv}\ns_nop 0\ns_cbranch_vccnz L_late{k}\nL_back{k}:'); vme += L.L
                    self.tail(f'L_late{k}:'); self.poll_block(self.tail, pa3, stage_first[i]); self.tail(f's_branch L_back{k}')
                    budget -= 5
                sel, u = self.p4_unit(i)
                vme += [Ins(f's_add_u32 {s["T0"]}, {sGld[sel]}, {u*1024}'), Ins(f'buffer_load_dwordx4 {GB[i % NG]}, {self.vL16}, {self.WS}, {s["T0"]} offen sc1')]
                budget -= 2
            if n - last_dma >= o['dma_gap'] and n >= o.get('dma_from', 0):
                gq = self.dma_next()
                if gq:
                    last_dma = n; vme += gq[0]; budget -= len(gq[0]) - (0 if sal else 1)
            for (tn, code) in [x for x in timed if x[0] == n]:
                vme += code; budget -= 7
            post = []
            while valu and budget > 0 and valu[0][0] <= n and n >= hold:
                it = valu.pop(0)
                if it[1] == 'corr':
                    post.append(it[2]); hold = n + 2; break
                if it[1] == 'pub':
                    u = it[2]; tn = min(n + o['pub_delay'], N - 1)
                    timed.append((tn, [Ins(f'@waitvm gst{u}')] + self.signal(2, pubs[u]))); pubdone[pubs[u]] = tn
                    continue
                if it[1] == 'mark': marks.add(it[2]); continue
                val += it[1]
                budget -= sum(2 if (x.is_trans() or x.mn.startswith('v_permlane')) else 1 for x in it[1] if x.kind != 'pseudo')
            A.ext(sal); A.ext(dsr); A.ext(vme); A.ext(val); A.ext(post)
        assert not valu and not self.stream, (len(valu), len(self.stream))
        self.info = dict(N=N, first4=first4, forced=self.forced, pubdone=pubdone, gl_first={stage_first[i]: n for n, l in gl_at.items() for i in l if i in stage_first})
        self.stamp('p4 mfma done')
        fb = sorted(self.free_blocks)
        xb = next(b for b in fb if all(b + k in fb for k in range(4)))
        A(f's_lshl_b32 {s["T0"]}, {s["W"]}, 12\ns_add_u32 {s["T0"]}, {s["T0"]}, {xb*BLK}\nv_add_u32 {t1}, {s["T0"]}, {self.vL16}')
        A(f's_xor_b32 {s["T1"]}, {s["W"]}, 2\ns_lshl_b32 {s["T1"]}, {s["T1"]}, 12\ns_add_u32 {s["T1"]}, {s["T1"]}, {xb*BLK}\nv_add_u32 {t2}, {s["T1"]}, {self.vL16}')
        A(f'v_and_b32 {t3}, 31, {vL}\nv_lshlrev_b32 {t3}, 10, {t3}\nv_lshrrev_b32 {c1}, 5, {vL}\nv_lshl_add_u32 {t3}, {c1}, 5, {t3}')
        A(f's_lshl_b32 {s["T0"]}, {s["G"]}, 2\ns_add_u32 {s["T0"]}, {s["T0"]}, {sT4}\ns_lshl_b32 {s["T0"]}, {s["T0"]}, 15\ns_add_u32 {s["T0"]}, {s["T0"]}, {self.sC128}\ns_lshr_b32 {s["T1"]}, {s["W"]}, 1\ns_lshl_b32 {s["T1"]}, {s["T1"]}, 6\ns_add_u32 {s["T0"]}, {s["T0"]}, {s["T1"]}')
        for k in range(4): A(f'ds_write_b128 {t1}, {accS.sub(4*k, 4)} offset:{k*1024}')
        A('@waitlg0\ns_barrier')
        rx = acc[2]
        for k in range(4): A(f'ds_read_b128 {rx.sub(4*k, 4)}, {t2} offset:{k*1024}')
        for h in range(2):
            for d in range(4*h, 4*h + 4): A(f'v_pk_add_f32 {accK.sub(2*d, 2)}, {accK.sub(2*d, 2)}, {rx.sub(2*d, 2)}')
            for d in range(4): A(f'v_cvt_pk_bf16_f32 {go[h][d]}, {accK[8*h + 2*d]}, {accK[8*h + 2*d + 1]}')
            A(f'buffer_store_dwordx4 {go[h]}, {t3}, {self.OUT}, {s["T0"]} offen offset:{16*h}')
        self.stamp('out stored')

    def finish(self):
        A, s = self.A, self.s
        if self.o['stamps']:
            A('@waitvm0')
            self.stamp('end')
            A(f'v_writelane_b32 {self.vstamp}, s100, 63')
            A(f's_lshl_b32 {s["T0"]}, s2, 10\ns_lshl_b32 {s["T1"]}, {s["W"]}, 8\ns_add_u32 {s["T0"]}, {s["T0"]}, {s["T1"]}\ns_add_u32 {s["T0"]}, {s["T0"]}, {WS_TS}')
            A(f'v_lshlrev_b32 v253, 2, {self.vL}\nbuffer_store_dword {self.vstamp}, v253, {self.WS}, {s["T0"]} offen')
        A('s_endpgm')

    def build(self):
        self.prologue(); self.phase1()
        self.phase2(); self.phase34()
        self.finish()
        L = resolve_waits(self.A.L)
        L, nn = pad_hazards(L)
        T = [x for x in self.tail.L if x.kind != 'pseudo']
        body = '\n'.join(('' if x.kind == 'label' else '    ') + x.text for x in L + T)
        hdr = open('cdna_kernels/' + NAME + '.s.ref').read().split('; Override launch')[0]
        txt = hdr + f'; @launch grid=(256,1,1) block=(256,1,1) lds=163840\n.amdgcn_target "amdgcn-amd-amdhsa--gfx950"\n.text\n.globl {NAME}_kernel\n.p2align 8\n.type {NAME}_kernel,@function\n{NAME}_kernel:\n'
        txt += body + '\n    s_endpgm\nL_code_end:\n'
        txt += f'.section .rodata,"a"\n.p2align 6\n.amdhsa_kernel {NAME}_kernel\n  .amdhsa_next_free_vgpr 512\n  .amdhsa_next_free_sgpr 102\n  .amdhsa_accum_offset 256\n  .amdhsa_group_segment_fixed_size 0\n  .amdhsa_kernarg_size 80\n  .amdhsa_user_sgpr_count 2\n  .amdhsa_user_sgpr_kernarg_segment_ptr 1\n  .amdhsa_system_sgpr_workgroup_id_x 1\n  .amdhsa_float_denorm_mode_32 3\n.end_amdhsa_kernel\n'
        self.info.update(ninstr=len(L), nops=nn, vmax=self.V.hi, amax=self.AG.hi, smax=self.S.hi)
        return txt

if __name__ == '__main__':
    import json
    kw = json.loads(sys.argv[2]) if len(sys.argv) > 2 else {}
    G = Gen(**kw); txt = G.build()
    open(sys.argv[1], 'w').write(txt)
    print(G.info)
```

```python
import sys, math, struct
from asmlib import *

NAME = 'sequential_preLN__sliding_local_dilated__geglu_ffn__prompt'
KB = 1024
WS_O, WS_H, WS_ST, WS_FL, WS_G, WS_TS = 0, 2 << 20, 4 << 20, (4 << 20) + (256 << 10), 5 << 20, 16 << 20
WS_SIZE = 17 << 20
FL_SLOW = 64 << 10
PITCH3 = 2752
BLK = 4096
L_HALO = 0
L_X = 4 * BLK
L_W = 10 * BLK
L_SCR = 39 * BLK
SCR_TB = L_SCR
SCR_HP = L_SCR + 1280
SCR_MODE = L_SCR + 1792
SCR_CS = L_SCR + 2048
def f2u(x): return struct.unpack('<I', struct.pack('<f', x))[0]
def fhex(x): return hex(f2u(x))
LOG2E = 1.4426950408889634

DEF = dict(stamps=False, order='pair', BI=8, LA=6, dma_gap=2, GLA=10, b_epi=6, b_post1=4, b_o=6, b_post2=0, stop=None,
           pub_delay=10, poll_lead=8, cs_early=False, force_slow=False)

class Gen:
    def __init__(self, **kw):
        self.o = dict(DEF); self.o.update(kw)
        self.A = Asm(); self.tail = Asm()
        self.V = RegAlloc('v', 1, 254); self.AG = RegAlloc('a', 0, 256); self.S = RegAlloc('s', 60, 100)
        self.nstamp = 0; self.stamp_names = []
        self.nlabel = 0
        self.free_blocks = list(range(28, 39))
        self.stream = []
        self.loc = {}
        self.issued = []

    def stamp(self, name, A=None):
        if not self.o['stamps'] or (self.o['stamps'] == 'min' and name != 'end'): return
        A = A if A is not None else self.A
        r = self.sstamp.sub(2 * (self.nstamp % 2), 2)
        A(f'@raw 1\ns_memtime {r}\ns_waitcnt lgkmcnt(0)\nv_writelane_b32 {self.vstamp}, {r[0]}, {self.nstamp}\n@raw 0\n@drained_lg')
        self.stamp_names.append(name); self.nstamp += 1

    def prologue(self):
        A, V, S = self.A, self.V, self.S
        s = self.s = {}
        for n in 'W C M SB G BLK W1K T0 T1 T2 T3 FL PF'.split(): s[n] = S.alloc()
        self.sstamp = S.alloc(4, 2); self.vstamp = V.alloc()
        self.X, self.WQ, self.WO, self.W3, self.WD, self.OUT, self.WS, self.WSF, self.WSS = [f's[{24+4*i}:{27+4*i}]' for i in range(9)]
        A('s_load_dwordx16 s[4:19], s[0:1], 0\ns_load_dwordx4 s[20:23], s[0:1], 64')
        A('s_cmp_lt_u32 s2, 256\ns_cbranch_scc1 L_go\ns_endpgm\nL_go:')
        vL = self.vL = V.alloc(); t0 = V.alloc(2); t1 = V.alloc()
        A(f's_getpc_b64 s[24:25]\nL_pc:')
        A(f'v_and_b32 {vL}, 63, v0\nv_lshrrev_b32 {t1}, 6, v0')
        A(f's_lshr_b32 {s["T0"]}, s2, 3')
        A(f'v_readfirstlane_b32 {s["W"]}, {t1}')
        A(f'v_lshl_add_u32 {t1}, {s["T0"]}, 2, {t1}\nv_lshl_add_u32 {t1}, {t1}, 2, {vL}\nv_lshlrev_b32 {t1}, 7, {t1}')
        A(f'v_min_u32 {t1}, L_code_end-L_pc-4, {t1}')
        A(f'v_mov_b32 {t0[1]}, s25\nv_add_co_u32 {t0[0]}, vcc, s24, {t1}\nv_addc_co_u32 {t0[1]}, vcc, 0, {t0[1]}, vcc')
        A(f's_mov_b64 exec, 15\nglobal_load_dword v255, {t0}, off\ns_mov_b64 exec, -1')
        if self.o['stamps']:
            A(f'v_mov_b32 {self.vstamp}, 0')
            A(f'@raw 1\ns_memtime s[100:101]\n@raw 0')
        A(f's_and_b32 {s["M"]}, {s["T0"]}, 15\ns_and_b32 {s["C"]}, {s["T0"]}, 7\ns_lshr_b32 {s["SB"]}, {s["M"]}, 3')
        A(f's_and_b32 {s["T1"]}, s2, 7\ns_lshr_b32 {s["T0"]}, {s["T0"]}, 4\ns_lshl_b32 {s["G"]}, {s["T1"]}, 1\ns_add_u32 {s["G"]}, {s["G"]}, {s["T0"]}')
        A(f's_lshl_b32 {s["BLK"]}, {s["G"]}, 1\ns_add_u32 {s["BLK"]}, {s["BLK"]}, {s["SB"]}\ns_lshl_b32 {s["W1K"]}, {s["W"]}, 10')
        A(f'v_mov_b32 v254, {SCR_MODE + 16}')
        t0.free()
        e = V.alloc(); ch = V.alloc(); t2 = V.alloc()
        A(f'v_lshrrev_b32 {e}, 3, {vL}\nv_and_b32 {ch}, 7, {vL}')
        self.vHa = V.alloc(); self.vHb = V.alloc(); self.vXa = V.alloc(); self.vXb = V.alloc(); self.vW1 = V.alloc(); self.vW2 = V.alloc()
        A(f'v_lshrrev_b32 {t1}, 4, {vL}\nv_xor_b32 {t1}, {t1}, {ch}\nv_lshlrev_b32 {t1}, 4, {t1}')
        A(f's_lshl_b32 {s["T0"]}, {s["BLK"]}, 6\ns_sub_u32 {s["T1"]}, {s["T0"]}, 16')
        A(f'v_add_u32 {t2}, {s["T1"]}, {e}\nv_max_i32 {self.vHa}, 2, {t2}\nv_lshl_add_u32 {self.vHa}, {self.vHa}, 10, {t1}')
        A(f'v_add_u32 {t2}, 7, {t2}\nv_max_i32 {self.vHb}, 2, {t2}\nv_lshl_add_u32 {self.vHb}, {self.vHb}, 10, {t1}\nv_xor_b32 {self.vHb}, 64, {self.vHb}')
        A(f's_lshl_b32 {s["T1"]}, {s["W"]}, 4\ns_add_u32 {s["T1"]}, {s["T1"]}, {s["T0"]}')
        A(f'v_add_u32 {t2}, {s["T1"]}, {e}\nv_lshl_add_u32 {self.vXa}, {t2}, 10, {t1}\nv_add_u32 {self.vXb}, {7*1024}, {self.vXa}\nv_xor_b32 {self.vXb}, 64, {self.vXb}')
        A(f's_and_b32 {s["T1"]}, {s["W"]}, 1\ns_lshl_b32 {s["T1"]}, {s["T1"]}, 2')
        A(f'v_lshrrev_b32 {t1}, 3, {vL}\nv_and_b32 {t1}, 2, {t1}\nv_or_b32 {t1}, {s["T1"]}, {t1}\nv_xor_b32 {t1}, {t1}, {ch}\nv_lshlrev_b32 {t1}, 4, {t1}')
        A(f's_lshl_b32 {s["T1"]}, {s["W"]}, 3\nv_add_u32 {t2}, {s["T1"]}, {e}')
        A(f'v_lshl_add_u32 {self.vW2}, {t2}, 10, {t1}\nv_mul_u32_u24 {t2}, 3072, {t2}\nv_add_u32 {self.vW1}, {t2}, {t1}')
        fz = V.alloc(); ww = V.alloc()
        A(f'v_and_b32 {ww}, 3, {vL}')
        A(f's_lshl_b32 {s["T1"]}, {s["SB"]}, 7\ns_lshl_b32 {s["T2"]}, {s["C"]}, 4\ns_add_u32 {s["T1"]}, {s["T1"]}, {s["T2"]}')
        A(f'v_lshl_add_u32 {fz}, {ww}, 2, {s["T1"]}')
        A(f's_lshl_b32 {s["T1"]}, {s["SB"]}, 8\ns_lshl_b32 {s["T2"]}, {s["C"]}, 3\ns_add_u32 {s["T1"]}, {s["T1"]}, {s["T2"]}\ns_add_u32 {s["T1"]}, {s["T1"]}, 256')
        A(f'v_lshrrev_b32 {t1}, 1, {ww}\nv_lshl_add_u32 {t1}, {t1}, 7, {s["T1"]}\nv_and_b32 {t2}, 1, {ww}\nv_lshl_add_u32 {t1}, {t2}, 2, {t1}')
        A(f'v_cmp_lt_u32 vcc, 3, {vL}\nv_cndmask_b32 {fz}, {fz}, {t1}, vcc')
        A(f's_lshl_b32 {s["T1"]}, {s["M"]}, 2\ns_add_u32 {s["T1"]}, {s["T1"]}, 768\nv_lshl_add_u32 {t1}, {ww}, 7, {s["T1"]}')
        A(f'v_cmp_lt_u32 vcc, 7, {vL}\nv_cndmask_b32 {fz}, {fz}, {t1}, vcc')
        self.vFz = fz
        A(f's_lshl_b32 {s["FL"]}, {s["G"]}, 11\ns_add_u32 {s["FL"]}, {s["FL"]}, {WS_FL}\ns_add_u32 {s["T3"]}, {s["FL"]}, {FL_SLOW}')
        A(f'v_mov_b32 {t2}, 0')
        A('@waitlg0')
        def srd(b, lo, size):
            A(f's_mov_b32 s{b}, s{lo}\ns_mov_b32 s{b+1}, s{lo+1}\ns_mov_b32 s{b+2}, {size}\ns_mov_b32 s{b+3}, 0x20000')
        srd(48, 22, WS_SIZE)
        srd(24, 4, 2048*1024)
        A(f's_lshl_b32 {s["T1"]}, 0x111, {s["W"]}\ns_mov_b32 exec_lo, {s["T1"]}\ns_mov_b32 exec_hi, 0')
        A(f'buffer_store_dword {t2}, {fz}, {self.WS}, {s["FL"]} offen', tag='fz')
        A('s_mov_b64 exec, -1')
        srd(28, 6, 512*3072)
        for r in (e, ch, t1, t2, ww): r.free()

    def p1_chunk_dma(self, i):
        s = self.s; sl = i % 3; g = []
        kc, so = self.sKC, self.sSO
        tag = f'ch{i}'
        g.append([Ins(f's_add_u32 {kc}, {s["C"]}, {i}'), Ins(f's_and_b32 {kc}, {kc}, 7')])
        g.append([Ins(f's_lshl_b32 {so}, {kc}, 7'), Ins(f's_add_u32 m0, {self.sW2K}, {L_X + sl*8192}')])
        g.append([Ins(f's_mul_i32 {kc}, {kc}, {64*3072}'), Ins(f'buffer_load_dwordx4 {self.vXa}, {self.X}, {so} offen lds', tag)])
        g.append([Ins(f's_add_u32 {kc}, {kc}, {self.sC128}'), Ins(f'buffer_load_dwordx4 {self.vXb}, {self.X}, {so} offen offset:1024 lds', tag)])
        for st in range(2):
            g.append([Ins(f's_add_u32 m0, {self.sW3K}, {L_W + sl*24576 + st*12288}')])
            for p in range(3):
                g.append([Ins(f'buffer_load_dwordx4 {self.vW1}, {self.WQ}, {kc} offen offset:{p*1024} lds', tag)])
            if st == 0: g.append([Ins(f's_add_u32 {kc}, {kc}, {32*3072}')])
        return g

    def p1_reads(self, i, st, buf):
        sl = i % 3; r = []
        W, X, O = buf
        r.append(Ins(f'ds_read_b128 {O}, {self.aXo[st]} offset:{sl*8192}'))
        for p in range(3):
            for a in range(2):
                r.append(Ins(f'ds_read_b64_tr_b16 {W[p].sub(2*a, 2)}, {self.aW1} offset:{sl*24576 + st*12288 + p*1024 + a*512}'))
            if p == 0:
                r.append(Ins(f'ds_read_b128 {X[0]}, {self.aX[st]} offset:{L_HALO + i*2048}'))
                for t in range(1, 5):
                    r.append(Ins(f'ds_read_b128 {X[t]}, {self.aX[st]} offset:{L_X + sl*8192 + (t-1)*2048}'))
        return r

    def p1_mfmas(self, buf, first):
        W, X, O = buf
        m = []
        c = lambda acc: '0' if first else str(acc)
        m.append(Ins(f'v_mfma_f32_16x16x32_bf16 {self.stG}, {O}, {O}, {c(self.stG)}'))
        m.append(Ins(f'v_mfma_f32_16x16x32_bf16 {self.stS}, {self.ones}, {O}, {c(self.stS)}'))
        for p, acc in enumerate((self.aQ, self.aK, self.aV)):
            for t in range(5):
                if p < 2: m.append(Ins(f'v_mfma_f32_16x16x32_bf16 {acc[t]}, {W[p]}, {X[t]}, {c(acc[t])}'))
                else: m.append(Ins(f'v_mfma_f32_16x16x32_bf16 {acc[t]}, {X[t]}, {W[p]}, {c(acc[t])}'))
        return m

    def stats_code(self, sq, sm, out4):
        L = []
        a = lambda t: L.append(Ins(t))
        a(f'v_mul_f32 {sm}, {fhex(-1/512)}, {sm}')
        a(f'v_fma_f32 {sq}, {sq}, {self.sInv512}, {self.vEps}')
        a(f'v_cvt_pk_bf16_f32 {out4[1]}, {sm}, {sm}')
        a(f'v_fma_f32 {sq}, -{sm}, {sm}, {sq}')
        a(f'v_and_b32 {out4[0]}, 0xffff0000, {out4[1]}')
        a(f'v_max_f32 {sq}, {sq}, {self.vEps}')
        a(f'v_rsq_f32 {out4[2]}, {sq}')
        a(f'v_mul_f32 {out4[3]}, {fhex(0.25*LOG2E)}, {out4[2]}')
        return L

    def diag_code(self, G4, dst):
        return [Ins(f'v_cndmask_b32 {G4[0]}, {G4[0]}, {G4[1]}, {self.mB0}'), Ins(f'v_cndmask_b32 {G4[2]}, {G4[2]}, {G4[3]}, {self.mB0}'),
                Ins(f'v_cndmask_b32 {dst}, {G4[0]}, {G4[2]}, {self.mB1}')]

    def weave16(self, mf, groups):
        A = self.A; groups = list(groups)
        for m in mf:
            A.L.append(m)
            if groups: A.ext(groups.pop(0))
        for g in groups: A.ext(g)

    def phase1(self):
        A, V, S, AG, s, vL = self.A, self.V, self.S, self.AG, self.s, self.vL
        self.sKC = S.alloc(); self.sSO = S.alloc(); self.sW2K = S.alloc(); self.sW3K = S.alloc(); self.sC128 = S.alloc(); self.sInv512 = S.alloc()
        A(f's_lshl_b32 {self.sW2K}, {s["W"]}, 11\ns_mul_i32 {self.sW3K}, {s["W"]}, 3072\ns_lshl_b32 {self.sC128}, {s["C"]}, 7')
        for q in range(2):
            A(f's_lshl_b32 {s["T0"]}, {s["W"]}, 1\ns_add_u32 {s["T0"]}, {s["T0"]}, {s["C"]}\ns_add_u32 {s["T0"]}, {s["T0"]}, {q}\ns_and_b32 {s["T0"]}, {s["T0"]}, 7\ns_lshl_b32 {s["T0"]}, {s["T0"]}, 7')
            A(f's_lshl_b32 {s["T1"]}, {s["W"]}, 12\ns_add_u32 m0, {s["T1"]}, {L_HALO + q*2048}')
            A(f's_mov_b32 exec_lo, 0xffffff00')
            A(f'buffer_load_dwordx4 {self.vHa}, {self.X}, {s["T0"]} offen lds', tag='halo')
            A(f's_mov_b32 exec_lo, -1')
            A(f'buffer_load_dwordx4 {self.vHb}, {self.X}, {s["T0"]} offen offset:1024 lds', tag='halo')
        for i in range(2):
            for g in self.p1_chunk_dma(i): A.ext(g)
        self.vHa.free(); self.vHb.free()
        def srd(b, lo, size):
            A(f's_mov_b32 s{b}, s{lo}\ns_mov_b32 s{b+1}, s{lo+1}\ns_mov_b32 s{b+2}, {size}\ns_mov_b32 s{b+3}, 0x20000')
        srd(32, 8, 512*1024); srd(40, 16, 1376*1024); srd(44, 18, 2048*1024); srd(52, 22, 0); srd(56, 22, 0)
        A(f's_cmp_lt_u32 {s["W"]}, 2\ns_cselect_b32 s36, s12, s14\ns_cselect_b32 s37, s13, s15\ns_mov_b32 s39, 0x20000')
        A(f's_cmp_lt_u32 {s["M"]}, 15\ns_cselect_b32 s38, {512*PITCH3}, 0')
        S.free |= set(range(4, 20))
        A(f's_mov_b32 {self.sInv512}, {fhex(1/512)}')
        self.vEps = V.alloc(); A(f'v_mov_b32 {self.vEps}, {fhex(1e-5)}')
        j = self.vJ = V.alloc(); g = self.vG = V.alloc(); t1 = V.alloc(); t2 = V.alloc(); t3 = V.alloc()
        A(f'v_and_b32 {j}, 15, {vL}\nv_lshrrev_b32 {g}, 4, {vL}')
        self.aX = [V.alloc(), V.alloc()]; self.aXo = [V.alloc(), V.alloc()]; self.aW1 = V.alloc()
        A(f'v_lshrrev_b32 {t1}, 1, {j}\nv_xor_b32 {t1}, {t1}, {g}\nv_lshlrev_b32 {t1}, 4, {t1}\nv_lshl_add_u32 {self.aX[0]}, {j}, 7, {t1}\nv_xor_b32 {self.aX[1]}, 64, {self.aX[0]}')
        A(f's_add_u32 {s["T0"]}, {self.sW2K}, {L_X}\nv_add_u32 {self.aXo[0]}, {s["T0"]}, {self.aX[0]}\nv_add_u32 {self.aXo[1]}, {s["T0"]}, {self.aX[1]}')
        self.vTRf = V.alloc(); self.vTRb = V.alloc()
        A(f'v_bfe_u32 {t1}, {vL}, 3, 2\nv_lshlrev_b32 {self.vTRf}, 5, {t1}')
        A(f'v_bfe_u32 {t1}, {vL}, 2, 2\nv_and_b32 {t2}, 3, {vL}\nv_lshlrev_b32 {t2}, 3, {t2}\nv_lshl_add_u32 {self.vTRb}, {t1}, 7, {t2}')
        A(f's_lshl_b32 {s["T0"]}, {s["W"]}, 5\nv_xor_b32 {t1}, {s["T0"]}, {self.vTRf}\nv_mul_u32_u24 {t2}, 3072, {g}\nv_add3_u32 {self.aW1}, {t1}, {t2}, {self.vTRb}\nv_add_u32 {self.aW1}, {L_W}, {self.aW1}')
        self.mB0 = S.alloc(2); self.mB1 = S.alloc(2); self.mDiag = S.alloc(2); self.mOwnA = S.alloc(2); self.mOwnB = S.alloc(2)
        A(f's_mov_b32 {self.mB0[0]}, 0xaaaaaaaa\ns_mov_b32 {self.mB0[1]}, 0xaaaaaaaa\ns_mov_b32 {self.mB1[0]}, 0xcccccccc\ns_mov_b32 {self.mB1[1]}, 0xcccccccc')
        A(f's_mov_b32 {self.mDiag[0]}, 0x00f0000f\ns_mov_b32 {self.mDiag[1]}, 0xf0000f00')
        def lanemask(fn):
            v = sum(1 << l for l in range(64) if fn(l & 15, l >> 4)); return v & 0xffffffff, v >> 32
        oa = lanemask(lambda jj, gg: 4*gg + (jj & 1) <= jj); ob = lanemask(lambda jj, gg: 4*gg + 2 + (jj & 1) <= jj)
        A(f's_mov_b32 {self.mOwnA[0]}, {hex(oa[0])}\ns_mov_b32 {self.mOwnA[1]}, {hex(oa[1])}\ns_mov_b32 {self.mOwnB[0]}, {hex(ob[0])}\ns_mov_b32 {self.mOwnB[1]}, {hex(ob[1])}')
        self.ones = V.alloc(4, 2)
        for k in range(4): A(f'v_mov_b32 {self.ones[k]}, 0x3f803f80')
        A(f's_lshl_b32 {s["T0"]}, {s["W"]}, 12\nv_lshrrev_b32 {t1}, 3, {vL}\nv_lshlrev_b32 {t1}, 11, {t1}\nv_and_b32 {t2}, 7, {vL}\nv_lshl_add_u32 {t1}, {t2}, 4, {t1}\nv_add_u32 {t1}, {s["T0"]}, {t1}')
        A(f's_mov_b64 exec, 0xffff\nds_write_b128 {t1}, {self.ones} offset:{L_HALO}\ns_mov_b64 exec, -1')
        A(f'v_mov_b32 {t2}, 0\nv_lshlrev_b32 {t1}, 2, v0\nv_add_u32 {t1}, {SCR_CS}, {t1}\nds_write_b32 {t1}, {t2}')
        A('@waitlg0\n@waitvm fz\ns_barrier')
        A(f's_getreg_b32 {s["T0"]}, hwreg(HW_REG_XCC_ID, 0, 4)\ns_mul_i32 {s["T1"]}, {s["T0"]}, {s["T0"]}\ns_lshl_b32 {s["T1"]}, {s["T1"]}, 13\ns_lshl_b32 {s["T0"]}, {s["T0"]}, 5')
        self.sCen = S.alloc(); self.sCoff = S.alloc(); self.sCv = S.alloc()
        A(f's_add_u32 {self.sCen}, {s["T0"]}, {s["T1"]}\ns_add_u32 {self.sCen}, {self.sCen}, 1\ns_lshl_b32 {self.sCoff}, {s["G"]}, 4')
        A(f's_cmp_lg_u32 {s["W"]}, 0\ns_cbranch_scc1 L_nocen\n@raw 1\ns_atomic_add {self.sCen}, s[20:21], {self.sCoff}\n@raw 0\nL_nocen:')
        if self.o['stamps'] is not True: A('@minlg 1')
        self.stamp('census')
        self.aQ = [V.alloc(4, 2) for _ in range(5)]; self.aK = [V.alloc(4, 2) for _ in range(5)]; self.aV = [V.alloc(4, 2) for _ in range(5)]
        self.stG = V.alloc(4, 2); self.stS = V.alloc(4, 2)
        bufs = [([AG.alloc(4, 4) for _ in range(3)], [AG.alloc(4, 4) for _ in range(5)], AG.alloc(4, 4)) for _ in range(2)]
        hb = bufs[1][1]
        A(f's_lshl_b32 {s["T0"]}, {s["W"]}, 12\nv_add_u32 {t1}, {s["T0"]}, {self.aX[0]}\nv_add_u32 {t2}, {s["T0"]}, {self.aX[1]}')
        A('@waitvm halo')
        self.stamp('halo landed')
        for q in range(4): A(f'ds_read_b128 {hb[q]}, {(t1, t2)[q & 1]} offset:{L_HALO + (q >> 1)*2048}')
        for gq in self.p1_chunk_dma(2): A.ext(gq)
        for q in range(4):
            A(f'v_mfma_f32_16x16x32_bf16 {self.stG}, {hb[q]}, {hb[q]}, {self.stG if q else 0}')
            A(f'v_mfma_f32_16x16x32_bf16 {self.stS}, {self.ones}, {hb[q]}, {self.stS if q else 0}')
        A(f's_lshl_b32 {s["T0"]}, {s["W"]}, 3\ns_add_u32 {s["T0"]}, {s["T0"]}, {SCR_HP}\nv_lshl_add_u32 {t3}, {j}, 5, {s["T0"]}')
        A.ext(self.diag_code(self.stG, self.stS[1]))
        A(f's_mov_b64 exec, {self.mDiag}\nds_write_b64 {t3}, {self.stS.sub(0, 2)}\ns_mov_b64 exec, -1')
        ra = [V.alloc() for _ in range(4)]
        self.resx = V.alloc(8, 2)
        A(f'v_lshrrev_b32 {t1}, 1, {j}\nv_lshrrev_b32 {t2}, 1, {g}\nv_xor_b32 {t1}, {t1}, {t2}\nv_lshlrev_b32 {t1}, 4, {t1}\nv_and_b32 {t2}, 1, {g}\nv_lshl_add_u32 {t1}, {t2}, 3, {t1}')
        A(f'v_lshl_add_u32 {t1}, {j}, 7, {t1}\ns_add_u32 {s["T0"]}, {self.sW2K}, {L_X}\nv_add_u32 {ra[0]}, {s["T0"]}, {t1}')
        for ct in range(1, 4): A(f'v_xor_b32 {ra[ct]}, {ct*32}, {ra[0]}')
        aTB = self.aTB = V.alloc()
        A(f'v_lshlrev_b32 {aTB}, 4, {j}\nv_add_u32 {aTB}, {SCR_TB}, {aTB}\nv_lshlrev_b32 {t3}, 5, {j}\nv_add_u32 {t3}, {SCR_HP}, {t3}')
        A('@waitlg0\n@waitvm ch0\ns_barrier')
        self.stamp('chunk0 visible')
        A.ext(self.p1_reads(0, 0, bufs[0]))
        hp = V.alloc(8, 2); tb4 = V.alloc(4, 2)
        A(f'ds_read_b128 {hp.sub(0, 4)}, {t3}\nds_read_b128 {hp.sub(4, 4)}, {t3} offset:16')
        for ct in range(4): A(f'ds_read_b64 {self.resx.sub(2*ct, 2)}, {ra[ct]}')
        A(f'v_pk_add_f32 {hp.sub(0, 2)}, {hp.sub(0, 2)}, {hp.sub(2, 2)}\nv_pk_add_f32 {hp.sub(4, 2)}, {hp.sub(4, 2)}, {hp.sub(6, 2)}\nv_pk_add_f32 {hp.sub(0, 2)}, {hp.sub(0, 2)}, {hp.sub(4, 2)}')
        A.ext(self.stats_code(hp[1], hp[0], tb4))
        A(f'ds_write_b128 {aTB}, {tb4}')
        for r in ra: r.free()
        hp.free()
        self.build_stream()
        pend = []
        for n in range(16):
            i, st = n >> 1, n & 1
            A('@waitlg0')
            if self.o.get('fine') and st == 0: self.stamp(f'p1 chunk {i}')
            if st == 1:
                if i < 7:
                    A(f'@waitvm ch{i+1}\ns_barrier')
                    if i == 4: A('@minlg 0')
                    if i + 3 < 8: pend += self.p1_chunk_dma(i + 3)
                    if i == 5:
                        self.free_blocks += [23, 24, 25, 26, 27]
                        pend += self.touch1()
                        for _ in range(8): pend += self.dma_next()
                    if i == 6:
                        for _ in range(8): pend += self.dma_next()
                        self.free_blocks += [22, 8, 9] + list(range(10, 16)) + [4, 5]
            mf = self.p1_mfmas(bufs[n & 1], n == 0)
            groups = []
            if n < 15:
                rd = self.p1_reads((n + 1) >> 1, (n + 1) & 1, bufs[(n + 1) & 1])
                for k in range(17):
                    gq = []
                    take = pend and (k >= 12 or k % 3 == 2)
                    d = pend.pop(0) if take else []
                    gq += [x for x in d if x.kind == 'salu']
                    if k < 12: gq.append(rd[k])
                    gq += [x for x in d if x.kind != 'salu']
                    groups.append(gq)
                if n == 10:
                    groups[16] += [Ins(f'v_mov_b32 {t1}, {self.sCoff}'), Ins(f'global_load_dword {t2}, {t1}, s[20:21] sc1')]
            else:
                code = self.diag_code(self.stG, self.stS[1]) + self.stats_code(self.stS[1], self.stS[0], tb4)
                code += [Ins(f's_lshl_b32 {s["T0"]}, {s["W"]}, 8'), Ins(f'v_add_u32 {t3}, {s["T0"]}, {aTB}'), Ins(f's_mov_b64 exec, {self.mDiag}'),
                         Ins(f'ds_write_b128 {t3}, {tb4} offset:256'), Ins('s_mov_b64 exec, -1')]
                groups = [[] for _ in range(5)]
                for k in range(5):
                    if pend: groups[k] = pend.pop(0)
                groups += [code[0:2], code[2:4], code[4:6], code[6:8], code[8:10], code[10:13], code[13:16]]
            self.weave16(mf, groups)
        for gq in pend: A.ext(gq)
        self.stamp('p1 gemm done')
        for b in bufs:
            for r in b[0] + b[1] + [b[2]]: r.free()
        A(f'v_readfirstlane_b32 {self.sCv}, {t2}\n@waitlg0')
        A(f's_and_b32 {s["T0"]}, {self.sCv}, 31\ns_cmp_lt_u32 {s["T0"]}, 16\ns_cbranch_scc1 L_cen_slow\nL_cen_ok:')
        T = self.tail
        T(f'L_cen_slow:\ns_mov_b32 {s["T1"]}, 0x8000\nL_cen_loop:\nglobal_load_dword {t2}, {t1}, s[20:21] sc1\ns_waitcnt vmcnt(0)\nv_readfirstlane_b32 {self.sCv}, {t2}')
        T(f's_sub_u32 {s["T1"]}, {s["T1"]}, 1\ns_cbranch_scc1 L_cen_ok\ns_and_b32 {s["T0"]}, {self.sCv}, 31\ns_cmp_lt_u32 {s["T0"]}, 16\ns_cbranch_scc1 L_cen_loop\ns_branch L_cen_ok')
        A('s_barrier')
        self.free_blocks += list(range(16, 22)) + [6, 7, 0, 1, 2, 3]
        tb = [V.alloc(4, 2) for _ in range(5)]
        for t in range(5): A(f'ds_read_b128 {tb[t]}, {aTB} offset:{t*256}')
        A(f's_lshl_b32 {s["T0"]}, {self.sCen}, 4\ns_cmp_eq_u32 {s["T0"]}, {self.sCv}')
        if self.o['force_slow']: A('s_cmp_eq_u32 0, 1')
        A(f's_cselect_b32 s54, {WS_SIZE}, 0\ns_cselect_b32 s58, 0, {WS_SIZE}\ns_cbranch_scc0 L_slow_init\nL_slow_back:')
        T(f'L_slow_init:\ns_add_u32 {s["FL"]}, {s["FL"]}, {FL_SLOW}\ns_lshl_b32 exec_lo, 0x111, {s["W"]}\ns_mov_b32 exec_hi, 0\nv_mov_b32 {t2}, 0')
        T(f'buffer_store_dword {t2}, {self.vFz}, {self.WS}, {s["FL"]} offen sc1\ns_waitcnt vmcnt(0)\ns_mov_b64 exec, 1\nv_mov_b32 {t2}, 1')
        T(f'global_atomic_add {t1}, {t2}, s[20:21] offset:4 sc1\ns_mov_b64 exec, -1\ns_mov_b32 {s["T1"]}, 0x8000')
        T(f'L_slow_loop:\nglobal_load_dword {t2}, {t1}, s[20:21] offset:4 sc1\ns_waitcnt vmcnt(0)\nv_readfirstlane_b32 {s["T0"]}, {t2}')
        T(f's_sub_u32 {s["T1"]}, {s["T1"]}, 1\ns_cbranch_scc1 L_slow_back\ns_cmp_lt_u32 {s["T0"]}, 64\ns_cbranch_scc1 L_slow_loop\ns_branch L_slow_back')
        for _ in range(self.o['b_epi']):
            for gq in self.dma_next(): A.ext(gq)
        ka = V.alloc(); kb = V.alloc()
        A(f'v_and_b32 {t1}, 1, {j}\nv_lshl_add_u32 {t1}, {g}, 2, {t1}\nv_lshlrev_b32 {t1}, 4, {t1}\nv_add_u32 {t1}, {SCR_TB + 8}, {t1}\nv_add_u32 {t2}, 256, {t1}')
        A(f'v_cndmask_b32 {ka}, {t1}, {t2}, {self.mOwnA}\nv_cndmask_b32 {kb}, {t1}, {t2}, {self.mOwnB}')
        rk = [None] + [V.alloc(2) for _ in range(4)]
        for t in range(1, 5): A(f'ds_read_b32 {rk[t][0]}, {ka} offset:{(t-1)*256}\nds_read_b32 {rk[t][1]}, {kb} offset:{(t-1)*256 + 32}')
        ka.free(); kb.free()
        csq = V.alloc(4, 2); csk = V.alloc(4, 2); csv = V.alloc(2, 2)
        for r in range(4): A(f'v_mov_b32_dpp {csk[r]}, {self.aK[0][r]} row_newbcast:0 row_mask:0xf bank_mask:0xf')
        for r in range(4): A(f'v_mov_b32_dpp {csq[r]}, {self.aQ[0][r]} row_newbcast:0 row_mask:0xf bank_mask:0xf')
        A(f'v_cvt_pk_bf16_f32 {t1}, {self.aV[0][0]}, {self.aV[0][0]}\nv_mov_b32 {csv[0]}, 0\nv_and_b32 {t1}, 0xffff0000, {t1}\nv_mov_b32 {csv[1]}, 0\nv_sub_f32 {t2}, {self.aV[0][0]}, {t1}')
        A(f's_mov_b64 exec, 0xffff\nv_cvt_pk_bf16_f32 {csv[1]}, {t1}, {t2}\ns_mov_b64 exec, -1')
        Kp = V.alloc(10, 2); Qp = V.alloc(10, 2); Vp = V.alloc(10, 2)
        def fix(acc, cs, t, dst):
            for h in range(2):
                A(f'v_pk_fma_f32 {acc[t].sub(2*h, 2)}, {cs.sub(2*h, 2)}, {tb[t].sub(0, 2)}, {acc[t].sub(2*h, 2)} op_sel_hi:[1,0,1]')
            for h in range(2):
                A(f'v_cvt_pk_bf16_f32 {dst[2*t + h]}, {acc[t][2*h]}, {acc[t][2*h+1]}')
        fix(self.aK, csk, 0, Kp)
        for t in range(1, 5):
            fix(self.aK, csk, t, Kp); fix(self.aQ, csq, t, Qp)
        zs = [None] + [V.alloc(2) for _ in range(4)]
        for t in range(1, 5): A(f'v_pk_mul_f32 {zs[t]}, {rk[t]}, {tb[t].sub(2, 2)} op_sel:[0,1] op_sel_hi:[1,1]')
        So, Sp = self.aQ, self.aK
        for t in range(1, 5):
            A(f'v_mfma_f32_16x16x16_bf16 {Sp[t]}, {Kp.sub(2*t-2, 2)}, {Qp.sub(2*t, 2)}, 0')
            A(f'v_mfma_f32_16x16x16_bf16 {So[t]}, {Kp.sub(2*t, 2)}, {Qp.sub(2*t, 2)}, 0')
        z = [None] + [V.alloc(2) for _ in range(4)]
        bias = V.alloc(2); sel = V.alloc(4)
        vm = [Ins(f'v_mfma_f32_16x16x16_bf16 {self.aV[t]}, {tb[t].sub(0, 2)}, {csv}, {self.aV[t]}') for t in range(5)]
        A(f's_cmp_eq_u32 {s["BLK"]}, 0\ns_cselect_b32 {s["T0"]}, {fhex(-1e30)}, 0')
        A.L.append(vm[0])
        A(f'v_mov_b32 {t1}, {s["T0"]}\nv_mov_b32 {t3}, 0x0c0c0c0c')
        A.L.append(vm[1])
        A(f'v_cndmask_b32 {bias[0]}, {t1}, 0, {self.mOwnA}\nv_cndmask_b32 {bias[1]}, {t1}, 0, {self.mOwnB}')
        A.L.append(vm[2])
        A(f'v_mov_b32 {t1}, 0x0c0c0100\nv_mov_b32 {t2}, 0x01000c0c')
        A.L.append(vm[3])
        A(f'v_cndmask_b32 {t1}, {t1}, {t2}, {self.mB0}')
        A.L.append(vm[4])
        A(f'v_cndmask_b32 {sel[0]}, {t1}, {t3}, {self.mOwnA}\nv_cndmask_b32 {sel[2]}, {t3}, {t1}, {self.mOwnA}')
        A(f'v_mov_b32 {t1}, 0x0c0c0302\nv_mov_b32 {t2}, 0x03020c0c\nv_cndmask_b32 {t1}, {t1}, {t2}, {self.mB0}')
        A(f'v_cndmask_b32 {sel[1]}, {t1}, {t3}, {self.mOwnB}\nv_cndmask_b32 {sel[3]}, {t3}, {t1}, {self.mOwnB}')
        for t in range(1, 5):
            for h, mk in ((0, self.mOwnA), (1, self.mOwnB)):
                A(f'v_cndmask_b32 {Sp[t][2*h]}, {Sp[t][2*h]}, {Sp[t][2*h+1]}, {self.mB0}\nv_cndmask_b32 {So[t][2*h]}, {So[t][2*h]}, {So[t][2*h+1]}, {self.mB0}')
                A(f'v_cndmask_b32 {z[t][h]}, {Sp[t][2*h]}, {So[t][2*h]}, {mk}')
        A(f'v_pk_fma_f32 {z[1]}, {z[1]}, {zs[1]}, {bias}')
        for t in range(2, 5): A(f'v_pk_mul_f32 {z[t]}, {z[t]}, {zs[t]}')
        red = [None] + [V.alloc(2) for _ in range(4)]
        vcv = [Ins(f'v_cvt_pk_bf16_f32 {Vp[2*t+h]}, {self.aV[t][2*h]}, {self.aV[t][2*h+1]}') for t in range(5) for h in range(2)]
        def fill(n):
            for _ in range(n):
                if vcv: A.L.append(vcv.pop(0))
        def allreduce(op, mid=None):
            r = [None] + [red[t][0] for t in range(1, 5)]
            for t in (1, 3, 2, 4): A(f'{op} {r[t]}, {z[t][0]}, {z[t][1]}')
            A(f'v_permlane32_swap_b32 {r[1]}, {r[3]}'); fill(1)
            A(f'v_permlane32_swap_b32 {r[2]}, {r[4]}')
            A(f'{op} {r[1]}, {r[1]}, {r[3]}\n{op} {r[2]}, {r[2]}, {r[4]}'); fill(2)
            A(f'v_permlane16_swap_b32 {r[1]}, {r[2]}')
            if mid:
                A(f'{op} {r[1]}, {r[1]}, {r[2]}\n{mid} {r[2]}, {r[1]}\n{mid} {r[1]}, {r[1]}')
            else:
                A(f'{op} {red[1][1]}, {r[1]}, {r[2]}\n{op} {r[2]}, {r[1]}, {r[2]}\nv_mov_b32 {r[1]}, {red[1][1]}')
            fill(2)
            A(f'v_permlane16_swap_b32 {r[1]}, {r[2]}')
            A(f'v_mov_b32 {r[3]}, {r[1]}\nv_mov_b32 {r[4]}, {r[2]}'); fill(1)
            A(f'v_permlane32_swap_b32 {r[1]}, {r[3]}\nv_permlane32_swap_b32 {r[2]}, {r[4]}')
        allreduce('v_max_f32')
        for t in range(1, 5): A(f'v_pk_add_f32 {z[t]}, {z[t]}, {red[t]} op_sel_hi:[1,0] neg_lo:[0,1] neg_hi:[0,1]')
        for t in range(1, 5): A(f'v_exp_f32 {z[t][0]}, {z[t][0]}\nv_exp_f32 {z[t][1]}, {z[t][1]}')
        allreduce('v_add_f32', 'v_rcp_f32')
        fill(10)
        for t in range(1, 5): A(f'v_pk_mul_f32 {z[t]}, {z[t]}, {rk[t]}')
        for t in range(1, 5): A(f'v_pk_mul_f32 {z[t]}, {z[t]}, {red[t]} op_sel_hi:[1,0]')
        for t in range(1, 5): A(f'v_cvt_pk_bf16_f32 {z[t][0]}, {z[t][0]}, {z[t][1]}')
        P = Sp; O = So
        for t in range(1, 5):
            for q in range(4): A(f'v_perm_b32 {P[t][q]}, {z[t][0]}, {z[t][0]}, {sel[q]}')
            if t > 1: A(f'v_mfma_f32_16x16x32_bf16 {O[t-1]}, {Vp.sub(2*t-4, 4)}, {P[t-1]}, 0')
        A(f's_lshl_b32 {s["T0"]}, {s["BLK"]}, 16\ns_lshl_b32 {s["T1"]}, {s["C"]}, 13')
        A(f'v_mfma_f32_16x16x32_bf16 {O[4]}, {Vp.sub(6, 4)}, {P[4]}, 0')
        A(f's_add_u32 {s["T0"]}, {s["T0"]}, {s["T1"]}\ns_add_u32 {s["T0"]}, {s["T0"]}, {self.sW2K}')
        self.vL16 = V.alloc(); A(f'v_lshlrev_b32 {self.vL16}, 4, {vL}')
        of = [self.aV[0], self.aV[1]]
        for pr in range(2):
            for q in range(2):
                t = 1 + 2*pr + q
                for h in range(2): A(f'v_cvt_pk_bf16_f32 {of[pr][2*q+h]}, {O[t][2*h]}, {O[t][2*h+1]}')
            A(f'v_permlane16_swap_b32 {of[pr][0]}, {of[pr][2]}\nv_permlane16_swap_b32 {of[pr][1]}, {of[pr][3]}')
            self.store2(A, 'dwordx4', of[pr], self.vL16, s["T0"], WS_O + pr*1024, 'ost')
        self.stamp('o stored')
        for r in tb + rk[1:] + zs[1:] + z[1:] + red[1:] + [csq, csk, csv, Kp, Qp, Vp, bias, sel, tb4, self.stG, self.stS, aTB, self.aW1] + self.aQ + self.aK + self.aV + self.aX + self.aXo: r.free()
        for r in (self.vXa, self.vXb, self.vW1, self.mOwnA, self.mOwnB, self.sCen, self.sCoff, self.sCv, self.sW3K): r.free()
        self.t1, self.t2, self.t3 = t1, t2, t3

    def store2(self, A, w, data, voff, soff, off, tag):
        assert off < 4096
        o = f' offset:{off}' if off else ''
        A(f'buffer_store_{w} {data}, {voff}, {self.WSF}, {soff} offen{o}', tag=tag)
        A(f'buffer_store_{w} {data}, {voff}, {self.WSS}, {soff} offen{o} sc1', tag=tag)

    def signal(self, kind, val):
        s = self.s; L = Asm()
        L(f's_lshl_b32 exec_lo, {1 << (4*kind)}, {s["W"]}\ns_mov_b32 exec_hi, 0\nv_mov_b32 {self.vFv}, {val}')
        self.store2(L, 'dword', self.vFv, self.vFz, s["FL"], 0, 'flag')
        L('s_mov_b64 exec, -1')
        return L.L

    def poll_block(self, A, addr, val):
        s = self.s; n = self.nlabel; self.nlabel += 1
        A(f's_mov_b32 {s["T3"]}, 0x20000\n@raw 1\nL_poll{n}:\nbuffer_load_dword {self.vPv}, {addr}, {self.WS}, {s["FL"]} offen sc1\ns_waitcnt vmcnt(0)')
        A(f'v_cmp_gt_u32 vcc, {val}, {self.vPv}\ns_sub_u32 {s["T3"]}, {s["T3"]}, 1\ns_cbranch_scc1 L_pd{n}\ns_cbranch_vccnz L_poll{n}\nL_pd{n}:\n@raw 0')

    def touch1(self):
        V, s, vL = self.V, self.s, self.vL
        L = Asm(); a = V.alloc(); b = V.alloc()
        L(f's_lshl_b32 {s["T0"]}, {s["BLK"]}, 16\ns_lshl_b32 {s["T1"]}, {s["C"]}, 13\ns_add_u32 {s["T0"]}, {s["T0"]}, {s["T1"]}\ns_add_u32 {s["T0"]}, {s["T0"]}, {self.sW2K}')
        L(f'v_mov_b32 {a}, {s["T0"]}')
        L(f's_lshr_b32 {s["T1"]}, {s["W"]}, 1\ns_lshl_b32 {s["T0"]}, {s["BLK"]}, 1\ns_add_u32 {s["T0"]}, {s["T0"]}, {s["T1"]}\ns_lshl_b32 {s["T0"]}, {s["T0"]}, 15')
        L(f's_lshl_b32 {s["T1"]}, {s["C"]}, 12\ns_add_u32 {s["T0"]}, {s["T0"]}, {s["T1"]}\ns_and_b32 {s["T1"]}, {self.sW2K}, 2048\ns_add_u32 {s["T0"]}, {s["T0"]}, {s["T1"]}\ns_add_u32 {s["T0"]}, {s["T0"]}, {WS_H}')
        L(f's_mov_b64 exec, 0xffff0000\nv_mov_b32 {a}, {s["T0"]}\ns_mov_b32 exec_lo, 0\ns_mov_b32 exec_hi, -1\nv_mov_b32 {a}, {s["FL"]}\ns_mov_b64 exec, -1')
        L(f'v_lshl_add_u32 {a}, {self.vJ}, 7, {a}')
        L(f's_lshl_b32 {s["T0"]}, {s["G"]}, 13\ns_lshl_b32 {s["T1"]}, {s["M"]}, 9\ns_add_u32 {s["T0"]}, {s["T0"]}, {s["T1"]}\ns_lshl_b32 {s["T1"]}, {s["W"]}, 7\ns_add_u32 {s["T0"]}, {s["T0"]}, {s["T1"]}\ns_add_u32 {s["T0"]}, {s["T0"]}, {WS_ST}')
        L(f's_mov_b32 exec_lo, 0\ns_mov_b32 exec_hi, 0xfffffc00\nv_mov_b32 {a}, {s["T0"]}\ns_mov_b32 exec_lo, -1\ns_mov_b32 exec_hi, 0x7ff')
        L(f'buffer_load_dword {b}, {a}, {self.WS}, 0 offen sc1\ns_mov_b64 exec, -1')
        self.touch_regs = (a, b)
        self.A.ext(L)
        return []

    def build_stream(self):
        st = [('W2', i) for i in range(16)]
        for q in range(8): st += [('F1', 2*q), ('H1', q), ('F1', 2*q + 1)]
        st += [('S2', i) for i in range(16)] + [('S3', q) for q in range(8)]
        st += [('W4', i) for i in range(43)]
        self.stream = st
        self.sD = self.S.alloc()
        A, V, S, s, vL = self.A, self.V, self.S, self.s, self.vL
        self.vF = V.alloc(); self.vH = V.alloc(); self.vD = V.alloc()
        a = V.alloc(); b = V.alloc(); c = V.alloc()
        self.sBF = S.alloc(2); self.sBH = S.alloc(2); self.sR2 = S.alloc(4); self.sR3 = S.alloc(); self.sU = S.alloc(2)
        A(f's_and_b32 {s["PF"]}, {s["M"]}, 1\ns_mul_i32 {s["T0"]}, {s["M"]}, 192\ns_mul_i32 {s["T1"]}, {s["PF"]}, {PITCH3}')
        A(f's_add_u32 {s["T2"]}, {s["T0"]}, {s["T1"]}\ns_sub_u32 {s["T3"]}, {s["T0"]}, {s["T1"]}\ns_add_u32 {s["T3"]}, {s["T3"]}, {PITCH3}')
        A(f's_and_b32 {self.sR3}, {s["G"]}, 1\ns_lshl_b32 {self.sR3}, {self.sR3}, 2\ns_mul_i32 {s["T0"]}, {self.sR3}, {64*PITCH3}\ns_sub_u32 {s["T1"]}, {256*PITCH3}, {s["T0"]}')
        A(f's_add_u32 {self.sBF[0]}, {s["T2"]}, {s["T0"]}\ns_add_u32 {self.sBF[1]}, {s["T2"]}, {s["T1"]}\ns_add_u32 {self.sBH[0]}, {s["T3"]}, {s["T0"]}\ns_add_u32 {self.sBH[1]}, {s["T3"]}, {s["T1"]}')
        for k in range(4): A(f's_xor_b32 {s["T0"]}, {s["BLK"]}, {k}\ns_and_b32 {s["T0"]}, {s["T0"]}, 3\ns_lshl_b32 {s["T0"]}, {s["T0"]}, 17\ns_add_u32 {self.sR2[k]}, {s["T0"]}, {self.sC128}')
        A(f's_and_b32 {s["T0"]}, {s["W"]}, 1\ns_and_b32 {s["T1"]}, {s["W"]}, 2')
        A(f'v_lshrrev_b32 {a}, 4, {vL}\nv_lshlrev_b32 {a}, 3, {a}\nv_bfe_u32 {b}, {vL}, 3, 1\nv_add_u32 {a}, {a}, {b}\nv_lshl_add_u32 {a}, {s["T0"]}, 1, {a}\nv_mul_u32_u24 {a}, {2*PITCH3}, {a}')
        A(f'v_bfe_u32 {b}, {vL}, 4, 1\nv_or_b32 {b}, {s["T1"]}, {b}\nv_lshlrev_b32 {b}, 1, {b}\nv_and_b32 {c}, 7, {vL}\nv_xor_b32 {b}, {b}, {c}\nv_lshl_add_u32 {self.vF}, {b}, 4, {a}')
        A(f'v_bfe_u32 {a}, {vL}, 3, 2\nv_lshlrev_b32 {a}, 3, {a}\nv_lshrrev_b32 {b}, 5, {vL}\nv_lshl_add_u32 {a}, {b}, 1, {a}\nv_bfe_u32 {b}, {vL}, 2, 1\nv_add_u32 {a}, {a}, {b}\nv_lshl_add_u32 {a}, {s["T0"]}, 2, {a}\nv_mul_u32_u24 {a}, {2*PITCH3}, {a}')
        A(f'v_and_b32 {b}, 3, {vL}\nv_xor_b32 {b}, {s["T1"]}, {b}\nv_lshl_add_u32 {self.vH}, {b}, 4, {a}')
        A(f'v_lshrrev_b32 {a}, 3, {vL}\nv_lshl_add_u32 {a}, {s["T0"]}, 3, {a}\nv_bfe_u32 {b}, {vL}, 4, 1\nv_lshlrev_b32 {b}, 2, {b}\nv_xor_b32 {b}, {b}, {c}\nv_lshlrev_b32 {b}, 4, {b}\nv_lshl_add_u32 {self.vD}, {a}, 10, {b}')
        A(f's_lshl_b32 {s["T1"]}, {s["T1"]}, 13\ns_add_u32 {self.sU[0]}, {s["T1"]}, {self.sC128}\ns_mul_i32 {s["T1"]}, {s["T1"]}, 6\ns_add_u32 {self.sU[1]}, {s["T1"]}, {self.sC128}')
        for r in (a, b, c): r.free()

    @staticmethod
    def p4_unit(i):
        if i < 15: return 0, 6*i
        if i < 29: return 0, 6*(i - 15) + 2
        if i < 36: return 1, 12*(i - 29) + 4
        return 1, 12*(i - 36) + 5

    def dma_next(self):
        if not self.stream or not self.free_blocks: return []
        key = self.stream.pop(0); b = self.free_blocks.pop(0)
        self.loc[key] = b; self.issued.append(key)
        s, D = self.s, self.sD; kind, i = key; tag = f'{kind}_{i}'
        pre = []
        if kind == 'W2':
            assert 23 <= b <= 38
            pre = [f's_add_u32 {D}, {self.sR2[i >> 2]}, {(i & 3) << 15}']
            ld = f'buffer_load_dwordx4 {self.vW2}, {self.WO}, {D} offen lds'
        elif kind in ('F1', 'S2', 'H1', 'S3'):
            full = kind in ('F1', 'S2')
            cp = i >> 1 if full else i
            base = self.sBF if kind in ('F1', 'S3') else self.sBH
            add = {'F1': 0, 'H1': 0, 'S2': 64, 'S3': 128}[kind] + (8*PITCH3*(i & 1) if full else 0)
            pre = [f's_add_u32 {D}, {base[cp >> 2]}, {(cp & 3)*64*PITCH3 + add}']
            if key == ('S2', 0): pre += [f's_cmp_lt_u32 {s["M"]}, 14', f's_cselect_b32 s38, s38, 0']
            ld = f'buffer_load_dwordx4 {self.vF if full else self.vH}, {self.W3}, {D} offen lds'
        else:
            sel, u = self.p4_unit(i)
            pre = [f's_add_u32 {D}, {self.sU[sel]}, {u*16384}']
            ld = f'buffer_load_dwordx4 {self.vD}, {self.WD}, {D} offen lds'
        g = [Ins(f's_add_u32 m0, {s["W1K"]}, {b*BLK}')] + [Ins(x) for x in pre] + [Ins(ld, tag)]
        return [g]

    def phase2(self):
        A, V, S, AG, s, vL = self.A, self.V, self.S, self.AG, self.s, self.vL
        t1, t2, t3, j, g = self.t1, self.t2, self.t3, self.vJ, self.vG
        self.vFv = V.alloc(); self.vPv = V.alloc()
        aw = [V.alloc() for _ in range(4)]
        A(f'v_lshl_add_u32 {t1}, {g}, 10, {self.vTRb}\nv_add_u32 {t1}, {23*BLK}, {t1}')
        for ct in range(4): A(f'v_xor_b32 {t2}, {ct*32}, {self.vTRf}\nv_add_u32 {aw[ct]}, {t1}, {t2}')
        pa = V.alloc(); oa = V.alloc()
        A(f's_lshl_b32 {s["T0"]}, {s["SB"]}, 7\nv_and_b32 {t1}, 31, {vL}\nv_lshl_add_u32 {pa}, {t1}, 2, {s["T0"]}')
        A(f's_lshr_b32 {s["T0"]}, {s["W"]}, 1\ns_lshl_b32 {s["T0"]}, {s["T0"]}, 10\ns_and_b32 {s["T1"]}, {s["W"]}, 1\ns_lshl_b32 {s["T1"]}, {s["T1"]}, 8')
        hv = V.alloc()
        A(f'v_and_b32 {t1}, 1, {g}\nv_lshlrev_b32 {t1}, 9, {t1}\nv_lshl_add_u32 {t1}, {j}, 4, {t1}\nv_lshrrev_b32 {t2}, 1, {g}\nv_lshl_add_u32 {t1}, {t2}, 11, {t1}\nv_add_u32 {hv}, {s["T1"]}, {t1}\nv_add_u32 {oa}, {s["T0"]}, {hv}')
        assert ('W2', 15) in self.loc
        A(f's_lshl_b32 {s["T0"]}, {s["BLK"]}, 16')
        for k in range(4): A(f's_lshr_b32 {s["T1"]}, {self.sR2[k]}, 17\ns_lshl_b32 {s["T1"]}, {s["T1"]}, 14\ns_add_u32 {self.sR2[k]}, {s["T1"]}, {s["T0"]}')
        acc = [V.alloc(4, 2) for _ in range(4)]
        for ct in range(4):
            for h in range(2):
                A(f'v_lshlrev_b32 {acc[ct][2*h]}, 16, {self.resx[2*ct+h]}\nv_and_b32 {acc[ct][2*h+1]}, 0xffff0000, {self.resx[2*ct+h]}')
        A('@waitvm ost')
        for r in self.touch_regs: r.free()
        self.stamp('o drained')
        A.ext(self.signal(0, 1))
        A('@waitvm W2_15\ns_barrier')
        for _ in range(self.o['b_post1']):
            for gq in self.dma_next(): A.ext(gq)
        Wf = [[AG.alloc(4, 4) for _ in range(4)] for _ in range(16)]
        def rd(i):
            off = (self.loc[('W2', i)] - 23)*BLK
            return [Ins(f'ds_read_b64_tr_b16 {Wf[i][ct].sub(2*a, 2)}, {aw[ct]} offset:{off + a*512}') for ct in range(4) for a in range(2)]
        npre = self.o.get('w2pre', 7)
        for i in range(npre): A.ext(rd(i))
        self.poll_block(A, pa, 1); A('@drained_vm')
        self.stamp('sync1 done')
        Of = [V.alloc(4, 2) for _ in range(16)]
        for i in range(16):
            A(f's_add_u32 {s["T1"]}, {self.sR2[i >> 2]}, {(i & 3) << 12}')
            A(f'buffer_load_dwordx4 {Of[i]}, {oa}, {self.WS}, {s["T1"]} offen sc1')
        for _ in range(self.o['b_o']):
            for gq in self.dma_next(): A.ext(gq)
        rest = []
        for i in range(npre, 16): rest += rd(i)
        A.ext(rest[:16]); rest = rest[16:]
        for i in range(16):
            for ct in range(4):
                A(f'v_mfma_f32_16x16x32_bf16 {acc[ct]}, {Wf[i][ct]}, {Of[i]}, {acc[ct]}')
                k = 2 if ct & 1 else 1
                A.ext(rest[:k]); rest = rest[k:]
        assert not rest
        self.stamp('p2 gemm done')
        A(f's_lshr_b32 {s["T1"]}, {s["W"]}, 1\ns_lshl_b32 {s["T0"]}, {s["BLK"]}, 1\ns_add_u32 {s["T2"]}, {s["T0"]}, {s["T1"]}\ns_lshl_b32 {s["T0"]}, {s["T2"]}, 15')
        A(f's_lshl_b32 {s["T1"]}, {s["C"]}, 12\ns_add_u32 {s["T0"]}, {s["T0"]}, {s["T1"]}\ns_add_u32 {s["T0"]}, {s["T0"]}, {WS_H}')
        hf = [Of[0], Of[1]]
        for par in range(2):
            for ct in range(4): A(f'v_cvt_pk_bf16_f32 {hf[par][ct]}, {acc[ct][par]}, {acc[ct][2+par]}')
            self.store2(A, 'dwordx4', hf[par], hv, s["T0"], par*1024, 'hst')
        G4, S4 = Of[2], Of[3]
        for par in range(2):
            A(f'v_mfma_f32_16x16x32_bf16 {G4}, {hf[par]}, {hf[par]}, {G4 if par else 0}')
            A(f'v_mfma_f32_16x16x32_bf16 {S4}, {self.ones}, {hf[par]}, {S4 if par else 0}')
        A(f's_lshl_b32 {s["T0"]}, {s["T2"]}, 11\ns_bfe_u32 {s["T1"]}, {s["C"]}, 0x10001\ns_lshl_b32 {s["T1"]}, {s["T1"]}, 10\ns_add_u32 {s["T0"]}, {s["T0"]}, {s["T1"]}')
        A(f's_lshr_b32 {s["T1"]}, {s["C"]}, 2\ns_lshl_b32 {s["T1"]}, {s["T1"]}, 9\ns_add_u32 {s["T0"]}, {s["T0"]}, {s["T1"]}\ns_and_b32 {s["T1"]}, {s["W"]}, 1\ns_lshl_b32 {s["T1"]}, {s["T1"]}, 8\ns_add_u32 {s["T0"]}, {s["T0"]}, {s["T1"]}')
        A(f's_and_b32 {s["T1"]}, {s["C"]}, 1\ns_lshl_b32 {s["T1"]}, {s["T1"]}, 3\ns_add_u32 {s["T0"]}, {s["T0"]}, {s["T1"]}\ns_add_u32 {s["T0"]}, {s["T0"]}, {WS_ST}')
        A(f'v_lshlrev_b32 {t1}, 4, {j}')
        A.ext(self.diag_code(G4, S4[1]))
        A(f's_mov_b64 exec, {self.mDiag}')
        self.store2(A, 'dwordx2', S4.sub(0, 2), t1, s["T0"], 0, 'hst')
        A('s_mov_b64 exec, -1')
        self.stamp('h stored')
        A('s_barrier')
        w2b = sorted(self.loc[('W2', i)] for i in range(16))
        self.resb = w2b[0]; assert w2b[1] == w2b[0] + 1
        self.free_blocks += w2b[2:]
        rp = Of[4].b; rp = Reg('v', Of[4].b, 8); assert Of[5].b == Of[4].b + 4
        for ct in range(4):
            for h in range(2): A(f'v_cvt_pk_bf16_f32 {rp[2*ct+h]}, {acc[ct][2*h]}, {acc[ct][2*h+1]}')
        A(f's_add_u32 {s["T0"]}, {self.sW2K}, {self.resb*BLK}\nv_lshlrev_b32 {t1}, 7, {j}\nv_lshl_add_u32 {t1}, {g}, 3, {t1}\nv_add_u32 {t1}, {s["T0"]}, {t1}')
        for ct in range(4): A(f'ds_write_b64 {t1}, {rp.sub(2*ct, 2)} offset:{ct*32}')
        A('@waitvm hst')
        self.stamp('h drained')
        A.ext(self.signal(1, 1))
        for _ in range(self.o['b_post2']):
            for gq in self.dma_next(): A.ext(gq)
        A('@waitlg0')
        for r in aw + [pa, oa, hv] + acc + Of + [x for y in Wf for x in y] + [self.vW2, self.mB0, self.mB1, self.mDiag, self.sR2]: r.free()

    def phase34(self):
        A, V, S, AG, s, vL, o = self.A, self.V, self.S, self.AG, self.s, self.vL, self.o
        t1, t2, t3, j, g = self.t1, self.t2, self.t3, self.vJ, self.vG
        def windows(base):
            r = [base, V.alloc(), V.alloc()]
            A(f'v_add_u32 {r[1]}, 0x10000, {base}\nv_add_u32 {r[2]}, 0x20000, {base}')
            return r
        aF, aH, aD = [], [], []
        A(f'v_and_b32 {t1}, 1, {g}\nv_lshlrev_b32 {t1}, 11, {t1}\nv_lshrrev_b32 {t2}, 1, {g}\nv_lshl_add_u32 {t3}, {t2}, 10, {t1}\nv_add_u32 {t3}, {t3}, {self.vTRb}')
        for uu in range(4):
            b = V.alloc(); A(f'v_xor_b32 {b}, {uu*32}, {self.vTRf}\nv_add_u32 {b}, {b}, {t3}'); aF.append(windows(b))
        A(f'v_lshl_add_u32 {t3}, {t2}, 9, {t1}\nv_bfe_u32 {t1}, {vL}, 2, 2\nv_lshl_add_u32 {t3}, {t1}, 6, {t3}\nv_and_b32 {t1}, 3, {vL}\nv_lshl_add_u32 {t3}, {t1}, 3, {t3}\nv_and_b32 {t1}, 1, {g}\nv_lshl_add_u32 {t3}, {t1}, 5, {t3}')
        for uu in range(2):
            b = V.alloc(); A(f'v_xor_b32 {b}, {uu*32}, {t3}'); aH.append(windows(b))
        A(f'v_bfe_u32 {t1}, {vL}, 2, 2\nv_lshl_add_u32 {t1}, {t2}, 2, {t1}\nv_lshlrev_b32 {t3}, 7, {t1}\nv_bfe_u32 {t1}, {vL}, 3, 1\nv_lshl_add_u32 {t3}, {t1}, 6, {t3}')
        A(f'v_and_b32 {t1}, 1, {vL}\nv_lshl_add_u32 {t3}, {t1}, 5, {t3}\nv_and_b32 {t1}, 1, {g}\nv_lshl_add_u32 {t3}, {t1}, 4, {t3}\nv_bfe_u32 {t1}, {vL}, 1, 1\nv_lshl_add_u32 {t3}, {t1}, 3, {t3}')
        A(f's_lshr_b32 {s["T0"]}, {s["W"]}, 1\ns_mul_i32 {s["T1"]}, {s["T0"]}, {2048 + 64}')
        for k in range(2):
            b = V.alloc(); A(f'v_xor_b32 {b}, {s["T1"]}, {t3}')
            if k: A(f'v_xor_b32 {b}, 64, {b}')
            aD.append(windows(b))
        A(f's_and_b32 {s["T1"]}, {s["W"]}, 2\nv_and_b32 {t1}, 1, {g}\nv_or_b32 {t1}, {s["T1"]}, {t1}\nv_lshlrev_b32 {t1}, 5, {t1}')
        b = V.alloc(); A(f'v_xor_b32 {b}, {t1}, {self.vL16}\nv_add_u32 {b}, {s["W1K"]}, {b}'); aCF = windows(b)
        b = V.alloc(); A(f's_lshl_b32 {s["T1"]}, {s["T1"]}, 4\nv_xor_b32 {b}, {s["T1"]}, {self.vL16}\nv_add_u32 {b}, {s["W1K"]}, {b}'); aCH = windows(b)
        delta = V.alloc(4, 2)
        for d in range(4):
            A(f'v_mov_b32 {delta[d]}, 0\nv_cmp_eq_u32 vcc, {2*d}, {j}\nv_mov_b32 {t1}, 0x3f80\nv_cndmask_b32 {delta[d]}, {delta[d]}, {t1}, vcc')
            A(f'v_cmp_eq_u32 vcc, {2*d+1}, {j}\nv_mov_b32 {t1}, 0x3f800000\nv_cndmask_b32 {delta[d]}, {delta[d]}, {t1}, vcc')
        aAF = V.alloc(); aAH = V.alloc(); aCR = V.alloc()
        A(f's_lshl_b32 {s["T1"]}, {s["T0"]}, 9\ns_add_u32 {s["T1"]}, {s["T1"]}, {SCR_CS}\nv_lshl_add_u32 {t1}, {g}, 4, {s["T1"]}')
        A(f'v_and_b32 {t2}, 7, {j}\nv_lshl_add_u32 {aAF}, {t2}, 5, {t1}\nv_and_b32 {t2}, 3, {j}\nv_lshl_add_u32 {aAH}, {t2}, 5, {t1}')
        A(f'v_and_b32 {t1}, 1, {g}\nv_lshlrev_b32 {t1}, 9, {t1}\nv_lshl_add_u32 {t1}, {j}, 2, {t1}\nv_add_u32 {aCR}, {SCR_CS}, {t1}')
        cA = [V.alloc(4, 2), V.alloc(4, 2)]; cB = V.alloc(4, 2)
        for r in (cA[0], cA[1], cB):
            for k in range(4): A(f'v_mov_b32 {r[k]}, 0')
        pa2 = V.alloc(); pa3 = V.alloc(); aRes = V.alloc()
        A(f's_lshl_b32 {s["T1"]}, {s["W"]}, 7\ns_add_u32 {s["T1"]}, {s["T1"]}, 256\nv_lshl_add_u32 {pa2}, {j}, 2, {s["T1"]}')
        sT4 = S.alloc(); sGst = S.alloc(); sGld = S.alloc(2); sHF = S.alloc(); sHH = S.alloc(); sL = S.alloc()
        A(f's_and_b32 {s["T2"]}, {s["W"]}, 1\ns_lshl_b32 {sT4}, {s["SB"]}, 1\ns_add_u32 {sT4}, {sT4}, {s["T2"]}')
        A(f's_lshl_b32 {s["T1"]}, {sT4}, 7\ns_add_u32 {s["T1"]}, {s["T1"]}, 768\nv_lshl_add_u32 {pa3}, {j}, 2, {s["T1"]}')
        A(f's_lshl_b32 {s["T2"]}, {s["T2"]}, 12\ns_lshl_b32 {s["T1"]}, {s["T0"]}, 6\ns_add_u32 {s["T1"]}, {s["T1"]}, {s["T2"]}\ns_add_u32 {s["T1"]}, {s["T1"]}, {self.resb*BLK}')
        A(f'v_and_b32 {t1}, 31, {vL}\nv_lshlrev_b32 {t1}, 7, {t1}\nv_lshrrev_b32 {t2}, 5, {vL}\nv_lshl_add_u32 {t1}, {t2}, 5, {t1}\nv_add_u32 {aRes}, {s["T1"]}, {t1}')
        A(f's_mul_i32 {s["T1"]}, {s["G"]}, {384*KB}\ns_add_u32 {s["T1"]}, {s["T1"]}, {WS_G}')
        A(f's_mul_i32 {sGst}, {s["W"]}, {96*KB}\ns_add_u32 {sGst}, {sGst}, {s["T1"]}\ns_mul_i32 {s["T2"]}, {s["M"]}, {6*KB}\ns_add_u32 {sGst}, {sGst}, {s["T2"]}')
        A(f's_mul_i32 {s["T2"]}, {sT4}, {96*KB}\ns_add_u32 {s["T1"]}, {s["T1"]}, {s["T2"]}\ns_lshl_b32 {s["T2"]}, {s["T0"]}, 10\ns_add_u32 {sGld[0]}, {s["T1"]}, {s["T2"]}\ns_mul_i32 {s["T2"]}, {s["T2"]}, 6\ns_add_u32 {sGld[1]}, {s["T1"]}, {s["T2"]}')
        A(f's_lshl_b32 {s["T1"]}, {s["G"]}, 2\ns_add_u32 {sL}, {s["T1"]}, {s["W"]}\ns_lshl_b32 {s["T1"]}, {sL}, 15\ns_add_u32 {s["T1"]}, {s["T1"]}, {WS_H}')
        A(f's_lshl_b32 {s["T2"]}, {s["PF"]}, 10\ns_add_u32 {sHF}, {s["T1"]}, {s["T2"]}\ns_xor_b32 {sHH}, {sHF}, 1024')
        self.vTRb.free(); self.vTRf.free()
        acc = [V.alloc(16, 2) for _ in range(6)]
        HB = {('F', i): AG.at(8*i, 4) for i in range(16)}; HB.update({('H', i): AG.at(8*i + 4, 4) for i in range(16)})
        ops = []
        def op3(u, ty, i):
            if ty == 'F':
                if u < 4: key, ad, st, ex = ('F1', i), aF[u], 512, 0
                else: key, ad, st, ex = ('S3', i >> 1), aH[u - 4], 256, (i & 1)*1024
            else:
                if u < 2: key, ad, st, ex = ('H1', i >> 1), aH[u], 256, (i & 1)*1024
                else: key, ad, st, ex = ('S2', i), aF[u - 2], 512, 0
            ops.append(dict(k='m', u=u, key=key, ad=ad, st=st, ex=ex, B=HB[(ty, i)]))
        if o['order'] == 'pair':
            for i in range(16):
                for ty in 'FH':
                    for u in (0, 1): op3(u, ty, i)
            for u in (2, 3):
                pass
            for i in range(16):
                for u in (2, 3): op3(u, 'F', i)
            for i in range(16):
                for u in (2, 3): op3(u, 'H', i)
        else:
            for i in range(16):
                for u in range(4): op3(u, 'F', i)
                for u in (0, 1): op3(u, 'H', i)
            for i in range(16):
                for u in (2, 3): op3(u, 'H', i)
        for i in range(16):
            for u in (4, 5): op3(u, 'H', i)
        for u in (4, 5):
            for i in range(16): op3(u, 'F', i)
        n3 = len(ops)
        NG = o.get('NG', 16)
        GB = [AG.alloc(4, 4) for _ in range(NG)]
        accK, accS = acc[0], acc[1]
        for i in range(43):
            for k in range(2): ops.append(dict(k='m', u=6 + k, key=('W4', i), ad=aD[k], st=1024, ex=0, B=GB[i % NG], gi=i))
        csacc = {c: V.alloc(4, 2) for c in ('F1', 'H1', 'S2', 'S3')}
        seen = set(); ops2 = []; cnt = {}
        for p in ops:
            if p['key'][0] != 'W4' and p['key'] not in seen:
                seen.add(p['key']); c = p['key'][0]; cnt[c] = cnt.get(c, 0) + 1
                ops2.append(dict(k='c', key=p['key'], first=cnt[c] == 1, last=cnt[c] == (16 if c in ('F1', 'S2') else 8)))
            ops2.append(p)
        ops = ops2
        NR = o.get('NR', 14)
        RB = [AG.alloc(4, 4) for _ in range(NR)]
        for n, p in enumerate(ops): p['R'] = RB[n % NR]; p['n'] = n
        last_use = {}
        for p in ops: last_use[p['key']] = p['n']
        last_op = {}
        for p in ops:
            if p['k'] == 'm': last_op[p['u']] = p['n']
        first4 = min(p['n'] for p in ops if p.get('u', 0) >= 6)
        def reads(p):
            b = self.loc[p['key']]; w, off = b >> 4, (b & 15)*BLK
            if p['k'] == 'c':
                ad = aCF if p['key'][0] in ('F1', 'S2') else aCH
                return [Ins(f'ds_read_b128 {p["R"]}, {ad[w]} offset:{off}', f'r{p["n"]}')]
            return [Ins(f'ds_read_b64_tr_b16 {p["R"].sub(2*a, 2)}, {p["ad"][w]} offset:{off + p["ex"] + a*p["st"]}', f'r{p["n"]}') for a in range(2)]
        started = set()
        def mfma(p):
            if p['k'] == 'c':
                c = csacc[p['key'][0]]
                return Ins(f'v_mfma_f32_16x16x32_bf16 {c}, {delta}, {p["R"]}, {0 if p["first"] else c}')
            a = acc[p['u']] if p['u'] < 6 else (accK, accS)[p['u'] - 6]
            z = p['u'] not in started and p['u'] != 6
            started.add(p['u'])
            return Ins(f'v_mfma_f32_32x32x16_bf16 {a}, {p["R"]}, {p["B"]}, {0 if z else a}')
        LA, BI = o['LA'], o['BI']
        N = len(ops)
        bars = list(range(0, N, BI))
        def bar_code(n):
            L = Asm()
            need = [ops[q]['key'] for q in range(n, min(N, n + BI + LA))]
            while any(k not in self.loc for k in need):
                gq = self.dma_next(); assert gq, f'LDS full at op {n}'
                for x in gq: L.ext(x)
                self.forced += 1
            newest = max(need, key=self.issued.index)
            L(f'@waitvm {newest[0]}_{newest[1]}\ns_barrier')
            return L
        self.forced = 0
        A.ext(bar_code(0))
        res = self.resx
        A(f'ds_read_b128 {res.sub(0, 4)}, {aRes}\nds_read_b128 {res.sub(4, 4)}, {aRes} offset:16')
        for q in range(LA): A.ext(reads(ops[q]))
        self.poll_block(A, pa2, 1); A('@drained_vm')
        self.stamp('sync2 done')
        for cp in range(8):
            A(f's_xor_b32 {s["T0"]}, {self.sR3}, {cp}\ns_lshl_b32 {s["T0"]}, {s["T0"]}, 12\ns_add_u32 {s["T1"]}, {s["T0"]}, {sHF}\ns_add_u32 {s["T2"]}, {s["T0"]}, {sHH}')
            for gp in range(2):
                A(f'buffer_load_dwordx4 {HB[("F", 2*cp+gp)]}, {self.vL16}, {self.WS}, {s["T1"]} offen offset:{gp*2048} sc1')
                A(f'buffer_load_dwordx4 {HB[("H", 2*cp+gp)]}, {self.vL16}, {self.WS}, {s["T2"]} offen offset:{gp*2048} sc1')
            if cp in o.get('h_dma_mix', ()):
                for gq in self.dma_next(): A.ext(gq)
        sp = V.alloc(8, 2)
        A(f's_lshl_b32 {s["T0"]}, {sL}, 11\ns_add_u32 {s["T0"]}, {s["T0"]}, {WS_ST}')
        A(f'buffer_load_dwordx4 {sp.sub(0, 4)}, {self.vL16}, {self.WS}, {s["T0"]} offen sc1\nbuffer_load_dwordx4 {sp.sub(4, 4)}, {self.vL16}, {self.WS}, {s["T0"]} offen offset:1024 sc1')
        A(f'v_lshlrev_b32 {t1}, 7, {vL}\ns_mov_b32 exec_hi, 0xffff\nbuffer_load_dword {t2}, {t1}, {self.WS}, {sGst} offen sc1\ns_mov_b32 exec_hi, -1')
        c1 = V.alloc(); c3 = V.alloc(); iv = V.alloc(); tt = V.alloc(8, 2); go = [V.alloc(4, 2), V.alloc(4, 2)]
        K1 = -2*math.sqrt(2/math.pi)*LOG2E; K3 = K1*0.044715
        valu = []
        def q(n, text, tag=None):
            L = Asm(); L(text, tag); valu.append((n, L.L))
        def qi(n, text):
            for ln in text.split('\n'): q(n, ln)
        n_st = o.get('n_stats', 56)
        qi(n_st, f'v_add_f32 {sp[0]}, {sp[0]}, {sp[2]}\nv_add_f32 {sp[1]}, {sp[1]}, {sp[3]}\nv_add_f32 {sp[4]}, {sp[4]}, {sp[6]}\nv_add_f32 {sp[5]}, {sp[5]}, {sp[7]}')
        qi(n_st, f'v_add_f32 {sp[0]}, {sp[0]}, {sp[4]}\nv_add_f32 {sp[1]}, {sp[1]}, {sp[5]}\nv_mov_b32 {sp[2]}, {sp[0]}\nv_mov_b32 {sp[3]}, {sp[1]}')
        qi(n_st, f'v_permlane32_swap_b32 {sp[0]}, {sp[2]}\nv_permlane32_swap_b32 {sp[1]}, {sp[3]}\nv_add_f32 {sp[0]}, {sp[0]}, {sp[2]}\nv_add_f32 {sp[1]}, {sp[1]}, {sp[3]}')
        qi(n_st, f'v_mul_f32 {sp[0]}, {fhex(-1/512)}, {sp[0]}\nv_fma_f32 {sp[1]}, {sp[1]}, {self.sInv512}, {self.vEps}\nv_fma_f32 {iv}, -{sp[0]}, {sp[0]}, {sp[1]}\nv_max_f32 {iv}, {iv}, {self.vEps}')
        q(n_st, f's_mov_b32 exec_hi, 0\nv_cvt_pk_bf16_f32 {cB[0]}, {sp[0]}, {sp[0]}\ns_mov_b32 exec_hi, -1')
        qi(n_st, f'v_rsq_f32 {sp[2]}, {iv}\nv_nop\nv_mul_f32 {c1}, {fhex(K1)}, {sp[2]}\nv_mul_f32 {sp[3]}, {sp[2]}, {sp[2]}\nv_mul_f32 {c3}, {fhex(0.044715)}, {c1}\nv_mul_f32 {c3}, {c3}, {sp[3]}')
        cs_last = {p['key'][0]: p['n'] for p in ops if p['k'] == 'c' and p['last']}
        events = []
        def nextbar(n): return ((n + BI - 1)//BI)*BI
        add_done = {}
        self.cs_sched = {}
        for c in ('F1', 'H1', 'S2', 'S3'):
            sh = {'F1': 0, 'H1': 0, 'S2': 128, 'S3': 256}[c]
            ad = aAF if c in ('F1', 'S2') else aAH
            txt = 's_mov_b32 exec_hi, 0\n' + '\n'.join(f'ds_add_f32 {ad}, {csacc[c][r]} offset:{sh + 4*r}' for r in range(4)) + '\ns_mov_b32 exec_hi, -1'
            self.cs_sched[cs_last[c] + 2] = self.cs_sched.get(cs_last[c] + 2, []) + [(txt, 'add' + c)]
            add_done[c] = nextbar(cs_last[c] + 4)
        need_cls = {0: ('F1', 'H1'), 1: ('F1', 'H1'), 2: ('F1', 'S2'), 3: ('F1', 'S2'), 4: ('S2', 'S3'), 5: ('S2', 'S3')}
        pubs = {1: 1, 3: 2, 4: 3, 5: 4}
        for u in range(6):
            nb = max(add_done[c] for c in need_cls[u]); ca = cA[u & 1]; a = acc[u]; out = go[u & 1]
            q(nb, f'ds_read_b32 {ca[0]}, {aCR} offset:{u*64}')
            qi(nb + 2, f'v_cvt_pk_bf16_f32 {t1}, {ca[0]}, {ca[0]}\nv_and_b32 {t1}, 0xffff0000, {t1}\nv_sub_f32 {ca[0]}, {ca[0]}, {t1}\nv_cvt_pk_bf16_f32 {ca[0]}, {t1}, {ca[0]}')
            valu.append((max(nb + 2, last_op[u]), 'corr', Ins(f'v_mfma_f32_32x32x16_bf16 {a}, {ca}, {cB}, {a}')))
            st = []
            for txt in ('v_mul_f32 {t}, {a}, {a}', 'v_fma_f32 {t}, {t}, {c3}, {c1}', 'v_mul_f32 {t}, {t}, {a}', 'v_exp_f32 {t}, {t}', 'v_mul_f32 {b}, {a}, {b}', 'v_fma_f32 {t}, {t}, {iv}, {iv}', 'v_rcp_f32 {t}, {t}', 'v_mul_f32 {b}, {b}, {t}'):
                st.append([txt.format(t=tt[v], a=a[v], b=a[8+v], c1=c1, c3=c3, iv=iv) for v in range(8)])
            seq = st[0] + st[1] + st[2]
            for v in range(8): seq += [st[3][v], st[4][v]]
            seq += [st[5][0]]
            for v in range(8):
                if v < 7: seq.append(st[5][v+1])
                seq.append(st[6][v])
            seq += st[7] + [f'v_cvt_pk_bf16_f32 {out[d]}, {a[8+2*d]}, {a[9+2*d]}' for d in range(4)]
            for ln in seq: q(0, ln)
            L = Asm()
            if u == 4: L(f's_add_u32 {sGst}, {sGst}, 4096')
            self.store2(L, 'dwordx4', out, self.vL16, sGst, (u & 3)*1024, f'gst{u}')
            valu.append((0, L.L))
            if u in pubs: valu.append((0, 'pub', u))
            if u == 1:
                for d in range(8): qi(0, f'v_lshlrev_b32 {accK[2*d]}, 16, {res[d]}\nv_and_b32 {accK[2*d+1]}, 0xffff0000, {res[d]}')
                valu.append((0, 'mark', 'acc4'))
        gl_at = {}
        for i in range(43):
            n = max(first4 + 2*(i - o['GLA']), 0)
            gl_at.setdefault(n, []).append(i)
        stage_first = {0: 1, 15: 2, 29: 3, 36: 4}
        poll_at = {}
        for n, l in gl_at.items():
            for i in l:
                if i in stage_first: poll_at[n - o['poll_lead']] = stage_first[i]
        timed = []
        marks = set(); pubdone = {}
        last_dma = -99; hold = 0
        freed = set()
        for n in range(N):
            p = ops[n]
            if n == first4:
                assert 'acc4' in marks, 'phase-4 accumulators not ready'
                self.stamp('p3 mfma done')
            if o.get('fine') and n % o['fine'] == 0 and n: self.stamp(f'op {n}')
            A.L.append(mfma(p))
            budget = o.get('bud', 6) if p['k'] == 'm' else 2
            sal, dsr, vme, val = [], [], [], []
            if (n + 1) % BI == 0 and n + 1 < N:
                for c in add_done:
                    if add_done[c] == n + 1: sal.append(Ins(f'@waitlg add{c}'))
                sal += bar_code(n + 1).L
                for k, lu in last_use.items():
                    if lu <= n and k not in freed and k in self.loc:
                        freed.add(k); self.free_blocks.append(self.loc[k])
                if 'res' not in freed:
                    freed.add('res'); self.free_blocks += [self.resb, self.resb + 1]
                budget -= 1
            elif n % 2 == 0 and n + 2 < N: sal.append(Ins(f'@waitlg r{n+2}'))
            if n + LA < N:
                r = reads(ops[n + LA]); dsr += r; budget -= len(r)
            for txt, tag in self.cs_sched.get(n, []):
                L = Asm(); L(txt, tag); dsr += L.L; budget -= 6
            if n in poll_at:
                vme.append(Ins(f'buffer_load_dword {self.vPv}, {pa3}, {self.WS}, {s["FL"]} offen sc1')); budget -= 1
            for i in gl_at.get(n, []):
                if i in stage_first:
                    assert pubdone.get(stage_first[i], 1 << 30) <= n, f'stage {stage_first[i]} waited before own publication (op {n}) {pubdone} first4={first4}'
                    k = self.nlabel; self.nlabel += 1
                    L = Asm(); L(f'v_cmp_gt_u32 vcc, {stage_first[i]}, {self.vPv}\ns_nop 0\ns_cbranch_vccnz L_late{k}\nL_back{k}:'); vme += L.L
                    self.tail(f'L_late{k}:'); self.poll_block(self.tail, pa3, stage_first[i]); self.tail(f's_branch L_back{k}')
                    budget -= 5
                sel, u = self.p4_unit(i)
                vme += [Ins(f's_add_u32 {s["T0"]}, {sGld[sel]}, {u*1024}'), Ins(f'buffer_load_dwordx4 {GB[i % NG]}, {self.vL16}, {self.WS}, {s["T0"]} offen sc1')]
                budget -= 2
            if n - last_dma >= o['dma_gap'] and n >= o.get('dma_from', 0):
                gq = self.dma_next()
                if gq:
                    last_dma = n; vme += gq[0]; budget -= len(gq[0]) - (0 if sal else 1)
            for (tn, code) in [x for x in timed if x[0] == n]:
                vme += code; budget -= 7
            post = []
            while valu and budget > 0 and valu[0][0] <= n and n >= hold:
                it = valu.pop(0)
                if it[1] == 'corr':
                    post.append(it[2]); hold = n + 2; break
                if it[1] == 'pub':
                    u = it[2]; tn = min(n + o['pub_delay'], N - 1)
                    timed.append((tn, [Ins(f'@waitvm gst{u}')] + self.signal(2, pubs[u]))); pubdone[pubs[u]] = tn
                    continue
                if it[1] == 'mark': marks.add(it[2]); continue
                val += it[1]
                budget -= sum(2 if (x.is_trans() or x.mn.startswith('v_permlane')) else 1 for x in it[1] if x.kind != 'pseudo')
            A.ext(sal); A.ext(dsr); A.ext(vme); A.ext(val); A.ext(post)
        assert not valu and not self.stream, (len(valu), len(self.stream))
        self.info = dict(N=N, first4=first4, forced=self.forced, pubdone=pubdone, gl_first={stage_first[i]: n for n, l in gl_at.items() for i in l if i in stage_first})
        self.stamp('p4 mfma done')
        fb = sorted(self.free_blocks)
        xb = next(b for b in fb if all(b + k in fb for k in range(4)))
        A(f's_lshl_b32 {s["T0"]}, {s["W"]}, 12\ns_add_u32 {s["T0"]}, {s["T0"]}, {xb*BLK}\nv_add_u32 {t1}, {s["T0"]}, {self.vL16}')
        A(f's_xor_b32 {s["T1"]}, {s["W"]}, 2\ns_lshl_b32 {s["T1"]}, {s["T1"]}, 12\ns_add_u32 {s["T1"]}, {s["T1"]}, {xb*BLK}\nv_add_u32 {t2}, {s["T1"]}, {self.vL16}')
        A(f'v_and_b32 {t3}, 31, {vL}\nv_lshlrev_b32 {t3}, 10, {t3}\nv_lshrrev_b32 {c1}, 5, {vL}\nv_lshl_add_u32 {t3}, {c1}, 5, {t3}')
        A(f's_lshl_b32 {s["T0"]}, {s["G"]}, 2\ns_add_u32 {s["T0"]}, {s["T0"]}, {sT4}\ns_lshl_b32 {s["T0"]}, {s["T0"]}, 15\ns_add_u32 {s["T0"]}, {s["T0"]}, {self.sC128}\ns_lshr_b32 {s["T1"]}, {s["W"]}, 1\ns_lshl_b32 {s["T1"]}, {s["T1"]}, 6\ns_add_u32 {s["T0"]}, {s["T0"]}, {s["T1"]}')
        for k in range(4): A(f'ds_write_b128 {t1}, {accS.sub(4*k, 4)} offset:{k*1024}')
        A('@waitlg0\ns_barrier')
        rx = acc[2]
        for k in range(4): A(f'ds_read_b128 {rx.sub(4*k, 4)}, {t2} offset:{k*1024}')
        for h in range(2):
            for d in range(4*h, 4*h + 4): A(f'v_pk_add_f32 {accK.sub(2*d, 2)}, {accK.sub(2*d, 2)}, {rx.sub(2*d, 2)}')
            for d in range(4): A(f'v_cvt_pk_bf16_f32 {go[h][d]}, {accK[8*h + 2*d]}, {accK[8*h + 2*d + 1]}')
            A(f'buffer_store_dwordx4 {go[h]}, {t3}, {self.OUT}, {s["T0"]} offen offset:{16*h}')
        self.stamp('out stored')

    def finish(self):
        A, s = self.A, self.s
        if self.o['stamps']:
            A('@waitvm0')
            self.stamp('end')
            A(f'v_writelane_b32 {self.vstamp}, s100, 63')
            A(f's_lshl_b32 {s["T0"]}, s2, 10\ns_lshl_b32 {s["T1"]}, {s["W"]}, 8\ns_add_u32 {s["T0"]}, {s["T0"]}, {s["T1"]}\ns_add_u32 {s["T0"]}, {s["T0"]}, {WS_TS}')
            A(f'v_lshlrev_b32 v253, 2, {self.vL}\nbuffer_store_dword {self.vstamp}, v253, {self.WS}, {s["T0"]} offen')
        A('s_endpgm')

    def build(self):
        self.prologue(); self.phase1()
        self.phase2(); self.phase34()
        self.finish()
        L = resolve_waits(self.A.L)
        L, nn = pad_hazards(L)
        T = [x for x in self.tail.L if x.kind != 'pseudo']
        body = '\n'.join(('' if x.kind == 'label' else '    ') + x.text for x in L + T)
        hdr = open('cdna_kernels/' + NAME + '.s.ref').read().split('; Override launch')[0]
        txt = hdr + f'; @launch grid=(256,1,1) block=(256,1,1) lds=163840\n.amdgcn_target "amdgcn-amd-amdhsa--gfx950"\n.text\n.globl {NAME}_kernel\n.p2align 8\n.type {NAME}_kernel,@function\n{NAME}_kernel:\n'
        txt += body + '\n    s_endpgm\nL_code_end:\n'
        txt += f'.section .rodata,"a"\n.p2align 6\n.amdhsa_kernel {NAME}_kernel\n  .amdhsa_next_free_vgpr 512\n  .amdhsa_next_free_sgpr 102\n  .amdhsa_accum_offset 256\n  .amdhsa_group_segment_fixed_size 0\n  .amdhsa_kernarg_size 80\n  .amdhsa_user_sgpr_count 2\n  .amdhsa_user_sgpr_kernarg_segment_ptr 1\n  .amdhsa_system_sgpr_workgroup_id_x 1\n  .amdhsa_float_denorm_mode_32 3\n.end_amdhsa_kernel\n'
        self.info.update(ninstr=len(L), nops=nn, vmax=self.V.hi, amax=self.AG.hi, smax=self.S.hi)
        return txt

if __name__ == '__main__':
    import json
    kw = json.loads(sys.argv[2]) if len(sys.argv) > 2 else {}
    G = Gen(**kw); txt = G.build()
    open(sys.argv[1], 'w').write(txt)
    print(G.info)
```

```python
import sys, math, struct
from asmlib import *

NAME = 'sequential_preLN__sliding_local_dilated__geglu_ffn__prompt'
KB = 1024
WS_O, WS_H, WS_ST, WS_FL, WS_G, WS_TS = 0, 2 << 20, 4 << 20, (4 << 20) + (256 << 10), 5 << 20, 16 << 20
WS_SIZE = 17 << 20
FL_SLOW = 64 << 10
PITCH3 = 2752
BLK = 4096
L_HALO = 0
L_X = 4 * BLK
L_W = 10 * BLK
L_SCR = 39 * BLK
SCR_TB = L_SCR
SCR_HP = L_SCR + 1280
SCR_MODE = L_SCR + 1792
SCR_CS = L_SCR + 2048
def f2u(x): return struct.unpack('<I', struct.pack('<f', x))[0]
def fhex(x): return hex(f2u(x))
LOG2E = 1.4426950408889634

DEF = dict(stamps=False, order='pair', BI=8, LA=6, dma_gap=2, GLA=10, b_epi=6, b_post1=4, b_o=6, b_post2=0, stop=None,
           pub_delay=10, poll_lead=8, cs_early=False, force_slow=False)

class Gen:
    def __init__(self, **kw):
        self.o = dict(DEF); self.o.update(kw)
        self.A = Asm(); self.tail = Asm()
        self.V = RegAlloc('v', 1, 254); self.AG = RegAlloc('a', 0, 256); self.S = RegAlloc('s', 60, 100)
        self.nstamp = 0; self.stamp_names = []
        self.nlabel = 0
        self.free_blocks = list(range(28, 39))
        self.stream = []
        self.loc = {}
        self.issued = []

    def stamp(self, name, A=None):
        if not self.o['stamps'] or (self.o['stamps'] == 'min' and name != 'end'): return
        A = A if A is not None else self.A
        r = self.sstamp.sub(2 * (self.nstamp % 2), 2)
        A(f'@raw 1\ns_memtime {r}\ns_waitcnt lgkmcnt(0)\nv_writelane_b32 {self.vstamp}, {r[0]}, {self.nstamp}\n@raw 0\n@drained_lg')
        self.stamp_names.append(name); self.nstamp += 1

    def prologue(self):
        A, V, S = self.A, self.V, self.S
        s = self.s = {}
        for n in 'W C M SB G BLK W1K T0 T1 T2 T3 FL PF'.split(): s[n] = S.alloc()
        self.sstamp = S.alloc(4, 2); self.vstamp = V.alloc()
        self.X, self.WQ, self.WO, self.W3, self.WD, self.OUT, self.WS, self.WSF, self.WSS = [f's[{24+4*i}:{27+4*i}]' for i in range(9)]
        if self.o.get('pad_to'): A('@raw 1\ns_memrealtime s[100:101]\n@raw 0')
        A('s_load_dwordx16 s[4:19], s[0:1], 0\ns_load_dwordx4 s[20:23], s[0:1], 64')
        A('s_cmp_lt_u32 s2, 256\ns_cbranch_scc1 L_go\ns_endpgm\nL_go:')
        vL = self.vL = V.alloc(); t0 = V.alloc(2); t1 = V.alloc()
        A(f's_getpc_b64 s[24:25]\nL_pc:')
        A(f'v_and_b32 {vL}, 63, v0\nv_lshrrev_b32 {t1}, 6, v0')
        A(f's_lshr_b32 {s["T0"]}, s2, 3')
        A(f'v_readfirstlane_b32 {s["W"]}, {t1}')
        A(f'v_lshl_add_u32 {t1}, {s["T0"]}, 2, {t1}\nv_lshl_add_u32 {t1}, {t1}, 2, {vL}\nv_lshlrev_b32 {t1}, 7, {t1}')
        A(f'v_min_u32 {t1}, L_code_end-L_pc-4, {t1}')
        A(f'v_mov_b32 {t0[1]}, s25\nv_add_co_u32 {t0[0]}, vcc, s24, {t1}\nv_addc_co_u32 {t0[1]}, vcc, 0, {t0[1]}, vcc')
        A(f's_mov_b64 exec, 15\nglobal_load_dword v255, {t0}, off\ns_mov_b64 exec, -1')
        if self.o['stamps']:
            A(f'v_mov_b32 {self.vstamp}, 0')
            A(f'@raw 1\ns_memtime s[100:101]\n@raw 0')
        A(f's_and_b32 {s["M"]}, {s["T0"]}, 15\ns_and_b32 {s["C"]}, {s["T0"]}, 7\ns_lshr_b32 {s["SB"]}, {s["M"]}, 3')
        A(f's_and_b32 {s["T1"]}, s2, 7\ns_lshr_b32 {s["T0"]}, {s["T0"]}, 4\ns_lshl_b32 {s["G"]}, {s["T1"]}, 1\ns_add_u32 {s["G"]}, {s["G"]}, {s["T0"]}')
        A(f's_lshl_b32 {s["BLK"]}, {s["G"]}, 1\ns_add_u32 {s["BLK"]}, {s["BLK"]}, {s["SB"]}\ns_lshl_b32 {s["W1K"]}, {s["W"]}, 10')
        A(f'v_mov_b32 v254, {SCR_MODE + 16}')
        t0.free()
        e = V.alloc(); ch = V.alloc(); t2 = V.alloc()
        A(f'v_lshrrev_b32 {e}, 3, {vL}\nv_and_b32 {ch}, 7, {vL}')
        self.vHa = V.alloc(); self.vHb = V.alloc(); self.vXa = V.alloc(); self.vXb = V.alloc(); self.vW1 = V.alloc(); self.vW2 = V.alloc()
        A(f'v_lshrrev_b32 {t1}, 4, {vL}\nv_xor_b32 {t1}, {t1}, {ch}\nv_lshlrev_b32 {t1}, 4, {t1}')
        A(f's_lshl_b32 {s["T0"]}, {s["BLK"]}, 6\ns_sub_u32 {s["T1"]}, {s["T0"]}, 16')
        A(f'v_add_u32 {t2}, {s["T1"]}, {e}\nv_max_i32 {self.vHa}, 2, {t2}\nv_lshl_add_u32 {self.vHa}, {self.vHa}, 10, {t1}')
        A(f'v_add_u32 {t2}, 7, {t2}\nv_max_i32 {self.vHb}, 2, {t2}\nv_lshl_add_u32 {self.vHb}, {self.vHb}, 10, {t1}\nv_xor_b32 {self.vHb}, 64, {self.vHb}')
        A(f's_lshl_b32 {s["T1"]}, {s["W"]}, 4\ns_add_u32 {s["T1"]}, {s["T1"]}, {s["T0"]}')
        A(f'v_add_u32 {t2}, {s["T1"]}, {e}\nv_lshl_add_u32 {self.vXa}, {t2}, 10, {t1}\nv_add_u32 {self.vXb}, {7*1024}, {self.vXa}\nv_xor_b32 {self.vXb}, 64, {self.vXb}')
        A(f's_and_b32 {s["T1"]}, {s["W"]}, 1\ns_lshl_b32 {s["T1"]}, {s["T1"]}, 2')
        A(f'v_lshrrev_b32 {t1}, 3, {vL}\nv_and_b32 {t1}, 2, {t1}\nv_or_b32 {t1}, {s["T1"]}, {t1}\nv_xor_b32 {t1}, {t1}, {ch}\nv_lshlrev_b32 {t1}, 4, {t1}')
        A(f's_lshl_b32 {s["T1"]}, {s["W"]}, 3\nv_add_u32 {t2}, {s["T1"]}, {e}')
        A(f'v_lshl_add_u32 {self.vW2}, {t2}, 10, {t1}\nv_mul_u32_u24 {t2}, 3072, {t2}\nv_add_u32 {self.vW1}, {t2}, {t1}')
        fz = V.alloc(); ww = V.alloc()
        A(f'v_and_b32 {ww}, 3, {vL}')
        A(f's_lshl_b32 {s["T1"]}, {s["SB"]}, 7\ns_lshl_b32 {s["T2"]}, {s["C"]}, 4\ns_add_u32 {s["T1"]}, {s["T1"]}, {s["T2"]}')
        A(f'v_lshl_add_u32 {fz}, {ww}, 2, {s["T1"]}')
        A(f's_lshl_b32 {s["T1"]}, {s["SB"]}, 8\ns_lshl_b32 {s["T2"]}, {s["C"]}, 3\ns_add_u32 {s["T1"]}, {s["T1"]}, {s["T2"]}\ns_add_u32 {s["T1"]}, {s["T1"]}, 256')
        A(f'v_lshrrev_b32 {t1}, 1, {ww}\nv_lshl_add_u32 {t1}, {t1}, 7, {s["T1"]}\nv_and_b32 {t2}, 1, {ww}\nv_lshl_add_u32 {t1}, {t2}, 2, {t1}')
        A(f'v_cmp_lt_u32 vcc, 3, {vL}\nv_cndmask_b32 {fz}, {fz}, {t1}, vcc')
        A(f's_lshl_b32 {s["T1"]}, {s["M"]}, 2\ns_add_u32 {s["T1"]}, {s["T1"]}, 768\nv_lshl_add_u32 {t1}, {ww}, 7, {s["T1"]}')
        A(f'v_cmp_lt_u32 vcc, 7, {vL}\nv_cndmask_b32 {fz}, {fz}, {t1}, vcc')
        self.vFz = fz
        A(f's_lshl_b32 {s["FL"]}, {s["G"]}, 11\ns_add_u32 {s["FL"]}, {s["FL"]}, {WS_FL}\ns_add_u32 {s["T3"]}, {s["FL"]}, {FL_SLOW}')
        A(f'v_mov_b32 {t2}, 0')
        A('@waitlg0')
        def srd(b, lo, size):
            A(f's_mov_b32 s{b}, s{lo}\ns_mov_b32 s{b+1}, s{lo+1}\ns_mov_b32 s{b+2}, {size}\ns_mov_b32 s{b+3}, 0x20000')
        srd(48, 22, WS_SIZE)
        srd(24, 4, 2048*1024)
        A(f's_lshl_b32 {s["T1"]}, 0x111, {s["W"]}\ns_mov_b32 exec_lo, {s["T1"]}\ns_mov_b32 exec_hi, 0')
        A(f'buffer_store_dword {t2}, {fz}, {self.WS}, {s["FL"]} offen', tag='fz')
        A('s_mov_b64 exec, -1')
        srd(28, 6, 512*3072)
        for r in (e, ch, t1, t2, ww): r.free()

    def p1_chunk_dma(self, i):
        s = self.s; sl = i % 3; g = []
        kc, so = self.sKC, self.sSO
        tag = f'ch{i}'
        g.append([Ins(f's_add_u32 {kc}, {s["C"]}, {i}'), Ins(f's_and_b32 {kc}, {kc}, 7')])
        g.append([Ins(f's_lshl_b32 {so}, {kc}, 7'), Ins(f's_add_u32 m0, {self.sW2K}, {L_X + sl*8192}')])
        g.append([Ins(f's_mul_i32 {kc}, {kc}, {64*3072}'), Ins(f'buffer_load_dwordx4 {self.vXa}, {self.X}, {so} offen lds', tag)])
        g.append([Ins(f's_add_u32 {kc}, {kc}, {self.sC128}'), Ins(f'buffer_load_dwordx4 {self.vXb}, {self.X}, {so} offen offset:1024 lds', tag)])
        for st in range(2):
            g.append([Ins(f's_add_u32 m0, {self.sW3K}, {L_W + sl*24576 + st*12288}')])
            for p in range(3):
                g.append([Ins(f'buffer_load_dwordx4 {self.vW1}, {self.WQ}, {kc} offen offset:{p*1024} lds', tag)])
            if st == 0: g.append([Ins(f's_add_u32 {kc}, {kc}, {32*3072}')])
        return g

    def p1_reads(self, i, st, buf):
        sl = i % 3; r = []
        W, X, O = buf
        r.append(Ins(f'ds_read_b128 {O}, {self.aXo[st]} offset:{sl*8192}'))
        for p in range(3):
            for a in range(2):
                r.append(Ins(f'ds_read_b64_tr_b16 {W[p].sub(2*a, 2)}, {self.aW1} offset:{sl*24576 + st*12288 + p*1024 + a*512}'))
            if p == 0:
                r.append(Ins(f'ds_read_b128 {X[0]}, {self.aX[st]} offset:{L_HALO + i*2048}'))
                for t in range(1, 5):
                    r.append(Ins(f'ds_read_b128 {X[t]}, {self.aX[st]} offset:{L_X + sl*8192 + (t-1)*2048}'))
        return r

    def p1_mfmas(self, buf, first):
        W, X, O = buf
        m = []
        c = lambda acc: '0' if first else str(acc)
        m.append(Ins(f'v_mfma_f32_16x16x32_bf16 {self.stG}, {O}, {O}, {c(self.stG)}'))
        m.append(Ins(f'v_mfma_f32_16x16x32_bf16 {self.stS}, {self.ones}, {O}, {c(self.stS)}'))
        for p, acc in enumerate((self.aQ, self.aK, self.aV)):
            for t in range(5):
                if p < 2: m.append(Ins(f'v_mfma_f32_16x16x32_bf16 {acc[t]}, {W[p]}, {X[t]}, {c(acc[t])}'))
                else: m.append(Ins(f'v_mfma_f32_16x16x32_bf16 {acc[t]}, {X[t]}, {W[p]}, {c(acc[t])}'))
        return m

    def stats_code(self, sq, sm, out4):
        L = []
        a = lambda t: L.append(Ins(t))
        a(f'v_mul_f32 {sm}, {fhex(-1/512)}, {sm}')
        a(f'v_fma_f32 {sq}, {sq}, {self.sInv512}, {self.vEps}')
        a(f'v_cvt_pk_bf16_f32 {out4[1]}, {sm}, {sm}')
        a(f'v_fma_f32 {sq}, -{sm}, {sm}, {sq}')
        a(f'v_and_b32 {out4[0]}, 0xffff0000, {out4[1]}')
        a(f'v_max_f32 {sq}, {sq}, {self.vEps}')
        a(f'v_rsq_f32 {out4[2]}, {sq}')
        a(f'v_mul_f32 {out4[3]}, {fhex(0.25*LOG2E)}, {out4[2]}')
        return L

    def diag_code(self, G4, dst):
        return [Ins(f'v_cndmask_b32 {G4[0]}, {G4[0]}, {G4[1]}, {self.mB0}'), Ins(f'v_cndmask_b32 {G4[2]}, {G4[2]}, {G4[3]}, {self.mB0}'),
                Ins(f'v_cndmask_b32 {dst}, {G4[0]}, {G4[2]}, {self.mB1}')]

    def weave16(self, mf, groups):
        A = self.A; groups = list(groups)
        for m in mf:
            A.L.append(m)
            if groups: A.ext(groups.pop(0))
        for g in groups: A.ext(g)

    def phase1(self):
        A, V, S, AG, s, vL = self.A, self.V, self.S, self.AG, self.s, self.vL
        self.sKC = S.alloc(); self.sSO = S.alloc(); self.sW2K = S.alloc(); self.sW3K = S.alloc(); self.sC128 = S.alloc(); self.sInv512 = S.alloc()
        A(f's_lshl_b32 {self.sW2K}, {s["W"]}, 11\ns_mul_i32 {self.sW3K}, {s["W"]}, 3072\ns_lshl_b32 {self.sC128}, {s["C"]}, 7')
        for q in range(2):
            A(f's_lshl_b32 {s["T0"]}, {s["W"]}, 1\ns_add_u32 {s["T0"]}, {s["T0"]}, {s["C"]}\ns_add_u32 {s["T0"]}, {s["T0"]}, {q}\ns_and_b32 {s["T0"]}, {s["T0"]}, 7\ns_lshl_b32 {s["T0"]}, {s["T0"]}, 7')
            A(f's_lshl_b32 {s["T1"]}, {s["W"]}, 12\ns_add_u32 m0, {s["T1"]}, {L_HALO + q*2048}')
            A(f's_mov_b32 exec_lo, 0xffffff00')
            A(f'buffer_load_dwordx4 {self.vHa}, {self.X}, {s["T0"]} offen lds', tag='halo')
            A(f's_mov_b32 exec_lo, -1')
            A(f'buffer_load_dwordx4 {self.vHb}, {self.X}, {s["T0"]} offen offset:1024 lds', tag='halo')
        for i in range(2):
            for g in self.p1_chunk_dma(i): A.ext(g)
        self.vHa.free(); self.vHb.free()
        def srd(b, lo, size):
            A(f's_mov_b32 s{b}, s{lo}\ns_mov_b32 s{b+1}, s{lo+1}\ns_mov_b32 s{b+2}, {size}\ns_mov_b32 s{b+3}, 0x20000')
        srd(32, 8, 512*1024); srd(40, 16, 1376*1024); srd(44, 18, 2048*1024); srd(52, 22, 0); srd(56, 22, 0)
        A(f's_cmp_lt_u32 {s["W"]}, 2\ns_cselect_b32 s36, s12, s14\ns_cselect_b32 s37, s13, s15\ns_mov_b32 s39, 0x20000')
        A(f's_cmp_lt_u32 {s["M"]}, 15\ns_cselect_b32 s38, {512*PITCH3}, 0')
        S.free |= set(range(4, 20))
        A(f's_mov_b32 {self.sInv512}, {fhex(1/512)}')
        self.vEps = V.alloc(); A(f'v_mov_b32 {self.vEps}, {fhex(1e-5)}')
        j = self.vJ = V.alloc(); g = self.vG = V.alloc(); t1 = V.alloc(); t2 = V.alloc(); t3 = V.alloc()
        A(f'v_and_b32 {j}, 15, {vL}\nv_lshrrev_b32 {g}, 4, {vL}')
        self.aX = [V.alloc(), V.alloc()]; self.aXo = [V.alloc(), V.alloc()]; self.aW1 = V.alloc()
        A(f'v_lshrrev_b32 {t1}, 1, {j}\nv_xor_b32 {t1}, {t1}, {g}\nv_lshlrev_b32 {t1}, 4, {t1}\nv_lshl_add_u32 {self.aX[0]}, {j}, 7, {t1}\nv_xor_b32 {self.aX[1]}, 64, {self.aX[0]}')
        A(f's_add_u32 {s["T0"]}, {self.sW2K}, {L_X}\nv_add_u32 {self.aXo[0]}, {s["T0"]}, {self.aX[0]}\nv_add_u32 {self.aXo[1]}, {s["T0"]}, {self.aX[1]}')
        self.vTRf = V.alloc(); self.vTRb = V.alloc()
        A(f'v_bfe_u32 {t1}, {vL}, 3, 2\nv_lshlrev_b32 {self.vTRf}, 5, {t1}')
        A(f'v_bfe_u32 {t1}, {vL}, 2, 2\nv_and_b32 {t2}, 3, {vL}\nv_lshlrev_b32 {t2}, 3, {t2}\nv_lshl_add_u32 {self.vTRb}, {t1}, 7, {t2}')
        A(f's_lshl_b32 {s["T0"]}, {s["W"]}, 5\nv_xor_b32 {t1}, {s["T0"]}, {self.vTRf}\nv_mul_u32_u24 {t2}, 3072, {g}\nv_add3_u32 {self.aW1}, {t1}, {t2}, {self.vTRb}\nv_add_u32 {self.aW1}, {L_W}, {self.aW1}')
        self.mB0 = S.alloc(2); self.mB1 = S.alloc(2); self.mDiag = S.alloc(2); self.mOwnA = S.alloc(2); self.mOwnB = S.alloc(2)
        A(f's_mov_b32 {self.mB0[0]}, 0xaaaaaaaa\ns_mov_b32 {self.mB0[1]}, 0xaaaaaaaa\ns_mov_b32 {self.mB1[0]}, 0xcccccccc\ns_mov_b32 {self.mB1[1]}, 0xcccccccc')
        A(f's_mov_b32 {self.mDiag[0]}, 0x00f0000f\ns_mov_b32 {self.mDiag[1]}, 0xf0000f00')
        def lanemask(fn):
            v = sum(1 << l for l in range(64) if fn(l & 15, l >> 4)); return v & 0xffffffff, v >> 32
        oa = lanemask(lambda jj, gg: 4*gg + (jj & 1) <= jj); ob = lanemask(lambda jj, gg: 4*gg + 2 + (jj & 1) <= jj)
        A(f's_mov_b32 {self.mOwnA[0]}, {hex(oa[0])}\ns_mov_b32 {self.mOwnA[1]}, {hex(oa[1])}\ns_mov_b32 {self.mOwnB[0]}, {hex(ob[0])}\ns_mov_b32 {self.mOwnB[1]}, {hex(ob[1])}')
        self.ones = V.alloc(4, 2)
        for k in range(4): A(f'v_mov_b32 {self.ones[k]}, 0x3f803f80')
        A(f's_lshl_b32 {s["T0"]}, {s["W"]}, 12\nv_lshrrev_b32 {t1}, 3, {vL}\nv_lshlrev_b32 {t1}, 11, {t1}\nv_and_b32 {t2}, 7, {vL}\nv_lshl_add_u32 {t1}, {t2}, 4, {t1}\nv_add_u32 {t1}, {s["T0"]}, {t1}')
        A(f's_mov_b64 exec, 0xffff\nds_write_b128 {t1}, {self.ones} offset:{L_HALO}\ns_mov_b64 exec, -1')
        A(f'v_mov_b32 {t2}, 0\nv_lshlrev_b32 {t1}, 2, v0\nv_add_u32 {t1}, {SCR_CS}, {t1}\nds_write_b32 {t1}, {t2}')
        A('@waitlg0\n@waitvm fz\ns_barrier')
        A(f's_getreg_b32 {s["T0"]}, hwreg(HW_REG_XCC_ID, 0, 4)\ns_mul_i32 {s["T1"]}, {s["T0"]}, {s["T0"]}\ns_lshl_b32 {s["T1"]}, {s["T1"]}, 13\ns_lshl_b32 {s["T0"]}, {s["T0"]}, 5')
        self.sCen = S.alloc(); self.sCoff = S.alloc(); self.sCv = S.alloc()
        A(f's_add_u32 {self.sCen}, {s["T0"]}, {s["T1"]}\ns_add_u32 {self.sCen}, {self.sCen}, 1\ns_lshl_b32 {self.sCoff}, {s["G"]}, 4')
        A(f's_cmp_lg_u32 {s["W"]}, 0\ns_cbranch_scc1 L_nocen\n@raw 1\ns_atomic_add {self.sCen}, s[20:21], {self.sCoff}\n@raw 0\nL_nocen:')
        if self.o['stamps'] is not True: A('@minlg 1')
        self.stamp('census')
        self.aQ = [V.alloc(4, 2) for _ in range(5)]; self.aK = [V.alloc(4, 2) for _ in range(5)]; self.aV = [V.alloc(4, 2) for _ in range(5)]
        self.stG = V.alloc(4, 2); self.stS = V.alloc(4, 2)
        bufs = [([AG.alloc(4, 4) for _ in range(3)], [AG.alloc(4, 4) for _ in range(5)], AG.alloc(4, 4)) for _ in range(2)]
        hb = bufs[1][1]
        A(f's_lshl_b32 {s["T0"]}, {s["W"]}, 12\nv_add_u32 {t1}, {s["T0"]}, {self.aX[0]}\nv_add_u32 {t2}, {s["T0"]}, {self.aX[1]}')
        A('@waitvm halo')
        self.stamp('halo landed')
        for q in range(4): A(f'ds_read_b128 {hb[q]}, {(t1, t2)[q & 1]} offset:{L_HALO + (q >> 1)*2048}')
        for gq in self.p1_chunk_dma(2): A.ext(gq)
        for q in range(4):
            A(f'v_mfma_f32_16x16x32_bf16 {self.stG}, {hb[q]}, {hb[q]}, {self.stG if q else 0}')
            A(f'v_mfma_f32_16x16x32_bf16 {self.stS}, {self.ones}, {hb[q]}, {self.stS if q else 0}')
        A(f's_lshl_b32 {s["T0"]}, {s["W"]}, 3\ns_add_u32 {s["T0"]}, {s["T0"]}, {SCR_HP}\nv_lshl_add_u32 {t3}, {j}, 5, {s["T0"]}')
        A.ext(self.diag_code(self.stG, self.stS[1]))
        A(f's_mov_b64 exec, {self.mDiag}\nds_write_b64 {t3}, {self.stS.sub(0, 2)}\ns_mov_b64 exec, -1')
        ra = [V.alloc() for _ in range(4)]
        self.resx = V.alloc(8, 2)
        A(f'v_lshrrev_b32 {t1}, 1, {j}\nv_lshrrev_b32 {t2}, 1, {g}\nv_xor_b32 {t1}, {t1}, {t2}\nv_lshlrev_b32 {t1}, 4, {t1}\nv_and_b32 {t2}, 1, {g}\nv_lshl_add_u32 {t1}, {t2}, 3, {t1}')
        A(f'v_lshl_add_u32 {t1}, {j}, 7, {t1}\ns_add_u32 {s["T0"]}, {self.sW2K}, {L_X}\nv_add_u32 {ra[0]}, {s["T0"]}, {t1}')
        for ct in range(1, 4): A(f'v_xor_b32 {ra[ct]}, {ct*32}, {ra[0]}')
        aTB = self.aTB = V.alloc()
        A(f'v_lshlrev_b32 {aTB}, 4, {j}\nv_add_u32 {aTB}, {SCR_TB}, {aTB}\nv_lshlrev_b32 {t3}, 5, {j}\nv_add_u32 {t3}, {SCR_HP}, {t3}')
        A('@waitlg0\n@waitvm ch0\ns_barrier')
        self.stamp('chunk0 visible')
        A.ext(self.p1_reads(0, 0, bufs[0]))
        hp = V.alloc(8, 2); tb4 = V.alloc(4, 2)
        A(f'ds_read_b128 {hp.sub(0, 4)}, {t3}\nds_read_b128 {hp.sub(4, 4)}, {t3} offset:16')
        for ct in range(4): A(f'ds_read_b64 {self.resx.sub(2*ct, 2)}, {ra[ct]}')
        A(f'v_pk_add_f32 {hp.sub(0, 2)}, {hp.sub(0, 2)}, {hp.sub(2, 2)}\nv_pk_add_f32 {hp.sub(4, 2)}, {hp.sub(4, 2)}, {hp.sub(6, 2)}\nv_pk_add_f32 {hp.sub(0, 2)}, {hp.sub(0, 2)}, {hp.sub(4, 2)}')
        A.ext(self.stats_code(hp[1], hp[0], tb4))
        A(f'ds_write_b128 {aTB}, {tb4}')
        for r in ra: r.free()
        hp.free()
        self.build_stream()
        pend = []
        for n in range(16):
            i, st = n >> 1, n & 1
            A('@waitlg0')
            if self.o.get('fine') and st == 0: self.stamp(f'p1 chunk {i}')
            if st == 1:
                if i < 7:
                    A(f'@waitvm ch{i+1}\ns_barrier')
                    if i == 4: A('@minlg 0')
                    if i + 3 < 8: pend += self.p1_chunk_dma(i + 3)
                    if i == 5:
                        self.free_blocks += [23, 24, 25, 26, 27]
                        pend += self.touch1()
                        for _ in range(8): pend += self.dma_next()
                    if i == 6:
                        for _ in range(8): pend += self.dma_next()
                        self.free_blocks += [22, 8, 9] + list(range(10, 16)) + [4, 5]
            mf = self.p1_mfmas(bufs[n & 1], n == 0)
            groups = []
            if n < 15:
                rd = self.p1_reads((n + 1) >> 1, (n + 1) & 1, bufs[(n + 1) & 1])
                for k in range(17):
                    gq = []
                    take = pend and (k >= 12 or k % 3 == 2)
                    d = pend.pop(0) if take else []
                    gq += [x for x in d if x.kind == 'salu']
                    if k < 12: gq.append(rd[k])
                    gq += [x for x in d if x.kind != 'salu']
                    groups.append(gq)
                if n == 10:
                    groups[16] += [Ins(f'v_mov_b32 {t1}, {self.sCoff}'), Ins(f'global_load_dword {t2}, {t1}, s[20:21] sc1')]
            else:
                code = self.diag_code(self.stG, self.stS[1]) + self.stats_code(self.stS[1], self.stS[0], tb4)
                code += [Ins(f's_lshl_b32 {s["T0"]}, {s["W"]}, 8'), Ins(f'v_add_u32 {t3}, {s["T0"]}, {aTB}'), Ins(f's_mov_b64 exec, {self.mDiag}'),
                         Ins(f'ds_write_b128 {t3}, {tb4} offset:256'), Ins('s_mov_b64 exec, -1')]
                groups = [[] for _ in range(5)]
                for k in range(5):
                    if pend: groups[k] = pend.pop(0)
                groups += [code[0:2], code[2:4], code[4:6], code[6:8], code[8:10], code[10:13], code[13:16]]
            self.weave16(mf, groups)
        for gq in pend: A.ext(gq)
        self.stamp('p1 gemm done')
        for b in bufs:
            for r in b[0] + b[1] + [b[2]]: r.free()
        A(f'v_readfirstlane_b32 {self.sCv}, {t2}\n@waitlg0')
        A(f's_and_b32 {s["T0"]}, {self.sCv}, 31\ns_cmp_lt_u32 {s["T0"]}, 16\ns_cbranch_scc1 L_cen_slow\nL_cen_ok:')
        T = self.tail
        T(f'L_cen_slow:\ns_mov_b32 {s["T1"]}, 0x8000\nL_cen_loop:\nglobal_load_dword {t2}, {t1}, s[20:21] sc1\ns_waitcnt vmcnt(0)\nv_readfirstlane_b32 {self.sCv}, {t2}')
        T(f's_sub_u32 {s["T1"]}, {s["T1"]}, 1\ns_cbranch_scc1 L_cen_ok\ns_and_b32 {s["T0"]}, {self.sCv}, 31\ns_cmp_lt_u32 {s["T0"]}, 16\ns_cbranch_scc1 L_cen_loop\ns_branch L_cen_ok')
        A('s_barrier')
        self.free_blocks += list(range(16, 22)) + [6, 7, 0, 1, 2, 3]
        tb = [V.alloc(4, 2) for _ in range(5)]
        for t in range(5): A(f'ds_read_b128 {tb[t]}, {aTB} offset:{t*256}')
        A(f's_lshl_b32 {s["T0"]}, {self.sCen}, 4\ns_cmp_eq_u32 {s["T0"]}, {self.sCv}')
        if self.o['force_slow']: A('s_cmp_eq_u32 0, 1')
        A(f's_cselect_b32 s54, {WS_SIZE}, 0\ns_cselect_b32 s58, 0, {WS_SIZE}\ns_cbranch_scc0 L_slow_init\nL_slow_back:')
        T(f'L_slow_init:\ns_add_u32 {s["FL"]}, {s["FL"]}, {FL_SLOW}\ns_lshl_b32 exec_lo, 0x111, {s["W"]}\ns_mov_b32 exec_hi, 0\nv_mov_b32 {t2}, 0')
        T(f'buffer_store_dword {t2}, {self.vFz}, {self.WS}, {s["FL"]} offen sc1\ns_waitcnt vmcnt(0)\ns_mov_b64 exec, 1\nv_mov_b32 {t2}, 1')
        T(f'global_atomic_add {t1}, {t2}, s[20:21] offset:4 sc1\ns_mov_b64 exec, -1\ns_mov_b32 {s["T1"]}, 0x8000')
        T(f'L_slow_loop:\nglobal_load_dword {t2}, {t1}, s[20:21] offset:4 sc1\ns_waitcnt vmcnt(0)\nv_readfirstlane_b32 {s["T0"]}, {t2}')
        T(f's_sub_u32 {s["T1"]}, {s["T1"]}, 1\ns_cbranch_scc1 L_slow_back\ns_cmp_lt_u32 {s["T0"]}, 64\ns_cbranch_scc1 L_slow_loop\ns_branch L_slow_back')
        for _ in range(self.o['b_epi']):
            for gq in self.dma_next(): A.ext(gq)
        ka = V.alloc(); kb = V.alloc()
        A(f'v_and_b32 {t1}, 1, {j}\nv_lshl_add_u32 {t1}, {g}, 2, {t1}\nv_lshlrev_b32 {t1}, 4, {t1}\nv_add_u32 {t1}, {SCR_TB + 8}, {t1}\nv_add_u32 {t2}, 256, {t1}')
        A(f'v_cndmask_b32 {ka}, {t1}, {t2}, {self.mOwnA}\nv_cndmask_b32 {kb}, {t1}, {t2}, {self.mOwnB}')
        rk = [None] + [V.alloc(2) for _ in range(4)]
        for t in range(1, 5): A(f'ds_read_b32 {rk[t][0]}, {ka} offset:{(t-1)*256}\nds_read_b32 {rk[t][1]}, {kb} offset:{(t-1)*256 + 32}')
        ka.free(); kb.free()
        csq = V.alloc(4, 2); csk = V.alloc(4, 2); csv = V.alloc(2, 2)
        for r in range(4): A(f'v_mov_b32_dpp {csk[r]}, {self.aK[0][r]} row_newbcast:0 row_mask:0xf bank_mask:0xf')
        for r in range(4): A(f'v_mov_b32_dpp {csq[r]}, {self.aQ[0][r]} row_newbcast:0 row_mask:0xf bank_mask:0xf')
        A(f'v_cvt_pk_bf16_f32 {t1}, {self.aV[0][0]}, {self.aV[0][0]}\nv_mov_b32 {csv[0]}, 0\nv_and_b32 {t1}, 0xffff0000, {t1}\nv_mov_b32 {csv[1]}, 0\nv_sub_f32 {t2}, {self.aV[0][0]}, {t1}')
        A(f's_mov_b64 exec, 0xffff\nv_cvt_pk_bf16_f32 {csv[1]}, {t1}, {t2}\ns_mov_b64 exec, -1')
        Kp = V.alloc(10, 2); Qp = V.alloc(10, 2); Vp = V.alloc(10, 2)
        def fix(acc, cs, t, dst):
            for h in range(2):
                A(f'v_pk_fma_f32 {acc[t].sub(2*h, 2)}, {cs.sub(2*h, 2)}, {tb[t].sub(0, 2)}, {acc[t].sub(2*h, 2)} op_sel_hi:[1,0,1]')
            for h in range(2):
                A(f'v_cvt_pk_bf16_f32 {dst[2*t + h]}, {acc[t][2*h]}, {acc[t][2*h+1]}')
        fix(self.aK, csk, 0, Kp)
        for t in range(1, 5):
            fix(self.aK, csk, t, Kp); fix(self.aQ, csq, t, Qp)
        zs = [None] + [V.alloc(2) for _ in range(4)]
        for t in range(1, 5): A(f'v_pk_mul_f32 {zs[t]}, {rk[t]}, {tb[t].sub(2, 2)} op_sel:[0,1] op_sel_hi:[1,1]')
        So, Sp = self.aQ, self.aK
        for t in range(1, 5):
            A(f'v_mfma_f32_16x16x16_bf16 {Sp[t]}, {Kp.sub(2*t-2, 2)}, {Qp.sub(2*t, 2)}, 0')
            A(f'v_mfma_f32_16x16x16_bf16 {So[t]}, {Kp.sub(2*t, 2)}, {Qp.sub(2*t, 2)}, 0')
        z = [None] + [V.alloc(2) for _ in range(4)]
        bias = V.alloc(2); sel = V.alloc(4)
        vm = [Ins(f'v_mfma_f32_16x16x16_bf16 {self.aV[t]}, {tb[t].sub(0, 2)}, {csv}, {self.aV[t]}') for t in range(5)]
        A(f's_cmp_eq_u32 {s["BLK"]}, 0\ns_cselect_b32 {s["T0"]}, {fhex(-1e30)}, 0')
        A.L.append(vm[0])
        A(f'v_mov_b32 {t1}, {s["T0"]}\nv_mov_b32 {t3}, 0x0c0c0c0c')
        A.L.append(vm[1])
        A(f'v_cndmask_b32 {bias[0]}, {t1}, 0, {self.mOwnA}\nv_cndmask_b32 {bias[1]}, {t1}, 0, {self.mOwnB}')
        A.L.append(vm[2])
        A(f'v_mov_b32 {t1}, 0x0c0c0100\nv_mov_b32 {t2}, 0x01000c0c')
        A.L.append(vm[3])
        A(f'v_cndmask_b32 {t1}, {t1}, {t2}, {self.mB0}')
        A.L.append(vm[4])
        A(f'v_cndmask_b32 {sel[0]}, {t1}, {t3}, {self.mOwnA}\nv_cndmask_b32 {sel[2]}, {t3}, {t1}, {self.mOwnA}')
        A(f'v_mov_b32 {t1}, 0x0c0c0302\nv_mov_b32 {t2}, 0x03020c0c\nv_cndmask_b32 {t1}, {t1}, {t2}, {self.mB0}')
        A(f'v_cndmask_b32 {sel[1]}, {t1}, {t3}, {self.mOwnB}\nv_cndmask_b32 {sel[3]}, {t3}, {t1}, {self.mOwnB}')
        for t in range(1, 5):
            for h, mk in ((0, self.mOwnA), (1, self.mOwnB)):
                A(f'v_cndmask_b32 {Sp[t][2*h]}, {Sp[t][2*h]}, {Sp[t][2*h+1]}, {self.mB0}\nv_cndmask_b32 {So[t][2*h]}, {So[t][2*h]}, {So[t][2*h+1]}, {self.mB0}')
                A(f'v_cndmask_b32 {z[t][h]}, {Sp[t][2*h]}, {So[t][2*h]}, {mk}')
        A(f'v_pk_fma_f32 {z[1]}, {z[1]}, {zs[1]}, {bias}')
        for t in range(2, 5): A(f'v_pk_mul_f32 {z[t]}, {z[t]}, {zs[t]}')
        red = [None] + [V.alloc(2) for _ in range(4)]
        vcv = [Ins(f'v_cvt_pk_bf16_f32 {Vp[2*t+h]}, {self.aV[t][2*h]}, {self.aV[t][2*h+1]}') for t in range(5) for h in range(2)]
        def fill(n):
            for _ in range(n):
                if vcv: A.L.append(vcv.pop(0))
        def allreduce(op, mid=None):
            r = [None] + [red[t][0] for t in range(1, 5)]
            for t in (1, 3, 2, 4): A(f'{op} {r[t]}, {z[t][0]}, {z[t][1]}')
            A(f'v_permlane32_swap_b32 {r[1]}, {r[3]}'); fill(1)
            A(f'v_permlane32_swap_b32 {r[2]}, {r[4]}')
            A(f'{op} {r[1]}, {r[1]}, {r[3]}\n{op} {r[2]}, {r[2]}, {r[4]}'); fill(2)
            A(f'v_permlane16_swap_b32 {r[1]}, {r[2]}')
            if mid:
                A(f'{op} {r[1]}, {r[1]}, {r[2]}\n{mid} {r[2]}, {r[1]}\n{mid} {r[1]}, {r[1]}')
            else:
                A(f'{op} {red[1][1]}, {r[1]}, {r[2]}\n{op} {r[2]}, {r[1]}, {r[2]}\nv_mov_b32 {r[1]}, {red[1][1]}')
            fill(2)
            A(f'v_permlane16_swap_b32 {r[1]}, {r[2]}')
            A(f'v_mov_b32 {r[3]}, {r[1]}\nv_mov_b32 {r[4]}, {r[2]}'); fill(1)
            A(f'v_permlane32_swap_b32 {r[1]}, {r[3]}\nv_permlane32_swap_b32 {r[2]}, {r[4]}')
        allreduce('v_max_f32')
        for t in range(1, 5): A(f'v_pk_add_f32 {z[t]}, {z[t]}, {red[t]} op_sel_hi:[1,0] neg_lo:[0,1] neg_hi:[0,1]')
        for t in range(1, 5): A(f'v_exp_f32 {z[t][0]}, {z[t][0]}\nv_exp_f32 {z[t][1]}, {z[t][1]}')
        allreduce('v_add_f32', 'v_rcp_f32')
        fill(10)
        for t in range(1, 5): A(f'v_pk_mul_f32 {z[t]}, {z[t]}, {rk[t]}')
        for t in range(1, 5): A(f'v_pk_mul_f32 {z[t]}, {z[t]}, {red[t]} op_sel_hi:[1,0]')
        for t in range(1, 5): A(f'v_cvt_pk_bf16_f32 {z[t][0]}, {z[t][0]}, {z[t][1]}')
        P = Sp; O = So
        for t in range(1, 5):
            for q in range(4): A(f'v_perm_b32 {P[t][q]}, {z[t][0]}, {z[t][0]}, {sel[q]}')
            if t > 1: A(f'v_mfma_f32_16x16x32_bf16 {O[t-1]}, {Vp.sub(2*t-4, 4)}, {P[t-1]}, 0')
        A(f's_lshl_b32 {s["T0"]}, {s["BLK"]}, 16\ns_lshl_b32 {s["T1"]}, {s["C"]}, 13')
        A(f'v_mfma_f32_16x16x32_bf16 {O[4]}, {Vp.sub(6, 4)}, {P[4]}, 0')
        A(f's_add_u32 {s["T0"]}, {s["T0"]}, {s["T1"]}\ns_add_u32 {s["T0"]}, {s["T0"]}, {self.sW2K}')
        self.vL16 = V.alloc(); A(f'v_lshlrev_b32 {self.vL16}, 4, {vL}')
        of = [self.aV[0], self.aV[1]]
        for pr in range(2):
            for q in range(2):
                t = 1 + 2*pr + q
                for h in range(2): A(f'v_cvt_pk_bf16_f32 {of[pr][2*q+h]}, {O[t][2*h]}, {O[t][2*h+1]}')
            A(f'v_permlane16_swap_b32 {of[pr][0]}, {of[pr][2]}\nv_permlane16_swap_b32 {of[pr][1]}, {of[pr][3]}')
            self.store2(A, 'dwordx4', of[pr], self.vL16, s["T0"], WS_O + pr*1024, 'ost')
        self.stamp('o stored')
        for r in tb + rk[1:] + zs[1:] + z[1:] + red[1:] + [csq, csk, csv, Kp, Qp, Vp, bias, sel, tb4, self.stG, self.stS, aTB, self.aW1] + self.aQ + self.aK + self.aV + self.aX + self.aXo: r.free()
        for r in (self.vXa, self.vXb, self.vW1, self.mOwnA, self.mOwnB, self.sCen, self.sCoff, self.sCv, self.sW3K): r.free()
        self.t1, self.t2, self.t3 = t1, t2, t3

    def store2(self, A, w, data, voff, soff, off, tag):
        assert off < 4096
        o = f' offset:{off}' if off else ''
        A(f'buffer_store_{w} {data}, {voff}, {self.WSF}, {soff} offen{o}', tag=tag)
        A(f'buffer_store_{w} {data}, {voff}, {self.WSS}, {soff} offen{o} sc1', tag=tag)

    def signal(self, kind, val):
        s = self.s; L = Asm()
        L(f's_lshl_b32 exec_lo, {1 << (4*kind)}, {s["W"]}\ns_mov_b32 exec_hi, 0\nv_mov_b32 {self.vFv}, {val}')
        self.store2(L, 'dword', self.vFv, self.vFz, s["FL"], 0, 'flag')
        L('s_mov_b64 exec, -1')
        return L.L

    def poll_block(self, A, addr, val):
        s = self.s; n = self.nlabel; self.nlabel += 1
        A(f's_mov_b32 {s["T3"]}, 0x20000\n@raw 1\nL_poll{n}:\nbuffer_load_dword {self.vPv}, {addr}, {self.WS}, {s["FL"]} offen sc1\ns_waitcnt vmcnt(0)')
        A(f'v_cmp_gt_u32 vcc, {val}, {self.vPv}\ns_sub_u32 {s["T3"]}, {s["T3"]}, 1\ns_cbranch_scc1 L_pd{n}\ns_cbranch_vccnz L_poll{n}\nL_pd{n}:\n@raw 0')

    def touch1(self):
        V, s, vL = self.V, self.s, self.vL
        L = Asm(); a = V.alloc(); b = V.alloc()
        L(f's_lshl_b32 {s["T0"]}, {s["BLK"]}, 16\ns_lshl_b32 {s["T1"]}, {s["C"]}, 13\ns_add_u32 {s["T0"]}, {s["T0"]}, {s["T1"]}\ns_add_u32 {s["T0"]}, {s["T0"]}, {self.sW2K}')
        L(f'v_mov_b32 {a}, {s["T0"]}')
        L(f's_lshr_b32 {s["T1"]}, {s["W"]}, 1\ns_lshl_b32 {s["T0"]}, {s["BLK"]}, 1\ns_add_u32 {s["T0"]}, {s["T0"]}, {s["T1"]}\ns_lshl_b32 {s["T0"]}, {s["T0"]}, 15')
        L(f's_lshl_b32 {s["T1"]}, {s["C"]}, 12\ns_add_u32 {s["T0"]}, {s["T0"]}, {s["T1"]}\ns_and_b32 {s["T1"]}, {self.sW2K}, 2048\ns_add_u32 {s["T0"]}, {s["T0"]}, {s["T1"]}\ns_add_u32 {s["T0"]}, {s["T0"]}, {WS_H}')
        L(f's_mov_b64 exec, 0xffff0000\nv_mov_b32 {a}, {s["T0"]}\ns_mov_b32 exec_lo, 0\ns_mov_b32 exec_hi, -1\nv_mov_b32 {a}, {s["FL"]}\ns_mov_b64 exec, -1')
        L(f'v_lshl_add_u32 {a}, {self.vJ}, 7, {a}')
        L(f's_lshl_b32 {s["T0"]}, {s["G"]}, 13\ns_lshl_b32 {s["T1"]}, {s["M"]}, 9\ns_add_u32 {s["T0"]}, {s["T0"]}, {s["T1"]}\ns_lshl_b32 {s["T1"]}, {s["W"]}, 7\ns_add_u32 {s["T0"]}, {s["T0"]}, {s["T1"]}\ns_add_u32 {s["T0"]}, {s["T0"]}, {WS_ST}')
        L(f's_mov_b32 exec_lo, 0\ns_mov_b32 exec_hi, 0xfffffc00\nv_mov_b32 {a}, {s["T0"]}\ns_mov_b32 exec_lo, -1\ns_mov_b32 exec_hi, 0x7ff')
        L(f'buffer_load_dword {b}, {a}, {self.WS}, 0 offen sc1\ns_mov_b64 exec, -1')
        self.touch_regs = (a, b)
        self.A.ext(L)
        return []

    def build_stream(self):
        st = [('W2', i) for i in range(16)]
        for q in range(8): st += [('F1', 2*q), ('H1', q), ('F1', 2*q + 1)]
        st += [('S2', i) for i in range(16)] + [('S3', q) for q in range(8)]
        st += [('W4', i) for i in range(43)]
        self.stream = st
        self.sD = self.S.alloc()
        A, V, S, s, vL = self.A, self.V, self.S, self.s, self.vL
        self.vF = V.alloc(); self.vH = V.alloc(); self.vD = V.alloc()
        a = V.alloc(); b = V.alloc(); c = V.alloc()
        self.sBF = S.alloc(2); self.sBH = S.alloc(2); self.sR2 = S.alloc(4); self.sR3 = S.alloc(); self.sU = S.alloc(2)
        A(f's_and_b32 {s["PF"]}, {s["M"]}, 1\ns_mul_i32 {s["T0"]}, {s["M"]}, 192\ns_mul_i32 {s["T1"]}, {s["PF"]}, {PITCH3}')
        A(f's_add_u32 {s["T2"]}, {s["T0"]}, {s["T1"]}\ns_sub_u32 {s["T3"]}, {s["T0"]}, {s["T1"]}\ns_add_u32 {s["T3"]}, {s["T3"]}, {PITCH3}')
        A(f's_and_b32 {self.sR3}, {s["G"]}, 1\ns_lshl_b32 {self.sR3}, {self.sR3}, 2\ns_mul_i32 {s["T0"]}, {self.sR3}, {64*PITCH3}\ns_sub_u32 {s["T1"]}, {256*PITCH3}, {s["T0"]}')
        A(f's_add_u32 {self.sBF[0]}, {s["T2"]}, {s["T0"]}\ns_add_u32 {self.sBF[1]}, {s["T2"]}, {s["T1"]}\ns_add_u32 {self.sBH[0]}, {s["T3"]}, {s["T0"]}\ns_add_u32 {self.sBH[1]}, {s["T3"]}, {s["T1"]}')
        for k in range(4): A(f's_xor_b32 {s["T0"]}, {s["BLK"]}, {k}\ns_and_b32 {s["T0"]}, {s["T0"]}, 3\ns_lshl_b32 {s["T0"]}, {s["T0"]}, 17\ns_add_u32 {self.sR2[k]}, {s["T0"]}, {self.sC128}')
        A(f's_and_b32 {s["T0"]}, {s["W"]}, 1\ns_and_b32 {s["T1"]}, {s["W"]}, 2')
        A(f'v_lshrrev_b32 {a}, 4, {vL}\nv_lshlrev_b32 {a}, 3, {a}\nv_bfe_u32 {b}, {vL}, 3, 1\nv_add_u32 {a}, {a}, {b}\nv_lshl_add_u32 {a}, {s["T0"]}, 1, {a}\nv_mul_u32_u24 {a}, {2*PITCH3}, {a}')
        A(f'v_bfe_u32 {b}, {vL}, 4, 1\nv_or_b32 {b}, {s["T1"]}, {b}\nv_lshlrev_b32 {b}, 1, {b}\nv_and_b32 {c}, 7, {vL}\nv_xor_b32 {b}, {b}, {c}\nv_lshl_add_u32 {self.vF}, {b}, 4, {a}')
        A(f'v_bfe_u32 {a}, {vL}, 3, 2\nv_lshlrev_b32 {a}, 3, {a}\nv_lshrrev_b32 {b}, 5, {vL}\nv_lshl_add_u32 {a}, {b}, 1, {a}\nv_bfe_u32 {b}, {vL}, 2, 1\nv_add_u32 {a}, {a}, {b}\nv_lshl_add_u32 {a}, {s["T0"]}, 2, {a}\nv_mul_u32_u24 {a}, {2*PITCH3}, {a}')
        A(f'v_and_b32 {b}, 3, {vL}\nv_xor_b32 {b}, {s["T1"]}, {b}\nv_lshl_add_u32 {self.vH}, {b}, 4, {a}')
        A(f'v_lshrrev_b32 {a}, 3, {vL}\nv_lshl_add_u32 {a}, {s["T0"]}, 3, {a}\nv_bfe_u32 {b}, {vL}, 4, 1\nv_lshlrev_b32 {b}, 2, {b}\nv_xor_b32 {b}, {b}, {c}\nv_lshlrev_b32 {b}, 4, {b}\nv_lshl_add_u32 {self.vD}, {a}, 10, {b}')
        A(f's_lshl_b32 {s["T1"]}, {s["T1"]}, 13\ns_add_u32 {self.sU[0]}, {s["T1"]}, {self.sC128}\ns_mul_i32 {s["T1"]}, {s["T1"]}, 6\ns_add_u32 {self.sU[1]}, {s["T1"]}, {self.sC128}')
        for r in (a, b, c): r.free()

    @staticmethod
    def p4_unit(i):
        if i < 15: return 0, 6*i
        if i < 29: return 0, 6*(i - 15) + 2
        if i < 36: return 1, 12*(i - 29) + 4
        return 1, 12*(i - 36) + 5

    def dma_next(self):
        if not self.stream or not self.free_blocks: return []
        key = self.stream.pop(0); b = self.free_blocks.pop(0)
        self.loc[key] = b; self.issued.append(key)
        s, D = self.s, self.sD; kind, i = key; tag = f'{kind}_{i}'
        pre = []
        if kind == 'W2':
            assert 23 <= b <= 38
            pre = [f's_add_u32 {D}, {self.sR2[i >> 2]}, {(i & 3) << 15}']
            ld = f'buffer_load_dwordx4 {self.vW2}, {self.WO}, {D} offen lds'
        elif kind in ('F1', 'S2', 'H1', 'S3'):
            full = kind in ('F1', 'S2')
            cp = i >> 1 if full else i
            base = self.sBF if kind in ('F1', 'S3') else self.sBH
            add = {'F1': 0, 'H1': 0, 'S2': 64, 'S3': 128}[kind] + (8*PITCH3*(i & 1) if full else 0)
            pre = [f's_add_u32 {D}, {base[cp >> 2]}, {(cp & 3)*64*PITCH3 + add}']
            if key == ('S2', 0): pre += [f's_cmp_lt_u32 {s["M"]}, 14', f's_cselect_b32 s38, s38, 0']
            ld = f'buffer_load_dwordx4 {self.vF if full else self.vH}, {self.W3}, {D} offen lds'
        else:
            sel, u = self.p4_unit(i)
            pre = [f's_add_u32 {D}, {self.sU[sel]}, {u*16384}']
            ld = f'buffer_load_dwordx4 {self.vD}, {self.WD}, {D} offen lds'
        g = [Ins(f's_add_u32 m0, {s["W1K"]}, {b*BLK}')] + [Ins(x) for x in pre] + [Ins(ld, tag)]
        return [g]

    def phase2(self):
        A, V, S, AG, s, vL = self.A, self.V, self.S, self.AG, self.s, self.vL
        t1, t2, t3, j, g = self.t1, self.t2, self.t3, self.vJ, self.vG
        self.vFv = V.alloc(); self.vPv = V.alloc()
        aw = [V.alloc() for _ in range(4)]
        A(f'v_lshl_add_u32 {t1}, {g}, 10, {self.vTRb}\nv_add_u32 {t1}, {23*BLK}, {t1}')
        for ct in range(4): A(f'v_xor_b32 {t2}, {ct*32}, {self.vTRf}\nv_add_u32 {aw[ct]}, {t1}, {t2}')
        pa = V.alloc(); oa = V.alloc()
        A(f's_lshl_b32 {s["T0"]}, {s["SB"]}, 7\nv_and_b32 {t1}, 31, {vL}\nv_lshl_add_u32 {pa}, {t1}, 2, {s["T0"]}')
        A(f's_lshr_b32 {s["T0"]}, {s["W"]}, 1\ns_lshl_b32 {s["T0"]}, {s["T0"]}, 10\ns_and_b32 {s["T1"]}, {s["W"]}, 1\ns_lshl_b32 {s["T1"]}, {s["T1"]}, 8')
        hv = V.alloc()
        A(f'v_and_b32 {t1}, 1, {g}\nv_lshlrev_b32 {t1}, 9, {t1}\nv_lshl_add_u32 {t1}, {j}, 4, {t1}\nv_lshrrev_b32 {t2}, 1, {g}\nv_lshl_add_u32 {t1}, {t2}, 11, {t1}\nv_add_u32 {hv}, {s["T1"]}, {t1}\nv_add_u32 {oa}, {s["T0"]}, {hv}')
        assert ('W2', 15) in self.loc
        A(f's_lshl_b32 {s["T0"]}, {s["BLK"]}, 16')
        for k in range(4): A(f's_lshr_b32 {s["T1"]}, {self.sR2[k]}, 17\ns_lshl_b32 {s["T1"]}, {s["T1"]}, 14\ns_add_u32 {self.sR2[k]}, {s["T1"]}, {s["T0"]}')
        acc = [V.alloc(4, 2) for _ in range(4)]
        for ct in range(4):
            for h in range(2):
                A(f'v_lshlrev_b32 {acc[ct][2*h]}, 16, {self.resx[2*ct+h]}\nv_and_b32 {acc[ct][2*h+1]}, 0xffff0000, {self.resx[2*ct+h]}')
        A('@waitvm ost')
        for r in self.touch_regs: r.free()
        self.stamp('o drained')
        A.ext(self.signal(0, 1))
        A('@waitvm W2_15\ns_barrier')
        for _ in range(self.o['b_post1']):
            for gq in self.dma_next(): A.ext(gq)
        Wf = [[AG.alloc(4, 4) for _ in range(4)] for _ in range(16)]
        def rd(i):
            off = (self.loc[('W2', i)] - 23)*BLK
            return [Ins(f'ds_read_b64_tr_b16 {Wf[i][ct].sub(2*a, 2)}, {aw[ct]} offset:{off + a*512}') for ct in range(4) for a in range(2)]
        npre = self.o.get('w2pre', 7)
        for i in range(npre): A.ext(rd(i))
        self.poll_block(A, pa, 1); A('@drained_vm')
        self.stamp('sync1 done')
        Of = [V.alloc(4, 2) for _ in range(16)]
        for i in range(16):
            A(f's_add_u32 {s["T1"]}, {self.sR2[i >> 2]}, {(i & 3) << 12}')
            A(f'buffer_load_dwordx4 {Of[i]}, {oa}, {self.WS}, {s["T1"]} offen sc1')
        for _ in range(self.o['b_o']):
            for gq in self.dma_next(): A.ext(gq)
        rest = []
        for i in range(npre, 16): rest += rd(i)
        A.ext(rest[:16]); rest = rest[16:]
        for i in range(16):
            for ct in range(4):
                A(f'v_mfma_f32_16x16x32_bf16 {acc[ct]}, {Wf[i][ct]}, {Of[i]}, {acc[ct]}')
                k = 2 if ct & 1 else 1
                A.ext(rest[:k]); rest = rest[k:]
        assert not rest
        self.stamp('p2 gemm done')
        A(f's_lshr_b32 {s["T1"]}, {s["W"]}, 1\ns_lshl_b32 {s["T0"]}, {s["BLK"]}, 1\ns_add_u32 {s["T2"]}, {s["T0"]}, {s["T1"]}\ns_lshl_b32 {s["T0"]}, {s["T2"]}, 15')
        A(f's_lshl_b32 {s["T1"]}, {s["C"]}, 12\ns_add_u32 {s["T0"]}, {s["T0"]}, {s["T1"]}\ns_add_u32 {s["T0"]}, {s["T0"]}, {WS_H}')
        hf = [Of[0], Of[1]]
        for par in range(2):
            for ct in range(4): A(f'v_cvt_pk_bf16_f32 {hf[par][ct]}, {acc[ct][par]}, {acc[ct][2+par]}')
            self.store2(A, 'dwordx4', hf[par], hv, s["T0"], par*1024, 'hst')
        G4, S4 = Of[2], Of[3]
        for par in range(2):
            A(f'v_mfma_f32_16x16x32_bf16 {G4}, {hf[par]}, {hf[par]}, {G4 if par else 0}')
            A(f'v_mfma_f32_16x16x32_bf16 {S4}, {self.ones}, {hf[par]}, {S4 if par else 0}')
        A(f's_lshl_b32 {s["T0"]}, {s["T2"]}, 11\ns_bfe_u32 {s["T1"]}, {s["C"]}, 0x10001\ns_lshl_b32 {s["T1"]}, {s["T1"]}, 10\ns_add_u32 {s["T0"]}, {s["T0"]}, {s["T1"]}')
        A(f's_lshr_b32 {s["T1"]}, {s["C"]}, 2\ns_lshl_b32 {s["T1"]}, {s["T1"]}, 9\ns_add_u32 {s["T0"]}, {s["T0"]}, {s["T1"]}\ns_and_b32 {s["T1"]}, {s["W"]}, 1\ns_lshl_b32 {s["T1"]}, {s["T1"]}, 8\ns_add_u32 {s["T0"]}, {s["T0"]}, {s["T1"]}')
        A(f's_and_b32 {s["T1"]}, {s["C"]}, 1\ns_lshl_b32 {s["T1"]}, {s["T1"]}, 3\ns_add_u32 {s["T0"]}, {s["T0"]}, {s["T1"]}\ns_add_u32 {s["T0"]}, {s["T0"]}, {WS_ST}')
        A(f'v_lshlrev_b32 {t1}, 4, {j}')
        A.ext(self.diag_code(G4, S4[1]))
        A(f's_mov_b64 exec, {self.mDiag}')
        self.store2(A, 'dwordx2', S4.sub(0, 2), t1, s["T0"], 0, 'hst')
        A('s_mov_b64 exec, -1')
        self.stamp('h stored')
        A('s_barrier')
        w2b = sorted(self.loc[('W2', i)] for i in range(16))
        self.resb = w2b[0]; assert w2b[1] == w2b[0] + 1
        self.free_blocks += w2b[2:]
        rp = Of[4].b; rp = Reg('v', Of[4].b, 8); assert Of[5].b == Of[4].b + 4
        for ct in range(4):
            for h in range(2): A(f'v_cvt_pk_bf16_f32 {rp[2*ct+h]}, {acc[ct][2*h]}, {acc[ct][2*h+1]}')
        A(f's_add_u32 {s["T0"]}, {self.sW2K}, {self.resb*BLK}\nv_lshlrev_b32 {t1}, 7, {j}\nv_lshl_add_u32 {t1}, {g}, 3, {t1}\nv_add_u32 {t1}, {s["T0"]}, {t1}')
        for ct in range(4): A(f'ds_write_b64 {t1}, {rp.sub(2*ct, 2)} offset:{ct*32}')
        A('@waitvm hst')
        self.stamp('h drained')
        A.ext(self.signal(1, 1))
        for _ in range(self.o['b_post2']):
            for gq in self.dma_next(): A.ext(gq)
        A('@waitlg0')
        for r in aw + [pa, oa, hv] + acc + Of + [x for y in Wf for x in y] + [self.vW2, self.mB0, self.mB1, self.mDiag, self.sR2]: r.free()

    def phase34(self):
        A, V, S, AG, s, vL, o = self.A, self.V, self.S, self.AG, self.s, self.vL, self.o
        t1, t2, t3, j, g = self.t1, self.t2, self.t3, self.vJ, self.vG
        def windows(base):
            r = [base, V.alloc(), V.alloc()]
            A(f'v_add_u32 {r[1]}, 0x10000, {base}\nv_add_u32 {r[2]}, 0x20000, {base}')
            return r
        aF, aH, aD = [], [], []
        A(f'v_and_b32 {t1}, 1, {g}\nv_lshlrev_b32 {t1}, 11, {t1}\nv_lshrrev_b32 {t2}, 1, {g}\nv_lshl_add_u32 {t3}, {t2}, 10, {t1}\nv_add_u32 {t3}, {t3}, {self.vTRb}')
        for uu in range(4):
            b = V.alloc(); A(f'v_xor_b32 {b}, {uu*32}, {self.vTRf}\nv_add_u32 {b}, {b}, {t3}'); aF.append(windows(b))
        A(f'v_lshl_add_u32 {t3}, {t2}, 9, {t1}\nv_bfe_u32 {t1}, {vL}, 2, 2\nv_lshl_add_u32 {t3}, {t1}, 6, {t3}\nv_and_b32 {t1}, 3, {vL}\nv_lshl_add_u32 {t3}, {t1}, 3, {t3}\nv_and_b32 {t1}, 1, {g}\nv_lshl_add_u32 {t3}, {t1}, 5, {t3}')
        for uu in range(2):
            b = V.alloc(); A(f'v_xor_b32 {b}, {uu*32}, {t3}'); aH.append(windows(b))
        A(f'v_bfe_u32 {t1}, {vL}, 2, 2\nv_lshl_add_u32 {t1}, {t2}, 2, {t1}\nv_lshlrev_b32 {t3}, 7, {t1}\nv_bfe_u32 {t1}, {vL}, 3, 1\nv_lshl_add_u32 {t3}, {t1}, 6, {t3}')
        A(f'v_and_b32 {t1}, 1, {vL}\nv_lshl_add_u32 {t3}, {t1}, 5, {t3}\nv_and_b32 {t1}, 1, {g}\nv_lshl_add_u32 {t3}, {t1}, 4, {t3}\nv_bfe_u32 {t1}, {vL}, 1, 1\nv_lshl_add_u32 {t3}, {t1}, 3, {t3}')
        A(f's_lshr_b32 {s["T0"]}, {s["W"]}, 1\ns_mul_i32 {s["T1"]}, {s["T0"]}, {2048 + 64}')
        for k in range(2):
            b = V.alloc(); A(f'v_xor_b32 {b}, {s["T1"]}, {t3}')
            if k: A(f'v_xor_b32 {b}, 64, {b}')
            aD.append(windows(b))
        A(f's_and_b32 {s["T1"]}, {s["W"]}, 2\nv_and_b32 {t1}, 1, {g}\nv_or_b32 {t1}, {s["T1"]}, {t1}\nv_lshlrev_b32 {t1}, 5, {t1}')
        b = V.alloc(); A(f'v_xor_b32 {b}, {t1}, {self.vL16}\nv_add_u32 {b}, {s["W1K"]}, {b}'); aCF = windows(b)
        b = V.alloc(); A(f's_lshl_b32 {s["T1"]}, {s["T1"]}, 4\nv_xor_b32 {b}, {s["T1"]}, {self.vL16}\nv_add_u32 {b}, {s["W1K"]}, {b}'); aCH = windows(b)
        delta = V.alloc(4, 2)
        for d in range(4):
            A(f'v_mov_b32 {delta[d]}, 0\nv_cmp_eq_u32 vcc, {2*d}, {j}\nv_mov_b32 {t1}, 0x3f80\nv_cndmask_b32 {delta[d]}, {delta[d]}, {t1}, vcc')
            A(f'v_cmp_eq_u32 vcc, {2*d+1}, {j}\nv_mov_b32 {t1}, 0x3f800000\nv_cndmask_b32 {delta[d]}, {delta[d]}, {t1}, vcc')
        aAF = V.alloc(); aAH = V.alloc(); aCR = V.alloc()
        A(f's_lshl_b32 {s["T1"]}, {s["T0"]}, 9\ns_add_u32 {s["T1"]}, {s["T1"]}, {SCR_CS}\nv_lshl_add_u32 {t1}, {g}, 4, {s["T1"]}')
        A(f'v_and_b32 {t2}, 7, {j}\nv_lshl_add_u32 {aAF}, {t2}, 5, {t1}\nv_and_b32 {t2}, 3, {j}\nv_lshl_add_u32 {aAH}, {t2}, 5, {t1}')
        A(f'v_and_b32 {t1}, 1, {g}\nv_lshlrev_b32 {t1}, 9, {t1}\nv_lshl_add_u32 {t1}, {j}, 2, {t1}\nv_add_u32 {aCR}, {SCR_CS}, {t1}')
        cA = [V.alloc(4, 2), V.alloc(4, 2)]; cB = V.alloc(4, 2)
        for r in (cA[0], cA[1], cB):
            for k in range(4): A(f'v_mov_b32 {r[k]}, 0')
        pa2 = V.alloc(); pa3 = V.alloc(); aRes = V.alloc()
        A(f's_lshl_b32 {s["T1"]}, {s["W"]}, 7\ns_add_u32 {s["T1"]}, {s["T1"]}, 256\nv_lshl_add_u32 {pa2}, {j}, 2, {s["T1"]}')
        sT4 = S.alloc(); sGst = S.alloc(); sGld = S.alloc(2); sHF = S.alloc(); sHH = S.alloc(); sL = S.alloc()
        A(f's_and_b32 {s["T2"]}, {s["W"]}, 1\ns_lshl_b32 {sT4}, {s["SB"]}, 1\ns_add_u32 {sT4}, {sT4}, {s["T2"]}')
        A(f's_lshl_b32 {s["T1"]}, {sT4}, 7\ns_add_u32 {s["T1"]}, {s["T1"]}, 768\nv_lshl_add_u32 {pa3}, {j}, 2, {s["T1"]}')
        A(f's_lshl_b32 {s["T2"]}, {s["T2"]}, 12\ns_lshl_b32 {s["T1"]}, {s["T0"]}, 6\ns_add_u32 {s["T1"]}, {s["T1"]}, {s["T2"]}\ns_add_u32 {s["T1"]}, {s["T1"]}, {self.resb*BLK}')
        A(f'v_and_b32 {t1}, 31, {vL}\nv_lshlrev_b32 {t1}, 7, {t1}\nv_lshrrev_b32 {t2}, 5, {vL}\nv_lshl_add_u32 {t1}, {t2}, 5, {t1}\nv_add_u32 {aRes}, {s["T1"]}, {t1}')
        A(f's_mul_i32 {s["T1"]}, {s["G"]}, {384*KB}\ns_add_u32 {s["T1"]}, {s["T1"]}, {WS_G}')
        A(f's_mul_i32 {sGst}, {s["W"]}, {96*KB}\ns_add_u32 {sGst}, {sGst}, {s["T1"]}\ns_mul_i32 {s["T2"]}, {s["M"]}, {6*KB}\ns_add_u32 {sGst}, {sGst}, {s["T2"]}')
        A(f's_mul_i32 {s["T2"]}, {sT4}, {96*KB}\ns_add_u32 {s["T1"]}, {s["T1"]}, {s["T2"]}\ns_lshl_b32 {s["T2"]}, {s["T0"]}, 10\ns_add_u32 {sGld[0]}, {s["T1"]}, {s["T2"]}\ns_mul_i32 {s["T2"]}, {s["T2"]}, 6\ns_add_u32 {sGld[1]}, {s["T1"]}, {s["T2"]}')
        A(f's_lshl_b32 {s["T1"]}, {s["G"]}, 2\ns_add_u32 {sL}, {s["T1"]}, {s["W"]}\ns_lshl_b32 {s["T1"]}, {sL}, 15\ns_add_u32 {s["T1"]}, {s["T1"]}, {WS_H}')
        A(f's_lshl_b32 {s["T2"]}, {s["PF"]}, 10\ns_add_u32 {sHF}, {s["T1"]}, {s["T2"]}\ns_xor_b32 {sHH}, {sHF}, 1024')
        self.vTRb.free(); self.vTRf.free()
        acc = [V.alloc(16, 2) for _ in range(6)]
        HB = {('F', i): AG.at(8*i, 4) for i in range(16)}; HB.update({('H', i): AG.at(8*i + 4, 4) for i in range(16)})
        ops = []
        def op3(u, ty, i):
            if ty == 'F':
                if u < 4: key, ad, st, ex = ('F1', i), aF[u], 512, 0
                else: key, ad, st, ex = ('S3', i >> 1), aH[u - 4], 256, (i & 1)*1024
            else:
                if u < 2: key, ad, st, ex = ('H1', i >> 1), aH[u], 256, (i & 1)*1024
                else: key, ad, st, ex = ('S2', i), aF[u - 2], 512, 0
            ops.append(dict(k='m', u=u, key=key, ad=ad, st=st, ex=ex, B=HB[(ty, i)]))
        if o['order'] == 'pair':
            for i in range(16):
                for ty in 'FH':
                    for u in (0, 1): op3(u, ty, i)
            for u in (2, 3):
                pass
            for i in range(16):
                for u in (2, 3): op3(u, 'F', i)
            for i in range(16):
                for u in (2, 3): op3(u, 'H', i)
        else:
            for i in range(16):
                for u in range(4): op3(u, 'F', i)
                for u in (0, 1): op3(u, 'H', i)
            for i in range(16):
                for u in (2, 3): op3(u, 'H', i)
        for i in range(16):
            for u in (4, 5): op3(u, 'H', i)
        for u in (4, 5):
            for i in range(16): op3(u, 'F', i)
        n3 = len(ops)
        NG = o.get('NG', 16)
        GB = [AG.alloc(4, 4) for _ in range(NG)]
        accK, accS = acc[0], acc[1]
        for i in range(43):
            for k in range(2): ops.append(dict(k='m', u=6 + k, key=('W4', i), ad=aD[k], st=1024, ex=0, B=GB[i % NG], gi=i))
        csacc = {c: V.alloc(4, 2) for c in ('F1', 'H1', 'S2', 'S3')}
        seen = set(); ops2 = []; cnt = {}
        for p in ops:
            if p['key'][0] != 'W4' and p['key'] not in seen:
                seen.add(p['key']); c = p['key'][0]; cnt[c] = cnt.get(c, 0) + 1
                ops2.append(dict(k='c', key=p['key'], first=cnt[c] == 1, last=cnt[c] == (16 if c in ('F1', 'S2') else 8)))
            ops2.append(p)
        ops = ops2
        NR = o.get('NR', 14)
        RB = [AG.alloc(4, 4) for _ in range(NR)]
        for n, p in enumerate(ops): p['R'] = RB[n % NR]; p['n'] = n
        last_use = {}
        for p in ops: last_use[p['key']] = p['n']
        last_op = {}
        for p in ops:
            if p['k'] == 'm': last_op[p['u']] = p['n']
        first4 = min(p['n'] for p in ops if p.get('u', 0) >= 6)
        def reads(p):
            b = self.loc[p['key']]; w, off = b >> 4, (b & 15)*BLK
            if p['k'] == 'c':
                ad = aCF if p['key'][0] in ('F1', 'S2') else aCH
                return [Ins(f'ds_read_b128 {p["R"]}, {ad[w]} offset:{off}', f'r{p["n"]}')]
            return [Ins(f'ds_read_b64_tr_b16 {p["R"].sub(2*a, 2)}, {p["ad"][w]} offset:{off + p["ex"] + a*p["st"]}', f'r{p["n"]}') for a in range(2)]
        started = set()
        def mfma(p):
            if p['k'] == 'c':
                c = csacc[p['key'][0]]
                return Ins(f'v_mfma_f32_16x16x32_bf16 {c}, {delta}, {p["R"]}, {0 if p["first"] else c}')
            a = acc[p['u']] if p['u'] < 6 else (accK, accS)[p['u'] - 6]
            z = p['u'] not in started and p['u'] != 6
            started.add(p['u'])
            return Ins(f'v_mfma_f32_32x32x16_bf16 {a}, {p["R"]}, {p["B"]}, {0 if z else a}')
        LA, BI = o['LA'], o['BI']
        N = len(ops)
        bars = list(range(0, N, BI))
        def bar_code(n):
            L = Asm()
            need = [ops[q]['key'] for q in range(n, min(N, n + BI + LA))]
            while any(k not in self.loc for k in need):
                gq = self.dma_next(); assert gq, f'LDS full at op {n}'
                for x in gq: L.ext(x)
                self.forced += 1
            newest = max(need, key=self.issued.index)
            L(f'@waitvm {newest[0]}_{newest[1]}\ns_barrier')
            return L
        self.forced = 0
        A.ext(bar_code(0))
        res = self.resx
        A(f'ds_read_b128 {res.sub(0, 4)}, {aRes}\nds_read_b128 {res.sub(4, 4)}, {aRes} offset:16')
        for q in range(LA): A.ext(reads(ops[q]))
        self.poll_block(A, pa2, 1); A('@drained_vm')
        self.stamp('sync2 done')
        for cp in range(8):
            A(f's_xor_b32 {s["T0"]}, {self.sR3}, {cp}\ns_lshl_b32 {s["T0"]}, {s["T0"]}, 12\ns_add_u32 {s["T1"]}, {s["T0"]}, {sHF}\ns_add_u32 {s["T2"]}, {s["T0"]}, {sHH}')
            for gp in range(2):
                A(f'buffer_load_dwordx4 {HB[("F", 2*cp+gp)]}, {self.vL16}, {self.WS}, {s["T1"]} offen offset:{gp*2048} sc1')
                A(f'buffer_load_dwordx4 {HB[("H", 2*cp+gp)]}, {self.vL16}, {self.WS}, {s["T2"]} offen offset:{gp*2048} sc1')
            if cp in o.get('h_dma_mix', ()):
                for gq in self.dma_next(): A.ext(gq)
        sp = V.alloc(8, 2)
        A(f's_lshl_b32 {s["T0"]}, {sL}, 11\ns_add_u32 {s["T0"]}, {s["T0"]}, {WS_ST}')
        A(f'buffer_load_dwordx4 {sp.sub(0, 4)}, {self.vL16}, {self.WS}, {s["T0"]} offen sc1\nbuffer_load_dwordx4 {sp.sub(4, 4)}, {self.vL16}, {self.WS}, {s["T0"]} offen offset:1024 sc1')
        A(f'v_lshlrev_b32 {t1}, 7, {vL}\ns_mov_b32 exec_hi, 0xffff\nbuffer_load_dword {t2}, {t1}, {self.WS}, {sGst} offen sc1\ns_mov_b32 exec_hi, -1')
        c1 = V.alloc(); c3 = V.alloc(); iv = V.alloc(); tt = V.alloc(8, 2); go = [V.alloc(4, 2), V.alloc(4, 2)]
        K1 = -2*math.sqrt(2/math.pi)*LOG2E; K3 = K1*0.044715
        valu = []
        def q(n, text, tag=None):
            L = Asm(); L(text, tag); valu.append((n, L.L))
        def qi(n, text):
            for ln in text.split('\n'): q(n, ln)
        n_st = o.get('n_stats', 56)
        qi(n_st, f'v_add_f32 {sp[0]}, {sp[0]}, {sp[2]}\nv_add_f32 {sp[1]}, {sp[1]}, {sp[3]}\nv_add_f32 {sp[4]}, {sp[4]}, {sp[6]}\nv_add_f32 {sp[5]}, {sp[5]}, {sp[7]}')
        qi(n_st, f'v_add_f32 {sp[0]}, {sp[0]}, {sp[4]}\nv_add_f32 {sp[1]}, {sp[1]}, {sp[5]}\nv_mov_b32 {sp[2]}, {sp[0]}\nv_mov_b32 {sp[3]}, {sp[1]}')
        qi(n_st, f'v_permlane32_swap_b32 {sp[0]}, {sp[2]}\nv_permlane32_swap_b32 {sp[1]}, {sp[3]}\nv_add_f32 {sp[0]}, {sp[0]}, {sp[2]}\nv_add_f32 {sp[1]}, {sp[1]}, {sp[3]}')
        qi(n_st, f'v_mul_f32 {sp[0]}, {fhex(-1/512)}, {sp[0]}\nv_fma_f32 {sp[1]}, {sp[1]}, {self.sInv512}, {self.vEps}\nv_fma_f32 {iv}, -{sp[0]}, {sp[0]}, {sp[1]}\nv_max_f32 {iv}, {iv}, {self.vEps}')
        q(n_st, f's_mov_b32 exec_hi, 0\nv_cvt_pk_bf16_f32 {cB[0]}, {sp[0]}, {sp[0]}\ns_mov_b32 exec_hi, -1')
        qi(n_st, f'v_rsq_f32 {sp[2]}, {iv}\nv_nop\nv_mul_f32 {c1}, {fhex(K1)}, {sp[2]}\nv_mul_f32 {sp[3]}, {sp[2]}, {sp[2]}\nv_mul_f32 {c3}, {fhex(0.044715)}, {c1}\nv_mul_f32 {c3}, {c3}, {sp[3]}')
        cs_last = {p['key'][0]: p['n'] for p in ops if p['k'] == 'c' and p['last']}
        events = []
        def nextbar(n): return ((n + BI - 1)//BI)*BI
        add_done = {}
        self.cs_sched = {}
        for c in ('F1', 'H1', 'S2', 'S3'):
            sh = {'F1': 0, 'H1': 0, 'S2': 128, 'S3': 256}[c]
            ad = aAF if c in ('F1', 'S2') else aAH
            txt = 's_mov_b32 exec_hi, 0\n' + '\n'.join(f'ds_add_f32 {ad}, {csacc[c][r]} offset:{sh + 4*r}' for r in range(4)) + '\ns_mov_b32 exec_hi, -1'
            self.cs_sched[cs_last[c] + 2] = self.cs_sched.get(cs_last[c] + 2, []) + [(txt, 'add' + c)]
            add_done[c] = nextbar(cs_last[c] + 4)
        need_cls = {0: ('F1', 'H1'), 1: ('F1', 'H1'), 2: ('F1', 'S2'), 3: ('F1', 'S2'), 4: ('S2', 'S3'), 5: ('S2', 'S3')}
        pubs = {1: 1, 3: 2, 4: 3, 5: 4}
        for u in range(6):
            nb = max(add_done[c] for c in need_cls[u]); ca = cA[u & 1]; a = acc[u]; out = go[u & 1]
            q(nb, f'ds_read_b32 {ca[0]}, {aCR} offset:{u*64}')
            qi(nb + 2, f'v_cvt_pk_bf16_f32 {t1}, {ca[0]}, {ca[0]}\nv_and_b32 {t1}, 0xffff0000, {t1}\nv_sub_f32 {ca[0]}, {ca[0]}, {t1}\nv_cvt_pk_bf16_f32 {ca[0]}, {t1}, {ca[0]}')
            valu.append((max(nb + 2, last_op[u]), 'corr', Ins(f'v_mfma_f32_32x32x16_bf16 {a}, {ca}, {cB}, {a}')))
            st = []
            for txt in ('v_mul_f32 {t}, {a}, {a}', 'v_fma_f32 {t}, {t}, {c3}, {c1}', 'v_mul_f32 {t}, {t}, {a}', 'v_exp_f32 {t}, {t}', 'v_mul_f32 {b}, {a}, {b}', 'v_fma_f32 {t}, {t}, {iv}, {iv}', 'v_rcp_f32 {t}, {t}', 'v_mul_f32 {b}, {b}, {t}'):
                st.append([txt.format(t=tt[v], a=a[v], b=a[8+v], c1=c1, c3=c3, iv=iv) for v in range(8)])
            seq = st[0] + st[1] + st[2]
            for v in range(8): seq += [st[3][v], st[4][v]]
            seq += [st[5][0]]
            for v in range(8):
                if v < 7: seq.append(st[5][v+1])
                seq.append(st[6][v])
            seq += st[7] + [f'v_cvt_pk_bf16_f32 {out[d]}, {a[8+2*d]}, {a[9+2*d]}' for d in range(4)]
            for ln in seq: q(0, ln)
            L = Asm()
            if u == 4: L(f's_add_u32 {sGst}, {sGst}, 4096')
            self.store2(L, 'dwordx4', out, self.vL16, sGst, (u & 3)*1024, f'gst{u}')
            valu.append((0, L.L))
            if u in pubs: valu.append((0, 'pub', u))
            if u == 1:
                for d in range(8): qi(0, f'v_lshlrev_b32 {accK[2*d]}, 16, {res[d]}\nv_and_b32 {accK[2*d+1]}, 0xffff0000, {res[d]}')
                valu.append((0, 'mark', 'acc4'))
        gl_at = {}
        for i in range(43):
            n = max(first4 + 2*(i - o['GLA']), 0)
            gl_at.setdefault(n, []).append(i)
        stage_first = {0: 1, 15: 2, 29: 3, 36: 4}
        poll_at = {}
        for n, l in gl_at.items():
            for i in l:
                if i in stage_first: poll_at[n - o['poll_lead']] = stage_first[i]
        timed = []
        marks = set(); pubdone = {}
        last_dma = -99; hold = 0
        freed = set()
        for n in range(N):
            p = ops[n]
            if n == first4:
                assert 'acc4' in marks, 'phase-4 accumulators not ready'
                self.stamp('p3 mfma done')
            if o.get('fine') and n % o['fine'] == 0 and n: self.stamp(f'op {n}')
            A.L.append(mfma(p))
            budget = o.get('bud', 6) if p['k'] == 'm' else 2
            sal, dsr, vme, val = [], [], [], []
            if (n + 1) % BI == 0 and n + 1 < N:
                for c in add_done:
                    if add_done[c] == n + 1: sal.append(Ins(f'@waitlg add{c}'))
                sal += bar_code(n + 1).L
                for k, lu in last_use.items():
                    if lu <= n and k not in freed and k in self.loc:
                        freed.add(k); self.free_blocks.append(self.loc[k])
                if 'res' not in freed:
                    freed.add('res'); self.free_blocks += [self.resb, self.resb + 1]
                budget -= 1
            elif n % 2 == 0 and n + 2 < N: sal.append(Ins(f'@waitlg r{n+2}'))
            if n + LA < N:
                r = reads(ops[n + LA]); dsr += r; budget -= len(r)
            for txt, tag in self.cs_sched.get(n, []):
                L = Asm(); L(txt, tag); dsr += L.L; budget -= 6
            if n in poll_at:
                vme.append(Ins(f'buffer_load_dword {self.vPv}, {pa3}, {self.WS}, {s["FL"]} offen sc1')); budget -= 1
            for i in gl_at.get(n, []):
                if i in stage_first:
                    assert pubdone.get(stage_first[i], 1 << 30) <= n, f'stage {stage_first[i]} waited before own publication (op {n}) {pubdone} first4={first4}'
                    k = self.nlabel; self.nlabel += 1
                    L = Asm(); L(f'v_cmp_gt_u32 vcc, {stage_first[i]}, {self.vPv}\ns_nop 0\ns_cbranch_vccnz L_late{k}\nL_back{k}:'); vme += L.L
                    self.tail(f'L_late{k}:'); self.poll_block(self.tail, pa3, stage_first[i]); self.tail(f's_branch L_back{k}')
                    budget -= 5
                sel, u = self.p4_unit(i)
                vme += [Ins(f's_add_u32 {s["T0"]}, {sGld[sel]}, {u*1024}'), Ins(f'buffer_load_dwordx4 {GB[i % NG]}, {self.vL16}, {self.WS}, {s["T0"]} offen sc1')]
                budget -= 2
            if n - last_dma >= o['dma_gap'] and n >= o.get('dma_from', 0):
                gq = self.dma_next()
                if gq:
                    last_dma = n; vme += gq[0]; budget -= len(gq[0]) - (0 if sal else 1)
            for (tn, code) in [x for x in timed if x[0] == n]:
                vme += code; budget -= 7
            post = []
            while valu and budget > 0 and valu[0][0] <= n and n >= hold:
                it = valu.pop(0)
                if it[1] == 'corr':
                    post.append(it[2]); hold = n + 2; break
                if it[1] == 'pub':
                    u = it[2]; tn = min(n + o['pub_delay'], N - 1)
                    timed.append((tn, [Ins(f'@waitvm gst{u}')] + self.signal(2, pubs[u]))); pubdone[pubs[u]] = tn
                    continue
                if it[1] == 'mark': marks.add(it[2]); continue
                val += it[1]
                budget -= sum(2 if (x.is_trans() or x.mn.startswith('v_permlane')) else 1 for x in it[1] if x.kind != 'pseudo')
            A.ext(sal); A.ext(dsr); A.ext(vme); A.ext(val); A.ext(post)
        assert not valu and not self.stream, (len(valu), len(self.stream))
        self.info = dict(N=N, first4=first4, forced=self.forced, pubdone=pubdone, gl_first={stage_first[i]: n for n, l in gl_at.items() for i in l if i in stage_first})
        self.stamp('p4 mfma done')
        fb = sorted(self.free_blocks)
        xb = next(b for b in fb if all(b + k in fb for k in range(4)))
        A(f's_lshl_b32 {s["T0"]}, {s["W"]}, 12\ns_add_u32 {s["T0"]}, {s["T0"]}, {xb*BLK}\nv_add_u32 {t1}, {s["T0"]}, {self.vL16}')
        A(f's_xor_b32 {s["T1"]}, {s["W"]}, 2\ns_lshl_b32 {s["T1"]}, {s["T1"]}, 12\ns_add_u32 {s["T1"]}, {s["T1"]}, {xb*BLK}\nv_add_u32 {t2}, {s["T1"]}, {self.vL16}')
        A(f'v_and_b32 {t3}, 31, {vL}\nv_lshlrev_b32 {t3}, 10, {t3}\nv_lshrrev_b32 {c1}, 5, {vL}\nv_lshl_add_u32 {t3}, {c1}, 5, {t3}')
        A(f's_lshl_b32 {s["T0"]}, {s["G"]}, 2\ns_add_u32 {s["T0"]}, {s["T0"]}, {sT4}\ns_lshl_b32 {s["T0"]}, {s["T0"]}, 15\ns_add_u32 {s["T0"]}, {s["T0"]}, {self.sC128}\ns_lshr_b32 {s["T1"]}, {s["W"]}, 1\ns_lshl_b32 {s["T1"]}, {s["T1"]}, 6\ns_add_u32 {s["T0"]}, {s["T0"]}, {s["T1"]}')
        for k in range(4): A(f'ds_write_b128 {t1}, {accS.sub(4*k, 4)} offset:{k*1024}')
        A('@waitlg0\ns_barrier')
        rx = acc[2]
        for k in range(4): A(f'ds_read_b128 {rx.sub(4*k, 4)}, {t2} offset:{k*1024}')
        for h in range(2):
            for d in range(4*h, 4*h + 4): A(f'v_pk_add_f32 {accK.sub(2*d, 2)}, {accK.sub(2*d, 2)}, {rx.sub(2*d, 2)}')
            for d in range(4): A(f'v_cvt_pk_bf16_f32 {go[h][d]}, {accK[8*h + 2*d]}, {accK[8*h + 2*d + 1]}')
            A(f'buffer_store_dwordx4 {go[h]}, {t3}, {self.OUT}, {s["T0"]} offen offset:{16*h} {o.get("out_aux", "")}')
        self.stamp('out stored')

    def finish(self):
        A, s = self.A, self.s
        if self.o['stamps']:
            A('@waitvm0')
            self.stamp('end')
            A(f'v_writelane_b32 {self.vstamp}, s100, 63')
            A(f's_lshl_b32 {s["T0"]}, s2, 10\ns_lshl_b32 {s["T1"]}, {s["W"]}, 8\ns_add_u32 {s["T0"]}, {s["T0"]}, {s["T1"]}\ns_add_u32 {s["T0"]}, {s["T0"]}, {WS_TS}')
            A(f'v_lshlrev_b32 v253, 2, {self.vL}\nbuffer_store_dword {self.vstamp}, v253, {self.WS}, {s["T0"]} offen')
        if self.o.get('pad_to'):
            A(f'@raw 1\ns_waitcnt vmcnt(0)\nL_padloop:\ns_memrealtime s[98:99]\ns_waitcnt lgkmcnt(0)\ns_sub_u32 s98, s98, s100\ns_cmp_lt_u32 s98, {self.o["pad_to"]}\ns_cbranch_scc1 L_padloop\n@raw 0')
        A('s_endpgm')

    def build(self):
        self.prologue(); self.phase1()
        self.phase2(); self.phase34()
        self.finish()
        L = resolve_waits(self.A.L)
        L, nn = pad_hazards(L)
        T = [x for x in self.tail.L if x.kind != 'pseudo']
        body = '\n'.join(('' if x.kind == 'label' else '    ') + x.text for x in L + T)
        hdr = open('cdna_kernels/' + NAME + '.s.ref').read().split('; Override launch')[0]
        txt = hdr + f'; @launch grid=(256,1,1) block=(256,1,1) lds=163840\n.amdgcn_target "amdgcn-amd-amdhsa--gfx950"\n.text\n.globl {NAME}_kernel\n.p2align 8\n.type {NAME}_kernel,@function\n{NAME}_kernel:\n'
        txt += body + '\n    s_endpgm\nL_code_end:\n'
        txt += f'.section .rodata,"a"\n.p2align 6\n.amdhsa_kernel {NAME}_kernel\n  .amdhsa_next_free_vgpr 512\n  .amdhsa_next_free_sgpr 102\n  .amdhsa_accum_offset 256\n  .amdhsa_group_segment_fixed_size 0\n  .amdhsa_kernarg_size 80\n  .amdhsa_user_sgpr_count 2\n  .amdhsa_user_sgpr_kernarg_segment_ptr 1\n  .amdhsa_system_sgpr_workgroup_id_x 1\n  .amdhsa_float_denorm_mode_32 3\n.end_amdhsa_kernel\n'
        self.info.update(ninstr=len(L), nops=nn, vmax=self.V.hi, amax=self.AG.hi, smax=self.S.hi)
        return txt

if __name__ == '__main__':
    import json
    kw = json.loads(sys.argv[2]) if len(sys.argv) > 2 else {}
    G = Gen(**kw); txt = G.build()
    open(sys.argv[1], 'w').write(txt)
    print(G.info)
```

```python
import sys, math, struct
from asmlib import *

NAME = 'sequential_preLN__sliding_local_dilated__geglu_ffn__prompt'
KB = 1024
WS_H, WS_ST, WS_FL, WS_G, WS_O = 0, 128*KB, 136*KB, 256*KB, 640*KB
FL_SLOW = 2*KB
WS_TS = 16 << 20
WS_SIZE = 17 << 20
PITCH3 = 2752
BLK = 4096
L_HALO = 0
L_X = 4 * BLK
L_W = 10 * BLK
L_SCR = 39 * BLK
SCR_TB = L_SCR
SCR_HP = L_SCR + 1280
SCR_CS = L_SCR
def f2u(x): return struct.unpack('<I', struct.pack('<f', x))[0]
def fhex(x): return hex(f2u(x))
LOG2E = 1.4426950408889634

DEF = dict(stamps=False, order='pair', BI=8, LA=7, GLA=8, NG=14, NR=14, bud=6, b_epi=6, b_post1=4, b_o=4, b_post2=0,
           pub_delay=10, poll_lead=8, force_slow=False, w2pre=7, LO=5, HL=5, sp0=14, g_sc1=False, o_in_ws=False,
           pf={'o': 5, 'h': 5, 'wo': -1, 'w3': -1, 'wd': -1}, vslack=70, ws_base=0, n_stats=56, gt_at=40)

def cost(x):
    if x.kind in ('pseudo', 'label', 'dir'): return 0
    if x.is_trans() or x.mn.startswith('v_permlane') or x.kind == 'mfma': return 2
    return 1

def safe_points(code):
    ok = []; exec_part = False
    EX = {('s', 126), ('s', 127)}
    n = len(code)
    for i in range(n + 1):
        scc_live = False
        for k in range(i, n):
            x = code[k]
            if x.kind == 'label': scc_live = True; break
            if x.mn.startswith('s_cselect') or x.mn.startswith('s_cbranch') or x.mn.startswith('s_addc'): scc_live = True; break
            if x.kind == 'vmem' and x.arg == 'dma': scc_live = True; break
            if x.kind == 'salu' and not x.mn.startswith(('s_mov', 's_mul', 's_nop', 's_waitcnt', 's_barrier', 's_getreg')): break
        if not exec_part and not scc_live: ok.append(i)
        if i < n and code[i].defs & EX:
            exec_part = not code[i].text.endswith(', -1')
    return ok

def sprinkle(code, groups, spacing, start=0):
    code = list(code.L if isinstance(code, Asm) else code); groups = list(groups)
    ok = set(safe_points(code)); out = []; since = spacing - start
    for i, x in enumerate(code):
        if groups and since >= spacing and i in ok:
            g = groups.pop(0); out += g; since = 0
        out.append(x); since += cost(x)
    for g in groups: out += g
    return out

class Gen:
    def __init__(self, **kw):
        self.o = dict(DEF); self.o.update(kw)
        self.A = Asm(); self.tail = Asm()
        self.V = RegAlloc('v', 1, 254); self.AG = RegAlloc('a', 0, 256); self.S = RegAlloc('s', 60, 100)
        self.nstamp = 0; self.stamp_names = []
        self.nlabel = 0
        self.free_blocks = list(range(28, 39))
        self.loc = {}; self.issued = []
        st = [('W2', i) for i in range(16)]
        for q in range(8): st += [('F1', 2*q), ('H1', q), ('F1', 2*q + 1)]
        st += [('S2', i) for i in range(16)] + [('S3', q) for q in range(8)] + [('W4', i) for i in range(43)]
        self.stream = st
        self.info = {}

    def stamp(self, name, A=None):
        if not self.o['stamps'] or (self.o['stamps'] == 'min' and name != 'end'): return
        A = A if A is not None else self.A
        k = self.nstamp
        A(f'@raw 1\ns_memtime {self.sstamp.sub(2*(k % 2), 2)}')
        if k: A(f'v_writelane_b32 {self.vstamp}, {self.sstamp[2*((k-1) % 2)]}, {k-1}')
        A('@raw 0')
        self.stamp_names.append(name); self.nstamp += 1

    def srd(self, A, b, lo, size):
        A(f's_mov_b32 s{b}, s{lo}\ns_mov_b32 s{b+1}, s{lo+1}\ns_mov_b32 s{b+2}, {size}\ns_mov_b32 s{b+3}, 0x20000')

    def store2(self, A, w, data, voff, soff, off, tag, srds=None):
        assert off < 4096
        f, sl = srds or (self.WSF, self.WSS)
        o = f' offset:{off}' if off else ''
        v = f'{voff}, ' if voff is not None else 'off, '
        e = ' offen' if voff is not None else ''
        A(f'buffer_store_{w} {data}, {v}{f}, {soff}{e}{o}', tag=tag)
        A(f'buffer_store_{w} {data}, {v}{sl}, {soff}{e}{o} sc1', tag=tag)

    def signal(self, kind, val):
        L = Asm()
        L(f's_mov_b64 exec, 1\nv_mov_b32 {self.vFv}, {val}')
        self.store2(L, 'dword', self.vFv, None, self.sFme, kind*256, 'flag')
        L('s_mov_b64 exec, -1')
        return L.L

    def poll_block(self, A, addr, val):
        s = self.s; n = self.nlabel; self.nlabel += 1
        A(f's_mov_b32 {s["T3"]}, 0x20000\n@raw 1\nL_poll{n}:\nbuffer_load_dword {self.vPv}, {addr}, {self.WS}, {s["FL"]} offen sc1\ns_waitcnt vmcnt(0)')
        A(f'v_cmp_gt_u32 vcc, {val}, {self.vPv}\ns_sub_u32 {s["T3"]}, {s["T3"]}, 1\ns_cbranch_scc1 L_pd{n}\ns_cbranch_vccnz L_poll{n}\nL_pd{n}:\n@raw 0')

    @staticmethod
    def p4_unit(i):
        if i < 15: return 0, 6*i
        if i < 29: return 0, 6*(i - 15) + 2
        if i < 36: return 1, 12*(i - 29) + 4
        return 1, 12*(i - 36) + 5

    def dma_cost(self): return 138 if self.stream and self.stream[0][0] in ('H1', 'S3') else 69

    def dma_next(self):
        if not self.stream or not self.free_blocks: return None
        key = self.stream.pop(0); b = self.free_blocks.pop(0)
        self.loc[key] = b; self.issued.append(key)
        s, D = self.s, self.sD; kind, i = key; tag = f'{kind}_{i}'
        if kind == 'W2':
            assert 23 <= b <= 38
            pre = [f's_add_u32 {D}, {self.sR2[i >> 2]}, {(i & 3) << 15}']
            ld = f'buffer_load_dwordx4 {self.vW2}, {self.WO}, {D} offen lds'
        elif kind in ('F1', 'S2', 'H1', 'S3'):
            full = kind in ('F1', 'S2')
            cp = i >> 1 if full else i
            base = self.sBF if kind in ('F1', 'S3') else self.sBH
            add = {'F1': 0, 'H1': 0, 'S2': 64, 'S3': 128}[kind] + (8*PITCH3*(i & 1) if full else 0)
            pre = [f's_add_u32 {D}, {base[cp >> 2]}, {(cp & 3)*64*PITCH3 + add}']
            if key == ('F1', 0): pre.append(f's_mov_b32 s38, {self.sN3[0]}')
            if key == ('S2', 0): pre.append(f's_mov_b32 s38, {self.sN3[1]}')
            ld = f'buffer_load_dwordx4 {self.vF if full else self.vH}, {self.W3}, {D} offen lds'
        else:
            sel, u = self.p4_unit(i)
            pre = [f's_add_u32 {D}, {self.sU[sel]}, {u*16384}']
            ld = f'buffer_load_dwordx4 {self.vD}, {self.WD}, {D} offen lds'
        return [Ins(f's_add_u32 m0, {s["W1K"]}, {b*BLK}')] + [Ins(x) for x in pre] + [Ins(ld, tag)]

    def dmas(self, n):
        r = []
        for _ in range(n):
            g = self.dma_next()
            if g: r.append(g)
        return r

    def p1_chunk_dma(self, i):
        s = self.s; sl = i % 3; kc, so = self.sKC, self.sSO; tag = f'ch{i}'
        I = Ins
        g = [[I(f's_add_u32 {kc}, {s["C"]}, {i}'), I(f's_and_b32 {kc}, {kc}, 7'), I(f's_add_u32 m0, {self.sW2K}, {L_X + sl*8192}'), I(f's_lshl_b32 {so}, {kc}, 7'),
              I(f'buffer_load_dwordx4 {self.vXa}, {self.X}, {so} offen lds', tag)],
             [I(f's_mul_i32 {kc}, {kc}, {64*3072}'), I(f'buffer_load_dwordx4 {self.vXb}, {self.X}, {so} offen offset:1024 lds', tag)]]
        for st in range(2):
            for p in range(3):
                pre = []
                if p == 0: pre = [I(f's_add_u32 m0, {self.sW3K}, {L_W + sl*24576 + st*12288}'), I(f's_add_u32 {kc}, {kc}, {32*3072 if st else self.sC128}')]
                g.append(pre + [I(f'buffer_load_dwordx4 {self.vW1}, {self.WQ}, {kc} offen offset:{p*1024} lds', tag)])
        return g

    def p1_reads(self, i, st, buf):
        sl = i % 3; r = []
        W, X, O = buf
        r.append(Ins(f'ds_read_b128 {O}, {self.aXo[st]} offset:{sl*8192}'))
        for p in range(3):
            for a in range(2):
                r.append(Ins(f'ds_read_b64_tr_b16 {W[p].sub(2*a, 2)}, {self.aW1} offset:{sl*24576 + st*12288 + p*1024 + a*512}'))
            if p == 0:
                r.append(Ins(f'ds_read_b128 {X[0]}, {self.aX[st]} offset:{L_HALO + i*2048}'))
                for t in range(1, 5):
                    r.append(Ins(f'ds_read_b128 {X[t]}, {self.aX[st]} offset:{L_X + sl*8192 + (t-1)*2048}'))
        return r

    def p1_mfmas(self, buf, first):
        W, X, O = buf
        m = []
        c = lambda acc: '0' if first else str(acc)
        m.append(Ins(f'v_mfma_f32_16x16x32_bf16 {self.stG}, {O}, {O}, {c(self.stG)}'))
        m.append(Ins(f'v_mfma_f32_16x16x32_bf16 {self.stS}, {self.ones}, {O}, {c(self.stS)}'))
        for p, acc in enumerate((self.aQ, self.aK, self.aV)):
            for t in range(5):
                if p < 2: m.append(Ins(f'v_mfma_f32_16x16x32_bf16 {acc[t]}, {W[p]}, {X[t]}, {c(acc[t])}'))
                else: m.append(Ins(f'v_mfma_f32_16x16x32_bf16 {acc[t]}, {X[t]}, {W[p]}, {c(acc[t])}'))
        return m

    def stats_code(self, sq, sm, out4):
        L = Asm()
        L(f'v_mul_f32 {sm}, {fhex(-1/512)}, {sm}')
        L(f'v_fma_f32 {sq}, {sq}, {self.sInv512}, {self.vEps}')
        L(f'v_cvt_pk_bf16_f32 {out4[1]}, {sm}, {sm}')
        L(f'v_fma_f32 {sq}, -{sm}, {sm}, {sq}')
        L(f'v_max_f32 {sq}, {sq}, {self.vEps}')
        L(f'v_rsq_f32 {out4[2]}, {sq}')
        L(f'v_and_b32 {out4[0]}, 0xffff0000, {out4[1]}')
        L(f'v_mul_f32 {out4[3]}, {fhex(0.25*LOG2E)}, {out4[2]}')
        return L.L

    def diag_code(self, G4, dst):
        return [Ins(f'v_cndmask_b32 {G4[0]}, {G4[0]}, {G4[1]}, {self.mB0}'), Ins(f'v_cndmask_b32 {G4[2]}, {G4[2]}, {G4[3]}, {self.mB0}'),
                Ins(f'v_cndmask_b32 {dst}, {G4[0]}, {G4[2]}, {self.mB1}')]

    def weave16(self, mf, ds, misc, vgap=4):
        A = self.A; ds = list(ds)
        nm = len(mf)
        for k, m in enumerate(mf):
            A.L.append(m); self.gap_since_vm += 1
            bud = 2
            if misc and isinstance(misc[0], Ins) and misc[0].kind == 'salu': A.L.append(misc.pop(0))
            nds = 1 if ds else 0
            if len(ds) > nm - k - 4: nds = min(2, len(ds))
            for _ in range(nds): A.L.append(ds.pop(0)); bud -= 1
            while misc and bud > 0:
                it = misc[0]; l = it if isinstance(it, list) else [it]
                if l and l[0].kind == 'pseudo' and l[0].mn == '@skip':
                    misc.pop(0); break
                if any(x.kind == 'vmem' for x in l):
                    if self.gap_since_vm < vgap: break
                    self.gap_since_vm = 0
                misc.pop(0); A.ext(l); bud -= sum(cost(x) for x in l)
        assert not ds

    def phase1(self):
        A, V, S, AG, o = self.A, self.V, self.S, self.AG, self.o
        s = self.s = {}
        for n in 'W C M SB G BLK W1K T0 T1 T2 T3 FL PF GB'.split(): s[n] = S.alloc()
        if o['stamps']: self.sstamp = S.alloc(4, 2); self.vstamp = V.alloc()
        self.X, self.WQ, self.WO, self.W3, self.WD, self.OUT, self.WS, self.WSF, self.WSS = [f's[{24+4*i}:{27+4*i}]' for i in range(9)]
        self.sKC = S.alloc(); self.sSO = S.alloc(); self.sW2K = S.alloc(); self.sW3K = S.alloc(); self.sC128 = S.alloc(); self.sFme = S.alloc()
        sH = S.alloc(2); sZ = S.alloc()
        if o.get('pad_to'): A('@raw 1\ns_memrealtime s[100:101]\n@raw 0')
        if o['stamps']: A('@raw 1\ns_memtime s[100:101]\n@raw 0')
        A('s_load_dwordx2 s[24:25], s[0:1], 0\ns_load_dwordx2 s[28:29], s[0:1], 8\ns_load_dwordx2 s[48:49], s[0:1], 72')
        A('s_load_dwordx16 s[4:19], s[0:1], 0\ns_load_dwordx4 s[20:23], s[0:1], 64')
        A('s_cmp_lt_u32 s2, 256\ns_cbranch_scc1 L_go\ns_endpgm\nL_go:')
        vL = self.vL = V.alloc(); t0 = V.alloc(2); t1 = V.alloc(); t2 = V.alloc(); t3 = V.alloc()
        self.t1, self.t2, self.t3 = t1, t2, t3
        A(f's_getpc_b64 s[52:53]\nL_pc:')
        A(f'v_and_b32 {vL}, 63, v0\nv_lshrrev_b32 {t1}, 6, v0\ns_lshr_b32 {s["T0"]}, s2, 3\nv_readfirstlane_b32 {s["W"]}, {t1}')
        A(f'v_lshl_add_u32 {t1}, {s["T0"]}, 2, {t1}\nv_lshl_add_u32 {t1}, {t1}, 2, {vL}\nv_lshlrev_b32 {t1}, 7, {t1}\nv_min_u32 {t1}, L_code_end-L_pc-4, {t1}')
        A(f'v_add_co_u32 {t0[0]}, vcc, s52, {t1}\nv_mov_b32 {t0[1]}, s53\ns_and_b32 {s["M"]}, {s["T0"]}, 15\nv_addc_co_u32 {t0[1]}, vcc, 0, {t0[1]}, vcc')
        A(f's_mov_b64 exec, 15\nglobal_load_dword v255, {t0}, off\ns_mov_b64 exec, -1')
        t0.free()
        A(f's_and_b32 {s["C"]}, {s["T0"]}, 7\ns_lshr_b32 {s["SB"]}, {s["M"]}, 3\ns_and_b32 {s["T1"]}, s2, 7\ns_lshr_b32 {s["T0"]}, {s["T0"]}, 3')
        A(f's_lshl_b32 {s["BLK"]}, {s["T1"]}, 2\ns_add_u32 {s["BLK"]}, {s["BLK"]}, {s["T0"]}\ns_lshr_b32 {s["G"]}, {s["BLK"]}, 1')
        A(f's_lshl_b32 {self.sW2K}, {s["W"]}, 11\ns_mul_i32 {self.sW3K}, {s["W"]}, 3072\ns_lshl_b32 {self.sC128}, {s["C"]}, 7')
        e = V.alloc(); ch = V.alloc()
        vHa = V.alloc(); vHb = V.alloc(); self.vXa = V.alloc(); self.vXb = V.alloc(); self.vW1 = V.alloc(); self.vW2 = V.alloc()
        A(f'v_lshrrev_b32 {e}, 3, {vL}\nv_and_b32 {ch}, 7, {vL}')
        A(f'v_lshrrev_b32 {t1}, 4, {vL}\nv_xor_b32 {t1}, {t1}, {ch}\nv_lshlrev_b32 {t1}, 4, {t1}')
        A(f's_lshl_b32 {s["T0"]}, {s["BLK"]}, 6\ns_lshl_b32 {s["T1"]}, {s["W"]}, 4\ns_add_u32 {s["T1"]}, {s["T1"]}, {s["T0"]}')
        A(f'v_add_u32 {t2}, {s["T1"]}, {e}\nv_lshl_add_u32 {self.vXa}, {t2}, 10, {t1}\nv_add_u32 {self.vXb}, {7*1024}, {self.vXa}\nv_xor_b32 {self.vXb}, 64, {self.vXb}')
        A(f's_sub_u32 {s["T1"]}, {s["T0"]}, 16')
        A(f'v_add_u32 {t2}, {s["T1"]}, {e}\nv_max_i32 {vHa}, 2, {t2}\nv_lshl_add_u32 {vHa}, {vHa}, 10, {t1}')
        A(f'v_add_u32 {t2}, 7, {t2}\nv_max_i32 {vHb}, 2, {t2}\nv_lshl_add_u32 {vHb}, {vHb}, 10, {t1}\nv_xor_b32 {vHb}, 64, {vHb}')
        A(f's_and_b32 {s["T1"]}, {s["W"]}, 1\ns_lshl_b32 {s["T1"]}, {s["T1"]}, 2')
        A(f'v_and_b32 {t1}, 2, {e}\nv_or_b32 {t1}, {s["T1"]}, {t1}\nv_xor_b32 {t1}, {t1}, {ch}\nv_lshlrev_b32 {t1}, 4, {t1}')
        A(f'v_lshl_add_u32 {t2}, {s["W"]}, 3, {e}')
        A(f'v_lshl_add_u32 {self.vW2}, {t2}, 10, {t1}\nv_mul_u32_u24 {t2}, 3072, {t2}\nv_add_u32 {self.vW1}, {t2}, {t1}')
        A(f's_mov_b32 s26, {2048*1024}\ns_mov_b32 s27, 0x20000\ns_mov_b32 s30, {512*3072}\ns_mov_b32 s31, 0x20000\ns_mov_b32 s50, {o["ws_base"] + WS_SIZE}\ns_mov_b32 s51, 0x20000')
        A(f's_lshl_b32 {s["GB"]}, {s["G"]}, 20')
        if o['ws_base']: A(f's_add_u32 {s["GB"]}, {s["GB"]}, {o["ws_base"]}')
        A(f's_add_u32 {s["FL"]}, {s["GB"]}, {WS_FL}\ns_lshl_b32 {s["T1"]}, {s["M"]}, 4\ns_add_u32 {self.sFme}, {s["FL"]}, {s["T1"]}')
        self.vFz = V.alloc()
        A(f'v_lshrrev_b32 {t1}, 2, {vL}\nv_and_b32 {t2}, 3, {vL}\nv_lshlrev_b32 {t2}, 2, {t2}\nv_lshl_add_u32 {self.vFz}, {t1}, 8, {t2}\nv_mov_b32 {t2}, 0')
        A(f's_cmp_eq_u32 {s["W"]}, 0\ns_cselect_b32 {sZ}, 0xfff, 0')
        A(f's_lshl_b32 {s["T0"]}, {s["W"]}, 1\ns_add_u32 {s["T0"]}, {s["T0"]}, {s["C"]}')
        for q in range(2): A(f's_add_u32 {sH[q]}, {s["T0"]}, {q}\ns_and_b32 {sH[q]}, {sH[q]}, 7\ns_lshl_b32 {sH[q]}, {sH[q]}, 7')
        c0 = self.p1_chunk_dma(0)
        A.ext(c0[0][:-1])
        A('@waitlg0')
        self.stamp('kernarg')
        if o.get('probe'):
            src, rounds, base = o['probe']
            lo = {'bx': 10, 'ws': 22, 'out': 18, 'wd': 16}[src]
            A(f's_mov_b32 s32, s{lo}\ns_mov_b32 s33, s{lo+1}\ns_mov_b32 s34, {(2 << 20) if src in ("bx", "out") else (1376*1024 if src == "wd" else 256 << 20)}\ns_mov_b32 s35, 0x20000')
            A(f'v_lshlrev_b32 {t1}, 7, {vL}\ns_lshl_b32 {s["T0"]}, s2, 2\ns_add_u32 {s["T0"]}, {s["T0"]}, {s["W"]}\ns_lshl_b32 {s["T0"]}, {s["T0"]}, 11\ns_add_u32 {s["T0"]}, {s["T0"]}, {base}')
            nl = 16 // rounds if rounds > 0 else 16
            for r in range(abs(rounds)):
                A(f's_mov_b64 exec, {hex((1 << nl) - 1)}\nbuffer_load_dword {t3}, {t1}, s[32:35], {s["T0"]} offen sc1\ns_mov_b64 exec, -1')
                if rounds > 0: A(f'@waitvm0\ns_add_u32 {s["T0"]}, {s["T0"]}, {nl*128}')
                else: A(f's_add_u32 {s["T0"]}, {s["T0"]}, {2 << 20}')
            A('@waitvm0')
        A.L.append(c0[0][-1])
        A(f's_mov_b32 exec_lo, {sZ}\ns_mov_b32 exec_hi, 0')
        A(f'buffer_store_dword {t2}, {self.vFz}, {self.WS}, {self.sFme} offen', tag='fz')
        A('s_mov_b64 exec, -1')
        hal = []
        for q in range(2):
            hal.append([Ins(f's_lshl_b32 m0, {s["W"]}, 12')] + ([Ins('s_add_u32 m0, m0, 2048')] if q else []) +
                       [Ins('s_mov_b32 exec_lo, 0xffffff00'), Ins(f'buffer_load_dwordx4 {vHa}, {self.X}, {sH[q]} offen lds', 'halo'), Ins('s_mov_b32 exec_lo, -1')])
            hal.append([Ins(f'buffer_load_dwordx4 {vHb}, {self.X}, {sH[q]} offen offset:1024 lds', 'halo')])
        self.sCen = S.alloc(); self.sCoff = S.alloc(); self.sCv = S.alloc()
        cen = Asm()
        cen(f'@waitvm fz\ns_cmp_lg_u32 {s["W"]}, 0\ns_cbranch_scc1 L_nocen\n@raw 1\ns_atomic_add {self.sCen}, s[20:21], {self.sCoff}\n@raw 0\nL_nocen:\n@minlg 1')
        first = c0[1:2] + hal + c0[2:8]
        groups = first + [cen.L + self.p1_chunk_dma(1)[0]] + self.p1_chunk_dma(1)[1:]
        B = Asm()
        B(f's_getreg_b32 {s["T0"]}, hwreg(HW_REG_XCC_ID, 0, 4)\ns_mul_i32 {s["T1"]}, {s["T0"]}, {s["T0"]}\ns_lshl_b32 {s["T1"]}, {s["T1"]}, 13\ns_lshl_b32 {s["T0"]}, {s["T0"]}, 5')
        B(f's_add_u32 {self.sCen}, {s["T0"]}, {s["T1"]}\ns_add_u32 {self.sCen}, {self.sCen}, 1\ns_lshl_b32 {self.sCoff}, {s["G"]}, 4')
        B(f's_lshl_b32 {s["W1K"]}, {s["W"]}, 10\ns_lshl_b32 {s["T0"]}, {s["W"]}, 2\ns_add_u32 {self.sFme}, {self.sFme}, {s["T0"]}')
        self.ones = V.alloc(4, 2)
        for k in range(4): B(f'v_mov_b32 {self.ones[k]}, 0x3f803f80')
        B(f's_lshl_b32 {s["T0"]}, {s["W"]}, 12\nv_lshlrev_b32 {t1}, 11, {e}\nv_lshl_add_u32 {t1}, {ch}, 4, {t1}\nv_add_u32 {t1}, {s["T0"]}, {t1}')
        B(f's_mov_b64 exec, 0xffff\nds_write_b128 {t1}, {self.ones} offset:{L_HALO}\ns_mov_b64 exec, -1')
        B(f'v_mov_b32 v254, {L_SCR + 4092}')
        self.srd(B, 32, 8, 512*1024); self.srd(B, 40, 16, 1376*1024); self.srd(B, 44, 18, 2048*1024); self.srd(B, 52, 22, 0); self.srd(B, 56, 22, 0)
        B(f's_cmp_lt_u32 {s["W"]}, 2\ns_cselect_b32 s36, s12, s14\ns_cselect_b32 s37, s13, s15\ns_mov_b32 s38, {512*PITCH3}\ns_mov_b32 s39, 0x20000')
        S.free |= set(range(3, 20)) | {0, 1, 22, 23}
        self.sN3 = S.alloc(2); self.sInv512 = S.alloc()
        B(f's_cmp_lt_u32 {s["M"]}, 15\ns_cselect_b32 {self.sN3[0]}, s38, 0\ns_cmp_lt_u32 {s["M"]}, 14\ns_cselect_b32 {self.sN3[1]}, s38, 0')
        B(f's_mov_b32 {self.sInv512}, {fhex(1/512)}')
        self.vEps = V.alloc(); B(f'v_mov_b32 {self.vEps}, {fhex(1e-5)}')
        j = self.vJ = V.alloc(); g = self.vG = V.alloc(); self.vL16 = V.alloc()
        B(f'v_and_b32 {j}, 15, {vL}\nv_lshrrev_b32 {g}, 4, {vL}\nv_lshlrev_b32 {self.vL16}, 4, {vL}')
        self.aX = [V.alloc(), V.alloc()]; self.aXo = [V.alloc(), V.alloc()]; self.aW1 = V.alloc(); aHs = [V.alloc(), V.alloc()]
        B(f'v_lshrrev_b32 {t1}, 1, {j}\nv_xor_b32 {t1}, {t1}, {g}\nv_lshlrev_b32 {t1}, 4, {t1}\nv_lshl_add_u32 {self.aX[0]}, {j}, 7, {t1}\nv_xor_b32 {self.aX[1]}, 64, {self.aX[0]}')
        B(f'v_add_u32 {aHs[0]}, {s["T0"]}, {self.aX[0]}\nv_add_u32 {aHs[1]}, {s["T0"]}, {self.aX[1]}')
        B(f's_add_u32 {s["T0"]}, {self.sW2K}, {L_X}\nv_add_u32 {self.aXo[0]}, {s["T0"]}, {self.aX[0]}\nv_add_u32 {self.aXo[1]}, {s["T0"]}, {self.aX[1]}')
        ra = [V.alloc() for _ in range(4)]
        B(f'v_lshrrev_b32 {t1}, 1, {j}\nv_lshrrev_b32 {t2}, 1, {g}\nv_xor_b32 {t1}, {t1}, {t2}\nv_lshlrev_b32 {t1}, 4, {t1}\nv_and_b32 {t2}, 1, {g}\nv_lshl_add_u32 {t1}, {t2}, 3, {t1}')
        B(f'v_lshl_add_u32 {t1}, {j}, 7, {t1}\nv_add_u32 {ra[0]}, {s["T0"]}, {t1}')
        for ct in range(1, 4): B(f'v_xor_b32 {ra[ct]}, {ct*32}, {ra[0]}')
        self.vTRf = V.alloc(); self.vTRb = V.alloc()
        B(f'v_and_b32 {t1}, 3, {e}\nv_lshlrev_b32 {self.vTRf}, 5, {t1}')
        B(f'v_bfe_u32 {t1}, {vL}, 2, 2\nv_and_b32 {t2}, 3, {vL}\nv_lshlrev_b32 {t2}, 3, {t2}\nv_lshl_add_u32 {self.vTRb}, {t1}, 7, {t2}')
        B(f's_lshl_b32 {s["T0"]}, {s["W"]}, 5\nv_xor_b32 {t1}, {s["T0"]}, {self.vTRf}\nv_mul_u32_u24 {t2}, 3072, {g}\nv_add3_u32 {self.aW1}, {t1}, {t2}, {self.vTRb}\nv_add_u32 {self.aW1}, {L_W}, {self.aW1}')
        self.mB0 = S.alloc(2); self.mB1 = S.alloc(2); self.mDiag = S.alloc(2); mOwnA = S.alloc(2); mOwnB = S.alloc(2)
        B(f's_mov_b32 {self.mB0[0]}, 0xaaaaaaaa\ns_mov_b32 {self.mB0[1]}, 0xaaaaaaaa\ns_mov_b32 {self.mB1[0]}, 0xcccccccc\ns_mov_b32 {self.mB1[1]}, 0xcccccccc')
        B(f's_mov_b32 {self.mDiag[0]}, 0x00f0000f\ns_mov_b32 {self.mDiag[1]}, 0xf0000f00')
        def lanemask(fn):
            v = sum(1 << l for l in range(64) if fn(l & 15, l >> 4)); return v & 0xffffffff, v >> 32
        oa = lanemask(lambda jj, gg: 4*gg + (jj & 1) <= jj); ob = lanemask(lambda jj, gg: 4*gg + 2 + (jj & 1) <= jj)
        B(f's_mov_b32 {mOwnA[0]}, {hex(oa[0])}\ns_mov_b32 {mOwnA[1]}, {hex(oa[1])}\ns_mov_b32 {mOwnB[0]}, {hex(ob[0])}\ns_mov_b32 {mOwnB[1]}, {hex(ob[1])}')
        aTB = V.alloc(); aTBw = V.alloc(); aHPw = V.alloc(); aHPr = V.alloc()
        B(f'v_lshlrev_b32 {aTB}, 4, {j}\nv_add_u32 {aTB}, {SCR_TB}, {aTB}\nv_lshl_add_u32 {aTBw}, {s["W"]}, 8, {aTB}')
        B(f'v_lshlrev_b32 {aHPr}, 5, {j}\nv_add_u32 {aHPr}, {SCR_HP}, {aHPr}\nv_lshl_add_u32 {aHPw}, {s["W"]}, 3, {aHPr}')
        ka = V.alloc(); kb = V.alloc(); bias = V.alloc(2); sel = V.alloc(4)
        B(f'v_and_b32 {t1}, 1, {j}\nv_lshl_add_u32 {t1}, {g}, 2, {t1}\nv_lshlrev_b32 {t1}, 4, {t1}\nv_add_u32 {t1}, {SCR_TB + 8}, {t1}\nv_add_u32 {t2}, 256, {t1}')
        B(f'v_cndmask_b32 {ka}, {t1}, {t2}, {mOwnA}\nv_cndmask_b32 {kb}, {t1}, {t2}, {mOwnB}')
        B(f's_cmp_eq_u32 {s["BLK"]}, 0\ns_cselect_b32 {s["T0"]}, {fhex(-1e30)}, 0\nv_mov_b32 {t1}, {s["T0"]}\nv_mov_b32 {t3}, 0x0c0c0c0c')
        B(f'v_cndmask_b32 {bias[0]}, {t1}, 0, {mOwnA}\nv_cndmask_b32 {bias[1]}, {t1}, 0, {mOwnB}')
        B(f'v_mov_b32 {t1}, 0x0c0c0100\nv_mov_b32 {t2}, 0x01000c0c\nv_cndmask_b32 {t1}, {t1}, {t2}, {self.mB0}')
        B(f'v_cndmask_b32 {sel[0]}, {t1}, {t3}, {mOwnA}\nv_cndmask_b32 {sel[2]}, {t3}, {t1}, {mOwnA}')
        B(f'v_mov_b32 {t1}, 0x0c0c0302\nv_mov_b32 {t2}, 0x03020c0c\nv_cndmask_b32 {t1}, {t1}, {t2}, {self.mB0}')
        B(f'v_cndmask_b32 {sel[1]}, {t1}, {t3}, {mOwnB}\nv_cndmask_b32 {sel[3]}, {t3}, {t1}, {mOwnB}')
        self.sD = S.alloc(); self.vF = V.alloc(); self.vH = V.alloc(); self.vD = V.alloc()
        self.sBF = S.alloc(2); self.sBH = S.alloc(2); self.sR2 = S.alloc(4); self.sR3 = S.alloc(); self.sU = S.alloc(2)
        B(f's_and_b32 {s["PF"]}, {s["M"]}, 1\ns_mul_i32 {s["T0"]}, {s["M"]}, 192\ns_mul_i32 {s["T1"]}, {s["PF"]}, {PITCH3}')
        B(f's_add_u32 {s["T2"]}, {s["T0"]}, {s["T1"]}\ns_sub_u32 {s["T3"]}, {s["T0"]}, {s["T1"]}\ns_add_u32 {s["T3"]}, {s["T3"]}, {PITCH3}')
        B(f's_and_b32 {self.sR3}, {s["G"]}, 1\ns_lshl_b32 {self.sR3}, {self.sR3}, 2\ns_mul_i32 {s["T0"]}, {self.sR3}, {64*PITCH3}\ns_sub_u32 {s["T1"]}, {256*PITCH3}, {s["T0"]}')
        B(f's_add_u32 {self.sBF[0]}, {s["T2"]}, {s["T0"]}\ns_add_u32 {self.sBF[1]}, {s["T2"]}, {s["T1"]}\ns_add_u32 {self.sBH[0]}, {s["T3"]}, {s["T0"]}\ns_add_u32 {self.sBH[1]}, {s["T3"]}, {s["T1"]}')
        B(f's_and_b32 {s["T0"]}, {s["BLK"]}, 3\ns_lshl_b32 {s["T0"]}, {s["T0"]}, 17\ns_add_u32 {self.sR2[0]}, {s["T0"]}, {self.sC128}')
        for k in range(1, 4): B(f's_xor_b32 {self.sR2[k]}, {self.sR2[0]}, {k << 17}')
        B(f's_and_b32 {s["T0"]}, {s["W"]}, 1\ns_and_b32 {s["T1"]}, {s["W"]}, 2')
        B(f'v_and_b32 {t2}, 1, {e}\nv_lshl_add_u32 {t1}, {g}, 3, {t2}\nv_lshl_add_u32 {t1}, {s["T0"]}, 1, {t1}\nv_mul_u32_u24 {t1}, {2*PITCH3}, {t1}')
        B(f'v_and_b32 {t3}, 1, {g}\nv_or_b32 {t2}, {s["T1"]}, {t3}\nv_lshlrev_b32 {t2}, 1, {t2}\nv_xor_b32 {t2}, {t2}, {ch}\nv_lshl_add_u32 {self.vF}, {t2}, 4, {t1}')
        B(f'v_lshl_add_u32 {t1}, {s["T0"]}, 3, {e}\nv_lshlrev_b32 {t3}, 2, {t3}\nv_xor_b32 {t3}, {t3}, {ch}\nv_lshlrev_b32 {t3}, 4, {t3}\nv_lshl_add_u32 {self.vD}, {t1}, 10, {t3}')
        B(f'v_and_b32 {t1}, 3, {e}\nv_lshlrev_b32 {t1}, 3, {t1}\nv_lshrrev_b32 {t2}, 5, {vL}\nv_lshl_add_u32 {t1}, {t2}, 1, {t1}\nv_bfe_u32 {t2}, {vL}, 2, 1\nv_add_u32 {t1}, {t1}, {t2}\nv_lshl_add_u32 {t1}, {s["T0"]}, 2, {t1}\nv_mul_u32_u24 {t1}, {2*PITCH3}, {t1}')
        B(f'v_and_b32 {t2}, 3, {vL}\nv_xor_b32 {t2}, {s["T1"]}, {t2}\nv_lshl_add_u32 {self.vH}, {t2}, 4, {t1}')
        B(f's_lshl_b32 {s["T1"]}, {s["T1"]}, 13\ns_add_u32 {self.sU[0]}, {s["T1"]}, {self.sC128}\ns_mul_i32 {s["T1"]}, {s["T1"]}, 6\ns_add_u32 {self.sU[1]}, {s["T1"]}, {self.sC128}')
        self.sOst = S.alloc(); self.sHst = S.alloc(); vT = V.alloc(); v128 = self.v128 = V.alloc()
        if o['o_in_ws']: B(f's_lshl_b32 {self.sOst}, {s["SB"]}, 16\ns_add_u32 {self.sOst}, {self.sOst}, {s["GB"]}\ns_add_u32 {self.sOst}, {self.sOst}, {WS_O}')
        else: B(f's_lshl_b32 {self.sOst}, {s["BLK"]}, 16')
        B(f's_lshl_b32 {s["T1"]}, {s["C"]}, 13\ns_add_u32 {self.sOst}, {self.sOst}, {s["T1"]}\ns_add_u32 {self.sOst}, {self.sOst}, {self.sW2K}')
        B(f's_lshr_b32 {s["T1"]}, {s["W"]}, 1\ns_lshl_b32 {s["T2"]}, {s["SB"]}, 1\ns_add_u32 {s["T2"]}, {s["T2"]}, {s["T1"]}\ns_lshl_b32 {s["T2"]}, {s["T2"]}, 15')
        B(f's_lshl_b32 {s["T1"]}, {s["C"]}, 12\ns_add_u32 {s["T2"]}, {s["T2"]}, {s["T1"]}\ns_add_u32 {self.sHst}, {s["T2"]}, {s["GB"]}')
        B(f'v_lshlrev_b32 {v128}, 7, {vL}\ns_lshl_b32 {s["T0"]}, {s["T0"]}, 11\ns_add_u32 {s["T2"]}, {s["T2"]}, {s["T0"]}\nv_add_u32 {vT}, {s["T2"]}, {v128}')
        B(f's_lshl_b32 {s["T0"]}, {s["M"]}, 2\ns_add_u32 {s["T0"]}, {s["T0"]}, {s["W"]}\ns_lshl_b32 {s["T0"]}, {s["T0"]}, 7\ns_add_u32 {s["T1"]}, {s["T0"]}, {WS_ST}\nv_writelane_b32 {vT}, {s["T1"]}, 16')
        B(f's_and_b32 {s["T0"]}, {s["T0"]}, 0x380\ns_add_u32 {s["T1"]}, {s["T0"]}, {WS_FL}\nv_writelane_b32 {vT}, {s["T1"]}, 17')
        self.info['setupB'] = len(B.L)
        A.ext(sprinkle(B, groups, o['sp0'], start=o['sp0']))
        for r in (vHa, vHb, e, ch, sH, sZ): r.free()
        self.stamp('setup done')
        OSRD = self.WS if o['o_in_ws'] else self.OUT
        junk = V.alloc()
        def pf_group(kind):
            L = Asm()
            T0 = s["T0"]
            if kind == 'o': L(f's_mov_b64 exec, 0xffff\nbuffer_load_dword {junk}, {v128}, {OSRD}, {self.sOst} offen sc1')
            elif kind == 'h': L(f's_mov_b64 exec, 0x3ffff\nbuffer_load_dword {junk}, {vT}, {self.WS}, {s["GB"]} offen sc1')
            else:
                n, srd = {'wo': (4, self.WO), 'w3': (22, self.W3), 'wd': (11, self.WD)}[kind]
                if kind == 'w3': L(f's_and_b32 {T0}, {s["W"]}, 1\ns_lshl_b32 {s["T1"]}, s2, 1')
                else: L(f's_mov_b32 {T0}, {s["W"]}\ns_lshl_b32 {s["T1"]}, s2, 2')
                L(f's_add_u32 {T0}, {T0}, {s["T1"]}\ns_mul_i32 {T0}, {T0}, {n*128}')
                L(f's_mov_b64 exec, {hex((1 << n) - 1)}\nbuffer_load_dword {junk}, {v128}, {srd}, {T0} offen sc1')
            L('s_mov_b64 exec, -1')
            for x in L.L:
                if x.kind == 'vmem': x.defs = set()
            pre = [x for x in L.L[:-3]]
            return pre + [L.L[-3:]]
        self.aQ = [V.alloc(4, 2) for _ in range(5)]; self.aK = [V.alloc(4, 2) for _ in range(5)]; self.aV = [V.alloc(4, 2) for _ in range(5)]
        self.stG = V.alloc(4, 2); self.stS = V.alloc(4, 2)
        bufs = [([AG.alloc(4, 4) for _ in range(3)], [AG.alloc(4, 4) for _ in range(5)], AG.alloc(4, 4)) for _ in range(2)]
        hb = bufs[1][1]
        A('@waitvm halo')
        self.stamp('halo landed')
        for q in range(4): A(f'ds_read_b128 {hb[q]}, {aHs[q & 1]} offset:{L_HALO + (q >> 1)*2048}')
        for q in range(4):
            A(f'v_mfma_f32_16x16x32_bf16 {self.stG}, {hb[q]}, {hb[q]}, {self.stG if q else 0}')
            A(f'v_mfma_f32_16x16x32_bf16 {self.stS}, {self.ones}, {hb[q]}, {self.stS if q else 0}')
        A.ext(self.diag_code(self.stG, self.stS[1]))
        A(f's_mov_b64 exec, {self.mDiag}\nds_write_b64 {aHPw}, {self.stS.sub(0, 2)}\ns_mov_b64 exec, -1')
        A('@waitlg0\n@waitvm ch0\ns_barrier')
        self.stamp('chunk0 visible')
        A.ext(self.p1_reads(0, 0, bufs[0]))
        self.resx = V.alloc(8, 2); hp = V.alloc(8, 2); tb4 = V.alloc(4, 2)
        extra = [Ins(f'ds_read_b128 {hp.sub(0, 4)}, {aHPr}'), Ins(f'ds_read_b128 {hp.sub(4, 4)}, {aHPr} offset:16')]
        extra += [Ins(f'ds_read_b64 {self.resx.sub(2*ct, 2)}, {ra[ct]}') for ct in range(4)]
        hs = Asm()
        for a_, b_ in ((0, 2), (1, 3), (4, 6), (5, 7), (0, 4), (1, 5)): hs(f'v_add_f32 {hp[a_]}, {hp[a_]}, {hp[b_]}')
        hs.ext(self.stats_code(hp[1], hp[0], tb4)); hs(f'ds_write_b128 {aTB}, {tb4}')
        flat = lambda gs: [x for gq in gs for x in gq]
        misc = flat(self.p1_chunk_dma(2))
        self.gap_since_vm = 99
        for n in range(16):
            i, st = n >> 1, n & 1
            if n: A('@waitlg0')
            if o.get('fine') and st == 0: self.stamp(f'p1 chunk {i}')
            if st == 1 and i < 7:
                A(f'@waitvm ch{i+1}\ns_barrier')
                if i == 4: A('@minlg 0')
                if i + 3 < 8: misc += flat(self.p1_chunk_dma(i + 3))
                if i == 4: misc += [Ins(f'v_mov_b32 {t1}, {self.sCoff}'), Ins(f'global_load_dword {t2}, {t1}, s[20:21] sc1')]
                for kind, at in o['pf'].items():
                    if at == i: misc += pf_group(kind)
                if i == 5:
                    self.free_blocks += [23, 24, 25, 26, 27]
                    misc += flat(self.dmas(16))
                if i == 6: self.free_blocks += [22, 8, 9] + list(range(10, 16)) + [4, 5]
            if n == 2: misc[:0] = hs.L
            mf = self.p1_mfmas(bufs[n & 1], n == 0)
            if n < 15:
                rd = self.p1_reads((n + 1) >> 1, (n + 1) & 1, bufs[(n + 1) & 1])
                if n == 0: rd = rd + extra
                self.weave16(mf, rd, misc, vgap=3 if n < 2 else 4)
            else:
                code = self.diag_code(self.stG, self.stS[1]) + self.stats_code(self.stS[1], self.stS[0], tb4)
                code.append([Ins(f's_mov_b64 exec, {self.mDiag}'), Ins(f'ds_write_b128 {aTBw}, {tb4} offset:256'), Ins('s_mov_b64 exec, -1')])
                self.weave16(mf[:5], [], misc)
                self.weave16(mf[5:13], [], code); assert not code
                self.weave16(mf[13:], [], misc)
        self.stamp('p1 gemm done')
        for b in bufs:
            for r in b[0] + b[1] + [b[2]]: r.free()
        for r in ra + aHs + [hp, aHPw, aHPr, aTBw, vT, junk, tb4, self.stG, self.stS, self.aW1, self.vXa, self.vXb, self.vW1] + self.aX + self.aXo: r.free()
        left = []; cur = []
        for x in misc:
            cur += x if isinstance(x, list) else [x]
            if any(y.kind == 'vmem' for y in cur): left.append(cur); cur = []
        assert not cur
        self.info['w2_left'] = len(left)
        if left: A.ext(left.pop(0))
        A(f'v_readfirstlane_b32 {self.sCv}, {t2}\n@waitlg0\ns_barrier')
        self.free_blocks += list(range(16, 22)) + [6, 7, 0, 1, 2, 3]
        tb = [V.alloc(4, 2) for _ in range(5)]
        for t in range(5): A(f'ds_read_b128 {tb[t]}, {aTB} offset:{t*256}')
        rk = [None] + [V.alloc(2) for _ in range(4)]
        for t in range(1, 5): A(f'ds_read_b32 {rk[t][0]}, {ka} offset:{(t-1)*256}\nds_read_b32 {rk[t][1]}, {kb} offset:{(t-1)*256 + 32}')
        olo = 48 if o['o_in_ws'] else 44; osz = o['ws_base'] + WS_SIZE if o['o_in_ws'] else 2048*1024
        A(f's_mov_b32 s24, s{olo}\ns_mov_b32 s25, s{olo+1}\ns_mov_b32 s28, s{olo}\ns_mov_b32 s29, s{olo+1}')
        A(f's_mov_b32 s26, {osz}\ns_mov_b32 s30, 0\ns_mov_b32 s54, s50')
        A(f's_lshl_b32 {s["T0"]}, {self.sCen}, 4\ns_cmp_eq_u32 {s["T0"]}, {self.sCv}')
        if o['force_slow']: A('s_cmp_eq_u32 0, 1')
        A('s_cbranch_scc0 L_notfast\nL_mode_ok:')
        T = self.tail
        T(f'L_notfast:\ns_mov_b32 {s["T1"]}, 0x8000\nL_cen_loop:\nglobal_load_dword {t2}, {t1}, s[20:21] sc1\ns_waitcnt vmcnt(0)\nv_readfirstlane_b32 {self.sCv}, {t2}')
        T(f's_sub_u32 {s["T1"]}, {s["T1"]}, 1\ns_cbranch_scc1 L_cen_done\ns_and_b32 {s["T2"]}, {self.sCv}, 31\ns_cmp_lt_u32 {s["T2"]}, 16\ns_cbranch_scc1 L_cen_loop\nL_cen_done:')
        if not o['force_slow']: T(f's_cmp_eq_u32 {s["T0"]}, {self.sCv}\ns_cbranch_scc1 L_mode_ok')
        T(f's_mov_b32 s26, 0\ns_mov_b32 s30, {osz}\ns_mov_b32 s54, 0\ns_mov_b32 s58, s50')
        T(f's_add_u32 {s["FL"]}, {s["FL"]}, {FL_SLOW}\ns_add_u32 {self.sFme}, {self.sFme}, {FL_SLOW}\ns_mov_b64 exec, 0x111\nv_mov_b32 {t2}, 0')
        T(f'buffer_store_dword {t2}, {self.vFz}, {self.WS}, {self.sFme} offen sc1\ns_waitcnt vmcnt(0)\ns_mov_b64 exec, 1\nv_mov_b32 {t2}, 1')
        T(f'global_atomic_add {t1}, {t2}, s[20:21] offset:4 sc1\ns_mov_b64 exec, -1\ns_mov_b32 {s["T1"]}, 0x8000')
        T(f'L_slow_loop:\nglobal_load_dword {t2}, {t1}, s[20:21] offset:4 sc1\ns_waitcnt vmcnt(0)\nv_readfirstlane_b32 {s["T0"]}, {t2}')
        T(f's_sub_u32 {s["T1"]}, {s["T1"]}, 1\ns_cbranch_scc1 L_mode_ok\ns_cmp_lt_u32 {s["T0"]}, 64\ns_cbranch_scc1 L_slow_loop\ns_branch L_mode_ok')
        E = Asm()
        csq = V.alloc(4, 2); csk = V.alloc(4, 2); csv = V.alloc(2, 2)
        for r in range(4): E(f'v_mov_b32_dpp {csk[r]}, {self.aK[0][r]} row_newbcast:0 row_mask:0xf bank_mask:0xf')
        for r in range(4): E(f'v_mov_b32_dpp {csq[r]}, {self.aQ[0][r]} row_newbcast:0 row_mask:0xf bank_mask:0xf')
        E(f'v_cvt_pk_bf16_f32 {t1}, {self.aV[0][0]}, {self.aV[0][0]}\nv_mov_b32 {csv[0]}, 0\nv_and_b32 {t1}, 0xffff0000, {t1}\nv_mov_b32 {csv[1]}, 0\nv_sub_f32 {t2}, {self.aV[0][0]}, {t1}')
        E(f's_mov_b64 exec, 0xffff\nv_cvt_pk_bf16_f32 {csv[1]}, {t1}, {t2}\ns_mov_b64 exec, -1')
        Kp = V.alloc(10, 2); Qp = V.alloc(10, 2); Vp = V.alloc(10, 2)
        def fixf(acc, cs, t):
            for h in range(2): E(f'v_pk_fma_f32 {acc[t].sub(2*h, 2)}, {cs.sub(2*h, 2)}, {tb[t].sub(0, 2)}, {acc[t].sub(2*h, 2)} op_sel_hi:[1,0,1]')
        fixf(self.aK, csk, 0)
        for t in range(1, 5): fixf(self.aK, csk, t); fixf(self.aQ, csq, t)
        zs = [None] + [V.alloc(2) for _ in range(4)]
        for t in range(1, 5): E(f'v_pk_mul_f32 {zs[t]}, {rk[t]}, {tb[t].sub(2, 2)} op_sel:[0,1] op_sel_hi:[1,1]')
        cv = lambda acc, dst, t: [f'v_cvt_pk_bf16_f32 {dst[2*t + h]}, {acc[t][2*h]}, {acc[t][2*h+1]}' for h in range(2)]
        vm = [f'v_mfma_f32_16x16x16_bf16 {self.aV[t]}, {tb[t].sub(0, 2)}, {csv}, {self.aV[t]}' for t in range(5)]
        cvs = cv(self.aK, Kp, 0)
        for t in range(1, 5): cvs += cv(self.aK, Kp, t) + cv(self.aQ, Qp, t)
        for t in range(5):
            E(vm[t]); E(cvs.pop(0)); E(cvs.pop(0))
        Sp, So = self.aK, self.aQ
        Sp = [None] + self.aK[0:4]; So = [None] + self.aQ[0:4]
        for t in range(1, 5):
            E(f'v_mfma_f32_16x16x16_bf16 {Sp[t]}, {Kp.sub(2*t-2, 2)}, {Qp.sub(2*t, 2)}, 0')
            for _ in range(2):
                if cvs: E(cvs.pop(0))
            E(f'v_mfma_f32_16x16x16_bf16 {So[t]}, {Kp.sub(2*t, 2)}, {Qp.sub(2*t, 2)}, 0')
            for _ in range(2):
                if cvs: E(cvs.pop(0))
        z = [None] + [V.alloc(2) for _ in range(4)]
        for t in range(1, 5):
            for h, mk in ((0, mOwnA), (1, mOwnB)):
                E(f'v_cndmask_b32 {Sp[t][2*h]}, {Sp[t][2*h]}, {Sp[t][2*h+1]}, {self.mB0}\nv_cndmask_b32 {So[t][2*h]}, {So[t][2*h]}, {So[t][2*h+1]}, {self.mB0}')
                E(f'v_cndmask_b32 {z[t][h]}, {Sp[t][2*h]}, {So[t][2*h]}, {mk}')
        E(f'v_pk_fma_f32 {z[1]}, {z[1]}, {zs[1]}, {bias}')
        for t in range(2, 5): E(f'v_pk_mul_f32 {z[t]}, {z[t]}, {zs[t]}')
        red = zs
        fl = [x for t in range(5) for x in cv(self.aV, Vp, t)]
        def fill(n):
            for _ in range(n):
                if fl: E(fl.pop(0))
        def allreduce(op, mid=None):
            r = [None] + [red[t][0] for t in range(1, 5)]
            for t in (1, 3, 2, 4): E(f'{op} {r[t]}, {z[t][0]}, {z[t][1]}')
            E(f'v_permlane32_swap_b32 {r[1]}, {r[3]}'); fill(1)
            E(f'v_permlane32_swap_b32 {r[2]}, {r[4]}')
            E(f'{op} {r[1]}, {r[1]}, {r[3]}\n{op} {r[2]}, {r[2]}, {r[4]}'); fill(2)
            E(f'v_permlane16_swap_b32 {r[1]}, {r[2]}')
            E(f'{op} {r[1]}, {r[1]}, {r[2]}')
            if mid: E(f'{mid} {r[1]}, {r[1]}'); fill(1)
            E(f'v_mov_b32 {r[2]}, {r[1]}'); fill(2)
            E(f'v_permlane16_swap_b32 {r[1]}, {r[2]}')
            E(f'v_mov_b32 {r[3]}, {r[1]}\nv_mov_b32 {r[4]}, {r[2]}'); fill(1)
            E(f'v_permlane32_swap_b32 {r[1]}, {r[3]}\nv_permlane32_swap_b32 {r[2]}, {r[4]}')
        allreduce('v_max_f32')
        for t in range(1, 5): E(f'v_pk_add_f32 {z[t]}, {z[t]}, {red[t]} op_sel_hi:[1,0] neg_lo:[0,1] neg_hi:[0,1]')
        for t in range(1, 5): E(f'v_exp_f32 {z[t][0]}, {z[t][0]}\nv_exp_f32 {z[t][1]}, {z[t][1]}')
        fl += [f'v_pk_mul_f32 {rk[t]}, {z[t]}, {rk[t]}' for t in range(1, 5)]
        allreduce('v_add_f32', 'v_rcp_f32')
        fill(20)
        for t in range(1, 5): E(f'v_pk_mul_f32 {z[t]}, {rk[t]}, {red[t]} op_sel_hi:[1,0]')
        for t in range(1, 5): E(f'v_cvt_pk_bf16_f32 {z[t][0]}, {z[t][0]}, {z[t][1]}')
        P = Sp; O = So
        for t in range(1, 5):
            for q in range(4):
                E(f'v_perm_b32 {P[t][q]}, {z[t][0]}, {z[t][0]}, {sel[q]}')
                if q == 1 and t > 1: E(f'v_mfma_f32_16x16x32_bf16 {O[t-1]}, {Vp.sub(2*t-4, 4)}, {P[t-1]}, 0')
        of = [self.aV[0], self.aV[1]]
        oc = lambda t: [f'v_cvt_pk_bf16_f32 {of[(t-1) >> 1][2*((t-1) & 1) + h]}, {O[t][2*h]}, {O[t][2*h+1]}' for h in range(2)]
        for x in oc(1): E(x)
        E(f'v_mfma_f32_16x16x32_bf16 {O[4]}, {Vp.sub(6, 4)}, {P[4]}, 0')
        groups = left + self.dmas(o['b_epi'])
        A.ext(sprinkle(E, groups, o.get('sp1', 18), start=8))
        for x in oc(2) + oc(3): A(x)
        A(f'v_permlane16_swap_b32 {of[0][0]}, {of[0][2]}\nv_permlane16_swap_b32 {of[0][1]}, {of[0][3]}')
        for x in oc(4): A(x)
        self.store2(A, 'dwordx4', of[0], self.vL16, self.sOst, 0, 'ost', (self.X, self.WQ))
        A(f'v_permlane16_swap_b32 {of[1][0]}, {of[1][2]}\nv_permlane16_swap_b32 {of[1][1]}, {of[1][3]}')
        self.store2(A, 'dwordx4', of[1], self.vL16, self.sOst, 1024, 'ost', (self.X, self.WQ))
        self.stamp('o stored')
        self.OSRD = OSRD
        for r in tb + rk[1:] + zs[1:] + z[1:] + [csq, csk, csv, Kp, Qp, Vp, bias, sel, aTB, ka, kb, self.vFz] + self.aQ + self.aK + self.aV[2:]: r.free()
        for r in (mOwnA, mOwnB, self.sCen, self.sCoff, self.sCv, self.sW3K, self.sKC, self.sSO): r.free()
        self.of = of

    def phase2(self):
        A, V, S, AG, s, vL, o = self.A, self.V, self.S, self.AG, self.s, self.vL, self.o
        t1, t2, t3, j, g = self.t1, self.t2, self.t3, self.vJ, self.vG
        self.vFv = V.alloc(); self.vPv = V.alloc()
        assert ('W2', 15) in self.loc
        aw = [V.alloc() for _ in range(4)]
        A(f'v_lshl_add_u32 {t1}, {g}, 10, {self.vTRb}\nv_add_u32 {t1}, {23*BLK}, {t1}')
        for ct in range(4): A(f'v_xor_b32 {t2}, {ct*32}, {self.vTRf}\nv_add_u32 {aw[ct]}, {t1}, {t2}')
        pa = V.alloc(); oa = V.alloc(); hv = V.alloc(); sSt = S.alloc(); vj16 = V.alloc(); aRw = V.alloc()
        A(f's_lshl_b32 {s["T0"]}, {s["SB"]}, 7\nv_and_b32 {t1}, 31, {vL}\nv_lshl_add_u32 {pa}, {t1}, 2, {s["T0"]}')
        A(f's_lshr_b32 {s["T0"]}, {s["W"]}, 1\ns_lshl_b32 {s["T0"]}, {s["T0"]}, 10\ns_and_b32 {s["T1"]}, {s["W"]}, 1\ns_lshl_b32 {s["T1"]}, {s["T1"]}, 8')
        A(f'v_lshlrev_b32 {vj16}, 4, {j}\nv_and_b32 {t1}, 1, {g}\nv_lshl_add_u32 {t1}, {t1}, 9, {vj16}\nv_lshrrev_b32 {t2}, 1, {g}\nv_lshl_add_u32 {t1}, {t2}, 11, {t1}\nv_add_u32 {hv}, {s["T1"]}, {t1}\nv_add_u32 {oa}, {s["T0"]}, {hv}')
        A(f's_and_b32 {s["T2"]}, {self.sOst}, 0xffff0000\ns_and_b32 {s["T3"]}, {s["BLK"]}, 3\ns_lshl_b32 {s["T3"]}, {s["T3"]}, 14\ns_add_u32 {self.sR2[0]}, {s["T2"]}, {s["T3"]}')
        for k in range(1, 4): A(f's_xor_b32 {self.sR2[k]}, {self.sR2[0]}, {k << 14}')
        acc = [V.alloc(4, 2) for _ in range(4)]
        for ct in range(4):
            for h in range(2):
                A(f'v_lshlrev_b32 {acc[ct][2*h]}, 16, {self.resx[2*ct+h]}\nv_and_b32 {acc[ct][2*h+1]}, 0xffff0000, {self.resx[2*ct+h]}')
        A(f's_lshl_b32 {s["T0"]}, {s["T0"]}, 1\ns_add_u32 {sSt}, {s["T0"]}, {s["T1"]}\ns_lshl_b32 {s["T0"]}, {s["SB"]}, 12\ns_add_u32 {sSt}, {sSt}, {s["T0"]}')
        A(f's_and_b32 {s["T0"]}, {s["C"]}, 2\ns_lshl_b32 {s["T0"]}, {s["T0"]}, 9\ns_add_u32 {sSt}, {sSt}, {s["T0"]}\ns_and_b32 {s["T0"]}, {s["C"]}, 4\ns_lshl_b32 {s["T0"]}, {s["T0"]}, 7\ns_add_u32 {sSt}, {sSt}, {s["T0"]}')
        A(f's_and_b32 {s["T0"]}, {s["C"]}, 1\ns_lshl_b32 {s["T0"]}, {s["T0"]}, 3\ns_add_u32 {sSt}, {sSt}, {s["T0"]}\ns_add_u32 {sSt}, {sSt}, {s["GB"]}\ns_add_u32 {sSt}, {sSt}, {WS_ST}')
        A('@waitvm ost')
        for r in self.of: r.free()
        self.stamp('o drained')
        A.ext(self.signal(0, 1))
        A('@waitvm W2_15\ns_barrier')
        Wf = [[AG.alloc(4, 4) for _ in range(4)] for _ in range(16)]
        def rd(i):
            off = (self.loc[('W2', i)] - 23)*BLK
            return [Ins(f'ds_read_b64_tr_b16 {Wf[i][ct].sub(2*a, 2)}, {aw[ct]} offset:{off + a*512}') for ct in range(4) for a in range(2)]
        npre = o['w2pre']
        A.ext(sprinkle([x for i in range(npre) for x in rd(i)], self.dmas(o['b_post1']), 8))
        self.poll_block(A, pa, 1); A('@drained_vm')
        self.stamp('sync1 done')
        Of = [V.alloc(4, 2) for _ in range(16)]
        ld = [[Ins(f's_add_u32 {s["T1"]}, {self.sR2[i >> 2]}, {(i & 3) << 12}'), Ins(f'buffer_load_dwordx4 {Of[i]}, {oa}, {self.OSRD}, {s["T1"]} offen sc1')] for i in range(16)]
        rest = [x for i in range(npre, 16) for x in rd(i)]
        LO = o['LO']
        for i in range(LO):
            A.ext(ld[i]); A.ext(rest[:5]); rest = rest[5:]
        misc = [x for gq in ld[LO:] + self.dmas(o['b_o']) for x in gq]
        mf = [Ins(f'v_mfma_f32_16x16x32_bf16 {acc[ct]}, {Wf[i][ct]}, {Of[i]}, {acc[ct]}') for i in range(16) for ct in range(4)]
        assert len(rest) <= 52, len(rest)
        self.gap_since_vm = 99
        self.weave16(mf, rest, misc)
        A.ext(misc)
        self.stamp('p2 gemm done')
        w2b = sorted(self.loc[('W2', i)] for i in range(16))
        self.resb = w2b[0]; assert w2b[1] == w2b[0] + 1
        A(f's_add_u32 {s["T0"]}, {self.sW2K}, {self.resb*BLK}\nv_lshlrev_b32 {t1}, 7, {j}\nv_lshl_add_u32 {t1}, {g}, 3, {t1}')
        A(f'v_bfe_u32 {t2}, {j}, 0, 2\nv_lshl_add_u32 {t1}, {t2}, 5, {t1}\nv_add_u32 {aRw}, {s["T0"]}, {t1}\ns_barrier')
        self.free_blocks += w2b[2:]
        hf = [Of[0], Of[1]]; G4, S4 = Of[2], Of[3]
        for par in range(2):
            for ct in range(4): A(f'v_cvt_pk_bf16_f32 {hf[par][ct]}, {acc[ct][par]}, {acc[ct][2+par]}')
        rp = Reg('v', Of[4].b, 8); assert Of[5].b == Of[4].b + 4
        rc = [f'v_cvt_pk_bf16_f32 {rp[2*ct+h]}, {acc[ct][2*h]}, {acc[ct][2*h+1]}' for ct in range(4) for h in range(2)]
        A(f'v_mfma_f32_16x16x32_bf16 {G4}, {hf[0]}, {hf[0]}, 0')
        self.store2(A, 'dwordx4', hf[0], hv, self.sHst, 0, 'hst')
        A(f'v_mfma_f32_16x16x32_bf16 {G4}, {hf[1]}, {hf[1]}, {G4}')
        A(f'v_mfma_f32_16x16x32_bf16 {S4}, {self.ones}, {hf[0]}, 0')
        A(f'v_mfma_f32_16x16x32_bf16 {S4}, {self.ones}, {hf[1]}, {S4}')
        self.store2(A, 'dwordx4', hf[1], hv, self.sHst, 1024, 'hst')
        d = self.diag_code(G4, S4[1])
        A('\n'.join(rc[:3])); A.ext(d[:2]); A(rc[3]); A.ext(d[2:])
        A(f's_mov_b64 exec, {self.mDiag}')
        self.store2(A, 'dwordx2', S4.sub(0, 2), vj16, sSt, 0, 'hst')
        A('s_mov_b64 exec, -1')
        self.stamp('h stored')
        A('\n'.join(rc[4:]))
        A(f'ds_write_b64 {aRw}, {rp.sub(0, 2)}')
        for ct in range(1, 4): A(f'v_xor_b32 {t1}, {ct*32}, {aRw}\nds_write_b64 {t1}, {rp.sub(2*ct, 2)}')
        for r in aw + [pa, oa, hv, vj16, aRw] + acc + Of[6:] + [x for y in Wf for x in y] + [self.vW2, self.mB0, self.mB1, self.mDiag, self.sR2, sSt, self.sOst, self.sHst, self.ones]: r.free()
        self.late_free = Of[:6]

    def phase34(self):
        A, V, S, AG, s, vL, o = self.A, self.V, self.S, self.AG, self.s, self.vL, self.o
        t1, t2, t3, j, g = self.t1, self.t2, self.t3, self.vJ, self.vG
        P = Asm()
        Q = Asm()
        class Win:
            def __init__(w, base): w.r = {0: base}
            def need(w, k):
                if k in w.r: return []
                w.r[k] = V.alloc()
                return [Ins(f'v_add_u32 {w.r[k]}, {k << 16}, {w.r[0]}')]
        aF, aH, aD = [], [], []
        P(f'v_and_b32 {t1}, 1, {g}\nv_lshlrev_b32 {t1}, 11, {t1}\nv_lshrrev_b32 {t2}, 1, {g}\nv_lshl_add_u32 {t3}, {t2}, 10, {t1}')
        b0 = V.alloc(); P(f'v_add3_u32 {b0}, {t3}, {self.vTRb}, {self.vTRf}'); aF.append(Win(b0))
        for uu in range(1, 4):
            b = V.alloc(); P(f'v_xor_b32 {b}, {uu*32}, {b0}'); aF.append(Win(b))
        b0 = V.alloc(); b1 = V.alloc()
        P(f'v_lshl_add_u32 {t3}, {t2}, 9, {t1}\nv_bfe_u32 {t1}, {vL}, 2, 2\nv_lshl_add_u32 {t3}, {t1}, 6, {t3}\nv_and_b32 {t1}, 3, {vL}\nv_lshl_add_u32 {t3}, {t1}, 3, {t3}\nv_and_b32 {t1}, 1, {g}\nv_lshl_add_u32 {b0}, {t1}, 5, {t3}\nv_xor_b32 {b1}, 32, {b0}')
        aH = [Win(b0), Win(b1)]
        P(f's_and_b32 {s["T1"]}, {s["W"]}, 2\nv_or_b32 {t1}, {s["T1"]}, {t1}\nv_lshlrev_b32 {t1}, 5, {t1}')
        b = V.alloc(); P(f'v_xor_b32 {b}, {t1}, {self.vL16}\nv_add_u32 {b}, {s["W1K"]}, {b}'); aCF = Win(b)
        b = V.alloc(); P(f's_lshl_b32 {s["T1"]}, {s["T1"]}, 4\nv_xor_b32 {b}, {s["T1"]}, {self.vL16}\nv_add_u32 {b}, {s["W1K"]}, {b}'); aCH = Win(b)
        delta = V.alloc(4, 2)
        P(f'v_and_b32 {t1}, 1, {j}\nv_lshlrev_b32 {t1}, 4, {t1}\nv_mov_b32 {t2}, 0x3f80\nv_lshlrev_b32 {t1}, {t1}, {t2}')
        for d in range(4):
            mk = 0x00030003 << (2*d)
            P(f's_mov_b32 vcc_lo, {hex(mk)}\ns_mov_b32 vcc_hi, {hex(mk)}\nv_cndmask_b32 {delta[d]}, 0, {t1}, vcc')
        pa2 = V.alloc(); pa3 = V.alloc(); aRes = V.alloc()
        sT4 = S.alloc(); sGst = S.alloc(); sGld = S.alloc(2); sHF = S.alloc(2); sHH = S.alloc(2); sKH = S.alloc(); sTH = S.alloc(); sSl = S.alloc(); sGs2 = S.alloc()
        P(f's_lshr_b32 {sKH}, {s["W"]}, 1\ns_and_b32 {sTH}, {s["W"]}, 1')
        P(f's_lshl_b32 {s["T1"]}, {sKH}, 7\ns_lshl_b32 {s["T2"]}, {sTH}, 3\ns_add_u32 {s["T1"]}, {s["T1"]}, {s["T2"]}\ns_add_u32 {s["T1"]}, {s["T1"]}, 256')
        P(f'v_lshrrev_b32 {t1}, 1, {j}\nv_lshl_add_u32 {t1}, {t1}, 4, {s["T1"]}\nv_and_b32 {t2}, 1, {j}\nv_lshl_add_u32 {pa2}, {t2}, 2, {t1}')
        P(f's_lshl_b32 {s["T1"]}, {s["W"]}, 15\ns_add_u32 {s["T1"]}, {s["T1"]}, {s["GB"]}\ns_lshl_b32 {s["T2"]}, {s["PF"]}, 10\ns_add_u32 {s["T1"]}, {s["T1"]}, {s["T2"]}')
        P(f's_lshl_b32 {s["T2"]}, {self.sR3}, 12\ns_add_u32 {sHF[0]}, {s["T1"]}, {s["T2"]}\ns_xor_b32 {sHF[1]}, {sHF[0]}, 0x4000\ns_xor_b32 {sHH[0]}, {sHF[0]}, 1024\ns_xor_b32 {sHH[1]}, {sHF[1]}, 1024')
        P(f's_lshl_b32 {s["T2"]}, {sTH}, 12\ns_add_u32 {s["T2"]}, {s["T2"]}, {self.resb*BLK}\nv_lshrrev_b32 {t2}, 5, {vL}\nv_lshl_add_u32 {t2}, {sKH}, 1, {t2}\nv_and_b32 {t1}, 3, {vL}\nv_xor_b32 {t2}, {t2}, {t1}')
        P(f'v_and_b32 {t1}, 31, {vL}\nv_lshl_add_u32 {t1}, {t1}, 7, {s["T2"]}\nv_lshl_add_u32 {aRes}, {t2}, 5, {t1}')
        Q(f's_add_u32 {s["T3"]}, {s["GB"]}, {WS_G}\ns_mul_i32 {sGst}, {s["W"]}, {96*KB}\ns_add_u32 {sGst}, {sGst}, {s["T3"]}\ns_mul_i32 {s["T2"]}, {s["M"]}, {6*KB}\ns_add_u32 {sGst}, {sGst}, {s["T2"]}')
        Q(f's_add_u32 {sGs2}, {sGst}, 4096\ns_add_u32 {sSl}, {self.sW2K}, {s["GB"]}\ns_add_u32 {sSl}, {sSl}, {WS_ST}')
        Q(f's_lshl_b32 {sT4}, {s["SB"]}, 1\ns_add_u32 {sT4}, {sT4}, {sTH}')
        Q(f's_mul_i32 {s["T2"]}, {sT4}, {96*KB}\ns_add_u32 {s["T3"]}, {s["T3"]}, {s["T2"]}\ns_lshl_b32 {s["T2"]}, {sKH}, 10\ns_add_u32 {sGld[0]}, {s["T3"]}, {s["T2"]}\ns_mul_i32 {s["T2"]}, {s["T2"]}, 6\ns_add_u32 {sGld[1]}, {s["T3"]}, {s["T2"]}')
        Q(f's_lshl_b32 {s["T2"]}, {sT4}, 2\ns_add_u32 {s["T2"]}, {s["T2"]}, 512\nv_lshl_add_u32 {pa3}, {j}, 4, {s["T2"]}')
        Q(f'v_bfe_u32 {t1}, {vL}, 2, 2\nv_lshrrev_b32 {t2}, 1, {g}\nv_lshl_add_u32 {t1}, {t2}, 2, {t1}\nv_lshlrev_b32 {t3}, 7, {t1}\nv_bfe_u32 {t1}, {vL}, 3, 1\nv_lshl_add_u32 {t3}, {t1}, 6, {t3}')
        Q(f'v_and_b32 {t1}, 1, {vL}\nv_lshl_add_u32 {t3}, {t1}, 5, {t3}\nv_and_b32 {t1}, 1, {g}\nv_lshl_add_u32 {t3}, {t1}, 4, {t3}\nv_bfe_u32 {t1}, {vL}, 1, 1\nv_lshl_add_u32 {t3}, {t1}, 3, {t3}')
        b0 = V.alloc(); b1 = V.alloc()
        Q(f's_mul_i32 {s["T2"]}, {sKH}, {2048 + 64}\nv_xor_b32 {b0}, {s["T2"]}, {t3}\nv_xor_b32 {b1}, 64, {b0}')
        aD = [Win(b0), Win(b1)]
        aCW = V.alloc(); aCR = V.alloc()
        Q(f's_lshl_b32 {s["T2"]}, {sTH}, 10\ns_lshl_b32 {s["T3"]}, {sKH}, 9\ns_add_u32 {s["T2"]}, {s["T2"]}, {s["T3"]}\ns_add_u32 {s["T2"]}, {s["T2"]}, {SCR_CS}')
        Q(f'v_lshl_add_u32 {t1}, {g}, 4, {s["T2"]}\nv_lshl_add_u32 {aCW}, {j}, 5, {t1}')
        Q(f'v_and_b32 {t1}, 1, {g}\nv_lshlrev_b32 {t1}, 9, {t1}\nv_lshl_add_u32 {t1}, {j}, 2, {t1}\nv_lshl_add_u32 {t1}, {t2}, 11, {t1}\nv_add_u32 {aCR}, {SCR_CS}, {t1}')
        cA = V.alloc(4, 2); cB = V.alloc(4, 2); cT = V.alloc(2)
        for r in (cA, cB):
            for k in range(1, 4): Q(f'v_mov_b32 {r[k]}, 0')
        self.info['setupP'] = len(P.L); self.info['setupQ'] = len(Q.L)
        HB = {('F', i): AG.at(8*i, 4) for i in range(16)}; HB.update({('H', i): AG.at(8*i + 4, 4) for i in range(16)})
        ops = []
        def op3(u, ty, i):
            if ty == 'F':
                if u < 4: key, ad, st, ex = ('F1', i), aF[u], 512, 0
                else: key, ad, st, ex = ('S3', i >> 1), aH[u - 4], 256, (i & 1)*1024
            else:
                if u < 2: key, ad, st, ex = ('H1', i >> 1), aH[u], 256, (i & 1)*1024
                else: key, ad, st, ex = ('S2', i), aF[u - 2], 512, 0
            ops.append(dict(k='m', u=u, key=key, ad=ad, st=st, ex=ex, B=HB[(ty, i)], hk=(ty, i)))
        if o['order'] == 'pair':
            for i in range(16):
                for ty in 'FH':
                    for u in (0, 1): op3(u, ty, i)
            for i in range(16):
                for u in (2, 3): op3(u, 'F', i)
        else:
            for i in range(16):
                for u in range(4): op3(u, 'F', i)
                for u in (0, 1): op3(u, 'H', i)
        for u in (2, 3):
            for i in range(16): op3(u, 'H', i)
        if o.get('o45', 'mix') == 'mix':
            for i in range(16):
                for u in (4, 5): op3(u, 'H', i)
            for u in (4, 5):
                for i in range(16): op3(u, 'F', i)
        else:
            for u in (4, 5):
                for ty in 'HF':
                    for i in range(16): op3(u, ty, i)
        NG, NR, LA, BI = o['NG'], o['NR'], o['LA'], o['BI']
        GB = [AG.alloc(4, 4) for _ in range(NG)]
        for i in range(43):
            for k in range(2): ops.append(dict(k='m', u=6 + k, key=('W4', i), ad=aD[k], st=1024, ex=0, B=GB[i % NG], gi=i))
        seen = set(); ops2 = []; cnt = {}
        for p in ops:
            if p['key'][0] != 'W4' and p['key'] not in seen:
                seen.add(p['key']); c = p['key'][0]; cnt[c] = cnt.get(c, 0) + 1
                ops2.append(dict(k='c', key=p['key'], ad=aCF if c in ('F1', 'S2') else aCH, first=cnt[c] == 1, last=cnt[c] == (16 if c in ('F1', 'S2') else 8)))
            ops2.append(p)
        ops = ops2
        RB = [AG.alloc(4, 4) for _ in range(NR)]
        for n, p in enumerate(ops): p['R'] = RB[n % NR]; p['n'] = n
        N = len(ops)
        last_use = {p['key']: p['n'] for p in ops}
        last_op = {p['u']: p['n'] for p in ops if p['k'] == 'm'}
        first4 = min(p['n'] for p in ops if p.get('u', 0) >= 6)
        def reads(p):
            b = self.loc[p['key']]; w, off = b >> 4, (b & 15)*BLK
            pre = p['ad'].need(w); ad = p['ad'].r[w]
            if p['k'] == 'c': return pre + [Ins(f'ds_read_b128 {p["R"]}, {ad} offset:{off}', f'r{p["n"]}')]
            return pre + [Ins(f'ds_read_b64_tr_b16 {p["R"].sub(2*a, 2)}, {ad} offset:{off + p["ex"] + a*p["st"]}', f'r{p["n"]}') for a in range(2)]
        self.forced = 0
        def bar_code(n):
            L = Asm()
            need = [ops[q]['key'] for q in range(n, min(N, n + BI + LA))]
            while any(k not in self.loc for k in need):
                gq = self.dma_next(); assert gq, f'LDS full at op {n}'
                L.ext(gq); self.forced += 1
            newest = max(need, key=self.issued.index)
            L(f'@waitvm {newest[0]}_{newest[1]}\ns_barrier')
            return L
        A.ext(P)
        A('@waitvm hst')
        self.stamp('h drained')
        A.ext(self.signal(1, 1))
        for r in self.late_free + [self.vTRb, self.vTRf]: r.free()
        A('@waitlg0')
        A.ext(bar_code(0))
        res = self.resx
        E = Asm()
        E(f'ds_read_b128 {res.sub(0, 4)}, {aRes}\nds_read_b128 {res.sub(4, 4)}, {aRes} offset:16')
        for q in range(LA): E.ext(reads(ops[q]))
        if o.get('q_early', True): E.ext(Q); Q = Asm()
        A.ext(sprinkle(E, self.dmas(o['b_post2']), 16))
        self.poll_block(A, pa2, 1); A('@drained_vm')
        self.stamp('sync2 done')
        acc = [V.alloc(16, 2) for _ in range(6)]
        accK, accS = acc[0], acc[1]
        csacc = {c: V.alloc(4, 2) for c in ('F1', 'H1', 'S2', 'S3')}
        started = set()
        def mfma(p):
            if p['k'] == 'c':
                c = csacc[p['key'][0]]
                return Ins(f'v_mfma_f32_16x16x32_bf16 {c}, {delta}, {p["R"]}, {0 if p["first"] else c}')
            a = acc[p['u']] if p['u'] < 6 else (accK, accS)[p['u'] - 6]
            z = p['u'] not in started and p['u'] != 6
            started.add(p['u'])
            return Ins(f'v_mfma_f32_32x32x16_bf16 {a}, {p["R"]}, {p["B"]}, {0 if z else a}')
        LATH, LATD, VS = o.get('LATH', 260), o.get('LATD', 600), o['vslack']
        WE = o.get('WE', 4)
        sTa = S.alloc()
        horder = []; hfirst = {}
        for p in ops:
            if 'hk' in p and p['hk'] not in hfirst: hfirst[p['hk']] = p['n']; horder.append(p['hk'])
        first_use = {}
        for p in ops: first_use.setdefault(p['key'], p['n'])
        def need_bar(key): return max(0, (first_use[key] - LA)//BI*BI)
        sp = V.alloc(8, 2); junk = V.alloc()
        c1 = V.alloc(); c3 = V.alloc(); iv = V.alloc(); tt = V.alloc(8, 2); go = [V.alloc(4, 2), V.alloc(4, 2)]
        cs_last = {p['key'][0]: p['n'] for p in ops if p['k'] == 'c' and p['last']}
        cs_first = {p['key'][0]: p['n'] for p in ops if p['k'] == 'c' and p['first']}
        rq = []
        for hk in horder:
            ty, i = hk; cp, gp = i >> 1, i & 1
            base = (sHF if ty == 'F' else sHH)[cp >> 2]
            if cp & 3 == 0: code = [Ins(f'buffer_load_dwordx4 {HB[hk]}, {self.vL16}, {self.WS}, {base} offen offset:{gp*2048} sc1')]
            else: code = [Ins(f's_add_u32 {sTa}, {base}, {(cp & 3) << 12}'), Ins(f'buffer_load_dwordx4 {HB[hk]}, {self.vL16}, {self.WS}, {sTa} offen offset:{gp*2048} sc1')]
            rq.append(dict(id=hk, dl=hfirst[hk], cost=69, code=code))
        for k in range(2):
            rq.append(dict(id=('st', k), dl=last_op[0] - o.get('st_lead', 6), cost=69, code=[Ins(f'buffer_load_dwordx4 {sp.sub(4*k, 4)}, {self.vL16}, {self.WS}, {sSl} offen offset:{k*1024} sc1')]))
        if not o['g_sc1']:
            for k in range(3):
                L = Asm(); L(f's_mov_b64 exec, 0xffff\nbuffer_load_dword {junk}, {self.v128}, {self.WS}, {sTa} offen sc1\ns_mov_b64 exec, -1'); L.L[1].defs = set()
                rq.append(dict(id=('gt', k), dl=last_op[2*k] + o.get('gt_rel', 2), cost=138, lat=LATD, code=[Ins(f's_add_u32 {sTa}, {sGst}, {k*2048}'), L.L]))
        stage_of = lambda i: 1 if i < 15 else 2 if i < 29 else 3 if i < 36 else 4
        for i in range(43):
            sel, u = self.p4_unit(i)
            rq.append(dict(id=('g', i), dl=first4 + 2*i, cost=69, stage=stage_of(i), after=first4 + 2*(i - NG) + 1, lat=LATD if o['g_sc1'] else LATH,
                           code=[Ins(f's_add_u32 {sTa}, {sGld[sel]}, {u*1024}'), Ins(f'buffer_load_dwordx4 {GB[i % NG]}, {self.vL16}, {self.WS}, {sTa} offen sc1')]))
        rq.sort(key=lambda r: r['dl'])
        K1 = -2*math.sqrt(2/math.pi)*LOG2E
        I = lambda text: [Ins(x) for x in text.split('\n')]
        chA = []
        wr_bar = {}
        def cs_items(c):
            a = csacc[c]; full = c in ('F1', 'S2')
            off = {'F1': 0, 'H1': 2048, 'S2': 2048 + 128, 'S3': 256}[c]
            for ror in ((8,) if full else (8, 4)):
                for r in range(4): chA.append(('v', ('op', cs_last[c] + 2), I(f'v_add_f32_dpp {a[r]}, {a[r]}, {a[r]} row_ror:{ror} row_mask:0xf bank_mask:0xf'), None))
            L = Asm(); L(f's_mov_b64 exec, {"0x00ff00ff" if full else "0x000f000f"}'); L(f'ds_write_b128 {aCW}, {a} offset:{off}', 'wr' + c); L('s_mov_b64 exec, -1')
            chA.append(('d', None, L.L, 'wr' + c))
        def corr_items(u, cls):
            chA.append(('d', ('ev', ['bar_wr' + c for c in cls], 0), I(f'ds_read_b32 {cT[0]}, {aCR} offset:{u*64}\nds_read_b32 {cT[1]}, {aCR} offset:{u*64 + 1024}'), f'crd{u}'))
            for k, x in enumerate((f'v_add_f32 {cT[0]}, {cT[0]}, {cT[1]}', f'v_cvt_pk_bf16_f32 {cT[1]}, {cT[0]}, {cT[0]}', f'v_and_b32 {cT[1]}, 0xffff0000, {cT[1]}',
                                   f'v_sub_f32 {cT[0]}, {cT[0]}, {cT[1]}', f'v_cvt_pk_bf16_f32 {cA[0]}, {cT[1]}, {cT[0]}')):
                chA.append(('v', ('ev', [f'crd{u}'], 90), I(x), None))
            chA.append(('m', ('op', last_op[u]), I(f'v_mfma_f32_32x32x16_bf16 {acc[u]}, {cA}, {cB}, {acc[u]}'), f'corr{u}'))
        for x in Q.L: chA.append(('v', None, [x], None))
        for c in sorted(('F1', 'H1'), key=cs_last.get): cs_items(c)
        stc = (f'v_add_f32 {sp[0]}, {sp[0]}, {sp[2]}\nv_add_f32 {sp[1]}, {sp[1]}, {sp[3]}\nv_add_f32 {sp[4]}, {sp[4]}, {sp[6]}\nv_add_f32 {sp[5]}, {sp[5]}, {sp[7]}\n'
               f'v_add_f32 {sp[0]}, {sp[0]}, {sp[4]}\nv_add_f32 {sp[1]}, {sp[1]}, {sp[5]}\nv_mov_b32 {sp[2]}, {sp[0]}\nv_mov_b32 {sp[3]}, {sp[1]}\nv_nop\n'
               f'v_permlane32_swap_b32 {sp[0]}, {sp[2]}\nv_permlane32_swap_b32 {sp[1]}, {sp[3]}\nv_add_f32 {sp[0]}, {sp[0]}, {sp[2]}\nv_add_f32 {sp[1]}, {sp[1]}, {sp[3]}\n'
               f'v_mul_f32 {sp[0]}, {fhex(-1/512)}, {sp[0]}\nv_fma_f32 {sp[1]}, {sp[1]}, {self.sInv512}, {self.vEps}\nv_fma_f32 {iv}, -{sp[0]}, {sp[0]}, {sp[1]}\nv_max_f32 {iv}, {iv}, {self.vEps}\n'
               f'v_rsq_f32 {sp[2]}, {iv}\nv_cvt_pk_bf16_f32 {cB[0]}, {sp[0]}, {sp[0]}\nv_mul_f32 {c1}, {fhex(K1)}, {sp[2]}\nv_mul_f32 {sp[3]}, {sp[2]}, {sp[2]}\nv_mul_f32 {c3}, {fhex(0.044715)}, {c1}\nv_mul_f32 {c3}, {c3}, {sp[3]}')
        for x in I(stc): chA.append(('v', ('arr', ('st', 1)), [x], None))
        corr_items(0, ('F1', 'H1')); corr_items(1, ('F1', 'H1'))
        cs_items('S2'); corr_items(2, ('F1', 'S2')); corr_items(3, ('F1', 'S2'))
        cs_items('S3'); corr_items(4, ('S2', 'S3')); corr_items(5, ('S2', 'S3'))
        chB = []; chC = []
        pubs = {1: 1, 3: 2, 4: 3, 5: 4}
        for u in range(6):
            a = acc[u]; out = go[u & 1]
            st = []
            for txt in ('v_mul_f32 {t}, {a}, {a}', 'v_fma_f32 {t}, {t}, {c3}, {c1}', 'v_mul_f32 {t}, {t}, {a}', 'v_exp_f32 {t}, {t}', 'v_mul_f32 {b}, {a}, {b}', 'v_fma_f32 {t}, {t}, {iv}, {iv}', 'v_rcp_f32 {t}, {t}', 'v_mul_f32 {b}, {b}, {t}'):
                st.append([txt.format(t=tt[v], a=a[v], b=a[8+v], c1=c1, c3=c3, iv=iv) for v in range(8)])
            seq = st[0] + st[1] + st[2]
            for v in range(8): seq += [st[3][v], st[4][v]]
            seq += [st[5][0]]
            for v in range(8):
                if v < 7: seq.append(st[5][v+1])
                seq.append(st[6][v])
            seq += st[7] + [f'v_cvt_pk_bf16_f32 {out[d]}, {a[8+2*d]}, {a[9+2*d]}' for d in range(4)]
            for ln in seq: chB.append(('v', ('ev', [f'corr{u}'], 60), I(ln), None))
            L = Asm()
            so = sGst if u < 4 else sGs2
            if o['g_sc1']: L(f'buffer_store_dwordx4 {out}, {self.vL16}, {self.WS}, {so} offen offset:{(u & 3)*1024} sc1', tag=f'gst{u}')
            else: self.store2(L, 'dwordx4', out, self.vL16, so, (u & 3)*1024, f'gst{u}')
            chB.append(('s', None, L.L, f'gst{u}'))
            if u == o.get('res_after', 3):
                for d in range(8):
                    for x in I(f'v_lshlrev_b32 {accK[2*d]}, 16, {res[d]}\nv_and_b32 {accK[2*d+1]}, 0xffff0000, {res[d]}'): chB.append(('v', None, [x], None))
                chB[-1] = chB[-1][:3] + ('acc4',)
            if u in pubs:
                sg = pubs[u]; k = self.nlabel; self.nlabel += 1
                chC.append(('f', ('arr', f'gst{u}'), [Ins(f'@waitvm gst{u}')] + self.signal(2, sg), f'pub{sg}'))
                chC.append(('f', ('ev', [f'pub{sg}'], o.get('poll_after', 450)), I(f'buffer_load_dword {self.vPv}, {pa3}, {self.WS}, {s["FL"]} offen sc1'), f'poll{sg}'))
                chC.append(('v', ('arr', f'poll{sg}'), I(f'v_cmp_gt_u32 vcc, {sg}, {self.vPv}\ns_nop 0\ns_cbranch_vccnz L_late{k}\nL_back{k}:'), f'stage{sg}'))
                self.tail(f'L_late{k}:'); self.poll_block(self.tail, pa3, sg); self.tail(f's_branch L_back{k}')
        ev = {}; arr = {}; evop = {}
        for k in self.issued: arr[k] = 0
        now = 0; vm_free = 0; last_arr = 0; mf_free = 0; n_done = -1
        cur = []
        freed = set(); est = {}; idle = 0
        def emit(code):
            nonlocal now
            A.ext(code); now += 4*sum(max(cost(x), 1 if x.mn.startswith('@wait') else 0) + (2 if x.mn.startswith('s_cbranch') else 0) for x in code)
        def vm_issue(idk, c, lat):
            nonlocal vm_free, last_arr
            vm_free = max(vm_free, now) + c
            last_arr = max(last_arr, vm_free + lat); arr[idk] = last_arr
        def ready_time(cond):
            if cond is None: return 0
            if cond[0] == 'op': return 0 if n_done >= cond[1] else None
            if cond[0] == 'arr': return arr.get(cond[1])
            if all(e in ev for e in cond[1]): return max(ev[e] for e in cond[1]) + cond[2]
            return None
        def pick_request():
            best = None
            for r in rq:
                if 'stage' in r and (f'stage{r["stage"]}' not in ev or n_done < r['after']): break
                best = r; break
            if self.stream and self.free_blocks:
                dl = need_bar(self.stream[0]) - o.get('dma_lead', 10)
                if best is None or dl < best['dl']:
                    key = self.stream[0]; c = self.dma_cost()
                    cur.extend([(key, c, LATD)] + self.dma_next()); return True
            if best is None: return False
            rq.remove(best); cur.extend([(best['id'], best['cost'], best.get('lat', LATH))] + best['code'])
            return True
        def step_vm(only_salu=False, force=False):
            if not cur and not pick_request(): return False
            it = cur[1]; l = it if isinstance(it, list) else [it]
            if len(cur) > 2:
                if not only_salu and not force and vm_free > now + VS + 8: return False
                cur.pop(1); emit(l); return True
            if only_salu or (not force and vm_free > now + VS): return False
            meta = cur[0]; del cur[:]
            emit(l); vm_issue(*meta); return True
        def step_chain(ch, kinds, room):
            if not ch or ch[0][0] not in kinds: return False
            k, cond, code, e = ch[0]; t = ready_time(cond)
            if t is None or t > now: return False
            if k == 'v' and 4*sum(cost(x) for x in code) > room + 3 and len(code) == 1: return False
            ch.pop(0); emit(code)
            if k == 's': vm_issue(e, 90, 700 if o['g_sc1'] else 300)
            if k == 'f': vm_issue(e, 20, LATH)
            if e: ev[e] = now; evop[e] = n_done
            return True
        def op_ready(n):
            p = ops[n]; t = mf_free
            k = p.get('hk') or (('g', p['gi']) if 'gi' in p else None)
            if k is not None:
                if k not in arr: return None
                t = max(t, arr[k])
            if n == first4 and 'acc4' not in ev: return None
            if (n + 1) % BI == 0 and n + 1 < N:
                for q_ in range(n + 1, min(N, n + 1 + BI + LA)):
                    if ops[q_]['key'] not in arr: return None
                    t = max(t, arr[ops[q_]['key']] - 24)
            return t
        slack = 4*(o['bud'] - 6)
        for n in range(N):
            p = ops[n]
            guard = 0
            while True:
                guard += 1; assert guard < 100000, f'scheduler stuck at op {n}'
                t = op_ready(n)
                if t is not None and now >= t + (slack if chB and ready_time(chB[0][1]) is not None else 0): break
                room = (t + slack - now) if t is not None else 1000
                if chA and chA[0][0] == 'm' and ready_time(chA[0][1]) is not None and now >= mf_free - 4:
                    now = max(now, mf_free); t0_ = now; step_chain(chA, 'm', 0); mf_free = t0_ + 32; continue
                if room > 40 and step_vm(): continue
                if step_chain(chC, 'fv', 1000): continue
                if step_chain(chA, 'v' if room <= 40 else 'vd', room): continue
                if step_chain(chB, 'vs', room): continue
                if t is not None and now >= t: break
                now += 4; idle += 4
            if chA and chA[0][0] == 'm' and ready_time(chA[0][1]) is not None:
                t0_ = now; step_chain(chA, 'm', 0); mf_free = t0_ + 32
                while now < mf_free and (step_chain(chA, 'vd', mf_free - now) or step_chain(chB, 'vs', mf_free - now)): pass
                now = max(now, mf_free)
            if n == first4: self.stamp('p3 mfma done'); est['p3'] = now; est['idle3'] = idle
            elif o.get('fine') and n % o['fine'] == 0 and n: self.stamp(f'op {n}'); est[n] = now
            t0_ = now
            A.L.append(mfma(p)); n_done = n; now += 4
            mf_free = t0_ + (32 if p['k'] == 'm' else 16)
            if (n + 1) % BI == 0 and n + 1 < N:
                L = Asm()
                for c in ('F1', 'H1', 'S2', 'S3'):
                    if 'wr' + c in ev and 'bar_wr' + c not in ev: L(f'@waitlg wr{c}'); ev['bar_wr' + c] = now
                L(f'@waitlg r{min(N - 1, n + WE)}')
                f0 = self.forced; L.ext(bar_code(n + 1)); assert f0 == self.forced
                emit(L.L)
                for k, lu in last_use.items():
                    if lu <= n and k not in freed and k in self.loc:
                        freed.add(k); self.free_blocks.append(self.loc[k])
                if 'res' not in freed:
                    freed.add('res'); self.free_blocks += [self.resb, self.resb + 1]
            elif (n + 1) % WE == 0 and n + 1 < N: emit([Ins(f'@waitlg r{min(N - 1, n + WE)}')])
            else: step_vm(only_salu=True)
            now = max(now, t0_ + 8)
            if n + LA < N: emit(reads(ops[n + LA]))
            step_chain(chA, 'd', 0)
            while step_vm():
                if not cur: break
            if n + LA + 1 < N and ops[n + LA + 1]['key'] in self.loc: emit(ops[n + LA + 1]['ad'].need(self.loc[ops[n + LA + 1]['key']] >> 4))
        assert not (chA or chB or chC or rq or cur or self.stream), (len(chA), len(chB), len(chC), len(rq), len(self.stream))
        est['p4'] = now; est['idle'] = idle
        self.info.update(N=N, first4=first4, est=est, evop={k: v for k, v in evop.items() if k[:3] in ('cor', 'gst', 'sta')})
        self.stamp('p4 mfma done')
        fb = sorted(self.free_blocks)
        xb = next(b for b in fb if all(b + k in fb for k in range(4)))
        A(f's_lshl_b32 {s["T0"]}, {s["W"]}, 12\ns_add_u32 {s["T0"]}, {s["T0"]}, {xb*BLK}\nv_add_u32 {t1}, {s["T0"]}, {self.vL16}')
        A(f's_xor_b32 {s["T1"]}, {s["W"]}, 2\ns_lshl_b32 {s["T1"]}, {s["T1"]}, 12\ns_add_u32 {s["T1"]}, {s["T1"]}, {xb*BLK}\nv_add_u32 {t2}, {s["T1"]}, {self.vL16}')
        A(f'v_and_b32 {t3}, 31, {vL}\nv_lshlrev_b32 {t3}, 10, {t3}\nv_lshrrev_b32 {c1}, 5, {vL}\nv_lshl_add_u32 {t3}, {c1}, 5, {t3}')
        for k in range(4): A(f'ds_write_b128 {t1}, {accS.sub(4*k, 4)} offset:{k*1024}')
        A(f's_lshl_b32 {s["T0"]}, {s["G"]}, 2\ns_add_u32 {s["T0"]}, {s["T0"]}, {sT4}\ns_lshl_b32 {s["T0"]}, {s["T0"]}, 15\ns_add_u32 {s["T0"]}, {s["T0"]}, {self.sC128}\ns_lshl_b32 {s["T1"]}, {sKH}, 6\ns_add_u32 {s["T0"]}, {s["T0"]}, {s["T1"]}')
        A('@waitlg0\ns_barrier')
        rx = acc[2]
        for k in range(4): A(f'ds_read_b128 {rx.sub(4*k, 4)}, {t2} offset:{k*1024}')
        for h in range(2):
            for d in range(4*h, 4*h + 4): A(f'v_pk_add_f32 {accK.sub(2*d, 2)}, {accK.sub(2*d, 2)}, {rx.sub(2*d, 2)}')
            for d in range(4): A(f'v_cvt_pk_bf16_f32 {go[h][d]}, {accK[8*h + 2*d]}, {accK[8*h + 2*d + 1]}')
            A(f'buffer_store_dwordx4 {go[h]}, {t3}, {self.OUT}, {s["T0"]} offen offset:{16*h} {o.get("out_aux", "")}')
        self.stamp('out stored')

    def finish(self):
        A, s, o = self.A, self.s, self.o
        if o['stamps']:
            A('@waitvm0')
            self.stamp('end')
            k = self.nstamp - 1
            A(f'@raw 1\ns_waitcnt lgkmcnt(0)\nv_writelane_b32 {self.vstamp}, {self.sstamp[2*(k % 2)]}, {k}\nv_writelane_b32 {self.vstamp}, s100, 63\n@raw 0')
            A(f's_lshl_b32 {s["T0"]}, s2, 10\ns_lshl_b32 {s["T1"]}, {s["W"]}, 8\ns_add_u32 {s["T0"]}, {s["T0"]}, {s["T1"]}\ns_add_u32 {s["T0"]}, {s["T0"]}, {o["ws_base"] + WS_TS}')
            A(f'v_lshlrev_b32 {self.t1}, 2, {self.vL}\nbuffer_store_dword {self.vstamp}, {self.t1}, {self.WS}, {s["T0"]} offen')
        if o.get('pad_to'):
            A(f'@raw 1\ns_waitcnt vmcnt(0)\nL_padloop:\ns_memrealtime s[98:99]\ns_waitcnt lgkmcnt(0)\ns_sub_u32 s98, s98, s100\ns_cmp_lt_u32 s98, {o["pad_to"]}\ns_cbranch_scc1 L_padloop\n@raw 0')
        A('s_endpgm')

    def build(self):
        self.phase1(); self.phase2(); self.phase34(); self.finish()
        L = resolve_waits(self.A.L)
        L, nn = pad_hazards(L)
        T = [x for x in self.tail.L if x.kind != 'pseudo']
        body = '\n'.join(('' if x.kind == 'label' else '    ') + x.text for x in L + T)
        hdr = open('cdna_kernels/' + NAME + '.s.ref').read().split('; Override launch')[0]
        txt = hdr + f'; @launch grid=(256,1,1) block=(256,1,1) lds=163840\n.amdgcn_target "amdgcn-amd-amdhsa--gfx950"\n.text\n.globl {NAME}_kernel\n.p2align 8\n.type {NAME}_kernel,@function\n{NAME}_kernel:\n'
        txt += body + '\n    s_endpgm\nL_code_end:\n'
        txt += f'.section .rodata,"a"\n.p2align 6\n.amdhsa_kernel {NAME}_kernel\n  .amdhsa_next_free_vgpr 512\n  .amdhsa_next_free_sgpr 102\n  .amdhsa_accum_offset 256\n  .amdhsa_group_segment_fixed_size 0\n  .amdhsa_kernarg_size 80\n  .amdhsa_user_sgpr_count 2\n  .amdhsa_user_sgpr_kernarg_segment_ptr 1\n  .amdhsa_system_sgpr_workgroup_id_x 1\n  .amdhsa_float_denorm_mode_32 3\n.end_amdhsa_kernel\n'
        self.info.update(ninstr=len(L), nops=nn, vmax=self.V.hi, amax=self.AG.hi, smax=self.S.hi)
        return txt

if __name__ == '__main__':
    import json
    kw = json.loads(sys.argv[2]) if len(sys.argv) > 2 else {}
    G = Gen(**kw); txt = G.build()
    open(sys.argv[1], 'w').write(txt)
    print(G.info)
```

```python
import sys, math, struct
from asmlib import *

NAME = 'sequential_preLN__sliding_local_dilated__geglu_ffn__prompt'
KB = 1024
WS_H, WS_ST, WS_FL, WS_G, WS_O = 0, 128*KB, 136*KB, 256*KB, 640*KB
FL_SLOW = 2*KB
WS_TS = 16 << 20
WS_SIZE = 17 << 20
PITCH3 = 2752
BLK = 4096
L_HALO = 0
L_X = 4 * BLK
L_W = 10 * BLK
L_SCR = 39 * BLK
SCR_TB = L_SCR
SCR_HP = L_SCR + 1280
SCR_CS = L_SCR
def f2u(x): return struct.unpack('<I', struct.pack('<f', x))[0]
def fhex(x): return hex(f2u(x))
LOG2E = 1.4426950408889634

DEF = dict(stamps=False, order='pair', BI=8, LA=7, GLA=8, NG=14, NR=14, bud=6, b_epi=6, b_post1=4, b_o=4, b_post2=0,
           pub_delay=10, poll_lead=8, force_slow=False, w2pre=7, LO=5, HL=5, sp0=14, g_sc1=False, o_in_ws=False,
           pf={'o': 5, 'h': 5, 'wo': -1, 'w3': -1, 'wd': -1}, vslack=70, ws_base=0, n_stats=56, gt_at=40)

def cost(x):
    if x.kind in ('pseudo', 'label', 'dir'): return 0
    if x.is_trans() or x.mn.startswith('v_permlane') or x.kind == 'mfma': return 2
    return 1

def safe_points(code):
    ok = []; exec_part = False
    EX = {('s', 126), ('s', 127)}
    n = len(code)
    for i in range(n + 1):
        scc_live = False
        for k in range(i, n):
            x = code[k]
            if x.kind == 'label': scc_live = True; break
            if x.mn.startswith('s_cselect') or x.mn.startswith('s_cbranch') or x.mn.startswith('s_addc'): scc_live = True; break
            if x.kind == 'vmem' and x.arg == 'dma': scc_live = True; break
            if x.kind == 'salu' and not x.mn.startswith(('s_mov', 's_mul', 's_nop', 's_waitcnt', 's_barrier', 's_getreg')): break
        if not exec_part and not scc_live: ok.append(i)
        if i < n and code[i].defs & EX:
            exec_part = not code[i].text.endswith(', -1')
    return ok

def sprinkle(code, groups, spacing, start=0):
    code = list(code.L if isinstance(code, Asm) else code); groups = list(groups)
    ok = set(safe_points(code)); out = []; since = spacing - start
    for i, x in enumerate(code):
        if groups and since >= spacing and i in ok:
            g = groups.pop(0); out += g; since = 0
        out.append(x); since += cost(x)
    for g in groups: out += g
    return out

class Gen:
    def __init__(self, **kw):
        self.o = dict(DEF); self.o.update(kw)
        self.A = Asm(); self.tail = Asm()
        self.V = RegAlloc('v', 1, 254); self.AG = RegAlloc('a', 0, 256); self.S = RegAlloc('s', 60, 98)
        self.nstamp = 0; self.stamp_names = []
        self.nlabel = 0
        self.free_blocks = list(range(28, 39))
        self.loc = {}; self.issued = []
        st = [('W2', i) for i in range(16)]
        for q in range(8): st += [('F1', 2*q), ('H1', q), ('F1', 2*q + 1)]
        st += [('S2', i) for i in range(16)] + [('S3', q) for q in range(8)] + [('W4', i) for i in range(43)]
        self.stream = st
        self.info = {}

    def stamp(self, name, A=None):
        if not self.o['stamps'] or (self.o['stamps'] == 'min' and name != 'end'): return
        A = A if A is not None else self.A
        k = self.nstamp
        A(f'@raw 1\ns_memtime {self.sstamp.sub(2*(k % 2), 2)}')
        if k: A(f'v_writelane_b32 {self.vstamp}, {self.sstamp[2*((k-1) % 2)]}, {k-1}')
        A('@raw 0')
        self.stamp_names.append(name); self.nstamp += 1

    def srd(self, A, b, lo, size):
        A(f's_mov_b32 s{b}, s{lo}\ns_mov_b32 s{b+1}, s{lo+1}\ns_mov_b32 s{b+2}, {size}\ns_mov_b32 s{b+3}, 0x20000')

    def store2(self, A, w, data, voff, soff, off, tag, srds=None):
        assert off < 4096
        f, sl = srds or (self.WSF, self.WSS)
        o = f' offset:{off}' if off else ''
        v = f'{voff}, ' if voff is not None else 'off, '
        e = ' offen' if voff is not None else ''
        A(f'buffer_store_{w} {data}, {v}{f}, {soff}{e}{o}', tag=tag)
        A(f'buffer_store_{w} {data}, {v}{sl}, {soff}{e}{o} sc1', tag=tag)

    def signal(self, kind, val):
        L = Asm()
        L(f's_mov_b64 exec, 1\nv_mov_b32 {self.vFv}, {val}')
        self.store2(L, 'dword', self.vFv, None, self.sFme, kind*256, 'flag')
        L('s_mov_b64 exec, -1')
        return L.L

    def poll_block(self, A, addr, val):
        s = self.s; n = self.nlabel; self.nlabel += 1
        A(f's_mov_b32 {s["T3"]}, 0x20000\n@raw 1\nL_poll{n}:\nbuffer_load_dword {self.vPv}, {addr}, {self.WS}, {s["FL"]} offen sc1\ns_waitcnt vmcnt(0)')
        A(f'v_cmp_gt_u32 vcc, {val}, {self.vPv}\ns_sub_u32 {s["T3"]}, {s["T3"]}, 1\ns_cbranch_scc1 L_pd{n}\ns_cbranch_vccnz L_poll{n}\nL_pd{n}:\n@raw 0')

    @staticmethod
    def p4_unit(i):
        if i < 15: return 0, 6*i
        if i < 29: return 0, 6*(i - 15) + 2
        if i < 36: return 1, 12*(i - 29) + 4
        return 1, 12*(i - 36) + 5

    def dma_cost(self): return 138 if self.stream and self.stream[0][0] in ('H1', 'S3') else 69

    def dma_next(self):
        if not self.stream or not self.free_blocks: return None
        key = self.stream.pop(0); b = self.free_blocks.pop(0)
        self.loc[key] = b; self.issued.append(key)
        s, D = self.s, self.sD; kind, i = key; tag = f'{kind}_{i}'
        if kind == 'W2':
            assert 23 <= b <= 38
            pre = [f's_add_u32 {D}, {self.sR2[i >> 2]}, {(i & 3) << 15}']
            ld = f'buffer_load_dwordx4 {self.vW2}, {self.WO}, {D} offen lds'
        elif kind in ('F1', 'S2', 'H1', 'S3'):
            full = kind in ('F1', 'S2')
            cp = i >> 1 if full else i
            base = self.sBF if kind in ('F1', 'S3') else self.sBH
            add = {'F1': 0, 'H1': 0, 'S2': 64, 'S3': 128}[kind] + (8*PITCH3*(i & 1) if full else 0)
            pre = [f's_add_u32 {D}, {base[cp >> 2]}, {(cp & 3)*64*PITCH3 + add}']
            if key == ('F1', 0): pre.append(f's_mov_b32 s38, {self.sN3[0]}')
            if key == ('S2', 0): pre.append(f's_mov_b32 s38, {self.sN3[1]}')
            ld = f'buffer_load_dwordx4 {self.vF if full else self.vH}, {self.W3}, {D} offen lds'
        else:
            sel, u = self.p4_unit(i)
            pre = [f's_add_u32 {D}, {self.sU[sel]}, {u*16384}']
            ld = f'buffer_load_dwordx4 {self.vD}, {self.WD}, {D} offen lds'
        return [Ins(f's_add_u32 m0, {s["W1K"]}, {b*BLK}')] + [Ins(x) for x in pre] + [Ins(ld, tag)]

    def dmas(self, n):
        r = []
        for _ in range(n):
            g = self.dma_next()
            if g: r.append(g)
        return r

    def p1_chunk_dma(self, i):
        s = self.s; sl = i % 3; kc, so = self.sKC, self.sSO; tag = f'ch{i}'
        I = Ins
        g = [[I(f's_add_u32 {kc}, {s["C"]}, {i}'), I(f's_and_b32 {kc}, {kc}, 7'), I(f's_add_u32 m0, {self.sW2K}, {L_X + sl*8192}'), I(f's_lshl_b32 {so}, {kc}, 7'),
              I(f'buffer_load_dwordx4 {self.vXa}, {self.X}, {so} offen lds', tag)],
             [I(f's_mul_i32 {kc}, {kc}, {64*3072}'), I(f'buffer_load_dwordx4 {self.vXb}, {self.X}, {so} offen offset:1024 lds', tag)]]
        for st in range(2):
            for p in range(3):
                pre = []
                if p == 0: pre = [I(f's_add_u32 m0, {self.sW3K}, {L_W + sl*24576 + st*12288}'), I(f's_add_u32 {kc}, {kc}, {32*3072 if st else self.sC128}')]
                g.append(pre + [I(f'buffer_load_dwordx4 {self.vW1}, {self.WQ}, {kc} offen offset:{p*1024} lds', tag)])
        return g

    def p1_reads(self, i, st, buf):
        sl = i % 3; r = []
        W, X, O = buf
        r.append(Ins(f'ds_read_b128 {O}, {self.aXo[st]} offset:{sl*8192}'))
        for p in range(3):
            for a in range(2):
                r.append(Ins(f'ds_read_b64_tr_b16 {W[p].sub(2*a, 2)}, {self.aW1} offset:{sl*24576 + st*12288 + p*1024 + a*512}'))
            if p == 0:
                r.append(Ins(f'ds_read_b128 {X[0]}, {self.aX[st]} offset:{L_HALO + i*2048}'))
                for t in range(1, 5):
                    r.append(Ins(f'ds_read_b128 {X[t]}, {self.aX[st]} offset:{L_X + sl*8192 + (t-1)*2048}'))
        return r

    def p1_mfmas(self, buf, first):
        W, X, O = buf
        m = []
        c = lambda acc: '0' if first else str(acc)
        m.append(Ins(f'v_mfma_f32_16x16x32_bf16 {self.stG}, {O}, {O}, {c(self.stG)}'))
        m.append(Ins(f'v_mfma_f32_16x16x32_bf16 {self.stS}, {self.ones}, {O}, {c(self.stS)}'))
        for p, acc in enumerate((self.aQ, self.aK, self.aV)):
            for t in range(5):
                if p < 2: m.append(Ins(f'v_mfma_f32_16x16x32_bf16 {acc[t]}, {W[p]}, {X[t]}, {c(acc[t])}'))
                else: m.append(Ins(f'v_mfma_f32_16x16x32_bf16 {acc[t]}, {X[t]}, {W[p]}, {c(acc[t])}'))
        return m

    def stats_code(self, sq, sm, out4):
        L = Asm()
        L(f'v_mul_f32 {sm}, {fhex(-1/512)}, {sm}')
        L(f'v_fma_f32 {sq}, {sq}, {self.sInv512}, {self.vEps}')
        L(f'v_cvt_pk_bf16_f32 {out4[1]}, {sm}, {sm}')
        L(f'v_fma_f32 {sq}, -{sm}, {sm}, {sq}')
        L(f'v_max_f32 {sq}, {sq}, {self.vEps}')
        L(f'v_rsq_f32 {out4[2]}, {sq}')
        L(f'v_and_b32 {out4[0]}, 0xffff0000, {out4[1]}')
        L(f'v_mul_f32 {out4[3]}, {fhex(0.25*LOG2E)}, {out4[2]}')
        return L.L

    def diag_code(self, G4, dst):
        return [Ins(f'v_cndmask_b32 {G4[0]}, {G4[0]}, {G4[1]}, {self.mB0}'), Ins(f'v_cndmask_b32 {G4[2]}, {G4[2]}, {G4[3]}, {self.mB0}'),
                Ins(f'v_cndmask_b32 {dst}, {G4[0]}, {G4[2]}, {self.mB1}')]

    def weave16(self, mf, ds, misc, vgap=4):
        A = self.A; ds = list(ds)
        nm = len(mf)
        for k, m in enumerate(mf):
            A.L.append(m); self.gap_since_vm += 1
            bud = 2
            if misc and isinstance(misc[0], Ins) and misc[0].kind == 'salu': A.L.append(misc.pop(0))
            nds = 1 if ds else 0
            if len(ds) > nm - k - 4: nds = min(2, len(ds))
            for _ in range(nds): A.L.append(ds.pop(0)); bud -= 1
            while misc and bud > 0:
                it = misc[0]; l = it if isinstance(it, list) else [it]
                if l and l[0].kind == 'pseudo' and l[0].mn == '@skip':
                    misc.pop(0); break
                if any(x.kind == 'vmem' for x in l):
                    if self.gap_since_vm < vgap: break
                    self.gap_since_vm = 0
                misc.pop(0); A.ext(l); bud -= sum(cost(x) for x in l)
        assert not ds

    def phase1(self):
        A, V, S, AG, o = self.A, self.V, self.S, self.AG, self.o
        s = self.s = {}
        for n in 'W C M SB G BLK W1K T0 T1 T2 T3 FL PF GB'.split(): s[n] = S.alloc()
        if o['stamps']: self.sstamp = S.alloc(4, 2); self.vstamp = V.alloc()
        self.X, self.WQ, self.WO, self.W3, self.WD, self.OUT, self.WS, self.WSF, self.WSS = [f's[{24+4*i}:{27+4*i}]' for i in range(9)]
        self.sKC = S.alloc(); self.sSO = S.alloc(); self.sW2K = S.alloc(); self.sW3K = S.alloc(); self.sC128 = S.alloc(); self.sFme = S.alloc()
        sH = S.alloc(2); sZ = S.alloc()
        if o.get('pad_to'): A('@raw 1\n' + o.get('pad_clk', 's_memrealtime') + ' s[100:101]\n@raw 0')
        if o['stamps']: A('@raw 1\ns_memtime s[100:101]\ns_memrealtime s[98:99]\n@raw 0')
        A('s_load_dwordx2 s[24:25], s[0:1], 0\ns_load_dwordx2 s[28:29], s[0:1], 8\ns_load_dwordx2 s[48:49], s[0:1], 72')
        A('s_load_dwordx16 s[4:19], s[0:1], 0\ns_load_dwordx4 s[20:23], s[0:1], 64')
        A('s_cmp_lt_u32 s2, 256\ns_cbranch_scc1 L_go\ns_endpgm\nL_go:')
        vL = self.vL = V.alloc(); t0 = V.alloc(2); t1 = V.alloc(); t2 = V.alloc(); t3 = V.alloc()
        self.t1, self.t2, self.t3 = t1, t2, t3
        A(f's_getpc_b64 s[52:53]\nL_pc:')
        A(f'v_and_b32 {vL}, 63, v0\nv_lshrrev_b32 {t1}, 6, v0\ns_lshr_b32 {s["T0"]}, s2, 3\nv_readfirstlane_b32 {s["W"]}, {t1}')
        A(f'v_lshl_add_u32 {t1}, {s["T0"]}, 2, {t1}\nv_lshl_add_u32 {t1}, {t1}, 2, {vL}\nv_lshlrev_b32 {t1}, 7, {t1}\nv_min_u32 {t1}, L_code_end-L_pc-4, {t1}')
        A(f'v_add_co_u32 {t0[0]}, vcc, s52, {t1}\nv_mov_b32 {t0[1]}, s53\ns_and_b32 {s["M"]}, {s["T0"]}, 15\nv_addc_co_u32 {t0[1]}, vcc, 0, {t0[1]}, vcc')
        A(f's_mov_b64 exec, 15\nglobal_load_dword v255, {t0}, off\ns_mov_b64 exec, -1')
        t0.free()
        A(f's_and_b32 {s["C"]}, {s["T0"]}, 7\ns_lshr_b32 {s["SB"]}, {s["M"]}, 3\ns_and_b32 {s["T1"]}, s2, 7\ns_lshr_b32 {s["T0"]}, {s["T0"]}, 3')
        A(f's_lshl_b32 {s["BLK"]}, {s["T1"]}, 2\ns_add_u32 {s["BLK"]}, {s["BLK"]}, {s["T0"]}\ns_lshr_b32 {s["G"]}, {s["BLK"]}, 1')
        A(f's_lshl_b32 {self.sW2K}, {s["W"]}, 11\ns_mul_i32 {self.sW3K}, {s["W"]}, 3072\ns_lshl_b32 {self.sC128}, {s["C"]}, 7')
        e = V.alloc(); ch = V.alloc()
        vHa = V.alloc(); vHb = V.alloc(); self.vXa = V.alloc(); self.vXb = V.alloc(); self.vW1 = V.alloc(); self.vW2 = V.alloc()
        A(f'v_lshrrev_b32 {e}, 3, {vL}\nv_and_b32 {ch}, 7, {vL}')
        A(f'v_lshrrev_b32 {t1}, 4, {vL}\nv_xor_b32 {t1}, {t1}, {ch}\nv_lshlrev_b32 {t1}, 4, {t1}')
        A(f's_lshl_b32 {s["T0"]}, {s["BLK"]}, 6\ns_lshl_b32 {s["T1"]}, {s["W"]}, 4\ns_add_u32 {s["T1"]}, {s["T1"]}, {s["T0"]}')
        A(f'v_add_u32 {t2}, {s["T1"]}, {e}\nv_lshl_add_u32 {self.vXa}, {t2}, 10, {t1}\nv_add_u32 {self.vXb}, {7*1024}, {self.vXa}\nv_xor_b32 {self.vXb}, 64, {self.vXb}')
        A(f's_sub_u32 {s["T1"]}, {s["T0"]}, 16')
        A(f'v_add_u32 {t2}, {s["T1"]}, {e}\nv_max_i32 {vHa}, 2, {t2}\nv_lshl_add_u32 {vHa}, {vHa}, 10, {t1}')
        A(f'v_add_u32 {t2}, 7, {t2}\nv_max_i32 {vHb}, 2, {t2}\nv_lshl_add_u32 {vHb}, {vHb}, 10, {t1}\nv_xor_b32 {vHb}, 64, {vHb}')
        A(f's_and_b32 {s["T1"]}, {s["W"]}, 1\ns_lshl_b32 {s["T1"]}, {s["T1"]}, 2')
        A(f'v_and_b32 {t1}, 2, {e}\nv_or_b32 {t1}, {s["T1"]}, {t1}\nv_xor_b32 {t1}, {t1}, {ch}\nv_lshlrev_b32 {t1}, 4, {t1}')
        A(f'v_lshl_add_u32 {t2}, {s["W"]}, 3, {e}')
        A(f'v_lshl_add_u32 {self.vW2}, {t2}, 10, {t1}\nv_mul_u32_u24 {t2}, 3072, {t2}\nv_add_u32 {self.vW1}, {t2}, {t1}')
        A(f's_mov_b32 s26, {2048*1024}\ns_mov_b32 s27, 0x20000\ns_mov_b32 s30, {512*3072}\ns_mov_b32 s31, 0x20000\ns_mov_b32 s50, {o["ws_base"] + WS_SIZE}\ns_mov_b32 s51, 0x20000')
        A(f's_lshl_b32 {s["GB"]}, {s["G"]}, 20')
        if o['ws_base']: A(f's_add_u32 {s["GB"]}, {s["GB"]}, {o["ws_base"]}')
        A(f's_add_u32 {s["FL"]}, {s["GB"]}, {WS_FL}\ns_lshl_b32 {s["T1"]}, {s["M"]}, 4\ns_add_u32 {self.sFme}, {s["FL"]}, {s["T1"]}')
        self.vFz = V.alloc()
        A(f'v_lshrrev_b32 {t1}, 2, {vL}\nv_and_b32 {t2}, 3, {vL}\nv_lshlrev_b32 {t2}, 2, {t2}\nv_lshl_add_u32 {self.vFz}, {t1}, 8, {t2}\nv_mov_b32 {t2}, 0')
        A(f's_cmp_eq_u32 {s["W"]}, 0\ns_cselect_b32 {sZ}, 0xfff, 0')
        A(f's_lshl_b32 {s["T0"]}, {s["W"]}, 1\ns_add_u32 {s["T0"]}, {s["T0"]}, {s["C"]}')
        for q in range(2): A(f's_add_u32 {sH[q]}, {s["T0"]}, {q}\ns_and_b32 {sH[q]}, {sH[q]}, 7\ns_lshl_b32 {sH[q]}, {sH[q]}, 7')
        c0 = self.p1_chunk_dma(0)
        A.ext(c0[0][:-1])
        A('@waitlg0')
        self.stamp('kernarg')
        if o.get('probe'):
            src, rounds, base = o['probe']
            lo = {'bx': 10, 'ws': 22, 'out': 18, 'wd': 16}[src]
            A(f's_mov_b32 s32, s{lo}\ns_mov_b32 s33, s{lo+1}\ns_mov_b32 s34, {(2 << 20) if src in ("bx", "out") else (1376*1024 if src == "wd" else 256 << 20)}\ns_mov_b32 s35, 0x20000')
            A(f'v_lshlrev_b32 {t1}, 7, {vL}\ns_lshl_b32 {s["T0"]}, s2, 2\ns_add_u32 {s["T0"]}, {s["T0"]}, {s["W"]}\ns_lshl_b32 {s["T0"]}, {s["T0"]}, 11\ns_add_u32 {s["T0"]}, {s["T0"]}, {base}')
            nl = 16 // rounds if rounds > 0 else 16
            for r in range(abs(rounds)):
                A(f's_mov_b64 exec, {hex((1 << nl) - 1)}\nbuffer_load_dword {t3}, {t1}, s[32:35], {s["T0"]} offen sc1\ns_mov_b64 exec, -1')
                if rounds > 0: A(f'@waitvm0\ns_add_u32 {s["T0"]}, {s["T0"]}, {nl*128}')
                else: A(f's_add_u32 {s["T0"]}, {s["T0"]}, {2 << 20}')
            A('@waitvm0')
            self.stamp('probe done')
        A.L.append(c0[0][-1])
        A(f's_mov_b32 exec_lo, {sZ}\ns_mov_b32 exec_hi, 0')
        A(f'buffer_store_dword {t2}, {self.vFz}, {self.WS}, {self.sFme} offen', tag='fz')
        A('s_mov_b64 exec, -1')
        hal = []
        for q in range(2):
            hal.append([Ins(f's_lshl_b32 m0, {s["W"]}, 12')] + ([Ins('s_add_u32 m0, m0, 2048')] if q else []) +
                       [Ins('s_mov_b32 exec_lo, 0xffffff00'), Ins(f'buffer_load_dwordx4 {vHa}, {self.X}, {sH[q]} offen lds', 'halo'), Ins('s_mov_b32 exec_lo, -1')])
            hal.append([Ins(f'buffer_load_dwordx4 {vHb}, {self.X}, {sH[q]} offen offset:1024 lds', 'halo')])
        self.sCen = S.alloc(); self.sCoff = S.alloc(); self.sCv = S.alloc()
        cen = Asm()
        cen(f'@waitvm fz\ns_cmp_lg_u32 {s["W"]}, 0\ns_cbranch_scc1 L_nocen\n@raw 1\ns_atomic_add {self.sCen}, s[20:21], {self.sCoff}\n@raw 0\nL_nocen:\n@minlg 1')
        first = c0[1:2] + hal + c0[2:8]
        groups = first + [cen.L + self.p1_chunk_dma(1)[0]] + self.p1_chunk_dma(1)[1:]
        B = Asm()
        B(f's_getreg_b32 {s["T0"]}, hwreg(HW_REG_XCC_ID, 0, 4)\ns_mul_i32 {s["T1"]}, {s["T0"]}, {s["T0"]}\ns_lshl_b32 {s["T1"]}, {s["T1"]}, 13\ns_lshl_b32 {s["T0"]}, {s["T0"]}, 5')
        B(f's_add_u32 {self.sCen}, {s["T0"]}, {s["T1"]}\ns_add_u32 {self.sCen}, {self.sCen}, 1\ns_lshl_b32 {self.sCoff}, {s["G"]}, 4')
        B(f's_lshl_b32 {s["W1K"]}, {s["W"]}, 10\ns_lshl_b32 {s["T0"]}, {s["W"]}, 2\ns_add_u32 {self.sFme}, {self.sFme}, {s["T0"]}')
        self.ones = V.alloc(4, 2)
        for k in range(4): B(f'v_mov_b32 {self.ones[k]}, 0x3f803f80')
        B(f's_lshl_b32 {s["T0"]}, {s["W"]}, 12\nv_lshlrev_b32 {t1}, 11, {e}\nv_lshl_add_u32 {t1}, {ch}, 4, {t1}\nv_add_u32 {t1}, {s["T0"]}, {t1}')
        B(f's_mov_b64 exec, 0xffff\nds_write_b128 {t1}, {self.ones} offset:{L_HALO}\ns_mov_b64 exec, -1')
        B(f'v_mov_b32 v254, {L_SCR + 4092}')
        self.srd(B, 32, 8, 512*1024); self.srd(B, 40, 16, 1376*1024); self.srd(B, 44, 18, 2048*1024); self.srd(B, 52, 22, 0); self.srd(B, 56, 22, 0)
        B(f's_cmp_lt_u32 {s["W"]}, 2\ns_cselect_b32 s36, s12, s14\ns_cselect_b32 s37, s13, s15\ns_mov_b32 s38, {512*PITCH3}\ns_mov_b32 s39, 0x20000')
        S.free |= set(range(3, 20)) | {0, 1, 22, 23}
        self.sN3 = S.alloc(2); self.sInv512 = S.alloc()
        B(f's_cmp_lt_u32 {s["M"]}, 15\ns_cselect_b32 {self.sN3[0]}, s38, 0\ns_cmp_lt_u32 {s["M"]}, 14\ns_cselect_b32 {self.sN3[1]}, s38, 0')
        B(f's_mov_b32 {self.sInv512}, {fhex(1/512)}')
        self.vEps = V.alloc(); B(f'v_mov_b32 {self.vEps}, {fhex(1e-5)}')
        j = self.vJ = V.alloc(); g = self.vG = V.alloc(); self.vL16 = V.alloc()
        B(f'v_and_b32 {j}, 15, {vL}\nv_lshrrev_b32 {g}, 4, {vL}\nv_lshlrev_b32 {self.vL16}, 4, {vL}')
        self.aX = [V.alloc(), V.alloc()]; self.aXo = [V.alloc(), V.alloc()]; self.aW1 = V.alloc(); aHs = [V.alloc(), V.alloc()]
        B(f'v_lshrrev_b32 {t1}, 1, {j}\nv_xor_b32 {t1}, {t1}, {g}\nv_lshlrev_b32 {t1}, 4, {t1}\nv_lshl_add_u32 {self.aX[0]}, {j}, 7, {t1}\nv_xor_b32 {self.aX[1]}, 64, {self.aX[0]}')
        B(f'v_add_u32 {aHs[0]}, {s["T0"]}, {self.aX[0]}\nv_add_u32 {aHs[1]}, {s["T0"]}, {self.aX[1]}')
        B(f's_add_u32 {s["T0"]}, {self.sW2K}, {L_X}\nv_add_u32 {self.aXo[0]}, {s["T0"]}, {self.aX[0]}\nv_add_u32 {self.aXo[1]}, {s["T0"]}, {self.aX[1]}')
        ra = [V.alloc() for _ in range(4)]
        B(f'v_lshrrev_b32 {t1}, 1, {j}\nv_lshrrev_b32 {t2}, 1, {g}\nv_xor_b32 {t1}, {t1}, {t2}\nv_lshlrev_b32 {t1}, 4, {t1}\nv_and_b32 {t2}, 1, {g}\nv_lshl_add_u32 {t1}, {t2}, 3, {t1}')
        B(f'v_lshl_add_u32 {t1}, {j}, 7, {t1}\nv_add_u32 {ra[0]}, {s["T0"]}, {t1}')
        for ct in range(1, 4): B(f'v_xor_b32 {ra[ct]}, {ct*32}, {ra[0]}')
        self.vTRf = V.alloc(); self.vTRb = V.alloc()
        B(f'v_and_b32 {t1}, 3, {e}\nv_lshlrev_b32 {self.vTRf}, 5, {t1}')
        B(f'v_bfe_u32 {t1}, {vL}, 2, 2\nv_and_b32 {t2}, 3, {vL}\nv_lshlrev_b32 {t2}, 3, {t2}\nv_lshl_add_u32 {self.vTRb}, {t1}, 7, {t2}')
        B(f's_lshl_b32 {s["T0"]}, {s["W"]}, 5\nv_xor_b32 {t1}, {s["T0"]}, {self.vTRf}\nv_mul_u32_u24 {t2}, 3072, {g}\nv_add3_u32 {self.aW1}, {t1}, {t2}, {self.vTRb}\nv_add_u32 {self.aW1}, {L_W}, {self.aW1}')
        self.mB0 = S.alloc(2); self.mB1 = S.alloc(2); self.mDiag = S.alloc(2); mOwnA = S.alloc(2); mOwnB = S.alloc(2)
        B(f's_mov_b32 {self.mB0[0]}, 0xaaaaaaaa\ns_mov_b32 {self.mB0[1]}, 0xaaaaaaaa\ns_mov_b32 {self.mB1[0]}, 0xcccccccc\ns_mov_b32 {self.mB1[1]}, 0xcccccccc')
        B(f's_mov_b32 {self.mDiag[0]}, 0x00f0000f\ns_mov_b32 {self.mDiag[1]}, 0xf0000f00')
        def lanemask(fn):
            v = sum(1 << l for l in range(64) if fn(l & 15, l >> 4)); return v & 0xffffffff, v >> 32
        oa = lanemask(lambda jj, gg: 4*gg + (jj & 1) <= jj); ob = lanemask(lambda jj, gg: 4*gg + 2 + (jj & 1) <= jj)
        B(f's_mov_b32 {mOwnA[0]}, {hex(oa[0])}\ns_mov_b32 {mOwnA[1]}, {hex(oa[1])}\ns_mov_b32 {mOwnB[0]}, {hex(ob[0])}\ns_mov_b32 {mOwnB[1]}, {hex(ob[1])}')
        aTB = V.alloc(); aTBw = V.alloc(); aHPw = V.alloc(); aHPr = V.alloc()
        B(f'v_lshlrev_b32 {aTB}, 4, {j}\nv_add_u32 {aTB}, {SCR_TB}, {aTB}\nv_lshl_add_u32 {aTBw}, {s["W"]}, 8, {aTB}')
        B(f'v_lshlrev_b32 {aHPr}, 5, {j}\nv_add_u32 {aHPr}, {SCR_HP}, {aHPr}\nv_lshl_add_u32 {aHPw}, {s["W"]}, 3, {aHPr}')
        ka = V.alloc(); kb = V.alloc(); bias = V.alloc(2); sel = V.alloc(4)
        B(f'v_and_b32 {t1}, 1, {j}\nv_lshl_add_u32 {t1}, {g}, 2, {t1}\nv_lshlrev_b32 {t1}, 4, {t1}\nv_add_u32 {t1}, {SCR_TB + 8}, {t1}\nv_add_u32 {t2}, 256, {t1}')
        B(f'v_cndmask_b32 {ka}, {t1}, {t2}, {mOwnA}\nv_cndmask_b32 {kb}, {t1}, {t2}, {mOwnB}')
        B(f's_cmp_eq_u32 {s["BLK"]}, 0\ns_cselect_b32 {s["T0"]}, {fhex(-1e30)}, 0\nv_mov_b32 {t1}, {s["T0"]}\nv_mov_b32 {t3}, 0x0c0c0c0c')
        B(f'v_cndmask_b32 {bias[0]}, {t1}, 0, {mOwnA}\nv_cndmask_b32 {bias[1]}, {t1}, 0, {mOwnB}')
        B(f'v_mov_b32 {t1}, 0x0c0c0100\nv_mov_b32 {t2}, 0x01000c0c\nv_cndmask_b32 {t1}, {t1}, {t2}, {self.mB0}')
        B(f'v_cndmask_b32 {sel[0]}, {t1}, {t3}, {mOwnA}\nv_cndmask_b32 {sel[2]}, {t3}, {t1}, {mOwnA}')
        B(f'v_mov_b32 {t1}, 0x0c0c0302\nv_mov_b32 {t2}, 0x03020c0c\nv_cndmask_b32 {t1}, {t1}, {t2}, {self.mB0}')
        B(f'v_cndmask_b32 {sel[1]}, {t1}, {t3}, {mOwnB}\nv_cndmask_b32 {sel[3]}, {t3}, {t1}, {mOwnB}')
        self.sD = S.alloc(); self.vF = V.alloc(); self.vH = V.alloc(); self.vD = V.alloc()
        self.sBF = S.alloc(2); self.sBH = S.alloc(2); self.sR2 = S.alloc(4); self.sR3 = S.alloc(); self.sU = S.alloc(2)
        B(f's_and_b32 {s["PF"]}, {s["M"]}, 1\ns_mul_i32 {s["T0"]}, {s["M"]}, 192\ns_mul_i32 {s["T1"]}, {s["PF"]}, {PITCH3}')
        B(f's_add_u32 {s["T2"]}, {s["T0"]}, {s["T1"]}\ns_sub_u32 {s["T3"]}, {s["T0"]}, {s["T1"]}\ns_add_u32 {s["T3"]}, {s["T3"]}, {PITCH3}')
        B(f's_and_b32 {self.sR3}, {s["G"]}, 1\ns_lshl_b32 {self.sR3}, {self.sR3}, 2\ns_mul_i32 {s["T0"]}, {self.sR3}, {64*PITCH3}\ns_sub_u32 {s["T1"]}, {256*PITCH3}, {s["T0"]}')
        B(f's_add_u32 {self.sBF[0]}, {s["T2"]}, {s["T0"]}\ns_add_u32 {self.sBF[1]}, {s["T2"]}, {s["T1"]}\ns_add_u32 {self.sBH[0]}, {s["T3"]}, {s["T0"]}\ns_add_u32 {self.sBH[1]}, {s["T3"]}, {s["T1"]}')
        B(f's_and_b32 {s["T0"]}, {s["BLK"]}, 3\ns_lshl_b32 {s["T0"]}, {s["T0"]}, 17\ns_add_u32 {self.sR2[0]}, {s["T0"]}, {self.sC128}')
        for k in range(1, 4): B(f's_xor_b32 {self.sR2[k]}, {self.sR2[0]}, {k << 17}')
        B(f's_and_b32 {s["T0"]}, {s["W"]}, 1\ns_and_b32 {s["T1"]}, {s["W"]}, 2')
        B(f'v_and_b32 {t2}, 1, {e}\nv_lshl_add_u32 {t1}, {g}, 3, {t2}\nv_lshl_add_u32 {t1}, {s["T0"]}, 1, {t1}\nv_mul_u32_u24 {t1}, {2*PITCH3}, {t1}')
        B(f'v_and_b32 {t3}, 1, {g}\nv_or_b32 {t2}, {s["T1"]}, {t3}\nv_lshlrev_b32 {t2}, 1, {t2}\nv_xor_b32 {t2}, {t2}, {ch}\nv_lshl_add_u32 {self.vF}, {t2}, 4, {t1}')
        B(f'v_lshl_add_u32 {t1}, {s["T0"]}, 3, {e}\nv_lshlrev_b32 {t3}, 2, {t3}\nv_xor_b32 {t3}, {t3}, {ch}\nv_lshlrev_b32 {t3}, 4, {t3}\nv_lshl_add_u32 {self.vD}, {t1}, 10, {t3}')
        B(f'v_and_b32 {t1}, 3, {e}\nv_lshlrev_b32 {t1}, 3, {t1}\nv_lshrrev_b32 {t2}, 5, {vL}\nv_lshl_add_u32 {t1}, {t2}, 1, {t1}\nv_bfe_u32 {t2}, {vL}, 2, 1\nv_add_u32 {t1}, {t1}, {t2}\nv_lshl_add_u32 {t1}, {s["T0"]}, 2, {t1}\nv_mul_u32_u24 {t1}, {2*PITCH3}, {t1}')
        B(f'v_and_b32 {t2}, 3, {vL}\nv_xor_b32 {t2}, {s["T1"]}, {t2}\nv_lshl_add_u32 {self.vH}, {t2}, 4, {t1}')
        B(f's_lshl_b32 {s["T1"]}, {s["T1"]}, 13\ns_add_u32 {self.sU[0]}, {s["T1"]}, {self.sC128}\ns_mul_i32 {s["T1"]}, {s["T1"]}, 6\ns_add_u32 {self.sU[1]}, {s["T1"]}, {self.sC128}')
        self.sOst = S.alloc(); self.sHst = S.alloc(); vT = V.alloc(); v128 = self.v128 = V.alloc()
        if o['o_in_ws']: B(f's_lshl_b32 {self.sOst}, {s["SB"]}, 16\ns_add_u32 {self.sOst}, {self.sOst}, {s["GB"]}\ns_add_u32 {self.sOst}, {self.sOst}, {WS_O}')
        else: B(f's_lshl_b32 {self.sOst}, {s["BLK"]}, 16')
        B(f's_lshl_b32 {s["T1"]}, {s["C"]}, 13\ns_add_u32 {self.sOst}, {self.sOst}, {s["T1"]}\ns_add_u32 {self.sOst}, {self.sOst}, {self.sW2K}')
        B(f's_lshr_b32 {s["T1"]}, {s["W"]}, 1\ns_lshl_b32 {s["T2"]}, {s["SB"]}, 1\ns_add_u32 {s["T2"]}, {s["T2"]}, {s["T1"]}\ns_lshl_b32 {s["T2"]}, {s["T2"]}, 15')
        B(f's_lshl_b32 {s["T1"]}, {s["C"]}, 12\ns_add_u32 {s["T2"]}, {s["T2"]}, {s["T1"]}\ns_add_u32 {self.sHst}, {s["T2"]}, {s["GB"]}')
        B(f'v_lshlrev_b32 {v128}, 7, {vL}\ns_lshl_b32 {s["T0"]}, {s["T0"]}, 11\ns_add_u32 {s["T2"]}, {s["T2"]}, {s["T0"]}\nv_add_u32 {vT}, {s["T2"]}, {v128}')
        B(f's_lshl_b32 {s["T0"]}, {s["M"]}, 2\ns_add_u32 {s["T0"]}, {s["T0"]}, {s["W"]}\ns_lshl_b32 {s["T0"]}, {s["T0"]}, 7\ns_add_u32 {s["T1"]}, {s["T0"]}, {WS_ST}\nv_writelane_b32 {vT}, {s["T1"]}, 16')
        B(f's_and_b32 {s["T0"]}, {s["T0"]}, 0x380\ns_add_u32 {s["T1"]}, {s["T0"]}, {WS_FL}\nv_writelane_b32 {vT}, {s["T1"]}, 17')
        self.info['setupB'] = len(B.L)
        A.ext(sprinkle(B, groups, o['sp0'], start=o['sp0']))
        for r in (vHa, vHb, e, ch, sH, sZ): r.free()
        self.stamp('setup done')
        OSRD = self.WS if o['o_in_ws'] else self.OUT
        junk = V.alloc()
        def pf_group(kind):
            L = Asm()
            T0 = s["T0"]
            if kind == 'o': L(f's_mov_b64 exec, 0xffff\nbuffer_load_dword {junk}, {v128}, {OSRD}, {self.sOst} offen sc1')
            elif kind == 'h': L(f's_mov_b64 exec, 0x3ffff\nbuffer_load_dword {junk}, {vT}, {self.WS}, {s["GB"]} offen sc1')
            else:
                n, srd = {'wo': (4, self.WO), 'w3': (22, self.W3), 'wd': (11, self.WD)}[kind]
                if kind == 'w3': L(f's_and_b32 {T0}, {s["W"]}, 1\ns_lshl_b32 {s["T1"]}, s2, 1')
                else: L(f's_mov_b32 {T0}, {s["W"]}\ns_lshl_b32 {s["T1"]}, s2, 2')
                L(f's_add_u32 {T0}, {T0}, {s["T1"]}\ns_mul_i32 {T0}, {T0}, {n*128}')
                L(f's_mov_b64 exec, {hex((1 << n) - 1)}\nbuffer_load_dword {junk}, {v128}, {srd}, {T0} offen sc1')
            L('s_mov_b64 exec, -1')
            for x in L.L:
                if x.kind == 'vmem': x.defs = set()
            pre = [x for x in L.L[:-3]]
            return pre + [L.L[-3:]]
        self.aQ = [V.alloc(4, 2) for _ in range(5)]; self.aK = [V.alloc(4, 2) for _ in range(5)]; self.aV = [V.alloc(4, 2) for _ in range(5)]
        self.stG = V.alloc(4, 2); self.stS = V.alloc(4, 2)
        bufs = [([AG.alloc(4, 4) for _ in range(3)], [AG.alloc(4, 4) for _ in range(5)], AG.alloc(4, 4)) for _ in range(2)]
        hb = bufs[1][1]
        A('@waitvm halo')
        self.stamp('halo landed')
        for q in range(4): A(f'ds_read_b128 {hb[q]}, {aHs[q & 1]} offset:{L_HALO + (q >> 1)*2048}')
        for q in range(4):
            A(f'v_mfma_f32_16x16x32_bf16 {self.stG}, {hb[q]}, {hb[q]}, {self.stG if q else 0}')
            A(f'v_mfma_f32_16x16x32_bf16 {self.stS}, {self.ones}, {hb[q]}, {self.stS if q else 0}')
        A.ext(self.diag_code(self.stG, self.stS[1]))
        A(f's_mov_b64 exec, {self.mDiag}\nds_write_b64 {aHPw}, {self.stS.sub(0, 2)}\ns_mov_b64 exec, -1')
        A('@waitlg0\n@waitvm ch0\ns_barrier')
        self.stamp('chunk0 visible')
        A.ext(self.p1_reads(0, 0, bufs[0]))
        self.resx = V.alloc(8, 2); hp = V.alloc(8, 2); tb4 = V.alloc(4, 2)
        extra = [Ins(f'ds_read_b128 {hp.sub(0, 4)}, {aHPr}'), Ins(f'ds_read_b128 {hp.sub(4, 4)}, {aHPr} offset:16')]
        extra += [Ins(f'ds_read_b64 {self.resx.sub(2*ct, 2)}, {ra[ct]}') for ct in range(4)]
        hs = Asm()
        for a_, b_ in ((0, 2), (1, 3), (4, 6), (5, 7), (0, 4), (1, 5)): hs(f'v_add_f32 {hp[a_]}, {hp[a_]}, {hp[b_]}')
        hs.ext(self.stats_code(hp[1], hp[0], tb4)); hs(f'ds_write_b128 {aTB}, {tb4}')
        flat = lambda gs: [x for gq in gs for x in gq]
        misc = flat(self.p1_chunk_dma(2))
        self.gap_since_vm = 99
        for n in range(16):
            i, st = n >> 1, n & 1
            if n: A('@waitlg0')
            if o.get('fine') and st == 0: self.stamp(f'p1 chunk {i}')
            if st == 1 and i < 7:
                A(f'@waitvm ch{i+1}\ns_barrier')
                if i == 4: A('@minlg 0')
                if i + 3 < 8: misc += flat(self.p1_chunk_dma(i + 3))
                if i == 4: misc += [Ins(f'v_mov_b32 {t1}, {self.sCoff}'), Ins(f'global_load_dword {t2}, {t1}, s[20:21] sc1')]
                for kind, at in o['pf'].items():
                    if at == i: misc += pf_group(kind)
                if i == 5:
                    self.free_blocks += [23, 24, 25, 26, 27]
                    misc += flat(self.dmas(16))
                if i == 6: self.free_blocks += [22, 8, 9] + list(range(10, 16)) + [4, 5]
            if n == 2: misc[:0] = hs.L
            mf = self.p1_mfmas(bufs[n & 1], n == 0)
            if n < 15:
                rd = self.p1_reads((n + 1) >> 1, (n + 1) & 1, bufs[(n + 1) & 1])
                if n == 0: rd = rd + extra
                self.weave16(mf, rd, misc, vgap=3 if n < 2 else 4)
            else:
                code = self.diag_code(self.stG, self.stS[1]) + self.stats_code(self.stS[1], self.stS[0], tb4)
                code.append([Ins(f's_mov_b64 exec, {self.mDiag}'), Ins(f'ds_write_b128 {aTBw}, {tb4} offset:256'), Ins('s_mov_b64 exec, -1')])
                self.weave16(mf[:5], [], misc)
                self.weave16(mf[5:13], [], code); assert not code
                self.weave16(mf[13:], [], misc)
        self.stamp('p1 gemm done')
        for b in bufs:
            for r in b[0] + b[1] + [b[2]]: r.free()
        for r in ra + aHs + [hp, aHPw, aHPr, aTBw, vT, junk, tb4, self.stG, self.stS, self.aW1, self.vXa, self.vXb, self.vW1] + self.aX + self.aXo: r.free()
        left = []; cur = []
        for x in misc:
            cur += x if isinstance(x, list) else [x]
            if any(y.kind == 'vmem' for y in cur): left.append(cur); cur = []
        assert not cur
        self.info['w2_left'] = len(left)
        if left: A.ext(left.pop(0))
        A(f'v_readfirstlane_b32 {self.sCv}, {t2}\n@waitlg0\ns_barrier')
        self.free_blocks += list(range(16, 22)) + [6, 7, 0, 1, 2, 3]
        tb = [V.alloc(4, 2) for _ in range(5)]
        for t in range(5): A(f'ds_read_b128 {tb[t]}, {aTB} offset:{t*256}')
        rk = [None] + [V.alloc(2) for _ in range(4)]
        for t in range(1, 5): A(f'ds_read_b32 {rk[t][0]}, {ka} offset:{(t-1)*256}\nds_read_b32 {rk[t][1]}, {kb} offset:{(t-1)*256 + 32}')
        olo = 48 if o['o_in_ws'] else 44; osz = o['ws_base'] + WS_SIZE if o['o_in_ws'] else 2048*1024
        A(f's_mov_b32 s24, s{olo}\ns_mov_b32 s25, s{olo+1}\ns_mov_b32 s28, s{olo}\ns_mov_b32 s29, s{olo+1}')
        A(f's_mov_b32 s26, {osz}\ns_mov_b32 s30, 0\ns_mov_b32 s54, s50')
        A(f's_lshl_b32 {s["T0"]}, {self.sCen}, 4\ns_cmp_eq_u32 {s["T0"]}, {self.sCv}')
        if o['force_slow']: A('s_cmp_eq_u32 0, 1')
        A('s_cbranch_scc0 L_notfast\nL_mode_ok:')
        T = self.tail
        T(f'L_notfast:\ns_mov_b32 {s["T1"]}, 0x8000\nL_cen_loop:\nglobal_load_dword {t2}, {t1}, s[20:21] sc1\ns_waitcnt vmcnt(0)\nv_readfirstlane_b32 {self.sCv}, {t2}')
        T(f's_sub_u32 {s["T1"]}, {s["T1"]}, 1\ns_cbranch_scc1 L_cen_done\ns_and_b32 {s["T2"]}, {self.sCv}, 31\ns_cmp_lt_u32 {s["T2"]}, 16\ns_cbranch_scc1 L_cen_loop\nL_cen_done:')
        if not o['force_slow']: T(f's_cmp_eq_u32 {s["T0"]}, {self.sCv}\ns_cbranch_scc1 L_mode_ok')
        T(f's_mov_b32 s26, 0\ns_mov_b32 s30, {osz}\ns_mov_b32 s54, 0\ns_mov_b32 s58, s50')
        T(f's_add_u32 {s["FL"]}, {s["FL"]}, {FL_SLOW}\ns_add_u32 {self.sFme}, {self.sFme}, {FL_SLOW}\ns_mov_b64 exec, 0x111\nv_mov_b32 {t2}, 0')
        T(f'buffer_store_dword {t2}, {self.vFz}, {self.WS}, {self.sFme} offen sc1\ns_waitcnt vmcnt(0)\ns_mov_b64 exec, 1\nv_mov_b32 {t2}, 1')
        T(f'global_atomic_add {t1}, {t2}, s[20:21] offset:4 sc1\ns_mov_b64 exec, -1\ns_mov_b32 {s["T1"]}, 0x8000')
        T(f'L_slow_loop:\nglobal_load_dword {t2}, {t1}, s[20:21] offset:4 sc1\ns_waitcnt vmcnt(0)\nv_readfirstlane_b32 {s["T0"]}, {t2}')
        T(f's_sub_u32 {s["T1"]}, {s["T1"]}, 1\ns_cbranch_scc1 L_mode_ok\ns_cmp_lt_u32 {s["T0"]}, 64\ns_cbranch_scc1 L_slow_loop\ns_branch L_mode_ok')
        E = Asm()
        csq = V.alloc(4, 2); csk = V.alloc(4, 2); csv = V.alloc(2, 2)
        for r in range(4): E(f'v_mov_b32_dpp {csk[r]}, {self.aK[0][r]} row_newbcast:0 row_mask:0xf bank_mask:0xf')
        for r in range(4): E(f'v_mov_b32_dpp {csq[r]}, {self.aQ[0][r]} row_newbcast:0 row_mask:0xf bank_mask:0xf')
        E(f'v_cvt_pk_bf16_f32 {t1}, {self.aV[0][0]}, {self.aV[0][0]}\nv_mov_b32 {csv[0]}, 0\nv_and_b32 {t1}, 0xffff0000, {t1}\nv_mov_b32 {csv[1]}, 0\nv_sub_f32 {t2}, {self.aV[0][0]}, {t1}')
        E(f's_mov_b64 exec, 0xffff\nv_cvt_pk_bf16_f32 {csv[1]}, {t1}, {t2}\ns_mov_b64 exec, -1')
        Kp = V.alloc(10, 2); Qp = V.alloc(10, 2); Vp = V.alloc(10, 2)
        def fixf(acc, cs, t):
            for h in range(2): E(f'v_pk_fma_f32 {acc[t].sub(2*h, 2)}, {cs.sub(2*h, 2)}, {tb[t].sub(0, 2)}, {acc[t].sub(2*h, 2)} op_sel_hi:[1,0,1]')
        fixf(self.aK, csk, 0)
        for t in range(1, 5): fixf(self.aK, csk, t); fixf(self.aQ, csq, t)
        zs = [None] + [V.alloc(2) for _ in range(4)]
        for t in range(1, 5): E(f'v_pk_mul_f32 {zs[t]}, {rk[t]}, {tb[t].sub(2, 2)} op_sel:[0,1] op_sel_hi:[1,1]')
        cv = lambda acc, dst, t: [f'v_cvt_pk_bf16_f32 {dst[2*t + h]}, {acc[t][2*h]}, {acc[t][2*h+1]}' for h in range(2)]
        vm = [f'v_mfma_f32_16x16x16_bf16 {self.aV[t]}, {tb[t].sub(0, 2)}, {csv}, {self.aV[t]}' for t in range(5)]
        cvs = cv(self.aK, Kp, 0)
        for t in range(1, 5): cvs += cv(self.aK, Kp, t) + cv(self.aQ, Qp, t)
        for t in range(5):
            E(vm[t]); E(cvs.pop(0)); E(cvs.pop(0))
        Sp, So = self.aK, self.aQ
        Sp = [None] + self.aK[0:4]; So = [None] + self.aQ[0:4]
        for t in range(1, 5):
            E(f'v_mfma_f32_16x16x16_bf16 {Sp[t]}, {Kp.sub(2*t-2, 2)}, {Qp.sub(2*t, 2)}, 0')
            for _ in range(2):
                if cvs: E(cvs.pop(0))
            E(f'v_mfma_f32_16x16x16_bf16 {So[t]}, {Kp.sub(2*t, 2)}, {Qp.sub(2*t, 2)}, 0')
            for _ in range(2):
                if cvs: E(cvs.pop(0))
        z = [None] + [V.alloc(2) for _ in range(4)]
        for t in range(1, 5):
            for h, mk in ((0, mOwnA), (1, mOwnB)):
                E(f'v_cndmask_b32 {Sp[t][2*h]}, {Sp[t][2*h]}, {Sp[t][2*h+1]}, {self.mB0}\nv_cndmask_b32 {So[t][2*h]}, {So[t][2*h]}, {So[t][2*h+1]}, {self.mB0}')
                E(f'v_cndmask_b32 {z[t][h]}, {Sp[t][2*h]}, {So[t][2*h]}, {mk}')
        E(f'v_pk_fma_f32 {z[1]}, {z[1]}, {zs[1]}, {bias}')
        for t in range(2, 5): E(f'v_pk_mul_f32 {z[t]}, {z[t]}, {zs[t]}')
        red = zs
        fl = [x for t in range(5) for x in cv(self.aV, Vp, t)]
        def fill(n):
            for _ in range(n):
                if fl: E(fl.pop(0))
        def allreduce(op, mid=None):
            r = [None] + [red[t][0] for t in range(1, 5)]
            for t in (1, 3, 2, 4): E(f'{op} {r[t]}, {z[t][0]}, {z[t][1]}')
            E(f'v_permlane32_swap_b32 {r[1]}, {r[3]}'); fill(1)
            E(f'v_permlane32_swap_b32 {r[2]}, {r[4]}')
            E(f'{op} {r[1]}, {r[1]}, {r[3]}\n{op} {r[2]}, {r[2]}, {r[4]}'); fill(2)
            E(f'v_permlane16_swap_b32 {r[1]}, {r[2]}')
            E(f'{op} {r[1]}, {r[1]}, {r[2]}')
            if mid: E(f'{mid} {r[1]}, {r[1]}'); fill(1)
            E(f'v_mov_b32 {r[2]}, {r[1]}'); fill(2)
            E(f'v_permlane16_swap_b32 {r[1]}, {r[2]}')
            E(f'v_mov_b32 {r[3]}, {r[1]}\nv_mov_b32 {r[4]}, {r[2]}'); fill(1)
            E(f'v_permlane32_swap_b32 {r[1]}, {r[3]}\nv_permlane32_swap_b32 {r[2]}, {r[4]}')
        allreduce('v_max_f32')
        for t in range(1, 5): E(f'v_pk_add_f32 {z[t]}, {z[t]}, {red[t]} op_sel_hi:[1,0] neg_lo:[0,1] neg_hi:[0,1]')
        for t in range(1, 5): E(f'v_exp_f32 {z[t][0]}, {z[t][0]}\nv_exp_f32 {z[t][1]}, {z[t][1]}')
        fl += [f'v_pk_mul_f32 {rk[t]}, {z[t]}, {rk[t]}' for t in range(1, 5)]
        allreduce('v_add_f32', 'v_rcp_f32')
        fill(20)
        for t in range(1, 5): E(f'v_pk_mul_f32 {z[t]}, {rk[t]}, {red[t]} op_sel_hi:[1,0]')
        for t in range(1, 5): E(f'v_cvt_pk_bf16_f32 {z[t][0]}, {z[t][0]}, {z[t][1]}')
        P = Sp; O = So
        for t in range(1, 5):
            for q in range(4):
                E(f'v_perm_b32 {P[t][q]}, {z[t][0]}, {z[t][0]}, {sel[q]}')
                if q == 1 and t > 1: E(f'v_mfma_f32_16x16x32_bf16 {O[t-1]}, {Vp.sub(2*t-4, 4)}, {P[t-1]}, 0')
        of = [self.aV[0], self.aV[1]]
        oc = lambda t: [f'v_cvt_pk_bf16_f32 {of[(t-1) >> 1][2*((t-1) & 1) + h]}, {O[t][2*h]}, {O[t][2*h+1]}' for h in range(2)]
        for x in oc(1): E(x)
        E(f'v_mfma_f32_16x16x32_bf16 {O[4]}, {Vp.sub(6, 4)}, {P[4]}, 0')
        groups = left + self.dmas(o['b_epi'])
        A.ext(sprinkle(E, groups, o.get('sp1', 18), start=8))
        for x in oc(2) + oc(3): A(x)
        A(f'v_permlane16_swap_b32 {of[0][0]}, {of[0][2]}\nv_permlane16_swap_b32 {of[0][1]}, {of[0][3]}')
        for x in oc(4): A(x)
        self.store2(A, 'dwordx4', of[0], self.vL16, self.sOst, 0, 'ost', (self.X, self.WQ))
        A(f'v_permlane16_swap_b32 {of[1][0]}, {of[1][2]}\nv_permlane16_swap_b32 {of[1][1]}, {of[1][3]}')
        self.store2(A, 'dwordx4', of[1], self.vL16, self.sOst, 1024, 'ost', (self.X, self.WQ))
        self.stamp('o stored')
        self.OSRD = OSRD
        for r in tb + rk[1:] + zs[1:] + z[1:] + [csq, csk, csv, Kp, Qp, Vp, bias, sel, aTB, ka, kb, self.vFz] + self.aQ + self.aK + self.aV[2:]: r.free()
        for r in (mOwnA, mOwnB, self.sCen, self.sCoff, self.sCv, self.sW3K, self.sKC, self.sSO): r.free()
        self.of = of

    def phase2(self):
        A, V, S, AG, s, vL, o = self.A, self.V, self.S, self.AG, self.s, self.vL, self.o
        t1, t2, t3, j, g = self.t1, self.t2, self.t3, self.vJ, self.vG
        self.vFv = V.alloc(); self.vPv = V.alloc()
        assert ('W2', 15) in self.loc
        aw = [V.alloc() for _ in range(4)]
        A(f'v_lshl_add_u32 {t1}, {g}, 10, {self.vTRb}\nv_add_u32 {t1}, {23*BLK}, {t1}')
        for ct in range(4): A(f'v_xor_b32 {t2}, {ct*32}, {self.vTRf}\nv_add_u32 {aw[ct]}, {t1}, {t2}')
        pa = V.alloc(); oa = V.alloc(); hv = V.alloc(); sSt = S.alloc(); vj16 = V.alloc(); aRw = V.alloc()
        A(f's_lshl_b32 {s["T0"]}, {s["SB"]}, 7\nv_and_b32 {t1}, 31, {vL}\nv_lshl_add_u32 {pa}, {t1}, 2, {s["T0"]}')
        A(f's_lshr_b32 {s["T0"]}, {s["W"]}, 1\ns_lshl_b32 {s["T0"]}, {s["T0"]}, 10\ns_and_b32 {s["T1"]}, {s["W"]}, 1\ns_lshl_b32 {s["T1"]}, {s["T1"]}, 8')
        A(f'v_lshlrev_b32 {vj16}, 4, {j}\nv_and_b32 {t1}, 1, {g}\nv_lshl_add_u32 {t1}, {t1}, 9, {vj16}\nv_lshrrev_b32 {t2}, 1, {g}\nv_lshl_add_u32 {t1}, {t2}, 11, {t1}\nv_add_u32 {hv}, {s["T1"]}, {t1}\nv_add_u32 {oa}, {s["T0"]}, {hv}')
        A(f's_and_b32 {s["T2"]}, {self.sOst}, 0xffff0000\ns_and_b32 {s["T3"]}, {s["BLK"]}, 3\ns_lshl_b32 {s["T3"]}, {s["T3"]}, 14\ns_add_u32 {self.sR2[0]}, {s["T2"]}, {s["T3"]}')
        for k in range(1, 4): A(f's_xor_b32 {self.sR2[k]}, {self.sR2[0]}, {k << 14}')
        acc = [V.alloc(4, 2) for _ in range(4)]
        for ct in range(4):
            for h in range(2):
                A(f'v_lshlrev_b32 {acc[ct][2*h]}, 16, {self.resx[2*ct+h]}\nv_and_b32 {acc[ct][2*h+1]}, 0xffff0000, {self.resx[2*ct+h]}')
        A(f's_lshl_b32 {s["T0"]}, {s["T0"]}, 1\ns_add_u32 {sSt}, {s["T0"]}, {s["T1"]}\ns_lshl_b32 {s["T0"]}, {s["SB"]}, 12\ns_add_u32 {sSt}, {sSt}, {s["T0"]}')
        A(f's_and_b32 {s["T0"]}, {s["C"]}, 2\ns_lshl_b32 {s["T0"]}, {s["T0"]}, 9\ns_add_u32 {sSt}, {sSt}, {s["T0"]}\ns_and_b32 {s["T0"]}, {s["C"]}, 4\ns_lshl_b32 {s["T0"]}, {s["T0"]}, 7\ns_add_u32 {sSt}, {sSt}, {s["T0"]}')
        A(f's_and_b32 {s["T0"]}, {s["C"]}, 1\ns_lshl_b32 {s["T0"]}, {s["T0"]}, 3\ns_add_u32 {sSt}, {sSt}, {s["T0"]}\ns_add_u32 {sSt}, {sSt}, {s["GB"]}\ns_add_u32 {sSt}, {sSt}, {WS_ST}')
        A('@waitvm ost')
        for r in self.of: r.free()
        self.stamp('o drained')
        A.ext(self.signal(0, 1))
        A('@waitvm W2_15\ns_barrier')
        Wf = [[AG.alloc(4, 4) for _ in range(4)] for _ in range(16)]
        def rd(i):
            off = (self.loc[('W2', i)] - 23)*BLK
            return [Ins(f'ds_read_b64_tr_b16 {Wf[i][ct].sub(2*a, 2)}, {aw[ct]} offset:{off + a*512}') for ct in range(4) for a in range(2)]
        npre = o['w2pre']
        A.ext(sprinkle([x for i in range(npre) for x in rd(i)], self.dmas(o['b_post1']), 8))
        self.poll_block(A, pa, 1); A('@drained_vm')
        self.stamp('sync1 done')
        Of = [V.alloc(4, 2) for _ in range(16)]
        ld = [[Ins(f's_add_u32 {s["T1"]}, {self.sR2[i >> 2]}, {(i & 3) << 12}'), Ins(f'buffer_load_dwordx4 {Of[i]}, {oa}, {self.OSRD}, {s["T1"]} offen sc1')] for i in range(16)]
        rest = [x for i in range(npre, 16) for x in rd(i)]
        LO = o['LO']
        for i in range(LO):
            A.ext(ld[i]); A.ext(rest[:5]); rest = rest[5:]
        misc = [x for gq in ld[LO:] + self.dmas(o['b_o']) for x in gq]
        mf = [Ins(f'v_mfma_f32_16x16x32_bf16 {acc[ct]}, {Wf[i][ct]}, {Of[i]}, {acc[ct]}') for i in range(16) for ct in range(4)]
        assert len(rest) <= 52, len(rest)
        self.gap_since_vm = 99
        self.weave16(mf, rest, misc)
        A.ext(misc)
        self.stamp('p2 gemm done')
        w2b = sorted(self.loc[('W2', i)] for i in range(16))
        self.resb = w2b[0]; assert w2b[1] == w2b[0] + 1
        A(f's_add_u32 {s["T0"]}, {self.sW2K}, {self.resb*BLK}\nv_lshlrev_b32 {t1}, 7, {j}\nv_lshl_add_u32 {t1}, {g}, 3, {t1}')
        A(f'v_bfe_u32 {t2}, {j}, 0, 2\nv_lshl_add_u32 {t1}, {t2}, 5, {t1}\nv_add_u32 {aRw}, {s["T0"]}, {t1}\ns_barrier')
        self.free_blocks += w2b[2:]
        hf = [Of[0], Of[1]]; G4, S4 = Of[2], Of[3]
        for par in range(2):
            for ct in range(4): A(f'v_cvt_pk_bf16_f32 {hf[par][ct]}, {acc[ct][par]}, {acc[ct][2+par]}')
        rp = Reg('v', Of[4].b, 8); assert Of[5].b == Of[4].b + 4
        rc = [f'v_cvt_pk_bf16_f32 {rp[2*ct+h]}, {acc[ct][2*h]}, {acc[ct][2*h+1]}' for ct in range(4) for h in range(2)]
        A(f'v_mfma_f32_16x16x32_bf16 {G4}, {hf[0]}, {hf[0]}, 0')
        self.store2(A, 'dwordx4', hf[0], hv, self.sHst, 0, 'hst')
        A(f'v_mfma_f32_16x16x32_bf16 {G4}, {hf[1]}, {hf[1]}, {G4}')
        A(f'v_mfma_f32_16x16x32_bf16 {S4}, {self.ones}, {hf[0]}, 0')
        A(f'v_mfma_f32_16x16x32_bf16 {S4}, {self.ones}, {hf[1]}, {S4}')
        self.store2(A, 'dwordx4', hf[1], hv, self.sHst, 1024, 'hst')
        d = self.diag_code(G4, S4[1])
        A('\n'.join(rc[:3])); A.ext(d[:2]); A(rc[3]); A.ext(d[2:])
        A(f's_mov_b64 exec, {self.mDiag}')
        self.store2(A, 'dwordx2', S4.sub(0, 2), vj16, sSt, 0, 'hst')
        A('s_mov_b64 exec, -1')
        self.stamp('h stored')
        A('\n'.join(rc[4:]))
        A(f'ds_write_b64 {aRw}, {rp.sub(0, 2)}')
        for ct in range(1, 4): A(f'v_xor_b32 {t1}, {ct*32}, {aRw}\nds_write_b64 {t1}, {rp.sub(2*ct, 2)}')
        for r in aw + [pa, oa, hv, vj16, aRw] + acc + Of[6:] + [x for y in Wf for x in y] + [self.vW2, self.mB0, self.mB1, self.mDiag, self.sR2, sSt, self.sOst, self.sHst, self.ones]: r.free()
        self.late_free = Of[:6]

    def phase34(self):
        A, V, S, AG, s, vL, o = self.A, self.V, self.S, self.AG, self.s, self.vL, self.o
        t1, t2, t3, j, g = self.t1, self.t2, self.t3, self.vJ, self.vG
        P = Asm()
        Q = Asm()
        class Win:
            def __init__(w, base): w.r = {0: base}
            def need(w, k):
                if k in w.r: return []
                w.r[k] = V.alloc()
                return [Ins(f'v_add_u32 {w.r[k]}, {k << 16}, {w.r[0]}')]
        aF, aH, aD = [], [], []
        P(f'v_and_b32 {t1}, 1, {g}\nv_lshlrev_b32 {t1}, 11, {t1}\nv_lshrrev_b32 {t2}, 1, {g}\nv_lshl_add_u32 {t3}, {t2}, 10, {t1}')
        b0 = V.alloc(); P(f'v_add3_u32 {b0}, {t3}, {self.vTRb}, {self.vTRf}'); aF.append(Win(b0))
        for uu in range(1, 4):
            b = V.alloc(); P(f'v_xor_b32 {b}, {uu*32}, {b0}'); aF.append(Win(b))
        b0 = V.alloc(); b1 = V.alloc()
        P(f'v_lshl_add_u32 {t3}, {t2}, 9, {t1}\nv_bfe_u32 {t1}, {vL}, 2, 2\nv_lshl_add_u32 {t3}, {t1}, 6, {t3}\nv_and_b32 {t1}, 3, {vL}\nv_lshl_add_u32 {t3}, {t1}, 3, {t3}\nv_and_b32 {t1}, 1, {g}\nv_lshl_add_u32 {b0}, {t1}, 5, {t3}\nv_xor_b32 {b1}, 32, {b0}')
        aH = [Win(b0), Win(b1)]
        P(f's_and_b32 {s["T1"]}, {s["W"]}, 2\nv_or_b32 {t1}, {s["T1"]}, {t1}\nv_lshlrev_b32 {t1}, 5, {t1}')
        b = V.alloc(); P(f'v_xor_b32 {b}, {t1}, {self.vL16}\nv_add_u32 {b}, {s["W1K"]}, {b}'); aCF = Win(b)
        b = V.alloc(); P(f's_lshl_b32 {s["T1"]}, {s["T1"]}, 4\nv_xor_b32 {b}, {s["T1"]}, {self.vL16}\nv_add_u32 {b}, {s["W1K"]}, {b}'); aCH = Win(b)
        delta = V.alloc(4, 2)
        P(f'v_and_b32 {t1}, 1, {j}\nv_lshlrev_b32 {t1}, 4, {t1}\nv_mov_b32 {t2}, 0x3f80\nv_lshlrev_b32 {t1}, {t1}, {t2}')
        for d in range(4):
            mk = 0x00030003 << (2*d)
            P(f's_mov_b32 vcc_lo, {hex(mk)}\ns_mov_b32 vcc_hi, {hex(mk)}\nv_cndmask_b32 {delta[d]}, 0, {t1}, vcc')
        pa2 = V.alloc(); pa3 = V.alloc(); aRes = V.alloc()
        sT4 = S.alloc(); sGst = S.alloc(); sGld = S.alloc(2); sHF = S.alloc(2); sHH = S.alloc(2); sKH = S.alloc(); sTH = S.alloc(); sSl = S.alloc(); sGs2 = S.alloc()
        P(f's_lshr_b32 {sKH}, {s["W"]}, 1\ns_and_b32 {sTH}, {s["W"]}, 1')
        P(f's_lshl_b32 {s["T1"]}, {sKH}, 7\ns_lshl_b32 {s["T2"]}, {sTH}, 3\ns_add_u32 {s["T1"]}, {s["T1"]}, {s["T2"]}\ns_add_u32 {s["T1"]}, {s["T1"]}, 256')
        P(f'v_lshrrev_b32 {t1}, 1, {j}\nv_lshl_add_u32 {t1}, {t1}, 4, {s["T1"]}\nv_and_b32 {t2}, 1, {j}\nv_lshl_add_u32 {pa2}, {t2}, 2, {t1}')
        P(f's_lshl_b32 {s["T1"]}, {s["W"]}, 15\ns_add_u32 {s["T1"]}, {s["T1"]}, {s["GB"]}\ns_lshl_b32 {s["T2"]}, {s["PF"]}, 10\ns_add_u32 {s["T1"]}, {s["T1"]}, {s["T2"]}')
        P(f's_lshl_b32 {s["T2"]}, {self.sR3}, 12\ns_add_u32 {sHF[0]}, {s["T1"]}, {s["T2"]}\ns_xor_b32 {sHF[1]}, {sHF[0]}, 0x4000\ns_xor_b32 {sHH[0]}, {sHF[0]}, 1024\ns_xor_b32 {sHH[1]}, {sHF[1]}, 1024')
        P(f's_lshl_b32 {s["T2"]}, {sTH}, 12\ns_add_u32 {s["T2"]}, {s["T2"]}, {self.resb*BLK}\nv_lshrrev_b32 {t2}, 5, {vL}\nv_lshl_add_u32 {t2}, {sKH}, 1, {t2}\nv_and_b32 {t1}, 3, {vL}\nv_xor_b32 {t2}, {t2}, {t1}')
        P(f'v_and_b32 {t1}, 31, {vL}\nv_lshl_add_u32 {t1}, {t1}, 7, {s["T2"]}\nv_lshl_add_u32 {aRes}, {t2}, 5, {t1}')
        Q(f's_add_u32 {s["T3"]}, {s["GB"]}, {WS_G}\ns_mul_i32 {sGst}, {s["W"]}, {96*KB}\ns_add_u32 {sGst}, {sGst}, {s["T3"]}\ns_mul_i32 {s["T2"]}, {s["M"]}, {6*KB}\ns_add_u32 {sGst}, {sGst}, {s["T2"]}')
        Q(f's_add_u32 {sGs2}, {sGst}, 4096\ns_add_u32 {sSl}, {self.sW2K}, {s["GB"]}\ns_add_u32 {sSl}, {sSl}, {WS_ST}')
        Q(f's_lshl_b32 {sT4}, {s["SB"]}, 1\ns_add_u32 {sT4}, {sT4}, {sTH}')
        Q(f's_mul_i32 {s["T2"]}, {sT4}, {96*KB}\ns_add_u32 {s["T3"]}, {s["T3"]}, {s["T2"]}\ns_lshl_b32 {s["T2"]}, {sKH}, 10\ns_add_u32 {sGld[0]}, {s["T3"]}, {s["T2"]}\ns_mul_i32 {s["T2"]}, {s["T2"]}, 6\ns_add_u32 {sGld[1]}, {s["T3"]}, {s["T2"]}')
        Q(f's_lshl_b32 {s["T2"]}, {sT4}, 2\ns_add_u32 {s["T2"]}, {s["T2"]}, 512\nv_lshl_add_u32 {pa3}, {j}, 4, {s["T2"]}')
        Q(f'v_bfe_u32 {t1}, {vL}, 2, 2\nv_lshrrev_b32 {t2}, 1, {g}\nv_lshl_add_u32 {t1}, {t2}, 2, {t1}\nv_lshlrev_b32 {t3}, 7, {t1}\nv_bfe_u32 {t1}, {vL}, 3, 1\nv_lshl_add_u32 {t3}, {t1}, 6, {t3}')
        Q(f'v_and_b32 {t1}, 1, {vL}\nv_lshl_add_u32 {t3}, {t1}, 5, {t3}\nv_and_b32 {t1}, 1, {g}\nv_lshl_add_u32 {t3}, {t1}, 4, {t3}\nv_bfe_u32 {t1}, {vL}, 1, 1\nv_lshl_add_u32 {t3}, {t1}, 3, {t3}')
        b0 = V.alloc(); b1 = V.alloc()
        Q(f's_mul_i32 {s["T2"]}, {sKH}, {2048 + 64}\nv_xor_b32 {b0}, {s["T2"]}, {t3}\nv_xor_b32 {b1}, 64, {b0}')
        aD = [Win(b0), Win(b1)]
        aCW = V.alloc(); aCR = V.alloc()
        Q(f's_lshl_b32 {s["T2"]}, {sTH}, 10\ns_lshl_b32 {s["T3"]}, {sKH}, 9\ns_add_u32 {s["T2"]}, {s["T2"]}, {s["T3"]}\ns_add_u32 {s["T2"]}, {s["T2"]}, {SCR_CS}')
        Q(f'v_lshl_add_u32 {t1}, {g}, 4, {s["T2"]}\nv_lshl_add_u32 {aCW}, {j}, 5, {t1}')
        Q(f'v_and_b32 {t1}, 1, {g}\nv_lshlrev_b32 {t1}, 9, {t1}\nv_lshl_add_u32 {t1}, {j}, 2, {t1}\nv_lshl_add_u32 {t1}, {t2}, 11, {t1}\nv_add_u32 {aCR}, {SCR_CS}, {t1}')
        cA = V.alloc(4, 2); cB = V.alloc(4, 2); cT = V.alloc(2)
        for r in (cA, cB):
            for k in range(1, 4): Q(f'v_mov_b32 {r[k]}, 0')
        self.info['setupP'] = len(P.L); self.info['setupQ'] = len(Q.L)
        HB = {('F', i): AG.at(8*i, 4) for i in range(16)}; HB.update({('H', i): AG.at(8*i + 4, 4) for i in range(16)})
        ops = []
        def op3(u, ty, i):
            if ty == 'F':
                if u < 4: key, ad, st, ex = ('F1', i), aF[u], 512, 0
                else: key, ad, st, ex = ('S3', i >> 1), aH[u - 4], 256, (i & 1)*1024
            else:
                if u < 2: key, ad, st, ex = ('H1', i >> 1), aH[u], 256, (i & 1)*1024
                else: key, ad, st, ex = ('S2', i), aF[u - 2], 512, 0
            ops.append(dict(k='m', u=u, key=key, ad=ad, st=st, ex=ex, B=HB[(ty, i)], hk=(ty, i)))
        if o['order'] == 'pair':
            for i in range(16):
                for ty in 'FH':
                    for u in (0, 1): op3(u, ty, i)
            for i in range(16):
                for u in (2, 3): op3(u, 'F', i)
        else:
            for i in range(16):
                for u in range(4): op3(u, 'F', i)
                for u in (0, 1): op3(u, 'H', i)
        for u in (2, 3):
            for i in range(16): op3(u, 'H', i)
        if o.get('o45', 'mix') == 'mix':
            for i in range(16):
                for u in (4, 5): op3(u, 'H', i)
            for u in (4, 5):
                for i in range(16): op3(u, 'F', i)
        else:
            for u in (4, 5):
                for ty in 'HF':
                    for i in range(16): op3(u, ty, i)
        NG, NR, LA, BI = o['NG'], o['NR'], o['LA'], o['BI']
        GB = [AG.alloc(4, 4) for _ in range(NG)]
        for i in range(43):
            for k in range(2): ops.append(dict(k='m', u=6 + k, key=('W4', i), ad=aD[k], st=1024, ex=0, B=GB[i % NG], gi=i))
        seen = set(); ops2 = []; cnt = {}
        for p in ops:
            if p['key'][0] != 'W4' and p['key'] not in seen:
                seen.add(p['key']); c = p['key'][0]; cnt[c] = cnt.get(c, 0) + 1
                ops2.append(dict(k='c', key=p['key'], ad=aCF if c in ('F1', 'S2') else aCH, first=cnt[c] == 1, last=cnt[c] == (16 if c in ('F1', 'S2') else 8)))
            ops2.append(p)
        ops = ops2
        RB = [AG.alloc(4, 4) for _ in range(NR)]
        for n, p in enumerate(ops): p['R'] = RB[n % NR]; p['n'] = n
        N = len(ops)
        last_use = {p['key']: p['n'] for p in ops}
        last_op = {p['u']: p['n'] for p in ops if p['k'] == 'm'}
        first4 = min(p['n'] for p in ops if p.get('u', 0) >= 6)
        def reads(p):
            b = self.loc[p['key']]; w, off = b >> 4, (b & 15)*BLK
            pre = p['ad'].need(w); ad = p['ad'].r[w]
            if p['k'] == 'c': return pre + [Ins(f'ds_read_b128 {p["R"]}, {ad} offset:{off}', f'r{p["n"]}')]
            return pre + [Ins(f'ds_read_b64_tr_b16 {p["R"].sub(2*a, 2)}, {ad} offset:{off + p["ex"] + a*p["st"]}', f'r{p["n"]}') for a in range(2)]
        self.forced = 0
        def bar_code(n):
            L = Asm()
            need = [ops[q]['key'] for q in range(n, min(N, n + BI + LA))]
            while any(k not in self.loc for k in need):
                gq = self.dma_next(); assert gq, f'LDS full at op {n}'
                L.ext(gq); self.forced += 1
            newest = max(need, key=self.issued.index)
            L(f'@waitvm {newest[0]}_{newest[1]}\ns_barrier')
            return L
        A.ext(P)
        A('@waitvm hst')
        self.stamp('h drained')
        A.ext(self.signal(1, 1))
        for r in self.late_free + [self.vTRb, self.vTRf]: r.free()
        A('@waitlg0')
        A.ext(bar_code(0))
        res = self.resx
        E = Asm()
        E(f'ds_read_b128 {res.sub(0, 4)}, {aRes}\nds_read_b128 {res.sub(4, 4)}, {aRes} offset:16')
        for q in range(LA): E.ext(reads(ops[q]))
        if o.get('q_early', True): E.ext(Q); Q = Asm()
        A.ext(sprinkle(E, self.dmas(o['b_post2']), 16))
        self.poll_block(A, pa2, 1); A('@drained_vm')
        self.stamp('sync2 done')
        acc = [V.alloc(16, 2) for _ in range(6)]
        accK, accS = acc[0], acc[1]
        csacc = {c: V.alloc(4, 2) for c in ('F1', 'H1', 'S2', 'S3')}
        started = set()
        def mfma(p):
            if p['k'] == 'c':
                c = csacc[p['key'][0]]
                return Ins(f'v_mfma_f32_16x16x32_bf16 {c}, {delta}, {p["R"]}, {0 if p["first"] else c}')
            a = acc[p['u']] if p['u'] < 6 else (accK, accS)[p['u'] - 6]
            z = p['u'] not in started and p['u'] != 6
            started.add(p['u'])
            return Ins(f'v_mfma_f32_32x32x16_bf16 {a}, {p["R"]}, {p["B"]}, {0 if z else a}')
        LATH, LATD, VS = o.get('LATH', 260), o.get('LATD', 600), o['vslack']
        WE = o.get('WE', 4)
        sTa = S.alloc()
        horder = []; hfirst = {}
        for p in ops:
            if 'hk' in p and p['hk'] not in hfirst: hfirst[p['hk']] = p['n']; horder.append(p['hk'])
        first_use = {}
        for p in ops: first_use.setdefault(p['key'], p['n'])
        def need_bar(key): return max(0, (first_use[key] - LA)//BI*BI)
        sp = V.alloc(8, 2); junk = V.alloc()
        c1 = V.alloc(); c3 = V.alloc(); iv = V.alloc(); tt = V.alloc(8, 2); go = [V.alloc(4, 2), V.alloc(4, 2)]
        cs_last = {p['key'][0]: p['n'] for p in ops if p['k'] == 'c' and p['last']}
        cs_first = {p['key'][0]: p['n'] for p in ops if p['k'] == 'c' and p['first']}
        rq = []
        for hk in horder:
            ty, i = hk; cp, gp = i >> 1, i & 1
            base = (sHF if ty == 'F' else sHH)[cp >> 2]
            if cp & 3 == 0: code = [Ins(f'buffer_load_dwordx4 {HB[hk]}, {self.vL16}, {self.WS}, {base} offen offset:{gp*2048} sc1')]
            else: code = [Ins(f's_add_u32 {sTa}, {base}, {(cp & 3) << 12}'), Ins(f'buffer_load_dwordx4 {HB[hk]}, {self.vL16}, {self.WS}, {sTa} offen offset:{gp*2048} sc1')]
            rq.append(dict(id=hk, dl=hfirst[hk], cost=69, code=code))
        for k in range(2):
            rq.append(dict(id=('st', k), dl=last_op[0] - o.get('st_lead', 6), cost=69, code=[Ins(f'buffer_load_dwordx4 {sp.sub(4*k, 4)}, {self.vL16}, {self.WS}, {sSl} offen offset:{k*1024} sc1')]))
        if not o['g_sc1']:
            for k in range(3):
                L = Asm(); L(f's_mov_b64 exec, 0xffff\nbuffer_load_dword {junk}, {self.v128}, {self.WS}, {sTa} offen sc1\ns_mov_b64 exec, -1'); L.L[1].defs = set()
                rq.append(dict(id=('gt', k), dl=last_op[2*k] + o.get('gt_rel', 2), cost=138, lat=LATD, code=[Ins(f's_add_u32 {sTa}, {sGst}, {k*2048}'), L.L]))
        stage_of = lambda i: 1 if i < 15 else 2 if i < 29 else 3 if i < 36 else 4
        for i in range(43):
            sel, u = self.p4_unit(i)
            rq.append(dict(id=('g', i), dl=first4 + 2*i, cost=69, stage=stage_of(i), after=first4 + 2*(i - NG) + 1, lat=LATD if o['g_sc1'] else LATH,
                           code=[Ins(f's_add_u32 {sTa}, {sGld[sel]}, {u*1024}'), Ins(f'buffer_load_dwordx4 {GB[i % NG]}, {self.vL16}, {self.WS}, {sTa} offen sc1')]))
        rq.sort(key=lambda r: r['dl'])
        K1 = -2*math.sqrt(2/math.pi)*LOG2E
        I = lambda text: [Ins(x) for x in text.split('\n')]
        chA = []
        wr_bar = {}
        def cs_items(c):
            a = csacc[c]; full = c in ('F1', 'S2')
            off = {'F1': 0, 'H1': 2048, 'S2': 2048 + 128, 'S3': 256}[c]
            for ror in ((8,) if full else (8, 4)):
                for r in range(4): chA.append(('v', ('op', cs_last[c] + 2), I(f'v_add_f32_dpp {a[r]}, {a[r]}, {a[r]} row_ror:{ror} row_mask:0xf bank_mask:0xf'), None))
            L = Asm(); L(f's_mov_b64 exec, {"0x00ff00ff" if full else "0x000f000f"}'); L(f'ds_write_b128 {aCW}, {a} offset:{off}', 'wr' + c); L('s_mov_b64 exec, -1')
            chA.append(('d', None, L.L, 'wr' + c))
        def corr_items(u, cls):
            chA.append(('d', ('ev', ['bar_wr' + c for c in cls], 0), I(f'ds_read_b32 {cT[0]}, {aCR} offset:{u*64}\nds_read_b32 {cT[1]}, {aCR} offset:{u*64 + 1024}'), f'crd{u}'))
            for k, x in enumerate((f'v_add_f32 {cT[0]}, {cT[0]}, {cT[1]}', f'v_cvt_pk_bf16_f32 {cT[1]}, {cT[0]}, {cT[0]}', f'v_and_b32 {cT[1]}, 0xffff0000, {cT[1]}',
                                   f'v_sub_f32 {cT[0]}, {cT[0]}, {cT[1]}', f'v_cvt_pk_bf16_f32 {cA[0]}, {cT[1]}, {cT[0]}')):
                chA.append(('v', ('ev', [f'crd{u}'], 90), I(x), None))
            chA.append(('m', ('op', last_op[u]), I(f'v_mfma_f32_32x32x16_bf16 {acc[u]}, {cA}, {cB}, {acc[u]}'), f'corr{u}'))
        for x in Q.L: chA.append(('v', None, [x], None))
        for c in sorted(('F1', 'H1'), key=cs_last.get): cs_items(c)
        stc = (f'v_add_f32 {sp[0]}, {sp[0]}, {sp[2]}\nv_add_f32 {sp[1]}, {sp[1]}, {sp[3]}\nv_add_f32 {sp[4]}, {sp[4]}, {sp[6]}\nv_add_f32 {sp[5]}, {sp[5]}, {sp[7]}\n'
               f'v_add_f32 {sp[0]}, {sp[0]}, {sp[4]}\nv_add_f32 {sp[1]}, {sp[1]}, {sp[5]}\nv_mov_b32 {sp[2]}, {sp[0]}\nv_mov_b32 {sp[3]}, {sp[1]}\nv_nop\n'
               f'v_permlane32_swap_b32 {sp[0]}, {sp[2]}\nv_permlane32_swap_b32 {sp[1]}, {sp[3]}\nv_add_f32 {sp[0]}, {sp[0]}, {sp[2]}\nv_add_f32 {sp[1]}, {sp[1]}, {sp[3]}\n'
               f'v_mul_f32 {sp[0]}, {fhex(-1/512)}, {sp[0]}\nv_fma_f32 {sp[1]}, {sp[1]}, {self.sInv512}, {self.vEps}\nv_fma_f32 {iv}, -{sp[0]}, {sp[0]}, {sp[1]}\nv_max_f32 {iv}, {iv}, {self.vEps}\n'
               f'v_rsq_f32 {sp[2]}, {iv}\nv_cvt_pk_bf16_f32 {cB[0]}, {sp[0]}, {sp[0]}\nv_mul_f32 {c1}, {fhex(K1)}, {sp[2]}\nv_mul_f32 {sp[3]}, {sp[2]}, {sp[2]}\nv_mul_f32 {c3}, {fhex(0.044715)}, {c1}\nv_mul_f32 {c3}, {c3}, {sp[3]}')
        for x in I(stc): chA.append(('v', ('arr', ('st', 1)), [x], None))
        corr_items(0, ('F1', 'H1')); corr_items(1, ('F1', 'H1'))
        cs_items('S2'); corr_items(2, ('F1', 'S2')); corr_items(3, ('F1', 'S2'))
        cs_items('S3'); corr_items(4, ('S2', 'S3')); corr_items(5, ('S2', 'S3'))
        chB = []; chC = []
        pubs = {1: 1, 3: 2, 4: 3, 5: 4}
        for u in range(6):
            a = acc[u]; out = go[u & 1]
            st = []
            for txt in ('v_mul_f32 {t}, {a}, {a}', 'v_fma_f32 {t}, {t}, {c3}, {c1}', 'v_mul_f32 {t}, {t}, {a}', 'v_exp_f32 {t}, {t}', 'v_mul_f32 {b}, {a}, {b}', 'v_fma_f32 {t}, {t}, {iv}, {iv}', 'v_rcp_f32 {t}, {t}', 'v_mul_f32 {b}, {b}, {t}'):
                st.append([txt.format(t=tt[v], a=a[v], b=a[8+v], c1=c1, c3=c3, iv=iv) for v in range(8)])
            seq = st[0] + st[1] + st[2]
            for v in range(8): seq += [st[3][v], st[4][v]]
            seq += [st[5][0]]
            for v in range(8):
                if v < 7: seq.append(st[5][v+1])
                seq.append(st[6][v])
            seq += st[7] + [f'v_cvt_pk_bf16_f32 {out[d]}, {a[8+2*d]}, {a[9+2*d]}' for d in range(4)]
            for ln in seq: chB.append(('v', ('ev', [f'corr{u}'], 60), I(ln), None))
            L = Asm()
            so = sGst if u < 4 else sGs2
            if o['g_sc1']: L(f'buffer_store_dwordx4 {out}, {self.vL16}, {self.WS}, {so} offen offset:{(u & 3)*1024} sc1', tag=f'gst{u}')
            else: self.store2(L, 'dwordx4', out, self.vL16, so, (u & 3)*1024, f'gst{u}')
            chB.append(('s', None, L.L, f'gst{u}'))
            if u == o.get('res_after', 3):
                for d in range(8):
                    for x in I(f'v_lshlrev_b32 {accK[2*d]}, 16, {res[d]}\nv_and_b32 {accK[2*d+1]}, 0xffff0000, {res[d]}'): chB.append(('v', None, [x], None))
                chB[-1] = chB[-1][:3] + ('acc4',)
            if u in pubs:
                sg = pubs[u]; k = self.nlabel; self.nlabel += 1
                chC.append(('f', ('arr', f'gst{u}'), [Ins(f'@waitvm gst{u}')] + self.signal(2, sg), f'pub{sg}'))
                chC.append(('f', ('ev', [f'pub{sg}'], o.get('poll_after', 450)), I(f'buffer_load_dword {self.vPv}, {pa3}, {self.WS}, {s["FL"]} offen sc1'), f'poll{sg}'))
                chC.append(('v', ('arr', f'poll{sg}'), I(f'v_cmp_gt_u32 vcc, {sg}, {self.vPv}\ns_nop 0\ns_cbranch_vccnz L_late{k}\nL_back{k}:'), f'stage{sg}'))
                self.tail(f'L_late{k}:'); self.poll_block(self.tail, pa3, sg); self.tail(f's_branch L_back{k}')
        ev = {}; arr = {}; evop = {}
        for k in self.issued: arr[k] = 0
        now = 0; vm_free = 0; last_arr = 0; mf_free = 0; n_done = -1
        cur = []
        freed = set(); est = {}; idle = 0
        def emit(code):
            nonlocal now
            A.ext(code); now += 4*sum(max(cost(x), 1 if x.mn.startswith('@wait') else 0) + (2 if x.mn.startswith('s_cbranch') else 0) for x in code)
        def vm_issue(idk, c, lat):
            nonlocal vm_free, last_arr
            vm_free = max(vm_free, now) + c
            last_arr = max(last_arr, vm_free + lat); arr[idk] = last_arr
        def ready_time(cond):
            if cond is None: return 0
            if cond[0] == 'op': return 0 if n_done >= cond[1] else None
            if cond[0] == 'arr': return arr.get(cond[1])
            if all(e in ev for e in cond[1]): return max(ev[e] for e in cond[1]) + cond[2]
            return None
        def pick_request():
            best = None
            for r in rq:
                if 'stage' in r and (f'stage{r["stage"]}' not in ev or n_done < r['after']): break
                best = r; break
            if self.stream and self.free_blocks:
                dl = need_bar(self.stream[0]) - o.get('dma_lead', 10)
                if best is None or dl < best['dl']:
                    key = self.stream[0]; c = self.dma_cost()
                    cur.extend([(key, c, LATD)] + self.dma_next()); return True
            if best is None: return False
            rq.remove(best); cur.extend([(best['id'], best['cost'], best.get('lat', LATH))] + best['code'])
            return True
        def step_vm(only_salu=False, force=False):
            if not cur and not pick_request(): return False
            it = cur[1]; l = it if isinstance(it, list) else [it]
            if len(cur) > 2:
                if not only_salu and not force and vm_free > now + VS + 8: return False
                cur.pop(1); emit(l); return True
            if only_salu or (not force and vm_free > now + VS): return False
            meta = cur[0]; del cur[:]
            emit(l); vm_issue(*meta); return True
        def step_chain(ch, kinds, room):
            if not ch or ch[0][0] not in kinds: return False
            k, cond, code, e = ch[0]; t = ready_time(cond)
            if t is None or t > now: return False
            if k == 'v' and 4*sum(cost(x) for x in code) > room + 3 and len(code) == 1: return False
            ch.pop(0); emit(code)
            if k == 's': vm_issue(e, 90, 700 if o['g_sc1'] else 300)
            if k == 'f': vm_issue(e, 20, LATH)
            if e: ev[e] = now; evop[e] = n_done
            return True
        def op_ready(n):
            p = ops[n]; t = mf_free
            k = p.get('hk') or (('g', p['gi']) if 'gi' in p else None)
            if k is not None:
                if k not in arr: return None
                t = max(t, arr[k])
            if n == first4 and 'acc4' not in ev: return None
            if (n + 1) % BI == 0 and n + 1 < N:
                for q_ in range(n + 1, min(N, n + 1 + BI + LA)):
                    if ops[q_]['key'] not in arr: return None
                    t = max(t, arr[ops[q_]['key']] - 24)
            return t
        slack = 4*(o['bud'] - 6)
        for n in range(N):
            p = ops[n]
            guard = 0
            while True:
                guard += 1; assert guard < 100000, f'scheduler stuck at op {n}'
                t = op_ready(n)
                if t is not None and now >= t + (slack if chB and ready_time(chB[0][1]) is not None else 0): break
                room = (t + slack - now) if t is not None else 1000
                if chA and chA[0][0] == 'm' and ready_time(chA[0][1]) is not None and now >= mf_free - 4:
                    now = max(now, mf_free); t0_ = now; step_chain(chA, 'm', 0); mf_free = t0_ + 32; continue
                if room > 40 and step_vm(): continue
                if step_chain(chC, 'fv', 1000): continue
                if step_chain(chA, 'v' if room <= 40 else 'vd', room): continue
                if step_chain(chB, 'vs', room): continue
                if t is not None and now >= t: break
                now += 4; idle += 4
            if chA and chA[0][0] == 'm' and ready_time(chA[0][1]) is not None:
                t0_ = now; step_chain(chA, 'm', 0); mf_free = t0_ + 32
                while now < mf_free and (step_chain(chA, 'vd', mf_free - now) or step_chain(chB, 'vs', mf_free - now)): pass
                now = max(now, mf_free)
            if n == first4: self.stamp('p3 mfma done'); est['p3'] = now; est['idle3'] = idle
            elif o.get('fine') and n % o['fine'] == 0 and n: self.stamp(f'op {n}'); est[n] = now
            t0_ = now
            A.L.append(mfma(p)); n_done = n; now += 4
            mf_free = t0_ + (32 if p['k'] == 'm' else 16)
            if (n + 1) % BI == 0 and n + 1 < N:
                L = Asm()
                for c in ('F1', 'H1', 'S2', 'S3'):
                    if 'wr' + c in ev and 'bar_wr' + c not in ev: L(f'@waitlg wr{c}'); ev['bar_wr' + c] = now
                L(f'@waitlg r{min(N - 1, n + WE)}')
                f0 = self.forced; L.ext(bar_code(n + 1)); assert f0 == self.forced
                emit(L.L)
                for k, lu in last_use.items():
                    if lu <= n and k not in freed and k in self.loc:
                        freed.add(k); self.free_blocks.append(self.loc[k])
                if 'res' not in freed:
                    freed.add('res'); self.free_blocks += [self.resb, self.resb + 1]
            elif (n + 1) % WE == 0 and n + 1 < N: emit([Ins(f'@waitlg r{min(N - 1, n + WE)}')])
            else: step_vm(only_salu=True)
            now = max(now, t0_ + 8)
            if n + LA < N: emit(reads(ops[n + LA]))
            step_chain(chA, 'd', 0)
            while step_vm():
                if not cur: break
            if n + LA + 1 < N and ops[n + LA + 1]['key'] in self.loc: emit(ops[n + LA + 1]['ad'].need(self.loc[ops[n + LA + 1]['key']] >> 4))
        assert not (chA or chB or chC or rq or cur or self.stream), (len(chA), len(chB), len(chC), len(rq), len(self.stream))
        est['p4'] = now; est['idle'] = idle
        self.info.update(N=N, first4=first4, est=est, evop={k: v for k, v in evop.items() if k[:3] in ('cor', 'gst', 'sta')})
        self.stamp('p4 mfma done')
        fb = sorted(self.free_blocks)
        xb = next(b for b in fb if all(b + k in fb for k in range(4)))
        A(f's_lshl_b32 {s["T0"]}, {s["W"]}, 12\ns_add_u32 {s["T0"]}, {s["T0"]}, {xb*BLK}\nv_add_u32 {t1}, {s["T0"]}, {self.vL16}')
        A(f's_xor_b32 {s["T1"]}, {s["W"]}, 2\ns_lshl_b32 {s["T1"]}, {s["T1"]}, 12\ns_add_u32 {s["T1"]}, {s["T1"]}, {xb*BLK}\nv_add_u32 {t2}, {s["T1"]}, {self.vL16}')
        A(f'v_and_b32 {t3}, 31, {vL}\nv_lshlrev_b32 {t3}, 10, {t3}\nv_lshrrev_b32 {c1}, 5, {vL}\nv_lshl_add_u32 {t3}, {c1}, 5, {t3}')
        for k in range(4): A(f'ds_write_b128 {t1}, {accS.sub(4*k, 4)} offset:{k*1024}')
        A(f's_lshl_b32 {s["T0"]}, {s["G"]}, 2\ns_add_u32 {s["T0"]}, {s["T0"]}, {sT4}\ns_lshl_b32 {s["T0"]}, {s["T0"]}, 15\ns_add_u32 {s["T0"]}, {s["T0"]}, {self.sC128}\ns_lshl_b32 {s["T1"]}, {sKH}, 6\ns_add_u32 {s["T0"]}, {s["T0"]}, {s["T1"]}')
        A('@waitlg0\ns_barrier')
        rx = acc[2]
        for k in range(4): A(f'ds_read_b128 {rx.sub(4*k, 4)}, {t2} offset:{k*1024}')
        for h in range(2):
            for d in range(4*h, 4*h + 4): A(f'v_pk_add_f32 {accK.sub(2*d, 2)}, {accK.sub(2*d, 2)}, {rx.sub(2*d, 2)}')
            for d in range(4): A(f'v_cvt_pk_bf16_f32 {go[h][d]}, {accK[8*h + 2*d]}, {accK[8*h + 2*d + 1]}')
            A(f'buffer_store_dwordx4 {go[h]}, {t3}, {self.OUT}, {s["T0"]} offen offset:{16*h} {o.get("out_aux", "")}')
        self.stamp('out stored')

    def finish(self):
        A, s, o = self.A, self.s, self.o
        if o['stamps']:
            A('@waitvm0')
            self.stamp('end')
            k = self.nstamp - 1
            A(f'@raw 1\nv_writelane_b32 {self.vstamp}, s98, 61\ns_memrealtime s[98:99]\ns_waitcnt lgkmcnt(0)\nv_writelane_b32 {self.vstamp}, s98, 62\nv_writelane_b32 {self.vstamp}, {self.sstamp[2*(k % 2)]}, {k}\nv_writelane_b32 {self.vstamp}, s100, 63\n@raw 0')
            A(f's_lshl_b32 {s["T0"]}, s2, 10\ns_lshl_b32 {s["T1"]}, {s["W"]}, 8\ns_add_u32 {s["T0"]}, {s["T0"]}, {s["T1"]}\ns_add_u32 {s["T0"]}, {s["T0"]}, {o["ws_base"] + WS_TS}')
            A(f'v_lshlrev_b32 {self.t1}, 2, {self.vL}\nbuffer_store_dword {self.vstamp}, {self.t1}, {self.WS}, {s["T0"]} offen')
        if o.get('pad_to'):
            A(f'@raw 1\ns_waitcnt vmcnt(0)\nL_padloop:\n{o.get("pad_clk", "s_memrealtime")} s[98:99]\ns_waitcnt lgkmcnt(0)\ns_sub_u32 s98, s98, s100\ns_cmp_lt_u32 s98, {o["pad_to"]}\ns_cbranch_scc1 L_padloop\n@raw 0')
        A('s_endpgm')

    def build(self):
        self.phase1(); self.phase2(); self.phase34(); self.finish()
        L = resolve_waits(self.A.L)
        L, nn = pad_hazards(L)
        T = [x for x in self.tail.L if x.kind != 'pseudo']
        body = '\n'.join(('' if x.kind == 'label' else '    ') + x.text for x in L + T)
        hdr = open('cdna_kernels/' + NAME + '.s.ref').read().split('; Override launch')[0]
        txt = hdr + f'; @launch grid=(256,1,1) block=(256,1,1) lds=163840\n.amdgcn_target "amdgcn-amd-amdhsa--gfx950"\n.text\n.globl {NAME}_kernel\n.p2align 8\n.type {NAME}_kernel,@function\n{NAME}_kernel:\n'
        txt += body + '\n    s_endpgm\nL_code_end:\n'
        txt += f'.section .rodata,"a"\n.p2align 6\n.amdhsa_kernel {NAME}_kernel\n  .amdhsa_next_free_vgpr 512\n  .amdhsa_next_free_sgpr 102\n  .amdhsa_accum_offset 256\n  .amdhsa_group_segment_fixed_size 0\n  .amdhsa_kernarg_size 80\n  .amdhsa_user_sgpr_count 2\n  .amdhsa_user_sgpr_kernarg_segment_ptr 1\n  .amdhsa_system_sgpr_workgroup_id_x 1\n  .amdhsa_float_denorm_mode_32 3\n.end_amdhsa_kernel\n'
        self.info.update(ninstr=len(L), nops=nn, vmax=self.V.hi, amax=self.AG.hi, smax=self.S.hi)
        return txt

if __name__ == '__main__':
    import json
    kw = json.loads(sys.argv[2]) if len(sys.argv) > 2 else {}
    G = Gen(**kw); txt = G.build()
    open(sys.argv[1], 'w').write(txt)
    print(G.info)
```

```python
import sys, math, struct
from asmlib import *

NAME = 'sequential_preLN__sliding_local_dilated__geglu_ffn__prompt'
KB = 1024
WS_H, WS_ST, WS_FL, WS_G, WS_O = 0, 128*KB, 136*KB, 256*KB, 640*KB
FL_SLOW = 2*KB
WS_TS = 16 << 20
WS_SIZE = 17 << 20
PITCH3 = 2752
BLK = 4096
L_HALO = 0
L_X = 4 * BLK
L_W = 10 * BLK
L_SCR = 39 * BLK
SCR_TB = L_SCR
SCR_HP = L_SCR + 1280
SCR_CS = L_SCR
def f2u(x): return struct.unpack('<I', struct.pack('<f', x))[0]
def fhex(x): return hex(f2u(x))
LOG2E = 1.4426950408889634

DEF = dict(cs_lead={'S2': (16, 1), 'S3': (20, 2)}, plead=(44, 44, 44, 44), TL=4, cs_pre=24, q_early=False, LATH=300, LATD=500, LATS=800, WE=4, VC=80, PW=True, poll_after=900, dma_lead=16, VMIN=10, BMIN=10, FMIN=5, barc=32, vmargin=300, visit=False,
           stamps=False, order='pair', BI=16, LA=7, GLA=8, NG=14, NR=14, bud=8, b_epi=5, b_post1=6, b_o=5, b_post2=6,
           pub_delay=10, poll_lead=8, force_slow=False, w2pre=7, LO=5, HL=5, sp0=14, g_sc1=False, o_in_ws=False,
           pf={'wq': 's0', 'q3': 's0', 'wo': 's1', 'o3': 2, 'o': 4, 'w3': 4, 'h': 4, 'wd': 4, 'd3': 'e1'}, vslack=200, w2a=2, w2b=6, rot2=0, rot3=0, ws_base=0, n_stats=56, gt_at=40)

def cost(x):
    if x.kind in ('pseudo', 'label', 'dir'): return 0
    if x.is_trans() or x.mn.startswith('v_permlane') or x.kind == 'mfma': return 2
    return 1

def safe_points(code):
    ok = []; exec_part = False
    EX = {('s', 126), ('s', 127)}
    n = len(code)
    for i in range(n + 1):
        scc_live = False
        for k in range(i, n):
            x = code[k]
            if x.kind == 'label': scc_live = True; break
            if x.mn.startswith('s_cselect') or x.mn.startswith('s_cbranch') or x.mn.startswith('s_addc'): scc_live = True; break
            if x.kind == 'vmem' and x.arg == 'dma': scc_live = True; break
            if x.kind == 'salu' and not x.mn.startswith(('s_mov', 's_mul', 's_nop', 's_waitcnt', 's_barrier', 's_getreg')): break
        if not exec_part and not scc_live: ok.append(i)
        if i < n and code[i].defs & EX:
            exec_part = not code[i].text.endswith(', -1')
    return ok

def sprinkle(code, groups, spacing, start=0):
    code = list(code.L if isinstance(code, Asm) else code); groups = list(groups)
    ok = set(safe_points(code)); out = []; since = spacing - start
    for i, x in enumerate(code):
        if groups and since >= spacing and i in ok:
            g = groups.pop(0); out += g; since = 0
        out.append(x); since += cost(x)
    for g in groups: out += g
    return out

class Gen:
    def __init__(self, **kw):
        self.o = dict(DEF); self.o.update(kw)
        self.A = Asm(); self.tail = Asm()
        self.V = RegAlloc('v', 1, 254); self.AG = RegAlloc('a', 0, 256); self.S = RegAlloc('s', 60, 97)
        self.nstamp = 0; self.stamp_names = []
        self.nlabel = 0
        self.free_blocks = list(range(28, 39))
        self.loc = {}; self.issued = []
        st = [('W2', i) for i in range(16)]
        for q in range(8): st += [('F1', 2*q), ('H1', q), ('F1', 2*q + 1)]
        st += [('S2', i) for i in range(16)] + [('S3', q) for q in range(8)] + [('W4', i) for i in range(43)]
        self.stream = st
        self.info = {}; self.dropped = set()

    def stamp(self, name, A=None):
        if not self.o['stamps'] or (self.o['stamps'] == 'min' and name != 'end'): return
        A = A if A is not None else self.A
        k = self.nstamp
        A(f'@raw 1\n{self.o.get("clk", "s_memtime")} {self.sstamp.sub(2*(k % 2), 2)}')
        if k: A(f'v_writelane_b32 {self.vstamp}, {self.sstamp[2*((k-1) % 2)]}, {k-1}')
        A('@raw 0')
        self.stamp_names.append(name); self.nstamp += 1

    def srd(self, A, b, lo, size):
        A(f's_mov_b32 s{b}, s{lo}\ns_mov_b32 s{b+1}, s{lo+1}\ns_mov_b32 s{b+2}, {size}\ns_mov_b32 s{b+3}, 0x20000')

    def store2(self, A, w, data, voff, soff, off, tag, srds=None):
        assert off < 4096
        f, sl = srds or (self.WSF, self.WSS)
        o = f' offset:{off}' if off else ''
        v = f'{voff}, ' if voff is not None else 'off, '
        e = ' offen' if voff is not None else ''
        A(f'buffer_store_{w} {data}, {v}{f}, {soff}{e}{o}', tag=tag)
        A(f'buffer_store_{w} {data}, {v}{sl}, {soff}{e}{o} sc1', tag=tag)

    def signal(self, kind, val):
        L = Asm()
        L(f's_mov_b64 exec, 1\nv_mov_b32 {self.vFv}, {val}')
        self.store2(L, 'dword', self.vFv, None, self.sFme, kind*256, 'flag')
        L('s_mov_b64 exec, -1')
        return L.L

    def poll_block(self, A, addr, val):
        s = self.s; n = self.nlabel; self.nlabel += 1
        A(f's_mov_b32 {s["T3"]}, 0x20000\n@raw 1\nL_poll{n}:\nbuffer_load_dword {self.vPv}, {addr}, {self.WS}, {s["FL"]} offen sc1\ns_waitcnt vmcnt(0)')
        A(f'v_cmp_gt_u32 vcc, {val}, {self.vPv}\ns_sub_u32 {s["T3"]}, {s["T3"]}, 1\ns_cbranch_scc1 L_pd{n}\ns_cbranch_vccnz L_poll{n}\nL_pd{n}:\n@raw 0')

    @staticmethod
    def p4_unit(i):
        if i < 15: return 0, 6*i
        if i < 29: return 0, 6*(i - 15) + 2
        if i < 36: return 1, 12*(i - 29) + 4
        return 1, 12*(i - 36) + 5

    def dma_cost(self): return 138 if self.stream and self.stream[0][0] in ('H1', 'S3') else 69

    def dma_next(self):
        if not self.stream or not self.free_blocks: return None
        key = self.stream.pop(0); b = self.free_blocks.pop(0)
        self.loc[key] = b; self.issued.append(key)
        s, D = self.s, self.sD; kind, i = key; tag = f'{kind}_{i}'
        if kind == 'W2':
            assert 23 <= b <= 38
            pre = [f's_add_u32 {D}, {self.sC128}, {i << 15}']
            ld = f'buffer_load_dwordx4 {self.vW2}, {self.WO}, {D} offen lds'
        elif kind in ('F1', 'S2', 'H1', 'S3'):
            full = kind in ('F1', 'S2')
            cp = i >> 1 if full else i
            pre = []
            if key == ('F1', 0): pre.append(f's_mov_b32 s38, {self.sN3[0]}')
            if key == ('S2', 0): pre += [f's_mov_b32 s38, {self.sN3[1]}', f'v_add_u32 {self.vF[0]}, {self.sDl}, {self.vF[0]}', f'v_add_u32 {self.vF[1]}, {self.sDl}, {self.vF[1]}']
            if key == ('S3', 0): pre += [f's_sub_u32 {self.sDl}, 192, {self.sDl}', f'v_add_u32 {self.vH}, {self.sDl}, {self.vH}']
            ld = f'buffer_load_dwordx4 {self.vF[i & 1] if full else self.vH}, {self.W3}, {self.sCP[cp - 1] if cp else 0} offen lds'
        else:
            sel, u = self.p4_unit(i)
            k = (i if i < 15 else i - 15) & 3 if sel == 0 else 2*((i - 29 if i < 36 else i - 36) & 1)
            pre = [f's_add_u32 {D}, {self.sU[sel]}, {u*16384}'] if k == 0 else []
            if i == 0: pre += [f'v_add_u32 {self.vD[q]}, {q*6*16384}, {self.vD[0]}' for q in range(1, 4)]
            ld = f'buffer_load_dwordx4 {self.vD[k]}, {self.WD}, {D} offen lds'
        return [Ins(f's_add_u32 m0, {s["W1K"]}, {b*BLK}')] + [Ins(x) for x in pre] + [Ins(ld, tag)]

    def dmas(self, n):
        r = []
        for _ in range(n):
            g = self.dma_next()
            if g: r.append(g)
        return r

    def p1_chunk_dma(self, i):
        s = self.s; sl = i % 3; kc, so = self.sKC, self.sSO; tag = f'ch{i}'
        I = Ins
        g = [[I(f's_add_u32 {kc}, {s["C"]}, {i}'), I(f's_and_b32 {kc}, {kc}, 7'), I(f's_add_u32 m0, {self.sW2K}, {L_X + sl*8192}'), I(f's_lshl_b32 {so}, {kc}, 7'),
              I(f'buffer_load_dwordx4 {self.vXa}, {self.X}, {so} offen lds', tag)],
             [I(f's_mul_i32 {kc}, {kc}, {64*3072}'), I(f'buffer_load_dwordx4 {self.vXb}, {self.X}, {so} offen offset:1024 lds', tag)]]
        for st in range(2):
            for p in range(3):
                pre = []
                if p == 0: pre = [I(f's_add_u32 m0, {self.sW3K}, {L_W + sl*24576 + st*12288}'), I(f's_add_u32 {kc}, {kc}, {32*3072 if st else self.sC128}')]
                g.append(pre + [I(f'buffer_load_dwordx4 {self.vW1}, {self.WQ}, {kc} offen offset:{p*1024} lds', tag)])
        return g

    def p1_reads(self, i, st, buf):
        sl = i % 3; r = []
        W, X, O = buf
        r.append(Ins(f'ds_read_b128 {O}, {self.aXo[st]} offset:{sl*8192}'))
        for p in range(3):
            for a in range(2):
                r.append(Ins(f'ds_read_b64_tr_b16 {W[p].sub(2*a, 2)}, {self.aW1} offset:{sl*24576 + st*12288 + p*1024 + a*512}'))
            if p == 0:
                r.append(Ins(f'ds_read_b128 {X[0]}, {self.aX[st]} offset:{L_HALO + i*2048}'))
                for t in range(1, 5):
                    r.append(Ins(f'ds_read_b128 {X[t]}, {self.aX[st]} offset:{L_X + sl*8192 + (t-1)*2048}'))
        return r

    def p1_mfmas(self, buf, first):
        W, X, O = buf
        m = []
        c = lambda acc: '0' if first else str(acc)
        m.append(Ins(f'v_mfma_f32_16x16x32_bf16 {self.stG}, {O}, {O}, {c(self.stG)}'))
        m.append(Ins(f'v_mfma_f32_16x16x32_bf16 {self.stS}, {self.ones}, {O}, {c(self.stS)}'))
        for p, acc in enumerate((self.aQ, self.aK, self.aV)):
            for t in range(5):
                if p < 2: m.append(Ins(f'v_mfma_f32_16x16x32_bf16 {acc[t]}, {W[p]}, {X[t]}, {c(acc[t])}'))
                else: m.append(Ins(f'v_mfma_f32_16x16x32_bf16 {acc[t]}, {X[t]}, {W[p]}, {c(acc[t])}'))
        return m

    def stats_code(self, sq, sm, out4):
        L = Asm()
        L(f'v_mul_f32 {sm}, {fhex(-1/512)}, {sm}')
        L(f'v_fma_f32 {sq}, {sq}, {self.sInv512}, {self.vEps}')
        L(f'v_cvt_pk_bf16_f32 {out4[1]}, {sm}, {sm}')
        L(f'v_fma_f32 {sq}, -{sm}, {sm}, {sq}')
        L(f'v_max_f32 {sq}, {sq}, {self.vEps}')
        L(f'v_rsq_f32 {out4[2]}, {sq}')
        L(f'v_and_b32 {out4[0]}, 0xffff0000, {out4[1]}')
        L(f'v_mul_f32 {out4[3]}, {fhex(0.25*LOG2E)}, {out4[2]}')
        return L.L

    def diag_code(self, G4, dst):
        return [Ins(f'v_cndmask_b32 {G4[0]}, {G4[0]}, {G4[1]}, {self.mB0}'), Ins(f'v_cndmask_b32 {G4[2]}, {G4[2]}, {G4[3]}, {self.mB0}'),
                Ins(f'v_cndmask_b32 {dst}, {G4[0]}, {G4[2]}, {self.mB1}')]

    def weave16(self, mf, ds, misc, vgap=4):
        A = self.A; ds = list(ds)
        nm = len(mf)
        for k, m in enumerate(mf):
            A.L.append(m); self.gap_since_vm += 1
            bud = 2
            if misc and isinstance(misc[0], Ins) and misc[0].kind == 'salu': A.L.append(misc.pop(0))
            nds = 1 if ds else 0
            if len(ds) > nm - k - 4: nds = min(2, len(ds))
            for _ in range(nds): A.L.append(ds.pop(0)); bud -= 1
            while misc and bud > 0:
                it = misc[0]; l = it if isinstance(it, list) else [it]
                if l and l[0].kind == 'pseudo' and l[0].mn == '@skip':
                    misc.pop(0); break
                if any(x.kind == 'vmem' for x in l):
                    if self.gap_since_vm < vgap: break
                    self.gap_since_vm = 0
                misc.pop(0); A.ext(l); bud -= sum(cost(x) for x in l)
        assert not ds

    def phase1(self):
        A, V, S, AG, o = self.A, self.V, self.S, self.AG, self.o
        s = self.s = {}
        for n in 'W C M SB G BLK W1K T0 T1 T2 T3 FL PF GB'.split(): s[n] = S.alloc()
        if o['stamps']: self.sstamp = S.alloc(4, 2); self.vstamp = V.alloc()
        self.X, self.WQ, self.WO, self.W3, self.WD, self.OUT, self.WS, self.WSF, self.WSS = [f's[{24+4*i}:{27+4*i}]' for i in range(9)]
        self.sKC = S.alloc(); self.sSO = S.alloc(); self.sW2K = S.alloc(); self.sW3K = S.alloc(); self.sC128 = S.alloc(); self.sFme = S.alloc()
        sH = S.alloc(2); sZ = S.alloc()
        if o.get('pad_to'): A('@raw 1\n' + o.get('pad_clk', 's_memrealtime') + ' s[100:101]\n@raw 0')
        if o['stamps']: A('@raw 1\n' + o.get('clk', 's_memtime') + ' s[100:101]\ns_memrealtime s[98:99]\ns_mov_b32 s97, 0\n@raw 0')
        A('s_load_dwordx2 s[24:25], s[0:1], 0\ns_load_dwordx2 s[28:29], s[0:1], 8\ns_load_dwordx2 s[48:49], s[0:1], 72')
        A('s_load_dwordx16 s[4:19], s[0:1], 0\ns_load_dwordx4 s[20:23], s[0:1], 64')
        A('s_cmp_lt_u32 s2, 256\ns_cbranch_scc1 L_go\ns_endpgm\nL_go:')
        vL = self.vL = V.alloc(); t0 = V.alloc(2); t1 = V.alloc(); t2 = V.alloc(); t3 = V.alloc()
        self.t1, self.t2, self.t3 = t1, t2, t3
        A(f's_getpc_b64 s[52:53]\nL_pc:')
        A(f'v_and_b32 {vL}, 63, v0\nv_lshrrev_b32 {t1}, 6, v0\ns_lshr_b32 {s["T0"]}, s2, 3\nv_readfirstlane_b32 {s["W"]}, {t1}')
        A(f'v_lshl_add_u32 {t1}, {s["T0"]}, 2, {t1}\nv_lshl_add_u32 {t1}, {t1}, 2, {vL}\nv_lshlrev_b32 {t1}, 7, {t1}\nv_min_u32 {t1}, L_code_end-L_pc-4, {t1}')
        A(f'v_add_co_u32 {t0[0]}, vcc, s52, {t1}\nv_mov_b32 {t0[1]}, s53\ns_and_b32 {s["M"]}, {s["T0"]}, 15\nv_addc_co_u32 {t0[1]}, vcc, 0, {t0[1]}, vcc')
        A(f's_mov_b64 exec, 15\nglobal_load_dword v255, {t0}, off\ns_mov_b64 exec, -1')
        t0.free()
        A(f's_and_b32 {s["C"]}, {s["T0"]}, 7\ns_lshr_b32 {s["SB"]}, {s["M"]}, 3\ns_and_b32 {s["T1"]}, s2, 7\ns_lshr_b32 {s["T0"]}, {s["T0"]}, 3')
        A(f's_lshl_b32 {s["BLK"]}, {s["T1"]}, 2\ns_add_u32 {s["BLK"]}, {s["BLK"]}, {s["T0"]}\ns_lshr_b32 {s["G"]}, {s["BLK"]}, 1')
        A(f's_lshl_b32 {self.sW2K}, {s["W"]}, 11\ns_mul_i32 {self.sW3K}, {s["W"]}, 3072\ns_lshl_b32 {self.sC128}, {s["C"]}, 7')
        e = V.alloc(); ch = V.alloc()
        vHa = V.alloc(); vHb = V.alloc(); self.vXa = V.alloc(); self.vXb = V.alloc(); self.vW1 = V.alloc(); self.vW2 = V.alloc()
        A(f'v_lshrrev_b32 {e}, 3, {vL}\nv_and_b32 {ch}, 7, {vL}')
        A(f'v_lshrrev_b32 {t1}, 4, {vL}\nv_xor_b32 {t1}, {t1}, {ch}\nv_lshlrev_b32 {t1}, 4, {t1}')
        A(f's_lshl_b32 {s["T0"]}, {s["BLK"]}, 6\ns_lshl_b32 {s["T1"]}, {s["W"]}, 4\ns_add_u32 {s["T1"]}, {s["T1"]}, {s["T0"]}')
        A(f'v_add_u32 {t2}, {s["T1"]}, {e}\nv_lshl_add_u32 {self.vXa}, {t2}, 10, {t1}\nv_add_u32 {self.vXb}, {7*1024}, {self.vXa}\nv_xor_b32 {self.vXb}, 64, {self.vXb}')
        A(f's_sub_u32 {s["T1"]}, {s["T0"]}, 16')
        A(f'v_add_u32 {t2}, {s["T1"]}, {e}\nv_max_i32 {vHa}, 2, {t2}\nv_lshl_add_u32 {vHa}, {vHa}, 10, {t1}')
        A(f'v_add_u32 {t2}, 7, {t2}\nv_max_i32 {vHb}, 2, {t2}\nv_lshl_add_u32 {vHb}, {vHb}, 10, {t1}\nv_xor_b32 {vHb}, 64, {vHb}')
        A(f's_and_b32 {s["T1"]}, {s["W"]}, 1\ns_lshl_b32 {s["T1"]}, {s["T1"]}, 2')
        A(f'v_and_b32 {t1}, 2, {e}\nv_or_b32 {t1}, {s["T1"]}, {t1}\nv_xor_b32 {t1}, {t1}, {ch}\nv_lshlrev_b32 {t1}, 4, {t1}')
        A(f'v_lshl_add_u32 {t2}, {s["W"]}, 3, {e}')
        A(f'v_lshl_add_u32 {self.vW2}, {t2}, 10, {t1}\nv_mul_u32_u24 {t2}, 3072, {t2}\nv_add_u32 {self.vW1}, {t2}, {t1}')
        A(f's_mov_b32 s26, {2048*1024}\ns_mov_b32 s27, 0x20000\ns_mov_b32 s30, {512*3072}\ns_mov_b32 s31, 0x20000\ns_mov_b32 s50, {o["ws_base"] + WS_SIZE}\ns_mov_b32 s51, 0x20000')
        A(f's_lshl_b32 {s["GB"]}, {s["G"]}, 20')
        if o['ws_base']: A(f's_add_u32 {s["GB"]}, {s["GB"]}, {o["ws_base"]}')
        A(f's_add_u32 {s["FL"]}, {s["GB"]}, {WS_FL}\ns_lshl_b32 {s["T1"]}, {s["M"]}, 4\ns_add_u32 {self.sFme}, {s["FL"]}, {s["T1"]}')
        self.vFz = V.alloc()
        A(f'v_lshrrev_b32 {t1}, 2, {vL}\nv_and_b32 {t2}, 3, {vL}\nv_lshlrev_b32 {t2}, 2, {t2}\nv_lshl_add_u32 {self.vFz}, {t1}, 8, {t2}\nv_mov_b32 {t2}, 0')
        A(f's_cmp_eq_u32 {s["W"]}, 0\ns_cselect_b32 {sZ}, 0xfff, 0')
        A(f's_lshl_b32 {s["T0"]}, {s["W"]}, 1\ns_add_u32 {s["T0"]}, {s["T0"]}, {s["C"]}')
        for q in range(2): A(f's_add_u32 {sH[q]}, {s["T0"]}, {q}\ns_and_b32 {sH[q]}, {sH[q]}, 7\ns_lshl_b32 {sH[q]}, {sH[q]}, 7')
        v128 = self.v128 = V.alloc(); junk = V.alloc(); vT = V.alloc(); sP = S.alloc()
        v1k = V.alloc()
        A(f'v_lshlrev_b32 {v128}, 7, {vL}\nv_lshlrev_b32 {v1k}, 10, {vL}')
        OSRD = self.WS if o['o_in_ws'] else self.OUT
        def pf_group(kind):
            L = Asm()
            if kind == 'o': L(f's_mov_b64 exec, 0xffff\nbuffer_load_dword {junk}, {v128}, {OSRD}, {self.sOst} offen sc1')
            elif kind == 'h': L(f's_mov_b64 exec, 0x3ffff\nbuffer_load_dword {junk}, {vT}, {self.WS}, {s["GB"]} offen sc1')
            elif kind in ('q3', 'o3', 'd3'):
                n, srd = {'q3': (12, self.WQ), 'o3': (4, self.WO), 'd3': (11, self.WD)}[kind]
                L(f's_lshr_b32 {sP}, s2, 3\ns_lshl2_add_u32 {sP}, {sP}, {s["W"]}\ns_mul_i32 {sP}, {sP}, {n*1024}')
                L(f's_mov_b64 exec, {hex((1 << n) - 1)}\nbuffer_load_dword {junk}, {v1k}, {srd}, {sP} offen offset:384 sc1')
            else:
                n, srd = {'wq': (12, self.WQ), 'wo': (4, self.WO), 'w3': (22, self.W3), 'wd': (11, self.WD)}[kind]
                if kind == 'w3': L(f's_and_b32 {sP}, {s["W"]}, 1\ns_lshl1_add_u32 {sP}, s2, {sP}')
                else: L(f's_lshl2_add_u32 {sP}, s2, {s["W"]}')
                L(f's_mul_i32 {sP}, {sP}, {n*128}')
                L(f's_mov_b64 exec, {hex((1 << n) - 1)}\nbuffer_load_dword {junk}, {v128}, {srd}, {sP} offen sc1')
            L('s_mov_b64 exec, -1')
            for x in L.L:
                if x.kind == 'vmem': x.defs = set()
            return L.L[:-3] + [L.L[-3:]]
        def pf_flat(at):
            r = []
            for kind, a_ in o['pf'].items():
                if a_ == at:
                    gq = pf_group(kind); r.append(gq[:-1] + gq[-1])
            return r
        self.sOst = S.alloc(); self.sHst = S.alloc()
        c0 = self.p1_chunk_dma(0)
        A.ext(c0[0][:-1])
        A('@waitlg0')
        self.stamp('kernarg')
        if o.get('probe'):
            src, rounds, base = o['probe']
            lo = {'bx': 10, 'ws': 22, 'out': 18, 'wd': 16}[src]
            A(f's_mov_b32 s32, s{lo}\ns_mov_b32 s33, s{lo+1}\ns_mov_b32 s34, {(2 << 20) if src in ("bx", "out") else (1376*1024 if src == "wd" else 256 << 20)}\ns_mov_b32 s35, 0x20000')
            A(f'v_lshlrev_b32 {t1}, 7, {vL}\ns_lshl_b32 {s["T0"]}, s2, 2\ns_add_u32 {s["T0"]}, {s["T0"]}, {s["W"]}\ns_lshl_b32 {s["T0"]}, {s["T0"]}, 11\ns_add_u32 {s["T0"]}, {s["T0"]}, {base}')
            nl = 16 // rounds if rounds > 0 else 16
            for r in range(abs(rounds)):
                A(f's_mov_b64 exec, {hex((1 << nl) - 1)}\nbuffer_load_dword {t3}, {t1}, s[32:35], {s["T0"]} offen sc1\ns_mov_b64 exec, -1')
                if rounds > 0: A(f'@waitvm0\ns_add_u32 {s["T0"]}, {s["T0"]}, {nl*128}')
                else: A(f's_add_u32 {s["T0"]}, {s["T0"]}, {2 << 20}')
            A('@waitvm0')
            self.stamp('probe done')
        for gq in pf_flat('s0'): A.ext(gq)
        A.L.append(c0[0][-1])
        A(f's_mov_b32 exec_lo, {sZ}\ns_mov_b32 exec_hi, 0')
        A(f'buffer_store_dword {t2}, {self.vFz}, {self.WS}, {self.sFme} offen', tag='fz')
        A('s_mov_b64 exec, -1')
        hal = []
        for q in range(2):
            hal.append([Ins(f's_lshl_b32 m0, {s["W"]}, 12')] + ([Ins('s_add_u32 m0, m0, 2048')] if q else []) +
                       [Ins('s_mov_b32 exec_lo, 0xffffff00'), Ins(f'buffer_load_dwordx4 {vHa}, {self.X}, {sH[q]} offen lds', 'halo'), Ins('s_mov_b32 exec_lo, -1')])
            hal.append([Ins(f'buffer_load_dwordx4 {vHb}, {self.X}, {sH[q]} offen offset:1024 lds', 'halo')])
        self.sCen = S.alloc(); self.sCoff = S.alloc(); self.sCv = S.alloc()
        cen = Asm()
        cen(f'@waitvm fz\ns_cmp_lg_u32 {s["W"]}, 0\ns_cbranch_scc1 L_nocen\n@raw 1\ns_atomic_add {self.sCen}, s[20:21], {self.sCoff}\n@raw 0\nL_nocen:\n@minlg 1')
        first = c0[1:2] + hal + c0[2:8]
        groups = first + pf_flat('s1') + [cen.L + self.p1_chunk_dma(1)[0]] + self.p1_chunk_dma(1)[1:]
        B = Asm()
        B(f's_getreg_b32 {s["T0"]}, hwreg(HW_REG_XCC_ID, 0, 4)\ns_mul_i32 {s["T1"]}, {s["T0"]}, {s["T0"]}\ns_lshl_b32 {s["T1"]}, {s["T1"]}, 13\ns_lshl_b32 {s["T0"]}, {s["T0"]}, 5')
        B(f's_add_u32 {self.sCen}, {s["T0"]}, {s["T1"]}\ns_add_u32 {self.sCen}, {self.sCen}, 1\ns_lshl_b32 {self.sCoff}, {s["G"]}, 4')
        B(f's_lshl_b32 {s["W1K"]}, {s["W"]}, 10\ns_lshl_b32 {s["T0"]}, {s["W"]}, 2\ns_add_u32 {self.sFme}, {self.sFme}, {s["T0"]}')
        self.ones = V.alloc(4, 2)
        for k in range(4): B(f'v_mov_b32 {self.ones[k]}, 0x3f803f80')
        B(f's_lshl_b32 {s["T0"]}, {s["W"]}, 12\nv_lshlrev_b32 {t1}, 11, {e}\nv_lshl_add_u32 {t1}, {ch}, 4, {t1}\nv_add_u32 {t1}, {s["T0"]}, {t1}')
        B(f's_mov_b64 exec, 0xffff\nds_write_b128 {t1}, {self.ones} offset:{L_HALO}\ns_mov_b64 exec, -1')
        B(f'v_mov_b32 v254, {L_SCR + 4092}')
        self.srd(B, 32, 8, 512*1024); self.srd(B, 40, 16, 1376*1024); self.srd(B, 44, 18, 2048*1024); self.srd(B, 52, 22, 0); self.srd(B, 56, 22, 0)
        B(f's_cmp_lt_u32 {s["W"]}, 2\ns_cselect_b32 s36, s12, s14\ns_cselect_b32 s37, s13, s15\ns_mov_b32 s38, {512*PITCH3}\ns_mov_b32 s39, 0x20000')
        S.free |= set(range(3, 20)) | {0, 1, 22, 23}
        self.sN3 = S.alloc(2); self.sInv512 = S.alloc()
        B(f's_cmp_lt_u32 {s["M"]}, 15\ns_cselect_b32 {self.sN3[0]}, s38, 0\ns_cmp_lt_u32 {s["M"]}, 14\ns_cselect_b32 {self.sN3[1]}, s38, 0')
        B(f's_mov_b32 {self.sInv512}, {fhex(1/512)}')
        self.vEps = V.alloc(); B(f'v_mov_b32 {self.vEps}, {fhex(1e-5)}')
        j = self.vJ = V.alloc(); g = self.vG = V.alloc(); self.vL16 = V.alloc()
        B(f'v_and_b32 {j}, 15, {vL}\nv_lshrrev_b32 {g}, 4, {vL}\nv_lshlrev_b32 {self.vL16}, 4, {vL}')
        self.aX = [V.alloc(), V.alloc()]; self.aXo = [V.alloc(), V.alloc()]; self.aW1 = V.alloc(); aHs = [V.alloc(), V.alloc()]
        B(f'v_lshrrev_b32 {t1}, 1, {j}\nv_xor_b32 {t1}, {t1}, {g}\nv_lshlrev_b32 {t1}, 4, {t1}\nv_lshl_add_u32 {self.aX[0]}, {j}, 7, {t1}\nv_xor_b32 {self.aX[1]}, 64, {self.aX[0]}')
        B(f'v_add_u32 {aHs[0]}, {s["T0"]}, {self.aX[0]}\nv_add_u32 {aHs[1]}, {s["T0"]}, {self.aX[1]}')
        B(f's_add_u32 {s["T0"]}, {self.sW2K}, {L_X}\nv_add_u32 {self.aXo[0]}, {s["T0"]}, {self.aX[0]}\nv_add_u32 {self.aXo[1]}, {s["T0"]}, {self.aX[1]}')
        ra = [V.alloc() for _ in range(4)]
        B(f'v_lshrrev_b32 {t1}, 1, {j}\nv_lshrrev_b32 {t2}, 1, {g}\nv_xor_b32 {t1}, {t1}, {t2}\nv_lshlrev_b32 {t1}, 4, {t1}\nv_and_b32 {t2}, 1, {g}\nv_lshl_add_u32 {t1}, {t2}, 3, {t1}')
        B(f'v_lshl_add_u32 {t1}, {j}, 7, {t1}\nv_add_u32 {ra[0]}, {s["T0"]}, {t1}')
        for ct in range(1, 4): B(f'v_xor_b32 {ra[ct]}, {ct*32}, {ra[0]}')
        self.vTRf = V.alloc(); self.vTRb = V.alloc()
        B(f'v_and_b32 {t1}, 3, {e}\nv_lshlrev_b32 {self.vTRf}, 5, {t1}')
        B(f'v_bfe_u32 {t1}, {vL}, 2, 2\nv_and_b32 {t2}, 3, {vL}\nv_lshlrev_b32 {t2}, 3, {t2}\nv_lshl_add_u32 {self.vTRb}, {t1}, 7, {t2}')
        B(f's_lshl_b32 {s["T0"]}, {s["W"]}, 5\nv_xor_b32 {t1}, {s["T0"]}, {self.vTRf}\nv_mul_u32_u24 {t2}, 3072, {g}\nv_add3_u32 {self.aW1}, {t1}, {t2}, {self.vTRb}\nv_add_u32 {self.aW1}, {L_W}, {self.aW1}')
        self.mB0 = S.alloc(2); self.mB1 = S.alloc(2); self.mDiag = S.alloc(2); mOwnA = S.alloc(2); mOwnB = S.alloc(2)
        B(f's_mov_b32 {self.mB0[0]}, 0xaaaaaaaa\ns_mov_b32 {self.mB0[1]}, 0xaaaaaaaa\ns_mov_b32 {self.mB1[0]}, 0xcccccccc\ns_mov_b32 {self.mB1[1]}, 0xcccccccc')
        B(f's_mov_b32 {self.mDiag[0]}, 0x00f0000f\ns_mov_b32 {self.mDiag[1]}, 0xf0000f00')
        def lanemask(fn):
            v = sum(1 << l for l in range(64) if fn(l & 15, l >> 4)); return v & 0xffffffff, v >> 32
        oa = lanemask(lambda jj, gg: 4*gg + (jj & 1) <= jj); ob = lanemask(lambda jj, gg: 4*gg + 2 + (jj & 1) <= jj)
        B(f's_mov_b32 {mOwnA[0]}, {hex(oa[0])}\ns_mov_b32 {mOwnA[1]}, {hex(oa[1])}\ns_mov_b32 {mOwnB[0]}, {hex(ob[0])}\ns_mov_b32 {mOwnB[1]}, {hex(ob[1])}')
        aTB = V.alloc(); aTBw = V.alloc(); aHPw = V.alloc(); aHPr = V.alloc()
        B(f'v_lshlrev_b32 {aTB}, 4, {j}\nv_add_u32 {aTB}, {SCR_TB}, {aTB}\nv_lshl_add_u32 {aTBw}, {s["W"]}, 8, {aTB}')
        B(f'v_lshlrev_b32 {aHPr}, 5, {j}\nv_add_u32 {aHPr}, {SCR_HP}, {aHPr}\nv_lshl_add_u32 {aHPw}, {s["W"]}, 3, {aHPr}')
        ka = V.alloc(); kb = V.alloc(); bias = V.alloc(2); sel = V.alloc(4)
        B(f'v_and_b32 {t1}, 1, {j}\nv_lshl_add_u32 {t1}, {g}, 2, {t1}\nv_lshlrev_b32 {t1}, 4, {t1}\nv_add_u32 {t1}, {SCR_TB + 8}, {t1}\nv_add_u32 {t2}, 256, {t1}')
        B(f'v_cndmask_b32 {ka}, {t1}, {t2}, {mOwnA}\nv_cndmask_b32 {kb}, {t1}, {t2}, {mOwnB}')
        B(f's_cmp_eq_u32 {s["BLK"]}, 0\ns_cselect_b32 {s["T0"]}, {fhex(-1e30)}, 0\nv_mov_b32 {t1}, {s["T0"]}\nv_mov_b32 {t3}, 0x0c0c0c0c')
        B(f'v_cndmask_b32 {bias[0]}, {t1}, 0, {mOwnA}\nv_cndmask_b32 {bias[1]}, {t1}, 0, {mOwnB}')
        B(f'v_mov_b32 {t1}, 0x0c0c0100\nv_mov_b32 {t2}, 0x01000c0c\nv_cndmask_b32 {t1}, {t1}, {t2}, {self.mB0}')
        B(f'v_cndmask_b32 {sel[0]}, {t1}, {t3}, {mOwnA}\nv_cndmask_b32 {sel[2]}, {t3}, {t1}, {mOwnA}')
        B(f'v_mov_b32 {t1}, 0x0c0c0302\nv_mov_b32 {t2}, 0x03020c0c\nv_cndmask_b32 {t1}, {t1}, {t2}, {self.mB0}')
        B(f'v_cndmask_b32 {sel[1]}, {t1}, {t3}, {mOwnB}\nv_cndmask_b32 {sel[3]}, {t3}, {t1}, {mOwnB}')
        self.sD = S.alloc(); self.vF = V.alloc(2); self.vH = V.alloc(); self.vD = V.alloc(4)
        self.sR2 = S.alloc(); self.sU = S.alloc(2); self.sDl = S.alloc(); self.sCP = [S.alloc() for _ in range(7)]
        for k in range(7): B(f's_mov_b32 {self.sCP[k]}, {(k + 1)*64*PITCH3}')
        B(f's_and_b32 {s["PF"]}, {s["M"]}, 1\ns_mul_i32 {s["T0"]}, {s["M"]}, 192\ns_mul_i32 {s["T1"]}, {s["PF"]}, {PITCH3}')
        B(f's_add_u32 {s["T2"]}, {s["T0"]}, {s["T1"]}\ns_sub_u32 {s["T3"]}, {s["T0"]}, {s["T1"]}\ns_add_u32 {s["T3"]}, {s["T3"]}, {PITCH3}')
        B(f's_sub_u32 {self.sDl}, {s["T3"]}, {s["T2"]}\ns_add_u32 {self.sDl}, {self.sDl}, 64')
        B(f's_and_b32 {s["T0"]}, {s["W"]}, 1\ns_and_b32 {s["T1"]}, {s["W"]}, 2')
        B(f'v_and_b32 {t2}, 1, {e}\nv_lshl_add_u32 {t1}, {g}, 3, {t2}\nv_lshl_add_u32 {t1}, {s["T0"]}, 1, {t1}\nv_mul_u32_u24 {t1}, {2*PITCH3}, {t1}\nv_add_u32 {t1}, {s["T2"]}, {t1}')
        B(f'v_and_b32 {t3}, 1, {g}\nv_or_b32 {t2}, {s["T1"]}, {t3}\nv_lshlrev_b32 {t2}, 1, {t2}\nv_xor_b32 {t2}, {t2}, {ch}\nv_lshl_add_u32 {self.vF[0]}, {t2}, 4, {t1}\nv_add_u32 {self.vF[1]}, {8*PITCH3}, {self.vF[0]}')
        B(f'v_lshl_add_u32 {t1}, {s["T0"]}, 3, {e}\nv_lshlrev_b32 {t3}, 2, {t3}\nv_xor_b32 {t3}, {t3}, {ch}\nv_lshlrev_b32 {t3}, 4, {t3}\nv_lshl_add_u32 {self.vD[0]}, {t1}, 10, {t3}')
        B(f'v_and_b32 {t1}, 3, {e}\nv_lshlrev_b32 {t1}, 3, {t1}\nv_lshrrev_b32 {t2}, 5, {vL}\nv_lshl_add_u32 {t1}, {t2}, 1, {t1}\nv_bfe_u32 {t2}, {vL}, 2, 1\nv_add_u32 {t1}, {t1}, {t2}\nv_lshl_add_u32 {t1}, {s["T0"]}, 2, {t1}\nv_mul_u32_u24 {t1}, {2*PITCH3}, {t1}\nv_add_u32 {t1}, {s["T3"]}, {t1}')
        B(f'v_and_b32 {t2}, 3, {vL}\nv_xor_b32 {t2}, {s["T1"]}, {t2}\nv_lshl_add_u32 {self.vH}, {t2}, 4, {t1}')
        B(f's_lshl_b32 {s["T1"]}, {s["T1"]}, 13\ns_add_u32 {self.sU[0]}, {s["T1"]}, {self.sC128}\ns_mul_i32 {s["T1"]}, {s["T1"]}, 6\ns_add_u32 {self.sU[1]}, {s["T1"]}, {self.sC128}')
        pass
        if o['o_in_ws']: B(f's_lshl_b32 {self.sOst}, {s["SB"]}, 16\ns_add_u32 {self.sOst}, {self.sOst}, {s["GB"]}\ns_add_u32 {self.sOst}, {self.sOst}, {WS_O}')
        else: B(f's_lshl_b32 {self.sOst}, {s["BLK"]}, 16')
        B(f's_lshl_b32 {s["T1"]}, {s["C"]}, 13\ns_add_u32 {self.sOst}, {self.sOst}, {s["T1"]}\ns_add_u32 {self.sOst}, {self.sOst}, {self.sW2K}')
        B(f's_lshr_b32 {s["T1"]}, {s["W"]}, 1\ns_lshl_b32 {s["T2"]}, {s["SB"]}, 1\ns_add_u32 {s["T2"]}, {s["T2"]}, {s["T1"]}\ns_lshl_b32 {s["T2"]}, {s["T2"]}, 15')
        B(f's_lshl_b32 {s["T1"]}, {s["C"]}, 12\ns_add_u32 {s["T2"]}, {s["T2"]}, {s["T1"]}\ns_add_u32 {self.sHst}, {s["T2"]}, {s["GB"]}')
        B(f's_lshl_b32 {s["T0"]}, {s["T0"]}, 11\ns_add_u32 {s["T2"]}, {s["T2"]}, {s["T0"]}\nv_add_u32 {vT}, {s["T2"]}, {v128}')
        B(f's_lshl_b32 {s["T0"]}, {s["M"]}, 2\ns_add_u32 {s["T0"]}, {s["T0"]}, {s["W"]}\ns_lshl_b32 {s["T0"]}, {s["T0"]}, 7\ns_add_u32 {s["T1"]}, {s["T0"]}, {WS_ST}\nv_writelane_b32 {vT}, {s["T1"]}, 16')
        B(f's_and_b32 {s["T0"]}, {s["T0"]}, 0x380\ns_add_u32 {s["T1"]}, {s["T0"]}, {WS_FL}\nv_writelane_b32 {vT}, {s["T1"]}, 17')
        self.info['setupB'] = len(B.L)
        A.ext(sprinkle(B, groups, o['sp0'], start=o['sp0']))
        for r in (vHa, vHb, e, ch, sH, sZ): r.free()
        for gq in pf_flat('s2'): A.ext(gq)
        self.aQ = [V.alloc(4, 2) for _ in range(5)]; self.aK = [V.alloc(4, 2) for _ in range(5)]; self.aV = [V.alloc(4, 2) for _ in range(5)]
        self.stG = V.alloc(4, 2); self.stS = V.alloc(4, 2)
        bufs = [([AG.alloc(4, 4) for _ in range(3)], [AG.alloc(4, 4) for _ in range(5)], AG.alloc(4, 4)) for _ in range(2)]
        hb = bufs[1][1]
        A('@waitvm halo')
        self.stamp('halo landed')
        for q in range(4): A(f'ds_read_b128 {hb[q]}, {aHs[q & 1]} offset:{L_HALO + (q >> 1)*2048}')
        c2 = self.p1_chunk_dma(2); n2 = o.get('c2pre', 4)
        for q in range(4):
            A(f'v_mfma_f32_16x16x32_bf16 {self.stG}, {hb[q]}, {hb[q]}, {self.stG if q else 0}')
            A(f'v_mfma_f32_16x16x32_bf16 {self.stS}, {self.ones}, {hb[q]}, {self.stS if q else 0}')
        A.ext(self.diag_code(self.stG, self.stS[1]))
        A(f's_mov_b64 exec, {self.mDiag}\nds_write_b64 {aHPw}, {self.stS.sub(0, 2)}\ns_mov_b64 exec, -1')
        for gq in c2[:n2]: A.ext(gq)
        A('@waitlg0\n@waitvm ch0\ns_barrier')
        self.stamp('chunk0 visible')
        A.ext(self.p1_reads(0, 0, bufs[0]))
        self.resx = V.alloc(8, 2); hp = V.alloc(8, 2); tb4 = V.alloc(4, 2)
        extra = [Ins(f'ds_read_b128 {hp.sub(0, 4)}, {aHPr}'), Ins(f'ds_read_b128 {hp.sub(4, 4)}, {aHPr} offset:16')]
        extra += [Ins(f'ds_read_b64 {self.resx.sub(2*ct, 2)}, {ra[ct]}') for ct in range(4)]
        hs = Asm()
        for a_, b_ in ((0, 2), (1, 3), (4, 6), (5, 7), (0, 4), (1, 5)): hs(f'v_add_f32 {hp[a_]}, {hp[a_]}, {hp[b_]}')
        hs.ext(self.stats_code(hp[1], hp[0], tb4)); hs(f'ds_write_b128 {aTB}, {tb4}')
        flat = lambda gs: [x for gq in gs for x in gq]
        misc = flat(c2[n2:])
        self.gap_since_vm = 99
        for n in range(16):
            i, st = n >> 1, n & 1
            if n: A('@waitlg0')
            if o.get("fine", 0) >= 16 and st == 0: self.stamp(f'p1 chunk {i}')
            if st == 1 and i < 7:
                A(f'@waitvm ch{i+1}\ns_barrier')
                if i == 4: A('@minlg 0')
                if i + 3 < 8: misc += flat(self.p1_chunk_dma(i + 3))
                if i == 4: misc += [Ins(f'v_mov_b32 {t1}, {self.sCoff}'), Ins(f'global_load_dword {t2}, {t1}, s[20:21] sc1')]
                for kind, at in o['pf'].items():
                    if at == i: misc += pf_group(kind)
                if i == 5:
                    self.free_blocks += [23, 24, 25, 26, 27]
                    misc += flat(self.dmas(o['w2a']))
                if i == 6: misc += flat(self.dmas(o['w2b']))
            if n == 2: misc[:0] = hs.L
            mf = self.p1_mfmas(bufs[n & 1], n == 0)
            if n < 15:
                rd = self.p1_reads((n + 1) >> 1, (n + 1) & 1, bufs[(n + 1) & 1])
                if n == 0: rd = rd + extra
                self.weave16(mf, rd, misc, vgap=o.get('vgap', 3))
            else:
                code = self.diag_code(self.stG, self.stS[1]) + self.stats_code(self.stS[1], self.stS[0], tb4)
                code.append([Ins(f's_mov_b64 exec, {self.mDiag}'), Ins(f'ds_write_b128 {aTBw}, {tb4} offset:256'), Ins('s_mov_b64 exec, -1')])
                self.weave16(mf[:5], [], misc)
                self.weave16(mf[5:13], [], code); assert not code
                self.weave16(mf[13:], [], misc)
        self.stamp('p1 gemm done')
        for b in bufs:
            for r in b[0] + b[1] + [b[2]]: r.free()
        for r in ra + aHs + [hp, aHPw, aHPr, aTBw, tb4, self.stG, self.stS, self.aW1, self.vXa, self.vXb, self.vW1] + self.aX + self.aXo: r.free()
        left = []; cur = []
        for x in misc:
            cur += x if isinstance(x, list) else [x]
            if any(y.kind == 'vmem' for y in cur): left.append(cur); cur = []
        assert not cur
        self.info['w2_left'] = len(left)
        if left: A.ext(left.pop(0))
        A(f'v_readfirstlane_b32 {self.sCv}, {t2}\n@waitlg0\ns_barrier')
        nw2_left = 16 - o['w2a'] - o['w2b']
        late_free = [22, 8, 9] + list(range(10, 16)) + [4, 5] + list(range(16, 22)) + [6, 7, 0, 1, 2, 3]
        tb = [V.alloc(4, 2) for _ in range(5)]
        for t in range(5): A(f'ds_read_b128 {tb[t]}, {aTB} offset:{t*256}')
        rk = [None] + [V.alloc(2) for _ in range(4)]
        for t in range(1, 5): A(f'ds_read_b32 {rk[t][0]}, {ka} offset:{(t-1)*256}\nds_read_b32 {rk[t][1]}, {kb} offset:{(t-1)*256 + 32}')
        olo = 48 if o['o_in_ws'] else 44; osz = o['ws_base'] + WS_SIZE if o['o_in_ws'] else 2048*1024
        A(f's_mov_b32 s24, s{olo}\ns_mov_b32 s25, s{olo+1}\ns_mov_b32 s28, s{olo}\ns_mov_b32 s29, s{olo+1}')
        A(f's_mov_b32 s26, {osz}\ns_mov_b32 s30, 0\ns_mov_b32 s54, s50')
        A(f's_lshl_b32 {s["T0"]}, {self.sCen}, 4\ns_cmp_eq_u32 {s["T0"]}, {self.sCv}')
        if o['force_slow']: A('s_cmp_eq_u32 0, 1')
        A('s_cbranch_scc0 L_notfast\nL_mode_ok:')
        T = self.tail
        T(f'L_notfast:\ns_mov_b32 {s["T1"]}, 0x8000\nL_cen_loop:\nglobal_load_dword {t2}, {t1}, s[20:21] sc1\ns_waitcnt vmcnt(0)\nv_readfirstlane_b32 {self.sCv}, {t2}')
        T(f's_sub_u32 {s["T1"]}, {s["T1"]}, 1\ns_cbranch_scc1 L_cen_done\ns_and_b32 {s["T2"]}, {self.sCv}, 31\ns_cmp_lt_u32 {s["T2"]}, 16\ns_cbranch_scc1 L_cen_loop\nL_cen_done:')
        if not o['force_slow']: T(f's_cmp_eq_u32 {s["T0"]}, {self.sCv}\ns_cbranch_scc1 L_mode_ok')
        T(f's_mov_b32 s26, 0\ns_mov_b32 s30, {osz}\ns_mov_b32 s54, 0\ns_mov_b32 s58, s50')
        T(f's_add_u32 {s["FL"]}, {s["FL"]}, {FL_SLOW}\ns_add_u32 {self.sFme}, {self.sFme}, {FL_SLOW}\ns_mov_b64 exec, 0x111\nv_mov_b32 {t2}, 0')
        T(f'buffer_store_dword {t2}, {self.vFz}, {self.WS}, {self.sFme} offen sc1\ns_waitcnt vmcnt(0)\ns_mov_b64 exec, 1\nv_mov_b32 {t2}, 1')
        T(f'global_atomic_add {t1}, {t2}, s[20:21] offset:4 sc1\ns_mov_b64 exec, -1\ns_mov_b32 {s["T1"]}, 0x8000')
        T(f'L_slow_loop:\nglobal_load_dword {t2}, {t1}, s[20:21] offset:4 sc1\ns_waitcnt vmcnt(0)\nv_readfirstlane_b32 {s["T0"]}, {t2}')
        T(f's_sub_u32 {s["T1"]}, {s["T1"]}, 1\ns_cbranch_scc1 L_mode_ok\ns_cmp_lt_u32 {s["T0"]}, 64\ns_cbranch_scc1 L_slow_loop\ns_branch L_mode_ok')
        E = Asm()
        csq = V.alloc(4, 2); csk = V.alloc(4, 2); csv = V.alloc(2, 2)
        for r in range(4): E(f'v_mov_b32_dpp {csk[r]}, {self.aK[0][r]} row_newbcast:0 row_mask:0xf bank_mask:0xf')
        for r in range(4): E(f'v_mov_b32_dpp {csq[r]}, {self.aQ[0][r]} row_newbcast:0 row_mask:0xf bank_mask:0xf')
        E(f'v_cvt_pk_bf16_f32 {t1}, {self.aV[0][0]}, {self.aV[0][0]}\nv_mov_b32 {csv[0]}, 0\nv_and_b32 {t1}, 0xffff0000, {t1}\nv_mov_b32 {csv[1]}, 0\nv_sub_f32 {t2}, {self.aV[0][0]}, {t1}')
        E(f's_mov_b64 exec, 0xffff\nv_cvt_pk_bf16_f32 {csv[1]}, {t1}, {t2}\ns_mov_b64 exec, -1')
        Kp = V.alloc(10, 2); Qp = V.alloc(10, 2); Vp = V.alloc(10, 2)
        def fixf(acc, cs, t):
            for h in range(2): E(f'v_pk_fma_f32 {acc[t].sub(2*h, 2)}, {cs.sub(2*h, 2)}, {tb[t].sub(0, 2)}, {acc[t].sub(2*h, 2)} op_sel_hi:[1,0,1]')
        fixf(self.aK, csk, 0)
        for t in range(1, 5): fixf(self.aK, csk, t); fixf(self.aQ, csq, t)
        zs = [None] + [V.alloc(2) for _ in range(4)]
        for t in range(1, 5): E(f'v_pk_mul_f32 {zs[t]}, {rk[t]}, {tb[t].sub(2, 2)} op_sel:[0,1] op_sel_hi:[1,1]')
        cv = lambda acc, dst, t: [f'v_cvt_pk_bf16_f32 {dst[2*t + h]}, {acc[t][2*h]}, {acc[t][2*h+1]}' for h in range(2)]
        vm = [f'v_mfma_f32_16x16x16_bf16 {self.aV[t]}, {tb[t].sub(0, 2)}, {csv}, {self.aV[t]}' for t in range(5)]
        cvs = cv(self.aK, Kp, 0)
        for t in range(1, 5): cvs += cv(self.aK, Kp, t) + cv(self.aQ, Qp, t)
        for t in range(5):
            E(vm[t]); E(cvs.pop(0)); E(cvs.pop(0))
        Sp, So = self.aK, self.aQ
        Sp = [None] + self.aK[0:4]; So = [None] + self.aQ[0:4]
        for t in range(1, 5):
            E(f'v_mfma_f32_16x16x16_bf16 {Sp[t]}, {Kp.sub(2*t-2, 2)}, {Qp.sub(2*t, 2)}, 0')
            for _ in range(2):
                if cvs: E(cvs.pop(0))
            E(f'v_mfma_f32_16x16x16_bf16 {So[t]}, {Kp.sub(2*t, 2)}, {Qp.sub(2*t, 2)}, 0')
            for _ in range(2):
                if cvs: E(cvs.pop(0))
        z = [None] + [V.alloc(2) for _ in range(4)]
        for t in range(1, 5):
            for h, mk in ((0, mOwnA), (1, mOwnB)):
                E(f'v_cndmask_b32 {Sp[t][2*h]}, {Sp[t][2*h]}, {Sp[t][2*h+1]}, {self.mB0}\nv_cndmask_b32 {So[t][2*h]}, {So[t][2*h]}, {So[t][2*h+1]}, {self.mB0}')
                E(f'v_cndmask_b32 {z[t][h]}, {Sp[t][2*h]}, {So[t][2*h]}, {mk}')
        E(f'v_pk_fma_f32 {z[1]}, {z[1]}, {zs[1]}, {bias}')
        for t in range(2, 5): E(f'v_pk_mul_f32 {z[t]}, {z[t]}, {zs[t]}')
        red = zs
        fl = [x for t in range(5) for x in cv(self.aV, Vp, t)]
        def fill(n):
            for _ in range(n):
                if fl: E(fl.pop(0))
        def allreduce(op, mid=None):
            r = [None] + [red[t][0] for t in range(1, 5)]
            for t in (1, 3, 2, 4): E(f'{op} {r[t]}, {z[t][0]}, {z[t][1]}')
            E(f'v_permlane32_swap_b32 {r[1]}, {r[3]}'); fill(1)
            E(f'v_permlane32_swap_b32 {r[2]}, {r[4]}')
            E(f'{op} {r[1]}, {r[1]}, {r[3]}\n{op} {r[2]}, {r[2]}, {r[4]}'); fill(2)
            E(f'v_permlane16_swap_b32 {r[1]}, {r[2]}')
            E(f'{op} {r[1]}, {r[1]}, {r[2]}')
            if mid: E(f'{mid} {r[1]}, {r[1]}'); fill(1)
            E(f'v_mov_b32 {r[2]}, {r[1]}'); fill(2)
            E(f'v_permlane16_swap_b32 {r[1]}, {r[2]}')
            E(f'v_mov_b32 {r[3]}, {r[1]}\nv_mov_b32 {r[4]}, {r[2]}'); fill(1)
            E(f'v_permlane32_swap_b32 {r[1]}, {r[3]}\nv_permlane32_swap_b32 {r[2]}, {r[4]}')
        allreduce('v_max_f32')
        for t in range(1, 5): E(f'v_pk_add_f32 {z[t]}, {z[t]}, {red[t]} op_sel_hi:[1,0] neg_lo:[0,1] neg_hi:[0,1]')
        for t in range(1, 5): E(f'v_exp_f32 {z[t][0]}, {z[t][0]}\nv_exp_f32 {z[t][1]}, {z[t][1]}')
        fl += [f'v_pk_mul_f32 {rk[t]}, {z[t]}, {rk[t]}' for t in range(1, 5)]
        allreduce('v_add_f32', 'v_rcp_f32')
        fill(20)
        for t in range(1, 5): E(f'v_pk_mul_f32 {z[t]}, {rk[t]}, {red[t]} op_sel_hi:[1,0]')
        for t in range(1, 5): E(f'v_cvt_pk_bf16_f32 {z[t][0]}, {z[t][0]}, {z[t][1]}')
        P = Sp; O = So
        for t in range(1, 5):
            for q in range(4):
                E(f'v_perm_b32 {P[t][q]}, {z[t][0]}, {z[t][0]}, {sel[q]}')
                if q == 1 and t > 1: E(f'v_mfma_f32_16x16x32_bf16 {O[t-1]}, {Vp.sub(2*t-4, 4)}, {P[t-1]}, 0')
        of = [self.aV[0], self.aV[1]]
        oc = lambda t: [f'v_cvt_pk_bf16_f32 {of[(t-1) >> 1][2*((t-1) & 1) + h]}, {O[t][2*h]}, {O[t][2*h+1]}' for h in range(2)]
        for x in oc(1): E(x)
        E(f'v_mfma_f32_16x16x32_bf16 {O[4]}, {Vp.sub(6, 4)}, {P[4]}, 0')
        groups = pf_flat('e0') + left + self.dmas(nw2_left) + pf_flat('e1')
        self.free_blocks += late_free
        groups += self.dmas(o['b_epi'])
        A.ext(sprinkle(E, groups, o.get('sp1', 18), start=8))
        for x in oc(2) + oc(3): A(x)
        A(f'v_permlane16_swap_b32 {of[0][0]}, {of[0][2]}\nv_permlane16_swap_b32 {of[0][1]}, {of[0][3]}')
        for x in oc(4): A(x)
        self.store2(A, 'dwordx4', of[0], self.vL16, self.sOst, 0, 'ost', (self.X, self.WQ))
        A(f'v_permlane16_swap_b32 {of[1][0]}, {of[1][2]}\nv_permlane16_swap_b32 {of[1][1]}, {of[1][3]}')
        self.store2(A, 'dwordx4', of[1], self.vL16, self.sOst, 1024, 'ost', (self.X, self.WQ))
        self.stamp('o stored')
        for gq in pf_flat('e2'): A.ext(gq)
        for r in (vT, sP, v1k): r.free()
        self.junk1 = junk
        self.OSRD = OSRD
        for r in tb + rk[1:] + zs[1:] + z[1:] + [csq, csk, csv, Kp, Qp, Vp, bias, sel, aTB, ka, kb, self.vFz] + self.aQ + self.aK + self.aV[2:]: r.free()
        for r in (mOwnA, mOwnB, self.sCen, self.sCoff, self.sCv, self.sW3K, self.sKC, self.sSO): r.free()
        self.of = of

    def phase2(self):
        A, V, S, AG, s, vL, o = self.A, self.V, self.S, self.AG, self.s, self.vL, self.o
        t1, t2, t3, j, g = self.t1, self.t2, self.t3, self.vJ, self.vG
        self.vFv = V.alloc(); self.vPv = V.alloc()
        assert ('W2', 15) in self.loc
        aw = [V.alloc() for _ in range(4)]
        A(f'v_lshl_add_u32 {t1}, {g}, 10, {self.vTRb}\nv_add_u32 {t1}, {23*BLK}, {t1}')
        for ct in range(4): A(f'v_xor_b32 {t2}, {ct*32}, {self.vTRf}\nv_add_u32 {aw[ct]}, {t1}, {t2}')
        pa = V.alloc(); oa = V.alloc(); hv = V.alloc(); sSt = S.alloc(); vj16 = V.alloc(); aRw = V.alloc()
        A(f's_lshl_b32 {s["T0"]}, {s["SB"]}, 7\nv_and_b32 {t1}, 31, {vL}\nv_lshl_add_u32 {pa}, {t1}, 2, {s["T0"]}')
        A(f's_lshr_b32 {s["T0"]}, {s["W"]}, 1\ns_lshl_b32 {s["T0"]}, {s["T0"]}, 10\ns_and_b32 {s["T1"]}, {s["W"]}, 1\ns_lshl_b32 {s["T1"]}, {s["T1"]}, 8')
        A(f'v_lshlrev_b32 {vj16}, 4, {j}\nv_and_b32 {t1}, 1, {g}\nv_lshl_add_u32 {t1}, {t1}, 9, {vj16}\nv_lshrrev_b32 {t2}, 1, {g}\nv_lshl_add_u32 {t1}, {t2}, 11, {t1}\nv_add_u32 {hv}, {s["T1"]}, {t1}\nv_add_u32 {oa}, {s["T0"]}, {hv}')
        A(f's_and_b32 {self.sR2}, {self.sOst}, 0xffff0000')
        acc = [V.alloc(4, 2) for _ in range(4)]
        for ct in range(4):
            for h in range(2):
                A(f'v_lshlrev_b32 {acc[ct][2*h]}, 16, {self.resx[2*ct+h]}\nv_and_b32 {acc[ct][2*h+1]}, 0xffff0000, {self.resx[2*ct+h]}')
        A(f's_lshl_b32 {s["T0"]}, {s["T0"]}, 1\ns_add_u32 {sSt}, {s["T0"]}, {s["T1"]}\ns_lshl_b32 {s["T0"]}, {s["SB"]}, 12\ns_add_u32 {sSt}, {sSt}, {s["T0"]}')
        A(f's_and_b32 {s["T0"]}, {s["C"]}, 2\ns_lshl_b32 {s["T0"]}, {s["T0"]}, 9\ns_add_u32 {sSt}, {sSt}, {s["T0"]}\ns_and_b32 {s["T0"]}, {s["C"]}, 4\ns_lshl_b32 {s["T0"]}, {s["T0"]}, 7\ns_add_u32 {sSt}, {sSt}, {s["T0"]}')
        A(f's_and_b32 {s["T0"]}, {s["C"]}, 1\ns_lshl_b32 {s["T0"]}, {s["T0"]}, 3\ns_add_u32 {sSt}, {sSt}, {s["T0"]}\ns_add_u32 {sSt}, {sSt}, {s["GB"]}\ns_add_u32 {sSt}, {sSt}, {WS_ST}')
        A('@waitvm ost')
        for r in self.of: r.free()
        self.stamp('o drained')
        A.ext(self.signal(0, 1))
        A('@waitvm W2_15\ns_barrier')
        Wf = [[AG.alloc(4, 4) for _ in range(4)] for _ in range(16)]
        def rd(i):
            off = (self.loc[('W2', i)] - 23)*BLK
            return [Ins(f'ds_read_b64_tr_b16 {Wf[i][ct].sub(2*a, 2)}, {aw[ct]} offset:{off + a*512}') for ct in range(4) for a in range(2)]
        npre = o['w2pre']
        A.ext(sprinkle([x for i in range(npre) for x in rd(i)], self.dmas(o['b_post1']), 8))
        self.poll_block(A, pa, 1); A('@drained_vm')
        self.stamp('sync1 done')
        self.junk1.free()
        Of = [V.alloc(4, 2) for _ in range(16)]
        ld = [[Ins(f's_add_u32 {s["T1"]}, {self.sR2}, {i << 12}'), Ins(f'buffer_load_dwordx4 {Of[i]}, {oa}, {self.OSRD}, {s["T1"]} offen sc1')] for i in range(16)]
        rest = [x for i in range(npre, 16) for x in rd(i)]
        LO = o['LO']
        for i in range(LO):
            A.ext(ld[i]); A.ext(rest[:5]); rest = rest[5:]
        misc = [x for gq in ld[LO:] + self.dmas(o['b_o']) for x in gq]
        mf = [Ins(f'v_mfma_f32_16x16x32_bf16 {acc[ct]}, {Wf[i][ct]}, {Of[i]}, {acc[ct]}') for i in range(16) for ct in range(4)]
        assert len(rest) <= 52, len(rest)
        self.gap_since_vm = 99
        self.weave16(mf, rest, misc)
        A.ext(misc)
        self.stamp('p2 gemm done')
        w2b = sorted(self.loc[('W2', i)] for i in range(16))
        self.resb = w2b[0]; assert w2b[1] == w2b[0] + 1
        A(f's_add_u32 {s["T0"]}, {self.sW2K}, {self.resb*BLK}\nv_lshlrev_b32 {t1}, 7, {j}\nv_lshl_add_u32 {t1}, {g}, 3, {t1}')
        A(f'v_bfe_u32 {t2}, {j}, 0, 2\nv_lshl_add_u32 {t1}, {t2}, 5, {t1}\nv_add_u32 {aRw}, {s["T0"]}, {t1}\ns_barrier')
        self.free_blocks += w2b[2:]
        hf = [Of[0], Of[1]]; G4, S4 = Of[2], Of[3]
        for par in range(2):
            for ct in range(4): A(f'v_cvt_pk_bf16_f32 {hf[par][ct]}, {acc[ct][par]}, {acc[ct][2+par]}')
        rp = Reg('v', Of[4].b, 8); assert Of[5].b == Of[4].b + 4
        rc = [f'v_cvt_pk_bf16_f32 {rp[2*ct+h]}, {acc[ct][2*h]}, {acc[ct][2*h+1]}' for ct in range(4) for h in range(2)]
        A(f'v_mfma_f32_16x16x32_bf16 {G4}, {hf[0]}, {hf[0]}, 0')
        self.store2(A, 'dwordx4', hf[0], hv, self.sHst, 0, 'hst')
        A(f'v_mfma_f32_16x16x32_bf16 {G4}, {hf[1]}, {hf[1]}, {G4}')
        A(f'v_mfma_f32_16x16x32_bf16 {S4}, {self.ones}, {hf[0]}, 0')
        A(f'v_mfma_f32_16x16x32_bf16 {S4}, {self.ones}, {hf[1]}, {S4}')
        self.store2(A, 'dwordx4', hf[1], hv, self.sHst, 1024, 'hst')
        d = self.diag_code(G4, S4[1])
        A('\n'.join(rc[:3])); A.ext(d[:2]); A(rc[3]); A.ext(d[2:])
        A(f's_mov_b64 exec, {self.mDiag}')
        self.store2(A, 'dwordx2', S4.sub(0, 2), vj16, sSt, 0, 'hst')
        A('s_mov_b64 exec, -1')
        self.stamp('h stored')
        A('\n'.join(rc[4:]))
        A(f'ds_write_b64 {aRw}, {rp.sub(0, 2)}')
        for ct in range(1, 4): A(f'v_xor_b32 {t1}, {ct*32}, {aRw}\nds_write_b64 {t1}, {rp.sub(2*ct, 2)}')
        for r in aw + [pa, oa, hv, vj16, aRw] + acc + Of[6:] + [x for y in Wf for x in y] + [self.vW2, self.mB0, self.mB1, self.mDiag, self.sR2, sSt, self.sOst, self.sHst, self.ones]: r.free()
        self.late_free = Of[:6]

    def phase34(self):
        A, V, S, AG, s, vL, o = self.A, self.V, self.S, self.AG, self.s, self.vL, self.o
        t1, t2, t3, j, g = self.t1, self.t2, self.t3, self.vJ, self.vG
        P = Asm()
        Q = Asm()
        class Win:
            def __init__(w, base): w.r = {0: base}
            def need(w, k):
                if k in w.r: return []
                w.r[k] = V.alloc()
                return [Ins(f'v_add_u32 {w.r[k]}, {k << 16}, {w.r[0]}')]
        aF, aH, aD = [], [], []
        P(f'v_and_b32 {t1}, 1, {g}\nv_lshlrev_b32 {t1}, 11, {t1}\nv_lshrrev_b32 {t2}, 1, {g}\nv_lshl_add_u32 {t3}, {t2}, 10, {t1}')
        b0 = V.alloc(); P(f'v_add3_u32 {b0}, {t3}, {self.vTRb}, {self.vTRf}'); aF.append(Win(b0))
        for uu in range(1, 4):
            b = V.alloc(); P(f'v_xor_b32 {b}, {uu*32}, {b0}'); aF.append(Win(b))
        b0 = V.alloc(); b1 = V.alloc()
        P(f'v_lshl_add_u32 {t3}, {t2}, 9, {t1}\nv_bfe_u32 {t1}, {vL}, 2, 2\nv_lshl_add_u32 {t3}, {t1}, 6, {t3}\nv_and_b32 {t1}, 3, {vL}\nv_lshl_add_u32 {t3}, {t1}, 3, {t3}\nv_and_b32 {t1}, 1, {g}\nv_lshl_add_u32 {b0}, {t1}, 5, {t3}\nv_xor_b32 {b1}, 32, {b0}')
        aH = [Win(b0), Win(b1)]
        P(f's_and_b32 {s["T1"]}, {s["W"]}, 2\nv_or_b32 {t1}, {s["T1"]}, {t1}\nv_lshlrev_b32 {t1}, 5, {t1}')
        b = V.alloc(); P(f'v_xor_b32 {b}, {t1}, {self.vL16}\nv_add_u32 {b}, {s["W1K"]}, {b}'); aCF = Win(b)
        b = V.alloc(); P(f's_lshl_b32 {s["T1"]}, {s["T1"]}, 4\nv_xor_b32 {b}, {s["T1"]}, {self.vL16}\nv_add_u32 {b}, {s["W1K"]}, {b}'); aCH = Win(b)
        delta = V.alloc(4, 2)
        P(f'v_and_b32 {t1}, 1, {j}\nv_lshlrev_b32 {t1}, 4, {t1}\nv_mov_b32 {t2}, 0x3f80\nv_lshlrev_b32 {t1}, {t1}, {t2}')
        for d in range(4):
            mk = 0x00030003 << (2*d)
            P(f's_mov_b32 vcc_lo, {hex(mk)}\ns_mov_b32 vcc_hi, {hex(mk)}\nv_cndmask_b32 {delta[d]}, 0, {t1}, vcc')
        pa2 = V.alloc(); pa3 = V.alloc(); aRes = V.alloc(); vHl = {'F': V.alloc(), 'H': V.alloc()}
        sT4 = S.alloc(); sGa = S.alloc(); sGb = S.alloc(); sGl = S.alloc(); sHl = S.alloc(); sKH = S.alloc(); sTH = S.alloc(); sSl = S.alloc(); sGn = S.alloc(); sTs = S.alloc()
        GS = self.X
        P(f's_lshr_b32 {sKH}, {s["W"]}, 1\ns_and_b32 {sTH}, {s["W"]}, 1')
        P(f's_lshl_b32 {s["T1"]}, {sKH}, 7\ns_lshl_b32 {s["T2"]}, {sTH}, 3\ns_add_u32 {s["T1"]}, {s["T1"]}, {s["T2"]}\ns_add_u32 {s["T1"]}, {s["T1"]}, 256')
        P(f'v_lshrrev_b32 {t1}, 1, {j}\nv_lshl_add_u32 {t1}, {t1}, 4, {s["T1"]}\nv_and_b32 {t2}, 1, {j}\nv_lshl_add_u32 {pa2}, {t2}, 2, {t1}')
        P(f's_lshl_b32 {s["T1"]}, {s["W"]}, 15\ns_add_u32 {sHl}, {s["T1"]}, {s["GB"]}\nv_lshl_add_u32 {vHl["F"]}, {s["PF"]}, 10, {self.vL16}\nv_xor_b32 {vHl["H"]}, 1024, {vHl["F"]}')
        P(f's_lshl_b32 {s["T2"]}, {sTH}, 12\ns_add_u32 {s["T2"]}, {s["T2"]}, {self.resb*BLK}\nv_lshrrev_b32 {t2}, 5, {vL}\nv_lshl_add_u32 {t2}, {sKH}, 1, {t2}\nv_and_b32 {t1}, 3, {vL}\nv_xor_b32 {t2}, {t2}, {t1}')
        P(f'v_and_b32 {t1}, 31, {vL}\nv_lshl_add_u32 {t1}, {t1}, 7, {s["T2"]}\nv_lshl_add_u32 {aRes}, {t2}, 5, {t1}')
        Q(f's_add_u32 {sSl}, {self.sW2K}, {s["GB"]}\ns_add_u32 {sSl}, {sSl}, {WS_ST}')
        Q(f's_mov_b32 s24, s48\ns_mov_b32 s25, s49\ns_mul_i32 s26, {self.sN3[0]}, 190\ns_min_u32 s26, s26, s50\ns_mul_i32 {sGn}, {self.sN3[1]}, 190\ns_min_u32 {sGn}, {sGn}, s50')
        Q(f's_add_u32 {s["T3"]}, {s["GB"]}, {WS_G}\ns_mul_i32 {sGb}, {s["W"]}, {96*KB}\ns_add_u32 {sGb}, {sGb}, {s["T3"]}\ns_lshl_b32 {s["T2"]}, {s["M"]}, 10\ns_add_u32 {sGa}, {sGb}, {s["T2"]}')
        Q(f's_mul_i32 {s["T2"]}, {s["PF"]}, {48*KB - 512}\ns_add_u32 {sGb}, {sGb}, {s["T2"]}\ns_lshl_b32 {s["T2"]}, {s["M"]}, 9\ns_add_u32 {sGb}, {sGb}, {s["T2"]}')
        Q(f's_lshl_b32 {sT4}, {s["SB"]}, 1\ns_add_u32 {sT4}, {sT4}, {sTH}')
        Q(f's_lshl1_add_u32 {s["T2"]}, {sT4}, {sKH}\ns_mul_i32 {s["T2"]}, {s["T2"]}, {48*KB}\ns_add_u32 {sGl}, {s["T3"]}, {s["T2"]}')
        Q(f's_lshl_b32 {s["T2"]}, {sT4}, 2\ns_add_u32 {s["T2"]}, {s["T2"]}, 512\nv_lshl_add_u32 {pa3}, {j}, 4, {s["T2"]}')
        Q(f'v_bfe_u32 {t1}, {vL}, 2, 2\nv_lshrrev_b32 {t2}, 1, {g}\nv_lshl_add_u32 {t1}, {t2}, 2, {t1}\nv_lshlrev_b32 {t3}, 7, {t1}\nv_bfe_u32 {t1}, {vL}, 3, 1\nv_lshl_add_u32 {t3}, {t1}, 6, {t3}')
        Q(f'v_and_b32 {t1}, 1, {vL}\nv_lshl_add_u32 {t3}, {t1}, 5, {t3}\nv_and_b32 {t1}, 1, {g}\nv_lshl_add_u32 {t3}, {t1}, 4, {t3}\nv_bfe_u32 {t1}, {vL}, 1, 1\nv_lshl_add_u32 {t3}, {t1}, 3, {t3}')
        b0 = V.alloc(); b1 = V.alloc()
        Q(f's_mul_i32 {s["T2"]}, {sKH}, {2048 + 64}\nv_xor_b32 {b0}, {s["T2"]}, {t3}\nv_xor_b32 {b1}, 64, {b0}')
        aD = [Win(b0), Win(b1)]
        aCW = V.alloc(); aCR = V.alloc()
        Q(f's_lshl_b32 {s["T2"]}, {sTH}, 10\ns_lshl_b32 {s["T3"]}, {sKH}, 9\ns_add_u32 {s["T2"]}, {s["T2"]}, {s["T3"]}\ns_add_u32 {s["T2"]}, {s["T2"]}, {SCR_CS}')
        Q(f'v_lshl_add_u32 {t1}, {g}, 4, {s["T2"]}\nv_lshl_add_u32 {aCW}, {j}, 5, {t1}')
        Q(f'v_and_b32 {t1}, 1, {g}\nv_lshlrev_b32 {t1}, 9, {t1}\nv_lshl_add_u32 {t1}, {j}, 2, {t1}\nv_lshl_add_u32 {t1}, {t2}, 11, {t1}\nv_add_u32 {aCR}, {SCR_CS}, {t1}')
        cA = V.alloc(4, 2); cB = V.alloc(4, 2); cT = V.alloc(2)
        for r in (cA, cB):
            for k in range(1, 4): Q(f'v_mov_b32 {r[k]}, 0')
        self.info['setupP'] = len(P.L); self.info['setupQ'] = len(Q.L)
        HB = {('F', i): AG.at(8*i, 4) for i in range(16)}; HB.update({('H', i): AG.at(8*i + 4, 4) for i in range(16)})
        ops = []
        def op3(u, ty, i):
            if ty == 'F':
                if u < 4: key, ad, st, ex = ('F1', i), aF[u], 512, 0
                else: key, ad, st, ex = ('S3', i >> 1), aH[u - 4], 256, (i & 1)*1024
            else:
                if u < 2: key, ad, st, ex = ('H1', i >> 1), aH[u], 256, (i & 1)*1024
                else: key, ad, st, ex = ('S2', i), aF[u - 2], 512, 0
            ops.append(dict(k='m', u=u, key=key, ad=ad, st=st, ex=ex, B=HB[(ty, i)], hk=(ty, i)))
        if o['order'] == 'pair':
            for i in range(16):
                for ty in 'FH':
                    for u in (0, 1): op3(u, ty, i)
            for i in range(16):
                for u in (2, 3): op3(u, 'F', i)
        else:
            for i in range(16):
                for u in range(4): op3(u, 'F', i)
                for u in (0, 1): op3(u, 'H', i)
        for u in (2, 3):
            for i in range(16): op3(u, 'H', i)
        if o.get('o45', 'mix') == 'mix':
            for i in range(16):
                for u in (4, 5): op3(u, 'H', i)
            for u in (4, 5):
                for i in range(16): op3(u, 'F', i)
        else:
            for u in (4, 5):
                for ty in 'HF':
                    for i in range(16): op3(u, ty, i)
        NG, NR, LA = o['NG'], o['NR'], o['LA']
        GB = [AG.alloc(4, 4) for _ in range(NG)]
        TL = o['TL']
        o4 = lambda i, k: ops.append(dict(k='m', u=6 + k, key=('W4', i), ad=aD[k], st=1024, ex=0, B=GB[i % NG], hk=('g', i)))
        for i in range(43 - TL):
            for k in range(2): o4(i, k)
        for k in (1, 0):
            for i in range(43 - TL, 43): o4(i, k)
        RB = [AG.alloc(4, 4) for _ in range(NR)]
        csacc = {c: V.alloc(4, 2) for c in ('F1', 'H1', 'S2', 'S3')}
        cnt = {}
        def cs_op(key):
            c = key[0]; cnt[c] = cnt.get(c, 0) + 1
            return dict(k='c', key=key, ad=aCF if c in ('F1', 'S2') else aCH, first=cnt[c] == 1, last=cnt[c] == (16 if c in ('F1', 'S2') else 8))
        pre_keys = [k for k in self.issued if k[0] != 'W2'][:o['cs_pre']]
        pre_ops = [cs_op(k) for k in pre_keys]
        seen = set(pre_keys); ops2 = []; at = {}; fc = {}; nth = {}
        for n, p in enumerate(ops):
            if p['key'][0] != 'W4' and p['key'] not in seen:
                seen.add(p['key']); c = p['key'][0]; fc.setdefault(c, n); nth[c] = nth.get(c, -1) + 1
                lead, spc = o['cs_lead'].get(c, (0, 99))
                at.setdefault(max(0, min(n, fc[c] - lead + spc*nth[c])), []).append(p['key'])
        for n, p in enumerate(ops):
            ops2 += [cs_op(k) for k in at.get(n, [])] + [p]
        ops = ops2
        for n, p in enumerate(ops): p['R'] = RB[n % NR]; p['n'] = n
        for n, p in enumerate(pre_ops): p['R'] = Reg('a', 4*n, 4); p['n'] = -1
        N = len(ops)
        last_use = {p['key']: p['n'] for p in ops}
        last_op = {p['u']: p['n'] for p in ops if p['k'] == 'm'}
        first4 = min(p['n'] for p in ops if p.get('u', 0) >= 6)
        def reads(p):
            b = self.loc[p['key']]; w, off = b >> 4, (b & 15)*BLK
            pre = p['ad'].need(w); ad = p['ad'].r[w]
            if p['k'] == 'c': return pre + [Ins(f'ds_read_b128 {p["R"]}, {ad} offset:{off}', f'r{p["n"]}')]
            return pre + [Ins(f'ds_read_b64_tr_b16 {p["R"].sub(2*a, 2)}, {ad} offset:{off + p["ex"] + a*p["st"]}', f'r{p["n"]}') for a in range(2)]
        started = set()
        def mfma(p):
            if p['k'] == 'c':
                c = csacc[p['key'][0]]
                return Ins(f'v_mfma_f32_16x16x32_bf16 {c}, {delta}, {p["R"]}, {0 if p["first"] else c}')
            a = acc[p['u']] if p['u'] < 6 else (accK, accS)[p['u'] - 6]
            z = p['u'] not in started and p['u'] != 6
            started.add(p['u'])
            return Ins(f'v_mfma_f32_32x32x16_bf16 {a}, {p["R"]}, {p["B"]}, {0 if z else a}')
        A.ext(P)
        for p in pre_ops: A.ext(p['ad'].need(self.loc[p['key']] >> 4))
        A('@waitvm hst')
        self.stamp('h drained')
        A.ext(self.signal(1, 1))
        for r in self.late_free + [self.vTRb, self.vTRf]: r.free()
        A('@waitlg0\ns_barrier')
        visible = set(self.issued)
        res = self.resx
        E = Asm()
        E(f'ds_read_b128 {res.sub(0, 4)}, {aRes}\nds_read_b128 {res.sub(4, 4)}, {aRes} offset:16')
        for q in range(len(pre_ops) + 4):
            if q < len(pre_ops): E.ext(reads(pre_ops[q]))
            if q >= 4: E.L.append(mfma(pre_ops[q - 4]))
        for q in range(LA):
            assert ops[q]['key'] in visible
            E.ext(reads(ops[q]))
        if o['q_early']: E.ext(Q); Q = Asm()
        A.ext(sprinkle(E, self.dmas(o['b_post2']), o.get('sp2', 14)))
        A.ext(self.visit('v2'))
        self.poll_block(A, pa2, 1); A('@drained_vm')
        self.stamp('sync2 done')
        self.mark34 = len(A.L)
        acc = [V.alloc(16, 2) for _ in range(6)]
        accK, accS = acc[0], acc[1]
        LATH, LATD, LATS, VS, WE, VC = o['LATH'], o['LATD'], o['LATS'], o['vslack'], o['WE'], o['VC']
        horder = []; hfirst = {}; hlast = {}
        for p in ops:
            if 'hk' in p:
                if p['hk'] not in hfirst: hfirst[p['hk']] = p['n']; horder.append(p['hk'])
                hlast[p['hk']] = p['n']
        first_use = {}
        for p in ops: first_use.setdefault(p['key'], p['n'])
        sp = V.alloc(8, 2)
        c1 = V.alloc(); c3 = V.alloc(); iv = V.alloc(); tt = V.alloc(8, 2); go = [V.alloc(4, 2), V.alloc(4, 2)]
        cs_last = {p['key'][0]: p['n'] for p in pre_ops + ops if p['k'] == 'c' and p['last']}
        I = lambda text, tag=None: [Ins(x, tag) for x in text.split('\n')]
        tagof = lambda k: f'{k[0]}_{k[1]}'
        stage_of = lambda i: 1 if i < 15 else 2 if i < 29 else 3 if i < 36 else 4
        rq = []; pairw = {}
        for q, hk in enumerate(horder):
            ty, i = hk
            if ty == 'g':
                code = I(f's_add_u32 {sGl}, {sGl}, 4096') if i and i % 4 == 0 else []
                code += I(f'buffer_load_dwordx4 {GB[i % NG]}, {self.vL16}, {self.WS}, {sGl} offen offset:{(i & 3)*1024} sc1', tagof(hk))
                rq.append(dict(id=hk, dl=hfirst[hk], cost=VC, stage=stage_of(i), after=hlast.get(('g', i - NG), -1), lat=LATD, code=code))
                if o['PW'] and hk not in pairw and i < 42 and stage_of(i) == stage_of(i + 1): pairw[hk] = ('g', i + 1); pairw[('g', i + 1)] = None
            else:
                code = I(f's_add_u32 {sHl}, {sHl}, 4096') if q and q % 4 == 0 else []
                assert i >> 1 == q >> 2
                code += I(f'buffer_load_dwordx4 {HB[hk]}, {vHl[ty]}, {self.WS}, {sHl} offen offset:{(i & 1)*2048} sc1', tagof(hk))
                rq.append(dict(id=hk, dl=hfirst[hk], cost=VC, code=code))
                if o['PW'] and q >= 4 and q % 2 == 0: pairw[hk] = horder[q + 1]
        for k in range(2):
            rq.append(dict(id=('st', k), dl=last_op[0] - o.get('st_lead', 10), cost=VC, ev='Q', code=I(f'buffer_load_dwordx4 {sp.sub(4*k, 4)}, {self.vL16}, {self.WS}, {sSl} offen offset:{k*1024} sc1')))
        rq.sort(key=lambda r: r['dl'])
        K1 = -2*math.sqrt(2/math.pi)*LOG2E
        chA = []
        def cs_items(c):
            a = csacc[c]; full = c in ('F1', 'S2')
            off = {'F1': 0, 'H1': 2048, 'S2': 2048 + 128, 'S3': 256}[c]
            for ror in ((8,) if full else (8, 4)):
                for r in range(4): chA.append(('v', ('op', cs_last[c] + 2), I(f'v_add_f32_dpp {a[r]}, {a[r]}, {a[r]} row_ror:{ror} row_mask:0xf bank_mask:0xf'), None))
            L = Asm(); L(f's_mov_b64 exec, {"0x00ff00ff" if full else "0x000f000f"}'); L(f'ds_write_b128 {aCW}, {a} offset:{off}', 'wr' + c); L('s_mov_b64 exec, -1')
            chA.append(('d', None, L.L, 'wr' + c))
        def corr_items(u, cls):
            chA.append(('d', ('ev', ['bar_wr' + c for c in cls], 0), I(f'ds_read_b32 {cT[0]}, {aCR} offset:{u*64}\nds_read_b32 {cT[1]}, {aCR} offset:{u*64 + 1024}'), f'crd{u}'))
            for k, x in enumerate((f'v_add_f32 {cT[0]}, {cT[0]}, {cT[1]}', f'v_cvt_pk_bf16_f32 {cT[1]}, {cT[0]}, {cT[0]}', f'v_and_b32 {cT[1]}, 0xffff0000, {cT[1]}',
                                   f'v_sub_f32 {cT[0]}, {cT[0]}, {cT[1]}', f'v_cvt_pk_bf16_f32 {cA[0]}, {cT[1]}, {cT[0]}')):
                chA.append(('v', ('ev', [f'crd{u}'], 100), I(x), None))
            chA.append(('m', ('both', first_op[u], 'stats'), I(f'v_mfma_f32_32x32x16_bf16 {acc[u]}, {cA}, {cB}, {acc[u]}'), f'corr{u}'))
        first_op = {}
        for p in ops:
            if p['k'] == 'm': first_op.setdefault(p['u'], p['n'])
        ev = {}; arr = {}; evop = {}
        for x in Q.L: chA.append(('v', None, [x], None))
        if Q.L: chA[-1] = chA[-1][:3] + ('Q',)
        else: ev['Q'] = 0
        for c in sorted(('F1', 'H1'), key=cs_last.get): cs_items(c)
        corr_items(0, ('F1', 'H1')); corr_items(1, ('F1', 'H1'))
        cs_items('S2'); corr_items(2, ('F1', 'S2')); corr_items(3, ('F1', 'S2'))
        cs_items('S3'); corr_items(4, ('S2', 'S3')); corr_items(5, ('S2', 'S3'))
        chB = []; chC = []; chD = []
        stc = (f'v_add_f32 {sp[0]}, {sp[0]}, {sp[2]}\nv_add_f32 {sp[1]}, {sp[1]}, {sp[3]}\nv_add_f32 {sp[4]}, {sp[4]}, {sp[6]}\nv_add_f32 {sp[5]}, {sp[5]}, {sp[7]}\n'
               f'v_add_f32 {sp[0]}, {sp[0]}, {sp[4]}\nv_add_f32 {sp[1]}, {sp[1]}, {sp[5]}\nv_mov_b32 {sp[2]}, {sp[0]}\nv_mov_b32 {sp[3]}, {sp[1]}\nv_nop\n'
               f'v_permlane32_swap_b32 {sp[0]}, {sp[2]}\nv_permlane32_swap_b32 {sp[1]}, {sp[3]}\nv_add_f32 {sp[0]}, {sp[0]}, {sp[2]}\nv_add_f32 {sp[1]}, {sp[1]}, {sp[3]}\n'
               f'v_mul_f32 {sp[0]}, {fhex(-1/512)}, {sp[0]}\nv_fma_f32 {sp[1]}, {sp[1]}, {self.sInv512}, {self.vEps}\nv_fma_f32 {iv}, -{sp[0]}, {sp[0]}, {sp[1]}\nv_max_f32 {iv}, {iv}, {self.vEps}\n'
               f'v_rsq_f32 {sp[2]}, {iv}\nv_cvt_pk_bf16_f32 {cB[0]}, {sp[0]}, {sp[0]}\nv_mul_f32 {c1}, {fhex(K1)}, {sp[2]}\nv_mul_f32 {sp[3]}, {sp[2]}, {sp[2]}\nv_mul_f32 {c3}, {fhex(0.044715)}, {c1}\nv_mul_f32 {c3}, {c3}, {sp[3]}')
        for x in I(stc): chB.append(('v', ('arr', ('st', 1)), [x], None))
        chB[-1] = chB[-1][:3] + ('stats',)
        pubs = {1: 1, 3: 2, 4: 3, 5: 4}
        for u in range(6):
            a = acc[u]; out = go[u & 1]
            st = []
            for txt in ('v_mul_f32 {t}, {a}, {a}', 'v_fma_f32 {t}, {t}, {c3}, {c1}', 'v_mul_f32 {t}, {t}, {a}', 'v_exp_f32 {t}, {t}', 'v_mul_f32 {b}, {a}, {b}', 'v_fma_f32 {t}, {t}, {iv}, {iv}', 'v_rcp_f32 {t}, {t}', 'v_mul_f32 {b}, {b}, {t}'):
                st.append([txt.format(t=tt[v], a=a[v], b=a[8+v], c1=c1, c3=c3, iv=iv) for v in range(8)])
            seq = st[0] + st[1][:2] + st[2][:1]
            for v in range(8):
                if v + 2 < 8: seq.append(st[1][v+2])
                if v + 1 < 8: seq.append(st[2][v+1])
                seq.append(st[3][v])
            seq += [st[5][0]]
            for v in range(8):
                if v + 1 < 8: seq.append(st[5][v+1])
                seq += [st[4][v], st[6][v]]
            seq += st[7] + [f'v_cvt_pk_bf16_f32 {out[d]}, {a[8+2*d]}, {a[9+2*d]}' for d in range(4)]
            for ln in seq: chB.append(('v', ('ev', [f'corr{u}', f'done{u}'], 56), I(ln), None))
            L = Asm()
            if u == 2: L(f's_mov_b32 s26, {sGn}')
            add = (0, 48, 15, 63, 29, 36)[u]*KB
            if u: L(f's_add_u32 {sTs}, {sGa if u < 4 else sGb}, {add}')
            L(f'buffer_store_dwordx4 {out}, {self.vL16}, {GS}, {sTs if u else sGa} offen sc1', tag=f'gst{u}')
            chB.append(('s', None, L.L, f'gst{u}'))
            if u == o.get('res_after', 3):
                for d in range(8):
                    for x in I(f'v_lshlrev_b32 {accK[2*d]}, 16, {res[d]}\nv_and_b32 {accK[2*d+1]}, 0xffff0000, {res[d]}'): chB.append(('v', None, [x], None))
                chB[-1] = chB[-1][:3] + ('acc4',)
            if u in pubs:
                sg = pubs[u]; k = self.nlabel; self.nlabel += 1
                chC.append(('f', ('arr', f'gst{u}'), [Ins(f'@waitvm gst{u}')] + self.signal(2, sg), f'pub{sg}'))
                chD.append(('v', ('op', first4 + 2*(0, 15, 29, 36)[sg - 1] - o['plead'][sg - 1]), [], None))
                chD.append(('f', ('ev', [f'pub{sg}'], o['poll_after']), I(f'buffer_load_dword {self.vPv}, {pa3}, {self.WS}, {s["FL"]} offen sc1'), f'poll{sg}'))
                chD.append(('v', ('arr', f'poll{sg}'), I(f'v_cmp_gt_u32 vcc, {sg}, {self.vPv}\ns_nop 0\ns_cbranch_vccnz L_late{k}\nL_back{k}:'), f'stage{sg}'))
                self.tail(f'L_late{k}:')
                if o['stamps']: self.tail(f's_add_u32 s97, s97, {1 << (8*(sg - 1))}')
                self.poll_block(self.tail, pa3, sg); self.tail(f's_branch L_back{k}')
        chE = []
        for k in self.issued: arr[k] = 0
        now = 0; vm_free = 0; last_arr = 0; mf_free = 0; n_done = -1; last_bar = 0; nbar = 0
        cur = []; freed = set(); est = {}; idle = 0
        def emit(code):
            nonlocal now
            A.ext(code); now += 4*sum(max(cost(x), 1 if x.mn.startswith('@wait') else 0) + (2 if x.mn.startswith('s_cbranch') else 0) for x in code)
        def vm_issue(idk, c, lat):
            nonlocal vm_free, last_arr
            vm_free = max(vm_free, now) + c
            last_arr = max(last_arr, vm_free + lat); arr[idk] = last_arr
        def ready_time(cond):
            if cond is None: return 0
            if cond[0] == 'op': return 0 if n_done >= cond[1] else None
            if cond[0] == 'both': return ev[cond[2]] + 8 if n_done >= cond[1] and cond[2] in ev else None
            if cond[0] == 'arr': return arr.get(cond[1])
            if all(e in ev for e in cond[1]): return max(ev[e] for e in cond[1]) + cond[2]
            return None
        def pick_request():
            best = None
            for r in rq:
                if 'stage' in r and (f'stage{r["stage"]}' not in ev or n_done < r['after']): break
                if 'ev' in r and r['ev'] not in ev: continue
                best = r; break
            if self.stream and self.free_blocks:
                dl = first_use[self.stream[0]] - LA - o['dma_lead']
                if best is None or dl < best['dl']:
                    key = self.stream[0]; c = VC*(2 if key[0] in ('H1', 'S3') else 1)
                    cur.extend([(key, c, LATD)] + self.dma_next()); return True
            if best is None: return False
            rq.remove(best); cur.extend([(best['id'], best['cost'], best.get('lat', LATH))] + best['code'])
            return True
        def step_vm(prefix=False):
            if not cur:
                if vm_free > now + VS or not pick_request(): return False
                if prefix or len(cur) > 2:
                    emit(cur[1:-1]); del cur[1:-1]
                    if prefix: return True
                    step_chain(chB, 'v', 8) or step_chain(chA, 'v', 8)
            meta, code = cur; del cur[:]
            emit([code]); vm_issue(*meta); return True
        def step_chain(ch, kinds, room):
            if not ch or ch[0][0] not in kinds: return False
            k, cond, code, e = ch[0]; t = ready_time(cond)
            if t is None or t > now: return False
            if k == 'v' and 4*sum(cost(x) for x in code) > room + 3 and len(code) == 1: return False
            ch.pop(0); emit(code)
            if k == 's': vm_issue(e, VC, LATS)
            if k == 'f': vm_issue(e, 20, LATH)
            if e: ev[e] = now; evop[e] = n_done
            return True
        def bar_need(n):
            if n + LA < N and ops[n + LA]['key'] not in visible:
                return {ops[q_]['key'] for q_ in range(n + LA, min(N, n + LA + o['VMIN']))}
            if n - last_bar < o['BMIN']: return None
            nfree = sum(1 for k, lu in last_use.items() if lu < n and k not in freed and k in self.loc) + (0 if 'res' in freed else 2)
            if self.stream and len(self.free_blocks) <= o.get('FLOW', 1) and nfree >= min(o['FMIN'], len(self.stream)): return set()
            if chA and chA[0][1] and chA[0][1][0] == 'ev' and chA[0][1][1][0].startswith('bar_wr') and ready_time(chA[0][1]) is None and now >= max(ev.get(e[4:], 0) for e in chA[0][1][1]) + 60: return set()
            if not self.stream and 'xb' not in ev and n >= N - 2*TL - 8: return set()
            return None
        def op_ready(n):
            p = ops[n]; t = mf_free
            k = p.get('hk')
            if k is not None:
                k = pairw.get(k) or k
                if k not in arr: return None
                t = max(t, arr[k])
            if n == first4 and 'acc4' not in ev: return None
            for k in bar_need(n) or ():
                if k not in arr: return None
                t = max(t, arr[k])
            return t
        for n in range(N):
            p = ops[n]
            guard = 0
            while True:
                guard += 1; assert guard < 100000, f'scheduler stuck at op {n}'
                slack = 4*(o['bud'] - 6) if chB and ready_time(chB[0][1]) is not None else 0
                t = op_ready(n)
                if t is not None and t == mf_free and bar_need(n) is not None: t -= o['barc']
                if t is not None and now >= t + slack: break
                room = (t + slack - now) if t is not None else 1000
                if chA and chA[0][0] == 'm' and now >= mf_free - 4:
                    t0_ = max(now, mf_free)
                    if step_chain(chA, 'm', 0): now = t0_ + 8; mf_free = t0_ + 32; continue
                if room > 40 and step_vm(): continue
                if step_chain(chC, 'fv', 1000) or step_chain(chD, 'fv', 1000): continue
                if step_chain(chA, 'v' if room <= 40 else 'vd', room): continue
                if step_chain(chB, 'vs', room) or step_chain(chE, 'v', room): continue
                if t is not None and now >= t: break
                now += 4; idle += 4
            if chA and chA[0][0] == 'm' and bar_need(n) is None:
                t0_ = max(now, mf_free)
                if step_chain(chA, 'm', 0):
                    now = t0_ + 8; mf_free = t0_ + 32
                    while now < mf_free and (step_chain(chA, 'vd', mf_free - now) or step_vm() or step_chain(chB, 'vs', mf_free - now)): pass
            need = bar_need(n)
            if need is not None:
                L = Asm()
                for c in ('F1', 'H1', 'S2', 'S3'):
                    if 'wr' + c in ev and 'bar_wr' + c not in ev: L(f'@waitlg wr{c}'); ev['bar_wr' + c] = now
                vis = [k for k in self.issued if k not in visible and (k in need or arr[k] <= now - o['vmargin'])]
                if vis:
                    newest = max(vis, key=self.issued.index)
                    visible.update(self.issued[:self.issued.index(newest) + 1]); L(f'@waitvm {tagof(newest)}')
                L('s_barrier'); emit(L.L); now += o['barc'] - 8; last_bar = n; nbar += 1
                for k, lu in last_use.items():
                    if lu < n and k not in freed and k in self.loc:
                        freed.add(k); self.free_blocks.append(self.loc[k])
                if 'res' not in freed and n > 0:
                    freed.add('res'); self.free_blocks += [self.resb, self.resb + 1]
                if not self.stream and 'xb' not in ev:
                    fb = sorted(self.free_blocks)
                    xb = next((b for b in fb if all(b + k in fb for k in range(4))), None)
                    if xb is not None:
                        ev['xb'] = now
                        X = Asm()
                        X(f's_lshl_b32 {s["T0"]}, {s["W"]}, 12\ns_add_u32 {s["T0"]}, {s["T0"]}, {xb*BLK}\nv_add_u32 {t1}, {s["T0"]}, {self.vL16}')
                        X(f's_xor_b32 {s["T1"]}, {s["W"]}, 2\ns_lshl_b32 {s["T1"]}, {s["T1"]}, 12\ns_add_u32 {s["T1"]}, {s["T1"]}, {xb*BLK}\nv_add_u32 {t2}, {s["T1"]}, {self.vL16}')
                        X(f'v_and_b32 {t3}, 31, {vL}\nv_lshlrev_b32 {t3}, 10, {t3}\nv_lshrrev_b32 {aRes}, 5, {vL}\nv_lshl_add_u32 {t3}, {aRes}, 5, {t3}')
                        X(f's_lshl2_add_u32 {s["T0"]}, {s["G"]}, {sT4}\ns_lshl_b32 {s["T0"]}, {s["T0"]}, 15\ns_add_u32 {s["T0"]}, {s["T0"]}, {self.sC128}\ns_lshl_b32 {s["T1"]}, {sKH}, 6\ns_add_u32 {s["T0"]}, {s["T0"]}, {s["T1"]}')
                        chE += [('v', None, [x], None) for x in X.L]
                        chE += [('d', ('op', min(N - 1, last_op[7] + 2)), I(f'ds_write_b128 {t1}, {accS.sub(4*k, 4)} offset:{k*1024}'), None) for k in range(4)]
            if n == first4: self.stamp('p3 mfma done'); est['p3'] = now; est['idle3'] = idle
            elif o.get('fine') and n % o['fine'] == 0 and n: self.stamp(f'op {n}'); est[n] = now
            if pairw.get(p.get('hk')) and hfirst[p['hk']] == n: A(f'@waitvm {tagof(pairw[p["hk"]])}')
            if p.get('hk') and hfirst[p['hk']] == n and pairw.get(p['hk'], 1): now += 4
            t0_ = now = max(now, mf_free)
            A.L.append(mfma(p)); n_done = n; now += o.get('mfc', 6)
            mf_free = t0_ + (32 if p['k'] == 'm' else 16)
            if p['k'] == 'm' and last_op[p['u']] == n: ev[f'done{p["u"]}'] = now
            if (n + 1) % WE == 0 and n + 1 < N: emit([Ins(f'@waitlg r{min(N - 1, n + WE)}')])
            step_vm(prefix=True)
            now = max(now, t0_ + 8)
            if n + LA < N: emit(reads(ops[n + LA]))
            if cur: step_vm()
            else: step_chain(chA, 'd', 0) or step_chain(chE, 'd', 0) or step_chain(chC, 'f', 0) or step_chain(chD, 'fv', 1000)
            if n + LA + 1 < N and ops[n + LA + 1]['key'] in self.loc: emit(ops[n + LA + 1]['ad'].need(self.loc[ops[n + LA + 1]['key']] >> 4))
        assert 'xb' in ev
        for it in chE: emit(it[2])
        assert not (chA or chB or chC or chD or rq or cur or self.stream), (len(chA), len(chB), len(chC), len(rq), len(self.stream))
        est['p4'] = now; est['idle'] = idle
        self.info.update(N=N, first4=first4, nbar=nbar, npre=len(pre_keys), est=est, evop={k: v for k, v in evop.items() if k[:3] in ('cor', 'gst', 'sta')})
        dbg = o.get('dbg', '')
        if dbg:
            new = []
            for x in A.L[self.mark34:]:
                if 'M' in dbg and x.kind == 'mfma':
                    y = Ins('s_nop 0'); y.uses = set(x.srcAB); new.append(y); continue
                if 'V' in dbg and x.kind == 'valu' and '_f32' in x.mn: continue
                if 'R' in dbg and x.kind == 'ds' and x.mn.startswith('ds_read_b64_tr'):
                    self.dropped.add(x.tag); continue
                if 'D' in dbg and x.kind == 'vmem' and x.arg == 'dma':
                    self.dropped.add(x.tag); continue
                if 'L' in dbg and x.kind == 'vmem' and x.mn == 'buffer_load_dwordx4' and x.arg != 'dma':
                    self.dropped.add(x.tag); continue
                if 'T' in dbg and x.kind == 'vmem' and x.mn == 'buffer_load_dword' and not x.defs: continue
                if 'B' in dbg and x.mn == 's_barrier': continue
                if x.kind == 'pseudo' and x.mn in ('@waitvm', '@waitlg') and x.arg[0] in self.dropped: continue
                new.append(x)
            A.L[self.mark34:] = new
        self.stamp('p4 mfma done')
        A('@waitlg0\ns_barrier')
        rx = acc[2]
        for k in range(4): A(f'ds_read_b128 {rx.sub(4*k, 4)}, {t2} offset:{k*1024}')
        for h in range(2):
            for d in range(4*h, 4*h + 4): A(f'v_pk_add_f32 {accK.sub(2*d, 2)}, {accK.sub(2*d, 2)}, {rx.sub(2*d, 2)}')
            for d in range(4): A(f'v_cvt_pk_bf16_f32 {go[h][d]}, {accK[8*h + 2*d]}, {accK[8*h + 2*d + 1]}')
            A(f'buffer_store_dwordx4 {go[h]}, {t3}, {self.OUT}, {s["T0"]} offen offset:{16*h} {o.get("out_aux", "")}')
        self.stamp('out stored')

    def visit(self, name):
        return []

    def finish(self):
        A, s, o = self.A, self.s, self.o
        if o['stamps']:
            A('@waitvm0')
            self.stamp('end')
            k = self.nstamp - 1
            A(f'@raw 1\nv_writelane_b32 {self.vstamp}, s97, 60\nv_writelane_b32 {self.vstamp}, s98, 61\ns_memrealtime s[98:99]\ns_waitcnt lgkmcnt(0)\nv_writelane_b32 {self.vstamp}, s98, 62\nv_writelane_b32 {self.vstamp}, {self.sstamp[2*(k % 2)]}, {k}\nv_writelane_b32 {self.vstamp}, s100, 63\n@raw 0')
            A(f's_lshl_b32 {s["T0"]}, s2, 10\ns_lshl_b32 {s["T1"]}, {s["W"]}, 8\ns_add_u32 {s["T0"]}, {s["T0"]}, {s["T1"]}\ns_add_u32 {s["T0"]}, {s["T0"]}, {o["ws_base"] + WS_TS}')
            A(f'v_lshlrev_b32 {self.t1}, 2, {self.vL}\nbuffer_store_dword {self.vstamp}, {self.t1}, {self.WS}, {s["T0"]} offen')
        if o.get('pad_to'):
            A(f'@raw 1\ns_waitcnt vmcnt(0)\nL_padloop:\n{o.get("pad_clk", "s_memrealtime")} s[98:99]\ns_waitcnt lgkmcnt(0)\ns_sub_u32 s98, s98, s100\ns_cmp_lt_u32 s98, {o["pad_to"]}\ns_cbranch_scc1 L_padloop\n@raw 0')
        A('s_endpgm')

    def build(self):
        self.phase1(); self.phase2(); self.phase34(); self.finish()
        L = resolve_waits(self.A.L)
        L, nn = pad_hazards(L)
        T = [x for x in self.tail.L if x.kind != 'pseudo']
        body = '\n'.join(('' if x.kind == 'label' else '    ') + x.text for x in L + T)
        hdr = open('cdna_kernels/' + NAME + '.s.ref').read().split('; Override launch')[0]
        txt = hdr + f'; @launch grid=(256,1,1) block=(256,1,1) lds=163840\n.amdgcn_target "amdgcn-amd-amdhsa--gfx950"\n.text\n.globl {NAME}_kernel\n.p2align 8\n.type {NAME}_kernel,@function\n{NAME}_kernel:\n'
        txt += body + '\n    s_endpgm\nL_code_end:\n'
        txt += f'.section .rodata,"a"\n.p2align 6\n.amdhsa_kernel {NAME}_kernel\n  .amdhsa_next_free_vgpr 512\n  .amdhsa_next_free_sgpr 102\n  .amdhsa_accum_offset 256\n  .amdhsa_group_segment_fixed_size 0\n  .amdhsa_kernarg_size 80\n  .amdhsa_user_sgpr_count 2\n  .amdhsa_user_sgpr_kernarg_segment_ptr 1\n  .amdhsa_system_sgpr_workgroup_id_x 1\n  .amdhsa_float_denorm_mode_32 3\n.end_amdhsa_kernel\n'
        self.info.update(ninstr=len(L), nops=nn, vmax=self.V.hi, amax=self.AG.hi, smax=self.S.hi)
        return txt

if __name__ == '__main__':
    import json
    kw = json.loads(sys.argv[2]) if len(sys.argv) > 2 else {}
    G = Gen(**kw); txt = G.build()
    open(sys.argv[1], 'w').write(txt)
    print(G.info)
```

```python
import sys, math, struct
from asmlib import *

NAME = 'sequential_preLN__sliding_local_dilated__geglu_ffn__prompt'
KB = 1024
WS_H, WS_ST, WS_FL, WS_G, WS_O = 0, 128*KB, 136*KB, 256*KB, 640*KB
FL_SLOW = 2*KB
WS_TS = 16 << 20
WS_SIZE = 17 << 20
PITCH3 = 2752
BLK = 4096
L_HALO = 0
L_X = 4 * BLK
L_W = 10 * BLK
L_SCR = 39 * BLK
SCR_TB = L_SCR
SCR_HP = L_SCR + 1280
SCR_CS = L_SCR
def f2u(x): return struct.unpack('<I', struct.pack('<f', x))[0]
def fhex(x): return hex(f2u(x))
LOG2E = 1.4426950408889634

DEF = dict(one_poll=False, one_poll3=True, bwait=(250, 150, 0, 0), merge34=True, pk_units=[5], budu={}, khalf=False, c1_from=110, sp0b=10, v0_at=-2, salu16=1, minlg_until=5, ktab=[list(range(8))]*4, b_pre1=4, b_pre2=4, topup=8, n1a=0, n1b=7, HS=6, k0=7, vgap0=2, vgap=3, cs_lead={'S2': (16, 1), 'S3': (20, 2)}, plead=(50, 44, 44, 44), TL=4, cs_pre=24, q_early=False, LATH=380, LATD=580, LATS=700, WE=4, VC=80, PW=True, poll_after=(900, 900, 800, 800), WIN=99, dma_lead=16, VMIN=10, BMIN=10, FMIN=5, barc=32, vmargin=300, visit={'v0': [1, 2, 3], 'v1': [4, 5, 6]}, jump_at=76,
           stamps=False, order='pair', BI=16, LA=7, GLA=8, NG=20, NR=12, bud=7, b_epi=0, b_post1=4, b_o=5, b_post2=4,
           pub_delay=10, poll_lead=8, force_slow=False, w2pre=7, LO=5, HL=5, sp0=2, g_sc1=False, o_in_ws=False,
           pf={'wq': 's0', 'q3': 'sb', 'wo': 0, 'o3': 2, 'o': 4, 'w3': 4, 'h': 4, 'wd': 4}, vslack=200, w2a=0, w2b=3, rot2=0, rot3=0, ws_base=0, n_stats=56, gt_at=40)

def cost(x):
    if x.kind in ('pseudo', 'label', 'dir'): return 0
    if x.is_trans() or x.mn.startswith('v_permlane') or x.kind == 'mfma': return 2
    return 1

def safe_points(code):
    ok = []; exec_part = False
    EX = {('s', 126), ('s', 127)}
    n = len(code)
    for i in range(n + 1):
        scc_live = False
        for k in range(i, n):
            x = code[k]
            if x.kind == 'label': scc_live = True; break
            if x.mn.startswith('s_cselect') or x.mn.startswith('s_cbranch') or x.mn.startswith('s_addc'): scc_live = True; break
            if x.kind == 'vmem' and x.arg == 'dma': scc_live = True; break
            if x.kind == 'salu' and not x.mn.startswith(('s_mov', 's_mul', 's_nop', 's_waitcnt', 's_barrier', 's_getreg')): break
        if not exec_part and not scc_live: ok.append(i)
        if i < n and code[i].defs & EX:
            exec_part = not (code[i].mn.startswith('s_mov') and code[i].text.endswith(', -1'))
    return ok

def sprinkle(code, groups, spacing, start=0):
    code = list(code.L if isinstance(code, Asm) else code); groups = list(groups)
    ok = set(safe_points(code)); out = []; since = spacing - start
    for i, x in enumerate(code):
        if groups and since >= spacing and i in ok:
            g = groups.pop(0); out += g; since = 0
        out.append(x); since += cost(x)
    for g in groups: out += g
    return out

class Gen:
    def __init__(self, **kw):
        self.o = dict(DEF); self.o.update(kw)
        self.A = Asm(); self.tail = Asm()
        self.V = RegAlloc('v', 1, 254); self.AG = RegAlloc('a', 0, 256); self.S = RegAlloc('s', 60, 97)
        self.nstamp = 0; self.stamp_names = []
        self.nlabel = 0
        self.free_blocks = list(range(28, 39))
        self.loc = {}; self.issued = []
        st = [('W2', i) for i in range(16)]
        for q in range(8): st += [('F1', 2*q), ('H1', q), ('F1', 2*q + 1)]
        st += [('S2', i) for i in range(16)] + [('S3', q) for q in range(8)] + [('W4', i) for i in range(43)]
        self.stream = st
        self.info = {}; self.dropped = set(); self.trace = []

    def stamp(self, name, A=None):
        if not self.o['stamps'] or (self.o['stamps'] == 'min' and name != 'end'): return
        A = A if A is not None else self.A
        k = self.nstamp
        A(f'@raw 1\n{self.o.get("clk", "s_memtime")} {self.sstamp.sub(2*(k % 2), 2)}')
        if k: A(f'v_writelane_b32 {self.vstamp}, {self.sstamp[2*((k-1) % 2)]}, {k-1}')
        A('@raw 0')
        self.stamp_names.append(name); self.nstamp += 1

    def srd(self, A, b, lo, size):
        A(f's_mov_b32 s{b}, s{lo}\ns_mov_b32 s{b+1}, s{lo+1}\ns_mov_b32 s{b+2}, {size}\ns_mov_b32 s{b+3}, 0x20000')

    def store2(self, A, w, data, voff, soff, off, tag, srd=None, wrap=False):
        assert off < 4096
        o = f' offset:{off}' if off else ''
        v = f'{voff}, ' if voff is not None else 'off, '
        e = ' offen' if voff is not None else ''
        if wrap: A(';dual_begin')
        A(f'buffer_store_{w} {data}, {v}{srd or self.WS}, {soff}{e}{o}', tag=tag)
        if wrap: A(';dual_end')

    def expand_dual(self, L):
        out = []; tail = []; k = 0; inside = False
        for x in L:
            if x.text == ';dual_begin':
                assert not inside; inside = True
                out += [Ins(f's_cmp_lg_u32 {self.sMode}, 0'), Ins(f's_cbranch_scc1 L_wt{k}')]; tail.append(Ins(f'L_wt{k}:'))
            elif x.text == ';dual_end':
                assert inside; inside = False
                out.append(Ins(f'L_wtb{k}:')); tail.append(Ins(f's_branch L_wtb{k}')); k += 1
            else:
                out.append(x)
                if inside:
                    assert x.kind != 'label'
                    tail.append(Ins(x.text + ' sc1') if x.mn.startswith('buffer_store') else Ins(x.text))
        return out, tail

    def signal(self, kind):
        L = Asm()
        L(f's_mov_b64 exec, {self.mW1}')
        self.store2(L, 'dword', self.vOne, None, self.sFme, kind*128, 'flag', wrap=True)
        L('s_mov_b64 exec, -1')
        return L.L

    def poll_ld(self, addr, kind, pv): return f'buffer_load_dword {pv}, {addr}, {self.WS}, {self.s["FL"]} offen offset:{kind*128} sc1'

    def poll_block(self, A, addr, kind, mask, pv=None):
        pv = pv or self.vPv; s = self.s; n = self.nlabel; self.nlabel += 1
        A(f's_mov_b64 exec, {mask}\ns_mov_b32 {s["T3"]}, 0x20000\n@raw 1\nL_poll{n}:\n{self.poll_ld(addr, kind, pv)}\ns_waitcnt vmcnt(0)')
        A(f'v_cmp_eq_u32 vcc, 0, {pv}\ns_sub_u32 {s["T3"]}, {s["T3"]}, 1\ns_cbranch_scc1 L_pd{n}\ns_cbranch_vccnz L_poll{n}\nL_pd{n}:\n@raw 0\ns_mov_b64 exec, -1')

    @staticmethod
    def p4_unit(i):
        if i < 15: return 0, 6*i
        if i < 29: return 0, 6*(i - 15) + 2
        if i < 36: return 1, 12*(i - 29) + 4
        return 1, 12*(i - 36) + 5

    def dma_cost(self): return 138 if self.stream and self.stream[0][0] in ('H1', 'S3') else 69

    def dma_next(self):
        if not self.stream or not self.free_blocks: return None
        key = self.stream.pop(0); b = self.free_blocks.pop(0)
        self.loc[key] = b; self.issued.append(key)
        s, D = self.s, self.sD; kind, i = key; tag = f'{kind}_{i}'
        if kind == 'W2':
            assert 23 <= b <= 38
            pre = [f's_add_u32 {D}, {self.sC128}, {i << 15}']
            ld = f'buffer_load_dwordx4 {self.vW2}, {self.WO}, {D} offen lds'
        elif kind in ('F1', 'S2', 'H1', 'S3'):
            full = kind in ('F1', 'S2')
            cp = i >> 1 if full else i
            pre = []
            if key == ('F1', 0): pre.append(f's_mov_b32 s38, {self.sN3[0]}')
            if key == ('S2', 0): pre += [f's_mov_b32 s38, {self.sN3[1]}', f'v_add_u32 {self.vF[0]}, {self.sDl}, {self.vF[0]}', f'v_add_u32 {self.vF[1]}, {self.sDl}, {self.vF[1]}']
            if key == ('S3', 0): pre += [f's_sub_u32 {self.sDl}, 192, {self.sDl}', f'v_add_u32 {self.vH}, {self.sDl}, {self.vH}']
            ld = f'buffer_load_dwordx4 {self.vF[i & 1] if full else self.vH}, {self.W3}, {self.sCP[cp - 1] if cp else 0} offen lds'
        else:
            sel, u = self.p4_unit(i)
            k = (i if i < 15 else i - 15) & 3 if sel == 0 else 2*((i - 29 if i < 36 else i - 36) & 1)
            pre = [f's_add_u32 {D}, {self.sU[sel]}, {u*16384}'] if k == 0 else []
            if i == 0: pre += [f'v_add_u32 {self.vD[q]}, {q*6*16384}, {self.vD[0]}' for q in range(1, 4)]
            ld = f'buffer_load_dwordx4 {self.vD[k]}, {self.WD}, {D} offen lds'
        return [Ins(f's_add_u32 m0, {s["W1K"]}, {b*BLK}')] + [Ins(x) for x in pre] + [Ins(ld, tag)]

    def dmas(self, n):
        r = []
        for _ in range(n):
            g = self.dma_next()
            if g: r.append(g)
        return r

    def p1_chunk_dma(self, i):
        s = self.s; sl = i % 3; kc, so = self.sKC, self.sSO; tag = f'ch{i}'
        I = Ins
        g = [[I(f's_bfe_u32 {kc}, {self.sTb}, {hex(0x30000 + 4*i)}'), I(f's_add_u32 m0, {self.sW2K}, {L_X + sl*8192}'), I(f's_lshl_b32 {so}, {kc}, 7'),
              I(f'buffer_load_dwordx4 {self.vXa}, {self.X}, {so} offen lds', tag)],
             [I(f's_mul_i32 {kc}, {kc}, {64*3072}'), I(f'buffer_load_dwordx4 {self.vXb}, {self.X}, {so} offen offset:1024 lds', tag)]]
        for st in range(2):
            for p in range(3):
                pre = []
                if p == 0: pre = [I(f's_add_u32 m0, {self.sW3K}, {L_W + sl*24576 + st*12288}'), I(f's_add_u32 {kc}, {kc}, {32*3072 if st else self.sC128}')]
                g.append(pre + [I(f'buffer_load_dwordx4 {self.vW1}, {self.WQ}, {kc} offen offset:{p*1024} lds', tag)])
        return g

    def p1_reads(self, i, st, buf):
        sl = i % 3; r = []
        W, X, O = buf
        r.append(Ins(f'ds_read_b128 {O}, {self.aXo[st]} offset:{sl*8192}'))
        for p in range(3):
            for a in range(2):
                r.append(Ins(f'ds_read_b64_tr_b16 {W[p].sub(2*a, 2)}, {self.aW1} offset:{sl*24576 + st*12288 + p*1024 + a*512}'))
            if p == 0:
                r.append(Ins(f'ds_read_b128 {X[0]}, {self.aX[st]} offset:{L_HALO + i*2048}'))
                for t in range(1, 5):
                    r.append(Ins(f'ds_read_b128 {X[t]}, {self.aX[st]} offset:{L_X + sl*8192 + (t-1)*2048}'))
        return r

    def p1_mfmas(self, buf, first):
        W, X, O = buf
        m = []
        c = lambda acc: '0' if first else str(acc)
        m.append(Ins(f'v_mfma_f32_16x16x32_bf16 {self.stG}, {O}, {O}, {c(self.stG)}'))
        m.append(Ins(f'v_mfma_f32_16x16x32_bf16 {self.stS}, {self.ones}, {O}, {c(self.stS)}'))
        for p, acc in enumerate((self.aQ, self.aK, self.aV)):
            for t in range(5):
                if p < 2: m.append(Ins(f'v_mfma_f32_16x16x32_bf16 {acc[t]}, {W[p]}, {X[t]}, {c(acc[t])}'))
                else: m.append(Ins(f'v_mfma_f32_16x16x32_bf16 {acc[t]}, {X[t]}, {W[p]}, {c(acc[t])}'))
        return m

    def stats_code(self, sq, sm, out4):
        L = Asm()
        L(f'v_mul_f32 {sm}, {fhex(-1/512)}, {sm}')
        L(f'v_fma_f32 {sq}, {sq}, {self.sInv512}, {self.vEps}')
        L(f'v_cvt_pk_bf16_f32 {out4[1]}, {sm}, {sm}')
        L(f'v_fma_f32 {sq}, -{sm}, {sm}, {sq}')
        L(f'v_max_f32 {sq}, {sq}, {self.vEps}')
        L(f'v_rsq_f32 {out4[2]}, {sq}')
        L(f'v_and_b32 {out4[0]}, 0xffff0000, {out4[1]}')
        L(f'v_mul_f32 {out4[3]}, {fhex(0.25*LOG2E)}, {out4[2]}')
        return L.L

    def diag_code(self, G4, dst):
        return [Ins(f'v_cndmask_b32 {G4[0]}, {G4[0]}, {G4[1]}, {self.mB0}'), Ins(f'v_cndmask_b32 {G4[2]}, {G4[2]}, {G4[3]}, {self.mB0}'),
                Ins(f'v_cndmask_b32 {dst}, {G4[0]}, {G4[2]}, {self.mB1}')]

    def weave16(self, mf, ds, misc, vgap=4, tail=4, side=None):
        A = self.A; ds = list(ds)
        nm = len(mf)
        for k, m in enumerate(mf):
            A.L.append(m); self.gap_since_vm += 1
            bud = 2
            if misc and isinstance(misc[0], Ins) and misc[0].kind == 'salu':
                A.L.append(misc.pop(0)); bud -= self.o['salu16']
            nds = 1 if ds else 0
            if len(ds) > nm - k - tail: nds = min(2, len(ds))
            for _ in range(nds): A.L.append(ds.pop(0)); bud -= 1
            while misc and bud > 0:
                it = misc[0]; l = it if isinstance(it, list) else [it]
                if l and l[0].kind == 'pseudo' and l[0].mn == '@skip':
                    misc.pop(0); break
                if any(x.kind == 'vmem' for x in l):
                    if self.gap_since_vm < vgap: break
                    self.gap_since_vm = 0
                misc.pop(0); A.ext(l); bud -= sum(cost(x) for x in l)
            while side and bud > 0 and not ds:
                it = side.pop(0); l = it if isinstance(it, list) else [it]
                A.ext(l); bud -= sum(cost(x) for x in l)
        assert not ds

    def phase1(self):
        A, V, S, AG, o = self.A, self.V, self.S, self.AG, self.o
        s = self.s = {}
        for n in 'W C M SB G BLK W1K T0 T1 T2 T3 FL PF GB'.split(): s[n] = S.alloc()
        if o['stamps']: self.sstamp = S.alloc(4, 2); self.vstamp = V.alloc()
        self.X, self.WQ, self.WO, self.W3, self.WD, self.OUT, self.WS = [f's[{24+4*i}:{27+4*i}]' for i in range(7)]
        self.sKC = S.alloc(); self.sSO = S.alloc(); self.sW2K = S.alloc(); self.sW3K = S.alloc(); self.sC128 = S.alloc(); self.sFme = S.alloc()
        sH = S.alloc(); sHm = S.alloc(); sZ = S.alloc()
        if o.get('pad_to'): A('@raw 1\n' + o.get('pad_clk', 's_memrealtime') + ' s[100:101]\n@raw 0')
        if o['stamps']: A('@raw 1\n' + o.get('clk', 's_memtime') + ' s[100:101]\ns_memrealtime s[98:99]\ns_mov_b32 s97, 0\n@raw 0')
        A('s_load_dwordx2 s[24:25], s[0:1], 0\ns_load_dwordx2 s[28:29], s[0:1], 8\ns_load_dwordx2 s[48:49], s[0:1], 72')
        A('s_load_dwordx16 s[4:19], s[0:1], 0\ns_load_dwordx2 s[20:21], s[0:1], 64')
        A('s_cmp_lt_u32 s2, 256\ns_cbranch_scc1 L_go\ns_endpgm\nL_go:')
        vL = self.vL = V.alloc(); t0 = V.alloc(2); t1 = V.alloc(); t2 = V.alloc(); t3 = V.alloc()
        self.t1, self.t2, self.t3 = t1, t2, t3
        A(f's_getpc_b64 s[52:53]\nL_pc:')
        A(f'v_and_b32 {vL}, 63, v0\nv_lshrrev_b32 {t1}, 6, v0\ns_lshr_b32 {s["T0"]}, s2, 3\nv_readfirstlane_b32 {s["W"]}, {t1}')
        A(f'v_lshl_add_u32 {t1}, {s["T0"]}, 2, {t1}\nv_lshl_add_u32 {t1}, {t1}, 2, {vL}\nv_lshlrev_b32 {t1}, 7, {t1}\nv_min_u32 {t1}, L_code_end-L_pc-4, {t1}')
        A(f'v_add_co_u32 {t0[0]}, vcc, s52, {t1}\nv_mov_b32 {t0[1]}, s53\ns_and_b32 {s["M"]}, {s["T0"]}, 15\nv_addc_co_u32 {t0[1]}, vcc, 0, {t0[1]}, vcc')
        A(f's_mov_b64 exec, 15\nglobal_load_dword v255, {t0}, off\ns_mov_b64 exec, -1')
        t0.free()
        A(f's_and_b32 {s["C"]}, {s["T0"]}, 7\ns_lshr_b32 {s["SB"]}, {s["M"]}, 3\ns_and_b32 {s["T1"]}, s2, 7\ns_lshr_b32 {s["T0"]}, {s["T0"]}, 3')
        A(f's_lshl_b32 {s["BLK"]}, {s["T1"]}, 2\ns_add_u32 {s["BLK"]}, {s["BLK"]}, {s["T0"]}\ns_lshr_b32 {s["G"]}, {s["BLK"]}, 1')
        A(f's_lshl_b32 {self.sW2K}, {s["W"]}, 11\ns_mul_i32 {self.sW3K}, {s["W"]}, 3072\ns_lshl_b32 {self.sC128}, {s["C"]}, 7')
        e = V.alloc(); ch = V.alloc()
        vHa = V.alloc(); self.vXa = V.alloc(); self.vXb = V.alloc(); self.vW1 = V.alloc(); self.vW2 = V.alloc()
        A(f'v_lshrrev_b32 {e}, 3, {vL}\nv_and_b32 {ch}, 7, {vL}')
        A(f'v_lshrrev_b32 {t1}, 4, {vL}\nv_xor_b32 {t1}, {t1}, {ch}\nv_lshlrev_b32 {t1}, 4, {t1}')
        A(f's_lshl_b32 {s["T0"]}, {s["BLK"]}, 6\ns_lshl_b32 {s["T1"]}, {s["W"]}, 4\ns_add_u32 {s["T1"]}, {s["T1"]}, {s["T0"]}')
        A(f'v_add_u32 {t2}, {s["T1"]}, {e}\nv_lshl_add_u32 {self.vXa}, {t2}, 10, {t1}\nv_add_u32 {self.vXb}, {7*1024}, {self.vXa}\nv_xor_b32 {self.vXb}, 64, {self.vXb}')
        A(f's_and_b32 {s["T1"]}, {s["W"]}, 1\ns_cselect_b32 {sHm}, -1, 0xffffff00\ns_lshl3_add_u32 {s["T0"]}, {s["T1"]}, {s["T0"]}\ns_sub_u32 {s["T0"]}, {s["T0"]}, 16\ns_lshl_b32 {s["T2"]}, {s["T1"]}, 6')
        A(f'v_add_u32 {t2}, {s["T0"]}, {e}\nv_max_i32 {vHa}, 0, {t2}\nv_lshl_add_u32 {vHa}, {vHa}, 10, {t1}\nv_xor_b32 {vHa}, {s["T2"]}, {vHa}')
        A(f's_lshl_b32 {s["T1"]}, {s["T1"]}, 2\ns_lshl_b32 {s["W1K"]}, {s["W"]}, 10')
        A(f'v_and_b32 {t1}, 2, {e}\nv_or_b32 {t1}, {s["T1"]}, {t1}\nv_xor_b32 {t1}, {t1}, {ch}\nv_lshlrev_b32 {t1}, 4, {t1}')
        A(f'v_lshl_add_u32 {t2}, {s["W"]}, 3, {e}')
        A(f'v_lshl_add_u32 {self.vW2}, {t2}, 10, {t1}\nv_mul_u32_u24 {t2}, 3072, {t2}\nv_add_u32 {self.vW1}, {t2}, {t1}')
        A(f's_mov_b32 s26, {2048*1024}\ns_mov_b32 s27, 0x20000\ns_mov_b32 s30, {512*3072}\ns_mov_b32 s31, 0x20000\ns_mov_b32 s50, {o["ws_base"] + WS_SIZE}\ns_mov_b32 s51, 0x20000')
        A(f's_lshl_b32 {s["GB"]}, {s["G"]}, 20')
        if o['ws_base']: A(f's_add_u32 {s["GB"]}, {s["GB"]}, {o["ws_base"]}')
        A(f's_add_u32 {s["FL"]}, {s["GB"]}, {WS_FL}\ns_lshl2_add_u32 {self.sFme}, {s["M"]}, {s["FL"]}\nv_mov_b32 {t2}, 0')
        A(f's_cmp_eq_u32 {s["W"]}, 0\ns_cselect_b32 {sZ}, 0x3f, 0')
        self.sTb = S.alloc(); sTh = S.alloc()
        A(f's_mul_i32 {s["T0"]}, {s["C"]}, 0x11111111\ns_add_u32 {self.sTb}, {s["T0"]}, 0x76543210')
        if o['khalf']: A(f's_and_b32 {self.sTb}, {self.sTb}, 0x33333333\ns_or_b32 {self.sTb}, {self.sTb}, 0x44440000')
        A(f's_and_b32 {s["T0"]}, {s["W"]}, 2\ns_lshl_b32 {s["T0"]}, {s["T0"]}, 1\ns_lshr_b32 {sTh}, {self.sTb}, {s["T0"]}')
        v128 = self.v128 = V.alloc(); junk = V.alloc(); vT = V.alloc(); vTo = V.alloc(); sP = S.alloc()
        v1k = V.alloc()
        A(f'v_lshlrev_b32 {v128}, 7, {vL}\nv_lshlrev_b32 {v1k}, 10, {vL}')
        OSRD = self.WS if o['o_in_ws'] else self.OUT
        def pf_group(kind):
            L = Asm()
            if kind == 'o': L(f's_mov_b64 exec, 0xffff\nbuffer_load_dword {junk}, {vTo}, {OSRD}, {self.sOst} offen sc1')
            elif kind == 'h': L(f's_mov_b64 exec, 0x3ffff\nbuffer_load_dword {junk}, {vT}, {self.WS}, {s["GB"]} offen sc1')
            elif kind == 'x1':
                L(f's_lshl2_add_u32 {sP}, {s["BLK"]}, {s["W"]}\ns_lshl3_add_u32 {sP}, {sP}, {s["C"]}\ns_lshl_b32 {sP}, {sP}, 11')
                L(f's_mov_b64 exec, 0xf0f0\nbuffer_load_dword {junk}, {v128}, {self.X}, {sP} offen sc1')
            elif kind in ('q3', 'o3', 'd3', 'q30', 'q31'):
                n, srd = {'q3': (12, self.WQ), 'q30': (6, self.WQ), 'q31': (6, self.WQ), 'o3': (4, self.WO), 'd3': (11, self.WD)}[kind]
                L(f's_lshr_b32 {sP}, s2, 3\ns_lshl2_add_u32 {sP}, {sP}, {s["W"]}\ns_mul_i32 {sP}, {sP}, {n*1024}')
                if kind == 'q31': L(f's_add_u32 {sP}, {sP}, {768*1024}')
                L(f's_mov_b64 exec, {hex((1 << n) - 1)}\nbuffer_load_dword {junk}, {v1k}, {srd}, {sP} offen offset:384 sc1')
            else:
                n, srd = {'wq': (12, self.WQ), 'wq0': (6, self.WQ), 'wq1': (6, self.WQ), 'wo': (4, self.WO), 'w3': (22, self.W3), 'wd': (11, self.WD)}[kind]
                if kind == 'w3': L(f's_and_b32 {sP}, {s["W"]}, 1\ns_lshl1_add_u32 {sP}, s2, {sP}')
                else: L(f's_lshl2_add_u32 {sP}, s2, {s["W"]}')
                L(f's_mul_i32 {sP}, {sP}, {n*128}')
                if kind == 'wq1': L(f's_add_u32 {sP}, {sP}, {768*1024}')
                L(f's_mov_b64 exec, {hex((1 << n) - 1)}\nbuffer_load_dword {junk}, {v128}, {srd}, {sP} offen sc1')
            L('s_mov_b64 exec, -1')
            for x in L.L:
                if x.kind == 'vmem': x.defs = set()
            return L.L[:-3] + [L.L[-3:]]
        def pf_flat(at):
            r = []
            for kind, a_ in o['pf'].items():
                if a_ == at:
                    gq = pf_group(kind); r.append(gq[:-1] + gq[-1])
            return r
        self.sOst = S.alloc(); self.sHst = S.alloc()
        c0 = self.p1_chunk_dma(0)
        A.ext(c0[0][:-1])
        A('@waitlg0')
        self.stamp('kernarg')
        if o.get('l2fill'):
            for lo, nbytes in o['l2fill']:
                per = -(-nbytes // (128*128))
                A(f's_mov_b32 s32, s{lo}\ns_mov_b32 s33, s{lo+1}\ns_mov_b32 s34, {nbytes}\ns_mov_b32 s35, 0x20000')
                A(f's_lshr_b32 {s["T0"]}, s2, 3\ns_lshl2_add_u32 {s["T0"]}, {s["T0"]}, {s["W"]}\ns_mul_i32 {s["T0"]}, {s["T0"]}, {per*128}')
                for q in range(-(-per // 64)): A(f'buffer_load_dword {t3}, {v128}, s[32:35], {s["T0"]} offen sc1\ns_add_u32 {s["T0"]}, {s["T0"]}, 8192')
                A('@waitvm0')
            A(f's_mov_b32 {s["T0"]}, 60\nL_dly:\ns_sub_u32 {s["T0"]}, {s["T0"]}, 1\ns_cmp_lg_u32 {s["T0"]}, 0\ns_cbranch_scc1 L_dly')
            self.stamp('probe done')
        if o.get('probe'):
            src, rounds, base = o['probe']
            lo = {'bx': 10, 'ws': 48, 'out': 18, 'wd': 16}[src]
            A(f's_mov_b32 s32, s{lo}\ns_mov_b32 s33, s{lo+1}\ns_mov_b32 s34, {(2 << 20) if src in ("bx", "out") else (1376*1024 if src == "wd" else 256 << 20)}\ns_mov_b32 s35, 0x20000')
            A(f'v_lshlrev_b32 {t1}, 7, {vL}\ns_lshl_b32 {s["T0"]}, s2, 2\ns_add_u32 {s["T0"]}, {s["T0"]}, {s["W"]}\ns_lshl_b32 {s["T0"]}, {s["T0"]}, 11\ns_add_u32 {s["T0"]}, {s["T0"]}, {base}')
            nl = 16 // rounds if rounds > 0 else 16
            for r in range(abs(rounds)):
                A(f's_mov_b64 exec, {hex((1 << nl) - 1)}\nbuffer_load_dword {t3}, {t1}, s[32:35], {s["T0"]} offen sc1\ns_mov_b64 exec, -1')
                if rounds > 0: A(f'@waitvm0\ns_add_u32 {s["T0"]}, {s["T0"]}, {nl*128}')
                else: A(f's_add_u32 {s["T0"]}, {s["T0"]}, {2 << 20}')
            A('@waitvm0')
            self.stamp('probe done')
        for gq in pf_flat('s0'): A.ext(gq)
        A.L.append(c0[0][-1])
        for gq in pf_flat('sx'): A.ext(gq)
        A(f's_mov_b32 exec_lo, {sZ}\ns_mov_b32 exec_hi, 0')
        A(f'buffer_store_dword {t2}, {v128}, {self.WS}, {self.sFme} offen', tag='fz')
        A('s_mov_b64 exec, -1')
        def chunk_items(i):
            gq = c0 if i == 0 else self.p1_chunk_dma(i)
            if i >= 4: return gq
            h = [Ins(f's_add_u32 m0, {s["W1K"]}, {L_HALO + i*4096}')]
            h += [Ins(f's_bfe_u32 {sH}, {sTh}, {hex(0x30000 + 8*i)}'), Ins(f's_lshl_b32 {sH}, {sH}, 7')]
            h.append([Ins(f's_mov_b32 exec_lo, {sHm}'), Ins(f'buffer_load_dwordx4 {vHa}, {self.X}, {sH} offen lds', f'hr{i}'), Ins('s_mov_b32 exec_lo, -1')])
            return gq[:5] + [h] + gq[5:]
        fl1 = lambda gq: [y for x in gq for y in (x if isinstance(x, list) else [x])]
        self.sCen = S.alloc(); self.sCoff = S.alloc(); self.sCv = S.alloc()
        c1 = chunk_items(1); n1a, n1b = o['n1a'], o['n1b']
        g0 = [fl1(x) for x in chunk_items(0)[1:]]
        groups = g0[:5] + pf_flat('sa') + g0[5:] + pf_flat('s1') + [fl1(x) for x in c1[:n1a]]
        B = Asm()
        B(f's_getreg_b32 {s["T0"]}, hwreg(HW_REG_XCC_ID, 0, 4)\ns_mul_i32 {s["T1"]}, {s["T0"]}, {s["T0"]}\ns_lshl_b32 {s["T1"]}, {s["T1"]}, 13\ns_lshl_b32 {s["T0"]}, {s["T0"]}, 5')
        B(f's_add_u32 {self.sCen}, {s["T0"]}, {s["T1"]}\ns_add_u32 {self.sCen}, {self.sCen}, 1\ns_lshl_b32 {self.sCoff}, {s["G"]}, 4')
        self.ones = V.alloc(4, 2)
        for k in range(4): B(f'v_mov_b32 {self.ones[k]}, 0x3f803f80')
        B(f's_lshl_b32 {s["T0"]}, {s["W"]}, 12\nv_lshlrev_b32 {t1}, 11, {e}\nv_lshl_add_u32 {t1}, {ch}, 4, {t1}\nv_add_u32 {t1}, {s["T0"]}, {t1}')
        B(f's_mov_b64 exec, 0xffff\nds_write_b128 {t1}, {self.ones} offset:{L_HALO}\ns_mov_b64 exec, -1')
        B(f'v_mov_b32 v254, {L_SCR + 4092}')
        self.srd(B, 32, 8, 512*1024); self.srd(B, 40, 16, 1376*1024); self.srd(B, 44, 18, 2048*1024)
        B(f's_cmp_lt_u32 {s["W"]}, 2\ns_cselect_b32 s36, s12, s14\ns_cselect_b32 s37, s13, s15\ns_mov_b32 s38, {512*PITCH3}\ns_mov_b32 s39, 0x20000')
        S.free |= set(range(3, 20)) | {0, 1, 22, 23} | set(range(52, 60))
        self.sMode = S.alloc(); self.mW1 = S.alloc(2); self.mW16 = S.alloc(2)
        B(f's_mov_b32 {self.sMode}, 0\ns_cmp_eq_u32 {s["W"]}, 0\ns_cselect_b64 {self.mW1}, 1, 0\ns_cselect_b64 {self.mW16}, 0xffff, 0')
        self.sN3 = S.alloc(2); self.sInv512 = S.alloc()
        B(f's_cmp_lt_u32 {s["M"]}, 15\ns_cselect_b32 {self.sN3[0]}, s38, 0\ns_cmp_lt_u32 {s["M"]}, 14\ns_cselect_b32 {self.sN3[1]}, s38, 0')
        B(f's_mov_b32 {self.sInv512}, {fhex(1/512)}')
        self.vEps = V.alloc(); B(f'v_mov_b32 {self.vEps}, {fhex(1e-5)}')
        j = self.vJ = V.alloc(); g = self.vG = V.alloc(); self.vL16 = V.alloc()
        B(f'v_and_b32 {j}, 15, {vL}\nv_lshrrev_b32 {g}, 4, {vL}\nv_lshlrev_b32 {self.vL16}, 4, {vL}')
        self.aX = [V.alloc(), V.alloc()]; self.aXo = [V.alloc(), V.alloc()]; self.aW1 = V.alloc(); aHs = [V.alloc(), V.alloc()]
        B(f'v_lshrrev_b32 {t1}, 1, {j}\nv_xor_b32 {t1}, {t1}, {g}\nv_lshlrev_b32 {t1}, 4, {t1}\nv_lshl_add_u32 {self.aX[0]}, {j}, 7, {t1}\nv_xor_b32 {self.aX[1]}, 64, {self.aX[0]}')
        B(f'v_add_u32 {aHs[0]}, {s["T0"]}, {self.aX[0]}\nv_add_u32 {aHs[1]}, {s["T0"]}, {self.aX[1]}')
        B(f's_add_u32 {s["T0"]}, {self.sW2K}, {L_X}\nv_add_u32 {self.aXo[0]}, {s["T0"]}, {self.aX[0]}\nv_add_u32 {self.aXo[1]}, {s["T0"]}, {self.aX[1]}')
        ra = [V.alloc() for _ in range(4)]
        B(f'v_lshrrev_b32 {t1}, 1, {j}\nv_lshrrev_b32 {t2}, 1, {g}\nv_xor_b32 {t1}, {t1}, {t2}\nv_lshlrev_b32 {t1}, 4, {t1}\nv_and_b32 {t2}, 1, {g}\nv_lshl_add_u32 {t1}, {t2}, 3, {t1}')
        B(f'v_lshl_add_u32 {t1}, {j}, 7, {t1}\nv_add_u32 {ra[0]}, {s["T0"]}, {t1}')
        for ct in range(1, 4): B(f'v_xor_b32 {ra[ct]}, {ct*32}, {ra[0]}')
        self.vTRf = V.alloc(); self.vTRb = V.alloc()
        B(f'v_and_b32 {t1}, 3, {e}\nv_lshlrev_b32 {self.vTRf}, 5, {t1}')
        B(f'v_bfe_u32 {t1}, {vL}, 2, 2\nv_and_b32 {t2}, 3, {vL}\nv_lshlrev_b32 {t2}, 3, {t2}\nv_lshl_add_u32 {self.vTRb}, {t1}, 7, {t2}')
        B(f's_lshl_b32 {s["T0"]}, {s["W"]}, 5\nv_xor_b32 {t1}, {s["T0"]}, {self.vTRf}\nv_mul_u32_u24 {t2}, 3072, {g}\nv_add3_u32 {self.aW1}, {t1}, {t2}, {self.vTRb}\nv_add_u32 {self.aW1}, {L_W}, {self.aW1}')
        self.mB0 = S.alloc(2); self.mB1 = S.alloc(2); self.mDiag = S.alloc(2); mOwnA = S.alloc(2); mOwnB = S.alloc(2)
        B(f's_mov_b32 {self.mB0[0]}, 0xaaaaaaaa\ns_mov_b32 {self.mB0[1]}, 0xaaaaaaaa\ns_mov_b32 {self.mB1[0]}, 0xcccccccc\ns_mov_b32 {self.mB1[1]}, 0xcccccccc')
        B(f's_mov_b32 {self.mDiag[0]}, 0x00f0000f\ns_mov_b32 {self.mDiag[1]}, 0xf0000f00')
        def lanemask(fn):
            v = sum(1 << l for l in range(64) if fn(l & 15, l >> 4)); return v & 0xffffffff, v >> 32
        oa = lanemask(lambda jj, gg: 4*gg + (jj & 1) <= jj); ob = lanemask(lambda jj, gg: 4*gg + 2 + (jj & 1) <= jj)
        B(f's_mov_b32 {mOwnA[0]}, {hex(oa[0])}\ns_mov_b32 {mOwnA[1]}, {hex(oa[1])}\ns_mov_b32 {mOwnB[0]}, {hex(ob[0])}\ns_mov_b32 {mOwnB[1]}, {hex(ob[1])}')
        aTB = V.alloc(); aTBw = V.alloc(); aHPw = V.alloc(); aHPr = V.alloc()
        B(f'v_lshlrev_b32 {aTB}, 4, {j}\nv_add_u32 {aTB}, {SCR_TB}, {aTB}\nv_lshl_add_u32 {aTBw}, {s["W"]}, 8, {aTB}')
        B(f'v_lshlrev_b32 {aHPr}, 5, {j}\nv_add_u32 {aHPr}, {SCR_HP}, {aHPr}\nv_lshl_add_u32 {aHPw}, {s["W"]}, 3, {aHPr}')
        ka = V.alloc(); kb = V.alloc(); bias = V.alloc(2); sel = V.alloc(4)
        B(f'v_and_b32 {t1}, 1, {j}\nv_lshl_add_u32 {t1}, {g}, 2, {t1}\nv_lshlrev_b32 {t1}, 4, {t1}\nv_add_u32 {t1}, {SCR_TB + 8}, {t1}\nv_add_u32 {t2}, 256, {t1}')
        B(f'v_cndmask_b32 {ka}, {t1}, {t2}, {mOwnA}\nv_cndmask_b32 {kb}, {t1}, {t2}, {mOwnB}')
        B(f's_cmp_eq_u32 {s["BLK"]}, 0\ns_cselect_b32 {s["T0"]}, {fhex(-1e30)}, 0\nv_mov_b32 {t1}, {s["T0"]}\nv_mov_b32 {t3}, 0x0c0c0c0c')
        B(f'v_cndmask_b32 {bias[0]}, {t1}, 0, {mOwnA}\nv_cndmask_b32 {bias[1]}, {t1}, 0, {mOwnB}')
        B(f'v_mov_b32 {t1}, 0x0c0c0100\nv_mov_b32 {t2}, 0x01000c0c\nv_cndmask_b32 {t1}, {t1}, {t2}, {self.mB0}')
        B(f'v_cndmask_b32 {sel[0]}, {t1}, {t3}, {mOwnA}\nv_cndmask_b32 {sel[2]}, {t3}, {t1}, {mOwnA}')
        B(f'v_mov_b32 {t1}, 0x0c0c0302\nv_mov_b32 {t2}, 0x03020c0c\nv_cndmask_b32 {t1}, {t1}, {t2}, {self.mB0}')
        B(f'v_cndmask_b32 {sel[1]}, {t1}, {t3}, {mOwnB}\nv_cndmask_b32 {sel[3]}, {t3}, {t1}, {mOwnB}')
        self.sD = S.alloc(); self.vF = V.alloc(2); self.vH = V.alloc(); self.vD = V.alloc(4)
        self.sR2 = S.alloc(); self.sU = S.alloc(2); self.sDl = S.alloc(); self.sCP = [S.alloc() for _ in range(7)]
        for k in range(7): B(f's_mov_b32 {self.sCP[k]}, {(k + 1)*64*PITCH3}')
        B(f's_and_b32 {s["PF"]}, {s["M"]}, 1\ns_mul_i32 {s["T0"]}, {s["M"]}, 192\ns_mul_i32 {s["T1"]}, {s["PF"]}, {PITCH3}')
        B(f's_add_u32 {s["T2"]}, {s["T0"]}, {s["T1"]}\ns_sub_u32 {s["T3"]}, {s["T0"]}, {s["T1"]}\ns_add_u32 {s["T3"]}, {s["T3"]}, {PITCH3}')
        B(f's_sub_u32 {self.sDl}, {s["T3"]}, {s["T2"]}\ns_add_u32 {self.sDl}, {self.sDl}, 64')
        B(f's_and_b32 {s["T0"]}, {s["W"]}, 1\ns_and_b32 {s["T1"]}, {s["W"]}, 2')
        B(f'v_and_b32 {t2}, 1, {e}\nv_lshl_add_u32 {t1}, {g}, 3, {t2}\nv_lshl_add_u32 {t1}, {s["T0"]}, 1, {t1}\nv_mul_u32_u24 {t1}, {2*PITCH3}, {t1}\nv_add_u32 {t1}, {s["T2"]}, {t1}')
        B(f'v_and_b32 {t3}, 1, {g}\nv_or_b32 {t2}, {s["T1"]}, {t3}\nv_lshlrev_b32 {t2}, 1, {t2}\nv_xor_b32 {t2}, {t2}, {ch}\nv_lshl_add_u32 {self.vF[0]}, {t2}, 4, {t1}\nv_add_u32 {self.vF[1]}, {8*PITCH3}, {self.vF[0]}')
        B(f'v_lshl_add_u32 {t1}, {s["T0"]}, 3, {e}\nv_lshlrev_b32 {t3}, 2, {t3}\nv_xor_b32 {t3}, {t3}, {ch}\nv_lshlrev_b32 {t3}, 4, {t3}\nv_lshl_add_u32 {self.vD[0]}, {t1}, 10, {t3}')
        B(f'v_and_b32 {t1}, 3, {e}\nv_lshlrev_b32 {t1}, 3, {t1}\nv_lshrrev_b32 {t2}, 5, {vL}\nv_lshl_add_u32 {t1}, {t2}, 1, {t1}\nv_bfe_u32 {t2}, {vL}, 2, 1\nv_add_u32 {t1}, {t1}, {t2}\nv_lshl_add_u32 {t1}, {s["T0"]}, 2, {t1}\nv_mul_u32_u24 {t1}, {2*PITCH3}, {t1}\nv_add_u32 {t1}, {s["T3"]}, {t1}')
        B(f'v_and_b32 {t2}, 3, {vL}\nv_xor_b32 {t2}, {s["T1"]}, {t2}\nv_lshl_add_u32 {self.vH}, {t2}, 4, {t1}')
        B(f's_lshl_b32 {s["T1"]}, {s["T1"]}, 13\ns_add_u32 {self.sU[0]}, {s["T1"]}, {self.sC128}\ns_mul_i32 {s["T1"]}, {s["T1"]}, 6\ns_add_u32 {self.sU[1]}, {s["T1"]}, {self.sC128}')
        pass
        B(f's_lshl_b32 {self.sOst}, {s["BLK"]}, 16\ns_lshl_b32 {s["T1"]}, {s["C"]}, 12\ns_add_u32 {self.sOst}, {self.sOst}, {s["T1"]}\ns_add_u32 {self.sOst}, {self.sOst}, {s["W1K"]}')
        B(f'v_lshlrev_b32 {t1}, 7, {ch}\nv_lshl_add_u32 {vTo}, {e}, 15, {t1}')
        B(f's_lshr_b32 {s["T1"]}, {s["W"]}, 1\ns_lshl_b32 {s["T2"]}, {s["SB"]}, 1\ns_add_u32 {s["T2"]}, {s["T2"]}, {s["T1"]}\ns_lshl_b32 {s["T2"]}, {s["T2"]}, 15')
        B(f's_lshl_b32 {s["T1"]}, {s["C"]}, 12\ns_add_u32 {s["T2"]}, {s["T2"]}, {s["T1"]}\ns_add_u32 {self.sHst}, {s["T2"]}, {s["GB"]}')
        B(f's_lshl_b32 {s["T0"]}, {s["T0"]}, 11\ns_add_u32 {s["T2"]}, {s["T2"]}, {s["T0"]}\nv_add_u32 {vT}, {s["T2"]}, {v128}')
        B(f's_lshl_b32 {s["T0"]}, {s["M"]}, 2\ns_add_u32 {s["T0"]}, {s["T0"]}, {s["W"]}\ns_lshl_b32 {s["T0"]}, {s["T0"]}, 7\ns_add_u32 {s["T1"]}, {s["T0"]}, {WS_ST}\nv_writelane_b32 {vT}, {s["T1"]}, 16')
        B(f's_and_b32 {s["T0"]}, {s["T0"]}, 0x380\ns_add_u32 {s["T1"]}, {s["T0"]}, {WS_FL}\nv_writelane_b32 {vT}, {s["T1"]}, 17')
        self.info['setupB'] = len(B.L)
        k1 = max(q for q in safe_points(B.L) if q <= o['c1_from'])
        code = sprinkle(B.L[:k1], groups, o['sp0'], start=0) + (self.visit('v0') if o['v0_at'] == -2 else []) + sprinkle(B.L[k1:], pf_flat('sb') + [fl1(x) for x in c1[n1a:n1b]], o['sp0b'], start=0)
        if o['visit']:
            k = max(q for q in safe_points(code) if q <= o['jump_at'])
            code[k:k] = [Ins('s_branch L_body'), Ins('.p2align 12'), Ins('L_body:')]
        if o.get('st0'):
            sp_ = set(safe_points(code)); last = 0
            for q, x in enumerate(code):
                if q - last >= o['st0'] and q in sp_:
                    self.stamp(f'i{q}v{sum(y.kind == "vmem" for y in code[:q])}'); last = q
                A.L.append(x)
            self.stamp('ipre-visit')
        else: A.ext(code)
        for r in (e, ch, sZ): r.free()
        for gq in pf_flat('s2'): A.ext(gq)
        if o['v0_at'] == -1: A.ext(self.visit('v0'))
        self.aQ = [V.alloc(4, 2) for _ in range(5)]; self.aK = [V.alloc(4, 2) for _ in range(5)]; self.aV = [V.alloc(4, 2) for _ in range(5)]
        self.stG = V.alloc(4, 2); self.stS = V.alloc(4, 2); hG = V.alloc(4, 2); hS = V.alloc(4, 2)
        bufs = [([AG.alloc(4, 4) for _ in range(3)], [AG.alloc(4, 4) for _ in range(5)], AG.alloc(4, 4)) for _ in range(2)]
        hb = [AG.alloc(4, 4) for _ in range(4)]
        self.stamp('setup done')
        A('@waitlg0\n@waitvm hr0\ns_barrier')
        self.stamp('chunk0 visible')
        A.ext(self.p1_reads(0, 0, bufs[0]))
        A(f's_cmp_lg_u32 {s["W"]}, 0\ns_cbranch_scc1 L_nocen\n@raw 1\ns_atomic_add {self.sCen}, s[20:21], {self.sCoff}\n@raw 0\nL_nocen:\n@minlg 1')
        self.resx = V.alloc(8, 2); hp = V.alloc(8, 2); tb4 = V.alloc(4, 2)
        hs = Asm()
        for a_, b_ in ((0, 2), (1, 3), (4, 6), (5, 7), (0, 4), (1, 5)): hs(f'v_add_f32 {hp[a_]}, {hp[a_]}, {hp[b_]}')
        hs.ext(self.stats_code(hp[1], hp[0], tb4)); hs(f'ds_write_b128 {aTB}, {tb4}')
        flat = lambda gs: [x for gq in gs for x in gq]
        pfm = lambda at: [x for kind, a_ in o['pf'].items() if a_ == at for x in pf_group(kind)]
        misc = flat(c1[n1b:]) + pfm('c1') + flat(chunk_items(2)) + pfm('c2')
        side = []
        self.gap_since_vm = 99
        HS = o['HS']
        for n in range(16):
            i, st = n >> 1, n & 1
            if n: A('@waitlg0')
            if o.get("fine", 0) >= 16 and (st == 0 or o.get('steps')) and n: self.stamp(f'p1 chunk {i}' + ('b' if st else ''))
            if st == 1 and i < 7:
                while any(x.tag == f'ch{i+1}' for x in fl1(misc)) or sum(x.tag == f'ch{i+2}' for x in fl1(misc)) > 8 - o['topup']: A.ext(fl1([misc.pop(0)]))
                if o['v0_at'] == i: A.ext(self.visit('v0'))
                A(f'@waitvm ch{i+1}\ns_barrier')
                if i == o['minlg_until']: A('@minlg 0')
                if i + 3 < 8: misc += flat(chunk_items(i + 3))
                if i == 4: misc += [Ins(f'v_mov_b32 {t1}, {self.sCoff}'), Ins(f'global_load_dword {t2}, {t1}, s[20:21] sc1')]
                for kind, at in o['pf'].items():
                    if at == i: misc += pf_group(kind)
                if i == 5:
                    self.free_blocks += [23, 24, 25, 26, 27]
                    misc += flat(self.dmas(o['w2a']))
                if i == 6: misc += flat(self.dmas(o['w2b']))
            mf = self.p1_mfmas(bufs[n & 1], n == 0)
            if n < 15:
                rd = self.p1_reads((n + 1) >> 1, (n + 1) & 1, bufs[(n + 1) & 1])
                if n == HS: rd += [Ins(f'ds_read_b128 {hb[q]}, {aHs[q & 1]} offset:{L_HALO + (q >> 1)*2048}') for q in range(4)]
                if n == HS + 1:
                    for q in range(4):
                        mf += [Ins(f'v_mfma_f32_16x16x32_bf16 {hG}, {hb[q]}, {hb[q]}, {hG if q else 0}'), Ins(f'v_mfma_f32_16x16x32_bf16 {hS}, {self.ones}, {hb[q]}, {hS if q else 0}')]
                    mf = mf[17:] + mf[:17]
                if n == HS + 1: side += self.diag_code(hG, hS[1]) + [[Ins(f's_mov_b64 exec, {self.mDiag}'), Ins(f'ds_write_b64 {aHPw}, {hS.sub(0, 2)}'), Ins('s_mov_b64 exec, -1')]]
                if n == HS + 3:
                    assert st == 1 and not side
                    rd += [Ins(f'ds_read_b128 {hp.sub(0, 4)}, {aHPr}'), Ins(f'ds_read_b128 {hp.sub(4, 4)}, {aHPr} offset:16')]
                if n == HS + 4: side += hs.L
                if n == 8 and o['khalf']:
                    A(f's_cmp_lt_u32 {s["C"]}, 4\ns_cselect_b64 exec, 0, -1')
                    for ct in range(4): A(f'ds_read_b64 {self.resx.sub(2*ct, 2)}, {ra[ct]} offset:{(4 % 3)*8192}')
                    A('s_mov_b64 exec, -1')
                vg = o['vgap0'] if n < 4 else o['vgap']
                if n == 0:
                    rx = [x for x in rd if 'b128' in x.mn] + [Ins(f'ds_read_b64 {self.resx.sub(2*ct, 2)}, {ra[ct]}') for ct in range(4)]
                    k0 = o['k0']
                    self.weave16(mf[:k0], rx, misc, vgap=vg, tail=0)
                    A('@waitvm ch0\ns_barrier')
                    self.weave16(mf[k0:], [x for x in rd if 'b128' not in x.mn], misc, vgap=vg)
                else: self.weave16(mf, rd, misc, vgap=vg, side=side)
            else:
                code = self.diag_code(self.stG, self.stS[1]) + self.stats_code(self.stS[1], self.stS[0], tb4)
                code.append([Ins(f's_mov_b64 exec, {self.mDiag}'), Ins(f'ds_write_b128 {aTBw}, {tb4} offset:256'), Ins('s_mov_b64 exec, -1')])
                assert not side
                self.weave16(mf[:5], [], misc)
                self.weave16(mf[5:13], [], code); assert not code
                self.weave16(mf[13:], [], misc)
        self.stamp('p1 gemm done')
        for b in bufs:
            for r in b[0] + b[1] + [b[2]]: r.free()
        for r in ra + aHs + hb + [hG, hS, vHa, sH, sHm, sTh, self.sTb, hp, aHPw, aHPr, aTBw, tb4, self.stG, self.stS, self.aW1, self.vXa, self.vXb, self.vW1] + self.aX + self.aXo: r.free()
        left = []; cur = []
        for x in misc:
            cur += x if isinstance(x, list) else [x]
            if any(y.kind == 'vmem' for y in cur): left.append(cur); cur = []
        assert not cur
        self.info['w2_left'] = len(left)
        if left: A.ext(left.pop(0))
        A(f'v_readfirstlane_b32 {self.sCv}, {t2}\n@waitlg0\ns_barrier')
        nw2_left = 16 - o['w2a'] - o['w2b']
        late_free = [22, 8, 9] + list(range(10, 16)) + [4, 5] + list(range(16, 22)) + [6, 7, 0, 1, 2, 3]
        tb = [V.alloc(4, 2) for _ in range(5)]
        for t in range(5): A(f'ds_read_b128 {tb[t]}, {aTB} offset:{t*256}')
        rk = [None] + [V.alloc(2) for _ in range(4)]
        for t in range(1, 5): A(f'ds_read_b32 {rk[t][0]}, {ka} offset:{(t-1)*256}\nds_read_b32 {rk[t][1]}, {kb} offset:{(t-1)*256 + 32}')
        A(f's_lshl_b32 {s["T0"]}, {self.sCen}, 4\ns_cmp_eq_u32 {s["T0"]}, {self.sCv}')
        if o['force_slow']: A('s_cmp_eq_u32 0, 1')
        A('s_cbranch_scc0 L_notfast\nL_mode_ok:')
        T = self.tail
        T(f'L_notfast:\ns_mov_b32 {s["T1"]}, 0x8000\nL_cen_loop:\nglobal_load_dword {t2}, {t1}, s[20:21] sc1\ns_waitcnt vmcnt(0)\nv_readfirstlane_b32 {self.sCv}, {t2}')
        T(f's_sub_u32 {s["T1"]}, {s["T1"]}, 1\ns_cbranch_scc1 L_cen_done\ns_and_b32 {s["T2"]}, {self.sCv}, 31\ns_cmp_lt_u32 {s["T2"]}, 16\ns_cbranch_scc1 L_cen_loop\nL_cen_done:')
        if not o['force_slow']: T(f's_cmp_eq_u32 {s["T0"]}, {self.sCv}\ns_cbranch_scc1 L_mode_ok')
        T(f's_mov_b32 {self.sMode}, 1')
        T(f's_add_u32 {s["FL"]}, {s["FL"]}, {FL_SLOW}\ns_add_u32 {self.sFme}, {self.sFme}, {FL_SLOW}\ns_mov_b32 {s["T1"]}, 0x8000\ns_cmp_lg_u32 {s["W"]}, 0\ns_cbranch_scc1 L_slow_loop')
        T(f's_mov_b64 exec, 0x3f\nv_mov_b32 {t2}, 0\nbuffer_store_dword {t2}, {v128}, {self.WS}, {self.sFme} offen sc1\ns_waitcnt vmcnt(0)\ns_mov_b64 exec, 1\nv_mov_b32 {t2}, 1')
        T(f'global_atomic_add {t1}, {t2}, s[20:21] offset:4 sc1\ns_mov_b64 exec, -1')
        T(f'L_slow_loop:\nglobal_load_dword {t2}, {t1}, s[20:21] offset:4 sc1\ns_waitcnt vmcnt(0)\nv_readfirstlane_b32 {s["T0"]}, {t2}')
        T(f's_sub_u32 {s["T1"]}, {s["T1"]}, 1\ns_cbranch_scc1 L_mode_ok\ns_cmp_lt_u32 {s["T0"]}, 16\ns_cbranch_scc1 L_slow_loop\ns_branch L_mode_ok')
        E = Asm()
        csq = V.alloc(4, 2); csk = V.alloc(4, 2); csv = V.alloc(2, 2)
        for r in range(4): E(f'v_mov_b32_dpp {csk[r]}, {self.aK[0][r]} row_newbcast:0 row_mask:0xf bank_mask:0xf')
        for r in range(4): E(f'v_mov_b32_dpp {csq[r]}, {self.aQ[0][r]} row_newbcast:0 row_mask:0xf bank_mask:0xf')
        E(f'v_cvt_pk_bf16_f32 {t1}, {self.aV[0][0]}, {self.aV[0][0]}\nv_mov_b32 {csv[0]}, 0\nv_and_b32 {t1}, 0xffff0000, {t1}\nv_mov_b32 {csv[1]}, 0\nv_sub_f32 {t2}, {self.aV[0][0]}, {t1}')
        E(f's_mov_b64 exec, 0xffff\nv_cvt_pk_bf16_f32 {csv[1]}, {t1}, {t2}\ns_mov_b64 exec, -1')
        Kp = V.alloc(10, 2); Qp = V.alloc(10, 2); Vp = V.alloc(10, 2)
        def fixf(acc, cs, t):
            for h in range(2): E(f'v_pk_fma_f32 {acc[t].sub(2*h, 2)}, {cs.sub(2*h, 2)}, {tb[t].sub(0, 2)}, {acc[t].sub(2*h, 2)} op_sel_hi:[1,0,1]')
        fixf(self.aK, csk, 0)
        for t in range(1, 5): fixf(self.aK, csk, t); fixf(self.aQ, csq, t)
        zs = [None] + [V.alloc(2) for _ in range(4)]
        for t in range(1, 5): E(f'v_pk_mul_f32 {zs[t]}, {rk[t]}, {tb[t].sub(2, 2)} op_sel:[0,1] op_sel_hi:[1,1]')
        cv = lambda acc, dst, t: [f'v_cvt_pk_bf16_f32 {dst[2*t + h]}, {acc[t][2*h]}, {acc[t][2*h+1]}' for h in range(2)]
        vm = [f'v_mfma_f32_16x16x16_bf16 {self.aV[t]}, {tb[t].sub(0, 2)}, {csv}, {self.aV[t]}' for t in range(5)]
        cvs = cv(self.aK, Kp, 0)
        for t in range(1, 5): cvs += cv(self.aK, Kp, t) + cv(self.aQ, Qp, t)
        for t in range(5):
            E(vm[t]); E(cvs.pop(0)); E(cvs.pop(0))
        Sp, So = self.aK, self.aQ
        Sp = [None] + self.aK[0:4]; So = [None] + self.aQ[0:4]
        for t in range(1, 5):
            E(f'v_mfma_f32_16x16x16_bf16 {Sp[t]}, {Kp.sub(2*t-2, 2)}, {Qp.sub(2*t, 2)}, 0')
            for _ in range(2):
                if cvs: E(cvs.pop(0))
            E(f'v_mfma_f32_16x16x16_bf16 {So[t]}, {Kp.sub(2*t, 2)}, {Qp.sub(2*t, 2)}, 0')
            for _ in range(2):
                if cvs: E(cvs.pop(0))
        z = [None] + [V.alloc(2) for _ in range(4)]
        for t in range(1, 5):
            for h, mk in ((0, mOwnA), (1, mOwnB)):
                E(f'v_cndmask_b32 {Sp[t][2*h]}, {Sp[t][2*h]}, {Sp[t][2*h+1]}, {self.mB0}\nv_cndmask_b32 {So[t][2*h]}, {So[t][2*h]}, {So[t][2*h+1]}, {self.mB0}')
                E(f'v_cndmask_b32 {z[t][h]}, {Sp[t][2*h]}, {So[t][2*h]}, {mk}')
        E(f'v_pk_fma_f32 {z[1]}, {z[1]}, {zs[1]}, {bias}')
        for t in range(2, 5): E(f'v_pk_mul_f32 {z[t]}, {z[t]}, {zs[t]}')
        red = zs
        fl = [x for t in range(5) for x in cv(self.aV, Vp, t)]
        def fill(n):
            for _ in range(n):
                if fl: E(fl.pop(0))
        def allreduce(op, mid=None):
            r = [None] + [red[t][0] for t in range(1, 5)]
            for t in (1, 3, 2, 4): E(f'{op} {r[t]}, {z[t][0]}, {z[t][1]}')
            E(f'v_permlane32_swap_b32 {r[1]}, {r[3]}'); fill(1)
            E(f'v_permlane32_swap_b32 {r[2]}, {r[4]}')
            E(f'{op} {r[1]}, {r[1]}, {r[3]}\n{op} {r[2]}, {r[2]}, {r[4]}'); fill(2)
            E(f'v_permlane16_swap_b32 {r[1]}, {r[2]}')
            E(f'{op} {r[1]}, {r[1]}, {r[2]}')
            if mid: E(f'{mid} {r[1]}, {r[1]}'); fill(1)
            E(f'v_mov_b32 {r[2]}, {r[1]}'); fill(2)
            E(f'v_permlane16_swap_b32 {r[1]}, {r[2]}')
            E(f'v_mov_b32 {r[3]}, {r[1]}\nv_mov_b32 {r[4]}, {r[2]}'); fill(1)
            E(f'v_permlane32_swap_b32 {r[1]}, {r[3]}\nv_permlane32_swap_b32 {r[2]}, {r[4]}')
        allreduce('v_max_f32')
        for t in range(1, 5): E(f'v_pk_add_f32 {z[t]}, {z[t]}, {red[t]} op_sel_hi:[1,0] neg_lo:[0,1] neg_hi:[0,1]')
        for t in range(1, 5): E(f'v_exp_f32 {z[t][0]}, {z[t][0]}\nv_exp_f32 {z[t][1]}, {z[t][1]}')
        fl += [f'v_pk_mul_f32 {rk[t]}, {z[t]}, {rk[t]}' for t in range(1, 5)]
        allreduce('v_add_f32', 'v_rcp_f32')
        fill(20)
        for t in range(1, 5): E(f'v_pk_mul_f32 {z[t]}, {rk[t]}, {red[t]} op_sel_hi:[1,0]')
        for t in range(1, 5): E(f'v_cvt_pk_bf16_f32 {z[t][0]}, {z[t][0]}, {z[t][1]}')
        P = Sp; O = So
        for t in range(1, 5):
            for q in range(4):
                E(f'v_perm_b32 {P[t][q]}, {z[t][0]}, {z[t][0]}, {sel[q]}')
                if q == 1 and t > 1: E(f'v_mfma_f32_16x16x32_bf16 {O[t-1]}, {Vp.sub(2*t-4, 4)}, {P[t-1]}, 0')
        of = [self.aV[0], self.aV[1]]
        oc = lambda t: [f'v_cvt_pk_bf16_f32 {of[(t-1) >> 1][2*((t-1) & 1) + h]}, {O[t][2*h]}, {O[t][2*h+1]}' for h in range(2)]
        for x in oc(1): E(x)
        E(f'v_mfma_f32_16x16x32_bf16 {O[4]}, {Vp.sub(6, 4)}, {P[4]}, 0')
        groups = pf_flat('e0') + left + self.dmas(nw2_left) + pf_flat('e1')
        self.free_blocks += late_free
        groups += self.dmas(o['b_epi'])
        A.ext(sprinkle(E, groups, o.get('sp1', 18), start=8))
        A(f's_add_u32 {s["T0"]}, {self.sOst}, 32768\n;dual_begin')
        for x in oc(2) + oc(3): A(x)
        A(f'v_permlane16_swap_b32 {of[0][0]}, {of[0][2]}\nv_permlane16_swap_b32 {of[0][1]}, {of[0][3]}')
        for x in oc(4): A(x)
        self.store2(A, 'dwordx4', of[0], self.vL16, self.sOst, 0, 'ost', self.OUT)
        A(f'v_permlane16_swap_b32 {of[1][0]}, {of[1][2]}\nv_permlane16_swap_b32 {of[1][1]}, {of[1][3]}')
        self.store2(A, 'dwordx4', of[1], self.vL16, s["T0"], 0, 'ost', self.OUT)
        A(';dual_end')
        self.stamp('o stored')
        for gq in pf_flat('e2'): A.ext(gq)
        for r in (vT, vTo, sP, v1k): r.free()
        self.junk1 = junk
        self.OSRD = OSRD
        for r in tb + rk[1:] + zs[1:] + z[1:] + [csq, csk, csv, Kp, Qp, Vp, bias, sel, aTB, ka, kb] + self.aQ + self.aK + self.aV[2:]: r.free()
        for r in (mOwnA, mOwnB, self.sCen, self.sCoff, self.sCv, self.sW3K, self.sKC, self.sSO): r.free()
        self.of = of

    def phase2(self):
        A, V, S, AG, s, vL, o = self.A, self.V, self.S, self.AG, self.s, self.vL, self.o
        t1, t2, t3, j, g = self.t1, self.t2, self.t3, self.vJ, self.vG
        self.vOne = V.alloc(); self.vPv = V.alloc()
        assert ('W2', 15) in self.loc
        aw = [V.alloc() for _ in range(4)]
        mark = len(A.L)
        A(f'v_lshl_add_u32 {t1}, {g}, 10, {self.vTRb}\nv_add_u32 {t1}, {23*BLK}, {t1}')
        for ct in range(4): A(f'v_xor_b32 {t2}, {ct*32}, {self.vTRf}\nv_add_u32 {aw[ct]}, {t1}, {t2}')
        pa = V.alloc(); oa = V.alloc(); hv = V.alloc(); sSt = S.alloc(); vj16 = V.alloc(); aRw = V.alloc()
        A(f's_lshl_b32 {s["T0"]}, {s["SB"]}, 5\nv_and_b32 {t1}, 7, {vL}\nv_lshl_add_u32 {pa}, {t1}, 2, {s["T0"]}\nv_mov_b32 {self.vOne}, 1')
        A(f's_lshr_b32 {s["T0"]}, {s["W"]}, 1\ns_lshl_b32 {s["T0"]}, {s["T0"]}, 10\ns_and_b32 {s["T1"]}, {s["W"]}, 1\ns_lshl_b32 {s["T1"]}, {s["T1"]}, 8')
        A(f'v_lshlrev_b32 {vj16}, 4, {j}\nv_and_b32 {t1}, 1, {g}\nv_lshl_add_u32 {t1}, {t1}, 9, {vj16}\nv_add_u32 {t1}, {s["T1"]}, {t1}\nv_lshrrev_b32 {t2}, 1, {g}\nv_lshl_add_u32 {hv}, {t2}, 11, {t1}\nv_lshl_add_u32 {oa}, {t2}, 10, {t1}')
        A(f's_lshl_b32 {self.sR2}, {s["BLK"]}, 16\ns_lshl_b32 {s["T2"]}, {s["T0"]}, 5\ns_add_u32 {self.sR2}, {self.sR2}, {s["T2"]}')
        acc = [V.alloc(4, 2) for _ in range(4)]
        for ct in range(4):
            for h in range(2):
                A(f'v_lshlrev_b32 {acc[ct][2*h]}, 16, {self.resx[2*ct+h]}\nv_and_b32 {acc[ct][2*h+1]}, 0xffff0000, {self.resx[2*ct+h]}')
        A(f's_lshl_b32 {s["T0"]}, {s["T0"]}, 1\ns_add_u32 {sSt}, {s["T0"]}, {s["T1"]}\ns_lshl_b32 {s["T0"]}, {s["SB"]}, 12\ns_add_u32 {sSt}, {sSt}, {s["T0"]}')
        A(f's_and_b32 {s["T0"]}, {s["C"]}, 2\ns_lshl_b32 {s["T0"]}, {s["T0"]}, 9\ns_add_u32 {sSt}, {sSt}, {s["T0"]}\ns_and_b32 {s["T0"]}, {s["C"]}, 4\ns_lshl_b32 {s["T0"]}, {s["T0"]}, 7\ns_add_u32 {sSt}, {sSt}, {s["T0"]}')
        A(f's_and_b32 {s["T0"]}, {s["C"]}, 1\ns_lshl_b32 {s["T0"]}, {s["T0"]}, 3\ns_add_u32 {sSt}, {sSt}, {s["T0"]}\ns_add_u32 {sSt}, {sSt}, {s["GB"]}\ns_add_u32 {sSt}, {sSt}, {WS_ST}')
        A.L[mark:] = sprinkle(A.L[mark:], self.dmas(o['b_pre1']), o.get('sp3', 12))
        A('@waitvm ost')
        for r in self.of: r.free()
        self.stamp('o drained')
        A('@waitvm W2_15\ns_barrier')
        A.ext(self.signal(0))
        Wf = [[AG.alloc(4, 4) for _ in range(4)] for _ in range(16)]
        def rd(i):
            off = (self.loc[('W2', i)] - 23)*BLK
            return [Ins(f'ds_read_b64_tr_b16 {Wf[i][ct].sub(2*a, 2)}, {aw[ct]} offset:{off + a*512}') for ct in range(4) for a in range(2)]
        npre = o['w2pre']
        A.ext(sprinkle([x for i in range(npre) for x in rd(i)], self.dmas(o['b_post1']), 8))
        A.ext(self.visit('v1'))
        self.poll_block(A, pa, 0, self.mW16 if o['one_poll'] else '0xff'); A('@drained_vm')
        if o['one_poll']: A('s_barrier')
        self.stamp('sync1 done')
        self.junk1.free()
        Of = [V.alloc(4, 2) for _ in range(16)]
        ld = [([Ins(f's_add_u32 {self.sR2}, {self.sR2}, 4096')] if i and i % 2 == 0 else []) + [Ins(f'buffer_load_dwordx4 {Of[i]}, {oa}, {self.OSRD}, {self.sR2} offen offset:{(i & 1)*2048} sc1')] for i in range(16)]
        rest = [x for i in range(npre, 16) for x in rd(i)]
        LO = o['LO']
        for i in range(LO):
            A.ext(ld[i]); A.ext(rest[:5]); rest = rest[5:]
        misc = [x for gq in ld[LO:] + self.dmas(o['b_o']) for x in gq]
        mf = [Ins(f'v_mfma_f32_16x16x32_bf16 {acc[ct]}, {Wf[i][ct]}, {Of[i]}, {acc[ct]}') for i in range(16) for ct in range(4)]
        assert len(rest) <= 52, len(rest)
        self.gap_since_vm = 99
        self.weave16(mf, rest, misc)
        A.ext(misc)
        self.stamp('p2 gemm done')
        w2b = sorted(self.loc[('W2', i)] for i in range(16))
        self.resb = w2b[0]; assert w2b[1] == w2b[0] + 1
        A(f's_add_u32 {s["T0"]}, {self.sW2K}, {self.resb*BLK}\nv_lshlrev_b32 {t1}, 7, {j}\nv_lshl_add_u32 {t1}, {g}, 3, {t1}')
        A(f'v_bfe_u32 {t2}, {j}, 0, 2\nv_lshl_add_u32 {t1}, {t2}, 5, {t1}\nv_add_u32 {aRw}, {s["T0"]}, {t1}\ns_barrier')
        self.free_blocks += w2b[2:]
        hf = [Of[0], Of[1]]; G4, S4 = Of[2], Of[3]
        A(';dual_begin')
        for par in range(2):
            for ct in range(4): A(f'v_cvt_pk_bf16_f32 {hf[par][ct]}, {acc[ct][par]}, {acc[ct][2+par]}')
        rp = Reg('v', Of[4].b, 8); assert Of[5].b == Of[4].b + 4
        rc = [f'v_cvt_pk_bf16_f32 {rp[2*ct+h]}, {acc[ct][2*h]}, {acc[ct][2*h+1]}' for ct in range(4) for h in range(2)]
        A(f'v_mfma_f32_16x16x32_bf16 {G4}, {hf[0]}, {hf[0]}, 0')
        self.store2(A, 'dwordx4', hf[0], hv, self.sHst, 0, 'hst')
        A(f'v_mfma_f32_16x16x32_bf16 {G4}, {hf[1]}, {hf[1]}, {G4}')
        A(f'v_mfma_f32_16x16x32_bf16 {S4}, {self.ones}, {hf[0]}, 0')
        A(f'v_mfma_f32_16x16x32_bf16 {S4}, {self.ones}, {hf[1]}, {S4}')
        self.store2(A, 'dwordx4', hf[1], hv, self.sHst, 1024, 'hst')
        d = self.diag_code(G4, S4[1])
        A('\n'.join(rc[:3])); A.ext(d[:2]); A(rc[3]); A.ext(d[2:])
        A(f's_mov_b64 exec, {self.mDiag}')
        self.store2(A, 'dwordx2', S4.sub(0, 2), vj16, sSt, 0, 'hst')
        A('s_mov_b64 exec, -1\n;dual_end')
        self.stamp('h stored')
        A('\n'.join(rc[4:]))
        A(f'ds_write_b64 {aRw}, {rp.sub(0, 2)}')
        for ct in range(1, 4): A(f'v_xor_b32 {t1}, {ct*32}, {aRw}\nds_write_b64 {t1}, {rp.sub(2*ct, 2)}')
        for r in aw + [pa, oa, hv, vj16, aRw] + acc + Of[6:] + [x for y in Wf for x in y] + [self.vW2, self.mB0, self.mB1, self.mDiag, self.sR2, sSt, self.sOst, self.sHst, self.ones]: r.free()
        self.late_free = Of[:6]

    def phase34(self):
        A, V, S, AG, s, vL, o = self.A, self.V, self.S, self.AG, self.s, self.vL, self.o
        t1, t2, t3, j, g = self.t1, self.t2, self.t3, self.vJ, self.vG
        P = Asm()
        Q = Asm()
        class Win:
            def __init__(w, base): w.r = {0: base}
            def need(w, k):
                if k in w.r: return []
                w.r[k] = V.alloc()
                return [Ins(f'v_add_u32 {w.r[k]}, {k << 16}, {w.r[0]}')]
        aF, aH, aD = [], [], []
        P(f'v_and_b32 {t1}, 1, {g}\nv_lshlrev_b32 {t1}, 11, {t1}\nv_lshrrev_b32 {t2}, 1, {g}\nv_lshl_add_u32 {t3}, {t2}, 10, {t1}')
        b0 = V.alloc(); P(f'v_add3_u32 {b0}, {t3}, {self.vTRb}, {self.vTRf}'); aF.append(Win(b0))
        for uu in range(1, 4):
            b = V.alloc(); P(f'v_xor_b32 {b}, {uu*32}, {b0}'); aF.append(Win(b))
        b0 = V.alloc(); b1 = V.alloc()
        P(f'v_lshl_add_u32 {t3}, {t2}, 9, {t1}\nv_bfe_u32 {t1}, {vL}, 2, 2\nv_lshl_add_u32 {t3}, {t1}, 6, {t3}\nv_and_b32 {t1}, 3, {vL}\nv_lshl_add_u32 {t3}, {t1}, 3, {t3}\nv_and_b32 {t1}, 1, {g}\nv_lshl_add_u32 {b0}, {t1}, 5, {t3}\nv_xor_b32 {b1}, 32, {b0}')
        aH = [Win(b0), Win(b1)]
        P(f's_and_b32 {s["T1"]}, {s["W"]}, 2\nv_or_b32 {t1}, {s["T1"]}, {t1}\nv_lshlrev_b32 {t1}, 5, {t1}')
        b = V.alloc(); P(f'v_xor_b32 {b}, {t1}, {self.vL16}\nv_add_u32 {b}, {s["W1K"]}, {b}'); aCF = Win(b)
        b = V.alloc(); P(f's_lshl_b32 {s["T1"]}, {s["T1"]}, 4\nv_xor_b32 {b}, {s["T1"]}, {self.vL16}\nv_add_u32 {b}, {s["W1K"]}, {b}'); aCH = Win(b)
        delta = V.alloc(4, 2)
        P(f'v_and_b32 {t1}, 1, {j}\nv_lshlrev_b32 {t1}, 4, {t1}\nv_mov_b32 {t2}, 0x3f80\nv_lshlrev_b32 {t1}, {t1}, {t2}')
        for d in range(4):
            mk = 0x00030003 << (2*d)
            P(f's_mov_b32 vcc_lo, {hex(mk)}\ns_mov_b32 vcc_hi, {hex(mk)}\nv_cndmask_b32 {delta[d]}, 0, {t1}, vcc')
        pa2 = V.alloc(); pa3 = V.alloc(); aRes = V.alloc(); vHl = {'F': V.alloc(), 'H': V.alloc()}
        sT4 = S.alloc(); sGa = S.alloc(); sGb = S.alloc(); sGl = S.alloc(); sHl = S.alloc(); sKH = S.alloc(); sTH = S.alloc(); sSl = S.alloc(); sGo = S.alloc(); sTs = S.alloc(); sLo = S.alloc(); sLw = S.alloc()
        P(f's_lshr_b32 {sKH}, {s["W"]}, 1\ns_and_b32 {sTH}, {s["W"]}, 1')
        P(f'v_lshlrev_b32 {pa3}, 2, {j}\nv_lshl_add_u32 {pa2}, {sKH}, 5, {pa3}')
        P(f's_lshl_b32 {s["T1"]}, {s["W"]}, 15\ns_add_u32 {sHl}, {s["T1"]}, {s["GB"]}\nv_lshl_add_u32 {vHl["F"]}, {s["PF"]}, 10, {self.vL16}\nv_xor_b32 {vHl["H"]}, 1024, {vHl["F"]}')
        P(f's_lshl_b32 {s["T2"]}, {sTH}, 12\ns_add_u32 {s["T2"]}, {s["T2"]}, {self.resb*BLK}\nv_lshrrev_b32 {t2}, 5, {vL}\nv_lshl_add_u32 {t2}, {sKH}, 1, {t2}\nv_and_b32 {t1}, 3, {vL}\nv_xor_b32 {t2}, {t2}, {t1}')
        P(f'v_and_b32 {t1}, 31, {vL}\nv_lshl_add_u32 {t1}, {t1}, 7, {s["T2"]}\nv_lshl_add_u32 {aRes}, {t2}, 5, {t1}')
        Q(f's_add_u32 {sSl}, {self.sW2K}, {s["GB"]}\ns_add_u32 {sSl}, {sSl}, {WS_ST}')
        Q(f's_lshl_b32 {s["T3"]}, {s["W"]}, 15\ns_lshl_b32 {s["T2"]}, {s["M"]}, 10\ns_add_u32 {s["T2"]}, {s["T2"]}, {s["T3"]}\ns_add_u32 {sGa}, {s["T2"]}, {s["GB"]}')
        Q(f's_lshl_b32 {sLo}, {s["G"]}, 17\ns_add_u32 {sGo}, {sLo}, {s["T2"]}')
        Q(f's_mul_i32 {s["T2"]}, {s["PF"]}, {16*KB - 512}\ns_add_u32 {sGb}, {s["T3"]}, {s["T2"]}\ns_lshl_b32 {s["T2"]}, {s["M"]}, 9\ns_add_u32 {sGb}, {sGb}, {s["T2"]}\ns_add_u32 {sGb}, {sGb}, {s["GB"]}')
        Q(f's_lshl1_add_u32 {sT4}, {s["SB"]}, {sTH}\ns_lshl1_add_u32 {s["T2"]}, {sT4}, {sKH}\ns_lshl_b32 {s["T2"]}, {s["T2"]}, 14\ns_add_u32 {sLo}, {sLo}, {s["T2"]}\ns_add_u32 {sLw}, {s["GB"]}, {s["T2"]}')
        Q(f'v_bfe_u32 {t1}, {vL}, 2, 2\nv_lshrrev_b32 {t2}, 1, {g}\nv_lshl_add_u32 {t1}, {t2}, 2, {t1}\nv_lshlrev_b32 {t3}, 7, {t1}\nv_bfe_u32 {t1}, {vL}, 3, 1\nv_lshl_add_u32 {t3}, {t1}, 6, {t3}')
        Q(f'v_and_b32 {t1}, 1, {vL}\nv_lshl_add_u32 {t3}, {t1}, 5, {t3}\nv_and_b32 {t1}, 1, {g}\nv_lshl_add_u32 {t3}, {t1}, 4, {t3}\nv_bfe_u32 {t1}, {vL}, 1, 1\nv_lshl_add_u32 {t3}, {t1}, 3, {t3}')
        b0 = V.alloc(); b1 = V.alloc()
        Q(f's_mul_i32 {s["T2"]}, {sKH}, {2048 + 64}\nv_xor_b32 {b0}, {s["T2"]}, {t3}\nv_xor_b32 {b1}, 64, {b0}')
        aD = [Win(b0), Win(b1)]
        aCW = V.alloc(); aCR = V.alloc()
        Q(f's_lshl_b32 {s["T2"]}, {sTH}, 10\ns_lshl_b32 {s["T3"]}, {sKH}, 9\ns_add_u32 {s["T2"]}, {s["T2"]}, {s["T3"]}\ns_add_u32 {s["T2"]}, {s["T2"]}, {SCR_CS}')
        Q(f'v_lshl_add_u32 {t1}, {g}, 4, {s["T2"]}\nv_lshl_add_u32 {aCW}, {j}, 5, {t1}')
        Q(f'v_and_b32 {t1}, 1, {g}\nv_lshlrev_b32 {t1}, 9, {t1}\nv_lshl_add_u32 {t1}, {j}, 2, {t1}\nv_lshl_add_u32 {t1}, {t2}, 11, {t1}\nv_add_u32 {aCR}, {SCR_CS}, {t1}')
        cA = V.alloc(4, 2); cB = V.alloc(4, 2); cT = V.alloc(2)
        for r in (cA, cB):
            for k in range(1, 4): Q(f'v_mov_b32 {r[k]}, 0')
        self.info['setupP'] = len(P.L); self.info['setupQ'] = len(Q.L)
        HB = {('F', i): AG.at(8*i, 4) for i in range(16)}; HB.update({('H', i): AG.at(8*i + 4, 4) for i in range(16)})
        ops = []
        def op3(u, ty, i):
            if ty == 'F':
                if u < 4: key, ad, st, ex = ('F1', i), aF[u], 512, 0
                else: key, ad, st, ex = ('S3', i >> 1), aH[u - 4], 256, (i & 1)*1024
            else:
                if u < 2: key, ad, st, ex = ('H1', i >> 1), aH[u], 256, (i & 1)*1024
                else: key, ad, st, ex = ('S2', i), aF[u - 2], 512, 0
            ops.append(dict(k='m', u=u, key=key, ad=ad, st=st, ex=ex, B=HB[(ty, i)], hk=(ty, i)))
        if o['order'] == 'pair':
            for i in range(16):
                for ty in 'FH':
                    for u in (0, 1): op3(u, ty, i)
            for i in range(16):
                for u in (2, 3): op3(u, 'F', i)
        else:
            for i in range(16):
                for u in range(4): op3(u, 'F', i)
                for u in (0, 1): op3(u, 'H', i)
        if o.get('o45') == 'all':
            for i in range(16):
                for u in (2, 3, 4, 5): op3(u, 'H', i)
            for u in (4, 5):
                for i in range(16): op3(u, 'F', i)
        elif o.get('o23') == 'mix':
            for i in range(16):
                for u in (2, 3): op3(u, 'H', i)
        else:
            for u in (2, 3):
                for i in range(16): op3(u, 'H', i)
        if o.get('o45') == 'all': pass
        elif o.get('o45') == 'mix2':
            for ty in 'HF':
                for i in range(16):
                    for u in (4, 5): op3(u, ty, i)
        elif o.get('o45', 'mix') == 'mix':
            for i in range(16):
                for u in (4, 5): op3(u, 'H', i)
            for u in (4, 5):
                for i in range(16): op3(u, 'F', i)
        else:
            for u in (4, 5):
                for ty in 'HF':
                    for i in range(16): op3(u, ty, i)
        NG, NR, LA = o['NG'], o['NR'], o['LA']
        GB = [AG.alloc(4, 4) for _ in range(NG)]
        TL = o['TL']
        o4 = lambda i, k: ops.append(dict(k='m', u=6 + k, key=('W4', i), ad=aD[k], st=1024, ex=0, B=None, hk=('g', i)))
        for i in range(43 - TL):
            for k in range(2): o4(i, k)
        for k in (1, 0):
            for i in range(43 - TL, 43): o4(i, k)
        RB = [AG.alloc(4, 4) for _ in range(NR)]
        csacc = {c: V.alloc(4, 2) for c in ('F1', 'H1', 'S2', 'S3')}
        cnt = {}
        def cs_op(key):
            c = key[0]; cnt[c] = cnt.get(c, 0) + 1
            return dict(k='c', key=key, ad=aCF if c in ('F1', 'S2') else aCH, first=cnt[c] == 1, last=cnt[c] == (16 if c in ('F1', 'S2') else 8))
        pre_keys = [k for k in self.issued if k[0] != 'W2'][:o['cs_pre']]
        pre_ops = [cs_op(k) for k in pre_keys]
        seen = set(pre_keys); ops2 = []; at = {}; fc = {}; nth = {}
        for n, p in enumerate(ops):
            if p['key'][0] != 'W4' and p['key'] not in seen:
                seen.add(p['key']); c = p['key'][0]; fc.setdefault(c, n); nth[c] = nth.get(c, -1) + 1
                lead, spc = o['cs_lead'].get(c, (0, 99))
                at.setdefault(max(0, min(n, fc[c] - lead + spc*nth[c])), []).append(p['key'])
        for n, p in enumerate(ops):
            ops2 += [cs_op(k) for k in at.get(n, [])] + [p]
        ops = ops2
        for n, p in enumerate(ops): p['R'] = RB[n % NR]; p['n'] = n
        for n, p in enumerate(pre_ops): p['R'] = Reg('a', 4*n, 4); p['n'] = -1
        N = len(ops)
        last_use = {p['key']: p['n'] for p in ops}
        last_op = {p['u']: p['n'] for p in ops if p['k'] == 'm'}
        first4 = min(p['n'] for p in ops if p.get('u', 0) >= 6)
        def reads(p):
            b = self.loc[p['key']]; w, off = b >> 4, (b & 15)*BLK
            pre = p['ad'].need(w); ad = p['ad'].r[w]
            if p['k'] == 'c': return pre + [Ins(f'ds_read_b128 {p["R"]}, {ad} offset:{off}', f'r{p["n"]}')]
            return pre + [Ins(f'ds_read_b64_tr_b16 {p["R"].sub(2*a, 2)}, {ad} offset:{off + p["ex"] + a*p["st"]}', f'r{p["n"]}') for a in range(2)]
        started = set()
        def mfma(p):
            if p['k'] == 'c':
                c = csacc[p['key'][0]]
                return Ins(f'v_mfma_f32_16x16x32_bf16 {c}, {delta}, {p["R"]}, {0 if p["first"] else c}')
            a = acc[p['u']] if p['u'] < 6 else (accK, accS)[p['u'] - 6]
            z = p['u'] not in started and p['u'] != 6
            started.add(p['u'])
            return Ins(f'v_mfma_f32_32x32x16_bf16 {a}, {p["R"]}, {p["B"] or slot[p["hk"]]}, {0 if z else a}')
        visible = set(self.issued)
        A.ext(sprinkle(P, self.dmas(o['b_pre2']), o.get('sp3', 12)))
        for p in pre_ops: A.ext(p['ad'].need(self.loc[p['key']] >> 4))
        A('@waitvm hst')
        self.stamp('h drained')
        for r in self.late_free + [self.vTRb, self.vTRf]: r.free()
        A('@waitlg0\ns_barrier')
        A.ext(self.signal(1))
        res = self.resx
        E = Asm()
        E(f'ds_read_b128 {res.sub(0, 4)}, {aRes}\nds_read_b128 {res.sub(4, 4)}, {aRes} offset:16')
        for q in range(len(pre_ops) + 4):
            if q < len(pre_ops): E.ext(reads(pre_ops[q]))
            if q >= 4: E.L.append(mfma(pre_ops[q - 4]))
        for q in range(LA):
            assert ops[q]['key'] in visible
            E.ext(reads(ops[q]))
        if o['q_early']: E.ext(Q); Q = Asm()
        A.ext(sprinkle(E, self.dmas(o['b_post2']), o.get('sp2', 14)))
        if o.get('l2fill2'):
            for srd in o['l2fill2']:
                if srd == 'W3': A(f's_lshr_b32 {s["T0"]}, s2, 3\ns_and_b32 {s["T1"]}, {s["W"]}, 1\ns_lshl1_add_u32 {s["T0"]}, {s["T0"]}, {s["T1"]}\ns_mul_i32 {s["T0"]}, {s["T0"]}, {172*128}\ns_mov_b32 {s["T2"]}, s38\ns_mov_b32 s38, {512*PITCH3}')
                else: A(f's_lshr_b32 {s["T0"]}, s2, 3\ns_lshl2_add_u32 {s["T0"]}, {s["T0"]}, {s["W"]}\ns_mul_i32 {s["T0"]}, {s["T0"]}, {86*128}')
                for q in range(3 if srd == 'W3' else 2): A(f'buffer_load_dword {self.vPv}, {self.v128}, {getattr(self, srd)}, {s["T0"]} offen sc1\ns_add_u32 {s["T0"]}, {s["T0"]}, 8192')
                A('@waitvm0')
                if srd == 'W3': A(f's_mov_b32 s38, {s["T2"]}')
            A(f's_mov_b32 {s["T0"]}, 60\nL_dly2:\ns_sub_u32 {s["T0"]}, {s["T0"]}, 1\ns_cmp_lg_u32 {s["T0"]}, 0\ns_cbranch_scc1 L_dly2')
        A.ext(self.visit('v2'))
        if o['one_poll']: self.poll_block(A, pa3, 1, self.mW16); A('@drained_vm\ns_barrier')
        else: self.poll_block(A, pa2, 1, '0xff'); A('@drained_vm')
        self.stamp('sync2 done')
        self.mark34 = len(A.L)
        acc = [V.alloc(16, 2) for _ in range(6)]
        accK, accS = acc[0], acc[1]
        LATH, LATD, LATS, VS, WE, VC = o['LATH'], o['LATD'], o['LATS'], o['vslack'], o['WE'], o['VC']
        horder = []; hfirst = {}; hlast = {}
        for p in ops:
            if 'hk' in p:
                if p['hk'] not in hfirst: hfirst[p['hk']] = p['n']; horder.append(p['hk'])
                hlast[p['hk']] = p['n']
        first_use = {}
        for p in ops: first_use.setdefault(p['key'], p['n'])
        sp = V.alloc(8, 2)
        cc = V.alloc(2); c1, c3 = cc[0], cc[1]; iv2 = V.alloc(2); iv = iv2[0]; tt = V.alloc(8, 2); go = [V.alloc(4, 2), V.alloc(4, 2)]
        cs_last = {p['key'][0]: p['n'] for p in pre_ops + ops if p['k'] == 'c' and p['last']}
        I = lambda text, tag=None: [Ins(x, tag) for x in text.split('\n')]
        tagof = lambda k: f'{k[0]}_{k[1]}'
        stage_of = lambda i: 1 if i < 15 else 2 if i < 29 else 3 if i < 36 else 4
        rq = []; pairw = {}
        for q, hk in enumerate(horder):
            ty, i = hk
            if ty == 'g':
                sg = stage_of(i); k = i - (0, 15, 29, 36)[sg - 1]
                code = I(f's_add_u32 {sGl}, {sLo if sg == 1 else sLw}, {(0, WS_G, WS_H, WS_H + 8192)[sg - 1] + (k >> 2)*4096}') if k % 4 == 0 else []
                rq.append(dict(id=hk, dl=hfirst[hk], cost=VC, stage=min(sg, 3) if o['merge34'] else sg, lat=LATD if sg == 2 else LATH, code=code, srd=self.OUT if sg == 1 else self.WS, off=(k & 3)*1024))
                if o['PW'] and hk not in pairw and i < 42 and stage_of(i) == stage_of(i + 1): pairw[hk] = ('g', i + 1); pairw[('g', i + 1)] = None
            else:
                code = I(f's_add_u32 {sHl}, {sHl}, 4096') if q and q % 4 == 0 else []
                assert i >> 1 == q >> 2
                code += I(f'buffer_load_dwordx4 {HB[hk]}, {vHl[ty]}, {self.WS}, {sHl} offen offset:{(i & 1)*2048} sc1', tagof(hk))
                rq.append(dict(id=hk, dl=hfirst[hk], cost=VC, code=code))
                if o['PW'] and q >= 4 and q % 2 == 0: pairw[hk] = horder[q + 1]
        for k in range(2):
            rq.append(dict(id=('st', k), dl=last_op[0] - o.get('st_lead', 10), cost=VC, ev='Q', code=I(f'buffer_load_dwordx4 {sp.sub(4*k, 4)}, {self.vL16}, {self.WS}, {sSl} offen offset:{k*1024} sc1')))
        rq.sort(key=lambda r: r['dl'])
        K1 = -2*math.sqrt(2/math.pi)*LOG2E
        chA = []
        def cs_items(c):
            a = csacc[c]; full = c in ('F1', 'S2')
            off = {'F1': 0, 'H1': 2048, 'S2': 2048 + 128, 'S3': 256}[c]
            for ror in ((8,) if full else (8, 4)):
                for r in range(4): chA.append(('v', ('op', cs_last[c] + 2), I(f'v_add_f32_dpp {a[r]}, {a[r]}, {a[r]} row_ror:{ror} row_mask:0xf bank_mask:0xf'), None))
            L = Asm(); L(f's_mov_b64 exec, {"0x00ff00ff" if full else "0x000f000f"}'); L(f'ds_write_b128 {aCW}, {a} offset:{off}', 'wr' + c); L('s_mov_b64 exec, -1')
            chA.append(('d', None, L.L, 'wr' + c))
        def corr_items(u, cls):
            chA.append(('d', ('ev', ['bar_wr' + c for c in cls], 0), I(f'ds_read_b32 {cT[0]}, {aCR} offset:{u*64}\nds_read_b32 {cT[1]}, {aCR} offset:{u*64 + 1024}'), f'crd{u}'))
            for k, x in enumerate((f'v_add_f32 {cT[0]}, {cT[0]}, {cT[1]}', f'v_cvt_pk_bf16_f32 {cT[1]}, {cT[0]}, {cT[0]}', f'v_and_b32 {cT[1]}, 0xffff0000, {cT[1]}',
                                   f'v_sub_f32 {cT[0]}, {cT[0]}, {cT[1]}', f'v_cvt_pk_bf16_f32 {cA[0]}, {cT[1]}, {cT[0]}')):
                chA.append(('v', ('ev', [f'crd{u}'], 100), I(x), None))
            chA.append(('m', ('both', first_op[u], 'stats'), I(f'v_mfma_f32_32x32x16_bf16 {acc[u]}, {cA}, {cB}, {acc[u]}'), f'corr{u}'))
        first_op = {}
        for p in ops:
            if p['k'] == 'm': first_op.setdefault(p['u'], p['n'])
        ev = {}; arr = {}; evop = {}
        for x in Q.L: chA.append(('v', None, [x], None))
        if Q.L: chA[-1] = chA[-1][:3] + ('Q',)
        else: ev['Q'] = 0
        for c in sorted(('F1', 'H1'), key=cs_last.get): cs_items(c)
        corr_items(0, ('F1', 'H1')); corr_items(1, ('F1', 'H1'))
        cs_items('S2'); corr_items(2, ('F1', 'S2')); corr_items(3, ('F1', 'S2'))
        cs_items('S3'); corr_items(4, ('S2', 'S3')); corr_items(5, ('S2', 'S3'))
        chB = []; chC = []; chD = []; chP = []; vP = [self.vPv] + [V.alloc() for _ in range(3)]
        stc = (f'v_add_f32 {sp[0]}, {sp[0]}, {sp[2]}\nv_add_f32 {sp[1]}, {sp[1]}, {sp[3]}\nv_add_f32 {sp[4]}, {sp[4]}, {sp[6]}\nv_add_f32 {sp[5]}, {sp[5]}, {sp[7]}\n'
               f'v_add_f32 {sp[0]}, {sp[0]}, {sp[4]}\nv_add_f32 {sp[1]}, {sp[1]}, {sp[5]}\nv_mov_b32 {sp[2]}, {sp[0]}\nv_mov_b32 {sp[3]}, {sp[1]}\nv_nop\n'
               f'v_permlane32_swap_b32 {sp[0]}, {sp[2]}\nv_permlane32_swap_b32 {sp[1]}, {sp[3]}\nv_add_f32 {sp[0]}, {sp[0]}, {sp[2]}\nv_add_f32 {sp[1]}, {sp[1]}, {sp[3]}\n'
               f'v_mul_f32 {sp[0]}, {fhex(-1/512)}, {sp[0]}\nv_fma_f32 {sp[1]}, {sp[1]}, {self.sInv512}, {self.vEps}\nv_fma_f32 {iv}, -{sp[0]}, {sp[0]}, {sp[1]}\nv_max_f32 {iv}, {iv}, {self.vEps}\n'
               f'v_rsq_f32 {sp[2]}, {iv}\nv_cvt_pk_bf16_f32 {cB[0]}, {sp[0]}, {sp[0]}\nv_mul_f32 {c1}, {fhex(K1)}, {sp[2]}\nv_mul_f32 {sp[3]}, {sp[2]}, {sp[2]}\nv_mul_f32 {c3}, {fhex(0.044715)}, {c1}\nv_mul_f32 {c3}, {c3}, {sp[3]}')
        for x in I(stc): chB.append(('v', ('arr', ('st', 1)), [x], None))
        chB[-1] = chB[-1][:3] + ('stats',)
        pubs = {1: 1, 3: 2, 5: 3} if o['merge34'] else {1: 1, 3: 2, 4: 3, 5: 4}
        for u in range(6):
            a = acc[u]; out = go[u & 1]
            st = []
            for txt in ('v_mul_f32 {t}, {a}, {a}', 'v_fma_f32 {t}, {t}, {c3}, {c1}', 'v_mul_f32 {t}, {t}, {a}', 'v_exp_f32 {t}, {t}', 'v_mul_f32 {b}, {a}, {b}', 'v_fma_f32 {t}, {t}, {iv}, {iv}', 'v_rcp_f32 {t}, {t}', 'v_mul_f32 {b}, {b}, {t}'):
                st.append([txt.format(t=tt[v], a=a[v], b=a[8+v], c1=c1, c3=c3, iv=iv) for v in range(8)])
            seq = st[0] + st[1][:2] + st[2][:1]
            for v in range(8):
                if v + 2 < 8: seq.append(st[1][v+2])
                if v + 1 < 8: seq.append(st[2][v+1])
                seq.append(st[3][v])
            seq += [st[5][0]]
            for v in range(8):
                if v + 1 < 8: seq.append(st[5][v+1])
                seq += [st[4][v], st[6][v]]
            seq += st[7] + [f'v_cvt_pk_bf16_f32 {out[d]}, {a[8+2*d]}, {a[9+2*d]}' for d in range(4)]
            if u in o['pk_units']:
                P2 = lambda r, v: r.sub(2*v, 2)
                t_ = [P2(tt, v) for v in range(4)]; a2 = [P2(a, v) for v in range(4)]; b2 = [a.sub(8 + 2*v, 2) for v in range(4)]
                seq = [f'v_pk_mul_f32 {t_[v]}, {a2[v]}, {a2[v]}' for v in range(4)]
                seq += [f'v_pk_fma_f32 {t_[v]}, {t_[v]}, {cc}, {cc} op_sel:[0,1,0] op_sel_hi:[1,1,0]' for v in range(4)]
                seq += [f'v_pk_mul_f32 {t_[v]}, {t_[v]}, {a2[v]}' for v in range(4)] + st[3]
                seq += [f'v_pk_fma_f32 {t_[v]}, {t_[v]}, {iv2}, {iv2} op_sel_hi:[1,0,0]' for v in range(4)] + st[6]
                seq += [f'v_pk_mul_f32 {b2[v]}, {a2[v]}, {b2[v]}' for v in range(4)]
                seq += [f'v_pk_mul_f32 {b2[v]}, {b2[v]}, {t_[v]}' for v in range(4)]
                seq += [f'v_cvt_pk_bf16_f32 {out[d]}, {a[8+2*d]}, {a[9+2*d]}' for d in range(4)]
            for ln in seq: chB.append(('v', ('ev', [f'corr{u}', f'done{u}'], 56), I(ln), None, u))
            L = Asm()
            base = (sGo, sGa, sGb)[u >> 1]; add = (0, 16*KB, WS_G, WS_G + 16*KB, WS_H, WS_H + 8*KB)[u]
            if add: L(f's_add_u32 {sTs}, {base}, {add}')
            so = sTs if add else base
            if u in (2, 3): L(f'buffer_store_dwordx4 {out}, {self.vL16}, {self.WS}, {so} offen sc1', tag=f'gst{u}')
            else: self.store2(L, 'dwordx4', out, self.vL16, so, 0, f'gst{u}', self.OUT if u < 2 else None, wrap=True)
            chB.append(('s', {4: ('ev', ['stage1'], 0), 5: ('iss', ('g', 14))}.get(u), L.L, f'gst{u}', u))
            if u == o.get('res_after', 3):
                for d in range(8):
                    for x in I(f'v_lshlrev_b32 {accK[2*d]}, 16, {res[d]}\nv_and_b32 {accK[2*d+1]}, 0xffff0000, {res[d]}'): chB.append(('v', None, [x], None))
                chB[-1] = chB[-1][:3] + ('acc4',)
            if u in pubs:
                sg = pubs[u]; k = self.nlabel; self.nlabel += 1
                pm = self.mW16 if o['one_poll3'] else '0xffff'
                chC.append(('f', ('ev', [f'bar_gst{u}'], 0), self.signal(1 + sg), f'pub{sg}'))
                chP.append(('v', ('op', first4 + 2*(0, 15, 29, 36)[sg - 1] - o['plead'][sg - 1]), [], None))
                chP.append(('f', ('ev', [f'pub{sg}'], o['poll_after'][sg - 1]), I(f's_mov_b64 exec, {pm}\n{self.poll_ld(pa3, 1 + sg, vP[4 - sg])}\ns_mov_b64 exec, -1'), f'poll{sg}'))
                chD.append(('v', ('arr', f'poll{sg}'), I(f'v_cmp_eq_u32 vcc, 0, {vP[4 - sg]}\ns_and_b64 vcc, vcc, {pm}\ns_cbranch_vccnz L_late{k}\nL_back{k}:'), f'chk{sg}' if o['one_poll3'] else f'stage{sg}'))
                self.tail(f'L_late{k}:')
                if o['stamps']: self.tail(f's_add_u32 s97, s97, {(4 if o["one_poll3"] else 1) << (8*(sg - 1))}')
                self.poll_block(self.tail, pa3, 1 + sg, pm, vP[4 - sg]); self.tail(f's_branch L_back{k}')
        chE = []
        for k in self.issued: arr[k] = 0
        now = 0; vm_free = 0; last_arr = 0; mf_free = 0; n_done = -1; last_bar = 0; nbar = 0
        cur = []; freed = set(); est = {}; idle = 0; win = []; slot = {}; pool = list(GB); back = {}
        def emit(code):
            nonlocal now
            A.ext(code); now += 4*sum(max(cost(x), 1 if x.mn.startswith('@wait') else 0) + (2 if x.mn.startswith('s_cbranch') else 4 if x.text == ';dual_begin' else 0) for x in code)
        def vm_issue(idk, c, lat):
            nonlocal vm_free, last_arr
            st_ = max(vm_free, now); tot = c
            for (c_, a_) in reversed(win):
                tot += c_
                if tot > o['WIN']*VC: st_ = max(st_, a_); break
            vm_free = st_ + c
            last_arr = max(last_arr + c, st_ + lat); arr[idk] = last_arr; win.append((c, last_arr))
            self.trace.append((n_done, now, idk, last_arr))
        def ready_time(cond):
            if cond is None: return 0
            if cond[0] == 'op': return 0 if n_done >= cond[1] else None
            if cond[0] == 'both': return ev[cond[2]] + 8 if n_done >= cond[1] and cond[2] in ev else None
            if cond[0] == 'arr': return arr.get(cond[1])
            if cond[0] == 'iss': return 0 if cond[1] in arr else None
            if all(e in ev for e in cond[1]): return max(ev[e] for e in cond[1]) + cond[2]
            return None
        def pick_request():
            best = None
            for r in rq:
                if 'stage' in r and (f'stage{r["stage"]}' not in ev or not pool): break
                if 'ev' in r and r['ev'] not in ev: continue
                best = r; break
            if self.stream and self.free_blocks:
                dl = first_use[self.stream[0]] - LA - o['dma_lead']
                if best is None or dl < best['dl']:
                    key = self.stream[0]; c = VC*(2 if key[0] in ('H1', 'S3') else 1)
                    cur.extend([(key, c, LATD)] + self.dma_next()); return True
            if best is None: return False
            if 'stage' in best:
                slot[best['id']] = pool.pop(0)
                best['code'] = best['code'] + I(f'buffer_load_dwordx4 {slot[best["id"]]}, {self.vL16}, {best["srd"]}, {sGl} offen offset:{best["off"]} sc1', tagof(best['id']))
            rq.remove(best); cur.extend([(best['id'], best['cost'], best.get('lat', LATH))] + best['code'])
            return True
        def step_vm(prefix=False):
            if not cur:
                if vm_free > now + VS or not pick_request(): return False
                if prefix or len(cur) > 2:
                    emit(cur[1:-1]); del cur[1:-1]
                    if prefix: return True
                    step_chain(chB, 'v', 8) or step_chain(chA, 'v', 8)
            meta, code = cur; del cur[:]
            emit([code]); vm_issue(*meta); return True
        def step_chain(ch, kinds, room):
            if not ch or ch[0][0] not in kinds: return False
            k, cond, code, e = ch[0][:4]; t = ready_time(cond)
            if t is None or t > now: return False
            if k == 'v' and 4*sum(cost(x) for x in code) > room + 3 and len(code) == 1: return False
            ch.pop(0); emit(code)
            if k == 's': vm_issue(e, VC, LATS if e in ('gst2', 'gst3') else LATH)
            if k == 'f': vm_issue(e, 20, LATH)
            if e: ev[e] = now; evop[e] = n_done
            return True
        def bar_need(n):
            if n + LA < N and ops[n + LA]['key'] not in visible:
                return {ops[q_]['key'] for q_ in range(n + LA, min(N, n + LA + o['VMIN']))}
            for u_ in pubs:
                if f'bar_gst{u_}' not in ev and arr.get(f'gst{u_}', 1 << 30) + o['bwait'][pubs[u_] - 1] <= now: return set()
                if f'stage{pubs[u_]}' not in ev and ev.get(f'chk{pubs[u_]}', 1 << 30) + o['bwait'][pubs[u_] - 1] <= now: return set()
            if n - last_bar < o['BMIN']: return None
            nfree = sum(1 for k, lu in last_use.items() if lu < n and k not in freed and k in self.loc) + (0 if 'res' in freed else 2)
            if self.stream and len(self.free_blocks) <= o.get('FLOW', 1) and nfree >= min(o['FMIN'], len(self.stream)): return set()
            if chA and chA[0][1] and chA[0][1][0] == 'ev' and chA[0][1][1][0].startswith('bar_wr') and ready_time(chA[0][1]) is None and now >= max(ev.get(e[4:], 0) for e in chA[0][1][1]) + 60: return set()
            if not self.stream and 'xb' not in ev and n >= N - 2*TL - 8: return set()
            return None
        def op_ready(n):
            p = ops[n]; t = mf_free
            k = p.get('hk')
            if k is not None:
                k = pairw.get(k) or k
                if k not in arr: return None
                t = max(t, arr[k])
            if n == first4 and 'acc4' not in ev: return None
            for k in bar_need(n) or ():
                if k not in arr: return None
                t = max(t, arr[k])
            return t
        def do_barrier(n, need):
            nonlocal now, last_bar, nbar, chE
            L = Asm()
            for c in ('F1', 'H1', 'S2', 'S3'):
                if 'wr' + c in ev and 'bar_wr' + c not in ev: L(f'@waitlg wr{c}'); ev['bar_wr' + c] = now
            for u_ in pubs:
                if f'bar_gst{u_}' not in ev and arr.get(f'gst{u_}', 1 << 30) <= now: L(f'@waitvm gst{u_}'); ev[f'bar_gst{u_}'] = now
                if f'stage{pubs[u_]}' not in ev and f'chk{pubs[u_]}' in ev: ev[f'stage{pubs[u_]}'] = now; evop[f'stage{pubs[u_]}'] = n_done
            vis = [k for k in self.issued if k not in visible and (k in need or arr[k] <= now - o['vmargin'])]
            if vis:
                newest = max(vis, key=self.issued.index)
                visible.update(self.issued[:self.issued.index(newest) + 1]); L(f'@waitvm {tagof(newest)}')
            L('s_barrier'); self.trace.append((n_done, now, 'BAR', newest if vis else None)); emit(L.L); now += o['barc'] - 8; last_bar = n; nbar += 1
            for k, lu in last_use.items():
                if lu < n and k not in freed and k in self.loc:
                    freed.add(k); self.free_blocks.append(self.loc[k])
            if 'res' not in freed and n > 0:
                freed.add('res'); self.free_blocks += [self.resb, self.resb + 1]
            if not self.stream and 'xb' not in ev:
                fb = sorted(self.free_blocks)
                xb = next((b for b in fb if all(b + k in fb for k in range(4))), None)
                if xb is not None:
                    ev['xb'] = now
                    X = Asm()
                    X(f's_lshl_b32 {s["T0"]}, {s["W"]}, 12\ns_add_u32 {s["T0"]}, {s["T0"]}, {xb*BLK}\nv_add_u32 {t1}, {s["T0"]}, {self.vL16}')
                    X(f's_xor_b32 {s["T1"]}, {s["W"]}, 2\ns_lshl_b32 {s["T1"]}, {s["T1"]}, 12\ns_add_u32 {s["T1"]}, {s["T1"]}, {xb*BLK}\nv_add_u32 {t2}, {s["T1"]}, {self.vL16}')
                    X(f'v_and_b32 {t3}, 31, {vL}\nv_lshlrev_b32 {t3}, 10, {t3}\nv_lshrrev_b32 {aRes}, 5, {vL}\nv_lshl_add_u32 {t3}, {aRes}, 5, {t3}')
                    X(f's_lshl2_add_u32 {s["T0"]}, {s["G"]}, {sT4}\ns_lshl_b32 {s["T0"]}, {s["T0"]}, 15\ns_add_u32 {s["T0"]}, {s["T0"]}, {self.sC128}\ns_lshl_b32 {s["T1"]}, {sKH}, 6\ns_add_u32 {s["T0"]}, {s["T0"]}, {s["T1"]}')
                    chE += [('v', None, [x], None) for x in X.L]
                    chE += [('d', ('op', min(N - 1, last_op[7] + 2)), I(f'ds_write_b128 {t1}, {accS.sub(4*k, 4)} offset:{k*1024}'), None) for k in range(4)]
        for n in range(N):
            p = ops[n]
            guard = 0
            while True:
                guard += 1; assert guard < 100000, f'scheduler stuck at op {n}'
                slack = 0
                if chB and ready_time(chB[0][1]) is not None:
                    u_ = chB[0][4] if len(chB[0]) > 4 else None
                    slack = 4*(o['budu'].get(str(u_), o['bud']) - 6)
                    if u_ in o['pk_units'] and ready_time(chB[0][1]) <= now: slack = 4000
                t = op_ready(n)
                if t is not None and t == mf_free and bar_need(n) is not None: t -= o['barc']
                if t is not None and now >= t + slack: break
                room = (t + slack - now) if t is not None else 1000
                if chA and chA[0][0] == 'm' and now >= mf_free - 4:
                    t0_ = max(now, mf_free)
                    if step_chain(chA, 'm', 0): now = t0_ + 8; mf_free = t0_ + 32; continue
                if room > 100 and bar_need(n) == set(): do_barrier(n, set()); continue
                if room > 40 and step_vm(): continue
                if step_chain(chC, 'fv', 1000) or step_chain(chP, 'fv', 1000) or step_chain(chD, 'fv', 1000): continue
                if step_chain(chA, 'v' if room <= 40 else 'vd', room): continue
                if step_chain(chB, 'vs', room) or step_chain(chE, 'v', room): continue
                if t is not None and now >= t: break
                now += 4; idle += 4
            if chA and chA[0][0] == 'm' and bar_need(n) is None:
                t0_ = max(now, mf_free)
                if step_chain(chA, 'm', 0):
                    now = t0_ + 8; mf_free = t0_ + 32
                    while now < mf_free and (step_chain(chA, 'vd', mf_free - now) or step_vm() or step_chain(chB, 'vs', mf_free - now)): pass
            need = bar_need(n)
            if need is not None: do_barrier(n, need)
            if n == first4: self.stamp('p3 mfma done'); est['p3'] = now; est['idle3'] = idle
            elif o.get('fine') and n % o['fine'] == 0 and n: self.stamp(f'op {n}'); est[n] = now
            if pairw.get(p.get('hk')) and hfirst[p['hk']] == n: A(f'@waitvm {tagof(pairw[p["hk"]])}')
            if p.get('hk') and hfirst[p['hk']] == n and pairw.get(p['hk'], 1): now += 4
            t0_ = now = max(now, mf_free)
            A.L.append(mfma(p)); n_done = n; now += o.get('mfc', 6)
            mf_free = t0_ + (32 if p['k'] == 'm' else 16)
            if p['k'] == 'm' and last_op[p['u']] == n: ev[f'done{p["u"]}'] = now
            if n and 'hk' in ops[n - 1] and hlast[ops[n - 1]['hk']] == n - 1: pool.append(ops[n - 1]['B'] or slot[ops[n - 1]['hk']])
            if (n + 1) % WE == 0 and n + 1 < N: emit([Ins(f'@waitlg r{min(N - 1, n + WE)}')])
            step_vm(prefix=True)
            now = max(now, t0_ + 8)
            if n + LA < N: emit(reads(ops[n + LA]))
            if cur: step_vm()
            else: step_chain(chA, 'd', 0) or step_chain(chE, 'd', 0) or step_chain(chC, 'f', 0) or step_chain(chP, 'fv', 1000) or step_chain(chD, 'fv', 1000)
            if n + LA + 1 < N and ops[n + LA + 1]['key'] in self.loc: emit(ops[n + LA + 1]['ad'].need(self.loc[ops[n + LA + 1]['key']] >> 4))
        assert 'xb' in ev
        for it in chE: emit(it[2])
        assert not (chA or chB or chC or chD or chP or rq or cur or self.stream), (len(chA), len(chB), len(chC), len(rq), len(self.stream))
        est['p4'] = now; est['idle'] = idle
        self.info.update(N=N, first4=first4, nbar=nbar, npre=len(pre_keys), est=est, evop={k: v for k, v in evop.items() if k[:3] in ('cor', 'gst', 'sta')})
        dbg = o.get('dbg', '')
        if dbg:
            new = []; nv = 0
            for x in A.L[self.mark34:]:
                if 'W' in dbg:
                    if x.kind in ('mfma', 'ds') or x.mn in ('s_barrier', '@waitvm', '@waitlg') or x.mn.startswith('s_cbranch') or (x.kind == 'valu' and ('_f32' in x.mn or 'cmp' in x.mn or 'permlane' in x.mn)): continue
                    if x.kind == 'vmem':
                        k_ = (x.tag or 'x_').split('_')[0]
                        cls = {'F1': '3', 'H1': '3', 'S2': '3', 'S3': '3', 'W4': '4', 'F': 'h', 'H': 'h', 'g': 'g'}.get(k_, 's')
                        sub = 'b' if x.tag in ('gst2', 'gst3') else 'a' if (x.tag or '').startswith('gst') else 'f' if x.tag == 'flag' else 'p' if x.mn == 'buffer_load_dword' else 't'
                        if cls == 'g' and 15 <= int(x.tag[2:]) < 29 and '2' in dbg: continue
                        if cls in dbg or (cls == 's' and sub in dbg): continue
                        x.defs = set(); x.tag = f'z{nv}'; nv += 1; new.append(x)
                        if nv > 30: new.append(Ins(f'@waitvm z{nv - 30}'))
                        continue
                if 'M' in dbg and x.kind == 'mfma':
                    y = Ins('s_nop 0'); y.uses = set(x.srcAB); new.append(y); continue
                if 'V' in dbg and x.kind == 'valu' and '_f32' in x.mn: continue
                if 'R' in dbg and x.kind == 'ds' and x.mn.startswith('ds_read_b64_tr'):
                    self.dropped.add(x.tag); continue
                if 'D' in dbg and x.kind == 'vmem' and x.arg == 'dma':
                    self.dropped.add(x.tag); continue
                if 'L' in dbg and x.kind == 'vmem' and x.mn == 'buffer_load_dwordx4' and x.arg != 'dma':
                    self.dropped.add(x.tag); continue
                if 'T' in dbg and x.kind == 'vmem' and x.mn == 'buffer_load_dword' and not x.defs: continue
                if 'B' in dbg and x.mn == 's_barrier': continue
                if x.kind == 'pseudo' and x.mn in ('@waitvm', '@waitlg') and x.arg[0] in self.dropped: continue
                new.append(x)
            if 'W' in dbg: new.append(Ins('@waitvm0'))
            A.L[self.mark34:] = new
        self.stamp('p4 mfma done')
        A('@waitlg0\ns_barrier')
        rx = acc[2]
        for k in range(4): A(f'ds_read_b128 {rx.sub(4*k, 4)}, {t2} offset:{k*1024}')
        for h in range(2):
            for d in range(4*h, 4*h + 4): A(f'v_pk_add_f32 {accK.sub(2*d, 2)}, {accK.sub(2*d, 2)}, {rx.sub(2*d, 2)}')
            for d in range(4): A(f'v_cvt_pk_bf16_f32 {go[h][d]}, {accK[8*h + 2*d]}, {accK[8*h + 2*d + 1]}')
            A(f'buffer_store_dwordx4 {go[h]}, {t3}, {self.OUT}, {s["T0"]} offen offset:{16*h} {o.get("out_aux", "")}')
        self.stamp('out stored')

    def visit(self, name):
        if name not in (self.o['visit'] or {}): return []
        L = Asm()
        L('s_mov_b64 exec, 0')
        for k in range(len(self.o['visit'][name])): L(f's_cmp_eq_u32 {self.s["W"]}, {k}\ns_cbranch_scc1 L_vis_{name}_{k}')
        L(f'L_ret_{name}:\ns_mov_b64 exec, -1')
        return L.L

    def place_stubs(self, L):
        import subprocess, re
        txt = '.amdgcn_target "amdgcn-amd-amdhsa--gfx950"\n.text\n' + '\n'.join(x.text for x in L if x.kind != 'dir') + '\nL_code_end:\n'
        txt += ''.join(f'L_vis_{n}_{k}:\n' for n, ps in self.o['visit'].items() for k in range(len(ps)))
        open('_sz.s', 'w').write(txt)
        subprocess.run(['clang', '-x', 'assembler', '-target', 'amdgcn-amd-amdhsa', '-mcpu=gfx950', '-c', '_sz.s', '-o', '_sz.o'], check=True)
        d = subprocess.run(['llvm-objdump', '-d', '--mcpu=gfx950', '_sz.o'], capture_output=True, text=True).stdout
        sizes = [4*len(m.group(1).split()) for m in re.finditer(r'// [0-9A-F]{12}: ([0-9A-F ]+)', d)]
        real = [x for x in L if x.kind not in ('dir', 'label')]
        assert len(sizes) == len(real), (len(sizes), len(real))
        size = {id(x): z for x, z in zip(real, sizes)}
        owner = {p: n for n, ps in self.o['visit'].items() for p in ps}
        end = max(i for i, x in enumerate(L) if x.text == 'L_main_end:')
        out = []; addr = None; page = 0; stubs = {}; full = True
        EX = {('s', 126), ('s', 127)}
        for i, x in enumerate(L):
            if x.text == 'L_body:': addr = 0; self.info['pre_bytes'] = sum(size.get(id(y), 0) for y in L[:i])
            if addr is not None and x.kind not in ('dir', 'label') and i < end:
                if addr >= page*4096 and full:
                    if page in owner:
                        stubs.setdefault(owner[page], []).append(len(out)); out.append(None); addr += 4
                    page += 1
                addr += size[id(x)]
                if x.defs & EX: full = x.mn.startswith('s_mov') and x.text.endswith(', -1')
            out.append(x)
        res = []
        where = {}
        for n in self.o['visit']:
            for k, pos in enumerate(stubs.get(n, [])): where[pos] = (n, k, len(stubs[n]))
        for i, x in enumerate(out):
            if x is None:
                n, k, tot = where[i]
                res += [Ins(f'L_vis_{n}_{k}:'), Ins(f's_cbranch_execz L_ret_{n}')]
            else: res.append(x)
        for n in self.o['visit']:
            for k in range(len(stubs.get(n, [])), 4): res = [Ins('s_nop 0') if x.text == f's_cbranch_scc1 L_vis_{n}_{k}' else x for x in res]
        self.info['pages'] = page
        return res

    def finish(self):
        A, s, o = self.A, self.s, self.o
        if o['stamps']:
            A('@waitvm0')
            self.stamp('end')
            k = self.nstamp - 1
            A(f'@raw 1\nv_writelane_b32 {self.vstamp}, s97, 60\nv_writelane_b32 {self.vstamp}, s98, 61\ns_memrealtime s[98:99]\ns_waitcnt lgkmcnt(0)\nv_writelane_b32 {self.vstamp}, s98, 62\nv_writelane_b32 {self.vstamp}, {self.sstamp[2*(k % 2)]}, {k}\nv_writelane_b32 {self.vstamp}, s100, 63\n@raw 0')
            A(f's_lshl_b32 {s["T0"]}, s2, 10\ns_lshl_b32 {s["T1"]}, {s["W"]}, 8\ns_add_u32 {s["T0"]}, {s["T0"]}, {s["T1"]}\ns_add_u32 {s["T0"]}, {s["T0"]}, {o["ws_base"] + WS_TS}')
            A(f'v_lshlrev_b32 {self.t1}, 2, {self.vL}\nbuffer_store_dword {self.vstamp}, {self.t1}, {self.WS}, {s["T0"]} offen')
        if o.get('pad_to'):
            A(f'@raw 1\ns_waitcnt vmcnt(0)\nL_padloop:\n{o.get("pad_clk", "s_memrealtime")} s[98:99]\ns_waitcnt lgkmcnt(0)\ns_sub_u32 s98, s98, s100\ns_cmp_lt_u32 s98, {o["pad_to"]}\ns_cbranch_scc1 L_padloop\n@raw 0')
        A('L_main_end:\ns_endpgm')

    def build(self):
        self.phase1(); self.phase2(); self.phase34(); self.finish()
        L = resolve_waits(self.A.L)
        L, nn = pad_hazards(L)
        L, T2 = self.expand_dual(L)
        T = [x for x in self.tail.L if x.kind != 'pseudo'] + T2
        if self.o['visit']: L = self.place_stubs(L + T); T = []
        body = '\n'.join(('' if x.kind == 'label' else '    ') + x.text for x in L + T)
        hdr = open('cdna_kernels/' + NAME + '.s.ref').read().split('; Override launch')[0]
        txt = hdr + f'; @launch grid=(256,1,1) block=(256,1,1) lds=163840\n.amdgcn_target "amdgcn-amd-amdhsa--gfx950"\n.text\n.globl {NAME}_kernel\n.p2align 8\n.type {NAME}_kernel,@function\n{NAME}_kernel:\n'
        txt += body + '\n    s_endpgm\nL_code_end:\n'
        txt += f'.section .rodata,"a"\n.p2align 6\n.amdhsa_kernel {NAME}_kernel\n  .amdhsa_next_free_vgpr 512\n  .amdhsa_next_free_sgpr 102\n  .amdhsa_accum_offset 256\n  .amdhsa_group_segment_fixed_size 0\n  .amdhsa_kernarg_size 80\n  .amdhsa_user_sgpr_count 2\n  .amdhsa_user_sgpr_kernarg_segment_ptr 1\n  .amdhsa_system_sgpr_workgroup_id_x 1\n  .amdhsa_float_denorm_mode_32 3\n.end_amdhsa_kernel\n'
        self.info.update(ninstr=len(L), nops=nn, vmax=self.V.hi, amax=self.AG.hi, smax=self.S.hi)
        return txt

if __name__ == '__main__':
    import json
    kw = json.loads(sys.argv[2]) if len(sys.argv) > 2 else {}
    G = Gen(**kw); txt = G.build()
    open(sys.argv[1], 'w').write(txt)
    print(G.info)
    if kw.get('trace'):
        for t in G.trace: print(t)
```

```python
import sys, math, struct
from asmlib import *

NAME = 'sequential_preLN__sliding_local_dilated__geglu_ffn__prompt'
KB = 1024
WS_H, WS_ST, WS_FL, WS_G, WS_O = 0, 128*KB, 136*KB, 256*KB, 640*KB
FL_SLOW = 2*KB
WS_TS = 16 << 20
WS_SIZE = 17 << 20
PITCH3 = 2752
BLK = 4096
L_HALO = 0
L_X = 4 * BLK
L_W = 10 * BLK
L_SCR = 39 * BLK
SCR_TB = L_SCR
SCR_HP = L_SCR + 1280
SCR_CS = L_SCR
def f2u(x): return struct.unpack('<I', struct.pack('<f', x))[0]
def fhex(x): return hex(f2u(x))
LOG2E = 1.4426950408889634

DEF = dict(one_poll=False, one_poll3=True, bwait=(250, 150, 0, 0), merge34=True, pk_units=[5], budu={}, khalf=False, c1_from=110, sp0b=10, v0_at=-2, salu16=1, minlg_until=5, ktab=[list(range(8))]*4, b_pre1=4, b_pre2=4, topup=8, n1a=0, n1b=7, HS=6, k0=7, vgap0=2, vgap=3, cs_lead={'S2': (16, 1), 'S3': (20, 2)}, plead=(50, 44, 44, 44), TL=4, cs_pre=24, q_early=False, LATH=380, LATD=580, LATS=700, WE=4, VC=80, PW=True, poll_after=(900, 900, 800, 800), WIN=99, dma_lead=16, VMIN=10, BMIN=10, FMIN=5, barc=32, vmargin=300, visit={'v0': [1, 2, 3], 'v1': [4, 5, 6]}, jump_at=76,
           stamps=False, order='pair', BI=16, LA=7, GLA=8, NG=20, NR=12, bud=7, b_epi=0, b_post1=4, b_o=5, b_post2=4,
           pub_delay=10, poll_lead=8, force_slow=False, w2pre=7, LO=5, HL=5, sp0=2, g_sc1=False, o_in_ws=False,
           pf={'wq': 's0', 'q3': 'sb', 'wo': 0, 'o3': 2, 'o': 4, 'w3': 4, 'h': 4, 'wd': 4}, vslack=200, w2a=0, w2b=3, rot2=0, rot3=0, ws_base=0, n_stats=56, gt_at=40)

def cost(x):
    if x.kind in ('pseudo', 'label', 'dir'): return 0
    if x.is_trans() or x.mn.startswith('v_permlane') or x.kind == 'mfma': return 2
    return 1

def safe_points(code):
    ok = []; exec_part = False
    EX = {('s', 126), ('s', 127)}
    n = len(code)
    for i in range(n + 1):
        scc_live = False
        for k in range(i, n):
            x = code[k]
            if x.kind == 'label': scc_live = True; break
            if x.mn.startswith('s_cselect') or x.mn.startswith('s_cbranch') or x.mn.startswith('s_addc'): scc_live = True; break
            if x.kind == 'vmem' and x.arg == 'dma': scc_live = True; break
            if x.kind == 'salu' and not x.mn.startswith(('s_mov', 's_mul', 's_nop', 's_waitcnt', 's_barrier', 's_getreg')): break
        if not exec_part and not scc_live: ok.append(i)
        if i < n and code[i].defs & EX:
            exec_part = not (code[i].mn.startswith('s_mov') and code[i].text.endswith(', -1'))
    return ok

def sprinkle(code, groups, spacing, start=0):
    code = list(code.L if isinstance(code, Asm) else code); groups = list(groups)
    ok = set(safe_points(code)); out = []; since = spacing - start
    for i, x in enumerate(code):
        if groups and since >= spacing and i in ok:
            g = groups.pop(0); out += g; since = 0
        out.append(x); since += cost(x)
    for g in groups: out += g
    return out

class Gen:
    def __init__(self, **kw):
        self.o = dict(DEF); self.o.update(kw)
        self.A = Asm(); self.tail = Asm()
        self.V = RegAlloc('v', 1, 254); self.AG = RegAlloc('a', 0, 256); self.S = RegAlloc('s', 60, 97)
        self.nstamp = 0; self.stamp_names = []
        self.nlabel = 0
        self.free_blocks = list(range(28, 39))
        self.loc = {}; self.issued = []
        st = [('W2', i) for i in range(16)]
        for q in range(8): st += [('F1', 2*q), ('H1', q), ('F1', 2*q + 1)]
        st += [('S2', i) for i in range(16)] + [('S3', q) for q in range(8)] + [('W4', i) for i in range(43)]
        self.stream = st
        self.info = {}; self.dropped = set(); self.trace = []

    def stamp(self, name, A=None):
        if not self.o['stamps'] or (self.o['stamps'] == 'min' and name != 'end'): return
        A = A if A is not None else self.A
        k = self.nstamp
        A(f'@raw 1\n{self.o.get("clk", "s_memtime")} {self.sstamp.sub(2*(k % 2), 2)}')
        if k: A(f'v_writelane_b32 {self.vstamp}, {self.sstamp[2*((k-1) % 2)]}, {k-1}')
        A('@raw 0')
        self.stamp_names.append(name); self.nstamp += 1

    def srd(self, A, b, lo, size):
        A(f's_mov_b32 s{b}, s{lo}\ns_mov_b32 s{b+1}, s{lo+1}\ns_mov_b32 s{b+2}, {size}\ns_mov_b32 s{b+3}, 0x20000')

    def store2(self, A, w, data, voff, soff, off, tag, srd=None, wrap=False):
        assert off < 4096
        o = f' offset:{off}' if off else ''
        v = f'{voff}, ' if voff is not None else 'off, '
        e = ' offen' if voff is not None else ''
        if wrap: A(';dual_begin')
        A(f'buffer_store_{w} {data}, {v}{srd or self.WS}, {soff}{e}{o}', tag=tag)
        if wrap: A(';dual_end')

    def expand_dual(self, L):
        out = []; tail = []; k = 0; inside = False
        for x in L:
            if x.text == ';dual_begin':
                assert not inside; inside = True
                out += [Ins(f's_cmp_lg_u32 {self.sMode}, 0'), Ins(f's_cbranch_scc1 L_wt{k}')]; tail.append(Ins(f'L_wt{k}:'))
            elif x.text == ';dual_end':
                assert inside; inside = False
                out.append(Ins(f'L_wtb{k}:')); tail.append(Ins(f's_branch L_wtb{k}')); k += 1
            else:
                out.append(x)
                if inside:
                    assert x.kind != 'label'
                    tail.append(Ins(x.text + ' sc1') if x.mn.startswith('buffer_store') else Ins(x.text))
        return out, tail

    def signal(self, kind):
        L = Asm()
        L(f's_mov_b64 exec, {self.mW1}')
        self.store2(L, 'dword', self.vOne, None, self.sFme, kind*128, 'flag', wrap=True)
        L('s_mov_b64 exec, -1')
        return L.L

    def poll_ld(self, addr, kind, pv): return f'buffer_load_dword {pv}, {addr}, {self.WS}, {self.s["FL"]} offen offset:{kind*128} sc1'

    def poll_block(self, A, addr, kind, mask, pv=None):
        pv = pv or self.vPv; s = self.s; n = self.nlabel; self.nlabel += 1
        A(f's_mov_b64 exec, {mask}\ns_mov_b32 {s["T3"]}, 0x20000\n@raw 1\nL_poll{n}:\n{self.poll_ld(addr, kind, pv)}\ns_waitcnt vmcnt(0)')
        A(f'v_cmp_eq_u32 vcc, 0, {pv}\ns_sub_u32 {s["T3"]}, {s["T3"]}, 1\ns_cbranch_scc1 L_pd{n}\ns_cbranch_vccnz L_poll{n}\nL_pd{n}:\n@raw 0\ns_mov_b64 exec, -1')

    @staticmethod
    def p4_unit(i):
        if i < 15: return 0, 6*i
        if i < 29: return 0, 6*(i - 15) + 2
        if i < 36: return 1, 12*(i - 29) + 4
        return 1, 12*(i - 36) + 5

    def dma_cost(self): return 138 if self.stream and self.stream[0][0] in ('H1', 'S3') else 69

    def dma_next(self):
        if not self.stream or not self.free_blocks: return None
        key = self.stream.pop(0); b = self.free_blocks.pop(0)
        self.loc[key] = b; self.issued.append(key)
        s, D = self.s, self.sD; kind, i = key; tag = f'{kind}_{i}'
        if kind == 'W2':
            assert 23 <= b <= 38
            pre = [f's_add_u32 {D}, {self.sC128}, {i << 15}']
            ld = f'buffer_load_dwordx4 {self.vW2}, {self.WO}, {D} offen lds'
        elif kind in ('F1', 'S2', 'H1', 'S3'):
            full = kind in ('F1', 'S2')
            cp = i >> 1 if full else i
            pre = []
            if key == ('F1', 0): pre.append(f's_mov_b32 s38, {self.sN3[0]}')
            if key == ('S2', 0): pre += [f's_mov_b32 s38, {self.sN3[1]}', f'v_add_u32 {self.vF[0]}, {self.sDl}, {self.vF[0]}', f'v_add_u32 {self.vF[1]}, {self.sDl}, {self.vF[1]}']
            if key == ('S3', 0): pre += [f's_sub_u32 {self.sDl}, 192, {self.sDl}', f'v_add_u32 {self.vH}, {self.sDl}, {self.vH}']
            ld = f'buffer_load_dwordx4 {self.vF[i & 1] if full else self.vH}, {self.W3}, {self.sCP[cp - 1] if cp else 0} offen lds'
        else:
            sel, u = self.p4_unit(i)
            k = (i if i < 15 else i - 15) & 3 if sel == 0 else 2*((i - 29 if i < 36 else i - 36) & 1)
            pre = [f's_add_u32 {D}, {self.sU[sel]}, {u*16384}'] if k == 0 else []
            if i == 0: pre += [f'v_add_u32 {self.vD[q]}, {q*6*16384}, {self.vD[0]}' for q in range(1, 4)]
            ld = f'buffer_load_dwordx4 {self.vD[k]}, {self.WD}, {D} offen lds'
        return [Ins(f's_add_u32 m0, {s["W1K"]}, {b*BLK}')] + [Ins(x) for x in pre] + [Ins(ld, tag)]

    def dmas(self, n):
        r = []
        for _ in range(n):
            g = self.dma_next()
            if g: r.append(g)
        return r

    def p1_chunk_dma(self, i):
        s = self.s; sl = i % 3; kc, so = self.sKC, self.sSO; tag = f'ch{i}'
        I = Ins
        g = [[I(f's_bfe_u32 {kc}, {self.sTb}, {hex(0x30000 + 4*i)}'), I(f's_add_u32 m0, {self.sW2K}, {L_X + sl*8192}'), I(f's_lshl_b32 {so}, {kc}, 7'),
              I(f'buffer_load_dwordx4 {self.vXa}, {self.X}, {so} offen lds', tag)],
             [I(f's_mul_i32 {kc}, {kc}, {64*3072}'), I(f'buffer_load_dwordx4 {self.vXb}, {self.X}, {so} offen offset:1024 lds', tag)]]
        for st in range(2):
            for p in range(3):
                pre = []
                if p == 0: pre = [I(f's_add_u32 m0, {self.sW3K}, {L_W + sl*24576 + st*12288}'), I(f's_add_u32 {kc}, {kc}, {32*3072 if st else self.sC128}')]
                g.append(pre + [I(f'buffer_load_dwordx4 {self.vW1}, {self.WQ}, {kc} offen offset:{p*1024} lds', tag)])
        return g

    def p1_reads(self, i, st, buf):
        sl = i % 3; r = []
        W, X, O = buf
        r.append(Ins(f'ds_read_b128 {O}, {self.aXo[st]} offset:{sl*8192}'))
        for p in range(3):
            for a in range(2):
                r.append(Ins(f'ds_read_b64_tr_b16 {W[p].sub(2*a, 2)}, {self.aW1} offset:{sl*24576 + st*12288 + p*1024 + a*512}'))
            if p == 0:
                r.append(Ins(f'ds_read_b128 {X[0]}, {self.aX[st]} offset:{L_HALO + i*2048}'))
                for t in range(1, 5):
                    r.append(Ins(f'ds_read_b128 {X[t]}, {self.aX[st]} offset:{L_X + sl*8192 + (t-1)*2048}'))
        return r

    def p1_mfmas(self, buf, first):
        W, X, O = buf
        m = []
        c = lambda acc: '0' if first else str(acc)
        m.append(Ins(f'v_mfma_f32_16x16x32_bf16 {self.stG}, {O}, {O}, {c(self.stG)}'))
        m.append(Ins(f'v_mfma_f32_16x16x32_bf16 {self.stS}, {self.ones}, {O}, {c(self.stS)}'))
        for p, acc in enumerate((self.aQ, self.aK, self.aV)):
            for t in range(5):
                if p < 2: m.append(Ins(f'v_mfma_f32_16x16x32_bf16 {acc[t]}, {W[p]}, {X[t]}, {c(acc[t])}'))
                else: m.append(Ins(f'v_mfma_f32_16x16x32_bf16 {acc[t]}, {X[t]}, {W[p]}, {c(acc[t])}'))
        return m

    def stats_code(self, sq, sm, out4):
        L = Asm()
        L(f'v_mul_f32 {sm}, {fhex(-1/512)}, {sm}')
        L(f'v_fma_f32 {sq}, {sq}, {self.sInv512}, {self.vEps}')
        L(f'v_cvt_pk_bf16_f32 {out4[1]}, {sm}, {sm}')
        L(f'v_fma_f32 {sq}, -{sm}, {sm}, {sq}')
        L(f'v_max_f32 {sq}, {sq}, {self.vEps}')
        L(f'v_rsq_f32 {out4[2]}, {sq}')
        L(f'v_and_b32 {out4[0]}, 0xffff0000, {out4[1]}')
        L(f'v_mul_f32 {out4[3]}, {fhex(0.25*LOG2E)}, {out4[2]}')
        return L.L

    def diag_code(self, G4, dst):
        return [Ins(f'v_cndmask_b32 {G4[0]}, {G4[0]}, {G4[1]}, {self.mB0}'), Ins(f'v_cndmask_b32 {G4[2]}, {G4[2]}, {G4[3]}, {self.mB0}'),
                Ins(f'v_cndmask_b32 {dst}, {G4[0]}, {G4[2]}, {self.mB1}')]

    def weave16(self, mf, ds, misc, vgap=4, tail=4, side=None):
        A = self.A; ds = list(ds)
        nm = len(mf)
        for k, m in enumerate(mf):
            A.L.append(m); self.gap_since_vm += 1
            bud = 2
            if misc and isinstance(misc[0], Ins) and misc[0].kind == 'salu':
                A.L.append(misc.pop(0)); bud -= self.o['salu16']
            nds = 1 if ds else 0
            if len(ds) > nm - k - tail: nds = min(2, len(ds))
            for _ in range(nds): A.L.append(ds.pop(0)); bud -= 1
            while misc and bud > 0:
                it = misc[0]; l = it if isinstance(it, list) else [it]
                if l and l[0].kind == 'pseudo' and l[0].mn == '@skip':
                    misc.pop(0); break
                if any(x.kind == 'vmem' for x in l):
                    if self.gap_since_vm < vgap: break
                    self.gap_since_vm = 0
                misc.pop(0); A.ext(l); bud -= sum(cost(x) for x in l)
            while side and bud > 0 and not ds:
                it = side.pop(0); l = it if isinstance(it, list) else [it]
                A.ext(l); bud -= sum(cost(x) for x in l)
        assert not ds

    def phase1(self):
        A, V, S, AG, o = self.A, self.V, self.S, self.AG, self.o
        s = self.s = {}
        for n in 'W C M SB G BLK W1K T0 T1 T2 T3 FL PF GB'.split(): s[n] = S.alloc()
        if o['stamps']: self.sstamp = S.alloc(4, 2); self.vstamp = V.alloc()
        self.X, self.WQ, self.WO, self.W3, self.WD, self.OUT, self.WS = [f's[{24+4*i}:{27+4*i}]' for i in range(7)]
        self.sKC = S.alloc(); self.sSO = S.alloc(); self.sW2K = S.alloc(); self.sW3K = S.alloc(); self.sC128 = S.alloc(); self.sFme = S.alloc()
        sH = S.alloc(); sHm = S.alloc(); sZ = S.alloc()
        if o.get('pad_to'): A('@raw 1\n' + o.get('pad_clk', 's_memrealtime') + ' s[100:101]\n@raw 0')
        if o['stamps']: A('@raw 1\n' + o.get('clk', 's_memtime') + ' s[100:101]\ns_memrealtime s[98:99]\ns_mov_b32 s97, 0\n@raw 0')
        A('s_load_dwordx2 s[24:25], s[0:1], 0\ns_load_dwordx2 s[28:29], s[0:1], 8\ns_load_dwordx2 s[48:49], s[0:1], 72')
        A('s_load_dwordx16 s[4:19], s[0:1], 0\ns_load_dwordx2 s[20:21], s[0:1], 64')
        A('s_cmp_lt_u32 s2, 256\ns_cbranch_scc1 L_go\ns_endpgm\nL_go:')
        vL = self.vL = V.alloc(); t0 = V.alloc(2); t1 = V.alloc(); t2 = V.alloc(); t3 = V.alloc()
        self.t1, self.t2, self.t3 = t1, t2, t3
        A(f's_getpc_b64 s[52:53]\nL_pc:')
        A(f'v_and_b32 {vL}, 63, v0\nv_lshrrev_b32 {t1}, 6, v0\ns_lshr_b32 {s["T0"]}, s2, 3\nv_readfirstlane_b32 {s["W"]}, {t1}')
        A(f'v_lshl_add_u32 {t1}, {s["T0"]}, 2, {t1}\nv_lshl_add_u32 {t1}, {t1}, 2, {vL}\nv_lshlrev_b32 {t1}, 7, {t1}\nv_min_u32 {t1}, L_code_end-L_pc-4, {t1}')
        A(f'v_add_co_u32 {t0[0]}, vcc, s52, {t1}\nv_mov_b32 {t0[1]}, s53\ns_and_b32 {s["M"]}, {s["T0"]}, 15\nv_addc_co_u32 {t0[1]}, vcc, 0, {t0[1]}, vcc')
        A(f's_mov_b64 exec, 15\nglobal_load_dword v255, {t0}, off\ns_mov_b64 exec, -1')
        t0.free()
        A(f's_and_b32 {s["C"]}, {s["T0"]}, 7\ns_lshr_b32 {s["SB"]}, {s["M"]}, 3\ns_and_b32 {s["T1"]}, s2, 7\ns_lshr_b32 {s["T0"]}, {s["T0"]}, 3')
        A(f's_lshl_b32 {s["BLK"]}, {s["T1"]}, 2\ns_add_u32 {s["BLK"]}, {s["BLK"]}, {s["T0"]}\ns_lshr_b32 {s["G"]}, {s["BLK"]}, 1')
        A(f's_lshl_b32 {self.sW2K}, {s["W"]}, 11\ns_mul_i32 {self.sW3K}, {s["W"]}, 3072\ns_lshl_b32 {self.sC128}, {s["C"]}, 7')
        e = V.alloc(); ch = V.alloc()
        vHa = V.alloc(); self.vXa = V.alloc(); self.vXb = V.alloc(); self.vW1 = V.alloc(); self.vW2 = V.alloc()
        A(f'v_lshrrev_b32 {e}, 3, {vL}\nv_and_b32 {ch}, 7, {vL}')
        A(f'v_lshrrev_b32 {t1}, 4, {vL}\nv_xor_b32 {t1}, {t1}, {ch}\nv_lshlrev_b32 {t1}, 4, {t1}')
        A(f's_lshl_b32 {s["T0"]}, {s["BLK"]}, 6\ns_lshl_b32 {s["T1"]}, {s["W"]}, 4\ns_add_u32 {s["T1"]}, {s["T1"]}, {s["T0"]}')
        A(f'v_add_u32 {t2}, {s["T1"]}, {e}\nv_lshl_add_u32 {self.vXa}, {t2}, 10, {t1}\nv_add_u32 {self.vXb}, {7*1024}, {self.vXa}\nv_xor_b32 {self.vXb}, 64, {self.vXb}')
        A(f's_and_b32 {s["T1"]}, {s["W"]}, 1\ns_cselect_b32 {sHm}, -1, 0xffffff00\ns_lshl3_add_u32 {s["T0"]}, {s["T1"]}, {s["T0"]}\ns_sub_u32 {s["T0"]}, {s["T0"]}, 16\ns_lshl_b32 {s["T2"]}, {s["T1"]}, 6')
        A(f'v_add_u32 {t2}, {s["T0"]}, {e}\nv_max_i32 {vHa}, 0, {t2}\nv_lshl_add_u32 {vHa}, {vHa}, 10, {t1}\nv_xor_b32 {vHa}, {s["T2"]}, {vHa}')
        A(f's_lshl_b32 {s["T1"]}, {s["T1"]}, 2\ns_lshl_b32 {s["W1K"]}, {s["W"]}, 10')
        A(f'v_and_b32 {t1}, 2, {e}\nv_or_b32 {t1}, {s["T1"]}, {t1}\nv_xor_b32 {t1}, {t1}, {ch}\nv_lshlrev_b32 {t1}, 4, {t1}')
        A(f'v_lshl_add_u32 {t2}, {s["W"]}, 3, {e}')
        A(f'v_lshl_add_u32 {self.vW2}, {t2}, 10, {t1}\nv_mul_u32_u24 {t2}, 3072, {t2}\nv_add_u32 {self.vW1}, {t2}, {t1}')
        A(f's_mov_b32 s26, {2048*1024}\ns_mov_b32 s27, 0x20000\ns_mov_b32 s30, {512*3072}\ns_mov_b32 s31, 0x20000\ns_mov_b32 s50, {o["ws_base"] + WS_SIZE}\ns_mov_b32 s51, 0x20000')
        A(f's_lshl_b32 {s["GB"]}, {s["G"]}, 20')
        if o['ws_base']: A(f's_add_u32 {s["GB"]}, {s["GB"]}, {o["ws_base"]}')
        A(f's_add_u32 {s["FL"]}, {s["GB"]}, {WS_FL}\ns_lshl2_add_u32 {self.sFme}, {s["M"]}, {s["FL"]}\nv_mov_b32 {t2}, 0')
        A(f's_cmp_eq_u32 {s["W"]}, 0\ns_cselect_b32 {sZ}, 0x3f, 0')
        self.sTb = S.alloc(); sTh = S.alloc()
        A(f's_mul_i32 {s["T0"]}, {s["C"]}, 0x11111111\ns_add_u32 {self.sTb}, {s["T0"]}, 0x76543210')
        if o['khalf']: A(f's_and_b32 {self.sTb}, {self.sTb}, 0x33333333\ns_or_b32 {self.sTb}, {self.sTb}, 0x44440000')
        A(f's_and_b32 {s["T0"]}, {s["W"]}, 2\ns_lshl_b32 {s["T0"]}, {s["T0"]}, 1\ns_lshr_b32 {sTh}, {self.sTb}, {s["T0"]}')
        v128 = self.v128 = V.alloc(); junk = V.alloc(); vT = V.alloc(); vTo = V.alloc(); sP = S.alloc()
        v1k = V.alloc()
        A(f'v_lshlrev_b32 {v128}, 7, {vL}\nv_lshlrev_b32 {v1k}, 10, {vL}')
        OSRD = self.WS if o['o_in_ws'] else self.OUT
        def pf_group(kind):
            L = Asm()
            if kind == 'o': L(f's_mov_b64 exec, 0xffff\nbuffer_load_dword {junk}, {vTo}, {OSRD}, {self.sOst} offen sc1')
            elif kind == 'h': L(f's_mov_b64 exec, 0x3ffff\nbuffer_load_dword {junk}, {vT}, {self.WS}, {s["GB"]} offen sc1')
            elif kind == 'x1':
                L(f's_lshl2_add_u32 {sP}, {s["BLK"]}, {s["W"]}\ns_lshl3_add_u32 {sP}, {sP}, {s["C"]}\ns_lshl_b32 {sP}, {sP}, 11')
                L(f's_mov_b64 exec, 0xf0f0\nbuffer_load_dword {junk}, {v128}, {self.X}, {sP} offen sc1')
            elif kind in ('q3', 'o3', 'd3', 'q30', 'q31'):
                n, srd = {'q3': (12, self.WQ), 'q30': (6, self.WQ), 'q31': (6, self.WQ), 'o3': (4, self.WO), 'd3': (11, self.WD)}[kind]
                L(f's_lshr_b32 {sP}, s2, 3\ns_lshl2_add_u32 {sP}, {sP}, {s["W"]}\ns_mul_i32 {sP}, {sP}, {n*1024}')
                if kind == 'q31': L(f's_add_u32 {sP}, {sP}, {768*1024}')
                L(f's_mov_b64 exec, {hex((1 << n) - 1)}\nbuffer_load_dword {junk}, {v1k}, {srd}, {sP} offen offset:384 sc1')
            else:
                n, srd = {'wq': (12, self.WQ), 'wq0': (6, self.WQ), 'wq1': (6, self.WQ), 'wo': (4, self.WO), 'w3': (22, self.W3), 'wd': (11, self.WD)}[kind]
                if kind == 'w3': L(f's_and_b32 {sP}, {s["W"]}, 1\ns_lshl1_add_u32 {sP}, s2, {sP}')
                else: L(f's_lshl2_add_u32 {sP}, s2, {s["W"]}')
                L(f's_mul_i32 {sP}, {sP}, {n*128}')
                if kind == 'wq1': L(f's_add_u32 {sP}, {sP}, {768*1024}')
                L(f's_mov_b64 exec, {hex((1 << n) - 1)}\nbuffer_load_dword {junk}, {v128}, {srd}, {sP} offen sc1')
            L('s_mov_b64 exec, -1')
            for x in L.L:
                if x.kind == 'vmem': x.defs = set()
            return L.L[:-3] + [L.L[-3:]]
        def pf_flat(at):
            r = []
            for kind, a_ in o['pf'].items():
                if a_ == at:
                    gq = pf_group(kind); r.append(gq[:-1] + gq[-1])
            return r
        self.sOst = S.alloc(); self.sHst = S.alloc()
        c0 = self.p1_chunk_dma(0)
        A.ext(c0[0][:-1])
        A('@waitlg0')
        self.stamp('kernarg')
        if o.get('l2fill'):
            for lo, nbytes in o['l2fill']:
                per = -(-nbytes // (128*128))
                A(f's_mov_b32 s32, s{lo}\ns_mov_b32 s33, s{lo+1}\ns_mov_b32 s34, {nbytes}\ns_mov_b32 s35, 0x20000')
                A(f's_lshr_b32 {s["T0"]}, s2, 3\ns_lshl2_add_u32 {s["T0"]}, {s["T0"]}, {s["W"]}\ns_mul_i32 {s["T0"]}, {s["T0"]}, {per*128}')
                for q in range(-(-per // 64)): A(f'buffer_load_dword {t3}, {v128}, s[32:35], {s["T0"]} offen sc1\ns_add_u32 {s["T0"]}, {s["T0"]}, 8192')
                A('@waitvm0')
            A(f's_mov_b32 {s["T0"]}, 60\nL_dly:\ns_sub_u32 {s["T0"]}, {s["T0"]}, 1\ns_cmp_lg_u32 {s["T0"]}, 0\ns_cbranch_scc1 L_dly')
            self.stamp('probe done')
        if o.get('probe'):
            src, rounds, base = o['probe']
            lo = {'bx': 10, 'ws': 48, 'out': 18, 'wd': 16}[src]
            A(f's_mov_b32 s32, s{lo}\ns_mov_b32 s33, s{lo+1}\ns_mov_b32 s34, {(2 << 20) if src in ("bx", "out") else (1376*1024 if src == "wd" else 256 << 20)}\ns_mov_b32 s35, 0x20000')
            A(f'v_lshlrev_b32 {t1}, 7, {vL}\ns_lshl_b32 {s["T0"]}, s2, 2\ns_add_u32 {s["T0"]}, {s["T0"]}, {s["W"]}\ns_lshl_b32 {s["T0"]}, {s["T0"]}, 11\ns_add_u32 {s["T0"]}, {s["T0"]}, {base}')
            nl = 16 // rounds if rounds > 0 else 16
            for r in range(abs(rounds)):
                A(f's_mov_b64 exec, {hex((1 << nl) - 1)}\nbuffer_load_dword {t3}, {t1}, s[32:35], {s["T0"]} offen sc1\ns_mov_b64 exec, -1')
                if rounds > 0: A(f'@waitvm0\ns_add_u32 {s["T0"]}, {s["T0"]}, {nl*128}')
                else: A(f's_add_u32 {s["T0"]}, {s["T0"]}, {2 << 20}')
            A('@waitvm0')
            self.stamp('probe done')
        for gq in pf_flat('s0'): A.ext(gq)
        A.L.append(c0[0][-1])
        for gq in pf_flat('sx'): A.ext(gq)
        A(f's_mov_b32 exec_lo, {sZ}\ns_mov_b32 exec_hi, 0')
        A(f'buffer_store_dword {t2}, {v128}, {self.WS}, {self.sFme} offen', tag='fz')
        A('s_mov_b64 exec, -1')
        def chunk_items(i):
            gq = c0 if i == 0 else self.p1_chunk_dma(i)
            if i >= 4: return gq
            h = [Ins(f's_add_u32 m0, {s["W1K"]}, {L_HALO + i*4096}')]
            h += [Ins(f's_bfe_u32 {sH}, {sTh}, {hex(0x30000 + 8*i)}'), Ins(f's_lshl_b32 {sH}, {sH}, 7')]
            h.append([Ins(f's_mov_b32 exec_lo, {sHm}'), Ins(f'buffer_load_dwordx4 {vHa}, {self.X}, {sH} offen lds', f'hr{i}'), Ins('s_mov_b32 exec_lo, -1')])
            return gq[:5] + [h] + gq[5:]
        fl1 = lambda gq: [y for x in gq for y in (x if isinstance(x, list) else [x])]
        self.sCen = S.alloc(); self.sCoff = S.alloc(); self.sCv = S.alloc()
        c1 = chunk_items(1); n1a, n1b = o['n1a'], o['n1b']
        g0 = [fl1(x) for x in chunk_items(0)[1:]]
        groups = g0[:5] + pf_flat('sa') + g0[5:] + pf_flat('s1') + [fl1(x) for x in c1[:n1a]]
        B = Asm()
        B(f's_getreg_b32 {s["T0"]}, hwreg(HW_REG_XCC_ID, 0, 4)\ns_mul_i32 {s["T1"]}, {s["T0"]}, {s["T0"]}\ns_lshl_b32 {s["T1"]}, {s["T1"]}, 13\ns_lshl_b32 {s["T0"]}, {s["T0"]}, 5')
        B(f's_add_u32 {self.sCen}, {s["T0"]}, {s["T1"]}\ns_add_u32 {self.sCen}, {self.sCen}, 1\ns_lshl_b32 {self.sCoff}, {s["G"]}, 4')
        self.ones = V.alloc(4, 2)
        for k in range(4): B(f'v_mov_b32 {self.ones[k]}, 0x3f803f80')
        B(f's_lshl_b32 {s["T0"]}, {s["W"]}, 12\nv_lshlrev_b32 {t1}, 11, {e}\nv_lshl_add_u32 {t1}, {ch}, 4, {t1}\nv_add_u32 {t1}, {s["T0"]}, {t1}')
        B(f's_mov_b64 exec, 0xffff\nds_write_b128 {t1}, {self.ones} offset:{L_HALO}\ns_mov_b64 exec, -1')
        B(f'v_mov_b32 v254, {L_SCR + 4092}')
        self.srd(B, 32, 8, 512*1024); self.srd(B, 40, 16, 1376*1024); self.srd(B, 44, 18, 2048*1024)
        B(f's_cmp_lt_u32 {s["W"]}, 2\ns_cselect_b32 s36, s12, s14\ns_cselect_b32 s37, s13, s15\ns_mov_b32 s38, {512*PITCH3}\ns_mov_b32 s39, 0x20000')
        S.free |= set(range(3, 20)) | {0, 1, 22, 23} | set(range(52, 60))
        self.sMode = S.alloc(); self.mW1 = S.alloc(2); self.mW16 = S.alloc(2)
        B(f's_mov_b32 {self.sMode}, 0\ns_cmp_eq_u32 {s["W"]}, 0\ns_cselect_b64 {self.mW1}, 1, 0\ns_cselect_b64 {self.mW16}, 0xffff, 0')
        self.sN3 = S.alloc(2); self.sInv512 = S.alloc()
        B(f's_cmp_lt_u32 {s["M"]}, 15\ns_cselect_b32 {self.sN3[0]}, s38, 0\ns_cmp_lt_u32 {s["M"]}, 14\ns_cselect_b32 {self.sN3[1]}, s38, 0')
        B(f's_mov_b32 {self.sInv512}, {fhex(1/512)}')
        self.vEps = V.alloc(); B(f'v_mov_b32 {self.vEps}, {fhex(1e-5)}')
        j = self.vJ = V.alloc(); g = self.vG = V.alloc(); self.vL16 = V.alloc()
        B(f'v_and_b32 {j}, 15, {vL}\nv_lshrrev_b32 {g}, 4, {vL}\nv_lshlrev_b32 {self.vL16}, 4, {vL}')
        self.aX = [V.alloc(), V.alloc()]; self.aXo = [V.alloc(), V.alloc()]; self.aW1 = V.alloc(); aHs = [V.alloc(), V.alloc()]
        B(f'v_lshrrev_b32 {t1}, 1, {j}\nv_xor_b32 {t1}, {t1}, {g}\nv_lshlrev_b32 {t1}, 4, {t1}\nv_lshl_add_u32 {self.aX[0]}, {j}, 7, {t1}\nv_xor_b32 {self.aX[1]}, 64, {self.aX[0]}')
        B(f'v_add_u32 {aHs[0]}, {s["T0"]}, {self.aX[0]}\nv_add_u32 {aHs[1]}, {s["T0"]}, {self.aX[1]}')
        B(f's_add_u32 {s["T0"]}, {self.sW2K}, {L_X}\nv_add_u32 {self.aXo[0]}, {s["T0"]}, {self.aX[0]}\nv_add_u32 {self.aXo[1]}, {s["T0"]}, {self.aX[1]}')
        ra = [V.alloc() for _ in range(4)]
        B(f'v_lshrrev_b32 {t1}, 1, {j}\nv_lshrrev_b32 {t2}, 1, {g}\nv_xor_b32 {t1}, {t1}, {t2}\nv_lshlrev_b32 {t1}, 4, {t1}\nv_and_b32 {t2}, 1, {g}\nv_lshl_add_u32 {t1}, {t2}, 3, {t1}')
        B(f'v_lshl_add_u32 {t1}, {j}, 7, {t1}\nv_add_u32 {ra[0]}, {s["T0"]}, {t1}')
        for ct in range(1, 4): B(f'v_xor_b32 {ra[ct]}, {ct*32}, {ra[0]}')
        self.vTRf = V.alloc(); self.vTRb = V.alloc()
        B(f'v_and_b32 {t1}, 3, {e}\nv_lshlrev_b32 {self.vTRf}, 5, {t1}')
        B(f'v_bfe_u32 {t1}, {vL}, 2, 2\nv_and_b32 {t2}, 3, {vL}\nv_lshlrev_b32 {t2}, 3, {t2}\nv_lshl_add_u32 {self.vTRb}, {t1}, 7, {t2}')
        B(f's_lshl_b32 {s["T0"]}, {s["W"]}, 5\nv_xor_b32 {t1}, {s["T0"]}, {self.vTRf}\nv_mul_u32_u24 {t2}, 3072, {g}\nv_add3_u32 {self.aW1}, {t1}, {t2}, {self.vTRb}\nv_add_u32 {self.aW1}, {L_W}, {self.aW1}')
        self.mB0 = S.alloc(2); self.mB1 = S.alloc(2); self.mDiag = S.alloc(2); mOwnA = S.alloc(2); mOwnB = S.alloc(2)
        B(f's_mov_b32 {self.mB0[0]}, 0xaaaaaaaa\ns_mov_b32 {self.mB0[1]}, 0xaaaaaaaa\ns_mov_b32 {self.mB1[0]}, 0xcccccccc\ns_mov_b32 {self.mB1[1]}, 0xcccccccc')
        B(f's_mov_b32 {self.mDiag[0]}, 0x00f0000f\ns_mov_b32 {self.mDiag[1]}, 0xf0000f00')
        def lanemask(fn):
            v = sum(1 << l for l in range(64) if fn(l & 15, l >> 4)); return v & 0xffffffff, v >> 32
        oa = lanemask(lambda jj, gg: 4*gg + (jj & 1) <= jj); ob = lanemask(lambda jj, gg: 4*gg + 2 + (jj & 1) <= jj)
        B(f's_mov_b32 {mOwnA[0]}, {hex(oa[0])}\ns_mov_b32 {mOwnA[1]}, {hex(oa[1])}\ns_mov_b32 {mOwnB[0]}, {hex(ob[0])}\ns_mov_b32 {mOwnB[1]}, {hex(ob[1])}')
        aTB = V.alloc(); aTBw = V.alloc(); aHPw = V.alloc(); aHPr = V.alloc()
        B(f'v_lshlrev_b32 {aTB}, 4, {j}\nv_add_u32 {aTB}, {SCR_TB}, {aTB}\nv_lshl_add_u32 {aTBw}, {s["W"]}, 8, {aTB}')
        B(f'v_lshlrev_b32 {aHPr}, 5, {j}\nv_add_u32 {aHPr}, {SCR_HP}, {aHPr}\nv_lshl_add_u32 {aHPw}, {s["W"]}, 3, {aHPr}')
        ka = V.alloc(); kb = V.alloc(); bias = V.alloc(2); sel = V.alloc(4)
        B(f'v_and_b32 {t1}, 1, {j}\nv_lshl_add_u32 {t1}, {g}, 2, {t1}\nv_lshlrev_b32 {t1}, 4, {t1}\nv_add_u32 {t1}, {SCR_TB + 8}, {t1}\nv_add_u32 {t2}, 256, {t1}')
        B(f'v_cndmask_b32 {ka}, {t1}, {t2}, {mOwnA}\nv_cndmask_b32 {kb}, {t1}, {t2}, {mOwnB}')
        B(f's_cmp_eq_u32 {s["BLK"]}, 0\ns_cselect_b32 {s["T0"]}, {fhex(-1e30)}, 0\nv_mov_b32 {t1}, {s["T0"]}\nv_mov_b32 {t3}, 0x0c0c0c0c')
        B(f'v_cndmask_b32 {bias[0]}, {t1}, 0, {mOwnA}\nv_cndmask_b32 {bias[1]}, {t1}, 0, {mOwnB}')
        B(f'v_mov_b32 {t1}, 0x0c0c0100\nv_mov_b32 {t2}, 0x01000c0c\nv_cndmask_b32 {t1}, {t1}, {t2}, {self.mB0}')
        B(f'v_cndmask_b32 {sel[0]}, {t1}, {t3}, {mOwnA}\nv_cndmask_b32 {sel[2]}, {t3}, {t1}, {mOwnA}')
        B(f'v_mov_b32 {t1}, 0x0c0c0302\nv_mov_b32 {t2}, 0x03020c0c\nv_cndmask_b32 {t1}, {t1}, {t2}, {self.mB0}')
        B(f'v_cndmask_b32 {sel[1]}, {t1}, {t3}, {mOwnB}\nv_cndmask_b32 {sel[3]}, {t3}, {t1}, {mOwnB}')
        self.sD = S.alloc(); self.vF = V.alloc(2); self.vH = V.alloc(); self.vD = V.alloc(4)
        self.sR2 = S.alloc(); self.sU = S.alloc(2); self.sDl = S.alloc(); self.sCP = [S.alloc() for _ in range(7)]
        for k in range(7): B(f's_mov_b32 {self.sCP[k]}, {(k + 1)*64*PITCH3}')
        B(f's_and_b32 {s["PF"]}, {s["M"]}, 1\ns_mul_i32 {s["T0"]}, {s["M"]}, 192\ns_mul_i32 {s["T1"]}, {s["PF"]}, {PITCH3}')
        B(f's_add_u32 {s["T2"]}, {s["T0"]}, {s["T1"]}\ns_sub_u32 {s["T3"]}, {s["T0"]}, {s["T1"]}\ns_add_u32 {s["T3"]}, {s["T3"]}, {PITCH3}')
        B(f's_sub_u32 {self.sDl}, {s["T3"]}, {s["T2"]}\ns_add_u32 {self.sDl}, {self.sDl}, 64')
        B(f's_and_b32 {s["T0"]}, {s["W"]}, 1\ns_and_b32 {s["T1"]}, {s["W"]}, 2')
        B(f'v_and_b32 {t2}, 1, {e}\nv_lshl_add_u32 {t1}, {g}, 3, {t2}\nv_lshl_add_u32 {t1}, {s["T0"]}, 1, {t1}\nv_mul_u32_u24 {t1}, {2*PITCH3}, {t1}\nv_add_u32 {t1}, {s["T2"]}, {t1}')
        B(f'v_and_b32 {t3}, 1, {g}\nv_or_b32 {t2}, {s["T1"]}, {t3}\nv_lshlrev_b32 {t2}, 1, {t2}\nv_xor_b32 {t2}, {t2}, {ch}\nv_lshl_add_u32 {self.vF[0]}, {t2}, 4, {t1}\nv_add_u32 {self.vF[1]}, {8*PITCH3}, {self.vF[0]}')
        B(f'v_lshl_add_u32 {t1}, {s["T0"]}, 3, {e}\nv_lshlrev_b32 {t3}, 2, {t3}\nv_xor_b32 {t3}, {t3}, {ch}\nv_lshlrev_b32 {t3}, 4, {t3}\nv_lshl_add_u32 {self.vD[0]}, {t1}, 10, {t3}')
        B(f'v_and_b32 {t1}, 3, {e}\nv_lshlrev_b32 {t1}, 3, {t1}\nv_lshrrev_b32 {t2}, 5, {vL}\nv_lshl_add_u32 {t1}, {t2}, 1, {t1}\nv_bfe_u32 {t2}, {vL}, 2, 1\nv_add_u32 {t1}, {t1}, {t2}\nv_lshl_add_u32 {t1}, {s["T0"]}, 2, {t1}\nv_mul_u32_u24 {t1}, {2*PITCH3}, {t1}\nv_add_u32 {t1}, {s["T3"]}, {t1}')
        B(f'v_and_b32 {t2}, 3, {vL}\nv_xor_b32 {t2}, {s["T1"]}, {t2}\nv_lshl_add_u32 {self.vH}, {t2}, 4, {t1}')
        B(f's_lshl_b32 {s["T1"]}, {s["T1"]}, 13\ns_add_u32 {self.sU[0]}, {s["T1"]}, {self.sC128}\ns_mul_i32 {s["T1"]}, {s["T1"]}, 6\ns_add_u32 {self.sU[1]}, {s["T1"]}, {self.sC128}')
        pass
        B(f's_lshl_b32 {self.sOst}, {s["BLK"]}, 16\ns_lshl_b32 {s["T1"]}, {s["C"]}, 12\ns_add_u32 {self.sOst}, {self.sOst}, {s["T1"]}\ns_add_u32 {self.sOst}, {self.sOst}, {s["W1K"]}')
        B(f'v_lshlrev_b32 {t1}, 7, {ch}\nv_lshl_add_u32 {vTo}, {e}, 15, {t1}')
        B(f's_lshr_b32 {s["T1"]}, {s["W"]}, 1\ns_lshl_b32 {s["T2"]}, {s["SB"]}, 1\ns_add_u32 {s["T2"]}, {s["T2"]}, {s["T1"]}\ns_lshl_b32 {s["T2"]}, {s["T2"]}, 15')
        B(f's_lshl_b32 {s["T1"]}, {s["C"]}, 12\ns_add_u32 {s["T2"]}, {s["T2"]}, {s["T1"]}\ns_add_u32 {self.sHst}, {s["T2"]}, {s["GB"]}')
        B(f's_lshl_b32 {s["T0"]}, {s["T0"]}, 11\ns_add_u32 {s["T2"]}, {s["T2"]}, {s["T0"]}\nv_add_u32 {vT}, {s["T2"]}, {v128}')
        B(f's_lshl_b32 {s["T0"]}, {s["M"]}, 2\ns_add_u32 {s["T0"]}, {s["T0"]}, {s["W"]}\ns_lshl_b32 {s["T0"]}, {s["T0"]}, 7\ns_add_u32 {s["T1"]}, {s["T0"]}, {WS_ST}\nv_writelane_b32 {vT}, {s["T1"]}, 16')
        B(f's_and_b32 {s["T0"]}, {s["T0"]}, 0x380\ns_add_u32 {s["T1"]}, {s["T0"]}, {WS_FL}\nv_writelane_b32 {vT}, {s["T1"]}, 17')
        self.info['setupB'] = len(B.L)
        k1 = max(q for q in safe_points(B.L) if q <= o['c1_from'])
        code = sprinkle(B.L[:k1], groups, o['sp0'], start=0) + (self.visit('v0') if o['v0_at'] == -2 else []) + sprinkle(B.L[k1:], pf_flat('sb') + [fl1(x) for x in c1[n1a:n1b]], o['sp0b'], start=0)
        if o['visit']:
            k = max(q for q in safe_points(code) if q <= o['jump_at'])
            code[k:k] = [Ins('s_branch L_body'), Ins('.p2align 12'), Ins('L_body:')]
        if o.get('st0'):
            sp_ = set(safe_points(code)); last = 0
            for q, x in enumerate(code):
                if q - last >= o['st0'] and q in sp_:
                    self.stamp(f'i{q}v{sum(y.kind == "vmem" for y in code[:q])}'); last = q
                A.L.append(x)
            self.stamp('ipre-visit')
        else: A.ext(code)
        for r in (e, ch, sZ): r.free()
        for gq in pf_flat('s2'): A.ext(gq)
        if o['v0_at'] == -1: A.ext(self.visit('v0'))
        self.aQ = [V.alloc(4, 2) for _ in range(5)]; self.aK = [V.alloc(4, 2) for _ in range(5)]; self.aV = [V.alloc(4, 2) for _ in range(5)]
        self.stG = V.alloc(4, 2); self.stS = V.alloc(4, 2); hG = V.alloc(4, 2); hS = V.alloc(4, 2)
        bufs = [([AG.alloc(4, 4) for _ in range(3)], [AG.alloc(4, 4) for _ in range(5)], AG.alloc(4, 4)) for _ in range(2)]
        hb = [AG.alloc(4, 4) for _ in range(4)]
        self.stamp('setup done')
        A('@waitlg0\n@waitvm hr0\ns_barrier')
        self.stamp('chunk0 visible')
        A.ext(self.p1_reads(0, 0, bufs[0]))
        A(f's_cmp_lg_u32 {s["W"]}, 0\ns_cbranch_scc1 L_nocen\n@raw 1\ns_atomic_add {self.sCen}, s[20:21], {self.sCoff}\n@raw 0\nL_nocen:\n@minlg 1')
        self.resx = V.alloc(8, 2); hp = V.alloc(8, 2); tb4 = V.alloc(4, 2)
        hs = Asm()
        for a_, b_ in ((0, 2), (1, 3), (4, 6), (5, 7), (0, 4), (1, 5)): hs(f'v_add_f32 {hp[a_]}, {hp[a_]}, {hp[b_]}')
        hs.ext(self.stats_code(hp[1], hp[0], tb4)); hs(f'ds_write_b128 {aTB}, {tb4}')
        flat = lambda gs: [x for gq in gs for x in gq]
        pfm = lambda at: [x for kind, a_ in o['pf'].items() if a_ == at for x in pf_group(kind)]
        misc = flat(c1[n1b:]) + pfm('c1') + flat(chunk_items(2)) + pfm('c2')
        side = []
        self.gap_since_vm = 99
        HS = o['HS']
        for n in range(16):
            i, st = n >> 1, n & 1
            if n: A('@waitlg0')
            if o.get("fine", 0) >= 16 and (st == 0 or o.get('steps')) and n: self.stamp(f'p1 chunk {i}' + ('b' if st else ''))
            if st == 1 and i < 7:
                while any(x.tag == f'ch{i+1}' for x in fl1(misc)) or sum(x.tag == f'ch{i+2}' for x in fl1(misc)) > 8 - o['topup']: A.ext(fl1([misc.pop(0)]))
                if o['v0_at'] == i: A.ext(self.visit('v0'))
                A(f'@waitvm ch{i+1}\ns_barrier')
                if i == o['minlg_until']: A('@minlg 0')
                if i + 3 < 8: misc += flat(chunk_items(i + 3))
                if i == 4: misc += [Ins(f'v_mov_b32 {t1}, {self.sCoff}'), Ins(f'global_load_dword {t2}, {t1}, s[20:21] sc1')]
                for kind, at in o['pf'].items():
                    if at == i: misc += pf_group(kind)
                if i == 5:
                    self.free_blocks += [23, 24, 25, 26, 27]
                    misc += flat(self.dmas(o['w2a']))
                if i == 6: misc += flat(self.dmas(o['w2b']))
            mf = self.p1_mfmas(bufs[n & 1], n == 0)
            if n < 15:
                rd = self.p1_reads((n + 1) >> 1, (n + 1) & 1, bufs[(n + 1) & 1])
                if n == HS: rd += [Ins(f'ds_read_b128 {hb[q]}, {aHs[q & 1]} offset:{L_HALO + (q >> 1)*2048}') for q in range(4)]
                if n == HS + 1:
                    for q in range(4):
                        mf += [Ins(f'v_mfma_f32_16x16x32_bf16 {hG}, {hb[q]}, {hb[q]}, {hG if q else 0}'), Ins(f'v_mfma_f32_16x16x32_bf16 {hS}, {self.ones}, {hb[q]}, {hS if q else 0}')]
                    mf = mf[17:] + mf[:17]
                if n == HS + 1: side += self.diag_code(hG, hS[1]) + [[Ins(f's_mov_b64 exec, {self.mDiag}'), Ins(f'ds_write_b64 {aHPw}, {hS.sub(0, 2)}'), Ins('s_mov_b64 exec, -1')]]
                if n == HS + 3:
                    assert st == 1 and not side
                    rd += [Ins(f'ds_read_b128 {hp.sub(0, 4)}, {aHPr}'), Ins(f'ds_read_b128 {hp.sub(4, 4)}, {aHPr} offset:16')]
                if n == HS + 4: side += hs.L
                if n == 8 and o['khalf']:
                    A(f's_cmp_lt_u32 {s["C"]}, 4\ns_cselect_b64 exec, 0, -1')
                    for ct in range(4): A(f'ds_read_b64 {self.resx.sub(2*ct, 2)}, {ra[ct]} offset:{(4 % 3)*8192}')
                    A('s_mov_b64 exec, -1')
                vg = o['vgap0'] if n < 4 else o['vgap']
                if n == 0:
                    rx = [x for x in rd if 'b128' in x.mn] + [Ins(f'ds_read_b64 {self.resx.sub(2*ct, 2)}, {ra[ct]}') for ct in range(4)]
                    k0 = o['k0']
                    self.weave16(mf[:k0], rx, misc, vgap=vg, tail=0)
                    A('@waitvm ch0\ns_barrier')
                    self.weave16(mf[k0:], [x for x in rd if 'b128' not in x.mn], misc, vgap=vg)
                else: self.weave16(mf, rd, misc, vgap=vg, side=side)
            else:
                code = self.diag_code(self.stG, self.stS[1]) + self.stats_code(self.stS[1], self.stS[0], tb4)
                code.append([Ins(f's_mov_b64 exec, {self.mDiag}'), Ins(f'ds_write_b128 {aTBw}, {tb4} offset:256'), Ins('s_mov_b64 exec, -1')])
                assert not side
                self.weave16(mf[:5], [], misc)
                self.weave16(mf[5:13], [], code); assert not code
                self.weave16(mf[13:], [], misc)
        self.stamp('p1 gemm done')
        for b in bufs:
            for r in b[0] + b[1] + [b[2]]: r.free()
        for r in ra + aHs + hb + [hG, hS, vHa, sH, sHm, sTh, self.sTb, hp, aHPw, aHPr, aTBw, tb4, self.stG, self.stS, self.aW1, self.vXa, self.vXb, self.vW1] + self.aX + self.aXo: r.free()
        left = []; cur = []
        for x in misc:
            cur += x if isinstance(x, list) else [x]
            if any(y.kind == 'vmem' for y in cur): left.append(cur); cur = []
        assert not cur
        self.info['w2_left'] = len(left)
        if left: A.ext(left.pop(0))
        A(f'v_readfirstlane_b32 {self.sCv}, {t2}\n@waitlg0\ns_barrier')
        nw2_left = 16 - o['w2a'] - o['w2b']
        late_free = [22, 8, 9] + list(range(10, 16)) + [4, 5] + list(range(16, 22)) + [6, 7, 0, 1, 2, 3]
        tb = [V.alloc(4, 2) for _ in range(5)]
        for t in range(5): A(f'ds_read_b128 {tb[t]}, {aTB} offset:{t*256}')
        rk = [None] + [V.alloc(2) for _ in range(4)]
        for t in range(1, 5): A(f'ds_read_b32 {rk[t][0]}, {ka} offset:{(t-1)*256}\nds_read_b32 {rk[t][1]}, {kb} offset:{(t-1)*256 + 32}')
        A(f's_lshl_b32 {s["T0"]}, {self.sCen}, 4\ns_cmp_eq_u32 {s["T0"]}, {self.sCv}')
        if o['force_slow']: A('s_cmp_eq_u32 0, 1')
        A('s_cbranch_scc0 L_notfast\nL_mode_ok:')
        T = self.tail
        T(f'L_notfast:\ns_mov_b32 {s["T1"]}, 0x8000\nL_cen_loop:\nglobal_load_dword {t2}, {t1}, s[20:21] sc1\ns_waitcnt vmcnt(0)\nv_readfirstlane_b32 {self.sCv}, {t2}')
        T(f's_sub_u32 {s["T1"]}, {s["T1"]}, 1\ns_cbranch_scc1 L_cen_done\ns_and_b32 {s["T2"]}, {self.sCv}, 31\ns_cmp_lt_u32 {s["T2"]}, 16\ns_cbranch_scc1 L_cen_loop\nL_cen_done:')
        if not o['force_slow']: T(f's_cmp_eq_u32 {s["T0"]}, {self.sCv}\ns_cbranch_scc1 L_mode_ok')
        T(f's_mov_b32 {self.sMode}, 1')
        T(f's_add_u32 {s["FL"]}, {s["FL"]}, {FL_SLOW}\ns_add_u32 {self.sFme}, {self.sFme}, {FL_SLOW}\ns_mov_b32 {s["T1"]}, 0x8000\ns_cmp_lg_u32 {s["W"]}, 0\ns_cbranch_scc1 L_slow_loop')
        T(f's_mov_b64 exec, 0x3f\nv_mov_b32 {t2}, 0\nbuffer_store_dword {t2}, {v128}, {self.WS}, {self.sFme} offen sc1\ns_waitcnt vmcnt(0)\ns_mov_b64 exec, 1\nv_mov_b32 {t2}, 1')
        T(f'global_atomic_add {t1}, {t2}, s[20:21] offset:4 sc1\ns_mov_b64 exec, -1')
        T(f'L_slow_loop:\nglobal_load_dword {t2}, {t1}, s[20:21] offset:4 sc1\ns_waitcnt vmcnt(0)\nv_readfirstlane_b32 {s["T0"]}, {t2}')
        T(f's_sub_u32 {s["T1"]}, {s["T1"]}, 1\ns_cbranch_scc1 L_mode_ok\ns_cmp_lt_u32 {s["T0"]}, 16\ns_cbranch_scc1 L_slow_loop\ns_branch L_mode_ok')
        E = Asm()
        csq = V.alloc(4, 2); csk = V.alloc(4, 2); csv = V.alloc(2, 2)
        for r in range(4): E(f'v_mov_b32_dpp {csk[r]}, {self.aK[0][r]} row_newbcast:0 row_mask:0xf bank_mask:0xf')
        for r in range(4): E(f'v_mov_b32_dpp {csq[r]}, {self.aQ[0][r]} row_newbcast:0 row_mask:0xf bank_mask:0xf')
        E(f'v_cvt_pk_bf16_f32 {t1}, {self.aV[0][0]}, {self.aV[0][0]}\nv_mov_b32 {csv[0]}, 0\nv_and_b32 {t1}, 0xffff0000, {t1}\nv_mov_b32 {csv[1]}, 0\nv_sub_f32 {t2}, {self.aV[0][0]}, {t1}')
        E(f's_mov_b64 exec, 0xffff\nv_cvt_pk_bf16_f32 {csv[1]}, {t1}, {t2}\ns_mov_b64 exec, -1')
        Kp = V.alloc(10, 2); Qp = V.alloc(10, 2); Vp = V.alloc(10, 2)
        def fixf(acc, cs, t):
            for h in range(2): E(f'v_pk_fma_f32 {acc[t].sub(2*h, 2)}, {cs.sub(2*h, 2)}, {tb[t].sub(0, 2)}, {acc[t].sub(2*h, 2)} op_sel_hi:[1,0,1]')
        fixf(self.aK, csk, 0)
        for t in range(1, 5): fixf(self.aK, csk, t); fixf(self.aQ, csq, t)
        zs = [None] + [V.alloc(2) for _ in range(4)]
        for t in range(1, 5): E(f'v_pk_mul_f32 {zs[t]}, {rk[t]}, {tb[t].sub(2, 2)} op_sel:[0,1] op_sel_hi:[1,1]')
        cv = lambda acc, dst, t: [f'v_cvt_pk_bf16_f32 {dst[2*t + h]}, {acc[t][2*h]}, {acc[t][2*h+1]}' for h in range(2)]
        vm = [f'v_mfma_f32_16x16x16_bf16 {self.aV[t]}, {tb[t].sub(0, 2)}, {csv}, {self.aV[t]}' for t in range(5)]
        cvs = cv(self.aK, Kp, 0)
        for t in range(1, 5): cvs += cv(self.aK, Kp, t) + cv(self.aQ, Qp, t)
        for t in range(5):
            E(vm[t]); E(cvs.pop(0)); E(cvs.pop(0))
        Sp, So = self.aK, self.aQ
        Sp = [None] + self.aK[0:4]; So = [None] + self.aQ[0:4]
        for t in range(1, 5):
            E(f'v_mfma_f32_16x16x16_bf16 {Sp[t]}, {Kp.sub(2*t-2, 2)}, {Qp.sub(2*t, 2)}, 0')
            for _ in range(2):
                if cvs: E(cvs.pop(0))
            E(f'v_mfma_f32_16x16x16_bf16 {So[t]}, {Kp.sub(2*t, 2)}, {Qp.sub(2*t, 2)}, 0')
            for _ in range(2):
                if cvs: E(cvs.pop(0))
        z = [None] + [V.alloc(2) for _ in range(4)]
        for t in range(1, 5):
            for h, mk in ((0, mOwnA), (1, mOwnB)):
                E(f'v_cndmask_b32 {Sp[t][2*h]}, {Sp[t][2*h]}, {Sp[t][2*h+1]}, {self.mB0}\nv_cndmask_b32 {So[t][2*h]}, {So[t][2*h]}, {So[t][2*h+1]}, {self.mB0}')
                E(f'v_cndmask_b32 {z[t][h]}, {Sp[t][2*h]}, {So[t][2*h]}, {mk}')
        E(f'v_pk_fma_f32 {z[1]}, {z[1]}, {zs[1]}, {bias}')
        for t in range(2, 5): E(f'v_pk_mul_f32 {z[t]}, {z[t]}, {zs[t]}')
        red = zs
        fl = [x for t in range(5) for x in cv(self.aV, Vp, t)]
        def fill(n):
            for _ in range(n):
                if fl: E(fl.pop(0))
        def allreduce(op, mid=None):
            r = [None] + [red[t][0] for t in range(1, 5)]
            for t in (1, 3, 2, 4): E(f'{op} {r[t]}, {z[t][0]}, {z[t][1]}')
            E(f'v_permlane32_swap_b32 {r[1]}, {r[3]}'); fill(1)
            E(f'v_permlane32_swap_b32 {r[2]}, {r[4]}')
            E(f'{op} {r[1]}, {r[1]}, {r[3]}\n{op} {r[2]}, {r[2]}, {r[4]}'); fill(2)
            E(f'v_permlane16_swap_b32 {r[1]}, {r[2]}')
            E(f'{op} {r[1]}, {r[1]}, {r[2]}')
            if mid: E(f'{mid} {r[1]}, {r[1]}'); fill(1)
            E(f'v_mov_b32 {r[2]}, {r[1]}'); fill(2)
            E(f'v_permlane16_swap_b32 {r[1]}, {r[2]}')
            E(f'v_mov_b32 {r[3]}, {r[1]}\nv_mov_b32 {r[4]}, {r[2]}'); fill(1)
            E(f'v_permlane32_swap_b32 {r[1]}, {r[3]}\nv_permlane32_swap_b32 {r[2]}, {r[4]}')
        allreduce('v_max_f32')
        for t in range(1, 5): E(f'v_pk_add_f32 {z[t]}, {z[t]}, {red[t]} op_sel_hi:[1,0] neg_lo:[0,1] neg_hi:[0,1]')
        for t in range(1, 5): E(f'v_exp_f32 {z[t][0]}, {z[t][0]}\nv_exp_f32 {z[t][1]}, {z[t][1]}')
        fl += [f'v_pk_mul_f32 {rk[t]}, {z[t]}, {rk[t]}' for t in range(1, 5)]
        allreduce('v_add_f32', 'v_rcp_f32')
        fill(20)
        for t in range(1, 5): E(f'v_pk_mul_f32 {z[t]}, {rk[t]}, {red[t]} op_sel_hi:[1,0]')
        for t in range(1, 5): E(f'v_cvt_pk_bf16_f32 {z[t][0]}, {z[t][0]}, {z[t][1]}')
        P = Sp; O = So
        for t in range(1, 5):
            for q in range(4):
                E(f'v_perm_b32 {P[t][q]}, {z[t][0]}, {z[t][0]}, {sel[q]}')
                if q == 1 and t > 1: E(f'v_mfma_f32_16x16x32_bf16 {O[t-1]}, {Vp.sub(2*t-4, 4)}, {P[t-1]}, 0')
        of = [self.aV[0], self.aV[1]]
        oc = lambda t: [f'v_cvt_pk_bf16_f32 {of[(t-1) >> 1][2*((t-1) & 1) + h]}, {O[t][2*h]}, {O[t][2*h+1]}' for h in range(2)]
        for x in oc(1): E(x)
        E(f'v_mfma_f32_16x16x32_bf16 {O[4]}, {Vp.sub(6, 4)}, {P[4]}, 0')
        groups = pf_flat('e0') + left + self.dmas(nw2_left) + pf_flat('e1')
        self.free_blocks += late_free
        groups += self.dmas(o['b_epi'])
        A.ext(sprinkle(E, groups, o.get('sp1', 18), start=8))
        A(f's_add_u32 {s["T0"]}, {self.sOst}, 32768\n;dual_begin')
        for x in oc(2) + oc(3): A(x)
        A(f'v_permlane16_swap_b32 {of[0][0]}, {of[0][2]}\nv_permlane16_swap_b32 {of[0][1]}, {of[0][3]}')
        for x in oc(4): A(x)
        self.store2(A, 'dwordx4', of[0], self.vL16, self.sOst, 0, 'ost', self.OUT)
        A(f'v_permlane16_swap_b32 {of[1][0]}, {of[1][2]}\nv_permlane16_swap_b32 {of[1][1]}, {of[1][3]}')
        self.store2(A, 'dwordx4', of[1], self.vL16, s["T0"], 0, 'ost', self.OUT)
        A(';dual_end')
        self.stamp('o stored')
        for gq in pf_flat('e2'): A.ext(gq)
        for r in (vT, vTo, sP, v1k): r.free()
        self.junk1 = junk
        self.OSRD = OSRD
        for r in tb + rk[1:] + zs[1:] + z[1:] + [csq, csk, csv, Kp, Qp, Vp, bias, sel, aTB, ka, kb] + self.aQ + self.aK + self.aV[2:]: r.free()
        for r in (mOwnA, mOwnB, self.sCen, self.sCoff, self.sCv, self.sW3K, self.sKC, self.sSO): r.free()
        self.of = of

    def phase2(self):
        A, V, S, AG, s, vL, o = self.A, self.V, self.S, self.AG, self.s, self.vL, self.o
        t1, t2, t3, j, g = self.t1, self.t2, self.t3, self.vJ, self.vG
        self.vOne = V.alloc(); self.vPv = V.alloc()
        assert ('W2', 15) in self.loc
        aw = [V.alloc() for _ in range(4)]
        mark = len(A.L)
        A(f'v_lshl_add_u32 {t1}, {g}, 10, {self.vTRb}\nv_add_u32 {t1}, {23*BLK}, {t1}')
        for ct in range(4): A(f'v_xor_b32 {t2}, {ct*32}, {self.vTRf}\nv_add_u32 {aw[ct]}, {t1}, {t2}')
        pa = V.alloc(); oa = V.alloc(); hv = V.alloc(); sSt = S.alloc(); vj16 = V.alloc(); aRw = V.alloc()
        A(f's_lshl_b32 {s["T0"]}, {s["SB"]}, 5\nv_and_b32 {t1}, 7, {vL}\nv_lshl_add_u32 {pa}, {t1}, 2, {s["T0"]}\nv_mov_b32 {self.vOne}, 1')
        A(f's_lshr_b32 {s["T0"]}, {s["W"]}, 1\ns_lshl_b32 {s["T0"]}, {s["T0"]}, 10\ns_and_b32 {s["T1"]}, {s["W"]}, 1\ns_lshl_b32 {s["T1"]}, {s["T1"]}, 8')
        A(f'v_lshlrev_b32 {vj16}, 4, {j}\nv_and_b32 {t1}, 1, {g}\nv_lshl_add_u32 {t1}, {t1}, 9, {vj16}\nv_add_u32 {t1}, {s["T1"]}, {t1}\nv_lshrrev_b32 {t2}, 1, {g}\nv_lshl_add_u32 {hv}, {t2}, 11, {t1}\nv_lshl_add_u32 {oa}, {t2}, 10, {t1}')
        A(f's_lshl_b32 {self.sR2}, {s["BLK"]}, 16\ns_lshl_b32 {s["T2"]}, {s["T0"]}, 5\ns_add_u32 {self.sR2}, {self.sR2}, {s["T2"]}')
        acc = [V.alloc(4, 2) for _ in range(4)]
        for ct in range(4):
            for h in range(2):
                A(f'v_lshlrev_b32 {acc[ct][2*h]}, 16, {self.resx[2*ct+h]}\nv_and_b32 {acc[ct][2*h+1]}, 0xffff0000, {self.resx[2*ct+h]}')
        A(f's_lshl_b32 {s["T0"]}, {s["T0"]}, 1\ns_add_u32 {sSt}, {s["T0"]}, {s["T1"]}\ns_lshl_b32 {s["T0"]}, {s["SB"]}, 12\ns_add_u32 {sSt}, {sSt}, {s["T0"]}')
        A(f's_and_b32 {s["T0"]}, {s["C"]}, 2\ns_lshl_b32 {s["T0"]}, {s["T0"]}, 9\ns_add_u32 {sSt}, {sSt}, {s["T0"]}\ns_and_b32 {s["T0"]}, {s["C"]}, 4\ns_lshl_b32 {s["T0"]}, {s["T0"]}, 7\ns_add_u32 {sSt}, {sSt}, {s["T0"]}')
        A(f's_and_b32 {s["T0"]}, {s["C"]}, 1\ns_lshl_b32 {s["T0"]}, {s["T0"]}, 3\ns_add_u32 {sSt}, {sSt}, {s["T0"]}\ns_add_u32 {sSt}, {sSt}, {s["GB"]}\ns_add_u32 {sSt}, {sSt}, {WS_ST}')
        A.L[mark:] = sprinkle(A.L[mark:], self.dmas(o['b_pre1']), o.get('sp3', 12))
        A('@waitvm ost')
        for r in self.of: r.free()
        self.stamp('o drained')
        A('@waitvm W2_15\ns_barrier')
        A.ext(self.signal(0))
        Wf = [[AG.alloc(4, 4) for _ in range(4)] for _ in range(16)]
        def rd(i):
            off = (self.loc[('W2', i)] - 23)*BLK
            return [Ins(f'ds_read_b64_tr_b16 {Wf[i][ct].sub(2*a, 2)}, {aw[ct]} offset:{off + a*512}') for ct in range(4) for a in range(2)]
        npre = o['w2pre']
        A.ext(sprinkle([x for i in range(npre) for x in rd(i)], self.dmas(o['b_post1']), 8))
        A.ext(self.visit('v1'))
        self.poll_block(A, pa, 0, self.mW16 if o['one_poll'] else '0xff'); A('@drained_vm')
        if o['one_poll']: A('s_barrier')
        self.stamp('sync1 done')
        self.junk1.free()
        Of = [V.alloc(4, 2) for _ in range(16)]
        ld = [([Ins(f's_add_u32 {self.sR2}, {self.sR2}, 4096')] if i and i % 2 == 0 else []) + [Ins(f'buffer_load_dwordx4 {Of[i]}, {oa}, {self.OSRD}, {self.sR2} offen offset:{(i & 1)*2048} sc1')] for i in range(16)]
        rest = [x for i in range(npre, 16) for x in rd(i)]
        LO = o['LO']
        for i in range(LO):
            A.ext(ld[i]); A.ext(rest[:5]); rest = rest[5:]
        misc = [x for gq in ld[LO:] + self.dmas(o['b_o']) for x in gq]
        mf = [Ins(f'v_mfma_f32_16x16x32_bf16 {acc[ct]}, {Wf[i][ct]}, {Of[i]}, {acc[ct]}') for i in range(16) for ct in range(4)]
        assert len(rest) <= 52, len(rest)
        self.gap_since_vm = 99
        self.weave16(mf, rest, misc)
        A.ext(misc)
        self.stamp('p2 gemm done')
        w2b = sorted(self.loc[('W2', i)] for i in range(16))
        self.resb = w2b[0]; assert w2b[1] == w2b[0] + 1
        A(f's_add_u32 {s["T0"]}, {self.sW2K}, {self.resb*BLK}\nv_lshlrev_b32 {t1}, 7, {j}\nv_lshl_add_u32 {t1}, {g}, 3, {t1}')
        A(f'v_bfe_u32 {t2}, {j}, 0, 2\nv_lshl_add_u32 {t1}, {t2}, 5, {t1}\nv_add_u32 {aRw}, {s["T0"]}, {t1}\ns_barrier')
        self.free_blocks += w2b[2:]
        hf = [Of[0], Of[1]]; G4, S4 = Of[2], Of[3]
        A(';dual_begin')
        for par in range(2):
            for ct in range(4): A(f'v_cvt_pk_bf16_f32 {hf[par][ct]}, {acc[ct][par]}, {acc[ct][2+par]}')
        rp = Reg('v', Of[4].b, 8); assert Of[5].b == Of[4].b + 4
        rc = [f'v_cvt_pk_bf16_f32 {rp[2*ct+h]}, {acc[ct][2*h]}, {acc[ct][2*h+1]}' for ct in range(4) for h in range(2)]
        A(f'v_mfma_f32_16x16x32_bf16 {G4}, {hf[0]}, {hf[0]}, 0')
        self.store2(A, 'dwordx4', hf[0], hv, self.sHst, 0, 'hst')
        A(f'v_mfma_f32_16x16x32_bf16 {G4}, {hf[1]}, {hf[1]}, {G4}')
        A(f'v_mfma_f32_16x16x32_bf16 {S4}, {self.ones}, {hf[0]}, 0')
        A(f'v_mfma_f32_16x16x32_bf16 {S4}, {self.ones}, {hf[1]}, {S4}')
        self.store2(A, 'dwordx4', hf[1], hv, self.sHst, 1024, 'hst')
        d = self.diag_code(G4, S4[1])
        A('\n'.join(rc[:3])); A.ext(d[:2]); A(rc[3]); A.ext(d[2:])
        A(f's_mov_b64 exec, {self.mDiag}')
        self.store2(A, 'dwordx2', S4.sub(0, 2), vj16, sSt, 0, 'hst')
        A('s_mov_b64 exec, -1\n;dual_end')
        self.stamp('h stored')
        A('\n'.join(rc[4:]))
        A(f'ds_write_b64 {aRw}, {rp.sub(0, 2)}')
        for ct in range(1, 4): A(f'v_xor_b32 {t1}, {ct*32}, {aRw}\nds_write_b64 {t1}, {rp.sub(2*ct, 2)}')
        for r in aw + [pa, oa, hv, vj16, aRw] + acc + Of[6:] + [x for y in Wf for x in y] + [self.vW2, self.mB0, self.mB1, self.mDiag, self.sR2, sSt, self.sOst, self.sHst, self.ones]: r.free()
        self.late_free = Of[:6]

    def phase34(self):
        A, V, S, AG, s, vL, o = self.A, self.V, self.S, self.AG, self.s, self.vL, self.o
        t1, t2, t3, j, g = self.t1, self.t2, self.t3, self.vJ, self.vG
        P = Asm()
        Q = Asm()
        class Win:
            def __init__(w, base): w.r = {0: base}
            def need(w, k):
                if k in w.r: return []
                w.r[k] = V.alloc()
                return [Ins(f'v_add_u32 {w.r[k]}, {k << 16}, {w.r[0]}')]
        aF, aH, aD = [], [], []
        P(f'v_and_b32 {t1}, 1, {g}\nv_lshlrev_b32 {t1}, 11, {t1}\nv_lshrrev_b32 {t2}, 1, {g}\nv_lshl_add_u32 {t3}, {t2}, 10, {t1}')
        b0 = V.alloc(); P(f'v_add3_u32 {b0}, {t3}, {self.vTRb}, {self.vTRf}'); aF.append(Win(b0))
        for uu in range(1, 4):
            b = V.alloc(); P(f'v_xor_b32 {b}, {uu*32}, {b0}'); aF.append(Win(b))
        b0 = V.alloc(); b1 = V.alloc()
        P(f'v_lshl_add_u32 {t3}, {t2}, 9, {t1}\nv_bfe_u32 {t1}, {vL}, 2, 2\nv_lshl_add_u32 {t3}, {t1}, 6, {t3}\nv_and_b32 {t1}, 3, {vL}\nv_lshl_add_u32 {t3}, {t1}, 3, {t3}\nv_and_b32 {t1}, 1, {g}\nv_lshl_add_u32 {b0}, {t1}, 5, {t3}\nv_xor_b32 {b1}, 32, {b0}')
        aH = [Win(b0), Win(b1)]
        P(f's_and_b32 {s["T1"]}, {s["W"]}, 2\nv_or_b32 {t1}, {s["T1"]}, {t1}\nv_lshlrev_b32 {t1}, 5, {t1}')
        b = V.alloc(); P(f'v_xor_b32 {b}, {t1}, {self.vL16}\nv_add_u32 {b}, {s["W1K"]}, {b}'); aCF = Win(b)
        b = V.alloc(); P(f's_lshl_b32 {s["T1"]}, {s["T1"]}, 4\nv_xor_b32 {b}, {s["T1"]}, {self.vL16}\nv_add_u32 {b}, {s["W1K"]}, {b}'); aCH = Win(b)
        delta = V.alloc(4, 2)
        P(f'v_and_b32 {t1}, 1, {j}\nv_lshlrev_b32 {t1}, 4, {t1}\nv_mov_b32 {t2}, 0x3f80\nv_lshlrev_b32 {t1}, {t1}, {t2}')
        for d in range(4):
            mk = 0x00030003 << (2*d)
            P(f's_mov_b32 vcc_lo, {hex(mk)}\ns_mov_b32 vcc_hi, {hex(mk)}\nv_cndmask_b32 {delta[d]}, 0, {t1}, vcc')
        pa2 = V.alloc(); pa3 = V.alloc(); aRes = V.alloc(); vHl = {'F': V.alloc(), 'H': V.alloc()}
        sT4 = S.alloc(); sGa = S.alloc(); sGb = S.alloc(); sGl = S.alloc(); sHl = S.alloc(); sKH = S.alloc(); sTH = S.alloc(); sSl = S.alloc(); sGo = S.alloc(); sTs = S.alloc(); sLo = S.alloc(); sLw = S.alloc()
        P(f's_lshr_b32 {sKH}, {s["W"]}, 1\ns_and_b32 {sTH}, {s["W"]}, 1')
        P(f'v_lshlrev_b32 {pa3}, 2, {j}\nv_lshl_add_u32 {pa2}, {sKH}, 5, {pa3}')
        P(f's_lshl_b32 {s["T1"]}, {s["W"]}, 15\ns_add_u32 {sHl}, {s["T1"]}, {s["GB"]}\nv_lshl_add_u32 {vHl["F"]}, {s["PF"]}, 10, {self.vL16}\nv_xor_b32 {vHl["H"]}, 1024, {vHl["F"]}')
        P(f's_lshl_b32 {s["T2"]}, {sTH}, 12\ns_add_u32 {s["T2"]}, {s["T2"]}, {self.resb*BLK}\nv_lshrrev_b32 {t2}, 5, {vL}\nv_lshl_add_u32 {t2}, {sKH}, 1, {t2}\nv_and_b32 {t1}, 3, {vL}\nv_xor_b32 {t2}, {t2}, {t1}')
        P(f'v_and_b32 {t1}, 31, {vL}\nv_lshl_add_u32 {t1}, {t1}, 7, {s["T2"]}\nv_lshl_add_u32 {aRes}, {t2}, 5, {t1}')
        Q(f's_add_u32 {sSl}, {self.sW2K}, {s["GB"]}\ns_add_u32 {sSl}, {sSl}, {WS_ST}')
        Q(f's_lshl_b32 {s["T3"]}, {s["W"]}, 15\ns_lshl_b32 {s["T2"]}, {s["M"]}, 10\ns_add_u32 {s["T2"]}, {s["T2"]}, {s["T3"]}\ns_add_u32 {sGa}, {s["T2"]}, {s["GB"]}')
        Q(f's_lshl_b32 {sLo}, {s["G"]}, 17\ns_add_u32 {sGo}, {sLo}, {s["T2"]}')
        Q(f's_mul_i32 {s["T2"]}, {s["PF"]}, {16*KB - 512}\ns_add_u32 {sGb}, {s["T3"]}, {s["T2"]}\ns_lshl_b32 {s["T2"]}, {s["M"]}, 9\ns_add_u32 {sGb}, {sGb}, {s["T2"]}\ns_add_u32 {sGb}, {sGb}, {s["GB"]}')
        Q(f's_lshl1_add_u32 {sT4}, {s["SB"]}, {sTH}\ns_lshl1_add_u32 {s["T2"]}, {sT4}, {sKH}\ns_lshl_b32 {s["T2"]}, {s["T2"]}, 14\ns_add_u32 {sLo}, {sLo}, {s["T2"]}\ns_add_u32 {sLw}, {s["GB"]}, {s["T2"]}')
        Q(f'v_bfe_u32 {t1}, {vL}, 2, 2\nv_lshrrev_b32 {t2}, 1, {g}\nv_lshl_add_u32 {t1}, {t2}, 2, {t1}\nv_lshlrev_b32 {t3}, 7, {t1}\nv_bfe_u32 {t1}, {vL}, 3, 1\nv_lshl_add_u32 {t3}, {t1}, 6, {t3}')
        Q(f'v_and_b32 {t1}, 1, {vL}\nv_lshl_add_u32 {t3}, {t1}, 5, {t3}\nv_and_b32 {t1}, 1, {g}\nv_lshl_add_u32 {t3}, {t1}, 4, {t3}\nv_bfe_u32 {t1}, {vL}, 1, 1\nv_lshl_add_u32 {t3}, {t1}, 3, {t3}')
        b0 = V.alloc(); b1 = V.alloc()
        Q(f's_mul_i32 {s["T2"]}, {sKH}, {2048 + 64}\nv_xor_b32 {b0}, {s["T2"]}, {t3}\nv_xor_b32 {b1}, 64, {b0}')
        aD = [Win(b0), Win(b1)]
        aCW = V.alloc(); aCR = V.alloc()
        Q(f's_lshl_b32 {s["T2"]}, {sTH}, 10\ns_lshl_b32 {s["T3"]}, {sKH}, 9\ns_add_u32 {s["T2"]}, {s["T2"]}, {s["T3"]}\ns_add_u32 {s["T2"]}, {s["T2"]}, {SCR_CS}')
        Q(f'v_lshl_add_u32 {t1}, {g}, 4, {s["T2"]}\nv_lshl_add_u32 {aCW}, {j}, 5, {t1}')
        Q(f'v_and_b32 {t1}, 1, {g}\nv_lshlrev_b32 {t1}, 9, {t1}\nv_lshl_add_u32 {t1}, {j}, 2, {t1}\nv_lshl_add_u32 {t1}, {t2}, 11, {t1}\nv_add_u32 {aCR}, {SCR_CS}, {t1}')
        cA = V.alloc(4, 2); cB = V.alloc(4, 2); cT = V.alloc(2)
        for r in (cA, cB):
            for k in range(1, 4): Q(f'v_mov_b32 {r[k]}, 0')
        self.info['setupP'] = len(P.L); self.info['setupQ'] = len(Q.L)
        HB = {('F', i): AG.at(8*i, 4) for i in range(16)}; HB.update({('H', i): AG.at(8*i + 4, 4) for i in range(16)})
        ops = []
        def op3(u, ty, i):
            if ty == 'F':
                if u < 4: key, ad, st, ex = ('F1', i), aF[u], 512, 0
                else: key, ad, st, ex = ('S3', i >> 1), aH[u - 4], 256, (i & 1)*1024
            else:
                if u < 2: key, ad, st, ex = ('H1', i >> 1), aH[u], 256, (i & 1)*1024
                else: key, ad, st, ex = ('S2', i), aF[u - 2], 512, 0
            ops.append(dict(k='m', u=u, key=key, ad=ad, st=st, ex=ex, B=HB[(ty, i)], hk=(ty, i)))
        if o['order'] == 'pair':
            for i in range(16):
                for ty in 'FH':
                    for u in (0, 1): op3(u, ty, i)
            for i in range(16):
                for u in (2, 3): op3(u, 'F', i)
        else:
            for i in range(16):
                for u in range(4): op3(u, 'F', i)
                for u in (0, 1): op3(u, 'H', i)
        if o.get('o45') == 'all':
            for i in range(16):
                for u in (2, 3, 4, 5): op3(u, 'H', i)
            for u in (4, 5):
                for i in range(16): op3(u, 'F', i)
        elif o.get('o23') == 'mix':
            for i in range(16):
                for u in (2, 3): op3(u, 'H', i)
        else:
            for u in (2, 3):
                for i in range(16): op3(u, 'H', i)
        if o.get('o45') == 'all': pass
        elif o.get('o45') == 'mix2':
            for ty in 'HF':
                for i in range(16):
                    for u in (4, 5): op3(u, ty, i)
        elif o.get('o45', 'mix') == 'mix':
            for i in range(16):
                for u in (4, 5): op3(u, 'H', i)
            for u in (4, 5):
                for i in range(16): op3(u, 'F', i)
        else:
            for u in (4, 5):
                for ty in 'HF':
                    for i in range(16): op3(u, ty, i)
        NG, NR, LA = o['NG'], o['NR'], o['LA']
        GB = [AG.alloc(4, 4) for _ in range(NG)]
        TL = o['TL']
        o4 = lambda i, k: ops.append(dict(k='m', u=6 + k, key=('W4', i), ad=aD[k], st=1024, ex=0, B=None, hk=('g', i)))
        for i in range(43 - TL):
            for k in range(2): o4(i, k)
        for k in (1, 0):
            for i in range(43 - TL, 43): o4(i, k)
        RB = [AG.alloc(4, 4) for _ in range(NR)]
        csacc = {c: V.alloc(4, 2) for c in ('F1', 'H1', 'S2', 'S3')}
        cnt = {}
        def cs_op(key):
            c = key[0]; cnt[c] = cnt.get(c, 0) + 1
            return dict(k='c', key=key, ad=aCF if c in ('F1', 'S2') else aCH, first=cnt[c] == 1, last=cnt[c] == (16 if c in ('F1', 'S2') else 8))
        pre_keys = [k for k in self.issued if k[0] != 'W2'][:o['cs_pre']]
        pre_ops = [cs_op(k) for k in pre_keys]
        seen = set(pre_keys); ops2 = []; at = {}; fc = {}; nth = {}
        for n, p in enumerate(ops):
            if p['key'][0] != 'W4' and p['key'] not in seen:
                seen.add(p['key']); c = p['key'][0]; fc.setdefault(c, n); nth[c] = nth.get(c, -1) + 1
                lead, spc = o['cs_lead'].get(c, (0, 99))
                at.setdefault(max(0, min(n, fc[c] - lead + spc*nth[c])), []).append(p['key'])
        for n, p in enumerate(ops):
            ops2 += [cs_op(k) for k in at.get(n, [])] + [p]
        ops = ops2
        for n, p in enumerate(ops): p['R'] = RB[n % NR]; p['n'] = n
        for n, p in enumerate(pre_ops): p['R'] = Reg('a', 4*n, 4); p['n'] = -1
        N = len(ops)
        last_use = {p['key']: p['n'] for p in ops}
        last_op = {p['u']: p['n'] for p in ops if p['k'] == 'm'}
        first4 = min(p['n'] for p in ops if p.get('u', 0) >= 6)
        def reads(p):
            b = self.loc[p['key']]; w, off = b >> 4, (b & 15)*BLK
            pre = p['ad'].need(w); ad = p['ad'].r[w]
            if p['k'] == 'c': return pre + [Ins(f'ds_read_b128 {p["R"]}, {ad} offset:{off}', f'r{p["n"]}')]
            return pre + [Ins(f'ds_read_b64_tr_b16 {p["R"].sub(2*a, 2)}, {ad} offset:{off + p["ex"] + a*p["st"]}', f'r{p["n"]}') for a in range(2)]
        started = set()
        def mfma(p):
            if p['k'] == 'c':
                c = csacc[p['key'][0]]
                return Ins(f'v_mfma_f32_16x16x32_bf16 {c}, {delta}, {p["R"]}, {0 if p["first"] else c}')
            a = acc[p['u']] if p['u'] < 6 else (accK, accS)[p['u'] - 6]
            z = p['u'] not in started and p['u'] != 6
            started.add(p['u'])
            return Ins(f'v_mfma_f32_32x32x16_bf16 {a}, {p["R"]}, {p["B"] or slot[p["hk"]]}, {0 if z else a}')
        visible = set(self.issued)
        A.ext(sprinkle(P, self.dmas(o['b_pre2']), o.get('sp3', 12)))
        for p in pre_ops: A.ext(p['ad'].need(self.loc[p['key']] >> 4))
        A('@waitvm hst')
        self.stamp('h drained')
        for r in self.late_free + [self.vTRb, self.vTRf]: r.free()
        A('@waitlg0\ns_barrier')
        A.ext(self.signal(1))
        res = self.resx
        E = Asm()
        E(f'ds_read_b128 {res.sub(0, 4)}, {aRes}\nds_read_b128 {res.sub(4, 4)}, {aRes} offset:16')
        for q in range(len(pre_ops) + 4):
            if q < len(pre_ops): E.ext(reads(pre_ops[q]))
            if q >= 4: E.L.append(mfma(pre_ops[q - 4]))
        for q in range(LA):
            assert ops[q]['key'] in visible
            E.ext(reads(ops[q]))
        if o['q_early']: E.ext(Q); Q = Asm()
        A.ext(sprinkle(E, self.dmas(o['b_post2']), o.get('sp2', 14)))
        if o.get('l2fill2'):
            for srd in o['l2fill2']:
                if srd == 'W3': A(f's_lshr_b32 {s["T0"]}, s2, 3\ns_and_b32 {s["T1"]}, {s["W"]}, 1\ns_lshl1_add_u32 {s["T0"]}, {s["T0"]}, {s["T1"]}\ns_mul_i32 {s["T0"]}, {s["T0"]}, {172*128}\ns_mov_b32 {s["T2"]}, s38\ns_mov_b32 s38, {512*PITCH3}')
                else: A(f's_lshr_b32 {s["T0"]}, s2, 3\ns_lshl2_add_u32 {s["T0"]}, {s["T0"]}, {s["W"]}\ns_mul_i32 {s["T0"]}, {s["T0"]}, {86*128}')
                for q in range(3 if srd == 'W3' else 2): A(f'buffer_load_dword {self.vPv}, {self.v128}, {getattr(self, srd)}, {s["T0"]} offen sc1\ns_add_u32 {s["T0"]}, {s["T0"]}, 8192')
                A('@waitvm0')
                if srd == 'W3': A(f's_mov_b32 s38, {s["T2"]}')
            A(f's_mov_b32 {s["T0"]}, 60\nL_dly2:\ns_sub_u32 {s["T0"]}, {s["T0"]}, 1\ns_cmp_lg_u32 {s["T0"]}, 0\ns_cbranch_scc1 L_dly2')
        A.ext(self.visit('v2'))
        if o['one_poll']: self.poll_block(A, pa3, 1, self.mW16); A('@drained_vm\ns_barrier')
        else: self.poll_block(A, pa2, 1, '0xff'); A('@drained_vm')
        self.stamp('sync2 done')
        self.mark34 = len(A.L)
        acc = [V.alloc(16, 2) for _ in range(6)]
        accK, accS = acc[0], acc[1]
        LATH, LATD, LATS, VS, WE, VC = o['LATH'], o['LATD'], o['LATS'], o['vslack'], o['WE'], o['VC']
        horder = []; hfirst = {}; hlast = {}
        for p in ops:
            if 'hk' in p:
                if p['hk'] not in hfirst: hfirst[p['hk']] = p['n']; horder.append(p['hk'])
                hlast[p['hk']] = p['n']
        first_use = {}
        for p in ops: first_use.setdefault(p['key'], p['n'])
        sp = V.alloc(8, 2)
        cc = V.alloc(2); c1, c3 = cc[0], cc[1]; iv2 = V.alloc(2); iv = iv2[0]; tt = V.alloc(8, 2); go = [V.alloc(4, 2), V.alloc(4, 2)]
        cs_last = {p['key'][0]: p['n'] for p in pre_ops + ops if p['k'] == 'c' and p['last']}
        I = lambda text, tag=None: [Ins(x, tag) for x in text.split('\n')]
        tagof = lambda k: f'{k[0]}_{k[1]}'
        stage_of = lambda i: 1 if i < 15 else 2 if i < 29 else 3 if i < 36 else 4
        rq = []; pairw = {}
        for q, hk in enumerate(horder):
            ty, i = hk
            if ty == 'g':
                sg = stage_of(i); k = i - (0, 15, 29, 36)[sg - 1]
                code = I(f's_add_u32 {sGl}, {sLo if sg == 1 else sLw}, {(0, WS_G, WS_H, WS_H + 8192)[sg - 1] + (k >> 2)*4096}') if k % 4 == 0 else []
                rq.append(dict(id=hk, dl=hfirst[hk], cost=VC, stage=min(sg, 3) if o['merge34'] else sg, lat=LATD if sg == 2 else LATH, code=code, srd=self.OUT if sg == 1 else self.WS, off=(k & 3)*1024))
                if o['PW'] and hk not in pairw and i < 42 and stage_of(i) == stage_of(i + 1): pairw[hk] = ('g', i + 1); pairw[('g', i + 1)] = None
            else:
                code = I(f's_add_u32 {sHl}, {sHl}, 4096') if q and q % 4 == 0 else []
                assert i >> 1 == q >> 2
                code += I(f'buffer_load_dwordx4 {HB[hk]}, {vHl[ty]}, {self.WS}, {sHl} offen offset:{(i & 1)*2048} sc1', tagof(hk))
                rq.append(dict(id=hk, dl=hfirst[hk], cost=VC, code=code))
                if o['PW'] and q >= 4 and q % 2 == 0: pairw[hk] = horder[q + 1]
        for k in range(2):
            rq.append(dict(id=('st', k), dl=last_op[0] - o.get('st_lead', 10), cost=VC, ev='Q', code=I(f'buffer_load_dwordx4 {sp.sub(4*k, 4)}, {self.vL16}, {self.WS}, {sSl} offen offset:{k*1024} sc1')))
        rq.sort(key=lambda r: r['dl'])
        K1 = -2*math.sqrt(2/math.pi)*LOG2E
        chA = []
        def cs_items(c):
            a = csacc[c]; full = c in ('F1', 'S2')
            off = {'F1': 0, 'H1': 2048, 'S2': 2048 + 128, 'S3': 256}[c]
            for ror in ((8,) if full else (8, 4)):
                for r in range(4): chA.append(('v', ('op', cs_last[c] + 2), I(f'v_add_f32_dpp {a[r]}, {a[r]}, {a[r]} row_ror:{ror} row_mask:0xf bank_mask:0xf'), None))
            L = Asm(); L(f's_mov_b64 exec, {"0x00ff00ff" if full else "0x000f000f"}'); L(f'ds_write_b128 {aCW}, {a} offset:{off}', 'wr' + c); L('s_mov_b64 exec, -1')
            chA.append(('d', None, L.L, 'wr' + c))
        def corr_items(u, cls):
            chA.append(('d', ('ev', ['bar_wr' + c for c in cls], 0), I(f'ds_read_b32 {cT[0]}, {aCR} offset:{u*64}\nds_read_b32 {cT[1]}, {aCR} offset:{u*64 + 1024}'), f'crd{u}'))
            for k, x in enumerate((f'v_add_f32 {cT[0]}, {cT[0]}, {cT[1]}', f'v_cvt_pk_bf16_f32 {cT[1]}, {cT[0]}, {cT[0]}', f'v_and_b32 {cT[1]}, 0xffff0000, {cT[1]}',
                                   f'v_sub_f32 {cT[0]}, {cT[0]}, {cT[1]}', f'v_cvt_pk_bf16_f32 {cA[0]}, {cT[1]}, {cT[0]}')):
                chA.append(('v', ('ev', [f'crd{u}'], 100), I(x), None))
            chA.append(('m', ('both', first_op[u], 'stats'), I(f'v_mfma_f32_32x32x16_bf16 {acc[u]}, {cA}, {cB}, {acc[u]}'), f'corr{u}'))
        first_op = {}
        for p in ops:
            if p['k'] == 'm': first_op.setdefault(p['u'], p['n'])
        ev = {}; arr = {}; evop = {}
        for x in Q.L: chA.append(('v', None, [x], None))
        if Q.L: chA[-1] = chA[-1][:3] + ('Q',)
        else: ev['Q'] = 0
        for c in sorted(('F1', 'H1'), key=cs_last.get): cs_items(c)
        corr_items(0, ('F1', 'H1')); corr_items(1, ('F1', 'H1'))
        cs_items('S2'); corr_items(2, ('F1', 'S2')); corr_items(3, ('F1', 'S2'))
        cs_items('S3'); corr_items(4, ('S2', 'S3')); corr_items(5, ('S2', 'S3'))
        chB = []; chC = []; chD = []; chP = []; vP = [self.vPv] + [V.alloc() for _ in range(3)]
        stc = (f'v_add_f32 {sp[0]}, {sp[0]}, {sp[2]}\nv_add_f32 {sp[1]}, {sp[1]}, {sp[3]}\nv_add_f32 {sp[4]}, {sp[4]}, {sp[6]}\nv_add_f32 {sp[5]}, {sp[5]}, {sp[7]}\n'
               f'v_add_f32 {sp[0]}, {sp[0]}, {sp[4]}\nv_add_f32 {sp[1]}, {sp[1]}, {sp[5]}\nv_mov_b32 {sp[2]}, {sp[0]}\nv_mov_b32 {sp[3]}, {sp[1]}\nv_nop\n'
               f'v_permlane32_swap_b32 {sp[0]}, {sp[2]}\nv_permlane32_swap_b32 {sp[1]}, {sp[3]}\nv_add_f32 {sp[0]}, {sp[0]}, {sp[2]}\nv_add_f32 {sp[1]}, {sp[1]}, {sp[3]}\n'
               f'v_mul_f32 {sp[0]}, {fhex(-1/512)}, {sp[0]}\nv_fma_f32 {sp[1]}, {sp[1]}, {self.sInv512}, {self.vEps}\nv_fma_f32 {iv}, -{sp[0]}, {sp[0]}, {sp[1]}\nv_max_f32 {iv}, {iv}, {self.vEps}\n'
               f'v_rsq_f32 {sp[2]}, {iv}\nv_cvt_pk_bf16_f32 {cB[0]}, {sp[0]}, {sp[0]}\nv_mul_f32 {c1}, {fhex(K1)}, {sp[2]}\nv_mul_f32 {sp[3]}, {sp[2]}, {sp[2]}\nv_mul_f32 {c3}, {fhex(0.044715)}, {c1}\nv_mul_f32 {c3}, {c3}, {sp[3]}')
        for x in I(stc): chB.append(('v', ('arr', ('st', 1)), [x], None))
        chB[-1] = chB[-1][:3] + ('stats',)
        pubs = {1: 1, 3: 2, 5: 3} if o['merge34'] else {1: 1, 3: 2, 4: 3, 5: 4}
        for u in range(6):
            a = acc[u]; out = go[u & 1]
            st = []
            for txt in ('v_mul_f32 {t}, {a}, {a}', 'v_fma_f32 {t}, {t}, {c3}, {c1}', 'v_mul_f32 {t}, {t}, {a}', 'v_exp_f32 {t}, {t}', 'v_mul_f32 {b}, {a}, {b}', 'v_fma_f32 {t}, {t}, {iv}, {iv}', 'v_rcp_f32 {t}, {t}', 'v_mul_f32 {b}, {b}, {t}'):
                st.append([txt.format(t=tt[v], a=a[v], b=a[8+v], c1=c1, c3=c3, iv=iv) for v in range(8)])
            seq = st[0] + st[1][:2] + st[2][:1]
            for v in range(8):
                if v + 2 < 8: seq.append(st[1][v+2])
                if v + 1 < 8: seq.append(st[2][v+1])
                seq.append(st[3][v])
            seq += [st[5][0]]
            for v in range(8):
                if v + 1 < 8: seq.append(st[5][v+1])
                seq += [st[4][v], st[6][v]]
            seq += st[7] + [f'v_cvt_pk_bf16_f32 {out[d]}, {a[8+2*d]}, {a[9+2*d]}' for d in range(4)]
            if u in o['pk_units']:
                P2 = lambda r, v: r.sub(2*v, 2)
                t_ = [P2(tt, v) for v in range(4)]; a2 = [P2(a, v) for v in range(4)]; b2 = [a.sub(8 + 2*v, 2) for v in range(4)]
                seq = [f'v_pk_mul_f32 {t_[v]}, {a2[v]}, {a2[v]}' for v in range(4)]
                seq += [f'v_pk_fma_f32 {t_[v]}, {t_[v]}, {cc}, {cc} op_sel:[0,1,0] op_sel_hi:[1,1,0]' for v in range(4)]
                seq += [f'v_pk_mul_f32 {t_[v]}, {t_[v]}, {a2[v]}' for v in range(4)] + st[3]
                seq += [f'v_pk_fma_f32 {t_[v]}, {t_[v]}, {iv2}, {iv2} op_sel_hi:[1,0,0]' for v in range(4)] + st[6]
                seq += [f'v_pk_mul_f32 {b2[v]}, {a2[v]}, {b2[v]}' for v in range(4)]
                seq += [f'v_pk_mul_f32 {b2[v]}, {b2[v]}, {t_[v]}' for v in range(4)]
                seq += [f'v_cvt_pk_bf16_f32 {out[d]}, {a[8+2*d]}, {a[9+2*d]}' for d in range(4)]
            for ln in seq: chB.append(('v', ('ev', [f'corr{u}', f'done{u}'], 56), I(ln), None, u))
            L = Asm()
            base = (sGo, sGa, sGb)[u >> 1]; add = (0, 16*KB, WS_G, WS_G + 16*KB, WS_H, WS_H + 8*KB)[u]
            if add: L(f's_add_u32 {sTs}, {base}, {add}')
            so = sTs if add else base
            if u in (2, 3): L(f'buffer_store_dwordx4 {out}, {self.vL16}, {self.WS}, {so} offen sc1', tag=f'gst{u}')
            else: self.store2(L, 'dwordx4', out, self.vL16, so, 0, f'gst{u}', self.OUT if u < 2 else None, wrap=True)
            chB.append(('s', {4: ('ev', ['stage1'], 0), 5: ('iss', ('g', 14))}.get(u), L.L, f'gst{u}', u))
            if u == o.get('res_after', 3):
                for d in range(8):
                    for x in I(f'v_lshlrev_b32 {accK[2*d]}, 16, {res[d]}\nv_and_b32 {accK[2*d+1]}, 0xffff0000, {res[d]}'): chB.append(('v', None, [x], None))
                chB[-1] = chB[-1][:3] + ('acc4',)
            if u in pubs:
                sg = pubs[u]; k = self.nlabel; self.nlabel += 1
                pm = self.mW16 if o['one_poll3'] else '0xffff'
                chC.append(('f', ('ev', [f'bar_gst{u}'], 0), self.signal(1 + sg), f'pub{sg}'))
                chP.append(('v', ('op', first4 + 2*(0, 15, 29, 36)[sg - 1] - o['plead'][sg - 1]), [], None))
                chP.append(('f', ('ev', [f'pub{sg}'], o['poll_after'][sg - 1]), I(f's_mov_b64 exec, {pm}\n{self.poll_ld(pa3, 1 + sg, vP[4 - sg])}\ns_mov_b64 exec, -1'), f'poll{sg}'))
                chD.append(('v', ('arr', f'poll{sg}'), I(f'v_cmp_eq_u32 vcc, 0, {vP[4 - sg]}\ns_and_b64 vcc, vcc, {pm}\ns_cbranch_vccnz L_late{k}\nL_back{k}:'), f'chk{sg}' if o['one_poll3'] else f'stage{sg}'))
                self.tail(f'L_late{k}:')
                if o['stamps']: self.tail(f's_add_u32 s97, s97, {(4 if o["one_poll3"] else 1) << (8*(sg - 1))}')
                self.poll_block(self.tail, pa3, 1 + sg, pm, vP[4 - sg]); self.tail(f's_branch L_back{k}')
        chE = []
        for k in self.issued: arr[k] = 0
        now = 0; vm_free = 0; last_arr = 0; mf_free = 0; n_done = -1; last_bar = 0; nbar = 0
        cur = []; freed = set(); est = {}; idle = 0; win = []; slot = {}; pool = list(GB); back = {}
        def emit(code):
            nonlocal now
            A.ext(code); now += 4*sum(max(cost(x), 1 if x.mn.startswith('@wait') else 0) + (2 if x.mn.startswith('s_cbranch') else 4 if x.text == ';dual_begin' else 0) for x in code)
        def vm_issue(idk, c, lat):
            nonlocal vm_free, last_arr
            st_ = max(vm_free, now); tot = c
            for (c_, a_) in reversed(win):
                tot += c_
                if tot > o['WIN']*VC: st_ = max(st_, a_); break
            vm_free = st_ + c
            last_arr = max(last_arr + c, st_ + lat); arr[idk] = last_arr; win.append((c, last_arr))
            self.trace.append((n_done, now, idk, last_arr))
        def ready_time(cond):
            if cond is None: return 0
            if cond[0] == 'op': return 0 if n_done >= cond[1] else None
            if cond[0] == 'both': return ev[cond[2]] + 8 if n_done >= cond[1] and cond[2] in ev else None
            if cond[0] == 'arr': return arr.get(cond[1])
            if cond[0] == 'iss': return 0 if cond[1] in arr else None
            if all(e in ev for e in cond[1]): return max(ev[e] for e in cond[1]) + cond[2]
            return None
        def pick_request():
            best = None
            for r in rq:
                if 'stage' in r and (f'stage{r["stage"]}' not in ev or not pool): break
                if 'ev' in r and r['ev'] not in ev: continue
                best = r; break
            if self.stream and self.free_blocks:
                dl = first_use[self.stream[0]] - LA - o['dma_lead']
                if best is None or dl < best['dl']:
                    key = self.stream[0]; c = VC*(2 if key[0] in ('H1', 'S3') else 1)
                    cur.extend([(key, c, LATD)] + self.dma_next()); return True
            if best is None: return False
            if 'stage' in best:
                slot[best['id']] = pool.pop(0)
                best['code'] = best['code'] + I(f'buffer_load_dwordx4 {slot[best["id"]]}, {self.vL16}, {best["srd"]}, {sGl} offen offset:{best["off"]} sc1', tagof(best['id']))
            rq.remove(best); cur.extend([(best['id'], best['cost'], best.get('lat', LATH))] + best['code'])
            return True
        def step_vm(prefix=False):
            if not cur:
                if vm_free > now + VS or not pick_request(): return False
                if prefix or len(cur) > 2:
                    emit(cur[1:-1]); del cur[1:-1]
                    if prefix: return True
                    step_chain(chB, 'v', 8) or step_chain(chA, 'v', 8)
            meta, code = cur; del cur[:]
            emit([code]); vm_issue(*meta); return True
        def step_chain(ch, kinds, room):
            if not ch or ch[0][0] not in kinds: return False
            k, cond, code, e = ch[0][:4]; t = ready_time(cond)
            if t is None or t > now: return False
            if k == 'v' and 4*sum(cost(x) for x in code) > room + 3 and len(code) == 1: return False
            ch.pop(0); emit(code)
            if k == 's': vm_issue(e, VC, LATS if e in ('gst2', 'gst3') else LATH)
            if k == 'f': vm_issue(e, 20, LATH)
            if e: ev[e] = now; evop[e] = n_done
            return True
        def bar_need(n):
            if n + LA < N and ops[n + LA]['key'] not in visible:
                return {ops[q_]['key'] for q_ in range(n + LA, min(N, n + LA + o['VMIN']))}
            for u_ in pubs:
                if f'bar_gst{u_}' not in ev and arr.get(f'gst{u_}', 1 << 30) + o['bwait'][pubs[u_] - 1] <= now: return set()
                if f'stage{pubs[u_]}' not in ev and ev.get(f'chk{pubs[u_]}', 1 << 30) + o['bwait'][pubs[u_] - 1] <= now: return set()
            if n - last_bar < o['BMIN']: return None
            nfree = sum(1 for k, lu in last_use.items() if lu < n and k not in freed and k in self.loc) + (0 if 'res' in freed else 2)
            if self.stream and len(self.free_blocks) <= o.get('FLOW', 1) and nfree >= min(o['FMIN'], len(self.stream)): return set()
            if chA and chA[0][1] and chA[0][1][0] == 'ev' and chA[0][1][1][0].startswith('bar_wr') and ready_time(chA[0][1]) is None and now >= max(ev.get(e[4:], 0) for e in chA[0][1][1]) + 60: return set()
            if not self.stream and 'xb' not in ev and n >= N - 2*TL - 8: return set()
            return None
        def op_ready(n):
            p = ops[n]; t = mf_free
            k = p.get('hk')
            if k is not None:
                k = pairw.get(k) or k
                if k not in arr: return None
                t = max(t, arr[k])
            if n == first4 and 'acc4' not in ev: return None
            for k in bar_need(n) or ():
                if k not in arr: return None
                t = max(t, arr[k])
            return t
        def do_barrier(n, need):
            nonlocal now, last_bar, nbar, chE
            L = Asm()
            for c in ('F1', 'H1', 'S2', 'S3'):
                if 'wr' + c in ev and 'bar_wr' + c not in ev: L(f'@waitlg wr{c}'); ev['bar_wr' + c] = now
            for u_ in pubs:
                if f'bar_gst{u_}' not in ev and arr.get(f'gst{u_}', 1 << 30) <= now: L(f'@waitvm gst{u_}'); ev[f'bar_gst{u_}'] = now
                if f'stage{pubs[u_]}' not in ev and f'chk{pubs[u_]}' in ev: ev[f'stage{pubs[u_]}'] = now; evop[f'stage{pubs[u_]}'] = n_done
            vis = [k for k in self.issued if k not in visible and (k in need or arr[k] <= now - o['vmargin'])]
            if vis:
                newest = max(vis, key=self.issued.index)
                visible.update(self.issued[:self.issued.index(newest) + 1]); L(f'@waitvm {tagof(newest)}')
            L('s_barrier'); self.trace.append((n_done, now, 'BAR', newest if vis else None)); emit(L.L); now += o['barc'] - 8; last_bar = n; nbar += 1
            for k, lu in last_use.items():
                if lu < n and k not in freed and k in self.loc:
                    freed.add(k); self.free_blocks.append(self.loc[k])
            if 'res' not in freed and n > 0:
                freed.add('res'); self.free_blocks += [self.resb, self.resb + 1]
            if not self.stream and 'xb' not in ev:
                fb = sorted(self.free_blocks)
                xb = next((b for b in fb if all(b + k in fb for k in range(4))), None)
                if xb is not None:
                    ev['xb'] = now
                    X = Asm()
                    X(f's_lshl_b32 {s["T0"]}, {s["W"]}, 12\ns_add_u32 {s["T0"]}, {s["T0"]}, {xb*BLK}\nv_add_u32 {t1}, {s["T0"]}, {self.vL16}')
                    X(f's_xor_b32 {s["T1"]}, {s["W"]}, 2\ns_lshl_b32 {s["T1"]}, {s["T1"]}, 12\ns_add_u32 {s["T1"]}, {s["T1"]}, {xb*BLK}\nv_add_u32 {t2}, {s["T1"]}, {self.vL16}')
                    X(f'v_and_b32 {t3}, 31, {vL}\nv_lshlrev_b32 {t3}, 10, {t3}\nv_lshrrev_b32 {aRes}, 5, {vL}\nv_lshl_add_u32 {t3}, {aRes}, 5, {t3}')
                    X(f's_lshl2_add_u32 {s["T0"]}, {s["G"]}, {sT4}\ns_lshl_b32 {s["T0"]}, {s["T0"]}, 15\ns_add_u32 {s["T0"]}, {s["T0"]}, {self.sC128}\ns_lshl_b32 {s["T1"]}, {sKH}, 6\ns_add_u32 {s["T0"]}, {s["T0"]}, {s["T1"]}')
                    chE += [('v', None, [x], None) for x in X.L]
                    chE += [('d', ('op', min(N - 1, last_op[7] + 2)), I(f'ds_write_b128 {t1}, {accS.sub(4*k, 4)} offset:{k*1024}'), None) for k in range(4)]
        for n in range(N):
            p = ops[n]
            guard = 0
            while True:
                guard += 1; assert guard < 100000, f'scheduler stuck at op {n}'
                slack = 0
                if chB and ready_time(chB[0][1]) is not None:
                    u_ = chB[0][4] if len(chB[0]) > 4 else None
                    slack = 4*(o['budu'].get(str(u_), o['bud']) - 6)
                    if u_ in o['pk_units'] and ready_time(chB[0][1]) <= now: slack = 4000
                t = op_ready(n)
                if t is not None and t == mf_free and bar_need(n) is not None: t -= o['barc']
                if t is not None and now >= t + slack: break
                room = (t + slack - now) if t is not None else 1000
                if chA and chA[0][0] == 'm' and now >= mf_free - 4:
                    t0_ = max(now, mf_free)
                    if step_chain(chA, 'm', 0): now = t0_ + 8; mf_free = t0_ + 32; continue
                if room > 100 and bar_need(n) == set(): do_barrier(n, set()); continue
                if room > 40 and step_vm(): continue
                if step_chain(chC, 'fv', 1000) or step_chain(chP, 'fv', 1000) or step_chain(chD, 'fv', 1000): continue
                if step_chain(chA, 'v' if room <= 40 else 'vd', room): continue
                if step_chain(chB, 'vs', room) or step_chain(chE, 'v', room): continue
                if t is not None and now >= t: break
                now += 4; idle += 4
            if chA and chA[0][0] == 'm' and bar_need(n) is None:
                t0_ = max(now, mf_free)
                if step_chain(chA, 'm', 0):
                    now = t0_ + 8; mf_free = t0_ + 32
                    while now < mf_free and (step_chain(chA, 'vd', mf_free - now) or step_vm() or step_chain(chB, 'vs', mf_free - now)): pass
            need = bar_need(n)
            if need is not None: do_barrier(n, need)
            if n == first4: self.stamp('p3 mfma done'); est['p3'] = now; est['idle3'] = idle
            elif o.get('fine') and n % o['fine'] == 0 and n: self.stamp(f'op {n}'); est[n] = now
            if pairw.get(p.get('hk')) and hfirst[p['hk']] == n: A(f'@waitvm {tagof(pairw[p["hk"]])}')
            if p.get('hk') and hfirst[p['hk']] == n and pairw.get(p['hk'], 1): now += 4
            t0_ = now = max(now, mf_free)
            A.L.append(mfma(p)); n_done = n; now += o.get('mfc', 6)
            mf_free = t0_ + (32 if p['k'] == 'm' else 16)
            if p['k'] == 'm' and last_op[p['u']] == n: ev[f'done{p["u"]}'] = now
            if n and 'hk' in ops[n - 1] and hlast[ops[n - 1]['hk']] == n - 1: pool.append(ops[n - 1]['B'] or slot[ops[n - 1]['hk']])
            if (n + 1) % WE == 0 and n + 1 < N: emit([Ins(f'@waitlg r{min(N - 1, n + WE)}')])
            step_vm(prefix=True)
            now = max(now, t0_ + 8)
            if n + LA < N: emit(reads(ops[n + LA]))
            if cur: step_vm()
            else: step_chain(chA, 'd', 0) or step_chain(chE, 'd', 0) or step_chain(chC, 'f', 0) or step_chain(chP, 'fv', 1000) or step_chain(chD, 'fv', 1000)
            if n + LA + 1 < N and ops[n + LA + 1]['key'] in self.loc: emit(ops[n + LA + 1]['ad'].need(self.loc[ops[n + LA + 1]['key']] >> 4))
        if o.get('wb'):
            where, sel = o['wb']
            W = Asm()
            if sel == 'one': W(f's_lshr_b32 {s["T2"]}, s2, 3\ns_lshl2_add_u32 {s["T2"]}, {s["T2"]}, {s["W"]}\ns_cmp_lg_u32 {s["T2"]}, 60')
            elif sel == 'grp': W(f's_lshl2_add_u32 {s["T2"]}, {s["M"]}, {s["W"]}\ns_cmp_lg_u32 {s["T2"]}, 60')
            else: W(f's_cmp_lg_u32 {s["W"]}, 0')
            W('s_cbranch_scc1 L_nowb\n@raw 1\nbuffer_wbl2 sc1\n@raw 0\nL_nowb:')
            if where == 'end': self.wb_end = W.L
            else:
                k = max(q for q, x in enumerate(A.L) if x.tag == where)
                assert where == 'g_42'
                self.wb_mid = W.L
        assert 'xb' in ev
        for it in chE: emit(it[2])
        assert not (chA or chB or chC or chD or chP or rq or cur or self.stream), (len(chA), len(chB), len(chC), len(rq), len(self.stream))
        est['p4'] = now; est['idle'] = idle
        self.info.update(N=N, first4=first4, nbar=nbar, npre=len(pre_keys), est=est, evop={k: v for k, v in evop.items() if k[:3] in ('cor', 'gst', 'sta')})
        dbg = o.get('dbg', '')
        if dbg:
            new = []; nv = 0
            for x in A.L[self.mark34:]:
                if 'W' in dbg:
                    if x.kind in ('mfma', 'ds') or x.mn in ('s_barrier', '@waitvm', '@waitlg') or x.mn.startswith('s_cbranch') or (x.kind == 'valu' and ('_f32' in x.mn or 'cmp' in x.mn or 'permlane' in x.mn)): continue
                    if x.kind == 'vmem':
                        k_ = (x.tag or 'x_').split('_')[0]
                        cls = {'F1': '3', 'H1': '3', 'S2': '3', 'S3': '3', 'W4': '4', 'F': 'h', 'H': 'h', 'g': 'g'}.get(k_, 's')
                        sub = 'b' if x.tag in ('gst2', 'gst3') else 'a' if (x.tag or '').startswith('gst') else 'f' if x.tag == 'flag' else 'p' if x.mn == 'buffer_load_dword' else 't'
                        if cls == 'g' and 15 <= int(x.tag[2:]) < 29 and '2' in dbg: continue
                        if cls in dbg or (cls == 's' and sub in dbg): continue
                        x.defs = set(); x.tag = f'z{nv}'; nv += 1; new.append(x)
                        if nv > 30: new.append(Ins(f'@waitvm z{nv - 30}'))
                        continue
                if 'M' in dbg and x.kind == 'mfma':
                    y = Ins('s_nop 0'); y.uses = set(x.srcAB); new.append(y); continue
                if 'V' in dbg and x.kind == 'valu' and '_f32' in x.mn: continue
                if 'R' in dbg and x.kind == 'ds' and x.mn.startswith('ds_read_b64_tr'):
                    self.dropped.add(x.tag); continue
                if 'D' in dbg and x.kind == 'vmem' and x.arg == 'dma':
                    self.dropped.add(x.tag); continue
                if 'L' in dbg and x.kind == 'vmem' and x.mn == 'buffer_load_dwordx4' and x.arg != 'dma':
                    self.dropped.add(x.tag); continue
                if 'T' in dbg and x.kind == 'vmem' and x.mn == 'buffer_load_dword' and not x.defs: continue
                if 'B' in dbg and x.mn == 's_barrier': continue
                if x.kind == 'pseudo' and x.mn in ('@waitvm', '@waitlg') and x.arg[0] in self.dropped: continue
                new.append(x)
            if 'W' in dbg: new.append(Ins('@waitvm0'))
            A.L[self.mark34:] = new
        self.stamp('p4 mfma done')
        A.ext(getattr(self, 'wb_mid', []))
        A('@waitlg0\ns_barrier')
        rx = acc[2]
        for k in range(4): A(f'ds_read_b128 {rx.sub(4*k, 4)}, {t2} offset:{k*1024}')
        for h in range(2):
            for d in range(4*h, 4*h + 4): A(f'v_pk_add_f32 {accK.sub(2*d, 2)}, {accK.sub(2*d, 2)}, {rx.sub(2*d, 2)}')
            for d in range(4): A(f'v_cvt_pk_bf16_f32 {go[h][d]}, {accK[8*h + 2*d]}, {accK[8*h + 2*d + 1]}')
            A(f'buffer_store_dwordx4 {go[h]}, {t3}, {self.OUT}, {s["T0"]} offen offset:{16*h} {o.get("out_aux", "")}')
        A.ext(getattr(self, 'wb_end', []))
        self.stamp('out stored')

    def visit(self, name):
        if name not in (self.o['visit'] or {}): return []
        L = Asm()
        L('s_mov_b64 exec, 0')
        for k in range(len(self.o['visit'][name])): L(f's_cmp_eq_u32 {self.s["W"]}, {k}\ns_cbranch_scc1 L_vis_{name}_{k}')
        L(f'L_ret_{name}:\ns_mov_b64 exec, -1')
        return L.L

    def place_stubs(self, L):
        import subprocess, re
        txt = '.amdgcn_target "amdgcn-amd-amdhsa--gfx950"\n.text\n' + '\n'.join(x.text for x in L if x.kind != 'dir') + '\nL_code_end:\n'
        txt += ''.join(f'L_vis_{n}_{k}:\n' for n, ps in self.o['visit'].items() for k in range(len(ps)))
        open('_sz.s', 'w').write(txt)
        subprocess.run(['clang', '-x', 'assembler', '-target', 'amdgcn-amd-amdhsa', '-mcpu=gfx950', '-c', '_sz.s', '-o', '_sz.o'], check=True)
        d = subprocess.run(['llvm-objdump', '-d', '--mcpu=gfx950', '_sz.o'], capture_output=True, text=True).stdout
        sizes = [4*len(m.group(1).split()) for m in re.finditer(r'// [0-9A-F]{12}: ([0-9A-F ]+)', d)]
        real = [x for x in L if x.kind not in ('dir', 'label')]
        assert len(sizes) == len(real), (len(sizes), len(real))
        size = {id(x): z for x, z in zip(real, sizes)}
        owner = {p: n for n, ps in self.o['visit'].items() for p in ps}
        end = max(i for i, x in enumerate(L) if x.text == 'L_main_end:')
        out = []; addr = None; page = 0; stubs = {}; full = True
        EX = {('s', 126), ('s', 127)}
        for i, x in enumerate(L):
            if x.text == 'L_body:': addr = 0; self.info['pre_bytes'] = sum(size.get(id(y), 0) for y in L[:i])
            if addr is not None and x.kind not in ('dir', 'label') and i < end:
                if addr >= page*4096 and full:
                    if page in owner:
                        stubs.setdefault(owner[page], []).append(len(out)); out.append(None); addr += 4
                    page += 1
                addr += size[id(x)]
                if x.defs & EX: full = x.mn.startswith('s_mov') and x.text.endswith(', -1')
            out.append(x)
        res = []
        where = {}
        for n in self.o['visit']:
            for k, pos in enumerate(stubs.get(n, [])): where[pos] = (n, k, len(stubs[n]))
        for i, x in enumerate(out):
            if x is None:
                n, k, tot = where[i]
                res += [Ins(f'L_vis_{n}_{k}:'), Ins(f's_cbranch_execz L_ret_{n}')]
            else: res.append(x)
        for n in self.o['visit']:
            for k in range(len(stubs.get(n, [])), 4): res = [Ins('s_nop 0') if x.text == f's_cbranch_scc1 L_vis_{n}_{k}' else x for x in res]
        self.info['pages'] = page
        return res

    def finish(self):
        A, s, o = self.A, self.s, self.o
        if o['stamps']:
            A('@waitvm0')
            self.stamp('end')
            k = self.nstamp - 1
            A(f'@raw 1\nv_writelane_b32 {self.vstamp}, s97, 60\nv_writelane_b32 {self.vstamp}, s98, 61\ns_memrealtime s[98:99]\ns_waitcnt lgkmcnt(0)\nv_writelane_b32 {self.vstamp}, s98, 62\nv_writelane_b32 {self.vstamp}, {self.sstamp[2*(k % 2)]}, {k}\nv_writelane_b32 {self.vstamp}, s100, 63\n@raw 0')
            A(f's_lshl_b32 {s["T0"]}, s2, 10\ns_lshl_b32 {s["T1"]}, {s["W"]}, 8\ns_add_u32 {s["T0"]}, {s["T0"]}, {s["T1"]}\ns_add_u32 {s["T0"]}, {s["T0"]}, {o["ws_base"] + WS_TS}')
            A(f'v_lshlrev_b32 {self.t1}, 2, {self.vL}\nbuffer_store_dword {self.vstamp}, {self.t1}, {self.WS}, {s["T0"]} offen')
        if o.get('pad_to'):
            A(f'@raw 1\ns_waitcnt vmcnt(0)\nL_padloop:\n{o.get("pad_clk", "s_memrealtime")} s[98:99]\ns_waitcnt lgkmcnt(0)\ns_sub_u32 s98, s98, s100\ns_cmp_lt_u32 s98, {o["pad_to"]}\ns_cbranch_scc1 L_padloop\n@raw 0')
        A('L_main_end:\ns_endpgm')

    def build(self):
        self.phase1(); self.phase2(); self.phase34(); self.finish()
        L = resolve_waits(self.A.L)
        L, nn = pad_hazards(L)
        L, T2 = self.expand_dual(L)
        T = [x for x in self.tail.L if x.kind != 'pseudo'] + T2
        if self.o['visit']: L = self.place_stubs(L + T); T = []
        body = '\n'.join(('' if x.kind == 'label' else '    ') + x.text for x in L + T)
        hdr = open('cdna_kernels/' + NAME + '.s.ref').read().split('; Override launch')[0]
        txt = hdr + f'; @launch grid=(256,1,1) block=(256,1,1) lds=163840\n.amdgcn_target "amdgcn-amd-amdhsa--gfx950"\n.text\n.globl {NAME}_kernel\n.p2align 8\n.type {NAME}_kernel,@function\n{NAME}_kernel:\n'
        txt += body + '\n    s_endpgm\nL_code_end:\n'
        txt += f'.section .rodata,"a"\n.p2align 6\n.amdhsa_kernel {NAME}_kernel\n  .amdhsa_next_free_vgpr 512\n  .amdhsa_next_free_sgpr 102\n  .amdhsa_accum_offset 256\n  .amdhsa_group_segment_fixed_size 0\n  .amdhsa_kernarg_size 80\n  .amdhsa_user_sgpr_count 2\n  .amdhsa_user_sgpr_kernarg_segment_ptr 1\n  .amdhsa_system_sgpr_workgroup_id_x 1\n  .amdhsa_float_denorm_mode_32 3\n.end_amdhsa_kernel\n'
        self.info.update(ninstr=len(L), nops=nn, vmax=self.V.hi, amax=self.AG.hi, smax=self.S.hi)
        return txt

if __name__ == '__main__':
    import json
    kw = json.loads(sys.argv[2]) if len(sys.argv) > 2 else {}
    G = Gen(**kw); txt = G.build()
    open(sys.argv[1], 'w').write(txt)
    print(G.info)
    if kw.get('trace'):
        for t in G.trace: print(t)
```

```python
import sys, math, struct
from asmlib import *

NAME = 'sequential_preLN__sliding_local_dilated__geglu_ffn__prompt'
KB = 1024
WS_H, WS_ST, WS_FL, WS_G, WS_O = 0, 128*KB, 136*KB, 256*KB, 640*KB
FL_SLOW = 2*KB
WS_R = 768*KB
WS_TS = 16 << 20
WS_SIZE = 17 << 20
PITCH3 = 2752
BLK = 4096
L_HALO = 0
L_X = 4 * BLK
L_W = 10 * BLK
L_SCR = 39 * BLK
SCR_TB = L_SCR
SCR_HP = L_SCR + 1280
SCR_R = L_SCR + 1792
SCR_CS = L_SCR
def f2u(x): return struct.unpack('<I', struct.pack('<f', x))[0]
def fhex(x): return hex(f2u(x))
LOG2E = 1.4426950408889634

DEF = dict(ymean=True, cen_rd=10, cen_ck=130, selby='x', xrot=True, sp1=14, perm3=True, hyst=0, hyst_from=150, quad_out=False, out_aux='nt', one_poll=False, one_poll3=True, bwait=(250, 150, 0, 0), merge34=True, pk_units=[5], budu={}, khalf=False, c1_from=110, sp0b=10, v0_at=-2, salu16=1, minlg_until=6, ktab=[list(range(8))]*4, b_pre1=4, b_pre2=4, topup=8, n1a=0, n1b=7, HS=6, k0=7, vgap0=2, vgap=3, cs_lead={'S2': (16, 1), 'S3': (20, 2)}, plead=(50, 44, 44, 44), TL=4, cs_pre=24, q_early=False, LATH=380, LATD=580, LATS=700, WE=4, VC=80, PW=True, poll_after=(900, 900, 800, 800), WIN=99, dma_lead=16, VMIN=10, BMIN=10, FMIN=5, barc=32, vmargin=300, visit={'v0': [1, 2, 3], 'v1': [4, 5, 6]}, jump_at=72,
           stamps=False, order='pair', BI=16, LA=7, GLA=8, NG=20, NR=12, bud=7, b_epi=0, b_post1=4, b_o=5, b_post2=4,
           pub_delay=10, poll_lead=8, force_slow=False, w2pre=7, LO=5, HL=5, sp0=2, g_sc1=False, o_in_ws=False,
           pf={'q3': 'c1', 'o3': 2, 'o': 4, 'w3': 4, 'h': 4, 'wd': 4}, vslack=200, w2a=0, w2b=3, rot2=0, rot3=0, ws_base=0, n_stats=56, gt_at=40)

def cost(x):
    if x.kind in ('pseudo', 'label', 'dir'): return 0
    if x.is_trans() or x.mn.startswith('v_permlane') or x.kind == 'mfma': return 2
    return 1

def safe_points(code):
    ok = []; exec_part = False
    EX = {('s', 126), ('s', 127)}
    n = len(code)
    for i in range(n + 1):
        scc_live = False
        for k in range(i, n):
            x = code[k]
            if x.kind == 'label': scc_live = True; break
            if x.mn.startswith('s_cselect') or x.mn.startswith('s_cbranch') or x.mn.startswith('s_addc'): scc_live = True; break
            if x.kind == 'salu' and not x.mn.startswith(('s_mov', 's_mul', 's_nop', 's_waitcnt', 's_barrier', 's_getreg')): break
        for k in range(i, n):
            x = code[k]
            if x.kind == 'vmem' and x.arg == 'dma': scc_live = True
            if scc_live or (('s', 124) in x.defs and ('s', 124) not in x.uses): break
        if not exec_part and not scc_live: ok.append(i)
        if i < n and code[i].defs & EX:
            exec_part = not (code[i].mn.startswith('s_mov') and code[i].text.endswith(', -1'))
    return ok

def sprinkle(code, groups, spacing, start=0):
    code = list(code.L if isinstance(code, Asm) else code); groups = list(groups)
    ok = set(safe_points(code)); out = []; since = spacing - start
    for i, x in enumerate(code):
        if groups and since >= spacing and i in ok:
            g = groups.pop(0); out += g; since = 0
        out.append(x); since += cost(x)
    for g in groups: out += g
    return out

class Gen:
    def __init__(self, **kw):
        self.o = dict(DEF); self.o.update(kw)
        self.A = Asm(); self.tail = Asm()
        self.V = RegAlloc('v', 1, 254); self.AG = RegAlloc('a', 0, 256); self.S = RegAlloc('s', 60, 97)
        self.nstamp = 0; self.stamp_names = []
        self.nlabel = 0
        self.free_blocks = list(range(28, 39))
        self.loc = {}; self.issued = []
        st = [('W2', i) for i in range(16)]
        for q in range(8): st += [('F1', 2*q), ('H1', q), ('F1', 2*q + 1)]
        st += [('S2', i) for i in range(16)] + [('S3', q) for q in range(8)] + [('W4', i) for i in range(43)]
        self.stream = st
        self.info = {}; self.dropped = set(); self.trace = []

    def stamp(self, name, A=None):
        if not self.o['stamps'] or (self.o['stamps'] == 'min' and name != 'end'): return
        A = A if A is not None else self.A
        k = self.nstamp
        A(f'@raw 1\n{self.o.get("clk", "s_memtime")} {self.sstamp.sub(2*(k % 2), 2)}')
        if k: A(f'v_writelane_b32 {self.vstamp}, {self.sstamp[2*((k-1) % 2)]}, {k-1}')
        A('@raw 0')
        self.stamp_names.append(name); self.nstamp += 1

    def srd(self, A, b, lo, size):
        A(f's_mov_b32 s{b}, s{lo}\ns_mov_b32 s{b+1}, s{lo+1}\ns_mov_b32 s{b+2}, {size}\ns_mov_b32 s{b+3}, 0x20000')

    def store2(self, A, w, data, voff, soff, off, tag, srd=None, wrap=False):
        assert off < 4096
        o = f' offset:{off}' if off else ''
        v = f'{voff}, ' if voff is not None else 'off, '
        e = ' offen' if voff is not None else ''
        if wrap: A(';dual_begin')
        A(f'buffer_store_{w} {data}, {v}{srd or self.WS}, {soff}{e}{o}', tag=tag)
        if wrap: A(';dual_end')

    def expand_dual(self, L):
        out = []; tail = []; k = 0; inside = False
        for x in L:
            if x.text == ';dual_begin':
                assert not inside; inside = True
                out += [Ins(f's_cmp_lg_u32 {self.sMode}, 0'), Ins(f's_cbranch_scc1 L_wt{k}')]; tail.append(Ins(f'L_wt{k}:'))
            elif x.text == ';dual_end':
                assert inside; inside = False
                out.append(Ins(f'L_wtb{k}:')); tail.append(Ins(f's_branch L_wtb{k}')); k += 1
            else:
                out.append(x)
                if inside:
                    assert x.kind != 'label'
                    tail.append(Ins(x.text + ' sc1') if x.mn.startswith('buffer_store') else Ins(x.text))
        return out, tail

    def signal(self, kind):
        L = Asm()
        L(f's_mov_b64 exec, {self.mW1}')
        self.store2(L, 'dword', self.vOne, None, self.sFme, kind*128, 'flag', wrap=True)
        L('s_mov_b64 exec, -1')
        return L.L

    def poll_ld(self, addr, kind, pv): return f'buffer_load_dword {pv}, {addr}, {self.WS}, {self.s["FL"]} offen offset:{kind*128} sc1'

    def poll_block(self, A, addr, kind, mask, pv=None):
        pv = pv or self.vPv; s = self.s; n = self.nlabel; self.nlabel += 1
        A(f's_mov_b64 exec, {mask}\ns_mov_b32 {s["T3"]}, 0x20000\n@raw 1\nL_poll{n}:\n{self.poll_ld(addr, kind, pv)}\ns_waitcnt vmcnt(0)')
        A(f'v_cmp_eq_u32 vcc, 0, {pv}\ns_sub_u32 {s["T3"]}, {s["T3"]}, 1\ns_cbranch_scc1 L_pd{n}\ns_cbranch_vccnz L_poll{n}\nL_pd{n}:\n@raw 0\ns_mov_b64 exec, -1')

    @staticmethod
    def p4_unit(i):
        if i < 15: return 0, 6*i
        if i < 29: return 0, 6*(i - 15) + 2
        if i < 36: return 1, 12*(i - 29) + 4
        return 1, 12*(i - 36) + 5

    def dma_cost(self): return 138 if self.stream and self.stream[0][0] in ('H1', 'S3') else 69

    def dma_next(self):
        if not self.stream or not self.free_blocks: return None
        key = self.stream.pop(0); b = self.free_blocks.pop(0)
        self.loc[key] = b; self.issued.append(key)
        s, D = self.s, self.sD; kind, i = key; tag = f'{kind}_{i}'
        if kind == 'W2':
            assert 23 <= b <= 38
            pre = [f's_add_u32 {D}, {self.sC128}, {i << 15}']
            ld = f'buffer_load_dwordx4 {self.vW2}, {self.WO}, {D} offen lds'
        elif kind in ('F1', 'S2', 'H1', 'S3'):
            full = kind in ('F1', 'S2')
            cp = i >> 1 if full else i
            pre = []
            if key == ('F1', 0): pre.append(f's_mov_b32 s38, {self.sN3[0]}')
            if key == ('S2', 0): pre += [f's_mov_b32 s38, {self.sN3[1]}', f'v_add_u32 {self.vF[0]}, {self.sDl}, {self.vF[0]}', f'v_add_u32 {self.vF[1]}, {self.sDl}, {self.vF[1]}']
            if key == ('S3', 0): pre += [f's_sub_u32 {self.sDl}, 192, {self.sDl}', f'v_add_u32 {self.vH}, {self.sDl}, {self.vH}']
            ld = f'buffer_load_dwordx4 {self.vF[i & 1] if full else self.vH}, {self.W3}, {self.sCP[cp - 1] if cp else 0} offen lds'
        else:
            sel, u = self.p4_unit(i)
            k = (i if i < 15 else i - 15) & 3 if sel == 0 else 2*((i - 29 if i < 36 else i - 36) & 1)
            pre = [f's_add_u32 {D}, {self.sU[sel]}, {u*16384}'] if k == 0 else []
            if i == 0: pre += [f'v_add_u32 {self.vD[q]}, {q*6*16384}, {self.vD[0]}' for q in range(1, 4)]
            ld = f'buffer_load_dwordx4 {self.vD[k]}, {self.WD}, {D} offen lds'
        return [Ins(f's_add_u32 m0, {s["W1K"]}, {b*BLK}')] + [Ins(x) for x in pre] + [Ins(ld, tag)]

    def dmas(self, n):
        r = []
        for _ in range(n):
            g = self.dma_next()
            if g: r.append(g)
        return r

    def p1_chunk_dma(self, i):
        s = self.s; sl = i % 3; kc, so = self.sKC, self.sSO; tag = f'ch{i}'
        I = Ins
        g = [[I(f's_bfe_u32 {kc}, {self.sTb}, {hex(0x30000 + 4*i)}'), I(f's_add_u32 m0, {self.sW2K}, {L_X + sl*8192}'), I(f's_lshl_b32 {so}, {kc}, 7'),
              I(f'buffer_load_dwordx4 {self.vXa}, {self.X}, {so} offen lds', tag)],
             [I(f's_mul_i32 {kc}, {kc}, {64*3072}'), I(f'buffer_load_dwordx4 {self.vXb}, {self.X}, {so} offen offset:1024 lds', tag)]]
        for st in range(2):
            for p in range(3):
                pre = []
                if p == 0: pre = [I(f's_add_u32 m0, {self.sW3K}, {L_W + sl*24576 + st*12288}'), I(f's_add_u32 {kc}, {kc}, {32*3072 if st else self.sH128}')]
                g.append(pre + [I(f'buffer_load_dwordx4 {self.vW1}, {self.WQ}, {kc} offen offset:{p*1024} lds', tag)])
        return g

    def p1_reads(self, i, st, buf):
        sl = i % 3; r = []
        W, X, O = buf
        r.append(Ins(f'ds_read_b128 {O}, {self.aXo[st]} offset:{sl*8192}'))
        for p in range(3):
            for a in range(2):
                r.append(Ins(f'ds_read_b64_tr_b16 {W[p].sub(2*a, 2)}, {self.aW1} offset:{sl*24576 + st*12288 + p*1024 + a*512}'))
            if p == 0:
                r.append(Ins(f'ds_read_b128 {X[0]}, {self.aX[st]} offset:{L_HALO + i*2048}'))
                for t in range(1, 5):
                    r.append(Ins(f'ds_read_b128 {X[t]}, {self.aX[st]} offset:{L_X + sl*8192 + (t-1)*2048}'))
        return r

    def p1_mfmas(self, buf, first):
        W, X, O = buf
        m = []
        c = lambda acc: '0' if first else str(acc)
        m.append(Ins(f'v_mfma_f32_16x16x32_bf16 {self.stG}, {O}, {O}, {c(self.stG)}'))
        m.append(Ins(f'v_mfma_f32_16x16x32_bf16 {self.stS}, {self.ones}, {O}, {c(self.stS)}'))
        for p, acc in enumerate((self.aQ, self.aK, self.aV)):
            for t in range(5):
                if p < 2: m.append(Ins(f'v_mfma_f32_16x16x32_bf16 {acc[t]}, {W[p]}, {X[t]}, {c(acc[t])}'))
                else: m.append(Ins(f'v_mfma_f32_16x16x32_bf16 {acc[t]}, {X[t]}, {W[p]}, {c(acc[t])}'))
        return m

    def stats_code(self, sq, sm, out4):
        L = Asm()
        L(f'v_mul_f32 {sm}, {fhex(-1/512)}, {sm}')
        L(f'v_fma_f32 {sq}, {sq}, {self.sInv512}, {self.vEps}')
        L(f'v_cvt_pk_bf16_f32 {out4[1]}, {sm}, {sm}')
        L(f'v_fma_f32 {sq}, -{sm}, {sm}, {sq}')
        L(f'v_max_f32 {sq}, {sq}, {self.vEps}')
        L(f'v_rsq_f32 {out4[2]}, {sq}')
        L(f'v_and_b32 {out4[0]}, 0xffff0000, {out4[1]}')
        L(f'v_mul_f32 {out4[3]}, {fhex(0.25*LOG2E)}, {out4[2]}')
        return L.L

    def diag_code(self, G4, dst):
        return [Ins(f'v_cndmask_b32 {G4[0]}, {G4[0]}, {G4[1]}, {self.mB0}'), Ins(f'v_cndmask_b32 {G4[2]}, {G4[2]}, {G4[3]}, {self.mB0}'),
                Ins(f'v_cndmask_b32 {dst}, {G4[0]}, {G4[2]}, {self.mB1}')]

    def weave16(self, mf, ds, misc, vgap=4, tail=4, side=None):
        A = self.A; ds = list(ds)
        nm = len(mf)
        for k, m in enumerate(mf):
            A.L.append(m); self.gap_since_vm += 1
            bud = 2
            if misc and isinstance(misc[0], Ins) and misc[0].kind == 'salu':
                A.L.append(misc.pop(0)); bud -= self.o['salu16']
            nds = 1 if ds else 0
            if len(ds) > nm - k - tail: nds = min(2, len(ds))
            for _ in range(nds): A.L.append(ds.pop(0)); bud -= 1
            while misc and bud > 0:
                it = misc[0]; l = it if isinstance(it, list) else [it]
                if l and l[0].kind == 'pseudo' and l[0].mn == '@skip':
                    misc.pop(0); break
                if any(x.kind == 'vmem' for x in l):
                    if self.gap_since_vm < vgap: break
                    self.gap_since_vm = 0
                misc.pop(0); A.ext(l); bud -= sum(cost(x) for x in l)
            while side and bud > 0 and not ds:
                it = side.pop(0); l = it if isinstance(it, list) else [it]
                A.ext(l); bud -= sum(cost(x) for x in l)
        assert not ds

    def phase1(self):
        A, V, S, AG, o = self.A, self.V, self.S, self.AG, self.o
        s = self.s = {}
        for n in 'W C M SB G BLK W1K T0 T1 T2 T3 FL PF GB'.split(): s[n] = S.alloc()
        if o['stamps']: self.sstamp = S.alloc(4, 2); self.vstamp = V.alloc()
        self.X, self.WQ, self.WO, self.W3, self.WD, self.OUT, self.WS = [f's[{24+4*i}:{27+4*i}]' for i in range(7)]
        self.sKC = S.alloc(); self.sSO = S.alloc(); self.sW2K = S.alloc(); self.sW3K = S.alloc(); self.sC128 = S.alloc(); self.sFme = S.alloc()
        sH = S.alloc(); sHm = S.alloc(); sZ = S.alloc()
        if o.get('pad_to'): A('@raw 1\n' + o.get('pad_clk', 's_memrealtime') + ' s[100:101]\n@raw 0')
        if o['stamps']: A('@raw 1\n' + o.get('clk', 's_memtime') + ' s[100:101]\ns_memrealtime s[98:99]\ns_mov_b32 s97, 0\n@raw 0')
        A('s_load_dwordx2 s[24:25], s[0:1], 0\ns_load_dwordx2 s[28:29], s[0:1], 8\ns_load_dwordx2 s[48:49], s[0:1], 72\ns_load_dwordx2 s[32:33], s[0:1], 16')
        A('s_load_dwordx16 s[4:19], s[0:1], 0\ns_load_dwordx2 s[20:21], s[0:1], 64')
        A('s_cmp_lt_u32 s2, 256\ns_cbranch_scc1 L_go\ns_endpgm\nL_go:')
        vL = self.vL = V.alloc(); t0 = V.alloc(2); t1 = V.alloc(); t2 = V.alloc(); t3 = V.alloc()
        self.t1, self.t2, self.t3 = t1, t2, t3
        A(f's_getpc_b64 s[52:53]\nL_pc:')
        A(f'v_and_b32 {vL}, 63, v0\nv_lshrrev_b32 {t1}, 6, v0\ns_lshr_b32 {s["T0"]}, s2, 3\nv_readfirstlane_b32 {s["W"]}, {t1}')
        A(f'v_lshl_add_u32 {t1}, {s["T0"]}, 2, {t1}\nv_lshl_add_u32 {t1}, {t1}, 2, {vL}\nv_lshlrev_b32 {t1}, 7, {t1}\nv_min_u32 {t1}, L_code_end-L_pc-4, {t1}')
        A(f'v_add_co_u32 {t0[0]}, vcc, s52, {t1}\nv_mov_b32 {t0[1]}, s53\ns_and_b32 {s["M"]}, {s["T0"]}, 15\nv_addc_co_u32 {t0[1]}, vcc, 0, {t0[1]}, vcc')
        A(f's_mov_b64 exec, 15\nglobal_load_dword v255, {t0}, off\ns_mov_b64 exec, -1')
        t0.free()
        A(f's_and_b32 {s["C"]}, {s["T0"]}, 7\ns_lshr_b32 {s["SB"]}, {s["M"]}, 3\ns_and_b32 {s["T1"]}, s2, 7\ns_lshr_b32 {s["T0"]}, {s["T0"]}, 3')
        A(f's_lshl_b32 {s["BLK"]}, {s["T1"]}, 2\ns_add_u32 {s["BLK"]}, {s["BLK"]}, {s["T0"]}\ns_lshr_b32 {s["G"]}, {s["BLK"]}, 1')
        A(f's_lshl_b32 {self.sW2K}, {s["W"]}, 11\ns_mul_i32 {self.sW3K}, {s["W"]}, 3072\ns_lshl_b32 {self.sC128}, {s["C"]}, 7')
        self.sH128 = S.alloc()
        if o['xrot']: A(f's_add_u32 {self.sH128}, {s["C"]}, s2\ns_and_b32 {self.sH128}, {self.sH128}, 7\ns_lshl_b32 {self.sH128}, {self.sH128}, 7')
        else: A(f's_mov_b32 {self.sH128}, {self.sC128}')
        e = V.alloc(); ch = V.alloc()
        vHa = V.alloc(); self.vXa = V.alloc(); self.vXb = V.alloc(); self.vW1 = V.alloc(); self.vW2 = V.alloc()
        A(f'v_lshrrev_b32 {e}, 3, {vL}\nv_and_b32 {ch}, 7, {vL}')
        A(f'v_lshrrev_b32 {t1}, 4, {vL}\nv_xor_b32 {t1}, {t1}, {ch}\nv_lshlrev_b32 {t1}, 4, {t1}')
        A(f's_lshl_b32 {s["T0"]}, {s["BLK"]}, 6\ns_lshl_b32 {s["T1"]}, {s["W"]}, 4\ns_add_u32 {s["T1"]}, {s["T1"]}, {s["T0"]}')
        A(f'v_add_u32 {t2}, {s["T1"]}, {e}\nv_lshl_add_u32 {self.vXa}, {t2}, 10, {t1}\nv_add_u32 {self.vXb}, {7*1024}, {self.vXa}\nv_xor_b32 {self.vXb}, 64, {self.vXb}')
        A(f's_and_b32 {s["T1"]}, {s["W"]}, 1\ns_cselect_b32 {sHm}, -1, 0xffffff00\ns_lshl3_add_u32 {s["T0"]}, {s["T1"]}, {s["T0"]}\ns_sub_u32 {s["T0"]}, {s["T0"]}, 16\ns_lshl_b32 {s["T2"]}, {s["T1"]}, 6')
        A(f'v_add_u32 {t2}, {s["T0"]}, {e}\nv_max_i32 {vHa}, 0, {t2}\nv_lshl_add_u32 {vHa}, {vHa}, 10, {t1}\nv_xor_b32 {vHa}, {s["T2"]}, {vHa}')
        A(f's_lshl_b32 {s["T1"]}, {s["T1"]}, 2\ns_lshl_b32 {s["W1K"]}, {s["W"]}, 10')
        A(f'v_and_b32 {t1}, 2, {e}\nv_or_b32 {t1}, {s["T1"]}, {t1}\nv_xor_b32 {t1}, {t1}, {ch}\nv_lshlrev_b32 {t1}, 4, {t1}')
        A(f'v_lshl_add_u32 {t2}, {s["W"]}, 3, {e}')
        A(f'v_lshl_add_u32 {self.vW2}, {t2}, 10, {t1}\nv_mul_u32_u24 {t2}, 3072, {t2}\nv_add_u32 {self.vW1}, {t2}, {t1}')
        A(f's_mov_b32 s26, {2048*1024}\ns_mov_b32 s27, 0x20000\ns_mov_b32 s30, {512*3072}\ns_mov_b32 s31, 0x20000\ns_mov_b32 s50, {o["ws_base"] + WS_SIZE}\ns_mov_b32 s51, 0x20000\ns_mov_b32 s34, {512*1024}\ns_mov_b32 s35, 0x20000')
        A(f's_lshl_b32 {s["GB"]}, {s["G"]}, 20')
        if o['ws_base']: A(f's_add_u32 {s["GB"]}, {s["GB"]}, {o["ws_base"]}')
        A(f's_add_u32 {s["FL"]}, {s["GB"]}, {WS_FL}\ns_lshl2_add_u32 {self.sFme}, {s["M"]}, {s["FL"]}\nv_mov_b32 {t2}, 0')
        A(f's_cmp_eq_u32 {s["W"]}, 0\ns_cselect_b32 {sZ}, 0x3f, 0')
        self.sTb = S.alloc(); sTh = S.alloc()
        A(f's_mul_i32 {s["T0"]}, {s["C"]}, 0x11111111\ns_add_u32 {self.sTb}, {s["T0"]}, 0x76543210')
        if o['khalf']: A(f's_and_b32 {self.sTb}, {self.sTb}, 0x33333333\ns_or_b32 {self.sTb}, {self.sTb}, 0x44440000')
        A(f's_and_b32 {s["T0"]}, {s["W"]}, 2\ns_lshl_b32 {s["T0"]}, {s["T0"]}, 1\ns_lshr_b32 {sTh}, {self.sTb}, {s["T0"]}')
        v128 = self.v128 = V.alloc(); junk = V.alloc(); vT = V.alloc(); vTo = V.alloc(); sP = S.alloc(); sSel = s['PF']
        v1k = V.alloc(); self.vL16 = V.alloc(); hp = V.alloc(8, 2)
        A(f'v_lshlrev_b32 {v128}, 7, {vL}\nv_lshlrev_b32 {v1k}, 10, {vL}\nv_lshlrev_b32 {self.vL16}, 4, {vL}')
        OSRD = self.WS if o['o_in_ws'] else self.OUT
        def pf_group(kind, site=None):
            L = Asm()
            if kind == 'o': L(f's_mov_b64 exec, 0xffff\nbuffer_load_dword {junk}, {vTo}, {OSRD}, {self.sOst} offen sc1')
            elif kind == 'h': L(f's_mov_b64 exec, 0x3ffff\nbuffer_load_dword {junk}, {vT}, {self.WS}, {s["GB"]} offen sc1')
            elif kind == 'x1':
                L(f's_lshl2_add_u32 {sP}, {s["BLK"]}, {s["W"]}\ns_lshl3_add_u32 {sP}, {sP}, {s["C"]}\ns_lshl_b32 {sP}, {sP}, 11')
                L(f's_mov_b64 exec, 0xf0f0\nbuffer_load_dword {junk}, {v128}, {self.X}, {sP} offen sc1')
            elif kind in ('q3', 'o3', 'd3', 'q30', 'q31'):
                n, srd = {'q3': (12, self.WQ), 'q30': (6, self.WQ), 'q31': (6, self.WQ), 'o3': (4, self.WO), 'd3': (11, self.WD)}[kind]
                L(f's_lshr_b32 {sP}, s2, 3\ns_lshl2_add_u32 {sP}, {sP}, {s["W"]}\ns_mul_i32 {sP}, {sP}, {n*1024}')
                if kind == 'q31': L(f's_add_u32 {sP}, {sP}, {768*1024}')
                L(f's_mov_b64 exec, {hex((1 << n) - 1)}\nbuffer_load_dword {junk}, {v1k}, {srd}, {sP} offen offset:384 sc1')
            else:
                n, srd = {'wq': (12, self.WQ), 'wq0': (6, self.WQ), 'wq1': (6, self.WQ), 'wo': (4, self.WO), 'w3': (22, self.W3), 'wd': (11, self.WD)}[kind]
                if kind == 'w3': L(f's_and_b32 {sP}, {s["W"]}, 1\ns_lshl1_add_u32 {sP}, s2, {sP}')
                else: L(f's_lshl2_add_u32 {sP}, s2, {s["W"]}')
                L(f's_mul_i32 {sP}, {sP}, {n*128}')
                if kind == 'wq1': L(f's_add_u32 {sP}, {sP}, {768*1024}')
                L(f's_mov_b64 exec, {hex((1 << n) - 1)}\nbuffer_load_dword {junk}, {v128}, {srd}, {sP} offen sc1')
            L('s_mov_b64 exec, -1')
            for x in L.L:
                if x.kind == 'vmem': x.defs = set()
            if site is not None:
                mk = L.L[-3].text.split(', ')[1]
                return L.L[:-3] + [[Ins(f's_cmp_eq_u32 {sSel}, {site}'), Ins(f's_cselect_b64 exec, {mk}, 0')] + L.L[-2:]]
            return L.L[:-3] + [L.L[-3:]]
        def pf_flat(at):
            r = []
            for kind, a_ in o['pf'].items():
                if a_ == at:
                    gq = pf_group(kind); r.append(gq[:-1] + gq[-1])
            return r
        self.sOst = S.alloc(); self.sHst = S.alloc()
        c0 = self.p1_chunk_dma(0)
        A.ext(c0[0][:-1])
        A('@waitlg0')
        self.stamp('kernarg')
        if o.get('l2fill'):
            for lo, nbytes in o['l2fill']:
                per = -(-nbytes // (128*128))
                A(f's_mov_b32 s32, s{lo}\ns_mov_b32 s33, s{lo+1}\ns_mov_b32 s34, {nbytes}\ns_mov_b32 s35, 0x20000')
                A(f's_lshr_b32 {s["T0"]}, s2, 3\ns_lshl2_add_u32 {s["T0"]}, {s["T0"]}, {s["W"]}\ns_mul_i32 {s["T0"]}, {s["T0"]}, {per*128}')
                for q in range(-(-per // 64)): A(f'buffer_load_dword {t3}, {v128}, s[32:35], {s["T0"]} offen sc1\ns_add_u32 {s["T0"]}, {s["T0"]}, 8192')
                A('@waitvm0')
            A(f's_mov_b32 {s["T0"]}, 60\nL_dly:\ns_sub_u32 {s["T0"]}, {s["T0"]}, 1\ns_cmp_lg_u32 {s["T0"]}, 0\ns_cbranch_scc1 L_dly')
            self.stamp('probe done')
        if o.get('probe'):
            src, rounds, base = o['probe']
            lo = {'bx': 10, 'ws': 48, 'out': 18, 'wd': 16}[src]
            A(f's_mov_b32 s32, s{lo}\ns_mov_b32 s33, s{lo+1}\ns_mov_b32 s34, {(2 << 20) if src in ("bx", "out") else (1376*1024 if src == "wd" else 256 << 20)}\ns_mov_b32 s35, 0x20000')
            A(f'v_lshlrev_b32 {t1}, 7, {vL}\ns_lshl_b32 {s["T0"]}, s2, 2\ns_add_u32 {s["T0"]}, {s["T0"]}, {s["W"]}\ns_lshl_b32 {s["T0"]}, {s["T0"]}, 11\ns_add_u32 {s["T0"]}, {s["T0"]}, {base}')
            nl = 16 // rounds if rounds > 0 else 16
            for r in range(abs(rounds)):
                A(f's_mov_b64 exec, {hex((1 << nl) - 1)}\nbuffer_load_dword {t3}, {t1}, s[32:35], {s["T0"]} offen sc1\ns_mov_b64 exec, -1')
                if rounds > 0: A(f'@waitvm0\ns_add_u32 {s["T0"]}, {s["T0"]}, {nl*128}')
                else: A(f's_add_u32 {s["T0"]}, {s["T0"]}, {2 << 20}')
            A('@waitvm0')
            self.stamp('probe done')
        for gq in pf_flat('s0'): A.ext(gq)
        A.L.append(c0[0][-1])
        for gq in pf_flat('sx'): A.ext(gq)
        A(f's_mov_b32 exec_lo, {sZ}\ns_mov_b32 exec_hi, 0')
        A(f'buffer_store_dword {t2}, {v128}, {self.WS}, {self.sFme} offen', tag='fz')
        A('s_mov_b64 exec, -1')
        def chunk_items(i):
            gq = c0 if i == 0 else self.p1_chunk_dma(i)
            if i >= 4: return gq
            h = [Ins(f's_add_u32 m0, {s["W1K"]}, {L_HALO + i*4096}')]
            h += [Ins(f's_bfe_u32 {sH}, {sTh}, {hex(0x30000 + 8*i)}'), Ins(f's_lshl_b32 {sH}, {sH}, 7')]
            h.append([Ins(f's_mov_b32 exec_lo, {sHm}'), Ins(f'buffer_load_dwordx4 {vHa}, {self.X}, {sH} offen lds', f'hr{i}'), Ins('s_mov_b32 exec_lo, -1')])
            return gq[:5] + [h] + gq[5:]
        fl1 = lambda gq: [y for x in gq for y in (x if isinstance(x, list) else [x])]
        self.sCen = S.alloc(); self.sCoff = S.alloc(); self.sCv = sZ
        c1 = chunk_items(1); n1a, n1b = o['n1a'], o['n1b']
        g0 = [fl1(x) for x in chunk_items(0)[1:]]
        rows = Asm()
        if o['ymean']:
            rows(f's_lshl_b32 {sP}, s2, 11\ns_cmp_eq_u32 {s["W"]}, 0\ns_cselect_b64 exec, -1, 0')
            rows(f'buffer_load_dwordx4 {hp.sub(0, 4)}, {self.vL16}, {self.WO}, {sP} offen\nbuffer_load_dwordx4 {hp.sub(4, 4)}, {self.vL16}, {self.WO}, {sP} offen offset:1024\ns_mov_b64 exec, -1')
        groups = g0[:5] + ([rows.L] if rows.L else []) + pf_flat('sa') + g0[5:] + pf_flat('s1') + [fl1(x) for x in c1[:n1a]]
        B = Asm()
        B(f's_getreg_b32 {s["T0"]}, hwreg(HW_REG_XCC_ID, 0, 4)\ns_mul_i32 {s["T1"]}, {s["T0"]}, {s["T0"]}\ns_lshl_b32 {s["T1"]}, {s["T1"]}, 13\ns_lshl_b32 {s["T0"]}, {s["T0"]}, 5')
        B(f's_add_u32 {self.sCen}, {s["T0"]}, {s["T1"]}\ns_add_u32 {self.sCen}, {self.sCen}, 1\ns_lshl_b32 {self.sCoff}, {s["G"]}, 4')
        self.ones = V.alloc(4, 2)
        for k in range(4): B(f'v_mov_b32 {self.ones[k]}, 0x3f803f80')
        B(f's_lshl_b32 {s["T0"]}, {s["W"]}, 12\nv_lshlrev_b32 {t1}, 11, {e}\nv_lshl_add_u32 {t1}, {ch}, 4, {t1}\nv_add_u32 {t1}, {s["T0"]}, {t1}')
        B(f's_mov_b64 exec, 0xffff\nds_write_b128 {t1}, {self.ones} offset:{L_HALO}\ns_mov_b64 exec, -1')
        B(f'v_mov_b32 v254, {L_SCR + 4092}')
        self.srd(B, 40, 16, 1376*1024); self.srd(B, 44, 18, 2048*1024)
        B(f's_cmp_lt_u32 {s["W"]}, 2\ns_cselect_b32 s36, s12, s14\ns_cselect_b32 s37, s13, s15\ns_mov_b32 s38, {512*PITCH3}\ns_mov_b32 s39, 0x20000')
        S.free |= set(range(3, 20)) | {0, 1, 22, 23} | set(range(52, 60))
        self.sMode = S.alloc(); self.mW1 = S.alloc(2); self.mW16 = S.alloc(2)
        B(f's_mov_b32 {self.sMode}, 0\ns_cmp_eq_u32 {s["W"]}, 0\ns_cselect_b64 {self.mW1}, 1, 0\ns_cselect_b64 {self.mW16}, 0xffff, 0')
        self.sN3 = S.alloc(2); self.sInv512 = S.alloc()
        if o['perm3']:
            pi = [0, 1, 2, 14, 4, 5, 6, 7, 8, 9, 10, 15, 12, 13, 3, 11]; tb64 = sum(v << (4*q) for q, v in enumerate(pi))
            B(f's_mov_b32 {self.sN3[0]}, {hex(tb64 & 0xffffffff)}\ns_mov_b32 {self.sN3[1]}, {hex(tb64 >> 32)}\ns_lshl_b32 {s["M"]}, {s["M"]}, 2\ns_lshr_b64 {self.sN3}, {self.sN3}, {s["M"]}\ns_and_b32 {s["M"]}, {self.sN3[0]}, 15')
        B(f's_cmp_lt_u32 {s["M"]}, 15\ns_cselect_b32 {self.sN3[0]}, s38, 0\ns_cmp_lt_u32 {s["M"]}, 14\ns_cselect_b32 {self.sN3[1]}, s38, 0')
        B(f's_mov_b32 {self.sInv512}, {fhex(1/512)}')
        self.vEps = V.alloc(); B(f'v_mov_b32 {self.vEps}, {fhex(1e-5)}')
        j = self.vJ = V.alloc(); g = self.vG = V.alloc()
        B(f'v_and_b32 {j}, 15, {vL}\nv_lshrrev_b32 {g}, 4, {vL}')
        self.aX = [V.alloc(), V.alloc()]; self.aXo = [V.alloc(), V.alloc()]; self.aW1 = V.alloc(); aHs = [V.alloc(), V.alloc()]
        B(f'v_lshrrev_b32 {t1}, 1, {j}\nv_xor_b32 {t1}, {t1}, {g}\nv_lshlrev_b32 {t1}, 4, {t1}\nv_lshl_add_u32 {self.aX[0]}, {j}, 7, {t1}\nv_xor_b32 {self.aX[1]}, 64, {self.aX[0]}')
        B(f'v_add_u32 {aHs[0]}, {s["T0"]}, {self.aX[0]}\nv_add_u32 {aHs[1]}, {s["T0"]}, {self.aX[1]}')
        B(f's_add_u32 {s["T0"]}, {self.sW2K}, {L_X}\nv_add_u32 {self.aXo[0]}, {s["T0"]}, {self.aX[0]}\nv_add_u32 {self.aXo[1]}, {s["T0"]}, {self.aX[1]}')
        ra = [V.alloc() for _ in range(4)]
        B(f'v_lshrrev_b32 {t1}, 1, {j}\nv_lshrrev_b32 {t2}, 1, {g}\nv_xor_b32 {t1}, {t1}, {t2}\nv_lshlrev_b32 {t1}, 4, {t1}\nv_and_b32 {t2}, 1, {g}\nv_lshl_add_u32 {t1}, {t2}, 3, {t1}')
        B(f'v_lshl_add_u32 {t1}, {j}, 7, {t1}\nv_add_u32 {ra[0]}, {s["T0"]}, {t1}')
        for ct in range(1, 4): B(f'v_xor_b32 {ra[ct]}, {ct*32}, {ra[0]}')
        self.vTRf = V.alloc(); self.vTRb = V.alloc()
        B(f'v_and_b32 {t1}, 3, {e}\nv_lshlrev_b32 {self.vTRf}, 5, {t1}')
        B(f'v_bfe_u32 {t1}, {vL}, 2, 2\nv_and_b32 {t2}, 3, {vL}\nv_lshlrev_b32 {t2}, 3, {t2}\nv_lshl_add_u32 {self.vTRb}, {t1}, 7, {t2}')
        B(f's_lshl_b32 {s["T0"]}, {s["W"]}, 5\nv_xor_b32 {t1}, {s["T0"]}, {self.vTRf}\nv_mul_u32_u24 {t2}, 3072, {g}\nv_add3_u32 {self.aW1}, {t1}, {t2}, {self.vTRb}\nv_add_u32 {self.aW1}, {L_W}, {self.aW1}')
        self.mB0 = S.alloc(2); self.mB1 = S.alloc(2); self.mDiag = S.alloc(2); mOwnA = S.alloc(2); mOwnB = S.alloc(2)
        B(f's_mov_b32 {self.mB0[0]}, 0xaaaaaaaa\ns_mov_b32 {self.mB0[1]}, 0xaaaaaaaa\ns_mov_b32 {self.mB1[0]}, 0xcccccccc\ns_mov_b32 {self.mB1[1]}, 0xcccccccc')
        B(f's_mov_b32 {self.mDiag[0]}, 0x00f0000f\ns_mov_b32 {self.mDiag[1]}, 0xf0000f00')
        def lanemask(fn):
            v = sum(1 << l for l in range(64) if fn(l & 15, l >> 4)); return v & 0xffffffff, v >> 32
        oa = lanemask(lambda jj, gg: 4*gg + (jj & 1) <= jj); ob = lanemask(lambda jj, gg: 4*gg + 2 + (jj & 1) <= jj)
        B(f's_mov_b32 {mOwnA[0]}, {hex(oa[0])}\ns_mov_b32 {mOwnA[1]}, {hex(oa[1])}\ns_mov_b32 {mOwnB[0]}, {hex(ob[0])}\ns_mov_b32 {mOwnB[1]}, {hex(ob[1])}')
        aTB = V.alloc(); aTBw = V.alloc(); aHPw = V.alloc(); aHPr = V.alloc()
        B(f'v_lshlrev_b32 {aTB}, 4, {j}\nv_add_u32 {aTB}, {SCR_TB}, {aTB}\nv_lshl_add_u32 {aTBw}, {s["W"]}, 8, {aTB}')
        B(f'v_lshlrev_b32 {aHPr}, 5, {j}\nv_add_u32 {aHPr}, {SCR_HP}, {aHPr}\nv_lshl_add_u32 {aHPw}, {s["W"]}, 3, {aHPr}')
        ka = V.alloc(); kb = V.alloc(); bias = V.alloc(2); sel = V.alloc(4)
        B(f'v_and_b32 {t1}, 1, {j}\nv_lshl_add_u32 {t1}, {g}, 2, {t1}\nv_lshlrev_b32 {t1}, 4, {t1}\nv_add_u32 {t1}, {SCR_TB + 8}, {t1}\nv_add_u32 {t2}, 256, {t1}')
        B(f'v_cndmask_b32 {ka}, {t1}, {t2}, {mOwnA}\nv_cndmask_b32 {kb}, {t1}, {t2}, {mOwnB}')
        B(f's_cmp_eq_u32 {s["BLK"]}, 0\ns_cselect_b32 {s["T0"]}, {fhex(-1e30)}, 0\nv_mov_b32 {t1}, {s["T0"]}\nv_mov_b32 {t3}, 0x0c0c0c0c')
        B(f'v_cndmask_b32 {bias[0]}, {t1}, 0, {mOwnA}\nv_cndmask_b32 {bias[1]}, {t1}, 0, {mOwnB}')
        B(f'v_mov_b32 {t1}, 0x0c0c0100\nv_mov_b32 {t2}, 0x01000c0c\nv_cndmask_b32 {t1}, {t1}, {t2}, {self.mB0}')
        B(f'v_cndmask_b32 {sel[0]}, {t1}, {t3}, {mOwnA}\nv_cndmask_b32 {sel[2]}, {t3}, {t1}, {mOwnA}')
        B(f'v_mov_b32 {t1}, 0x0c0c0302\nv_mov_b32 {t2}, 0x03020c0c\nv_cndmask_b32 {t1}, {t1}, {t2}, {self.mB0}')
        B(f'v_cndmask_b32 {sel[1]}, {t1}, {t3}, {mOwnB}\nv_cndmask_b32 {sel[3]}, {t3}, {t1}, {mOwnB}')
        self.sD = S.alloc(); self.vF = V.alloc(2); self.vH = V.alloc(); self.vD = V.alloc(4)
        self.sR2 = S.alloc(); self.sU = S.alloc(2); self.sDl = S.alloc(); self.sCP = [S.alloc() for _ in range(7)]
        for k in range(7): B(f's_mov_b32 {self.sCP[k]}, {(k + 1)*64*PITCH3}')
        B(f's_and_b32 {s["PF"]}, {s["M"]}, 1\ns_mul_i32 {s["T0"]}, {s["M"]}, 192\ns_mul_i32 {s["T1"]}, {s["PF"]}, {PITCH3}')
        B(f's_add_u32 {s["T2"]}, {s["T0"]}, {s["T1"]}\ns_sub_u32 {s["T3"]}, {s["T0"]}, {s["T1"]}\ns_add_u32 {s["T3"]}, {s["T3"]}, {PITCH3}')
        B(f's_sub_u32 {self.sDl}, {s["T3"]}, {s["T2"]}\ns_add_u32 {self.sDl}, {self.sDl}, 64')
        B(f's_and_b32 {s["T0"]}, {s["W"]}, 1\ns_and_b32 {s["T1"]}, {s["W"]}, 2')
        B(f'v_and_b32 {t2}, 1, {e}\nv_lshl_add_u32 {t1}, {g}, 3, {t2}\nv_lshl_add_u32 {t1}, {s["T0"]}, 1, {t1}\nv_mul_u32_u24 {t1}, {2*PITCH3}, {t1}\nv_add_u32 {t1}, {s["T2"]}, {t1}')
        B(f'v_and_b32 {t3}, 1, {g}\nv_or_b32 {t2}, {s["T1"]}, {t3}\nv_lshlrev_b32 {t2}, 1, {t2}\nv_xor_b32 {t2}, {t2}, {ch}\nv_lshl_add_u32 {self.vF[0]}, {t2}, 4, {t1}\nv_add_u32 {self.vF[1]}, {8*PITCH3}, {self.vF[0]}')
        B(f'v_lshl_add_u32 {t1}, {s["T0"]}, 3, {e}\nv_lshlrev_b32 {t3}, 2, {t3}\nv_xor_b32 {t3}, {t3}, {ch}\nv_lshlrev_b32 {t3}, 4, {t3}\nv_lshl_add_u32 {self.vD[0]}, {t1}, 10, {t3}')
        B(f'v_and_b32 {t1}, 3, {e}\nv_lshlrev_b32 {t1}, 3, {t1}\nv_lshrrev_b32 {t2}, 5, {vL}\nv_lshl_add_u32 {t1}, {t2}, 1, {t1}\nv_bfe_u32 {t2}, {vL}, 2, 1\nv_add_u32 {t1}, {t1}, {t2}\nv_lshl_add_u32 {t1}, {s["T0"]}, 2, {t1}\nv_mul_u32_u24 {t1}, {2*PITCH3}, {t1}\nv_add_u32 {t1}, {s["T3"]}, {t1}')
        B(f'v_and_b32 {t2}, 3, {vL}\nv_xor_b32 {t2}, {s["T1"]}, {t2}\nv_lshl_add_u32 {self.vH}, {t2}, 4, {t1}')
        B(f's_lshl_b32 {s["T1"]}, {s["T1"]}, 13\ns_add_u32 {self.sU[0]}, {s["T1"]}, {self.sC128}\ns_mul_i32 {s["T1"]}, {s["T1"]}, 6\ns_add_u32 {self.sU[1]}, {s["T1"]}, {self.sC128}')
        pass
        B(f's_lshl_b32 {self.sOst}, {s["BLK"]}, 16\ns_lshl_b32 {s["T1"]}, {self.sH128}, 5\ns_add_u32 {self.sOst}, {self.sOst}, {s["T1"]}\ns_add_u32 {self.sOst}, {self.sOst}, {s["W1K"]}')
        B(f'v_lshlrev_b32 {t1}, 7, {ch}\nv_lshl_add_u32 {vTo}, {e}, 15, {t1}')
        B(f's_lshr_b32 {s["T1"]}, {s["W"]}, 1\ns_lshl_b32 {s["T2"]}, {s["SB"]}, 1\ns_add_u32 {s["T2"]}, {s["T2"]}, {s["T1"]}\ns_lshl_b32 {s["T2"]}, {s["T2"]}, 15')
        B(f's_lshl_b32 {s["T1"]}, {s["C"]}, 12\ns_add_u32 {s["T2"]}, {s["T2"]}, {s["T1"]}\ns_add_u32 {self.sHst}, {s["T2"]}, {s["GB"]}')
        B(f's_lshl_b32 {s["T0"]}, {s["T0"]}, 11\ns_add_u32 {s["T2"]}, {s["T2"]}, {s["T0"]}\nv_add_u32 {vT}, {s["T2"]}, {v128}')
        B(f's_lshl_b32 {s["T0"]}, {s["M"]}, 2\ns_add_u32 {s["T0"]}, {s["T0"]}, {s["W"]}\ns_lshl_b32 {s["T0"]}, {s["T0"]}, 7\ns_add_u32 {s["T1"]}, {s["T0"]}, {WS_ST}\nv_writelane_b32 {vT}, {s["T1"]}, 16')
        B(f's_and_b32 {s["T0"]}, {s["T0"]}, 0x380\ns_add_u32 {s["T1"]}, {s["T0"]}, {WS_FL}\nv_writelane_b32 {vT}, {s["T1"]}, 17')
        self.info['setupB'] = len(B.L)
        k1 = max(q for q in safe_points(B.L) if q <= o['c1_from'])
        code = sprinkle(B.L[:k1], groups, o['sp0'], start=0) + (self.visit('v0') if o['v0_at'] == -2 else []) + sprinkle(B.L[k1:], pf_flat('sb') + [fl1(x) for x in c1[n1a:n1b]], o['sp0b'], start=0)
        if o['visit']:
            k = max(q for q in safe_points(code) if q <= o['jump_at'])
            code[k:k] = [Ins('s_branch L_body'), Ins('.p2align 12'), Ins('L_body:')]
        if o.get('st0'):
            sp_ = set(safe_points(code)); last = 0
            for q, x in enumerate(code):
                if q - last >= o['st0'] and q in sp_:
                    self.stamp(f'i{q}v{sum(y.kind == "vmem" for y in code[:q])}'); last = q
                A.L.append(x)
            self.stamp('ipre-visit')
        else: A.ext(code)
        for r in (e, ch): r.free()
        for gq in pf_flat('s2'): A.ext(gq)
        if o['v0_at'] == -1: A.ext(self.visit('v0'))
        self.aQ = [V.alloc(4, 2) for _ in range(5)]; self.aK = [V.alloc(4, 2) for _ in range(5)]; self.aV = [V.alloc(4, 2) for _ in range(5)]
        self.stG = V.alloc(4, 2); self.stS = V.alloc(4, 2); hG = V.alloc(4, 2); hS = V.alloc(4, 2)
        bufs = [([AG.alloc(4, 4) for _ in range(3)], [AG.alloc(4, 4) for _ in range(5)], AG.alloc(4, 4)) for _ in range(2)]
        hb = [AG.alloc(4, 4) for _ in range(4)]
        nsite = max([len(a_) for a_ in o['pf'].values() if isinstance(a_, list)] + [0])
        if nsite:
            sSel = S.alloc(); src = {'x': 's2', 'g': s['G'], 'b': s['BLK'], 'c': s['C']}[o['selby']]
            if nsite == 3: A(f's_and_b32 {sSel}, {src}, 7\ns_lshl_b32 {sSel}, {sSel}, 2\ns_lshr_b32 {sSel}, 0x10210210, {sSel}\ns_and_b32 {sSel}, {sSel}, 3')
            else: A(f's_and_b32 {sSel}, {src}, {nsite - 1}')
        self.stamp('setup done')
        A('@waitlg0\n@waitvm hr0\ns_barrier')
        self.stamp('chunk0 visible')
        A.ext(self.p1_reads(0, 0, bufs[0]))
        cen = f's_cmp_lg_u32 {s["W"]}, 0\ns_cbranch_scc1 L_nocen\n@raw 1\ns_atomic_add {self.sCen}, s[20:21], {self.sCoff}\n@raw 0\nL_nocen:\n@minlg 1'
        if not o['ymean']: A(cen)
        self.resx = V.alloc(8, 2); tb4 = V.alloc(4, 2)
        hs = Asm()
        for a_, b_ in ((0, 2), (1, 3), (4, 6), (5, 7), (0, 4), (1, 5)): hs(f'v_add_f32 {hp[a_]}, {hp[a_]}, {hp[b_]}')
        hs.ext(self.stats_code(hp[1], hp[0], tb4)); hs(f'ds_write_b128 {aTB}, {tb4}')
        flat = lambda gs: [x for gq in gs for x in gq]
        pfm = lambda at: [x for kind, a_ in o['pf'].items() if a_ == at for x in pf_group(kind)]
        misc = flat(c1[n1b:]) + pfm('c1') + flat(chunk_items(2)) + pfm('c2')
        side = []
        self.gap_since_vm = 99
        HS = o['HS']
        for n in range(16):
            i, st = n >> 1, n & 1
            if n: A('@waitlg0')
            if o.get("fine", 0) >= 16 and (st == 0 or o.get('steps')) and n: self.stamp(f'p1 chunk {i}' + ('b' if st else ''))
            if st == 1 and i < 7:
                while any(x.tag == f'ch{i+1}' for x in fl1(misc)) or sum(x.tag == f'ch{i+2}' for x in fl1(misc)) > 8 - o['topup']: A.ext(fl1([misc.pop(0)]))
                if o['v0_at'] == i: A.ext(self.visit('v0'))
                if o['ymean'] and i == 0:
                    A(f'v_mfma_f32_16x16x32_bf16 {hG}, {self.ones}, {hp.sub(0, 4)}, 0\nv_mfma_f32_16x16x32_bf16 {hS}, {self.ones}, {hp.sub(4, 4)}, 0')
                    A(f's_lshl2_add_u32 {s["T0"]}, s2, {o["ws_base"] + WS_R}')
                    for ror in (8, 4, 2, 1):
                        for r_ in (hG[0], hS[0]): A(f'v_add_f32_dpp {r_}, {r_}, {r_} row_ror:{ror} row_mask:0xf bank_mask:0xf')
                    A(f'v_mul_f32 {hG[0]}, {fhex(-1/512)}, {hG[0]}\nv_mul_f32 {hS[0]}, {fhex(-1/512)}, {hS[0]}\nv_cvt_pk_bf16_f32 {hG[1]}, {hG[0]}, {hS[0]}')
                    A(f'v_lshlrev_b32 {hG[2]}, 16, {hG[1]}\nv_and_b32 {hG[3]}, 0xffff0000, {hG[1]}\nv_sub_f32 {hG[0]}, {hG[0]}, {hG[2]}\nv_sub_f32 {hS[0]}, {hS[0]}, {hG[3]}')
                    A(f'v_cvt_pk_bf16_f32 {hG[0]}, {hG[0]}, {hS[0]}\nv_cndmask_b32 {hG[0]}, {hG[1]}, {hG[0]}, {self.mB0}\ns_and_b64 exec, {self.mW16}, 3')
                    A(f'buffer_store_dword {hG[0]}, {v1k}, {self.WS}, {s["T0"]} offen sc1', tag='rst')
                    A('s_mov_b64 exec, -1')
                A(f'@waitvm ch{i+1}\ns_barrier')
                if o['ymean'] and i == 2: A('@waitvm rst\n' + cen)
                if i == o['minlg_until']: A('@minlg 0')
                if i + 3 < 8: misc += flat(chunk_items(i + 3))
                for kind, at in o['pf'].items():
                    if at == i: misc += pf_group(kind)
                    elif isinstance(at, list) and i in at: misc += pf_group(kind, at.index(i))
                if i == 5:
                    self.free_blocks += [23, 24, 25, 26, 27]
                    misc += flat(self.dmas(o['w2a']))
                if i == 6: misc += flat(self.dmas(o['w2b']))
            mf = self.p1_mfmas(bufs[n & 1], n == 0)
            if n < 15:
                rd = self.p1_reads((n + 1) >> 1, (n + 1) & 1, bufs[(n + 1) & 1])
                if n == HS: rd += [Ins(f'ds_read_b128 {hb[q]}, {aHs[q & 1]} offset:{L_HALO + (q >> 1)*2048}') for q in range(4)]
                if n == HS + 1:
                    for q in range(4):
                        mf += [Ins(f'v_mfma_f32_16x16x32_bf16 {hG}, {hb[q]}, {hb[q]}, {hG if q else 0}'), Ins(f'v_mfma_f32_16x16x32_bf16 {hS}, {self.ones}, {hb[q]}, {hS if q else 0}')]
                    mf = mf[17:] + mf[:17]
                if n == HS + 1: side += self.diag_code(hG, hS[1]) + [[Ins(f's_mov_b64 exec, {self.mDiag}'), Ins(f'ds_write_b64 {aHPw}, {hS.sub(0, 2)}'), Ins('s_mov_b64 exec, -1')]]
                if n == HS + 3:
                    assert st == 1 and not side
                    rd += [Ins(f'ds_read_b128 {hp.sub(0, 4)}, {aHPr}'), Ins(f'ds_read_b128 {hp.sub(4, 4)}, {aHPr} offset:16')]
                if n == HS + 4: side += hs.L
                if n == 8 and o['khalf']:
                    A(f's_cmp_lt_u32 {s["C"]}, 4\ns_cselect_b64 exec, 0, -1')
                    for ct in range(4): A(f'ds_read_b64 {self.resx.sub(2*ct, 2)}, {ra[ct]} offset:{(4 % 3)*8192}')
                    A('s_mov_b64 exec, -1')
                vg = o['vgap0'] if n < 4 else o['vgap']
                if n == 0:
                    rx = [x for x in rd if 'b128' in x.mn] + [Ins(f'ds_read_b64 {self.resx.sub(2*ct, 2)}, {ra[ct]}') for ct in range(4)]
                    k0 = o['k0']
                    self.weave16(mf[:k0], rx, misc, vgap=vg, tail=0)
                    A('@waitvm ch0\ns_barrier')
                    self.weave16(mf[k0:], [x for x in rd if 'b128' not in x.mn], misc, vgap=vg)
                else: self.weave16(mf, rd, misc, vgap=vg, side=side)
            else:
                code = self.diag_code(self.stG, self.stS[1]) + self.stats_code(self.stS[1], self.stS[0], tb4)
                code.append([Ins(f's_mov_b64 exec, {self.mDiag}'), Ins(f'ds_write_b128 {aTBw}, {tb4} offset:256'), Ins('s_mov_b64 exec, -1')])
                assert not side
                self.weave16(mf[:5], [], misc)
                self.weave16(mf[5:13], [], code); assert not code
                self.weave16(mf[13:], [], misc)
        self.stamp('p1 gemm done')
        for b in bufs:
            for r in b[0] + b[1] + [b[2]]: r.free()
        for r in ra + aHs + hb + [hG, hS, vHa, sH, sHm, sTh, self.sTb, hp, aHPw, aHPr, aTBw, tb4, self.stG, self.aW1, self.vXa, self.vXb, self.vW1] + self.aX + self.aXo: r.free()
        left = []; cur = []
        for x in misc:
            cur += x if isinstance(x, list) else [x]
            if any(y.kind == 'vmem' for y in cur): left.append(cur); cur = []
        assert not cur
        self.info['w2_left'] = len(left)
        if left: A.ext(left.pop(0))
        A('@waitlg0\ns_barrier')
        nw2_left = 16 - o['w2a'] - o['w2b']
        late_free = [22, 8, 9] + list(range(10, 16)) + [4, 5] + list(range(16, 22)) + [6, 7, 0, 1, 2, 3]
        tb = [V.alloc(4, 2) for _ in range(5)]
        for t in range(5): A(f'ds_read_b128 {tb[t]}, {aTB} offset:{t*256}')
        rk = [None] + [V.alloc(2) for _ in range(4)]
        for t in range(1, 5): A(f'ds_read_b32 {rk[t][0]}, {ka} offset:{(t-1)*256}\nds_read_b32 {rk[t][1]}, {kb} offset:{(t-1)*256 + 32}')
        cv_ = V.alloc(); ca_ = V.alloc(); ct_ = V.alloc()
        crd = Asm(); crd(f'v_lshlrev_b32 {ca_}, 4, {j}\nglobal_load_dword {cv_}, {ca_}, s[20:21] sc1')
        cck = Asm()
        chk = f'v_and_b32 {ct_}, 16, {cv_}\nv_readlane_b32 {self.sCv}, {cv_}, {s["G"]}\nv_cmp_eq_u32 vcc, 0, {ct_}'
        cck(chk + f'\ns_lshl_b32 {self.sCen}, {self.sCen}, 4\ns_cmp_lg_u32 {self.sCen}, {self.sCv}')
        if o['force_slow']: cck('s_cmp_eq_u32 0, 0')
        cck('s_cselect_b64 vcc, -1, vcc\ns_cbranch_vccnz L_notfast\nL_mode_ok:')
        if o['ymean']:
            cck(f's_mul_i32 {s["T1"]}, {s["W"]}, 1088\ns_add_u32 m0, {s["T1"]}, {SCR_R}\ns_add_u32 {s["T1"]}, {s["W1K"]}, {o["ws_base"] + WS_R}\ns_cmp_lt_u32 {s["W"]}, 2\ns_cselect_b64 exec, -1, 0')
            cck(f'buffer_load_dwordx4 {self.vL16}, {self.WS}, {s["T1"]} offen sc1 lds\ns_mov_b64 exec, -1')
        T = self.tail
        T(f'L_notfast:\ns_mov_b32 {s["T1"]}, 0x8000\nL_cen_loop:\nglobal_load_dword {cv_}, {ca_}, s[20:21] sc1\ns_waitcnt vmcnt(0)\n' + chk)
        T(f's_sub_u32 {s["T1"]}, {s["T1"]}, 1\ns_cbranch_scc1 L_cen_done\ns_cbranch_vccnz L_cen_loop\nL_cen_done:')
        if o['stamps']: T('s_add_u32 s97, s97, 0x1000000')
        if not o['force_slow']: T(f's_cmp_eq_u32 {self.sCen}, {self.sCv}\ns_cbranch_scc1 L_mode_ok')
        T(f's_mov_b32 {self.sMode}, 1\nv_mov_b32 {ca_}, {self.sCoff}')
        T(f's_add_u32 {s["FL"]}, {s["FL"]}, {FL_SLOW}\ns_add_u32 {self.sFme}, {self.sFme}, {FL_SLOW}\ns_mov_b32 {s["T1"]}, 0x8000\ns_cmp_lg_u32 {s["W"]}, 0\ns_cbranch_scc1 L_slow_loop')
        T(f's_mov_b64 exec, 0x3f\nv_mov_b32 {cv_}, 0\nbuffer_store_dword {cv_}, {v128}, {self.WS}, {self.sFme} offen sc1\ns_waitcnt vmcnt(0)\ns_mov_b64 exec, 1\nv_mov_b32 {cv_}, 1')
        T(f'global_atomic_add {ca_}, {cv_}, s[20:21] offset:4 sc1\ns_mov_b64 exec, -1')
        T(f'L_slow_loop:\nglobal_load_dword {cv_}, {ca_}, s[20:21] offset:4 sc1\ns_waitcnt vmcnt(0)\nv_readfirstlane_b32 {s["T2"]}, {cv_}')
        T(f's_sub_u32 {s["T1"]}, {s["T1"]}, 1\ns_cbranch_scc1 L_mode_ok\ns_cmp_lt_u32 {s["T2"]}, 16\ns_cbranch_scc1 L_slow_loop\ns_branch L_mode_ok')
        E = Asm()
        csq = V.alloc(4, 2); csk = V.alloc(4, 2); csv = V.alloc(2, 2)
        for r in range(4): E(f'v_mov_b32_dpp {csk[r]}, {self.aK[0][r]} row_newbcast:0 row_mask:0xf bank_mask:0xf')
        for r in range(4): E(f'v_mov_b32_dpp {csq[r]}, {self.aQ[0][r]} row_newbcast:0 row_mask:0xf bank_mask:0xf')
        E(f'v_cvt_pk_bf16_f32 {t1}, {self.aV[0][0]}, {self.aV[0][0]}\nv_mov_b32 {csv[0]}, 0\nv_and_b32 {t1}, 0xffff0000, {t1}\nv_mov_b32 {csv[1]}, 0\nv_sub_f32 {t2}, {self.aV[0][0]}, {t1}')
        E(f's_mov_b64 exec, 0xffff\nv_cvt_pk_bf16_f32 {csv[1]}, {t1}, {t2}\ns_mov_b64 exec, -1')
        Kp = V.alloc(10, 2); Qp = V.alloc(10, 2); Vp = V.alloc(10, 2)
        def fixf(acc, cs, t):
            for h in range(2): E(f'v_pk_fma_f32 {acc[t].sub(2*h, 2)}, {cs.sub(2*h, 2)}, {tb[t].sub(0, 2)}, {acc[t].sub(2*h, 2)} op_sel_hi:[1,0,1]')
        fixf(self.aK, csk, 0)
        for t in range(1, 5): fixf(self.aK, csk, t); fixf(self.aQ, csq, t)
        zs = [None] + [V.alloc(2) for _ in range(4)]
        for t in range(1, 5): E(f'v_pk_mul_f32 {zs[t]}, {rk[t]}, {tb[t].sub(2, 2)} op_sel:[0,1] op_sel_hi:[1,1]')
        cv = lambda acc, dst, t: [f'v_cvt_pk_bf16_f32 {dst[2*t + h]}, {acc[t][2*h]}, {acc[t][2*h+1]}' for h in range(2)]
        vm = [f'v_mfma_f32_16x16x16_bf16 {self.aV[t]}, {tb[t].sub(0, 2)}, {csv}, {self.aV[t]}' for t in range(5)]
        cvs = cv(self.aK, Kp, 0)
        for t in range(1, 5): cvs += cv(self.aK, Kp, t) + cv(self.aQ, Qp, t)
        for t in range(5):
            E(vm[t]); E(cvs.pop(0)); E(cvs.pop(0))
        Sp, So = self.aK, self.aQ
        Sp = [None] + self.aK[0:4]; So = [None] + self.aQ[0:4]
        for t in range(1, 5):
            E(f'v_mfma_f32_16x16x16_bf16 {Sp[t]}, {Kp.sub(2*t-2, 2)}, {Qp.sub(2*t, 2)}, 0')
            for _ in range(2):
                if cvs: E(cvs.pop(0))
            E(f'v_mfma_f32_16x16x16_bf16 {So[t]}, {Kp.sub(2*t, 2)}, {Qp.sub(2*t, 2)}, 0')
            for _ in range(2):
                if cvs: E(cvs.pop(0))
        z = [None] + [V.alloc(2) for _ in range(4)]
        for t in range(1, 5):
            for h, mk in ((0, mOwnA), (1, mOwnB)):
                E(f'v_cndmask_b32 {Sp[t][2*h]}, {Sp[t][2*h]}, {Sp[t][2*h+1]}, {self.mB0}\nv_cndmask_b32 {So[t][2*h]}, {So[t][2*h]}, {So[t][2*h+1]}, {self.mB0}')
                E(f'v_cndmask_b32 {z[t][h]}, {Sp[t][2*h]}, {So[t][2*h]}, {mk}')
        E(f'v_pk_fma_f32 {z[1]}, {z[1]}, {zs[1]}, {bias}')
        for t in range(2, 5): E(f'v_pk_mul_f32 {z[t]}, {z[t]}, {zs[t]}')
        red = zs
        fl = [x for t in range(5) for x in cv(self.aV, Vp, t)]
        def fill(n):
            for _ in range(n):
                if fl: E(fl.pop(0))
        def allreduce(op, mid=None):
            r = [None] + [red[t][0] for t in range(1, 5)]
            for t in (1, 3, 2, 4): E(f'{op} {r[t]}, {z[t][0]}, {z[t][1]}')
            E(f'v_permlane32_swap_b32 {r[1]}, {r[3]}'); fill(1)
            E(f'v_permlane32_swap_b32 {r[2]}, {r[4]}')
            E(f'{op} {r[1]}, {r[1]}, {r[3]}\n{op} {r[2]}, {r[2]}, {r[4]}'); fill(2)
            E(f'v_permlane16_swap_b32 {r[1]}, {r[2]}')
            E(f'{op} {r[1]}, {r[1]}, {r[2]}')
            if mid: E(f'{mid} {r[1]}, {r[1]}'); fill(1)
            E(f'v_mov_b32 {r[2]}, {r[1]}'); fill(2)
            E(f'v_permlane16_swap_b32 {r[1]}, {r[2]}')
            E(f'v_mov_b32 {r[3]}, {r[1]}\nv_mov_b32 {r[4]}, {r[2]}'); fill(1)
            E(f'v_permlane32_swap_b32 {r[1]}, {r[3]}\nv_permlane32_swap_b32 {r[2]}, {r[4]}')
        allreduce('v_max_f32')
        for t in range(1, 5): E(f'v_pk_add_f32 {z[t]}, {z[t]}, {red[t]} op_sel_hi:[1,0] neg_lo:[0,1] neg_hi:[0,1]')
        for t in range(1, 5): E(f'v_exp_f32 {z[t][0]}, {z[t][0]}\nv_exp_f32 {z[t][1]}, {z[t][1]}')
        fl += [f'v_pk_mul_f32 {rk[t]}, {z[t]}, {rk[t]}' for t in range(1, 5)]
        allreduce('v_add_f32', 'v_rcp_f32')
        fill(20)
        for t in range(1, 5): E(f'v_pk_mul_f32 {z[t]}, {rk[t]}, {red[t]} op_sel_hi:[1,0]')
        for t in range(1, 5): E(f'v_cvt_pk_bf16_f32 {z[t][0]}, {z[t][0]}, {z[t][1]}')
        P = Sp; O = So
        for t in range(1, 5):
            for q in range(4):
                E(f'v_perm_b32 {P[t][q]}, {z[t][0]}, {z[t][0]}, {sel[q]}')
                if q == 1 and t > 1: E(f'v_mfma_f32_16x16x32_bf16 {O[t-1]}, {Vp.sub(2*t-4, 4)}, {P[t-1]}, 0')
        of = [self.aV[0], self.aV[1]]
        oc = lambda t: [f'v_cvt_pk_bf16_f32 {of[(t-1) >> 1][2*((t-1) & 1) + h]}, {O[t][2*h]}, {O[t][2*h+1]}' for h in range(2)]
        for x in oc(1): E(x)
        E(f'v_mfma_f32_16x16x32_bf16 {O[4]}, {Vp.sub(6, 4)}, {P[4]}, 0')
        groups = pf_flat('e0') + left + self.dmas(nw2_left) + pf_flat('e1')
        self.free_blocks += late_free
        groups += self.dmas(o['b_epi'])
        code = sprinkle(E, groups, o['sp1'], start=8)
        sp_ = safe_points(code)
        k2 = max(q for q in sp_ if q <= o['cen_ck']); code[k2:k2] = cck.L
        k1 = max(q for q in sp_ if q <= o['cen_rd']); code[k1:k1] = crd.L
        self.info['epi'] = len(code)
        A.ext(code)
        for r in (cv_, ca_, ct_): r.free()
        A(f's_add_u32 {s["T0"]}, {self.sOst}, 32768\n;dual_begin')
        for x in oc(2) + oc(3): A(x)
        A(f'v_permlane16_swap_b32 {of[0][0]}, {of[0][2]}\nv_permlane16_swap_b32 {of[0][1]}, {of[0][3]}')
        for x in oc(4): A(x)
        self.store2(A, 'dwordx4', of[0], self.vL16, self.sOst, 0, 'ost', self.OUT)
        A(f'v_permlane16_swap_b32 {of[1][0]}, {of[1][2]}\nv_permlane16_swap_b32 {of[1][1]}, {of[1][3]}')
        self.store2(A, 'dwordx4', of[1], self.vL16, s["T0"], 0, 'ost', self.OUT)
        A(';dual_end')
        self.stamp('o stored')
        for gq in pf_flat('e2'): A.ext(gq)
        for r in (vT, vTo, sP, v1k): r.free()
        self.junk1 = junk
        self.OSRD = OSRD
        for r in tb + rk[1:] + zs[1:] + z[1:] + [csq, csk, csv, Kp, Qp, Vp, bias, sel, aTB, ka, kb] + self.aQ + self.aK + self.aV[2:]: r.free()
        for r in (mOwnA, mOwnB, self.sCen, self.sCoff, self.sCv, self.sW3K, self.sKC, self.sSO, self.sH128): r.free()
        self.of = of

    def phase2(self):
        A, V, S, AG, s, vL, o = self.A, self.V, self.S, self.AG, self.s, self.vL, self.o
        t1, t2, t3, j, g = self.t1, self.t2, self.t3, self.vJ, self.vG
        self.vOne = V.alloc(); self.vPv = V.alloc()
        assert ('W2', 15) in self.loc
        aw = [V.alloc() for _ in range(4)]
        mark = len(A.L)
        A(f'v_lshl_add_u32 {t1}, {g}, 10, {self.vTRb}\nv_add_u32 {t1}, {23*BLK}, {t1}')
        for ct in range(4): A(f'v_xor_b32 {t2}, {ct*32}, {self.vTRf}\nv_add_u32 {aw[ct]}, {t1}, {t2}')
        pa = V.alloc(); oa = V.alloc(); hv = V.alloc(); sSt = S.alloc(); vj16 = V.alloc(); aRw = V.alloc()
        A(f's_lshl_b32 {s["T0"]}, {s["SB"]}, 5\nv_and_b32 {t1}, 7, {vL}\nv_lshl_add_u32 {pa}, {t1}, 2, {s["T0"]}\nv_mov_b32 {self.vOne}, 1')
        A(f's_lshr_b32 {s["T0"]}, {s["W"]}, 1\ns_lshl_b32 {s["T0"]}, {s["T0"]}, 10\ns_and_b32 {s["T1"]}, {s["W"]}, 1\ns_lshl_b32 {s["T1"]}, {s["T1"]}, 8')
        A(f'v_lshlrev_b32 {vj16}, 4, {j}\nv_and_b32 {t1}, 1, {g}\nv_lshl_add_u32 {t1}, {t1}, 9, {vj16}\nv_add_u32 {t1}, {s["T1"]}, {t1}\nv_lshrrev_b32 {t2}, 1, {g}\nv_lshl_add_u32 {hv}, {t2}, 11, {t1}\nv_lshl_add_u32 {oa}, {t2}, 10, {t1}')
        A(f's_lshl_b32 {self.sR2}, {s["BLK"]}, 16\ns_lshl_b32 {s["T2"]}, {s["T0"]}, 5\ns_add_u32 {self.sR2}, {self.sR2}, {s["T2"]}')
        acc = [V.alloc(4, 2) for _ in range(4)]
        for ct in range(4):
            for h in range(2):
                A(f'v_lshlrev_b32 {acc[ct][2*h]}, 16, {self.resx[2*ct+h]}\nv_and_b32 {acc[ct][2*h+1]}, 0xffff0000, {self.resx[2*ct+h]}')
        accM = self.stS; aR = V.alloc()
        if o['ymean']:
            A(f's_add_u32 {sSt}, {s["T0"]}, {s["T1"]}\ns_lshl_b32 {s["T0"]}, {s["SB"]}, 11\ns_add_u32 {sSt}, {sSt}, {s["T0"]}\ns_and_b32 {s["T0"]}, {s["C"]}, 4\ns_lshl_b32 {s["T0"]}, {s["T0"]}, 7\ns_add_u32 {sSt}, {sSt}, {s["T0"]}')
            A(f's_and_b32 {s["T0"]}, {s["C"]}, 3\ns_lshl2_add_u32 {sSt}, {s["T0"]}, {sSt}\ns_add_u32 {sSt}, {sSt}, {s["GB"]}\ns_add_u32 {sSt}, {sSt}, {WS_ST}')
            A(f'v_and_b32 {t1}, 1, {j}\nv_mul_u32_u24 {t1}, 1088, {t1}\nv_lshl_add_u32 {t1}, {g}, 4, {t1}\nv_add_u32 {aR}, {SCR_R}, {t1}\nv_mov_b32 {accM[1]}, 0')
        else:
            A(f's_lshl_b32 {s["T0"]}, {s["T0"]}, 1\ns_add_u32 {sSt}, {s["T0"]}, {s["T1"]}\ns_lshl_b32 {s["T0"]}, {s["SB"]}, 12\ns_add_u32 {sSt}, {sSt}, {s["T0"]}')
            A(f's_and_b32 {s["T0"]}, {s["C"]}, 2\ns_lshl_b32 {s["T0"]}, {s["T0"]}, 9\ns_add_u32 {sSt}, {sSt}, {s["T0"]}\ns_and_b32 {s["T0"]}, {s["C"]}, 4\ns_lshl_b32 {s["T0"]}, {s["T0"]}, 7\ns_add_u32 {sSt}, {sSt}, {s["T0"]}')
            A(f's_and_b32 {s["T0"]}, {s["C"]}, 1\ns_lshl_b32 {s["T0"]}, {s["T0"]}, 3\ns_add_u32 {sSt}, {sSt}, {s["T0"]}\ns_add_u32 {sSt}, {sSt}, {s["GB"]}\ns_add_u32 {sSt}, {sSt}, {WS_ST}')
        A.L[mark:] = sprinkle(A.L[mark:], self.dmas(o['b_pre1']), o.get('sp3', 12))
        A('@waitvm ost')
        for r in self.of: r.free()
        self.stamp('o drained')
        A('@waitvm W2_15\ns_barrier')
        A.ext(self.signal(0))
        Wf = [[AG.alloc(4, 4) for _ in range(4)] for _ in range(16)]
        def rd(i):
            off = (self.loc[('W2', i)] - 23)*BLK
            return [Ins(f'ds_read_b64_tr_b16 {Wf[i][ct].sub(2*a, 2)}, {aw[ct]} offset:{off + a*512}') for ct in range(4) for a in range(2)] + \
                   ([Ins(f'ds_read_b128 {Rf[i]}, {aR} offset:{i*64}')] if o['ymean'] else [])
        Rf = [V.alloc(4, 2) for _ in range(16 if o['ymean'] else 0)]
        npre = o['w2pre']
        A.ext(sprinkle([x for i in range(npre) for x in rd(i)], self.dmas(o['b_post1']), 8))
        A.ext(self.visit('v1'))
        self.poll_block(A, pa, 0, self.mW16 if o['one_poll'] else '0xff'); A('@drained_vm')
        if o['one_poll']: A('s_barrier')
        self.stamp('sync1 done')
        self.junk1.free()
        Of = [V.alloc(4, 2) for _ in range(16)]
        ld = [([Ins(f's_add_u32 {self.sR2}, {self.sR2}, 4096')] if i and i % 2 == 0 else []) + [Ins(f'buffer_load_dwordx4 {Of[i]}, {oa}, {self.OSRD}, {self.sR2} offen offset:{(i & 1)*2048} sc1')] for i in range(16)]
        rest = [x for i in range(npre, 16) for x in rd(i)]
        LO = o['LO']
        for i in range(LO):
            A.ext(ld[i]); A.ext(rest[:5]); rest = rest[5:]
        misc = [x for gq in ld[LO:] + self.dmas(o['b_o']) for x in gq]
        mf = []
        for i in range(16):
            if o['ymean']: mf.append(Ins(f'v_mfma_f32_16x16x32_bf16 {accM}, {Rf[i]}, {Of[i]}, {accM}'))
            mf += [Ins(f'v_mfma_f32_16x16x32_bf16 {acc[ct]}, {Wf[i][ct]}, {Of[i]}, {acc[ct]}') for ct in range(4)]
        mark2 = len(A.L)
        self.gap_since_vm = 99
        self.weave16(mf, rest, misc)
        A.ext(misc)
        used = set()
        for x in A.L[mark2:]:
            if x.kind == 'mfma': used |= x.srcAB
            elif x.kind in ('ds', 'vmem'): assert not (x.defs & used), x.text
        self.stamp('p2 gemm done')
        w2b = sorted(self.loc[('W2', i)] for i in range(16))
        self.resb = w2b[0]; assert w2b[1] == w2b[0] + 1
        A(f's_add_u32 {s["T0"]}, {self.sW2K}, {self.resb*BLK}\nv_lshlrev_b32 {t1}, 7, {j}\nv_lshl_add_u32 {t1}, {g}, 3, {t1}')
        A(f'v_bfe_u32 {t2}, {j}, 0, 2\nv_lshl_add_u32 {t1}, {t2}, 5, {t1}\nv_add_u32 {aRw}, {s["T0"]}, {t1}\ns_barrier')
        self.free_blocks += w2b[2:]
        hf = [Of[0], Of[1]]; G4, S4 = Of[2], Of[3]
        A(';dual_begin')
        hc = acc
        if o['ymean']:
            hc = Of[6:10]
            A(f'v_add_f32 {accM[0]}, {accM[0]}, {accM[1]}')
            for ct in range(4):
                for h in range(2): A(f'v_pk_add_f32 {hc[ct].sub(2*h, 2)}, {acc[ct].sub(2*h, 2)}, {accM.sub(0, 2)} op_sel_hi:[1,0]')
        for par in range(2):
            for ct in range(4): A(f'v_cvt_pk_bf16_f32 {hf[par][ct]}, {hc[ct][par]}, {hc[ct][2+par]}')
        rp = Reg('v', Of[4].b, 8); assert Of[5].b == Of[4].b + 4
        rc = [f'v_cvt_pk_bf16_f32 {rp[2*ct+h]}, {acc[ct][2*h]}, {acc[ct][2*h+1]}' for ct in range(4) for h in range(2)]
        A(f'v_mfma_f32_16x16x32_bf16 {G4}, {hf[0]}, {hf[0]}, 0')
        self.store2(A, 'dwordx4', hf[0], hv, self.sHst, 0, 'hst')
        A(f'v_mfma_f32_16x16x32_bf16 {G4}, {hf[1]}, {hf[1]}, {G4}')
        d = self.diag_code(G4, S4[1])
        if o['ymean']:
            self.store2(A, 'dwordx4', hf[1], hv, self.sHst, 1024, 'hst')
            A('\n'.join(rc[:7])); A.ext(d); rc = rc[7:]
            A(f's_mov_b64 exec, {self.mDiag}')
            self.store2(A, 'dword', S4[1], vj16, sSt, 0, 'hst')
        else:
            A(f'v_mfma_f32_16x16x32_bf16 {S4}, {self.ones}, {hf[0]}, 0')
            A(f'v_mfma_f32_16x16x32_bf16 {S4}, {self.ones}, {hf[1]}, {S4}')
            self.store2(A, 'dwordx4', hf[1], hv, self.sHst, 1024, 'hst')
            A('\n'.join(rc[:3])); A.ext(d[:2]); A(rc[3]); A.ext(d[2:]); rc = rc[4:]
            A(f's_mov_b64 exec, {self.mDiag}')
            self.store2(A, 'dwordx2', S4.sub(0, 2), vj16, sSt, 0, 'hst')
        A('s_mov_b64 exec, -1\n;dual_end')
        self.stamp('h stored')
        A('\n'.join(rc))
        A(f'ds_write_b64 {aRw}, {rp.sub(0, 2)}')
        for ct in range(1, 4): A(f'v_xor_b32 {t1}, {ct*32}, {aRw}\nds_write_b64 {t1}, {rp.sub(2*ct, 2)}')
        for r in aw + Rf + [pa, oa, hv, vj16, aRw, aR, accM] + acc + Of[6:] + [x for y in Wf for x in y] + [self.vW2, self.mB0, self.mB1, self.mDiag, self.sR2, sSt, self.sOst, self.sHst, self.ones]: r.free()
        self.late_free = Of[:6]

    def phase34(self):
        A, V, S, AG, s, vL, o = self.A, self.V, self.S, self.AG, self.s, self.vL, self.o
        t1, t2, t3, j, g = self.t1, self.t2, self.t3, self.vJ, self.vG
        P = Asm()
        Q = Asm()
        class Win:
            def __init__(w, base): w.r = {0: base}
            def need(w, k):
                if k in w.r: return []
                w.r[k] = V.alloc()
                return [Ins(f'v_add_u32 {w.r[k]}, {k << 16}, {w.r[0]}')]
        aF, aH, aD = [], [], []
        P(f'v_and_b32 {t1}, 1, {g}\nv_lshlrev_b32 {t1}, 11, {t1}\nv_lshrrev_b32 {t2}, 1, {g}\nv_lshl_add_u32 {t3}, {t2}, 10, {t1}')
        b0 = V.alloc(); P(f'v_add3_u32 {b0}, {t3}, {self.vTRb}, {self.vTRf}'); aF.append(Win(b0))
        for uu in range(1, 4):
            b = V.alloc(); P(f'v_xor_b32 {b}, {uu*32}, {b0}'); aF.append(Win(b))
        b0 = V.alloc(); b1 = V.alloc()
        P(f'v_lshl_add_u32 {t3}, {t2}, 9, {t1}\nv_bfe_u32 {t1}, {vL}, 2, 2\nv_lshl_add_u32 {t3}, {t1}, 6, {t3}\nv_and_b32 {t1}, 3, {vL}\nv_lshl_add_u32 {t3}, {t1}, 3, {t3}\nv_and_b32 {t1}, 1, {g}\nv_lshl_add_u32 {b0}, {t1}, 5, {t3}\nv_xor_b32 {b1}, 32, {b0}')
        aH = [Win(b0), Win(b1)]
        aCF = aCH = delta = None
        if not o['ymean']:
            P(f's_and_b32 {s["T1"]}, {s["W"]}, 2\nv_or_b32 {t1}, {s["T1"]}, {t1}\nv_lshlrev_b32 {t1}, 5, {t1}')
            b = V.alloc(); P(f'v_xor_b32 {b}, {t1}, {self.vL16}\nv_add_u32 {b}, {s["W1K"]}, {b}'); aCF = Win(b)
            b = V.alloc(); P(f's_lshl_b32 {s["T1"]}, {s["T1"]}, 4\nv_xor_b32 {b}, {s["T1"]}, {self.vL16}\nv_add_u32 {b}, {s["W1K"]}, {b}'); aCH = Win(b)
            delta = V.alloc(4, 2)
            P(f'v_and_b32 {t1}, 1, {j}\nv_lshlrev_b32 {t1}, 4, {t1}\nv_mov_b32 {t2}, 0x3f80\nv_lshlrev_b32 {t1}, {t1}, {t2}')
            for d in range(4):
                mk = 0x00030003 << (2*d)
                P(f's_mov_b32 vcc_lo, {hex(mk)}\ns_mov_b32 vcc_hi, {hex(mk)}\nv_cndmask_b32 {delta[d]}, 0, {t1}, vcc')
        pa2 = V.alloc(); pa3 = V.alloc(); aRes = V.alloc(); vHl = {'F': V.alloc(), 'H': V.alloc()}
        sT4 = S.alloc(); sGa = S.alloc(); sGb = S.alloc(); sGl = S.alloc(); sHl = S.alloc(); sKH = S.alloc(); sTH = S.alloc(); sSl = S.alloc(); sGo = S.alloc(); sTs = S.alloc(); sLo = S.alloc(); sLw = S.alloc()
        P(f's_lshr_b32 {sKH}, {s["W"]}, 1\ns_and_b32 {sTH}, {s["W"]}, 1')
        P(f'v_lshlrev_b32 {pa3}, 2, {j}\nv_lshl_add_u32 {pa2}, {sKH}, 5, {pa3}')
        P(f's_lshl_b32 {s["T1"]}, {s["W"]}, 15\ns_add_u32 {sHl}, {s["T1"]}, {s["GB"]}\nv_lshl_add_u32 {vHl["F"]}, {s["PF"]}, 10, {self.vL16}\nv_xor_b32 {vHl["H"]}, 1024, {vHl["F"]}')
        P(f's_lshl_b32 {s["T2"]}, {sTH}, 12\ns_add_u32 {s["T2"]}, {s["T2"]}, {self.resb*BLK}\nv_lshrrev_b32 {t2}, 5, {vL}\nv_lshl_add_u32 {t2}, {sKH}, 1, {t2}\nv_and_b32 {t1}, 3, {vL}\nv_xor_b32 {t2}, {t2}, {t1}')
        P(f'v_and_b32 {t1}, 31, {vL}\nv_lshl_add_u32 {t1}, {t1}, 7, {s["T2"]}\nv_lshl_add_u32 {aRes}, {t2}, 5, {t1}')
        Q(f's_add_u32 {sSl}, {s["W1K"] if o["ymean"] else self.sW2K}, {s["GB"]}\ns_add_u32 {sSl}, {sSl}, {WS_ST}')
        Q(f's_lshl_b32 {s["T3"]}, {s["W"]}, 15\ns_lshl_b32 {s["T2"]}, {s["M"]}, 10\ns_add_u32 {s["T2"]}, {s["T2"]}, {s["T3"]}\ns_add_u32 {sGa}, {s["T2"]}, {s["GB"]}')
        Q(f's_lshl_b32 {sLo}, {s["G"]}, 17\ns_add_u32 {sGo}, {sLo}, {s["T2"]}')
        Q(f's_mul_i32 {s["T2"]}, {s["PF"]}, {16*KB - 512}\ns_add_u32 {sGb}, {s["T3"]}, {s["T2"]}\ns_lshl_b32 {s["T2"]}, {s["M"]}, 9\ns_add_u32 {sGb}, {sGb}, {s["T2"]}\ns_add_u32 {sGb}, {sGb}, {s["GB"]}')
        Q(f's_lshl1_add_u32 {sT4}, {s["SB"]}, {sTH}\ns_lshl1_add_u32 {s["T2"]}, {sT4}, {sKH}\ns_lshl_b32 {s["T2"]}, {s["T2"]}, 14\ns_add_u32 {sLo}, {sLo}, {s["T2"]}\ns_add_u32 {sLw}, {s["GB"]}, {s["T2"]}')
        Q(f'v_bfe_u32 {t1}, {vL}, 2, 2\nv_lshrrev_b32 {t2}, 1, {g}\nv_lshl_add_u32 {t1}, {t2}, 2, {t1}\nv_lshlrev_b32 {t3}, 7, {t1}\nv_bfe_u32 {t1}, {vL}, 3, 1\nv_lshl_add_u32 {t3}, {t1}, 6, {t3}')
        Q(f'v_and_b32 {t1}, 1, {vL}\nv_lshl_add_u32 {t3}, {t1}, 5, {t3}\nv_and_b32 {t1}, 1, {g}\nv_lshl_add_u32 {t3}, {t1}, 4, {t3}\nv_bfe_u32 {t1}, {vL}, 1, 1\nv_lshl_add_u32 {t3}, {t1}, 3, {t3}')
        b0 = V.alloc(); b1 = V.alloc()
        Q(f's_mul_i32 {s["T2"]}, {sKH}, {2048 + 64}\nv_xor_b32 {b0}, {s["T2"]}, {t3}\nv_xor_b32 {b1}, 64, {b0}')
        aD = [Win(b0), Win(b1)]
        if not o['ymean']:
            aCW = V.alloc(); aCR = V.alloc()
            Q(f's_lshl_b32 {s["T2"]}, {sTH}, 10\ns_lshl_b32 {s["T3"]}, {sKH}, 9\ns_add_u32 {s["T2"]}, {s["T2"]}, {s["T3"]}\ns_add_u32 {s["T2"]}, {s["T2"]}, {SCR_CS}')
            Q(f'v_lshl_add_u32 {t1}, {g}, 4, {s["T2"]}\nv_lshl_add_u32 {aCW}, {j}, 5, {t1}')
            Q(f'v_and_b32 {t1}, 1, {g}\nv_lshlrev_b32 {t1}, 9, {t1}\nv_lshl_add_u32 {t1}, {j}, 2, {t1}\nv_lshl_add_u32 {t1}, {t2}, 11, {t1}\nv_add_u32 {aCR}, {SCR_CS}, {t1}')
            cA = V.alloc(4, 2); cB = V.alloc(4, 2); cT = V.alloc(2)
            for r in (cA, cB):
                for k in range(1, 4): Q(f'v_mov_b32 {r[k]}, 0')
        self.info['setupP'] = len(P.L); self.info['setupQ'] = len(Q.L)
        HB = {('F', i): AG.at(8*i, 4) for i in range(16)}; HB.update({('H', i): AG.at(8*i + 4, 4) for i in range(16)})
        ops = []
        def op3(u, ty, i):
            if ty == 'F':
                if u < 4: key, ad, st, ex = ('F1', i), aF[u], 512, 0
                else: key, ad, st, ex = ('S3', i >> 1), aH[u - 4], 256, (i & 1)*1024
            else:
                if u < 2: key, ad, st, ex = ('H1', i >> 1), aH[u], 256, (i & 1)*1024
                else: key, ad, st, ex = ('S2', i), aF[u - 2], 512, 0
            ops.append(dict(k='m', u=u, key=key, ad=ad, st=st, ex=ex, B=HB[(ty, i)], hk=(ty, i)))
        if o['order'] == 'pair':
            for i in range(16):
                for ty in 'FH':
                    for u in (0, 1): op3(u, ty, i)
            for i in range(16):
                for u in (2, 3): op3(u, 'F', i)
        else:
            for i in range(16):
                for u in range(4): op3(u, 'F', i)
                for u in (0, 1): op3(u, 'H', i)
        if o.get('o45') == 'all':
            for i in range(16):
                for u in (2, 3, 4, 5): op3(u, 'H', i)
            for u in (4, 5):
                for i in range(16): op3(u, 'F', i)
        elif o.get('o23') == 'mix':
            for i in range(16):
                for u in (2, 3): op3(u, 'H', i)
        else:
            for u in (2, 3):
                for i in range(16): op3(u, 'H', i)
        if o.get('o45') == 'all': pass
        elif o.get('o45') == 'mix2':
            for ty in 'HF':
                for i in range(16):
                    for u in (4, 5): op3(u, ty, i)
        elif o.get('o45', 'mix') == 'mix':
            for i in range(16):
                for u in (4, 5): op3(u, 'H', i)
            for u in (4, 5):
                for i in range(16): op3(u, 'F', i)
        else:
            for u in (4, 5):
                for ty in 'HF':
                    for i in range(16): op3(u, ty, i)
        NG, NR, LA = o['NG'], o['NR'], o['LA']
        GB = [AG.alloc(4, 4) for _ in range(NG)]
        TL = o['TL']
        o4 = lambda i, k: ops.append(dict(k='m', u=6 + k, key=('W4', i), ad=aD[k], st=1024, ex=0, B=None, hk=('g', i)))
        for i in range(43 - TL):
            for k in range(2): o4(i, k)
        for k in (1, 0):
            for i in range(43 - TL, 43): o4(i, k)
        RB = [AG.alloc(4, 4) for _ in range(NR)]
        csacc = {} if o['ymean'] else {c: V.alloc(4, 2) for c in ('F1', 'H1', 'S2', 'S3')}
        cnt = {}
        def cs_op(key):
            c = key[0]; cnt[c] = cnt.get(c, 0) + 1
            return dict(k='c', key=key, ad=aCF if c in ('F1', 'S2') else aCH, first=cnt[c] == 1, last=cnt[c] == (16 if c in ('F1', 'S2') else 8))
        pre_keys = [k for k in self.issued if k[0] != 'W2'][:o['cs_pre']]
        pre_ops = [cs_op(k) for k in pre_keys]
        seen = set(pre_keys); ops2 = []; at = {}; fc = {}; nth = {}
        if o['ymean']: seen = {p['key'] for p in ops}; pre_ops = []
        for n, p in enumerate(ops):
            if p['key'][0] != 'W4' and p['key'] not in seen:
                seen.add(p['key']); c = p['key'][0]; fc.setdefault(c, n); nth[c] = nth.get(c, -1) + 1
                lead, spc = o['cs_lead'].get(c, (0, 99))
                at.setdefault(max(0, min(n, fc[c] - lead + spc*nth[c])), []).append(p['key'])
        for n, p in enumerate(ops):
            ops2 += [cs_op(k) for k in at.get(n, [])] + [p]
        ops = ops2
        for n, p in enumerate(ops): p['R'] = RB[n % NR]; p['n'] = n
        for n, p in enumerate(pre_ops): p['R'] = Reg('a', 4*n, 4); p['n'] = -1
        N = len(ops)
        last_use = {p['key']: p['n'] for p in ops}
        last_op = {p['u']: p['n'] for p in ops if p['k'] == 'm'}
        first4 = min(p['n'] for p in ops if p.get('u', 0) >= 6)
        def reads(p):
            b = self.loc[p['key']]; w, off = b >> 4, (b & 15)*BLK
            pre = p['ad'].need(w); ad = p['ad'].r[w]
            if p['k'] == 'c': return pre + [Ins(f'ds_read_b128 {p["R"]}, {ad} offset:{off}', f'r{p["n"]}')]
            return pre + [Ins(f'ds_read_b64_tr_b16 {p["R"].sub(2*a, 2)}, {ad} offset:{off + p["ex"] + a*p["st"]}', f'r{p["n"]}') for a in range(2)]
        started = set()
        def mfma(p):
            if p['k'] == 'c':
                c = csacc[p['key'][0]]
                return Ins(f'v_mfma_f32_16x16x32_bf16 {c}, {delta}, {p["R"]}, {0 if p["first"] else c}')
            a = acc[p['u']] if p['u'] < 6 else (accK, accS)[p['u'] - 6]
            z = p['u'] not in started and p['u'] != 6
            started.add(p['u'])
            return Ins(f'v_mfma_f32_32x32x16_bf16 {a}, {p["R"]}, {p["B"] or slot[p["hk"]]}, {0 if z else a}')
        visible = set(self.issued)
        A.ext(sprinkle(P, self.dmas(o['b_pre2']), o.get('sp3', 12)))
        for p in pre_ops: A.ext(p['ad'].need(self.loc[p['key']] >> 4))
        A('@waitvm hst')
        self.stamp('h drained')
        for r in self.late_free + [self.vTRb, self.vTRf]: r.free()
        A('@waitlg0\ns_barrier')
        A.ext(self.signal(1))
        res = self.resx
        E = Asm()
        E(f'ds_read_b128 {res.sub(0, 4)}, {aRes}\nds_read_b128 {res.sub(4, 4)}, {aRes} offset:16')
        for q in range(len(pre_ops) + 4):
            if q < len(pre_ops): E.ext(reads(pre_ops[q]))
            if q >= 4: E.L.append(mfma(pre_ops[q - 4]))
        for q in range(LA):
            assert ops[q]['key'] in visible
            E.ext(reads(ops[q]))
        if o['q_early']: E.ext(Q); Q = Asm()
        A.ext(sprinkle(E, self.dmas(o['b_post2']), o.get('sp2', 14)))
        if o.get('l2fill2'):
            for srd in o['l2fill2']:
                if srd == 'W3': A(f's_lshr_b32 {s["T0"]}, s2, 3\ns_and_b32 {s["T1"]}, {s["W"]}, 1\ns_lshl1_add_u32 {s["T0"]}, {s["T0"]}, {s["T1"]}\ns_mul_i32 {s["T0"]}, {s["T0"]}, {172*128}\ns_mov_b32 {s["T2"]}, s38\ns_mov_b32 s38, {512*PITCH3}')
                else: A(f's_lshr_b32 {s["T0"]}, s2, 3\ns_lshl2_add_u32 {s["T0"]}, {s["T0"]}, {s["W"]}\ns_mul_i32 {s["T0"]}, {s["T0"]}, {86*128}')
                for q in range(3 if srd == 'W3' else 2): A(f'buffer_load_dword {self.vPv}, {self.v128}, {getattr(self, srd)}, {s["T0"]} offen sc1\ns_add_u32 {s["T0"]}, {s["T0"]}, 8192')
                A('@waitvm0')
                if srd == 'W3': A(f's_mov_b32 s38, {s["T2"]}')
            A(f's_mov_b32 {s["T0"]}, 60\nL_dly2:\ns_sub_u32 {s["T0"]}, {s["T0"]}, 1\ns_cmp_lg_u32 {s["T0"]}, 0\ns_cbranch_scc1 L_dly2')
        A.ext(self.visit('v2'))
        if o['one_poll']: self.poll_block(A, pa3, 1, self.mW16); A('@drained_vm\ns_barrier')
        else: self.poll_block(A, pa2, 1, '0xff'); A('@drained_vm')
        self.stamp('sync2 done')
        self.mark34 = len(A.L)
        acc = [V.alloc(16, 2) for _ in range(6)]
        accK, accS = acc[0], acc[1]
        LATH, LATD, LATS, VS, WE, VC = o['LATH'], o['LATD'], o['LATS'], o['vslack'], o['WE'], o['VC']
        horder = []; hfirst = {}; hlast = {}
        for p in ops:
            if 'hk' in p:
                if p['hk'] not in hfirst: hfirst[p['hk']] = p['n']; horder.append(p['hk'])
                hlast[p['hk']] = p['n']
        first_use = {}
        for p in ops: first_use.setdefault(p['key'], p['n'])
        sp = V.alloc(8, 2)
        cc = V.alloc(2); c1, c3 = cc[0], cc[1]; iv2 = V.alloc(2); iv = iv2[0]; tt = V.alloc(8, 2); go = [V.alloc(4, 2), V.alloc(4, 2)]
        cs_last = {p['key'][0]: p['n'] for p in pre_ops + ops if p['k'] == 'c' and p['last']}
        I = lambda text, tag=None: [Ins(x, tag) for x in text.split('\n')]
        tagof = lambda k: f'{k[0]}_{k[1]}'
        stage_of = lambda i: 1 if i < 15 else 2 if i < 29 else 3 if i < 36 else 4
        rq = []; pairw = {}
        for q, hk in enumerate(horder):
            ty, i = hk
            if ty == 'g':
                sg = stage_of(i); k = i - (0, 15, 29, 36)[sg - 1]
                code = I(f's_add_u32 {sGl}, {sLo if sg == 1 else sLw}, {(0, WS_G, WS_H, WS_H + 8192)[sg - 1] + (k >> 2)*4096}') if k % 4 == 0 else []
                rq.append(dict(id=hk, dl=hfirst[hk], cost=VC, stage=min(sg, 3) if o['merge34'] else sg, lat=LATD if sg == 2 else LATH, code=code, srd=self.OUT if sg == 1 else self.WS, off=(k & 3)*1024))
                if o['PW'] and hk not in pairw and i < 42 and stage_of(i) == stage_of(i + 1): pairw[hk] = ('g', i + 1); pairw[('g', i + 1)] = None
            else:
                code = I(f's_add_u32 {sHl}, {sHl}, 4096') if q and q % 4 == 0 else []
                assert i >> 1 == q >> 2
                code += I(f'buffer_load_dwordx4 {HB[hk]}, {vHl[ty]}, {self.WS}, {sHl} offen offset:{(i & 1)*2048} sc1', tagof(hk))
                rq.append(dict(id=hk, dl=hfirst[hk], cost=VC, code=code))
                if o['PW'] and q >= 4 and q % 2 == 0: pairw[hk] = horder[q + 1]
        for k in range(1 if o['ymean'] else 2):
            rq.append(dict(id=('st', k), dl=last_op[0] - o.get('st_lead', 10), cost=VC, ev='Q', code=I(f'buffer_load_dwordx4 {sp.sub(4*k, 4)}, {self.vL16}, {self.WS}, {sSl} offen offset:{k*1024} sc1')))
        rq.sort(key=lambda r: r['dl'])
        K1 = -2*math.sqrt(2/math.pi)*LOG2E
        chA = []
        def cs_items(c):
            a = csacc[c]; full = c in ('F1', 'S2')
            off = {'F1': 0, 'H1': 2048, 'S2': 2048 + 128, 'S3': 256}[c]
            for ror in ((8,) if full else (8, 4)):
                for r in range(4): chA.append(('v', ('op', cs_last[c] + 2), I(f'v_add_f32_dpp {a[r]}, {a[r]}, {a[r]} row_ror:{ror} row_mask:0xf bank_mask:0xf'), None))
            L = Asm(); L(f's_mov_b64 exec, {"0x00ff00ff" if full else "0x000f000f"}'); L(f'ds_write_b128 {aCW}, {a} offset:{off}', 'wr' + c); L('s_mov_b64 exec, -1')
            chA.append(('d', None, L.L, 'wr' + c))
        def corr_items(u, cls):
            chA.append(('d', ('ev', ['bar_wr' + c for c in cls], 0), I(f'ds_read_b32 {cT[0]}, {aCR} offset:{u*64}\nds_read_b32 {cT[1]}, {aCR} offset:{u*64 + 1024}'), f'crd{u}'))
            for k, x in enumerate((f'v_add_f32 {cT[0]}, {cT[0]}, {cT[1]}', f'v_cvt_pk_bf16_f32 {cT[1]}, {cT[0]}, {cT[0]}', f'v_and_b32 {cT[1]}, 0xffff0000, {cT[1]}',
                                   f'v_sub_f32 {cT[0]}, {cT[0]}, {cT[1]}', f'v_cvt_pk_bf16_f32 {cA[0]}, {cT[1]}, {cT[0]}')):
                chA.append(('v', ('ev', [f'crd{u}'], 100), I(x), None))
            chA.append(('m', ('both', first_op[u], 'stats'), I(f'v_mfma_f32_32x32x16_bf16 {acc[u]}, {cA}, {cB}, {acc[u]}'), f'corr{u}'))
        first_op = {}
        for p in ops:
            if p['k'] == 'm': first_op.setdefault(p['u'], p['n'])
        ev = {}; arr = {}; evop = {}
        for x in Q.L: chA.append(('v', None, [x], None))
        if Q.L: chA[-1] = chA[-1][:3] + ('Q',)
        else: ev['Q'] = 0
        if o['ymean']: ev.update({f'corr{u}': 0 for u in range(6)})
        else:
            for c in sorted(('F1', 'H1'), key=cs_last.get): cs_items(c)
            corr_items(0, ('F1', 'H1')); corr_items(1, ('F1', 'H1'))
            cs_items('S2'); corr_items(2, ('F1', 'S2')); corr_items(3, ('F1', 'S2'))
            cs_items('S3'); corr_items(4, ('S2', 'S3')); corr_items(5, ('S2', 'S3'))
        chB = []; chC = []; chD = []; chP = []; vP = [self.vPv] + [V.alloc() for _ in range(3)]
        if o['ymean']: stc = (f'v_add_f32 {sp[0]}, {sp[0]}, {sp[1]}\nv_add_f32 {sp[2]}, {sp[2]}, {sp[3]}\nv_add_f32 {sp[1]}, {sp[0]}, {sp[2]}\nv_add_f32 {sp[0]}, {sp[0]}, {sp[2]}\nv_nop\nv_nop\n'
               f'v_permlane32_swap_b32 {sp[0]}, {sp[1]}\nv_add_f32 {sp[0]}, {sp[0]}, {sp[1]}\nv_fma_f32 {iv}, {sp[0]}, {self.sInv512}, {self.vEps}\n'
               f'v_rsq_f32 {sp[2]}, {iv}\nv_nop\nv_mul_f32 {c1}, {fhex(K1)}, {sp[2]}\nv_mul_f32 {sp[3]}, {sp[2]}, {sp[2]}\nv_mul_f32 {c3}, {fhex(0.044715)}, {c1}\nv_mul_f32 {c3}, {c3}, {sp[3]}')
        else: stc = (f'v_add_f32 {sp[0]}, {sp[0]}, {sp[2]}\nv_add_f32 {sp[1]}, {sp[1]}, {sp[3]}\nv_add_f32 {sp[4]}, {sp[4]}, {sp[6]}\nv_add_f32 {sp[5]}, {sp[5]}, {sp[7]}\n'
               f'v_add_f32 {sp[0]}, {sp[0]}, {sp[4]}\nv_add_f32 {sp[1]}, {sp[1]}, {sp[5]}\nv_mov_b32 {sp[2]}, {sp[0]}\nv_mov_b32 {sp[3]}, {sp[1]}\nv_nop\n'
               f'v_permlane32_swap_b32 {sp[0]}, {sp[2]}\nv_permlane32_swap_b32 {sp[1]}, {sp[3]}\nv_add_f32 {sp[0]}, {sp[0]}, {sp[2]}\nv_add_f32 {sp[1]}, {sp[1]}, {sp[3]}\n'
               f'v_mul_f32 {sp[0]}, {fhex(-1/512)}, {sp[0]}\nv_fma_f32 {sp[1]}, {sp[1]}, {self.sInv512}, {self.vEps}\nv_fma_f32 {iv}, -{sp[0]}, {sp[0]}, {sp[1]}\nv_max_f32 {iv}, {iv}, {self.vEps}\n'
               f'v_rsq_f32 {sp[2]}, {iv}\nv_cvt_pk_bf16_f32 {cB[0]}, {sp[0]}, {sp[0]}\nv_mul_f32 {c1}, {fhex(K1)}, {sp[2]}\nv_mul_f32 {sp[3]}, {sp[2]}, {sp[2]}\nv_mul_f32 {c3}, {fhex(0.044715)}, {c1}\nv_mul_f32 {c3}, {c3}, {sp[3]}')
        for x in I(stc): chB.append(('v', ('arr', ('st', 0 if o['ymean'] else 1)), [x], None))
        chB[-1] = chB[-1][:3] + ('stats',)
        pubs = {1: 1, 3: 2, 5: 3} if o['merge34'] else {1: 1, 3: 2, 4: 3, 5: 4}
        for u in range(6):
            a = acc[u]; out = go[u & 1]
            st = []
            for txt in ('v_mul_f32 {t}, {a}, {a}', 'v_fma_f32 {t}, {t}, {c3}, {c1}', 'v_mul_f32 {t}, {t}, {a}', 'v_exp_f32 {t}, {t}', 'v_mul_f32 {b}, {a}, {b}', 'v_fma_f32 {t}, {t}, {iv}, {iv}', 'v_rcp_f32 {t}, {t}', 'v_mul_f32 {b}, {b}, {t}'):
                st.append([txt.format(t=tt[v], a=a[v], b=a[8+v], c1=c1, c3=c3, iv=iv) for v in range(8)])
            seq = st[0] + st[1][:2] + st[2][:1]
            for v in range(8):
                if v + 2 < 8: seq.append(st[1][v+2])
                if v + 1 < 8: seq.append(st[2][v+1])
                seq.append(st[3][v])
            seq += [st[5][0]]
            for v in range(8):
                if v + 1 < 8: seq.append(st[5][v+1])
                seq += [st[4][v], st[6][v]]
            seq += st[7] + [f'v_cvt_pk_bf16_f32 {out[d]}, {a[8+2*d]}, {a[9+2*d]}' for d in range(4)]
            if u in o['pk_units']:
                P2 = lambda r, v: r.sub(2*v, 2)
                t_ = [P2(tt, v) for v in range(4)]; a2 = [P2(a, v) for v in range(4)]; b2 = [a.sub(8 + 2*v, 2) for v in range(4)]
                seq = [f'v_pk_mul_f32 {t_[v]}, {a2[v]}, {a2[v]}' for v in range(4)]
                seq += [f'v_pk_fma_f32 {t_[v]}, {t_[v]}, {cc}, {cc} op_sel:[0,1,0] op_sel_hi:[1,1,0]' for v in range(4)]
                seq += [f'v_pk_mul_f32 {t_[v]}, {t_[v]}, {a2[v]}' for v in range(4)] + st[3]
                seq += [f'v_pk_fma_f32 {t_[v]}, {t_[v]}, {iv2}, {iv2} op_sel_hi:[1,0,0]' for v in range(4)] + st[6]
                seq += [f'v_pk_mul_f32 {b2[v]}, {a2[v]}, {b2[v]}' for v in range(4)]
                seq += [f'v_pk_mul_f32 {b2[v]}, {b2[v]}, {t_[v]}' for v in range(4)]
                seq += [f'v_cvt_pk_bf16_f32 {out[d]}, {a[8+2*d]}, {a[9+2*d]}' for d in range(4)]
            for ln in seq: chB.append(('v', ('ev', [f'corr{u}', f'done{u}'], 56), I(ln), None, u))
            L = Asm()
            base = (sGo, sGa, sGb)[u >> 1]; add = (0, 16*KB, WS_G, WS_G + 16*KB, WS_H, WS_H + 8*KB)[u]
            if add: L(f's_add_u32 {sTs}, {base}, {add}')
            so = sTs if add else base
            if u in (2, 3): L(f'buffer_store_dwordx4 {out}, {self.vL16}, {self.WS}, {so} offen sc1', tag=f'gst{u}')
            else: self.store2(L, 'dwordx4', out, self.vL16, so, 0, f'gst{u}', self.OUT if u < 2 else None, wrap=True)
            chB.append(('s', {4: ('ev', ['stage1'], 0), 5: ('iss', ('g', 14))}.get(u), L.L, f'gst{u}', u))
            if u == o.get('res_after', 3):
                for d in range(8):
                    for x in I(f'v_lshlrev_b32 {accK[2*d]}, 16, {res[d]}\nv_and_b32 {accK[2*d+1]}, 0xffff0000, {res[d]}'): chB.append(('v', None, [x], None))
                chB[-1] = chB[-1][:3] + ('acc4',)
            if u in pubs:
                sg = pubs[u]; k = self.nlabel; self.nlabel += 1
                pm = self.mW16 if o['one_poll3'] else '0xffff'
                chC.append(('f', ('ev', [f'bar_gst{u}'], 0), self.signal(1 + sg), f'pub{sg}'))
                chP.append(('v', ('op', first4 + 2*(0, 15, 29, 36)[sg - 1] - o['plead'][sg - 1]), [], None))
                chP.append(('f', ('ev', [f'pub{sg}'], o['poll_after'][sg - 1]), I(f's_mov_b64 exec, {pm}\n{self.poll_ld(pa3, 1 + sg, vP[4 - sg])}\ns_mov_b64 exec, -1'), f'poll{sg}'))
                chD.append(('v', ('arr', f'poll{sg}'), I(f'v_cmp_eq_u32 vcc, 0, {vP[4 - sg]}\ns_and_b64 vcc, vcc, {pm}\ns_cbranch_vccnz L_late{k}\nL_back{k}:'), f'chk{sg}' if o['one_poll3'] else f'stage{sg}'))
                self.tail(f'L_late{k}:')
                if o['stamps']: self.tail(f's_add_u32 s97, s97, {(4 if o["one_poll3"] else 1) << (8*(sg - 1))}')
                self.poll_block(self.tail, pa3, 1 + sg, pm, vP[4 - sg]); self.tail(f's_branch L_back{k}')
        chE = []
        for k in self.issued: arr[k] = 0
        now = 0; vm_free = 0; last_arr = 0; mf_free = 0; n_done = -1; last_bar = 0; nbar = 0
        cur = []; freed = set(); est = {}; idle = 0; win = []; slot = {}; pool = list(GB); lastc = ['H']
        def emit(code):
            nonlocal now
            A.ext(code); now += 4*sum(max(cost(x), 1 if x.mn.startswith('@wait') else 0) + (2 if x.mn.startswith('s_cbranch') else 4 if x.text == ';dual_begin' else 0) for x in code)
        def vm_issue(idk, c, lat):
            nonlocal vm_free, last_arr
            st_ = max(vm_free, now); tot = c
            for (c_, a_) in reversed(win):
                tot += c_
                if tot > o['WIN']*VC: st_ = max(st_, a_); break
            vm_free = st_ + c
            last_arr = max(last_arr + c, st_ + lat); arr[idk] = last_arr; win.append((c, last_arr))
            self.trace.append((n_done, now, idk, last_arr))
        def ready_time(cond):
            if cond is None: return 0
            if cond[0] == 'op': return 0 if n_done >= cond[1] else None
            if cond[0] == 'both': return ev[cond[2]] + 8 if n_done >= cond[1] and cond[2] in ev else None
            if cond[0] == 'arr': return arr.get(cond[1])
            if cond[0] == 'iss': return 0 if cond[1] in arr else None
            if all(e in ev for e in cond[1]): return max(ev[e] for e in cond[1]) + cond[2]
            return None
        def pick_request():
            best = None
            for r in rq:
                if 'stage' in r and (f'stage{r["stage"]}' not in ev or not pool): break
                if 'ev' in r and r['ev'] not in ev: continue
                best = r; break
            if self.stream and self.free_blocks:
                dl = first_use[self.stream[0]] - LA - o['dma_lead']
                if best is not None and best.get('lat', LATH) == LATH and n_done >= o['hyst_from']: dl += o['hyst'] if lastc[0] == 'H' else -o['hyst']
                if best is None or dl < best['dl']:
                    lastc[0] = 'M'
                    key = self.stream[0]; c = VC*(2 if key[0] in ('H1', 'S3') else 1)
                    cur.extend([(key, c, LATD)] + self.dma_next()); return True
            if best is None: return False
            lastc[0] = 'H' if best.get('lat', LATH) == LATH else 'M'
            if 'stage' in best:
                slot[best['id']] = pool.pop(0)
                best['code'] = best['code'] + I(f'buffer_load_dwordx4 {slot[best["id"]]}, {self.vL16}, {best["srd"]}, {sGl} offen offset:{best["off"]} sc1', tagof(best['id']))
            rq.remove(best); cur.extend([(best['id'], best['cost'], best.get('lat', LATH))] + best['code'])
            return True
        def step_vm(prefix=False):
            if not cur:
                if vm_free > now + VS or not pick_request(): return False
                if prefix or len(cur) > 2:
                    emit(cur[1:-1]); del cur[1:-1]
                    if prefix: return True
                    step_chain(chB, 'v', 8) or step_chain(chA, 'v', 8)
            meta, code = cur; del cur[:]
            emit([code]); vm_issue(*meta); return True
        def step_chain(ch, kinds, room):
            if not ch or ch[0][0] not in kinds: return False
            k, cond, code, e = ch[0][:4]; t = ready_time(cond)
            if t is None or t > now: return False
            if k == 'v' and 4*sum(cost(x) for x in code) > room + 3 and len(code) == 1: return False
            ch.pop(0); emit(code)
            if k == 's': vm_issue(e, VC, LATS if e in ('gst2', 'gst3') else LATH)
            if k == 'f': vm_issue(e, 20, LATH)
            if e: ev[e] = now; evop[e] = n_done
            return True
        def bar_need(n):
            if n + LA < N and ops[n + LA]['key'] not in visible:
                return {ops[q_]['key'] for q_ in range(n + LA, min(N, n + LA + o['VMIN']))}
            for u_ in pubs:
                if f'bar_gst{u_}' not in ev and arr.get(f'gst{u_}', 1 << 30) + o['bwait'][pubs[u_] - 1] <= now: return set()
                if f'stage{pubs[u_]}' not in ev and ev.get(f'chk{pubs[u_]}', 1 << 30) + o['bwait'][pubs[u_] - 1] <= now: return set()
            if n - last_bar < o['BMIN']: return None
            nfree = sum(1 for k, lu in last_use.items() if lu < n and k not in freed and k in self.loc) + (0 if 'res' in freed else 2)
            if self.stream and len(self.free_blocks) <= o.get('FLOW', 1) and nfree >= min(o['FMIN'], len(self.stream)): return set()
            if chA and chA[0][1] and chA[0][1][0] == 'ev' and chA[0][1][1][0].startswith('bar_wr') and ready_time(chA[0][1]) is None and now >= max(ev.get(e[4:], 0) for e in chA[0][1][1]) + 60: return set()
            if not self.stream and 'xb' not in ev and n >= N - 2*TL - 8: return set()
            return None
        def op_ready(n):
            p = ops[n]; t = mf_free
            k = p.get('hk')
            if k is not None:
                k = pairw.get(k) or k
                if k not in arr: return None
                t = max(t, arr[k])
            if n == first4 and 'acc4' not in ev: return None
            for k in bar_need(n) or ():
                if k not in arr: return None
                t = max(t, arr[k])
            return t
        def do_barrier(n, need):
            nonlocal now, last_bar, nbar, chE
            L = Asm()
            for c in ('F1', 'H1', 'S2', 'S3'):
                if 'wr' + c in ev and 'bar_wr' + c not in ev: L(f'@waitlg wr{c}'); ev['bar_wr' + c] = now
            for u_ in pubs:
                if f'bar_gst{u_}' not in ev and arr.get(f'gst{u_}', 1 << 30) <= now: L(f'@waitvm gst{u_}'); ev[f'bar_gst{u_}'] = now
                if f'stage{pubs[u_]}' not in ev and f'chk{pubs[u_]}' in ev: ev[f'stage{pubs[u_]}'] = now; evop[f'stage{pubs[u_]}'] = n_done
            vis = [k for k in self.issued if k not in visible and (k in need or arr[k] <= now - o['vmargin'])]
            if vis:
                newest = max(vis, key=self.issued.index)
                visible.update(self.issued[:self.issued.index(newest) + 1]); L(f'@waitvm {tagof(newest)}')
            L('s_barrier'); self.trace.append((n_done, now, 'BAR', newest if vis else None)); emit(L.L); now += o['barc'] - 8; last_bar = n; nbar += 1
            for k, lu in last_use.items():
                if lu < n and k not in freed and k in self.loc:
                    freed.add(k); self.free_blocks.append(self.loc[k])
            if 'res' not in freed and n > 0:
                freed.add('res'); self.free_blocks += [self.resb, self.resb + 1]
            if not self.stream and 'xb' not in ev:
                fb = sorted(self.free_blocks)
                xb = next((b for b in fb if all(b + k in fb for k in range(4))), None)
                if xb is not None:
                    ev['xb'] = now
                    X = Asm()
                    X(f's_lshl_b32 {s["T0"]}, {s["W"]}, 12\ns_add_u32 {s["T0"]}, {s["T0"]}, {xb*BLK}\nv_add_u32 {t1}, {s["T0"]}, {self.vL16}')
                    X(f's_xor_b32 {s["T1"]}, {s["W"]}, 2\ns_lshl_b32 {s["T1"]}, {s["T1"]}, 12\ns_add_u32 {s["T1"]}, {s["T1"]}, {xb*BLK}\nv_add_u32 {t2}, {s["T1"]}, {self.vL16}')
                    if o['quad_out']: X(f'v_and_b32 {t3}, 28, {vL}\nv_lshrrev_b32 {aRes}, 5, {vL}\nv_add_lshl_u32 {t3}, {t3}, {aRes}, 10\nv_and_b32 {aRes}, 3, {vL}\nv_lshl_add_u32 {t3}, {aRes}, 4, {t3}')
                    else: X(f'v_and_b32 {t3}, 31, {vL}\nv_lshlrev_b32 {t3}, 10, {t3}\nv_lshrrev_b32 {aRes}, 5, {vL}\nv_lshl_add_u32 {t3}, {aRes}, 5, {t3}')
                    X(f's_lshl2_add_u32 {s["T0"]}, {s["G"]}, {sT4}\ns_lshl_b32 {s["T0"]}, {s["T0"]}, 15\ns_add_u32 {s["T0"]}, {s["T0"]}, {self.sC128}\ns_lshl_b32 {s["T1"]}, {sKH}, 6\ns_add_u32 {s["T0"]}, {s["T0"]}, {s["T1"]}')
                    chE += [('v', None, [x], None) for x in X.L]
                    chE += [('d', ('op', min(N - 1, last_op[7] + 2)), I(f'ds_write_b128 {t1}, {accS.sub(4*k, 4)} offset:{k*1024}'), None) for k in range(4)]
        for n in range(N):
            p = ops[n]
            guard = 0
            while True:
                guard += 1; assert guard < 100000, f'scheduler stuck at op {n}'
                slack = 0
                if chB and ready_time(chB[0][1]) is not None:
                    u_ = chB[0][4] if len(chB[0]) > 4 else None
                    slack = 4*(o['budu'].get(str(u_), o['bud']) - 6)
                    if u_ in o['pk_units'] and ready_time(chB[0][1]) <= now: slack = 4000
                t = op_ready(n)
                if t is not None and t == mf_free and bar_need(n) is not None: t -= o['barc']
                if t is not None and now >= t + slack: break
                room = (t + slack - now) if t is not None else 1000
                if chA and chA[0][0] == 'm' and now >= mf_free - 4:
                    t0_ = max(now, mf_free)
                    if step_chain(chA, 'm', 0): now = t0_ + 8; mf_free = t0_ + 32; continue
                if room > 100 and bar_need(n) == set(): do_barrier(n, set()); continue
                if room > 40 and step_vm(): continue
                if step_chain(chC, 'fv', 1000) or step_chain(chP, 'fv', 1000) or step_chain(chD, 'fv', 1000): continue
                if step_chain(chA, 'v' if room <= 40 else 'vd', room): continue
                if step_chain(chB, 'vs', room) or step_chain(chE, 'v', room): continue
                if t is not None and now >= t: break
                now += 4; idle += 4
            if chA and chA[0][0] == 'm' and bar_need(n) is None:
                t0_ = max(now, mf_free)
                if step_chain(chA, 'm', 0):
                    now = t0_ + 8; mf_free = t0_ + 32
                    while now < mf_free and (step_chain(chA, 'vd', mf_free - now) or step_vm() or step_chain(chB, 'vs', mf_free - now)): pass
            need = bar_need(n)
            if need is not None: do_barrier(n, need)
            if n == first4: self.stamp('p3 mfma done'); est['p3'] = now; est['idle3'] = idle
            elif o.get('fine') and n % o['fine'] == 0 and n: self.stamp(f'op {n}'); est[n] = now
            if pairw.get(p.get('hk')) and hfirst[p['hk']] == n: A(f'@waitvm {tagof(pairw[p["hk"]])}')
            if p.get('hk') and hfirst[p['hk']] == n and pairw.get(p['hk'], 1): now += 4
            t0_ = now = max(now, mf_free)
            A.L.append(mfma(p)); n_done = n; now += o.get('mfc', 6)
            mf_free = t0_ + (32 if p['k'] == 'm' else 16)
            if p['k'] == 'm' and last_op[p['u']] == n: ev[f'done{p["u"]}'] = now
            if n and 'hk' in ops[n - 1] and hlast[ops[n - 1]['hk']] == n - 1: pool.append(ops[n - 1]['B'] or slot[ops[n - 1]['hk']])
            if (n + 1) % WE == 0 and n + 1 < N: emit([Ins(f'@waitlg r{min(N - 1, n + WE)}')])
            step_vm(prefix=True)
            now = max(now, t0_ + 8)
            if n + LA < N: emit(reads(ops[n + LA]))
            if cur: step_vm()
            else: step_chain(chA, 'd', 0) or step_chain(chE, 'd', 0) or step_chain(chC, 'f', 0) or step_chain(chP, 'fv', 1000) or step_chain(chD, 'fv', 1000)
            if n + LA + 1 < N and ops[n + LA + 1]['key'] in self.loc: emit(ops[n + LA + 1]['ad'].need(self.loc[ops[n + LA + 1]['key']] >> 4))
        if o.get('wb'):
            where, sel = o['wb']
            W = Asm()
            if sel == 'one': W(f's_lshr_b32 {s["T2"]}, s2, 3\ns_lshl2_add_u32 {s["T2"]}, {s["T2"]}, {s["W"]}\ns_cmp_lg_u32 {s["T2"]}, 60')
            elif sel == 'grp': W(f's_lshl2_add_u32 {s["T2"]}, {s["M"]}, {s["W"]}\ns_cmp_lg_u32 {s["T2"]}, 60')
            else: W(f's_cmp_lg_u32 {s["W"]}, 0')
            W('s_cbranch_scc1 L_nowb\n@raw 1\nbuffer_wbl2 sc1\n@raw 0\nL_nowb:')
            if where == 'end': self.wb_end = W.L
            else:
                k = max(q for q, x in enumerate(A.L) if x.tag == where)
                assert where == 'g_42'
                self.wb_mid = W.L
        assert 'xb' in ev
        for it in chE: emit(it[2])
        assert not (chA or chB or chC or chD or chP or rq or cur or self.stream), (len(chA), len(chB), len(chC), len(rq), len(self.stream))
        est['p4'] = now; est['idle'] = idle
        self.info.update(N=N, first4=first4, nbar=nbar, npre=len(pre_keys), est=est, evop={k: v for k, v in evop.items() if k[:3] in ('cor', 'gst', 'sta')})
        dbg = o.get('dbg', '')
        if dbg:
            new = []; nv = 0
            for x in A.L[self.mark34:]:
                if 'W' in dbg:
                    if x.kind in ('mfma', 'ds') or x.mn in ('s_barrier', '@waitvm', '@waitlg') or x.mn.startswith('s_cbranch') or (x.kind == 'valu' and ('_f32' in x.mn or 'cmp' in x.mn or 'permlane' in x.mn)): continue
                    if x.kind == 'vmem':
                        k_ = (x.tag or 'x_').split('_')[0]
                        cls = {'F1': '3', 'H1': '3', 'S2': '3', 'S3': '3', 'W4': '4', 'F': 'h', 'H': 'h', 'g': 'g'}.get(k_, 's')
                        sub = 'b' if x.tag in ('gst2', 'gst3') else 'a' if (x.tag or '').startswith('gst') else 'f' if x.tag == 'flag' else 'p' if x.mn == 'buffer_load_dword' else 't'
                        if cls == 'g' and 15 <= int(x.tag[2:]) < 29 and '2' in dbg: continue
                        if cls in dbg or (cls == 's' and sub in dbg): continue
                        x.defs = set(); x.tag = f'z{nv}'; nv += 1; new.append(x)
                        if nv > 30: new.append(Ins(f'@waitvm z{nv - 30}'))
                        continue
                if 'K' in dbg and x.kind == 'vmem' and (x.tag or '').startswith('W4_') and int(x.tag[3:]) % 2 == 0 and x.tag != 'W4_42':
                    self.dropped.add(x.tag); continue
                if 'M' in dbg and x.kind == 'mfma':
                    y = Ins('s_nop 0'); y.uses = set(x.srcAB); new.append(y); continue
                if 'V' in dbg and x.kind == 'valu' and '_f32' in x.mn: continue
                if 'R' in dbg and x.kind == 'ds' and x.mn.startswith('ds_read_b64_tr'):
                    self.dropped.add(x.tag); continue
                if 'D' in dbg and x.kind == 'vmem' and x.arg == 'dma':
                    self.dropped.add(x.tag); continue
                if 'L' in dbg and x.kind == 'vmem' and x.mn == 'buffer_load_dwordx4' and x.arg != 'dma':
                    self.dropped.add(x.tag); continue
                if 'T' in dbg and x.kind == 'vmem' and x.mn == 'buffer_load_dword' and not x.defs: continue
                if 'B' in dbg and x.mn == 's_barrier': continue
                if x.kind == 'pseudo' and x.mn in ('@waitvm', '@waitlg') and x.arg[0] in self.dropped: continue
                new.append(x)
            if 'W' in dbg: new.append(Ins('@waitvm0'))
            A.L[self.mark34:] = new
        self.stamp('p4 mfma done')
        A.ext(getattr(self, 'wb_mid', []))
        A('@waitlg0\ns_barrier')
        rx = acc[2]
        for k in range(4): A(f'ds_read_b128 {rx.sub(4*k, 4)}, {t2} offset:{k*1024}')
        if o['quad_out']: A('s_mov_b32 vcc_lo, 0x55555555\ns_mov_b32 vcc_hi, 0x55555555')
        for h in range(2):
            for d in range(4*h, 4*h + 4): A(f'v_pk_add_f32 {accK.sub(2*d, 2)}, {accK.sub(2*d, 2)}, {rx.sub(2*d, 2)}')
            for d in range(4): A(f'v_cvt_pk_bf16_f32 {go[h][d]}, {accK[8*h + 2*d]}, {accK[8*h + 2*d + 1]}')
            if not o['quad_out']: A(f'buffer_store_dwordx4 {go[h]}, {t3}, {self.OUT}, {s["T0"]} offen offset:{16*h} {o["out_aux"]}')
        if o['quad_out']:
            R0, R1, T = go[0], go[1], tt.sub(0, 4)
            dp = lambda dst, a_, b_, qp: f'v_cndmask_b32_dpp {dst}, {a_}, {b_}, vcc quad_perm:{qp} row_mask:0xf bank_mask:0xf'
            for d in range(4): A(dp(T[d], R1[d], R0[d], '[1,0,3,2]'))
            A('s_not_b64 vcc, vcc')
            for d in range(4): A(dp(R1[d], R0[d], R1[d], '[1,0,3,2]'))
            A('s_mov_b32 vcc_lo, 0x33333333\ns_mov_b32 vcc_hi, 0x33333333')
            for d in range(4): A(f'v_permlane32_swap_b32 {T[d]}, {R1[d]}')
            for d in range(4): A(dp(R0[d], R1[d], T[d], '[2,3,0,1]'))
            A('s_not_b64 vcc, vcc')
            A(f'buffer_store_dwordx4 {R0}, {t3}, {self.OUT}, {s["T0"]} offen {o["out_aux"]}')
            for d in range(4): A(dp(R1[d], T[d], R1[d], '[2,3,0,1]'))
            A(f'buffer_store_dwordx4 {R1}, {t3}, {self.OUT}, {s["T0"]} offen offset:2048 {o["out_aux"]}')
        A.ext(getattr(self, 'wb_end', []))
        self.stamp('out stored')

    def visit(self, name):
        if name not in (self.o['visit'] or {}): return []
        L = Asm()
        L('s_mov_b64 exec, 0')
        for k in range(len(self.o['visit'][name])): L(f's_cmp_eq_u32 {self.s["W"]}, {k}\ns_cbranch_scc1 L_vis_{name}_{k}')
        L(f'L_ret_{name}:\ns_mov_b64 exec, -1')
        return L.L

    def place_stubs(self, L):
        import subprocess, re
        txt = '.amdgcn_target "amdgcn-amd-amdhsa--gfx950"\n.text\n' + '\n'.join(x.text for x in L if x.kind != 'dir') + '\nL_code_end:\n'
        txt += ''.join(f'L_vis_{n}_{k}:\n' for n, ps in self.o['visit'].items() for k in range(len(ps)))
        open('_sz.s', 'w').write(txt)
        subprocess.run(['clang', '-x', 'assembler', '-target', 'amdgcn-amd-amdhsa', '-mcpu=gfx950', '-c', '_sz.s', '-o', '_sz.o'], check=True)
        d = subprocess.run(['llvm-objdump', '-d', '--mcpu=gfx950', '_sz.o'], capture_output=True, text=True).stdout
        sizes = [4*len(m.group(1).split()) for m in re.finditer(r'// [0-9A-F]{12}: ([0-9A-F ]+)', d)]
        real = [x for x in L if x.kind not in ('dir', 'label')]
        assert len(sizes) == len(real), (len(sizes), len(real))
        size = {id(x): z for x, z in zip(real, sizes)}
        owner = {p: n for n, ps in self.o['visit'].items() for p in ps}
        end = max(i for i, x in enumerate(L) if x.text == 'L_main_end:')
        out = []; addr = None; page = 0; stubs = {}; full = True
        EX = {('s', 126), ('s', 127)}
        for i, x in enumerate(L):
            if x.text == 'L_body:': addr = 0; self.info['pre_bytes'] = sum(size.get(id(y), 0) for y in L[:i])
            if addr is not None and x.kind not in ('dir', 'label') and i < end:
                if addr >= page*4096 and full:
                    if page in owner:
                        stubs.setdefault(owner[page], []).append(len(out)); out.append(None); addr += 4
                    page += 1
                addr += size[id(x)]
                if x.defs & EX: full = x.mn.startswith('s_mov') and x.text.endswith(', -1')
            out.append(x)
        res = []
        where = {}
        for n in self.o['visit']:
            for k, pos in enumerate(stubs.get(n, [])): where[pos] = (n, k, len(stubs[n]))
        for i, x in enumerate(out):
            if x is None:
                n, k, tot = where[i]
                res += [Ins(f'L_vis_{n}_{k}:'), Ins(f's_cbranch_execz L_ret_{n}')]
            else: res.append(x)
        for n in self.o['visit']:
            for k in range(len(stubs.get(n, [])), 4): res = [Ins('s_nop 0') if x.text == f's_cbranch_scc1 L_vis_{n}_{k}' else x for x in res]
        self.info['pages'] = page
        return res

    def finish(self):
        A, s, o = self.A, self.s, self.o
        if o['stamps']:
            A('@waitvm0')
            self.stamp('end')
            k = self.nstamp - 1
            A(f'@raw 1\nv_writelane_b32 {self.vstamp}, s97, 60\nv_writelane_b32 {self.vstamp}, s98, 61\ns_memrealtime s[98:99]\ns_waitcnt lgkmcnt(0)\nv_writelane_b32 {self.vstamp}, s98, 62\nv_writelane_b32 {self.vstamp}, {self.sstamp[2*(k % 2)]}, {k}\nv_writelane_b32 {self.vstamp}, s100, 63\n@raw 0')
            A(f's_lshl_b32 {s["T0"]}, s2, 10\ns_lshl_b32 {s["T1"]}, {s["W"]}, 8\ns_add_u32 {s["T0"]}, {s["T0"]}, {s["T1"]}\ns_add_u32 {s["T0"]}, {s["T0"]}, {o["ws_base"] + WS_TS}')
            A(f'v_lshlrev_b32 {self.t1}, 2, {self.vL}\nbuffer_store_dword {self.vstamp}, {self.t1}, {self.WS}, {s["T0"]} offen')
        if o.get('pad_to'):
            A(f'@raw 1\ns_waitcnt vmcnt(0)\nL_padloop:\n{o.get("pad_clk", "s_memrealtime")} s[98:99]\ns_waitcnt lgkmcnt(0)\ns_sub_u32 s98, s98, s100\ns_cmp_lt_u32 s98, {o["pad_to"]}\ns_cbranch_scc1 L_padloop\n@raw 0')
        A('L_main_end:\ns_endpgm')

    def build(self):
        self.phase1(); self.phase2(); self.phase34(); self.finish()
        L = resolve_waits(self.A.L)
        L, nn = pad_hazards(L)
        L, T2 = self.expand_dual(L)
        T = [x for x in self.tail.L if x.kind != 'pseudo'] + T2
        if self.o['visit']: L = self.place_stubs(L + T); T = []
        body = '\n'.join(('' if x.kind == 'label' else '    ') + x.text for x in L + T)
        hdr = open('cdna_kernels/' + NAME + '.s.ref').read().split('; Override launch')[0]
        txt = hdr + f'; @launch grid=(256,1,1) block=(256,1,1) lds=163840\n.amdgcn_target "amdgcn-amd-amdhsa--gfx950"\n.text\n.globl {NAME}_kernel\n.p2align 8\n.type {NAME}_kernel,@function\n{NAME}_kernel:\n'
        txt += body + '\n    s_endpgm\nL_code_end:\n'
        txt += f'.section .rodata,"a"\n.p2align 6\n.amdhsa_kernel {NAME}_kernel\n  .amdhsa_next_free_vgpr 512\n  .amdhsa_next_free_sgpr 102\n  .amdhsa_accum_offset 256\n  .amdhsa_group_segment_fixed_size 0\n  .amdhsa_kernarg_size 80\n  .amdhsa_user_sgpr_count 2\n  .amdhsa_user_sgpr_kernarg_segment_ptr 1\n  .amdhsa_system_sgpr_workgroup_id_x 1\n  .amdhsa_float_denorm_mode_32 3\n.end_amdhsa_kernel\n'
        self.info.update(ninstr=len(L), nops=nn, vmax=self.V.hi, amax=self.AG.hi, smax=self.S.hi)
        return txt

if __name__ == '__main__':
    import json
    kw = json.loads(sys.argv[2]) if len(sys.argv) > 2 else {}
    G = Gen(**kw); txt = G.build()
    open(sys.argv[1], 'w').write(txt)
    print(G.info)
    if kw.get('trace'):
        for t in G.trace: print(t)
```

```python
import sys, math, struct
from asmlib import *

NAME = 'sequential_preLN__sliding_local_dilated__geglu_ffn__prompt'
KB = 1024
WS_H, WS_ST, WS_FL, WS_G, WS_O = 0, 128*KB, 136*KB, 256*KB, 640*KB
FL_SLOW = 2*KB
WS_R = 768*KB
WS_TS = 16 << 20
WS_SIZE = 17 << 20
PITCH3 = 2752
BLK = 4096
L_HALO = 0
L_X = 4 * BLK
L_W = 10 * BLK
L_SCR = 39 * BLK
SCR_TB = L_SCR
SCR_HP = L_SCR + 1280
SCR_R = L_SCR + 1792
SCR_CS = L_SCR
def f2u(x): return struct.unpack('<I', struct.pack('<f', x))[0]
def fhex(x): return hex(f2u(x))
LOG2E = 1.4426950408889634

DEF = dict(nt_tags=(), wd_light=None, ackl=(500, 850, 500), st_lead=0, w2pre0=99, b_aft1=0, b_aft2=3, ymean=True, cen_rd=10, cen_ck=130, selby='x', xrot=True, sp1=14, perm3=True, hyst=0, hyst_from=150, quad_out=True, out_aux='nt', one_poll=True, one_poll3=True, bwait=(100, 0, 0, 0), merge34=False, pk_units=[5], budu={'2': 8, '3': 8, '4': 10}, khalf=False, c1_from=110, sp0b=10, v0_at=-2, salu16=1, minlg_until=6, ktab=[list(range(8))]*4, b_pre1=4, b_pre2=4, topup=8, n1a=0, n1b=7, HS=6, k0=7, vgap0=2, vgap=3, cs_lead={'S2': (16, 1), 'S3': (20, 2)}, plead=(99, 99, 99, 99), TL=4, cs_pre=24, q_early=False, LATH=380, LATD=580, LATS=700, WE=4, VC=72, PW=True, poll_after=(900, 900, 800, 800), WIN=99, dma_lead=16, VMIN=10, BMIN=10, FMIN=5, barc=32, vmargin=300, visit={'v0': [1, 2, 3], 'v1': [4, 5, 6]}, jump_at=72,
           stamps=False, order='pair', BI=16, LA=7, GLA=8, NG=20, NR=12, bud=7, b_epi=0, b_post1=4, b_o=5, b_post2=4,
           pub_delay=10, poll_lead=8, force_slow=False, w2pre=7, LO=5, HL=5, sp0=2, g_sc1=False, o_in_ws=False,
           pf={'q3': 'c1', 'o3': 2, 'o': 4, 'w3': 4, 'h': 4, 'wd': 4}, vslack=200, w2a=0, w2b=3, rot2=0, rot3=0, ws_base=0, n_stats=56, gt_at=40)

def cost(x):
    if x.kind in ('pseudo', 'label', 'dir'): return 0
    if x.is_trans() or x.mn.startswith('v_permlane') or x.kind == 'mfma': return 2
    return 1

def safe_points(code):
    ok = []; exec_part = False
    EX = {('s', 126), ('s', 127)}
    n = len(code)
    for i in range(n + 1):
        scc_live = False
        for k in range(i, n):
            x = code[k]
            if x.kind == 'label': scc_live = True; break
            if x.mn.startswith('s_cselect') or x.mn.startswith('s_cbranch') or x.mn.startswith('s_addc'): scc_live = True; break
            if x.kind == 'salu' and not x.mn.startswith(('s_mov', 's_mul', 's_nop', 's_waitcnt', 's_barrier', 's_getreg')): break
        for k in range(i, n):
            x = code[k]
            if x.kind == 'vmem' and x.arg == 'dma': scc_live = True
            if scc_live or (('s', 124) in x.defs and ('s', 124) not in x.uses): break
        if not exec_part and not scc_live: ok.append(i)
        if i < n and code[i].defs & EX:
            exec_part = not (code[i].mn.startswith('s_mov') and code[i].text.endswith(', -1'))
    return ok

def sprinkle(code, groups, spacing, start=0):
    code = list(code.L if isinstance(code, Asm) else code); groups = list(groups)
    ok = set(safe_points(code)); out = []; since = spacing - start
    for i, x in enumerate(code):
        if groups and since >= spacing and i in ok:
            g = groups.pop(0); out += g; since = 0
        out.append(x); since += cost(x)
    for g in groups: out += g
    return out

class Gen:
    def __init__(self, **kw):
        self.o = dict(DEF); self.o.update(kw)
        self.A = Asm(); self.tail = Asm()
        self.V = RegAlloc('v', 1, 254); self.AG = RegAlloc('a', 0, 256); self.S = RegAlloc('s', 60, 96)
        self.nstamp = 0; self.stamp_names = []
        self.nlabel = 0
        self.free_blocks = list(range(28, 39))
        self.loc = {}; self.issued = []
        st = [('W2', i) for i in range(16)]
        for q in range(8): st += [('F1', 2*q), ('H1', q), ('F1', 2*q + 1)]
        st += [('S2', i) for i in range(16)] + [('S3', q) for q in range(8)] + [('W4', i) for i in range(43)]
        self.stream = st
        self.info = {}; self.dropped = set(); self.trace = []

    def stamp(self, name, A=None):
        if not self.o['stamps'] or (self.o['stamps'] == 'min' and name != 'end'): return
        A = A if A is not None else self.A
        k = self.nstamp
        A(f'@raw 1\n{self.o.get("clk", "s_memtime")} {self.sstamp.sub(2*(k % 2), 2)}')
        if k: A(f'v_writelane_b32 {self.vstamp}, {self.sstamp[2*((k-1) % 2)]}, {k-1}')
        A('@raw 0')
        self.stamp_names.append(name); self.nstamp += 1

    def srd(self, A, b, lo, size):
        A(f's_mov_b32 s{b}, s{lo}\ns_mov_b32 s{b+1}, s{lo+1}\ns_mov_b32 s{b+2}, {size}\ns_mov_b32 s{b+3}, 0x20000')

    def store2(self, A, w, data, voff, soff, off, tag, srd=None, wrap=False):
        assert off < 4096
        o = f' offset:{off}' if off else ''
        v = f'{voff}, ' if voff is not None else 'off, '
        e = ' offen' if voff is not None else ''
        if wrap: A(';dual_begin')
        A(f'buffer_store_{w} {data}, {v}{srd or self.WS}, {soff}{e}{o}' + (' nt' if tag in self.o['nt_tags'] else ''), tag=tag)
        if wrap: A(';dual_end')

    def expand_dual(self, L):
        out = []; tail = []; k = 0; inside = False
        for x in L:
            if x.text == ';dual_begin':
                assert not inside; inside = True
                out += [Ins(f's_cmp_lg_u32 {self.sMode}, 0'), Ins(f's_cbranch_scc1 L_wt{k}')]; tail.append(Ins(f'L_wt{k}:'))
            elif x.text == ';dual_end':
                assert inside; inside = False
                out.append(Ins(f'L_wtb{k}:')); tail.append(Ins(f's_branch L_wtb{k}')); k += 1
            else:
                out.append(x)
                if inside:
                    assert x.kind != 'label'
                    tail.append(Ins(x.text.replace(' nt', '') + ' sc1') if x.mn.startswith('buffer_store') else Ins(x.text))
        return out, tail

    def signal(self, kind):
        L = Asm()
        L(f's_mov_b64 exec, {self.mW1}')
        self.store2(L, 'dword', self.vOne, None, self.sFme, kind*128, 'flag', wrap=True)
        L('s_mov_b64 exec, -1')
        return L.L

    def poll_ld(self, addr, kind, pv): return f'buffer_load_dword {pv}, {addr}, {self.WS}, {self.s["FL"]} offen offset:{kind*128} sc1'

    def poll_block(self, A, addr, kind, mask, pv=None):
        pv = pv or self.vPv; s = self.s; n = self.nlabel; self.nlabel += 1
        A(f's_mov_b64 exec, {mask}\ns_mov_b32 {s["T3"]}, 0x20000\n@raw 1\nL_poll{n}:\n{self.poll_ld(addr, kind, pv)}\ns_waitcnt vmcnt(0)')
        A(f'v_cmp_eq_u32 vcc, 0, {pv}\ns_sub_u32 {s["T3"]}, {s["T3"]}, 1\ns_cbranch_scc1 L_pd{n}\ns_cbranch_vccnz L_poll{n}\nL_pd{n}:\n@raw 0\ns_mov_b64 exec, -1')

    def sync_wait(self, A, addr, kind, mask, n_aft, filler=()):
        if not n_aft:
            A.ext(filler); self.poll_block(A, addr, kind, mask); A('@drained_vm'); return
        k = self.nlabel; self.nlabel += 1
        A(f's_mov_b64 exec, {mask}\n{self.poll_ld(addr, kind, self.vPv)}\ns_mov_b64 exec, -1')
        A.ext(sprinkle(list(filler), self.dmas(n_aft), 8))
        A(f'v_cmp_eq_u32 vcc, 0, {self.vPv}\ns_and_b64 vcc, vcc, {mask}\ns_cbranch_vccnz L_late{k}\nL_back{k}:')
        self.tail(f'L_late{k}:')
        if self.o['stamps']: self.tail(f's_add_u32 s96, s96, {1 << (8*kind)}')
        self.poll_block(self.tail, addr, kind, mask); self.tail(f's_branch L_back{k}')

    @staticmethod
    def p4_unit(i):
        if i < 15: return 0, 6*i
        if i < 29: return 0, 6*(i - 15) + 2
        if i < 36: return 1, 12*(i - 29) + 4
        return 1, 12*(i - 36) + 5

    def dma_cost(self): return 138 if self.stream and self.stream[0][0] in ('H1', 'S3') else 69

    def dma_next(self):
        if not self.stream or not self.free_blocks: return None
        key = self.stream.pop(0); b = self.free_blocks.pop(0)
        self.loc[key] = b; self.issued.append(key)
        s, D = self.s, self.sD; kind, i = key; tag = f'{kind}_{i}'
        if kind == 'W2':
            assert 23 <= b <= 38
            pre = [f's_add_u32 {D}, {self.sC128}, {i << 15}']
            ld = f'buffer_load_dwordx4 {self.vW2}, {self.WO}, {D} offen lds'
        elif kind in ('F1', 'S2', 'H1', 'S3'):
            full = kind in ('F1', 'S2')
            cp = i >> 1 if full else i
            pre = []
            if key == ('F1', 0): pre.append(f's_mov_b32 s38, {self.sN3[0]}')
            if key == ('S2', 0): pre += [f's_mov_b32 s38, {self.sN3[1]}', f'v_add_u32 {self.vF[0]}, {self.sDl}, {self.vF[0]}', f'v_add_u32 {self.vF[1]}, {self.sDl}, {self.vF[1]}']
            if key == ('S3', 0): pre += [f's_sub_u32 {self.sDl}, 192, {self.sDl}', f'v_add_u32 {self.vH}, {self.sDl}, {self.vH}']
            ld = f'buffer_load_dwordx4 {self.vF[i & 1] if full else self.vH}, {self.W3}, {self.sCP[cp - 1] if cp else 0} offen lds'
        else:
            sel, u = self.p4_unit(i)
            k = (i if i < 15 else i - 15) & 3 if sel == 0 else 2*((i - 29 if i < 36 else i - 36) & 1)
            pre = [f's_add_u32 {D}, {self.sU[sel]}, {u*16384}'] if k == 0 else []
            if i == 0: pre += [f'v_add_u32 {self.vD[q]}, {q*6*16384}, {self.vD[0]}' for q in range(1, 4)]
            ld = f'buffer_load_dwordx4 {self.vD[k]}, {self.WD}, {D} offen lds'
        return [Ins(f's_add_u32 m0, {s["W1K"]}, {b*BLK}')] + [Ins(x) for x in pre] + [Ins(ld, tag)]

    def dmas(self, n):
        r = []
        for _ in range(n):
            g = self.dma_next()
            if g: r.append(g)
        return r

    def p1_chunk_dma(self, i):
        s = self.s; sl = i % 3; kc, so = self.sKC, self.sSO; tag = f'ch{i}'
        I = Ins
        g = [[I(f's_bfe_u32 {kc}, {self.sTb}, {hex(0x30000 + 4*i)}'), I(f's_add_u32 m0, {self.sW2K}, {L_X + sl*8192}'), I(f's_lshl_b32 {so}, {kc}, 7'),
              I(f'buffer_load_dwordx4 {self.vXa}, {self.X}, {so} offen lds', tag)],
             [I(f's_mul_i32 {kc}, {kc}, {64*3072}'), I(f'buffer_load_dwordx4 {self.vXb}, {self.X}, {so} offen offset:1024 lds', tag)]]
        for st in range(2):
            for p in range(3):
                pre = []
                if p == 0: pre = [I(f's_add_u32 m0, {self.sW3K}, {L_W + sl*24576 + st*12288}'), I(f's_add_u32 {kc}, {kc}, {32*3072 if st else self.sH128}')]
                g.append(pre + [I(f'buffer_load_dwordx4 {self.vW1}, {self.WQ}, {kc} offen offset:{p*1024} lds', tag)])
        return g

    def p1_reads(self, i, st, buf):
        sl = i % 3; r = []
        W, X, O = buf
        r.append(Ins(f'ds_read_b128 {O}, {self.aXo[st]} offset:{sl*8192}'))
        for p in range(3):
            for a in range(2):
                r.append(Ins(f'ds_read_b64_tr_b16 {W[p].sub(2*a, 2)}, {self.aW1} offset:{sl*24576 + st*12288 + p*1024 + a*512}'))
            if p == 0:
                r.append(Ins(f'ds_read_b128 {X[0]}, {self.aX[st]} offset:{L_HALO + i*2048}'))
                for t in range(1, 5):
                    r.append(Ins(f'ds_read_b128 {X[t]}, {self.aX[st]} offset:{L_X + sl*8192 + (t-1)*2048}'))
        return r

    def p1_mfmas(self, buf, first):
        W, X, O = buf
        m = []
        c = lambda acc: '0' if first else str(acc)
        m.append(Ins(f'v_mfma_f32_16x16x32_bf16 {self.stG}, {O}, {O}, {c(self.stG)}'))
        m.append(Ins(f'v_mfma_f32_16x16x32_bf16 {self.stS}, {self.ones}, {O}, {c(self.stS)}'))
        for p, acc in enumerate((self.aQ, self.aK, self.aV)):
            for t in range(5):
                if p < 2: m.append(Ins(f'v_mfma_f32_16x16x32_bf16 {acc[t]}, {W[p]}, {X[t]}, {c(acc[t])}'))
                else: m.append(Ins(f'v_mfma_f32_16x16x32_bf16 {acc[t]}, {X[t]}, {W[p]}, {c(acc[t])}'))
        return m

    def stats_code(self, sq, sm, out4):
        L = Asm()
        L(f'v_mul_f32 {sm}, {fhex(-1/512)}, {sm}')
        L(f'v_fma_f32 {sq}, {sq}, {self.sInv512}, {self.vEps}')
        L(f'v_cvt_pk_bf16_f32 {out4[1]}, {sm}, {sm}')
        L(f'v_fma_f32 {sq}, -{sm}, {sm}, {sq}')
        L(f'v_max_f32 {sq}, {sq}, {self.vEps}')
        L(f'v_rsq_f32 {out4[2]}, {sq}')
        L(f'v_and_b32 {out4[0]}, 0xffff0000, {out4[1]}')
        L(f'v_mul_f32 {out4[3]}, {fhex(0.25*LOG2E)}, {out4[2]}')
        return L.L

    def diag_code(self, G4, dst):
        return [Ins(f'v_cndmask_b32 {G4[0]}, {G4[0]}, {G4[1]}, {self.mB0}'), Ins(f'v_cndmask_b32 {G4[2]}, {G4[2]}, {G4[3]}, {self.mB0}'),
                Ins(f'v_cndmask_b32 {dst}, {G4[0]}, {G4[2]}, {self.mB1}')]

    def weave16(self, mf, ds, misc, vgap=4, tail=4, side=None):
        A = self.A; ds = list(ds)
        nm = len(mf)
        for k, m in enumerate(mf):
            A.L.append(m); self.gap_since_vm += 1
            bud = 2
            if misc and isinstance(misc[0], Ins) and misc[0].kind == 'salu':
                A.L.append(misc.pop(0)); bud -= self.o['salu16']
            nds = 1 if ds else 0
            if len(ds) > nm - k - tail: nds = min(2, len(ds))
            for _ in range(nds): A.L.append(ds.pop(0)); bud -= 1
            while misc and bud > 0:
                it = misc[0]; l = it if isinstance(it, list) else [it]
                if l and l[0].kind == 'pseudo' and l[0].mn == '@skip':
                    misc.pop(0); break
                if any(x.kind == 'vmem' for x in l):
                    if self.gap_since_vm < vgap: break
                    self.gap_since_vm = 0
                misc.pop(0); A.ext(l); bud -= sum(cost(x) for x in l)
            while side and bud > 0 and not ds:
                it = side.pop(0); l = it if isinstance(it, list) else [it]
                A.ext(l); bud -= sum(cost(x) for x in l)
        assert not ds

    def phase1(self):
        A, V, S, AG, o = self.A, self.V, self.S, self.AG, self.o
        s = self.s = {}
        for n in 'W C M SB G BLK W1K T0 T1 T2 T3 FL PF GB'.split(): s[n] = S.alloc()
        if o['stamps']: self.sstamp = S.alloc(4, 2); self.vstamp = V.alloc()
        self.X, self.WQ, self.WO, self.W3, self.WD, self.OUT, self.WS = [f's[{24+4*i}:{27+4*i}]' for i in range(7)]
        self.sKC = S.alloc(); self.sSO = S.alloc(); self.sW2K = S.alloc(); self.sW3K = S.alloc(); self.sC128 = S.alloc(); self.sFme = S.alloc()
        sH = S.alloc(); sHm = S.alloc(); sZ = S.alloc()
        if o.get('pad_to'): A('@raw 1\n' + o.get('pad_clk', 's_memrealtime') + ' s[100:101]\n@raw 0')
        if o['stamps']: A('@raw 1\n' + o.get('clk', 's_memtime') + ' s[100:101]\ns_memrealtime s[98:99]\ns_mov_b64 s[96:97], 0\n@raw 0')
        A('s_load_dwordx2 s[24:25], s[0:1], 0\ns_load_dwordx2 s[28:29], s[0:1], 8\ns_load_dwordx2 s[48:49], s[0:1], 72\ns_load_dwordx2 s[32:33], s[0:1], 16')
        A('s_load_dwordx16 s[4:19], s[0:1], 0\ns_load_dwordx2 s[20:21], s[0:1], 64')
        A('s_cmp_lt_u32 s2, 256\ns_cbranch_scc1 L_go\ns_endpgm\nL_go:')
        vL = self.vL = V.alloc(); t0 = V.alloc(2); t1 = V.alloc(); t2 = V.alloc(); t3 = V.alloc()
        self.t1, self.t2, self.t3 = t1, t2, t3
        A(f's_getpc_b64 s[52:53]\nL_pc:')
        A(f'v_and_b32 {vL}, 63, v0\nv_lshrrev_b32 {t1}, 6, v0\ns_lshr_b32 {s["T0"]}, s2, 3\nv_readfirstlane_b32 {s["W"]}, {t1}')
        A(f'v_lshl_add_u32 {t1}, {s["T0"]}, 2, {t1}\nv_lshl_add_u32 {t1}, {t1}, 2, {vL}\nv_lshlrev_b32 {t1}, 7, {t1}\nv_min_u32 {t1}, L_code_end-L_pc-4, {t1}')
        A(f'v_add_co_u32 {t0[0]}, vcc, s52, {t1}\nv_mov_b32 {t0[1]}, s53\ns_and_b32 {s["M"]}, {s["T0"]}, 15\nv_addc_co_u32 {t0[1]}, vcc, 0, {t0[1]}, vcc')
        A(f's_mov_b64 exec, 15\nglobal_load_dword v255, {t0}, off\ns_mov_b64 exec, -1')
        t0.free()
        A(f's_and_b32 {s["C"]}, {s["T0"]}, 7\ns_lshr_b32 {s["SB"]}, {s["M"]}, 3\ns_and_b32 {s["T1"]}, s2, 7\ns_lshr_b32 {s["T0"]}, {s["T0"]}, 3')
        A(f's_lshl_b32 {s["BLK"]}, {s["T1"]}, 2\ns_add_u32 {s["BLK"]}, {s["BLK"]}, {s["T0"]}\ns_lshr_b32 {s["G"]}, {s["BLK"]}, 1')
        A(f's_lshl_b32 {self.sW2K}, {s["W"]}, 11\ns_mul_i32 {self.sW3K}, {s["W"]}, 3072\ns_lshl_b32 {self.sC128}, {s["C"]}, 7')
        self.sH128 = S.alloc()
        if o['xrot']: A(f's_add_u32 {self.sH128}, {s["C"]}, s2\ns_and_b32 {self.sH128}, {self.sH128}, 7\ns_lshl_b32 {self.sH128}, {self.sH128}, 7')
        else: A(f's_mov_b32 {self.sH128}, {self.sC128}')
        e = V.alloc(); ch = V.alloc()
        vHa = V.alloc(); self.vXa = V.alloc(); self.vXb = V.alloc(); self.vW1 = V.alloc(); self.vW2 = V.alloc()
        A(f'v_lshrrev_b32 {e}, 3, {vL}\nv_and_b32 {ch}, 7, {vL}')
        A(f'v_lshrrev_b32 {t1}, 4, {vL}\nv_xor_b32 {t1}, {t1}, {ch}\nv_lshlrev_b32 {t1}, 4, {t1}')
        A(f's_lshl_b32 {s["T0"]}, {s["BLK"]}, 6\ns_lshl_b32 {s["T1"]}, {s["W"]}, 4\ns_add_u32 {s["T1"]}, {s["T1"]}, {s["T0"]}')
        A(f'v_add_u32 {t2}, {s["T1"]}, {e}\nv_lshl_add_u32 {self.vXa}, {t2}, 10, {t1}\nv_add_u32 {self.vXb}, {7*1024}, {self.vXa}\nv_xor_b32 {self.vXb}, 64, {self.vXb}')
        A(f's_and_b32 {s["T1"]}, {s["W"]}, 1\ns_cselect_b32 {sHm}, -1, 0xffffff00\ns_lshl3_add_u32 {s["T0"]}, {s["T1"]}, {s["T0"]}\ns_sub_u32 {s["T0"]}, {s["T0"]}, 16\ns_lshl_b32 {s["T2"]}, {s["T1"]}, 6')
        A(f'v_add_u32 {t2}, {s["T0"]}, {e}\nv_max_i32 {vHa}, 0, {t2}\nv_lshl_add_u32 {vHa}, {vHa}, 10, {t1}\nv_xor_b32 {vHa}, {s["T2"]}, {vHa}')
        A(f's_lshl_b32 {s["T1"]}, {s["T1"]}, 2\ns_lshl_b32 {s["W1K"]}, {s["W"]}, 10')
        A(f'v_and_b32 {t1}, 2, {e}\nv_or_b32 {t1}, {s["T1"]}, {t1}\nv_xor_b32 {t1}, {t1}, {ch}\nv_lshlrev_b32 {t1}, 4, {t1}')
        A(f'v_lshl_add_u32 {t2}, {s["W"]}, 3, {e}')
        A(f'v_lshl_add_u32 {self.vW2}, {t2}, 10, {t1}\nv_mul_u32_u24 {t2}, 3072, {t2}\nv_add_u32 {self.vW1}, {t2}, {t1}')
        A(f's_mov_b32 s26, {2048*1024}\ns_mov_b32 s27, 0x20000\ns_mov_b32 s30, {512*3072}\ns_mov_b32 s31, 0x20000\ns_mov_b32 s50, {o["ws_base"] + WS_SIZE}\ns_mov_b32 s51, 0x20000\ns_mov_b32 s34, {512*1024}\ns_mov_b32 s35, 0x20000')
        A(f's_lshl_b32 {s["GB"]}, {s["G"]}, 20')
        if o['ws_base']: A(f's_add_u32 {s["GB"]}, {s["GB"]}, {o["ws_base"]}')
        A(f's_add_u32 {s["FL"]}, {s["GB"]}, {WS_FL}\ns_lshl2_add_u32 {self.sFme}, {s["M"]}, {s["FL"]}\nv_mov_b32 {t2}, 0')
        A(f's_cmp_eq_u32 {s["W"]}, 0\ns_cselect_b32 {sZ}, 0x3f, 0')
        self.sTb = S.alloc(); sTh = S.alloc()
        A(f's_mul_i32 {s["T0"]}, {s["C"]}, 0x11111111\ns_add_u32 {self.sTb}, {s["T0"]}, 0x76543210')
        if o['khalf']: A(f's_and_b32 {self.sTb}, {self.sTb}, 0x33333333\ns_or_b32 {self.sTb}, {self.sTb}, 0x44440000')
        A(f's_and_b32 {s["T0"]}, {s["W"]}, 2\ns_lshl_b32 {s["T0"]}, {s["T0"]}, 1\ns_lshr_b32 {sTh}, {self.sTb}, {s["T0"]}')
        v128 = self.v128 = V.alloc(); junk = V.alloc(); vT = V.alloc(); vTo = V.alloc(); sP = S.alloc(); sSel = s['PF']
        v1k = V.alloc(); self.vL16 = V.alloc(); hp = V.alloc(8, 2)
        A(f'v_lshlrev_b32 {v128}, 7, {vL}\nv_lshlrev_b32 {v1k}, 10, {vL}\nv_lshlrev_b32 {self.vL16}, 4, {vL}')
        OSRD = self.WS if o['o_in_ws'] else self.OUT
        def pf_group(kind, site=None):
            L = Asm()
            if kind == 'o': L(f's_mov_b64 exec, 0xffff\nbuffer_load_dword {junk}, {vTo}, {OSRD}, {self.sOst} offen sc1')
            elif kind == 'h': L(f's_mov_b64 exec, 0x3ffff\nbuffer_load_dword {junk}, {vT}, {self.WS}, {s["GB"]} offen sc1')
            elif kind == 'x1':
                L(f's_lshl2_add_u32 {sP}, {s["BLK"]}, {s["W"]}\ns_lshl3_add_u32 {sP}, {sP}, {s["C"]}\ns_lshl_b32 {sP}, {sP}, 11')
                L(f's_mov_b64 exec, 0xf0f0\nbuffer_load_dword {junk}, {v128}, {self.X}, {sP} offen sc1')
            elif kind in ('q3', 'o3', 'd3', 'q30', 'q31'):
                n, srd = {'q3': (12, self.WQ), 'q30': (6, self.WQ), 'q31': (6, self.WQ), 'o3': (4, self.WO), 'd3': (11, self.WD)}[kind]
                L(f's_lshr_b32 {sP}, s2, 3\ns_lshl2_add_u32 {sP}, {sP}, {s["W"]}\ns_mul_i32 {sP}, {sP}, {n*1024}')
                if kind == 'q31': L(f's_add_u32 {sP}, {sP}, {768*1024}')
                L(f's_mov_b64 exec, {hex((1 << n) - 1)}\nbuffer_load_dword {junk}, {v1k}, {srd}, {sP} offen offset:384 sc1')
            else:
                n, srd = {'wq': (12, self.WQ), 'wq0': (6, self.WQ), 'wq1': (6, self.WQ), 'wo': (4, self.WO), 'w3': (22, self.W3), 'wd': (11, self.WD)}[kind]
                if kind == 'w3': L(f's_and_b32 {sP}, {s["W"]}, 1\ns_lshl1_add_u32 {sP}, s2, {sP}')
                else: L(f's_lshl2_add_u32 {sP}, s2, {s["W"]}')
                L(f's_mul_i32 {sP}, {sP}, {n*128}')
                if kind == 'wq1': L(f's_add_u32 {sP}, {sP}, {768*1024}')
                L(f's_mov_b64 exec, {hex((1 << n) - 1)}\nbuffer_load_dword {junk}, {v128}, {srd}, {sP} offen sc1')
            L('s_mov_b64 exec, -1')
            for x in L.L:
                if x.kind == 'vmem': x.defs = set()
            if site is not None:
                mk = L.L[-3].text.split(', ')[1]
                return L.L[:-3] + [[Ins(f's_cmp_eq_u32 {sSel}, {site}'), Ins(f's_cselect_b64 exec, {mk}, 0')] + L.L[-2:]]
            return L.L[:-3] + [L.L[-3:]]
        def pf_flat(at):
            r = []
            for kind, a_ in o['pf'].items():
                if a_ == at:
                    gq = pf_group(kind); r.append(gq[:-1] + gq[-1])
            return r
        self.sOst = S.alloc(); self.sHst = S.alloc()
        c0 = self.p1_chunk_dma(0)
        A.ext(c0[0][:-1])
        A('@waitlg0')
        self.stamp('kernarg')
        if o.get('l2fill'):
            for lo, nbytes in o['l2fill']:
                per = -(-nbytes // (128*128))
                A(f's_mov_b32 s32, s{lo}\ns_mov_b32 s33, s{lo+1}\ns_mov_b32 s34, {nbytes}\ns_mov_b32 s35, 0x20000')
                A(f's_lshr_b32 {s["T0"]}, s2, 3\ns_lshl2_add_u32 {s["T0"]}, {s["T0"]}, {s["W"]}\ns_mul_i32 {s["T0"]}, {s["T0"]}, {per*128}')
                for q in range(-(-per // 64)): A(f'buffer_load_dword {t3}, {v128}, s[32:35], {s["T0"]} offen sc1\ns_add_u32 {s["T0"]}, {s["T0"]}, 8192')
                A('@waitvm0')
            A(f's_mov_b32 {s["T0"]}, 60\nL_dly:\ns_sub_u32 {s["T0"]}, {s["T0"]}, 1\ns_cmp_lg_u32 {s["T0"]}, 0\ns_cbranch_scc1 L_dly')
            self.stamp('probe done')
        if o.get('probe'):
            src, rounds, base = o['probe']
            lo = {'bx': 10, 'ws': 48, 'out': 18, 'wd': 16}[src]
            A(f's_mov_b32 s32, s{lo}\ns_mov_b32 s33, s{lo+1}\ns_mov_b32 s34, {(2 << 20) if src in ("bx", "out") else (1376*1024 if src == "wd" else 256 << 20)}\ns_mov_b32 s35, 0x20000')
            A(f'v_lshlrev_b32 {t1}, 7, {vL}\ns_lshl_b32 {s["T0"]}, s2, 2\ns_add_u32 {s["T0"]}, {s["T0"]}, {s["W"]}\ns_lshl_b32 {s["T0"]}, {s["T0"]}, 11\ns_add_u32 {s["T0"]}, {s["T0"]}, {base}')
            nl = 16 // rounds if rounds > 0 else 16
            for r in range(abs(rounds)):
                A(f's_mov_b64 exec, {hex((1 << nl) - 1)}\nbuffer_load_dword {t3}, {t1}, s[32:35], {s["T0"]} offen sc1\ns_mov_b64 exec, -1')
                if rounds > 0: A(f'@waitvm0\ns_add_u32 {s["T0"]}, {s["T0"]}, {nl*128}')
                else: A(f's_add_u32 {s["T0"]}, {s["T0"]}, {2 << 20}')
            A('@waitvm0')
            self.stamp('probe done')
        for gq in pf_flat('s0'): A.ext(gq)
        A.L.append(c0[0][-1])
        for gq in pf_flat('sx'): A.ext(gq)
        A(f's_mov_b32 exec_lo, {sZ}\ns_mov_b32 exec_hi, 0')
        A(f'buffer_store_dword {t2}, {v128}, {self.WS}, {self.sFme} offen', tag='fz')
        A('s_mov_b64 exec, -1')
        def chunk_items(i):
            gq = c0 if i == 0 else self.p1_chunk_dma(i)
            if i >= 4: return gq
            h = [Ins(f's_add_u32 m0, {s["W1K"]}, {L_HALO + i*4096}')]
            h += [Ins(f's_bfe_u32 {sH}, {sTh}, {hex(0x30000 + 8*i)}'), Ins(f's_lshl_b32 {sH}, {sH}, 7')]
            h.append([Ins(f's_mov_b32 exec_lo, {sHm}'), Ins(f'buffer_load_dwordx4 {vHa}, {self.X}, {sH} offen lds', f'hr{i}'), Ins('s_mov_b32 exec_lo, -1')])
            return gq[:5] + [h] + gq[5:]
        fl1 = lambda gq: [y for x in gq for y in (x if isinstance(x, list) else [x])]
        self.sCen = S.alloc(); self.sCoff = S.alloc(); self.sCv = sZ
        c1 = chunk_items(1); n1a, n1b = o['n1a'], o['n1b']
        g0 = [fl1(x) for x in chunk_items(0)[1:]]
        rows = Asm()
        if o['ymean']:
            rows(f's_lshl_b32 {sP}, s2, 11\ns_cmp_eq_u32 {s["W"]}, 0\ns_cselect_b64 exec, -1, 0')
            rows(f'buffer_load_dwordx4 {hp.sub(0, 4)}, {self.vL16}, {self.WO}, {sP} offen\nbuffer_load_dwordx4 {hp.sub(4, 4)}, {self.vL16}, {self.WO}, {sP} offen offset:1024\ns_mov_b64 exec, -1')
        groups = g0[:5] + ([rows.L] if rows.L else []) + pf_flat('sa') + g0[5:] + pf_flat('s1') + [fl1(x) for x in c1[:n1a]]
        B = Asm()
        B(f's_getreg_b32 {s["T0"]}, hwreg(HW_REG_XCC_ID, 0, 4)\ns_mul_i32 {s["T1"]}, {s["T0"]}, {s["T0"]}\ns_lshl_b32 {s["T1"]}, {s["T1"]}, 13\ns_lshl_b32 {s["T0"]}, {s["T0"]}, 5')
        B(f's_add_u32 {self.sCen}, {s["T0"]}, {s["T1"]}\ns_add_u32 {self.sCen}, {self.sCen}, 1\ns_lshl_b32 {self.sCoff}, {s["G"]}, 4')
        self.ones = V.alloc(4, 2)
        for k in range(4): B(f'v_mov_b32 {self.ones[k]}, 0x3f803f80')
        B(f's_lshl_b32 {s["T0"]}, {s["W"]}, 12\nv_lshlrev_b32 {t1}, 11, {e}\nv_lshl_add_u32 {t1}, {ch}, 4, {t1}\nv_add_u32 {t1}, {s["T0"]}, {t1}')
        B(f's_mov_b64 exec, 0xffff\nds_write_b128 {t1}, {self.ones} offset:{L_HALO}\ns_mov_b64 exec, -1')
        B(f'v_mov_b32 v254, {L_SCR + 4092}')
        self.srd(B, 40, 16, 1376*1024); self.srd(B, 44, 18, 2048*1024)
        B(f's_cmp_lt_u32 {s["W"]}, 2\ns_cselect_b32 s36, s12, s14\ns_cselect_b32 s37, s13, s15\ns_mov_b32 s38, {512*PITCH3}\ns_mov_b32 s39, 0x20000')
        S.free |= set(range(3, 20)) | {0, 1, 22, 23} | set(range(52, 60))
        self.sMode = S.alloc(); self.mW1 = S.alloc(2); self.mW16 = S.alloc(2)
        B(f's_mov_b32 {self.sMode}, 0\ns_cmp_eq_u32 {s["W"]}, 0\ns_cselect_b64 {self.mW1}, 1, 0\ns_cselect_b64 {self.mW16}, 0xffff, 0')
        self.sN3 = S.alloc(2); self.sInv512 = S.alloc()
        if o['perm3']:
            pi = [0, 1, 2, 14, 4, 5, 6, 7, 8, 9, 10, 15, 12, 13, 3, 11]; tb64 = sum(v << (4*q) for q, v in enumerate(pi))
            B(f's_mov_b32 {self.sN3[0]}, {hex(tb64 & 0xffffffff)}\ns_mov_b32 {self.sN3[1]}, {hex(tb64 >> 32)}\ns_lshl_b32 {s["M"]}, {s["M"]}, 2\ns_lshr_b64 {self.sN3}, {self.sN3}, {s["M"]}\ns_and_b32 {s["M"]}, {self.sN3[0]}, 15')
        B(f's_cmp_lt_u32 {s["M"]}, 15\ns_cselect_b32 {self.sN3[0]}, s38, 0\ns_cmp_lt_u32 {s["M"]}, 14\ns_cselect_b32 {self.sN3[1]}, s38, 0')
        B(f's_mov_b32 {self.sInv512}, {fhex(1/512)}')
        self.vEps = V.alloc(); B(f'v_mov_b32 {self.vEps}, {fhex(1e-5)}')
        j = self.vJ = V.alloc(); g = self.vG = V.alloc()
        B(f'v_and_b32 {j}, 15, {vL}\nv_lshrrev_b32 {g}, 4, {vL}')
        self.aX = [V.alloc(), V.alloc()]; self.aXo = [V.alloc(), V.alloc()]; self.aW1 = V.alloc(); aHs = [V.alloc(), V.alloc()]
        B(f'v_lshrrev_b32 {t1}, 1, {j}\nv_xor_b32 {t1}, {t1}, {g}\nv_lshlrev_b32 {t1}, 4, {t1}\nv_lshl_add_u32 {self.aX[0]}, {j}, 7, {t1}\nv_xor_b32 {self.aX[1]}, 64, {self.aX[0]}')
        B(f'v_add_u32 {aHs[0]}, {s["T0"]}, {self.aX[0]}\nv_add_u32 {aHs[1]}, {s["T0"]}, {self.aX[1]}')
        B(f's_add_u32 {s["T0"]}, {self.sW2K}, {L_X}\nv_add_u32 {self.aXo[0]}, {s["T0"]}, {self.aX[0]}\nv_add_u32 {self.aXo[1]}, {s["T0"]}, {self.aX[1]}')
        ra = [V.alloc() for _ in range(4)]
        B(f'v_lshrrev_b32 {t1}, 1, {j}\nv_lshrrev_b32 {t2}, 1, {g}\nv_xor_b32 {t1}, {t1}, {t2}\nv_lshlrev_b32 {t1}, 4, {t1}\nv_and_b32 {t2}, 1, {g}\nv_lshl_add_u32 {t1}, {t2}, 3, {t1}')
        B(f'v_lshl_add_u32 {t1}, {j}, 7, {t1}\nv_add_u32 {ra[0]}, {s["T0"]}, {t1}')
        for ct in range(1, 4): B(f'v_xor_b32 {ra[ct]}, {ct*32}, {ra[0]}')
        self.vTRf = V.alloc(); self.vTRb = V.alloc()
        B(f'v_and_b32 {t1}, 3, {e}\nv_lshlrev_b32 {self.vTRf}, 5, {t1}')
        B(f'v_bfe_u32 {t1}, {vL}, 2, 2\nv_and_b32 {t2}, 3, {vL}\nv_lshlrev_b32 {t2}, 3, {t2}\nv_lshl_add_u32 {self.vTRb}, {t1}, 7, {t2}')
        B(f's_lshl_b32 {s["T0"]}, {s["W"]}, 5\nv_xor_b32 {t1}, {s["T0"]}, {self.vTRf}\nv_mul_u32_u24 {t2}, 3072, {g}\nv_add3_u32 {self.aW1}, {t1}, {t2}, {self.vTRb}\nv_add_u32 {self.aW1}, {L_W}, {self.aW1}')
        self.mB0 = S.alloc(2); self.mB1 = S.alloc(2); self.mDiag = S.alloc(2); mOwnA = S.alloc(2); mOwnB = S.alloc(2)
        B(f's_mov_b32 {self.mB0[0]}, 0xaaaaaaaa\ns_mov_b32 {self.mB0[1]}, 0xaaaaaaaa\ns_mov_b32 {self.mB1[0]}, 0xcccccccc\ns_mov_b32 {self.mB1[1]}, 0xcccccccc')
        B(f's_mov_b32 {self.mDiag[0]}, 0x00f0000f\ns_mov_b32 {self.mDiag[1]}, 0xf0000f00')
        def lanemask(fn):
            v = sum(1 << l for l in range(64) if fn(l & 15, l >> 4)); return v & 0xffffffff, v >> 32
        oa = lanemask(lambda jj, gg: 4*gg + (jj & 1) <= jj); ob = lanemask(lambda jj, gg: 4*gg + 2 + (jj & 1) <= jj)
        B(f's_mov_b32 {mOwnA[0]}, {hex(oa[0])}\ns_mov_b32 {mOwnA[1]}, {hex(oa[1])}\ns_mov_b32 {mOwnB[0]}, {hex(ob[0])}\ns_mov_b32 {mOwnB[1]}, {hex(ob[1])}')
        aTB = V.alloc(); aTBw = V.alloc(); aHPw = V.alloc(); aHPr = V.alloc()
        B(f'v_lshlrev_b32 {aTB}, 4, {j}\nv_add_u32 {aTB}, {SCR_TB}, {aTB}\nv_lshl_add_u32 {aTBw}, {s["W"]}, 8, {aTB}')
        B(f'v_lshlrev_b32 {aHPr}, 5, {j}\nv_add_u32 {aHPr}, {SCR_HP}, {aHPr}\nv_lshl_add_u32 {aHPw}, {s["W"]}, 3, {aHPr}')
        ka = V.alloc(); kb = V.alloc(); bias = V.alloc(2); sel = V.alloc(4)
        B(f'v_and_b32 {t1}, 1, {j}\nv_lshl_add_u32 {t1}, {g}, 2, {t1}\nv_lshlrev_b32 {t1}, 4, {t1}\nv_add_u32 {t1}, {SCR_TB + 8}, {t1}\nv_add_u32 {t2}, 256, {t1}')
        B(f'v_cndmask_b32 {ka}, {t1}, {t2}, {mOwnA}\nv_cndmask_b32 {kb}, {t1}, {t2}, {mOwnB}')
        B(f's_cmp_eq_u32 {s["BLK"]}, 0\ns_cselect_b32 {s["T0"]}, {fhex(-1e30)}, 0\nv_mov_b32 {t1}, {s["T0"]}\nv_mov_b32 {t3}, 0x0c0c0c0c')
        B(f'v_cndmask_b32 {bias[0]}, {t1}, 0, {mOwnA}\nv_cndmask_b32 {bias[1]}, {t1}, 0, {mOwnB}')
        B(f'v_mov_b32 {t1}, 0x0c0c0100\nv_mov_b32 {t2}, 0x01000c0c\nv_cndmask_b32 {t1}, {t1}, {t2}, {self.mB0}')
        B(f'v_cndmask_b32 {sel[0]}, {t1}, {t3}, {mOwnA}\nv_cndmask_b32 {sel[2]}, {t3}, {t1}, {mOwnA}')
        B(f'v_mov_b32 {t1}, 0x0c0c0302\nv_mov_b32 {t2}, 0x03020c0c\nv_cndmask_b32 {t1}, {t1}, {t2}, {self.mB0}')
        B(f'v_cndmask_b32 {sel[1]}, {t1}, {t3}, {mOwnB}\nv_cndmask_b32 {sel[3]}, {t3}, {t1}, {mOwnB}')
        self.sD = S.alloc(); self.vF = V.alloc(2); self.vH = V.alloc(); self.vD = V.alloc(4)
        self.sR2 = S.alloc(); self.sU = S.alloc(2); self.sDl = S.alloc(); self.sCP = [S.alloc() for _ in range(7)]
        for k in range(7): B(f's_mov_b32 {self.sCP[k]}, {(k + 1)*64*PITCH3}')
        B(f's_and_b32 {s["PF"]}, {s["M"]}, 1\ns_mul_i32 {s["T0"]}, {s["M"]}, 192\ns_mul_i32 {s["T1"]}, {s["PF"]}, {PITCH3}')
        B(f's_add_u32 {s["T2"]}, {s["T0"]}, {s["T1"]}\ns_sub_u32 {s["T3"]}, {s["T0"]}, {s["T1"]}\ns_add_u32 {s["T3"]}, {s["T3"]}, {PITCH3}')
        B(f's_sub_u32 {self.sDl}, {s["T3"]}, {s["T2"]}\ns_add_u32 {self.sDl}, {self.sDl}, 64')
        B(f's_and_b32 {s["T0"]}, {s["W"]}, 1\ns_and_b32 {s["T1"]}, {s["W"]}, 2')
        B(f'v_and_b32 {t2}, 1, {e}\nv_lshl_add_u32 {t1}, {g}, 3, {t2}\nv_lshl_add_u32 {t1}, {s["T0"]}, 1, {t1}\nv_mul_u32_u24 {t1}, {2*PITCH3}, {t1}\nv_add_u32 {t1}, {s["T2"]}, {t1}')
        B(f'v_and_b32 {t3}, 1, {g}\nv_or_b32 {t2}, {s["T1"]}, {t3}\nv_lshlrev_b32 {t2}, 1, {t2}\nv_xor_b32 {t2}, {t2}, {ch}\nv_lshl_add_u32 {self.vF[0]}, {t2}, 4, {t1}\nv_add_u32 {self.vF[1]}, {8*PITCH3}, {self.vF[0]}')
        B(f'v_lshl_add_u32 {t1}, {s["T0"]}, 3, {e}\nv_lshlrev_b32 {t3}, 2, {t3}\nv_xor_b32 {t3}, {t3}, {ch}\nv_lshlrev_b32 {t3}, 4, {t3}\nv_lshl_add_u32 {self.vD[0]}, {t1}, 10, {t3}')
        B(f'v_and_b32 {t1}, 3, {e}\nv_lshlrev_b32 {t1}, 3, {t1}\nv_lshrrev_b32 {t2}, 5, {vL}\nv_lshl_add_u32 {t1}, {t2}, 1, {t1}\nv_bfe_u32 {t2}, {vL}, 2, 1\nv_add_u32 {t1}, {t1}, {t2}\nv_lshl_add_u32 {t1}, {s["T0"]}, 2, {t1}\nv_mul_u32_u24 {t1}, {2*PITCH3}, {t1}\nv_add_u32 {t1}, {s["T3"]}, {t1}')
        B(f'v_and_b32 {t2}, 3, {vL}\nv_xor_b32 {t2}, {s["T1"]}, {t2}\nv_lshl_add_u32 {self.vH}, {t2}, 4, {t1}')
        B(f's_lshl_b32 {s["T1"]}, {s["T1"]}, 13\ns_add_u32 {self.sU[0]}, {s["T1"]}, {self.sC128}\ns_mul_i32 {s["T1"]}, {s["T1"]}, 6\ns_add_u32 {self.sU[1]}, {s["T1"]}, {self.sC128}')
        pass
        B(f's_lshl_b32 {self.sOst}, {s["BLK"]}, 16\ns_lshl_b32 {s["T1"]}, {self.sH128}, 5\ns_add_u32 {self.sOst}, {self.sOst}, {s["T1"]}\ns_add_u32 {self.sOst}, {self.sOst}, {s["W1K"]}')
        B(f'v_lshlrev_b32 {t1}, 7, {ch}\nv_lshl_add_u32 {vTo}, {e}, 15, {t1}')
        B(f's_lshr_b32 {s["T1"]}, {s["W"]}, 1\ns_lshl_b32 {s["T2"]}, {s["SB"]}, 1\ns_add_u32 {s["T2"]}, {s["T2"]}, {s["T1"]}\ns_lshl_b32 {s["T2"]}, {s["T2"]}, 15')
        B(f's_lshl_b32 {s["T1"]}, {s["C"]}, 12\ns_add_u32 {s["T2"]}, {s["T2"]}, {s["T1"]}\ns_add_u32 {self.sHst}, {s["T2"]}, {s["GB"]}')
        B(f's_lshl_b32 {s["T0"]}, {s["T0"]}, 11\ns_add_u32 {s["T2"]}, {s["T2"]}, {s["T0"]}\nv_add_u32 {vT}, {s["T2"]}, {v128}')
        B(f's_lshl_b32 {s["T0"]}, {s["M"]}, 2\ns_add_u32 {s["T0"]}, {s["T0"]}, {s["W"]}\ns_lshl_b32 {s["T0"]}, {s["T0"]}, 7\ns_add_u32 {s["T1"]}, {s["T0"]}, {WS_ST}\nv_writelane_b32 {vT}, {s["T1"]}, 16')
        B(f's_and_b32 {s["T0"]}, {s["T0"]}, 0x380\ns_add_u32 {s["T1"]}, {s["T0"]}, {WS_FL}\nv_writelane_b32 {vT}, {s["T1"]}, 17')
        self.info['setupB'] = len(B.L)
        k1 = max(q for q in safe_points(B.L) if q <= o['c1_from'])
        code = sprinkle(B.L[:k1], groups, o['sp0'], start=0) + (self.visit('v0') if o['v0_at'] == -2 else []) + sprinkle(B.L[k1:], pf_flat('sb') + [fl1(x) for x in c1[n1a:n1b]], o['sp0b'], start=0)
        if o['visit']:
            k = max(q for q in safe_points(code) if q <= o['jump_at'])
            code[k:k] = [Ins('s_branch L_body'), Ins('.p2align 12'), Ins('L_body:')]
        if o.get('st0'):
            sp_ = set(safe_points(code)); last = 0
            for q, x in enumerate(code):
                if q - last >= o['st0'] and q in sp_:
                    self.stamp(f'i{q}v{sum(y.kind == "vmem" for y in code[:q])}'); last = q
                A.L.append(x)
            self.stamp('ipre-visit')
        else: A.ext(code)
        for r in (e, ch): r.free()
        for gq in pf_flat('s2'): A.ext(gq)
        if o['v0_at'] == -1: A.ext(self.visit('v0'))
        self.aQ = [V.alloc(4, 2) for _ in range(5)]; self.aK = [V.alloc(4, 2) for _ in range(5)]; self.aV = [V.alloc(4, 2) for _ in range(5)]
        self.stG = V.alloc(4, 2); self.stS = V.alloc(4, 2); hG = V.alloc(4, 2); hS = V.alloc(4, 2)
        bufs = [([AG.alloc(4, 4) for _ in range(3)], [AG.alloc(4, 4) for _ in range(5)], AG.alloc(4, 4)) for _ in range(2)]
        hb = [AG.alloc(4, 4) for _ in range(4)]
        nsite = max([len(a_) for a_ in o['pf'].values() if isinstance(a_, list)] + [0])
        if nsite:
            sSel = S.alloc(); src = {'x': 's2', 'g': s['G'], 'b': s['BLK'], 'c': s['C']}[o['selby']]
            if nsite == 3: A(f's_and_b32 {sSel}, {src}, 7\ns_lshl_b32 {sSel}, {sSel}, 2\ns_lshr_b32 {sSel}, 0x10210210, {sSel}\ns_and_b32 {sSel}, {sSel}, 3')
            else: A(f's_and_b32 {sSel}, {src}, {nsite - 1}')
        self.stamp('setup done')
        A('@waitlg0\n@waitvm hr0\ns_barrier')
        self.stamp('chunk0 visible')
        A.ext(self.p1_reads(0, 0, bufs[0]))
        cen = f's_cmp_lg_u32 {s["W"]}, 0\ns_cbranch_scc1 L_nocen\n@raw 1\ns_atomic_add {self.sCen}, s[20:21], {self.sCoff}\n@raw 0\nL_nocen:\n@minlg 1'
        if not o['ymean']: A(cen)
        self.resx = V.alloc(8, 2); tb4 = V.alloc(4, 2)
        hs = Asm()
        for a_, b_ in ((0, 2), (1, 3), (4, 6), (5, 7), (0, 4), (1, 5)): hs(f'v_add_f32 {hp[a_]}, {hp[a_]}, {hp[b_]}')
        hs.ext(self.stats_code(hp[1], hp[0], tb4)); hs(f'ds_write_b128 {aTB}, {tb4}')
        flat = lambda gs: [x for gq in gs for x in gq]
        pfm = lambda at: [x for kind, a_ in o['pf'].items() if a_ == at for x in pf_group(kind)]
        misc = flat(c1[n1b:]) + pfm('c1') + flat(chunk_items(2)) + pfm('c2')
        side = []
        self.gap_since_vm = 99
        HS = o['HS']
        for n in range(16):
            i, st = n >> 1, n & 1
            if n: A('@waitlg0')
            if o.get("fine", 0) >= 16 and (st == 0 or o.get('steps')) and n: self.stamp(f'p1 chunk {i}' + ('b' if st else ''))
            if st == 1 and i < 7:
                while any(x.tag == f'ch{i+1}' for x in fl1(misc)) or sum(x.tag == f'ch{i+2}' for x in fl1(misc)) > 8 - o['topup']: A.ext(fl1([misc.pop(0)]))
                if o['v0_at'] == i: A.ext(self.visit('v0'))
                if o['ymean'] and i == 0:
                    A(f'v_mfma_f32_16x16x32_bf16 {hG}, {self.ones}, {hp.sub(0, 4)}, 0\nv_mfma_f32_16x16x32_bf16 {hS}, {self.ones}, {hp.sub(4, 4)}, 0')
                    A(f's_lshl2_add_u32 {s["T0"]}, s2, {o["ws_base"] + WS_R}')
                    for ror in (8, 4, 2, 1):
                        for r_ in (hG[0], hS[0]): A(f'v_add_f32_dpp {r_}, {r_}, {r_} row_ror:{ror} row_mask:0xf bank_mask:0xf')
                    A(f'v_mul_f32 {hG[0]}, {fhex(-1/512)}, {hG[0]}\nv_mul_f32 {hS[0]}, {fhex(-1/512)}, {hS[0]}\nv_cvt_pk_bf16_f32 {hG[1]}, {hG[0]}, {hS[0]}')
                    A(f'v_lshlrev_b32 {hG[2]}, 16, {hG[1]}\nv_and_b32 {hG[3]}, 0xffff0000, {hG[1]}\nv_sub_f32 {hG[0]}, {hG[0]}, {hG[2]}\nv_sub_f32 {hS[0]}, {hS[0]}, {hG[3]}')
                    A(f'v_cvt_pk_bf16_f32 {hG[0]}, {hG[0]}, {hS[0]}\nv_cndmask_b32 {hG[0]}, {hG[1]}, {hG[0]}, {self.mB0}\ns_and_b64 exec, {self.mW16}, 3')
                    A(f'buffer_store_dword {hG[0]}, {v1k}, {self.WS}, {s["T0"]} offen sc1', tag='rst')
                    A('s_mov_b64 exec, -1')
                A(f'@waitvm ch{i+1}\ns_barrier')
                if o['ymean'] and i == 2: A('@waitvm rst\n' + cen)
                if i == o['minlg_until']: A('@minlg 0')
                if i + 3 < 8: misc += flat(chunk_items(i + 3))
                for kind, at in o['pf'].items():
                    if at == i: misc += pf_group(kind)
                    elif isinstance(at, list) and i in at: misc += pf_group(kind, at.index(i))
                if i == 5:
                    self.free_blocks += [23, 24, 25, 26, 27]
                    misc += flat(self.dmas(o['w2a']))
                if i == 6: misc += flat(self.dmas(o['w2b']))
            mf = self.p1_mfmas(bufs[n & 1], n == 0)
            if n < 15:
                rd = self.p1_reads((n + 1) >> 1, (n + 1) & 1, bufs[(n + 1) & 1])
                if n == HS: rd += [Ins(f'ds_read_b128 {hb[q]}, {aHs[q & 1]} offset:{L_HALO + (q >> 1)*2048}') for q in range(4)]
                if n == HS + 1:
                    for q in range(4):
                        mf += [Ins(f'v_mfma_f32_16x16x32_bf16 {hG}, {hb[q]}, {hb[q]}, {hG if q else 0}'), Ins(f'v_mfma_f32_16x16x32_bf16 {hS}, {self.ones}, {hb[q]}, {hS if q else 0}')]
                    mf = mf[17:] + mf[:17]
                if n == HS + 1: side += self.diag_code(hG, hS[1]) + [[Ins(f's_mov_b64 exec, {self.mDiag}'), Ins(f'ds_write_b64 {aHPw}, {hS.sub(0, 2)}'), Ins('s_mov_b64 exec, -1')]]
                if n == HS + 3:
                    assert st == 1 and not side
                    rd += [Ins(f'ds_read_b128 {hp.sub(0, 4)}, {aHPr}'), Ins(f'ds_read_b128 {hp.sub(4, 4)}, {aHPr} offset:16')]
                if n == HS + 4: side += hs.L
                if n == 8 and o['khalf']:
                    A(f's_cmp_lt_u32 {s["C"]}, 4\ns_cselect_b64 exec, 0, -1')
                    for ct in range(4): A(f'ds_read_b64 {self.resx.sub(2*ct, 2)}, {ra[ct]} offset:{(4 % 3)*8192}')
                    A('s_mov_b64 exec, -1')
                vg = o['vgap0'] if n < 4 else o['vgap']
                if n == 0:
                    rx = [x for x in rd if 'b128' in x.mn] + [Ins(f'ds_read_b64 {self.resx.sub(2*ct, 2)}, {ra[ct]}') for ct in range(4)]
                    k0 = o['k0']
                    self.weave16(mf[:k0], rx, misc, vgap=vg, tail=0)
                    A('@waitvm ch0\ns_barrier')
                    self.weave16(mf[k0:], [x for x in rd if 'b128' not in x.mn], misc, vgap=vg)
                else: self.weave16(mf, rd, misc, vgap=vg, side=side)
            else:
                code = self.diag_code(self.stG, self.stS[1]) + self.stats_code(self.stS[1], self.stS[0], tb4)
                code.append([Ins(f's_mov_b64 exec, {self.mDiag}'), Ins(f'ds_write_b128 {aTBw}, {tb4} offset:256'), Ins('s_mov_b64 exec, -1')])
                assert not side
                self.weave16(mf[:5], [], misc)
                self.weave16(mf[5:13], [], code); assert not code
                self.weave16(mf[13:], [], misc)
        self.stamp('p1 gemm done')
        for b in bufs:
            for r in b[0] + b[1] + [b[2]]: r.free()
        for r in ra + aHs + hb + [hG, hS, vHa, sH, sHm, sTh, self.sTb, hp, aHPw, aHPr, aTBw, tb4, self.stG, self.aW1, self.vXa, self.vXb, self.vW1] + self.aX + self.aXo: r.free()
        left = []; cur = []
        for x in misc:
            cur += x if isinstance(x, list) else [x]
            if any(y.kind == 'vmem' for y in cur): left.append(cur); cur = []
        assert not cur
        self.info['w2_left'] = len(left)
        if left: A.ext(left.pop(0))
        A('@waitlg0\ns_barrier')
        nw2_left = 16 - o['w2a'] - o['w2b']
        late_free = [22, 8, 9] + list(range(10, 16)) + [4, 5] + list(range(16, 22)) + [6, 7, 0, 1, 2, 3]
        tb = [V.alloc(4, 2) for _ in range(5)]
        for t in range(5): A(f'ds_read_b128 {tb[t]}, {aTB} offset:{t*256}')
        rk = [None] + [V.alloc(2) for _ in range(4)]
        for t in range(1, 5): A(f'ds_read_b32 {rk[t][0]}, {ka} offset:{(t-1)*256}\nds_read_b32 {rk[t][1]}, {kb} offset:{(t-1)*256 + 32}')
        cv_ = V.alloc(); ca_ = V.alloc(); ct_ = V.alloc()
        crd = Asm(); crd(f'v_lshlrev_b32 {ca_}, 4, {j}\nglobal_load_dword {cv_}, {ca_}, s[20:21] sc1')
        cck = Asm()
        chk = f'v_and_b32 {ct_}, 16, {cv_}\nv_readlane_b32 {self.sCv}, {cv_}, {s["G"]}\nv_cmp_eq_u32 vcc, 0, {ct_}'
        cck(chk + f'\ns_lshl_b32 {self.sCen}, {self.sCen}, 4\ns_cmp_lg_u32 {self.sCen}, {self.sCv}')
        if o['force_slow']: cck('s_cmp_eq_u32 0, 0')
        cck('s_cselect_b64 vcc, -1, vcc\ns_cbranch_vccnz L_notfast\nL_mode_ok:')
        if o['ymean']:
            cck(f's_mul_i32 {s["T1"]}, {s["W"]}, 1088\ns_add_u32 m0, {s["T1"]}, {SCR_R}\ns_add_u32 {s["T1"]}, {s["W1K"]}, {o["ws_base"] + WS_R}\ns_cmp_lt_u32 {s["W"]}, 2\ns_cselect_b64 exec, -1, 0')
            cck(f'buffer_load_dwordx4 {self.vL16}, {self.WS}, {s["T1"]} offen sc1 lds\ns_mov_b64 exec, -1')
        T = self.tail
        T(f'L_notfast:\ns_mov_b32 {s["T1"]}, 0x8000\nL_cen_loop:\nglobal_load_dword {cv_}, {ca_}, s[20:21] sc1\ns_waitcnt vmcnt(0)\n' + chk)
        T(f's_sub_u32 {s["T1"]}, {s["T1"]}, 1\ns_cbranch_scc1 L_cen_done\ns_cbranch_vccnz L_cen_loop\nL_cen_done:')
        if o['stamps']: T('s_add_u32 s97, s97, 0x1000000')
        if not o['force_slow']: T(f's_cmp_eq_u32 {self.sCen}, {self.sCv}\ns_cbranch_scc1 L_mode_ok')
        T(f's_mov_b32 {self.sMode}, 1\nv_mov_b32 {ca_}, {self.sCoff}')
        T(f's_add_u32 {s["FL"]}, {s["FL"]}, {FL_SLOW}\ns_add_u32 {self.sFme}, {self.sFme}, {FL_SLOW}\ns_mov_b32 {s["T1"]}, 0x8000\ns_cmp_lg_u32 {s["W"]}, 0\ns_cbranch_scc1 L_slow_loop')
        T(f's_mov_b64 exec, 0x3f\nv_mov_b32 {cv_}, 0\nbuffer_store_dword {cv_}, {v128}, {self.WS}, {self.sFme} offen sc1\ns_waitcnt vmcnt(0)\ns_mov_b64 exec, 1\nv_mov_b32 {cv_}, 1')
        T(f'global_atomic_add {ca_}, {cv_}, s[20:21] offset:4 sc1\ns_mov_b64 exec, -1')
        T(f'L_slow_loop:\nglobal_load_dword {cv_}, {ca_}, s[20:21] offset:4 sc1\ns_waitcnt vmcnt(0)\nv_readfirstlane_b32 {s["T2"]}, {cv_}')
        T(f's_sub_u32 {s["T1"]}, {s["T1"]}, 1\ns_cbranch_scc1 L_mode_ok\ns_cmp_lt_u32 {s["T2"]}, 16\ns_cbranch_scc1 L_slow_loop\ns_branch L_mode_ok')
        E = Asm()
        csq = V.alloc(4, 2); csk = V.alloc(4, 2); csv = V.alloc(2, 2)
        for r in range(4): E(f'v_mov_b32_dpp {csk[r]}, {self.aK[0][r]} row_newbcast:0 row_mask:0xf bank_mask:0xf')
        for r in range(4): E(f'v_mov_b32_dpp {csq[r]}, {self.aQ[0][r]} row_newbcast:0 row_mask:0xf bank_mask:0xf')
        E(f'v_cvt_pk_bf16_f32 {t1}, {self.aV[0][0]}, {self.aV[0][0]}\nv_mov_b32 {csv[0]}, 0\nv_and_b32 {t1}, 0xffff0000, {t1}\nv_mov_b32 {csv[1]}, 0\nv_sub_f32 {t2}, {self.aV[0][0]}, {t1}')
        E(f's_mov_b64 exec, 0xffff\nv_cvt_pk_bf16_f32 {csv[1]}, {t1}, {t2}\ns_mov_b64 exec, -1')
        Kp = V.alloc(10, 2); Qp = V.alloc(10, 2); Vp = V.alloc(10, 2)
        def fixf(acc, cs, t):
            for h in range(2): E(f'v_pk_fma_f32 {acc[t].sub(2*h, 2)}, {cs.sub(2*h, 2)}, {tb[t].sub(0, 2)}, {acc[t].sub(2*h, 2)} op_sel_hi:[1,0,1]')
        fixf(self.aK, csk, 0)
        for t in range(1, 5): fixf(self.aK, csk, t); fixf(self.aQ, csq, t)
        zs = [None] + [V.alloc(2) for _ in range(4)]
        for t in range(1, 5): E(f'v_pk_mul_f32 {zs[t]}, {rk[t]}, {tb[t].sub(2, 2)} op_sel:[0,1] op_sel_hi:[1,1]')
        cv = lambda acc, dst, t: [f'v_cvt_pk_bf16_f32 {dst[2*t + h]}, {acc[t][2*h]}, {acc[t][2*h+1]}' for h in range(2)]
        vm = [f'v_mfma_f32_16x16x16_bf16 {self.aV[t]}, {tb[t].sub(0, 2)}, {csv}, {self.aV[t]}' for t in range(5)]
        cvs = cv(self.aK, Kp, 0)
        for t in range(1, 5): cvs += cv(self.aK, Kp, t) + cv(self.aQ, Qp, t)
        for t in range(5):
            E(vm[t]); E(cvs.pop(0)); E(cvs.pop(0))
        Sp, So = self.aK, self.aQ
        Sp = [None] + self.aK[0:4]; So = [None] + self.aQ[0:4]
        for t in range(1, 5):
            E(f'v_mfma_f32_16x16x16_bf16 {Sp[t]}, {Kp.sub(2*t-2, 2)}, {Qp.sub(2*t, 2)}, 0')
            for _ in range(2):
                if cvs: E(cvs.pop(0))
            E(f'v_mfma_f32_16x16x16_bf16 {So[t]}, {Kp.sub(2*t, 2)}, {Qp.sub(2*t, 2)}, 0')
            for _ in range(2):
                if cvs: E(cvs.pop(0))
        z = [None] + [V.alloc(2) for _ in range(4)]
        for t in range(1, 5):
            for h, mk in ((0, mOwnA), (1, mOwnB)):
                E(f'v_cndmask_b32 {Sp[t][2*h]}, {Sp[t][2*h]}, {Sp[t][2*h+1]}, {self.mB0}\nv_cndmask_b32 {So[t][2*h]}, {So[t][2*h]}, {So[t][2*h+1]}, {self.mB0}')
                E(f'v_cndmask_b32 {z[t][h]}, {Sp[t][2*h]}, {So[t][2*h]}, {mk}')
        E(f'v_pk_fma_f32 {z[1]}, {z[1]}, {zs[1]}, {bias}')
        for t in range(2, 5): E(f'v_pk_mul_f32 {z[t]}, {z[t]}, {zs[t]}')
        red = zs
        fl = [x for t in range(5) for x in cv(self.aV, Vp, t)]
        def fill(n):
            for _ in range(n):
                if fl: E(fl.pop(0))
        def allreduce(op, mid=None):
            r = [None] + [red[t][0] for t in range(1, 5)]
            for t in (1, 3, 2, 4): E(f'{op} {r[t]}, {z[t][0]}, {z[t][1]}')
            E(f'v_permlane32_swap_b32 {r[1]}, {r[3]}'); fill(1)
            E(f'v_permlane32_swap_b32 {r[2]}, {r[4]}')
            E(f'{op} {r[1]}, {r[1]}, {r[3]}\n{op} {r[2]}, {r[2]}, {r[4]}'); fill(2)
            E(f'v_permlane16_swap_b32 {r[1]}, {r[2]}')
            E(f'{op} {r[1]}, {r[1]}, {r[2]}')
            if mid: E(f'{mid} {r[1]}, {r[1]}'); fill(1)
            E(f'v_mov_b32 {r[2]}, {r[1]}'); fill(2)
            E(f'v_permlane16_swap_b32 {r[1]}, {r[2]}')
            E(f'v_mov_b32 {r[3]}, {r[1]}\nv_mov_b32 {r[4]}, {r[2]}'); fill(1)
            E(f'v_permlane32_swap_b32 {r[1]}, {r[3]}\nv_permlane32_swap_b32 {r[2]}, {r[4]}')
        allreduce('v_max_f32')
        for t in range(1, 5): E(f'v_pk_add_f32 {z[t]}, {z[t]}, {red[t]} op_sel_hi:[1,0] neg_lo:[0,1] neg_hi:[0,1]')
        for t in range(1, 5): E(f'v_exp_f32 {z[t][0]}, {z[t][0]}\nv_exp_f32 {z[t][1]}, {z[t][1]}')
        fl += [f'v_pk_mul_f32 {rk[t]}, {z[t]}, {rk[t]}' for t in range(1, 5)]
        allreduce('v_add_f32', 'v_rcp_f32')
        fill(20)
        for t in range(1, 5): E(f'v_pk_mul_f32 {z[t]}, {rk[t]}, {red[t]} op_sel_hi:[1,0]')
        for t in range(1, 5): E(f'v_cvt_pk_bf16_f32 {z[t][0]}, {z[t][0]}, {z[t][1]}')
        P = Sp; O = So
        for t in range(1, 5):
            for q in range(4):
                E(f'v_perm_b32 {P[t][q]}, {z[t][0]}, {z[t][0]}, {sel[q]}')
                if q == 1 and t > 1: E(f'v_mfma_f32_16x16x32_bf16 {O[t-1]}, {Vp.sub(2*t-4, 4)}, {P[t-1]}, 0')
        of = [self.aV[0], self.aV[1]]
        oc = lambda t: [f'v_cvt_pk_bf16_f32 {of[(t-1) >> 1][2*((t-1) & 1) + h]}, {O[t][2*h]}, {O[t][2*h+1]}' for h in range(2)]
        for x in oc(1): E(x)
        E(f'v_mfma_f32_16x16x32_bf16 {O[4]}, {Vp.sub(6, 4)}, {P[4]}, 0')
        groups = pf_flat('e0') + left + self.dmas(nw2_left) + pf_flat('e1')
        self.free_blocks += late_free
        groups += self.dmas(o['b_epi'])
        code = sprinkle(E, groups, o['sp1'], start=8)
        sp_ = safe_points(code)
        k2 = max(q for q in sp_ if q <= o['cen_ck']); code[k2:k2] = cck.L
        k1 = max(q for q in sp_ if q <= o['cen_rd']); code[k1:k1] = crd.L
        self.info['epi'] = len(code)
        A.ext(code)
        for r in (cv_, ca_, ct_): r.free()
        A(f's_add_u32 {s["T0"]}, {self.sOst}, 32768\n;dual_begin')
        for x in oc(2) + oc(3): A(x)
        A(f'v_permlane16_swap_b32 {of[0][0]}, {of[0][2]}\nv_permlane16_swap_b32 {of[0][1]}, {of[0][3]}')
        for x in oc(4): A(x)
        self.store2(A, 'dwordx4', of[0], self.vL16, self.sOst, 0, 'ost', self.OUT)
        A(f'v_permlane16_swap_b32 {of[1][0]}, {of[1][2]}\nv_permlane16_swap_b32 {of[1][1]}, {of[1][3]}')
        self.store2(A, 'dwordx4', of[1], self.vL16, s["T0"], 0, 'ost', self.OUT)
        A(';dual_end')
        self.stamp('o stored')
        for gq in pf_flat('e2'): A.ext(gq)
        self.pf_p2 = pf_flat('p2'); self.pf_regs = (vT, vTo, sP, v1k)
        self.junk1 = junk
        self.OSRD = OSRD
        for r in tb + rk[1:] + zs[1:] + z[1:] + [csq, csk, csv, Kp, Qp, Vp, bias, sel, aTB, ka, kb] + self.aQ + self.aK + self.aV[2:]: r.free()
        for r in (mOwnA, mOwnB, self.sCen, self.sCoff, self.sCv, self.sW3K, self.sKC, self.sSO, self.sH128): r.free()
        self.of = of

    def phase2(self):
        A, V, S, AG, s, vL, o = self.A, self.V, self.S, self.AG, self.s, self.vL, self.o
        t1, t2, t3, j, g = self.t1, self.t2, self.t3, self.vJ, self.vG
        self.vOne = V.alloc(); self.vPv = V.alloc()
        assert ('W2', 15) in self.loc
        aw = [V.alloc() for _ in range(4)]
        mark = len(A.L)
        A(f'v_lshl_add_u32 {t1}, {g}, 10, {self.vTRb}\nv_add_u32 {t1}, {23*BLK}, {t1}')
        for ct in range(4): A(f'v_xor_b32 {t2}, {ct*32}, {self.vTRf}\nv_add_u32 {aw[ct]}, {t1}, {t2}')
        pa = V.alloc(); oa = V.alloc(); hv = V.alloc(); sSt = S.alloc(); vj16 = V.alloc(); aRw = V.alloc()
        A(f's_lshl_b32 {s["T0"]}, {s["SB"]}, 5\nv_and_b32 {t1}, 7, {vL}\nv_lshl_add_u32 {pa}, {t1}, 2, {s["T0"]}\nv_mov_b32 {self.vOne}, 1')
        A(f's_lshr_b32 {s["T0"]}, {s["W"]}, 1\ns_lshl_b32 {s["T0"]}, {s["T0"]}, 10\ns_and_b32 {s["T1"]}, {s["W"]}, 1\ns_lshl_b32 {s["T1"]}, {s["T1"]}, 8')
        A(f'v_lshlrev_b32 {vj16}, 4, {j}\nv_and_b32 {t1}, 1, {g}\nv_lshl_add_u32 {t1}, {t1}, 9, {vj16}\nv_add_u32 {t1}, {s["T1"]}, {t1}\nv_lshrrev_b32 {t2}, 1, {g}\nv_lshl_add_u32 {hv}, {t2}, 11, {t1}\nv_lshl_add_u32 {oa}, {t2}, 10, {t1}')
        A(f's_lshl_b32 {self.sR2}, {s["BLK"]}, 16\ns_lshl_b32 {s["T2"]}, {s["T0"]}, 5\ns_add_u32 {self.sR2}, {self.sR2}, {s["T2"]}')
        acc = [V.alloc(4, 2) for _ in range(4)]
        for ct in range(4):
            for h in range(2):
                A(f'v_lshlrev_b32 {acc[ct][2*h]}, 16, {self.resx[2*ct+h]}\nv_and_b32 {acc[ct][2*h+1]}, 0xffff0000, {self.resx[2*ct+h]}')
        accM = self.stS; aR = V.alloc()
        if o['ymean']:
            A(f's_add_u32 {sSt}, {s["T0"]}, {s["T1"]}\ns_lshl_b32 {s["T0"]}, {s["SB"]}, 11\ns_add_u32 {sSt}, {sSt}, {s["T0"]}\ns_and_b32 {s["T0"]}, {s["C"]}, 4\ns_lshl_b32 {s["T0"]}, {s["T0"]}, 7\ns_add_u32 {sSt}, {sSt}, {s["T0"]}')
            A(f's_and_b32 {s["T0"]}, {s["C"]}, 3\ns_lshl2_add_u32 {sSt}, {s["T0"]}, {sSt}\ns_add_u32 {sSt}, {sSt}, {s["GB"]}\ns_add_u32 {sSt}, {sSt}, {WS_ST}')
            A(f'v_and_b32 {t1}, 1, {j}\nv_mul_u32_u24 {t1}, 1088, {t1}\nv_lshl_add_u32 {t1}, {g}, 4, {t1}\nv_add_u32 {aR}, {SCR_R}, {t1}\nv_mov_b32 {accM[1]}, 0')
        else:
            A(f's_lshl_b32 {s["T0"]}, {s["T0"]}, 1\ns_add_u32 {sSt}, {s["T0"]}, {s["T1"]}\ns_lshl_b32 {s["T0"]}, {s["SB"]}, 12\ns_add_u32 {sSt}, {sSt}, {s["T0"]}')
            A(f's_and_b32 {s["T0"]}, {s["C"]}, 2\ns_lshl_b32 {s["T0"]}, {s["T0"]}, 9\ns_add_u32 {sSt}, {sSt}, {s["T0"]}\ns_and_b32 {s["T0"]}, {s["C"]}, 4\ns_lshl_b32 {s["T0"]}, {s["T0"]}, 7\ns_add_u32 {sSt}, {sSt}, {s["T0"]}')
            A(f's_and_b32 {s["T0"]}, {s["C"]}, 1\ns_lshl_b32 {s["T0"]}, {s["T0"]}, 3\ns_add_u32 {sSt}, {sSt}, {s["T0"]}\ns_add_u32 {sSt}, {sSt}, {s["GB"]}\ns_add_u32 {sSt}, {sSt}, {WS_ST}')
        A.L[mark:] = sprinkle(A.L[mark:], self.dmas(o['b_pre1']), o.get('sp3', 12))
        A('@waitvm ost')
        for r in self.of: r.free()
        self.stamp('o drained')
        A('@waitvm W2_15\ns_barrier')
        A.ext(self.signal(0))
        Wf = [[AG.alloc(4, 4) for _ in range(4)] for _ in range(16)]
        def rd(i):
            off = (self.loc[('W2', i)] - 23)*BLK
            return [Ins(f'ds_read_b64_tr_b16 {Wf[i][ct].sub(2*a, 2)}, {aw[ct]} offset:{off + a*512}') for ct in range(4) for a in range(2)] + \
                   ([Ins(f'ds_read_b128 {Rf[i]}, {aR} offset:{i*64}')] if o['ymean'] else [])
        Rf = [V.alloc(4, 2) for _ in range(16 if o['ymean'] else 0)]
        npre = o['w2pre']
        n0 = min(npre, o['w2pre0'])
        A.ext(sprinkle([x for i in range(n0) for x in rd(i)], self.dmas(o['b_post1']), 8))
        A.ext(self.visit('v1'))
        self.sync_wait(A, pa, 0, self.mW16 if o['one_poll'] else '0xff', o['b_aft1'], [x for i in range(n0, npre) for x in rd(i)])
        if o['one_poll']: A('s_barrier')
        self.stamp('sync1 done')
        Of = [V.alloc(4, 2) for _ in range(16)]
        ld = [([Ins(f's_add_u32 {self.sR2}, {self.sR2}, 4096')] if i and i % 2 == 0 else []) + [Ins(f'buffer_load_dwordx4 {Of[i]}, {oa}, {self.OSRD}, {self.sR2} offen offset:{(i & 1)*2048} sc1')] for i in range(16)]
        rest = [x for i in range(npre, 16) for x in rd(i)]
        LO = o['LO']
        for i in range(LO):
            A.ext(ld[i]); A.ext(rest[:5]); rest = rest[5:]
        misc = [x for gq in ld[LO:] for x in gq] + self.pf_p2 + [x for gq in self.dmas(o['b_o']) for x in gq]
        mf = []
        for i in range(16):
            if o['ymean']: mf.append(Ins(f'v_mfma_f32_16x16x32_bf16 {accM}, {Rf[i]}, {Of[i]}, {accM}'))
            mf += [Ins(f'v_mfma_f32_16x16x32_bf16 {acc[ct]}, {Wf[i][ct]}, {Of[i]}, {acc[ct]}') for ct in range(4)]
        mark2 = len(A.L)
        self.gap_since_vm = 99
        self.weave16(mf, rest, misc)
        for x in misc: A.ext(x if isinstance(x, list) else [x])
        for r in self.pf_regs: r.free()
        used = set()
        for x in A.L[mark2:]:
            if x.kind == 'mfma': used |= x.srcAB
            elif x.kind in ('ds', 'vmem'): assert not (x.defs & used), x.text
        self.stamp('p2 gemm done')
        w2b = sorted(self.loc[('W2', i)] for i in range(16))
        self.resb = w2b[0]; assert w2b[1] == w2b[0] + 1
        A(f's_add_u32 {s["T0"]}, {self.sW2K}, {self.resb*BLK}\nv_lshlrev_b32 {t1}, 7, {j}\nv_lshl_add_u32 {t1}, {g}, 3, {t1}')
        A(f'v_bfe_u32 {t2}, {j}, 0, 2\nv_lshl_add_u32 {t1}, {t2}, 5, {t1}\nv_add_u32 {aRw}, {s["T0"]}, {t1}\ns_barrier')
        self.free_blocks += w2b[2:]
        hf = [Of[0], Of[1]]; G4, S4 = Of[2], Of[3]
        A(';dual_begin')
        hc = acc
        if o['ymean']:
            hc = Of[6:10]
            A(f'v_add_f32 {accM[0]}, {accM[0]}, {accM[1]}')
            for ct in range(4):
                for h in range(2): A(f'v_pk_add_f32 {hc[ct].sub(2*h, 2)}, {acc[ct].sub(2*h, 2)}, {accM.sub(0, 2)} op_sel_hi:[1,0]')
        for par in range(2):
            for ct in range(4): A(f'v_cvt_pk_bf16_f32 {hf[par][ct]}, {hc[ct][par]}, {hc[ct][2+par]}')
        rp = Reg('v', Of[4].b, 8); assert Of[5].b == Of[4].b + 4
        rc = [f'v_cvt_pk_bf16_f32 {rp[2*ct+h]}, {acc[ct][2*h]}, {acc[ct][2*h+1]}' for ct in range(4) for h in range(2)]
        A(f'v_mfma_f32_16x16x32_bf16 {G4}, {hf[0]}, {hf[0]}, 0')
        self.store2(A, 'dwordx4', hf[0], hv, self.sHst, 0, 'hst')
        A(f'v_mfma_f32_16x16x32_bf16 {G4}, {hf[1]}, {hf[1]}, {G4}')
        d = self.diag_code(G4, S4[1])
        if o['ymean']:
            self.store2(A, 'dwordx4', hf[1], hv, self.sHst, 1024, 'hst')
            A('\n'.join(rc[:7])); A.ext(d); rc = rc[7:]
            A(f's_mov_b64 exec, {self.mDiag}')
            self.store2(A, 'dword', S4[1], vj16, sSt, 0, 'hst')
        else:
            A(f'v_mfma_f32_16x16x32_bf16 {S4}, {self.ones}, {hf[0]}, 0')
            A(f'v_mfma_f32_16x16x32_bf16 {S4}, {self.ones}, {hf[1]}, {S4}')
            self.store2(A, 'dwordx4', hf[1], hv, self.sHst, 1024, 'hst')
            A('\n'.join(rc[:3])); A.ext(d[:2]); A(rc[3]); A.ext(d[2:]); rc = rc[4:]
            A(f's_mov_b64 exec, {self.mDiag}')
            self.store2(A, 'dwordx2', S4.sub(0, 2), vj16, sSt, 0, 'hst')
        A('s_mov_b64 exec, -1\n;dual_end')
        self.stamp('h stored')
        A('\n'.join(rc))
        A(f'ds_write_b64 {aRw}, {rp.sub(0, 2)}')
        for ct in range(1, 4): A(f'v_xor_b32 {t1}, {ct*32}, {aRw}\nds_write_b64 {t1}, {rp.sub(2*ct, 2)}')
        for r in aw + Rf + [pa, oa, hv, vj16, aRw, aR, accM] + acc + Of[6:] + [x for y in Wf for x in y] + [self.vW2, self.mB0, self.mB1, self.mDiag, self.sR2, sSt, self.sOst, self.sHst, self.ones]: r.free()
        self.late_free = Of[:6] + [self.junk1]

    def phase34(self):
        A, V, S, AG, s, vL, o = self.A, self.V, self.S, self.AG, self.s, self.vL, self.o
        t1, t2, t3, j, g = self.t1, self.t2, self.t3, self.vJ, self.vG
        P = Asm()
        Q = Asm()
        class Win:
            def __init__(w, base): w.r = {0: base}
            def need(w, k):
                if k in w.r: return []
                w.r[k] = V.alloc()
                return [Ins(f'v_add_u32 {w.r[k]}, {k << 16}, {w.r[0]}')]
        aF, aH, aD = [], [], []
        P(f'v_and_b32 {t1}, 1, {g}\nv_lshlrev_b32 {t1}, 11, {t1}\nv_lshrrev_b32 {t2}, 1, {g}\nv_lshl_add_u32 {t3}, {t2}, 10, {t1}')
        b0 = V.alloc(); P(f'v_add3_u32 {b0}, {t3}, {self.vTRb}, {self.vTRf}'); aF.append(Win(b0))
        for uu in range(1, 4):
            b = V.alloc(); P(f'v_xor_b32 {b}, {uu*32}, {b0}'); aF.append(Win(b))
        b0 = V.alloc(); b1 = V.alloc()
        P(f'v_lshl_add_u32 {t3}, {t2}, 9, {t1}\nv_bfe_u32 {t1}, {vL}, 2, 2\nv_lshl_add_u32 {t3}, {t1}, 6, {t3}\nv_and_b32 {t1}, 3, {vL}\nv_lshl_add_u32 {t3}, {t1}, 3, {t3}\nv_and_b32 {t1}, 1, {g}\nv_lshl_add_u32 {b0}, {t1}, 5, {t3}\nv_xor_b32 {b1}, 32, {b0}')
        aH = [Win(b0), Win(b1)]
        aCF = aCH = delta = None
        if not o['ymean']:
            P(f's_and_b32 {s["T1"]}, {s["W"]}, 2\nv_or_b32 {t1}, {s["T1"]}, {t1}\nv_lshlrev_b32 {t1}, 5, {t1}')
            b = V.alloc(); P(f'v_xor_b32 {b}, {t1}, {self.vL16}\nv_add_u32 {b}, {s["W1K"]}, {b}'); aCF = Win(b)
            b = V.alloc(); P(f's_lshl_b32 {s["T1"]}, {s["T1"]}, 4\nv_xor_b32 {b}, {s["T1"]}, {self.vL16}\nv_add_u32 {b}, {s["W1K"]}, {b}'); aCH = Win(b)
            delta = V.alloc(4, 2)
            P(f'v_and_b32 {t1}, 1, {j}\nv_lshlrev_b32 {t1}, 4, {t1}\nv_mov_b32 {t2}, 0x3f80\nv_lshlrev_b32 {t1}, {t1}, {t2}')
            for d in range(4):
                mk = 0x00030003 << (2*d)
                P(f's_mov_b32 vcc_lo, {hex(mk)}\ns_mov_b32 vcc_hi, {hex(mk)}\nv_cndmask_b32 {delta[d]}, 0, {t1}, vcc')
        pa2 = V.alloc(); pa3 = V.alloc(); aRes = V.alloc(); vHl = {'F': V.alloc(), 'H': V.alloc()}
        sT4 = S.alloc(); sGa = S.alloc(); sGb = S.alloc(); sGl = S.alloc(); sHl = S.alloc(); sKH = S.alloc(); sTH = S.alloc(); sSl = S.alloc(); sGo = S.alloc(); sTs = S.alloc(); sLo = S.alloc(); sLw = S.alloc()
        P(f's_lshr_b32 {sKH}, {s["W"]}, 1\ns_and_b32 {sTH}, {s["W"]}, 1')
        P(f'v_lshlrev_b32 {pa3}, 2, {j}\nv_lshl_add_u32 {pa2}, {sKH}, 5, {pa3}')
        P(f's_lshl_b32 {s["T1"]}, {s["W"]}, 15\ns_add_u32 {sHl}, {s["T1"]}, {s["GB"]}\nv_lshl_add_u32 {vHl["F"]}, {s["PF"]}, 10, {self.vL16}\nv_xor_b32 {vHl["H"]}, 1024, {vHl["F"]}')
        P(f's_lshl_b32 {s["T2"]}, {sTH}, 12\ns_add_u32 {s["T2"]}, {s["T2"]}, {self.resb*BLK}\nv_lshrrev_b32 {t2}, 5, {vL}\nv_lshl_add_u32 {t2}, {sKH}, 1, {t2}\nv_and_b32 {t1}, 3, {vL}\nv_xor_b32 {t2}, {t2}, {t1}')
        P(f'v_and_b32 {t1}, 31, {vL}\nv_lshl_add_u32 {t1}, {t1}, 7, {s["T2"]}\nv_lshl_add_u32 {aRes}, {t2}, 5, {t1}')
        Q(f's_add_u32 {sSl}, {s["W1K"] if o["ymean"] else self.sW2K}, {s["GB"]}\ns_add_u32 {sSl}, {sSl}, {WS_ST}')
        Q(f's_lshl_b32 {s["T3"]}, {s["W"]}, 15\ns_lshl_b32 {s["T2"]}, {s["M"]}, 10\ns_add_u32 {s["T2"]}, {s["T2"]}, {s["T3"]}\ns_add_u32 {sGa}, {s["T2"]}, {s["GB"]}')
        Q(f's_lshl_b32 {sLo}, {s["G"]}, 17\ns_add_u32 {sGo}, {sLo}, {s["T2"]}')
        Q(f's_mul_i32 {s["T2"]}, {s["PF"]}, {16*KB - 512}\ns_add_u32 {sGb}, {s["T3"]}, {s["T2"]}\ns_lshl_b32 {s["T2"]}, {s["M"]}, 9\ns_add_u32 {sGb}, {sGb}, {s["T2"]}\ns_add_u32 {sGb}, {sGb}, {s["GB"]}')
        Q(f's_lshl1_add_u32 {sT4}, {s["SB"]}, {sTH}\ns_lshl1_add_u32 {s["T2"]}, {sT4}, {sKH}\ns_lshl_b32 {s["T2"]}, {s["T2"]}, 14\ns_add_u32 {sLo}, {sLo}, {s["T2"]}\ns_add_u32 {sLw}, {s["GB"]}, {s["T2"]}')
        Q(f'v_bfe_u32 {t1}, {vL}, 2, 2\nv_lshrrev_b32 {t2}, 1, {g}\nv_lshl_add_u32 {t1}, {t2}, 2, {t1}\nv_lshlrev_b32 {t3}, 7, {t1}\nv_bfe_u32 {t1}, {vL}, 3, 1\nv_lshl_add_u32 {t3}, {t1}, 6, {t3}')
        Q(f'v_and_b32 {t1}, 1, {vL}\nv_lshl_add_u32 {t3}, {t1}, 5, {t3}\nv_and_b32 {t1}, 1, {g}\nv_lshl_add_u32 {t3}, {t1}, 4, {t3}\nv_bfe_u32 {t1}, {vL}, 1, 1\nv_lshl_add_u32 {t3}, {t1}, 3, {t3}')
        b0 = V.alloc(); b1 = V.alloc()
        Q(f's_mul_i32 {s["T2"]}, {sKH}, {2048 + 64}\nv_xor_b32 {b0}, {s["T2"]}, {t3}\nv_xor_b32 {b1}, 64, {b0}')
        aD = [Win(b0), Win(b1)]
        if not o['ymean']:
            aCW = V.alloc(); aCR = V.alloc()
            Q(f's_lshl_b32 {s["T2"]}, {sTH}, 10\ns_lshl_b32 {s["T3"]}, {sKH}, 9\ns_add_u32 {s["T2"]}, {s["T2"]}, {s["T3"]}\ns_add_u32 {s["T2"]}, {s["T2"]}, {SCR_CS}')
            Q(f'v_lshl_add_u32 {t1}, {g}, 4, {s["T2"]}\nv_lshl_add_u32 {aCW}, {j}, 5, {t1}')
            Q(f'v_and_b32 {t1}, 1, {g}\nv_lshlrev_b32 {t1}, 9, {t1}\nv_lshl_add_u32 {t1}, {j}, 2, {t1}\nv_lshl_add_u32 {t1}, {t2}, 11, {t1}\nv_add_u32 {aCR}, {SCR_CS}, {t1}')
            cA = V.alloc(4, 2); cB = V.alloc(4, 2); cT = V.alloc(2)
            for r in (cA, cB):
                for k in range(1, 4): Q(f'v_mov_b32 {r[k]}, 0')
        self.info['setupP'] = len(P.L); self.info['setupQ'] = len(Q.L)
        HB = {('F', i): AG.at(8*i, 4) for i in range(16)}; HB.update({('H', i): AG.at(8*i + 4, 4) for i in range(16)})
        ops = []
        def op3(u, ty, i):
            if ty == 'F':
                if u < 4: key, ad, st, ex = ('F1', i), aF[u], 512, 0
                else: key, ad, st, ex = ('S3', i >> 1), aH[u - 4], 256, (i & 1)*1024
            else:
                if u < 2: key, ad, st, ex = ('H1', i >> 1), aH[u], 256, (i & 1)*1024
                else: key, ad, st, ex = ('S2', i), aF[u - 2], 512, 0
            ops.append(dict(k='m', u=u, key=key, ad=ad, st=st, ex=ex, B=HB[(ty, i)], hk=(ty, i)))
        if o['order'] == 'pair':
            for i in range(16):
                for ty in 'FH':
                    for u in (0, 1): op3(u, ty, i)
            for i in range(16):
                for u in (2, 3): op3(u, 'F', i)
        else:
            for i in range(16):
                for u in range(4): op3(u, 'F', i)
                for u in (0, 1): op3(u, 'H', i)
        if o.get('o45') == 'all':
            for i in range(16):
                for u in (2, 3, 4, 5): op3(u, 'H', i)
            for u in (4, 5):
                for i in range(16): op3(u, 'F', i)
        elif o.get('o23') == 'mix':
            for i in range(16):
                for u in (2, 3): op3(u, 'H', i)
        else:
            for u in (2, 3):
                for i in range(16): op3(u, 'H', i)
        if o.get('o45') == 'all': pass
        elif o.get('o45') == 'mix2':
            for ty in 'HF':
                for i in range(16):
                    for u in (4, 5): op3(u, ty, i)
        elif o.get('o45', 'mix') == 'mix':
            for i in range(16):
                for u in (4, 5): op3(u, 'H', i)
            for u in (4, 5):
                for i in range(16): op3(u, 'F', i)
        else:
            for u in (4, 5):
                for ty in 'HF':
                    for i in range(16): op3(u, ty, i)
        NG, NR, LA = o['NG'], o['NR'], o['LA']
        GB = [AG.alloc(4, 4) for _ in range(NG)]
        TL = o['TL']
        o4 = lambda i, k: ops.append(dict(k='m', u=6 + k, key=('W4', i), ad=aD[k], st=1024, ex=0, B=None, hk=('g', i)))
        for i in range(43 - TL):
            for k in range(2): o4(i, k)
        for k in (1, 0):
            for i in range(43 - TL, 43): o4(i, k)
        RB = [AG.alloc(4, 4) for _ in range(NR)]
        csacc = {} if o['ymean'] else {c: V.alloc(4, 2) for c in ('F1', 'H1', 'S2', 'S3')}
        cnt = {}
        def cs_op(key):
            c = key[0]; cnt[c] = cnt.get(c, 0) + 1
            return dict(k='c', key=key, ad=aCF if c in ('F1', 'S2') else aCH, first=cnt[c] == 1, last=cnt[c] == (16 if c in ('F1', 'S2') else 8))
        pre_keys = [k for k in self.issued if k[0] != 'W2'][:o['cs_pre']]
        pre_ops = [cs_op(k) for k in pre_keys]
        seen = set(pre_keys); ops2 = []; at = {}; fc = {}; nth = {}
        if o['ymean']: seen = {p['key'] for p in ops}; pre_ops = []
        for n, p in enumerate(ops):
            if p['key'][0] != 'W4' and p['key'] not in seen:
                seen.add(p['key']); c = p['key'][0]; fc.setdefault(c, n); nth[c] = nth.get(c, -1) + 1
                lead, spc = o['cs_lead'].get(c, (0, 99))
                at.setdefault(max(0, min(n, fc[c] - lead + spc*nth[c])), []).append(p['key'])
        for n, p in enumerate(ops):
            ops2 += [cs_op(k) for k in at.get(n, [])] + [p]
        ops = ops2
        for n, p in enumerate(ops): p['R'] = RB[n % NR]; p['n'] = n
        for n, p in enumerate(pre_ops): p['R'] = Reg('a', 4*n, 4); p['n'] = -1
        N = len(ops)
        last_use = {p['key']: p['n'] for p in ops}
        last_op = {p['u']: p['n'] for p in ops if p['k'] == 'm'}
        first4 = min(p['n'] for p in ops if p.get('u', 0) >= 6)
        def reads(p):
            b = self.loc[p['key']]; w, off = b >> 4, (b & 15)*BLK
            pre = p['ad'].need(w); ad = p['ad'].r[w]
            if p['k'] == 'c': return pre + [Ins(f'ds_read_b128 {p["R"]}, {ad} offset:{off}', f'r{p["n"]}')]
            return pre + [Ins(f'ds_read_b64_tr_b16 {p["R"].sub(2*a, 2)}, {ad} offset:{off + p["ex"] + a*p["st"]}', f'r{p["n"]}') for a in range(2)]
        started = set()
        def mfma(p):
            if p['k'] == 'c':
                c = csacc[p['key'][0]]
                return Ins(f'v_mfma_f32_16x16x32_bf16 {c}, {delta}, {p["R"]}, {0 if p["first"] else c}')
            a = acc[p['u']] if p['u'] < 6 else (accK, accS)[p['u'] - 6]
            z = p['u'] not in started and p['u'] != 6
            started.add(p['u'])
            return Ins(f'v_mfma_f32_32x32x16_bf16 {a}, {p["R"]}, {p["B"] or slot[p["hk"]]}, {0 if z else a}')
        visible = set(self.issued)
        A.ext(sprinkle(P, self.dmas(o['b_pre2']), o.get('sp3', 12)))
        for p in pre_ops: A.ext(p['ad'].need(self.loc[p['key']] >> 4))
        A('@waitvm hst')
        self.stamp('h drained')
        for r in self.late_free + [self.vTRb, self.vTRf]: r.free()
        A('@waitlg0\ns_barrier')
        A.ext(self.signal(1))
        res = self.resx
        E = Asm()
        E(f'ds_read_b128 {res.sub(0, 4)}, {aRes}\nds_read_b128 {res.sub(4, 4)}, {aRes} offset:16')
        for q in range(len(pre_ops) + 4):
            if q < len(pre_ops): E.ext(reads(pre_ops[q]))
            if q >= 4: E.L.append(mfma(pre_ops[q - 4]))
        for q in range(LA):
            assert ops[q]['key'] in visible
            E.ext(reads(ops[q]))
        if o['q_early']: E.ext(Q); Q = Asm()
        A.ext(sprinkle(E, self.dmas(o['b_post2']), o.get('sp2', 14)))
        if o.get('l2fill2'):
            for srd in o['l2fill2']:
                if srd == 'W3': A(f's_lshr_b32 {s["T0"]}, s2, 3\ns_and_b32 {s["T1"]}, {s["W"]}, 1\ns_lshl1_add_u32 {s["T0"]}, {s["T0"]}, {s["T1"]}\ns_mul_i32 {s["T0"]}, {s["T0"]}, {172*128}\ns_mov_b32 {s["T2"]}, s38\ns_mov_b32 s38, {512*PITCH3}')
                else: A(f's_lshr_b32 {s["T0"]}, s2, 3\ns_lshl2_add_u32 {s["T0"]}, {s["T0"]}, {s["W"]}\ns_mul_i32 {s["T0"]}, {s["T0"]}, {86*128}')
                for q in range(3 if srd == 'W3' else 2): A(f'buffer_load_dword {self.vPv}, {self.v128}, {getattr(self, srd)}, {s["T0"]} offen sc1\ns_add_u32 {s["T0"]}, {s["T0"]}, 8192')
                A('@waitvm0')
                if srd == 'W3': A(f's_mov_b32 s38, {s["T2"]}')
            A(f's_mov_b32 {s["T0"]}, 60\nL_dly2:\ns_sub_u32 {s["T0"]}, {s["T0"]}, 1\ns_cmp_lg_u32 {s["T0"]}, 0\ns_cbranch_scc1 L_dly2')
        A.ext(self.visit('v2'))
        n_before = len(self.issued)
        if o['one_poll']: self.sync_wait(A, pa3, 1, self.mW16, o['b_aft2']); A('s_barrier')
        else: self.sync_wait(A, pa2, 1, '0xff', o['b_aft2'], Q.L if o['b_aft2'] else ())
        if o['b_aft2'] and not o['one_poll']: Q = Asm()
        inflight = self.issued[n_before:]
        self.stamp('sync2 done')
        self.mark34 = len(A.L)
        acc = [V.alloc(16, 2) for _ in range(6)]
        accK, accS = acc[0], acc[1]
        LATH, LATD, LATS, VS, WE, VC = o['LATH'], o['LATD'], o['LATS'], o['vslack'], o['WE'], o['VC']
        horder = []; hfirst = {}; hlast = {}
        for p in ops:
            if 'hk' in p:
                if p['hk'] not in hfirst: hfirst[p['hk']] = p['n']; horder.append(p['hk'])
                hlast[p['hk']] = p['n']
        first_use = {}
        for p in ops: first_use.setdefault(p['key'], p['n'])
        sp = V.alloc(8, 2)
        cc = V.alloc(2); c1, c3 = cc[0], cc[1]; iv2 = V.alloc(2); iv = iv2[0]; tt = V.alloc(8, 2); go = [V.alloc(4, 2), V.alloc(4, 2)]
        cs_last = {p['key'][0]: p['n'] for p in pre_ops + ops if p['k'] == 'c' and p['last']}
        I = lambda text, tag=None: [Ins(x, tag) for x in text.split('\n')]
        tagof = lambda k: f'{k[0]}_{k[1]}'
        stage_of = lambda i: 1 if i < 15 else 2 if i < 29 else 3 if i < 36 else 4
        rq = []; pairw = {}
        for q, hk in enumerate(horder):
            ty, i = hk
            if ty == 'g':
                sg = stage_of(i); k = i - (0, 15, 29, 36)[sg - 1]
                code = I(f's_add_u32 {sGl}, {sLo if sg == 1 else sLw}, {(0, WS_G, WS_H, WS_H + 8192)[sg - 1] + (k >> 2)*4096}') if k % 4 == 0 else []
                rq.append(dict(id=hk, dl=hfirst[hk], cost=VC, stage=min(sg, 3) if o['merge34'] else sg, lat=LATD if sg == 2 else LATH, code=code, srd=self.OUT if sg == 1 else self.WS, off=(k & 3)*1024))
                if o['PW'] and hk not in pairw and i < 42 and stage_of(i) == stage_of(i + 1): pairw[hk] = ('g', i + 1); pairw[('g', i + 1)] = None
            else:
                code = I(f's_add_u32 {sHl}, {sHl}, 4096') if q and q % 4 == 0 else []
                assert i >> 1 == q >> 2
                code += I(f'buffer_load_dwordx4 {HB[hk]}, {vHl[ty]}, {self.WS}, {sHl} offen offset:{(i & 1)*2048} sc1', tagof(hk))
                rq.append(dict(id=hk, dl=hfirst[hk], cost=VC, code=code))
                if o['PW'] and q >= 4 and q % 2 == 0: pairw[hk] = horder[q + 1]
        for k in range(1 if o['ymean'] else 2):
            rq.append(dict(id=('st', k), dl=last_op[0] - o.get('st_lead', 10), cost=VC, ev='Q', code=I(f'buffer_load_dwordx4 {sp.sub(4*k, 4)}, {self.vL16}, {self.WS}, {sSl} offen offset:{k*1024} sc1')))
        rq.sort(key=lambda r: r['dl'])
        K1 = -2*math.sqrt(2/math.pi)*LOG2E
        chA = []
        def cs_items(c):
            a = csacc[c]; full = c in ('F1', 'S2')
            off = {'F1': 0, 'H1': 2048, 'S2': 2048 + 128, 'S3': 256}[c]
            for ror in ((8,) if full else (8, 4)):
                for r in range(4): chA.append(('v', ('op', cs_last[c] + 2), I(f'v_add_f32_dpp {a[r]}, {a[r]}, {a[r]} row_ror:{ror} row_mask:0xf bank_mask:0xf'), None))
            L = Asm(); L(f's_mov_b64 exec, {"0x00ff00ff" if full else "0x000f000f"}'); L(f'ds_write_b128 {aCW}, {a} offset:{off}', 'wr' + c); L('s_mov_b64 exec, -1')
            chA.append(('d', None, L.L, 'wr' + c))
        def corr_items(u, cls):
            chA.append(('d', ('ev', ['bar_wr' + c for c in cls], 0), I(f'ds_read_b32 {cT[0]}, {aCR} offset:{u*64}\nds_read_b32 {cT[1]}, {aCR} offset:{u*64 + 1024}'), f'crd{u}'))
            for k, x in enumerate((f'v_add_f32 {cT[0]}, {cT[0]}, {cT[1]}', f'v_cvt_pk_bf16_f32 {cT[1]}, {cT[0]}, {cT[0]}', f'v_and_b32 {cT[1]}, 0xffff0000, {cT[1]}',
                                   f'v_sub_f32 {cT[0]}, {cT[0]}, {cT[1]}', f'v_cvt_pk_bf16_f32 {cA[0]}, {cT[1]}, {cT[0]}')):
                chA.append(('v', ('ev', [f'crd{u}'], 100), I(x), None))
            chA.append(('m', ('both', first_op[u], 'stats'), I(f'v_mfma_f32_32x32x16_bf16 {acc[u]}, {cA}, {cB}, {acc[u]}'), f'corr{u}'))
        first_op = {}
        for p in ops:
            if p['k'] == 'm': first_op.setdefault(p['u'], p['n'])
        ev = {}; arr = {}; evop = {}
        for x in Q.L: chA.append(('v', None, [x], None))
        if Q.L: chA[-1] = chA[-1][:3] + ('Q',)
        else: ev['Q'] = 0
        if o['ymean']: ev.update({f'corr{u}': 0 for u in range(6)})
        else:
            for c in sorted(('F1', 'H1'), key=cs_last.get): cs_items(c)
            corr_items(0, ('F1', 'H1')); corr_items(1, ('F1', 'H1'))
            cs_items('S2'); corr_items(2, ('F1', 'S2')); corr_items(3, ('F1', 'S2'))
            cs_items('S3'); corr_items(4, ('S2', 'S3')); corr_items(5, ('S2', 'S3'))
        chB = []; chC = []; chD = []; chP = []; vP = [self.vPv] + [V.alloc() for _ in range(3)]
        if o['ymean']: stc = (f'v_add_f32 {sp[0]}, {sp[0]}, {sp[1]}\nv_add_f32 {sp[2]}, {sp[2]}, {sp[3]}\nv_add_f32 {sp[1]}, {sp[0]}, {sp[2]}\nv_add_f32 {sp[0]}, {sp[0]}, {sp[2]}\nv_nop\nv_nop\n'
               f'v_permlane32_swap_b32 {sp[0]}, {sp[1]}\nv_add_f32 {sp[0]}, {sp[0]}, {sp[1]}\nv_fma_f32 {iv}, {sp[0]}, {self.sInv512}, {self.vEps}\n'
               f'v_rsq_f32 {sp[2]}, {iv}\nv_nop\nv_mul_f32 {c1}, {fhex(K1)}, {sp[2]}\nv_mul_f32 {sp[3]}, {sp[2]}, {sp[2]}\nv_mul_f32 {c3}, {fhex(0.044715)}, {c1}\nv_mul_f32 {c3}, {c3}, {sp[3]}')
        else: stc = (f'v_add_f32 {sp[0]}, {sp[0]}, {sp[2]}\nv_add_f32 {sp[1]}, {sp[1]}, {sp[3]}\nv_add_f32 {sp[4]}, {sp[4]}, {sp[6]}\nv_add_f32 {sp[5]}, {sp[5]}, {sp[7]}\n'
               f'v_add_f32 {sp[0]}, {sp[0]}, {sp[4]}\nv_add_f32 {sp[1]}, {sp[1]}, {sp[5]}\nv_mov_b32 {sp[2]}, {sp[0]}\nv_mov_b32 {sp[3]}, {sp[1]}\nv_nop\n'
               f'v_permlane32_swap_b32 {sp[0]}, {sp[2]}\nv_permlane32_swap_b32 {sp[1]}, {sp[3]}\nv_add_f32 {sp[0]}, {sp[0]}, {sp[2]}\nv_add_f32 {sp[1]}, {sp[1]}, {sp[3]}\n'
               f'v_mul_f32 {sp[0]}, {fhex(-1/512)}, {sp[0]}\nv_fma_f32 {sp[1]}, {sp[1]}, {self.sInv512}, {self.vEps}\nv_fma_f32 {iv}, -{sp[0]}, {sp[0]}, {sp[1]}\nv_max_f32 {iv}, {iv}, {self.vEps}\n'
               f'v_rsq_f32 {sp[2]}, {iv}\nv_cvt_pk_bf16_f32 {cB[0]}, {sp[0]}, {sp[0]}\nv_mul_f32 {c1}, {fhex(K1)}, {sp[2]}\nv_mul_f32 {sp[3]}, {sp[2]}, {sp[2]}\nv_mul_f32 {c3}, {fhex(0.044715)}, {c1}\nv_mul_f32 {c3}, {c3}, {sp[3]}')
        for x in I(stc): chB.append(('v', ('arr', ('st', 0 if o['ymean'] else 1)), [x], None))
        chB[-1] = chB[-1][:3] + ('stats',)
        pubs = {1: 1, 3: 2, 5: 3} if o['merge34'] else {1: 1, 3: 2, 4: 3, 5: 4}
        for u in range(6):
            a = acc[u]; out = go[u & 1]
            st = []
            for txt in ('v_mul_f32 {t}, {a}, {a}', 'v_fma_f32 {t}, {t}, {c3}, {c1}', 'v_mul_f32 {t}, {t}, {a}', 'v_exp_f32 {t}, {t}', 'v_mul_f32 {b}, {a}, {b}', 'v_fma_f32 {t}, {t}, {iv}, {iv}', 'v_rcp_f32 {t}, {t}', 'v_mul_f32 {b}, {b}, {t}'):
                st.append([txt.format(t=tt[v], a=a[v], b=a[8+v], c1=c1, c3=c3, iv=iv) for v in range(8)])
            seq = st[0] + st[1][:2] + st[2][:1]
            for v in range(8):
                if v + 2 < 8: seq.append(st[1][v+2])
                if v + 1 < 8: seq.append(st[2][v+1])
                seq.append(st[3][v])
            seq += [st[5][0]]
            for v in range(8):
                if v + 1 < 8: seq.append(st[5][v+1])
                seq += [st[4][v], st[6][v]]
            seq += st[7] + [f'v_cvt_pk_bf16_f32 {out[d]}, {a[8+2*d]}, {a[9+2*d]}' for d in range(4)]
            if u in o['pk_units']:
                P2 = lambda r, v: r.sub(2*v, 2)
                t_ = [P2(tt, v) for v in range(4)]; a2 = [P2(a, v) for v in range(4)]; b2 = [a.sub(8 + 2*v, 2) for v in range(4)]
                seq = [f'v_pk_mul_f32 {t_[v]}, {a2[v]}, {a2[v]}' for v in range(4)]
                seq += [f'v_pk_fma_f32 {t_[v]}, {t_[v]}, {cc}, {cc} op_sel:[0,1,0] op_sel_hi:[1,1,0]' for v in range(4)]
                seq += [f'v_pk_mul_f32 {t_[v]}, {t_[v]}, {a2[v]}' for v in range(4)] + st[3]
                seq += [f'v_pk_fma_f32 {t_[v]}, {t_[v]}, {iv2}, {iv2} op_sel_hi:[1,0,0]' for v in range(4)] + st[6]
                seq += [f'v_pk_mul_f32 {b2[v]}, {a2[v]}, {b2[v]}' for v in range(4)]
                seq += [f'v_pk_mul_f32 {b2[v]}, {b2[v]}, {t_[v]}' for v in range(4)]
                seq += [f'v_cvt_pk_bf16_f32 {out[d]}, {a[8+2*d]}, {a[9+2*d]}' for d in range(4)]
            for ln in seq: chB.append(('v', ('ev', [f'corr{u}', f'done{u}'], 56), I(ln), None, u))
            L = Asm()
            base = (sGo, sGa, sGb)[u >> 1]; add = (0, 16*KB, WS_G, WS_G + 16*KB, WS_H, WS_H + 8*KB)[u]
            if add: L(f's_add_u32 {sTs}, {base}, {add}')
            so = sTs if add else base
            if u in (2, 3): L(f'buffer_store_dwordx4 {out}, {self.vL16}, {self.WS}, {so} offen sc1', tag=f'gst{u}')
            else: self.store2(L, 'dwordx4', out, self.vL16, so, 0, f'gst{u}', self.OUT if u < 2 else None, wrap=True)
            chB.append(('s', {4: ('ev', ['stage1'], 0), 5: ('iss', ('g', 14))}.get(u), L.L, f'gst{u}', u))
            if u == o.get('res_after', 3):
                for d in range(8):
                    for x in I(f'v_lshlrev_b32 {accK[2*d]}, 16, {res[d]}\nv_and_b32 {accK[2*d+1]}, 0xffff0000, {res[d]}'): chB.append(('v', None, [x], None))
                chB[-1] = chB[-1][:3] + ('acc4',)
            if u in pubs:
                sg = pubs[u]; k = self.nlabel; self.nlabel += 1
                pm = self.mW16 if o['one_poll3'] else '0xffff'
                chC.append(('f', ('ev', [f'bar_gst{u}'], 0), self.signal(1 + sg), f'pub{sg}'))
                chP.append(('v', ('op', first4 + 2*(0, 15, 29, 36)[sg - 1] - o['plead'][sg - 1]), [], None))
                chP.append(('f', ('ev', [f'pub{sg}'], o['poll_after'][sg - 1]), I(f's_mov_b64 exec, {pm}\n{self.poll_ld(pa3, 1 + sg, vP[4 - sg])}\ns_mov_b64 exec, -1'), f'poll{sg}'))
                chD.append(('v', ('arr', f'poll{sg}'), I(f'v_cmp_eq_u32 vcc, 0, {vP[4 - sg]}\ns_and_b64 vcc, vcc, {pm}\ns_cbranch_vccnz L_late{k}\nL_back{k}:'), f'chk{sg}' if o['one_poll3'] else f'stage{sg}'))
                self.tail(f'L_late{k}:')
                if o['stamps']: self.tail(f's_add_u32 s97, s97, {(4 if o["one_poll3"] else 1) << (8*(sg - 1))}')
                self.poll_block(self.tail, pa3, 1 + sg, pm, vP[4 - sg]); self.tail(f's_branch L_back{k}')
        chW = []
        if o['wd_light']:
            nd = len(o['wd_light']); nl = -(-86 // nd); sWd = S.alloc(); mL = S.alloc(2); jk = V.alloc()
            X = Asm()
            X(f's_lshl1_add_u32 {sWd}, {s["G"]}, {s["PF"]}\ns_lshl2_add_u32 {sWd}, {sWd}, {s["W"]}\ns_mul_i32 {sWd}, {sWd}, {86*128}')
            chW += [('v', None, [x], None) for x in X.L]
            chW.append(('v', None, I(f's_cmp_ge_u32 {s["M"]}, 14\ns_cselect_b32 {mL[0]}, {hex(((1 << nl) - 1) & 0xffffffff)}, 0\ns_cselect_b32 {mL[1]}, {hex(((1 << nl) - 1) >> 32)}, 0'), None))
            for q, at_ in enumerate(o['wd_light']):
                c_ = I(f's_mov_b64 exec, {mL}\nbuffer_load_dword {jk}, {self.v128}, {self.WD}, {sWd} offen sc1\ns_mov_b64 exec, -1\ns_add_u32 {sWd}, {sWd}, {nl*128}')
                c_[1].defs = set()
                chW.append(('v', ('op', at_), c_, None))
        chE = []
        for k in self.issued: arr[k] = 0
        now = 0; vm_free = 0; last_arr = 0; mf_free = 0; n_done = -1; last_bar = 0; nbar = 0
        for k in inflight:
            last_arr += VC*(2 if k[0] in ('H1', 'S3') else 1); arr[k] = last_arr
        vm_free = max(0, last_arr - LATD)
        cur = []; freed = set(); est = {}; idle = 0; win = []; slot = {}; pool = list(GB); lastc = ['H']
        def emit(code):
            nonlocal now
            A.ext(code); now += 4*sum(max(cost(x), 1 if x.mn.startswith('@wait') else 0) + (2 if x.mn.startswith('s_cbranch') else 4 if x.text == ';dual_begin' else 0) for x in code)
        def vm_issue(idk, c, lat):
            nonlocal vm_free, last_arr
            st_ = max(vm_free, now); tot = c
            for (c_, a_) in reversed(win):
                tot += c_
                if tot > o['WIN']*VC: st_ = max(st_, a_); break
            vm_free = st_ + c
            last_arr = max(last_arr + c, st_ + lat); arr[idk] = last_arr; win.append((c, last_arr))
            self.trace.append((n_done, now, idk, last_arr))
        def ready_time(cond):
            if cond is None: return 0
            if cond[0] == 'op': return 0 if n_done >= cond[1] else None
            if cond[0] == 'both': return ev[cond[2]] + 8 if n_done >= cond[1] and cond[2] in ev else None
            if cond[0] == 'arr': return arr.get(cond[1])
            if cond[0] == 'iss': return 0 if cond[1] in arr else None
            if all(e in ev for e in cond[1]): return max(ev[e] for e in cond[1]) + cond[2]
            return None
        def pick_request():
            best = None
            for r in rq:
                if 'stage' in r and (f'stage{r["stage"]}' not in ev or not pool): break
                if 'ev' in r and r['ev'] not in ev: continue
                best = r; break
            if self.stream and self.free_blocks:
                dl = first_use[self.stream[0]] - LA - o['dma_lead']
                if best is not None and best.get('lat', LATH) == LATH and n_done >= o['hyst_from']: dl += o['hyst'] if lastc[0] == 'H' else -o['hyst']
                if best is None or dl < best['dl']:
                    lastc[0] = 'M'
                    key = self.stream[0]; c = VC*(2 if key[0] in ('H1', 'S3') else 1)
                    cur.extend([(key, c, LATD)] + self.dma_next()); return True
            if best is None: return False
            lastc[0] = 'H' if best.get('lat', LATH) == LATH else 'M'
            if 'stage' in best:
                slot[best['id']] = pool.pop(0)
                best['code'] = best['code'] + I(f'buffer_load_dwordx4 {slot[best["id"]]}, {self.vL16}, {best["srd"]}, {sGl} offen offset:{best["off"]} sc1', tagof(best['id']))
            rq.remove(best); cur.extend([(best['id'], best['cost'], best.get('lat', LATH))] + best['code'])
            return True
        def step_vm(prefix=False):
            if not cur:
                if vm_free > now + VS or not pick_request(): return False
                if prefix or len(cur) > 2:
                    emit(cur[1:-1]); del cur[1:-1]
                    if prefix: return True
                    step_chain(chB, 'v', 8) or step_chain(chA, 'v', 8)
            meta, code = cur; del cur[:]
            emit([code]); vm_issue(*meta); return True
        def step_chain(ch, kinds, room):
            if not ch or ch[0][0] not in kinds: return False
            k, cond, code, e = ch[0][:4]; t = ready_time(cond)
            if t is None or t > now: return False
            if k == 'v' and 4*sum(cost(x) for x in code) > room + 3 and len(code) == 1: return False
            ch.pop(0); emit(code)
            if k == 's': vm_issue(e, VC, LATS if e in ('gst2', 'gst3') else LATH)
            if k == 'f': vm_issue(e, 20, LATH)
            if k in 'sf' and o['ackl']: arr[e] = min(arr[e], now + o['ackl'][2 if k == 'f' else 1 if e in ('gst2', 'gst3') else 0])
            if e: ev[e] = now; evop[e] = n_done
            return True
        def bar_need(n):
            if n + LA < N and ops[n + LA]['key'] not in visible:
                return {ops[q_]['key'] for q_ in range(n + LA, min(N, n + LA + o['VMIN']))}
            for u_ in pubs:
                if f'bar_gst{u_}' not in ev and arr.get(f'gst{u_}', 1 << 30) + o['bwait'][pubs[u_] - 1] <= now: return set()
                if f'stage{pubs[u_]}' not in ev and ev.get(f'chk{pubs[u_]}', 1 << 30) + o['bwait'][pubs[u_] - 1] <= now: return set()
            if n - last_bar < o['BMIN']: return None
            nfree = sum(1 for k, lu in last_use.items() if lu < n and k not in freed and k in self.loc) + (0 if 'res' in freed else 2)
            if self.stream and len(self.free_blocks) <= o.get('FLOW', 1) and nfree >= min(o['FMIN'], len(self.stream)): return set()
            if chA and chA[0][1] and chA[0][1][0] == 'ev' and chA[0][1][1][0].startswith('bar_wr') and ready_time(chA[0][1]) is None and now >= max(ev.get(e[4:], 0) for e in chA[0][1][1]) + 60: return set()
            if not self.stream and 'xb' not in ev and n >= N - 2*TL - 8: return set()
            return None
        def op_ready(n):
            p = ops[n]; t = mf_free
            k = p.get('hk')
            if k is not None:
                k = pairw.get(k) or k
                if k not in arr: return None
                t = max(t, arr[k])
            if n == first4 and 'acc4' not in ev: return None
            for k in bar_need(n) or ():
                if k not in arr: return None
                t = max(t, arr[k])
            return t
        def do_barrier(n, need):
            nonlocal now, last_bar, nbar, chE
            L = Asm()
            for c in ('F1', 'H1', 'S2', 'S3'):
                if 'wr' + c in ev and 'bar_wr' + c not in ev: L(f'@waitlg wr{c}'); ev['bar_wr' + c] = now
            for u_ in pubs:
                if f'bar_gst{u_}' not in ev and arr.get(f'gst{u_}', 1 << 30) <= now: L(f'@waitvm gst{u_}'); ev[f'bar_gst{u_}'] = now
                if f'stage{pubs[u_]}' not in ev and f'chk{pubs[u_]}' in ev: ev[f'stage{pubs[u_]}'] = now; evop[f'stage{pubs[u_]}'] = n_done
            vis = [k for k in self.issued if k not in visible and (k in need or arr[k] <= now - o['vmargin'])]
            if vis:
                newest = max(vis, key=self.issued.index)
                visible.update(self.issued[:self.issued.index(newest) + 1]); L(f'@waitvm {tagof(newest)}')
            L('s_barrier'); self.trace.append((n_done, now, 'BAR', newest if vis else None)); emit(L.L); now += o['barc'] - 8; last_bar = n; nbar += 1
            for k, lu in last_use.items():
                if lu < n and k not in freed and k in self.loc:
                    freed.add(k); self.free_blocks.append(self.loc[k])
            if 'res' not in freed and n > 0:
                freed.add('res'); self.free_blocks += [self.resb, self.resb + 1]
            if not self.stream and 'xb' not in ev:
                fb = sorted(self.free_blocks)
                xb = next((b for b in fb if all(b + k in fb for k in range(4))), None)
                if xb is not None:
                    ev['xb'] = now
                    X = Asm()
                    X(f's_lshl_b32 {s["T0"]}, {s["W"]}, 12\ns_add_u32 {s["T0"]}, {s["T0"]}, {xb*BLK}\nv_add_u32 {t1}, {s["T0"]}, {self.vL16}')
                    X(f's_xor_b32 {s["T1"]}, {s["W"]}, 2\ns_lshl_b32 {s["T1"]}, {s["T1"]}, 12\ns_add_u32 {s["T1"]}, {s["T1"]}, {xb*BLK}\nv_add_u32 {t2}, {s["T1"]}, {self.vL16}')
                    if o['quad_out']: X(f'v_and_b32 {t3}, 28, {vL}\nv_lshrrev_b32 {aRes}, 5, {vL}\nv_add_lshl_u32 {t3}, {t3}, {aRes}, 10\nv_and_b32 {aRes}, 3, {vL}\nv_lshl_add_u32 {t3}, {aRes}, 4, {t3}')
                    else: X(f'v_and_b32 {t3}, 31, {vL}\nv_lshlrev_b32 {t3}, 10, {t3}\nv_lshrrev_b32 {aRes}, 5, {vL}\nv_lshl_add_u32 {t3}, {aRes}, 5, {t3}')
                    X(f's_lshl2_add_u32 {s["T0"]}, {s["G"]}, {sT4}\ns_lshl_b32 {s["T0"]}, {s["T0"]}, 15\ns_add_u32 {s["T0"]}, {s["T0"]}, {self.sC128}\ns_lshl_b32 {s["T1"]}, {sKH}, 6\ns_add_u32 {s["T0"]}, {s["T0"]}, {s["T1"]}')
                    chE += [('v', None, [x], None) for x in X.L]
                    chE += [('d', ('op', min(N - 1, last_op[7] + 2)), I(f'ds_write_b128 {t1}, {accS.sub(4*k, 4)} offset:{k*1024}'), None) for k in range(4)]
        for n in range(N):
            p = ops[n]
            guard = 0
            while True:
                guard += 1; assert guard < 100000, f'scheduler stuck at op {n}'
                slack = 0
                if chB and ready_time(chB[0][1]) is not None:
                    u_ = chB[0][4] if len(chB[0]) > 4 else None
                    slack = 4*(o['budu'].get(str(u_), o['bud']) - 6)
                    if u_ in o['pk_units'] and ready_time(chB[0][1]) <= now: slack = 4000
                t = op_ready(n)
                if t is not None and t == mf_free and bar_need(n) is not None: t -= o['barc']
                if t is not None and now >= t + slack: break
                room = (t + slack - now) if t is not None else 1000
                if chA and chA[0][0] == 'm' and now >= mf_free - 4:
                    t0_ = max(now, mf_free)
                    if step_chain(chA, 'm', 0): now = t0_ + 8; mf_free = t0_ + 32; continue
                if room > 100 and bar_need(n) == set(): do_barrier(n, set()); continue
                if room > 40 and step_vm(): continue
                if step_chain(chC, 'fv', 1000) or step_chain(chP, 'fv', 1000) or step_chain(chD, 'fv', 1000) or step_chain(chW, 'v', 1000): continue
                if step_chain(chA, 'v' if room <= 40 else 'vd', room): continue
                if step_chain(chB, 'vs', room) or step_chain(chE, 'v', room): continue
                if t is not None and now >= t: break
                now += 4; idle += 4
            if chA and chA[0][0] == 'm' and bar_need(n) is None:
                t0_ = max(now, mf_free)
                if step_chain(chA, 'm', 0):
                    now = t0_ + 8; mf_free = t0_ + 32
                    while now < mf_free and (step_chain(chA, 'vd', mf_free - now) or step_vm() or step_chain(chB, 'vs', mf_free - now)): pass
            need = bar_need(n)
            if need is not None: do_barrier(n, need)
            if n == first4: self.stamp('p3 mfma done'); est['p3'] = now; est['idle3'] = idle
            elif o.get('fine') and n % o['fine'] == 0 and n and o.get('ffrom', 0) <= n <= o.get('fto', 999): self.stamp(f'op {n}'); est[n] = now
            if pairw.get(p.get('hk')) and hfirst[p['hk']] == n: A(f'@waitvm {tagof(pairw[p["hk"]])}')
            if p.get('hk') and hfirst[p['hk']] == n and pairw.get(p['hk'], 1): now += 4
            t0_ = now = max(now, mf_free)
            A.L.append(mfma(p)); n_done = n; now += o.get('mfc', 6)
            mf_free = t0_ + (32 if p['k'] == 'm' else 16)
            if p['k'] == 'm' and last_op[p['u']] == n: ev[f'done{p["u"]}'] = now
            if n and 'hk' in ops[n - 1] and hlast[ops[n - 1]['hk']] == n - 1: pool.append(ops[n - 1]['B'] or slot[ops[n - 1]['hk']])
            if (n + 1) % WE == 0 and n + 1 < N: emit([Ins(f'@waitlg r{min(N - 1, n + WE)}')])
            step_vm(prefix=True)
            now = max(now, t0_ + 8)
            if n + LA < N: emit(reads(ops[n + LA]))
            if cur: step_vm()
            else: step_chain(chA, 'd', 0) or step_chain(chE, 'd', 0) or step_chain(chC, 'f', 0) or step_chain(chP, 'fv', 1000) or step_chain(chD, 'fv', 1000)
            if n + LA + 1 < N and ops[n + LA + 1]['key'] in self.loc: emit(ops[n + LA + 1]['ad'].need(self.loc[ops[n + LA + 1]['key']] >> 4))
        if o.get('wb'):
            where, sel = o['wb']
            W = Asm()
            if sel == 'one': W(f's_lshr_b32 {s["T2"]}, s2, 3\ns_lshl2_add_u32 {s["T2"]}, {s["T2"]}, {s["W"]}\ns_cmp_lg_u32 {s["T2"]}, 60')
            elif sel == 'grp': W(f's_lshl2_add_u32 {s["T2"]}, {s["M"]}, {s["W"]}\ns_cmp_lg_u32 {s["T2"]}, 60')
            else: W(f's_cmp_lg_u32 {s["W"]}, 0')
            W('s_cbranch_scc1 L_nowb\n@raw 1\nbuffer_wbl2 sc1\n@raw 0\nL_nowb:')
            if where == 'end': self.wb_end = W.L
            else:
                k = max(q for q, x in enumerate(A.L) if x.tag == where)
                assert where == 'g_42'
                self.wb_mid = W.L
        assert 'xb' in ev
        for it in chE: emit(it[2])
        assert not (chA or chB or chC or chD or chP or chW or rq or cur or self.stream), (len(chA), len(chB), len(chC), len(rq), len(self.stream))
        est['p4'] = now; est['idle'] = idle
        self.info.update(N=N, first4=first4, nbar=nbar, npre=len(pre_keys), est=est, evop={k: v for k, v in evop.items() if k[:3] in ('cor', 'gst', 'sta')})
        dbg = o.get('dbg', '')
        if dbg:
            new = []; nv = 0
            for x in A.L[self.mark34:]:
                if 'W' in dbg:
                    if x.kind in ('mfma', 'ds') or x.mn in ('s_barrier', '@waitvm', '@waitlg') or x.mn.startswith('s_cbranch') or (x.kind == 'valu' and ('_f32' in x.mn or 'cmp' in x.mn or 'permlane' in x.mn)): continue
                    if x.kind == 'vmem':
                        k_ = (x.tag or 'x_').split('_')[0]
                        cls = {'F1': '3', 'H1': '3', 'S2': '3', 'S3': '3', 'W4': '4', 'F': 'h', 'H': 'h', 'g': 'g'}.get(k_, 's')
                        sub = 'b' if x.tag in ('gst2', 'gst3') else 'a' if (x.tag or '').startswith('gst') else 'f' if x.tag == 'flag' else 'p' if x.mn == 'buffer_load_dword' else 't'
                        if cls == 'g' and 15 <= int(x.tag[2:]) < 29 and '2' in dbg: continue
                        if cls in dbg or (cls == 's' and sub in dbg): continue
                        x.defs = set(); x.tag = f'z{nv}'; nv += 1; new.append(x)
                        if nv > 30: new.append(Ins(f'@waitvm z{nv - 30}'))
                        continue
                if 'K' in dbg and x.kind == 'vmem' and (x.tag or '').startswith('W4_') and int(x.tag[3:]) % 2 == 0 and x.tag != 'W4_42':
                    self.dropped.add(x.tag); continue
                if 'M' in dbg and x.kind == 'mfma':
                    y = Ins('s_nop 0'); y.uses = set(x.srcAB); new.append(y); continue
                if 'V' in dbg and x.kind == 'valu' and '_f32' in x.mn: continue
                if 'R' in dbg and x.kind == 'ds' and x.mn.startswith('ds_read_b64_tr'):
                    self.dropped.add(x.tag); continue
                if 'D' in dbg and x.kind == 'vmem' and x.arg == 'dma':
                    self.dropped.add(x.tag); continue
                if 'L' in dbg and x.kind == 'vmem' and x.mn == 'buffer_load_dwordx4' and x.arg != 'dma':
                    self.dropped.add(x.tag); continue
                if 'T' in dbg and x.kind == 'vmem' and x.mn == 'buffer_load_dword' and not x.defs: continue
                if 'B' in dbg and x.mn == 's_barrier': continue
                if x.kind == 'pseudo' and x.mn in ('@waitvm', '@waitlg') and x.arg[0] in self.dropped: continue
                new.append(x)
            if 'W' in dbg: new.append(Ins('@waitvm0'))
            A.L[self.mark34:] = new
        self.stamp('p4 mfma done')
        A.ext(getattr(self, 'wb_mid', []))
        A('@waitlg0\ns_barrier')
        rx = acc[2]
        for k in range(4): A(f'ds_read_b128 {rx.sub(4*k, 4)}, {t2} offset:{k*1024}')
        if o['quad_out']: A('s_mov_b32 vcc_lo, 0x55555555\ns_mov_b32 vcc_hi, 0x55555555')
        for h in range(2):
            for d in range(4*h, 4*h + 4): A(f'v_pk_add_f32 {accK.sub(2*d, 2)}, {accK.sub(2*d, 2)}, {rx.sub(2*d, 2)}')
            for d in range(4): A(f'v_cvt_pk_bf16_f32 {go[h][d]}, {accK[8*h + 2*d]}, {accK[8*h + 2*d + 1]}')
            if not o['quad_out']: A(f'buffer_store_dwordx4 {go[h]}, {t3}, {self.OUT}, {s["T0"]} offen offset:{16*h} {o["out_aux"]}')
        if o['quad_out']:
            R0, R1, T = go[0], go[1], tt.sub(0, 4)
            dp = lambda dst, a_, b_, qp: f'v_cndmask_b32_dpp {dst}, {a_}, {b_}, vcc quad_perm:{qp} row_mask:0xf bank_mask:0xf'
            for d in range(4): A(dp(T[d], R1[d], R0[d], '[1,0,3,2]'))
            A('s_not_b64 vcc, vcc')
            for d in range(4): A(dp(R1[d], R0[d], R1[d], '[1,0,3,2]'))
            A('s_mov_b32 vcc_lo, 0x33333333\ns_mov_b32 vcc_hi, 0x33333333')
            for d in range(4): A(f'v_permlane32_swap_b32 {T[d]}, {R1[d]}')
            for d in range(4): A(dp(R0[d], R1[d], T[d], '[2,3,0,1]'))
            A('s_not_b64 vcc, vcc')
            A(f'buffer_store_dwordx4 {R0}, {t3}, {self.OUT}, {s["T0"]} offen {o["out_aux"]}')
            for d in range(4): A(dp(R1[d], T[d], R1[d], '[2,3,0,1]'))
            A(f'buffer_store_dwordx4 {R1}, {t3}, {self.OUT}, {s["T0"]} offen offset:2048 {o["out_aux"]}')
        A.ext(getattr(self, 'wb_end', []))
        self.stamp('out stored')

    def visit(self, name):
        if name not in (self.o['visit'] or {}): return []
        L = Asm()
        L('s_mov_b64 exec, 0')
        for k in range(len(self.o['visit'][name])): L(f's_cmp_eq_u32 {self.s["W"]}, {k}\ns_cbranch_scc1 L_vis_{name}_{k}')
        L(f'L_ret_{name}:\ns_mov_b64 exec, -1')
        return L.L

    def place_stubs(self, L):
        import subprocess, re
        txt = '.amdgcn_target "amdgcn-amd-amdhsa--gfx950"\n.text\n' + '\n'.join(x.text for x in L if x.kind != 'dir') + '\nL_code_end:\n'
        txt += ''.join(f'L_vis_{n}_{k}:\n' for n, ps in self.o['visit'].items() for k in range(len(ps)))
        open('_sz.s', 'w').write(txt)
        subprocess.run(['clang', '-x', 'assembler', '-target', 'amdgcn-amd-amdhsa', '-mcpu=gfx950', '-c', '_sz.s', '-o', '_sz.o'], check=True)
        d = subprocess.run(['llvm-objdump', '-d', '--mcpu=gfx950', '_sz.o'], capture_output=True, text=True).stdout
        sizes = [4*len(m.group(1).split()) for m in re.finditer(r'// [0-9A-F]{12}: ([0-9A-F ]+)', d)]
        real = [x for x in L if x.kind not in ('dir', 'label')]
        assert len(sizes) == len(real), (len(sizes), len(real))
        size = {id(x): z for x, z in zip(real, sizes)}
        owner = {p: n for n, ps in self.o['visit'].items() for p in ps}
        end = max(i for i, x in enumerate(L) if x.text == 'L_main_end:')
        out = []; addr = None; page = 0; stubs = {}; full = True
        EX = {('s', 126), ('s', 127)}
        for i, x in enumerate(L):
            if x.text == 'L_body:': addr = 0; self.info['pre_bytes'] = sum(size.get(id(y), 0) for y in L[:i])
            if addr is not None and x.kind not in ('dir', 'label') and i < end:
                if addr >= page*4096 and full:
                    if page in owner:
                        stubs.setdefault(owner[page], []).append(len(out)); out.append(None); addr += 4
                    page += 1
                addr += size[id(x)]
                if x.defs & EX: full = x.mn.startswith('s_mov') and x.text.endswith(', -1')
            out.append(x)
        res = []
        where = {}
        for n in self.o['visit']:
            for k, pos in enumerate(stubs.get(n, [])): where[pos] = (n, k, len(stubs[n]))
        for i, x in enumerate(out):
            if x is None:
                n, k, tot = where[i]
                res += [Ins(f'L_vis_{n}_{k}:'), Ins(f's_cbranch_execz L_ret_{n}')]
            else: res.append(x)
        for n in self.o['visit']:
            for k in range(len(stubs.get(n, [])), 4): res = [Ins('s_nop 0') if x.text == f's_cbranch_scc1 L_vis_{n}_{k}' else x for x in res]
        self.info['pages'] = page
        return res

    def finish(self):
        A, s, o = self.A, self.s, self.o
        if o['stamps']:
            A('@waitvm0')
            self.stamp('end')
            k = self.nstamp - 1
            A(f'@raw 1\nv_writelane_b32 {self.vstamp}, s96, 59\nv_writelane_b32 {self.vstamp}, s97, 60\nv_writelane_b32 {self.vstamp}, s98, 61\ns_memrealtime s[98:99]\ns_waitcnt lgkmcnt(0)\nv_writelane_b32 {self.vstamp}, s98, 62\nv_writelane_b32 {self.vstamp}, {self.sstamp[2*(k % 2)]}, {k}\nv_writelane_b32 {self.vstamp}, s100, 63\n@raw 0')
            A(f's_lshl_b32 {s["T0"]}, s2, 10\ns_lshl_b32 {s["T1"]}, {s["W"]}, 8\ns_add_u32 {s["T0"]}, {s["T0"]}, {s["T1"]}\ns_add_u32 {s["T0"]}, {s["T0"]}, {o["ws_base"] + WS_TS}')
            A(f'v_lshlrev_b32 {self.t1}, 2, {self.vL}\nbuffer_store_dword {self.vstamp}, {self.t1}, {self.WS}, {s["T0"]} offen')
        if o.get('pad_to'):
            A(f'@raw 1\ns_waitcnt vmcnt(0)\nL_padloop:\n{o.get("pad_clk", "s_memrealtime")} s[98:99]\ns_waitcnt lgkmcnt(0)\ns_sub_u32 s98, s98, s100\ns_cmp_lt_u32 s98, {o["pad_to"]}\ns_cbranch_scc1 L_padloop\n@raw 0')
        A('L_main_end:\ns_endpgm')

    def build(self):
        self.phase1(); self.phase2(); self.phase34(); self.finish()
        L = resolve_waits(self.A.L)
        L, nn = pad_hazards(L)
        L, T2 = self.expand_dual(L)
        T = [x for x in self.tail.L if x.kind != 'pseudo'] + T2
        if self.o['visit']: L = self.place_stubs(L + T); T = []
        body = '\n'.join(('' if x.kind == 'label' else '    ') + x.text for x in L + T)
        hdr = open('cdna_kernels/' + NAME + '.s.ref').read().split('; Override launch')[0]
        txt = hdr + f'; @launch grid=(256,1,1) block=(256,1,1) lds=163840\n.amdgcn_target "amdgcn-amd-amdhsa--gfx950"\n.text\n.globl {NAME}_kernel\n.p2align 8\n.type {NAME}_kernel,@function\n{NAME}_kernel:\n'
        txt += body + '\n    s_endpgm\nL_code_end:\n'
        txt += f'.section .rodata,"a"\n.p2align 6\n.amdhsa_kernel {NAME}_kernel\n  .amdhsa_next_free_vgpr 512\n  .amdhsa_next_free_sgpr 102\n  .amdhsa_accum_offset 256\n  .amdhsa_group_segment_fixed_size 0\n  .amdhsa_kernarg_size 80\n  .amdhsa_user_sgpr_count 2\n  .amdhsa_user_sgpr_kernarg_segment_ptr 1\n  .amdhsa_system_sgpr_workgroup_id_x 1\n  .amdhsa_float_denorm_mode_32 3\n.end_amdhsa_kernel\n'
        self.info.update(ninstr=len(L), nops=nn, vmax=self.V.hi, amax=self.AG.hi, smax=self.S.hi)
        return txt

if __name__ == '__main__':
    import json
    kw = json.loads(sys.argv[2]) if len(sys.argv) > 2 else {}
    G = Gen(**kw); txt = G.build()
    open(sys.argv[1], 'w').write(txt)
    print(G.info)
    if kw.get('trace'):
        for t in G.trace: print(t)
```

```python
import sys, math, struct
from asmlib import *

NAME = 'sequential_preLN__sliding_local_dilated__geglu_ffn__prompt'
KB = 1024
WS_H, WS_ST, WS_FL, WS_G, WS_O = 0, 128*KB, 136*KB, 256*KB, 640*KB
FL_SLOW = 2*KB
WS_R = 768*KB
WS_TS = 16 << 20
WS_SIZE = 17 << 20
PITCH3 = 2752
BLK = 4096
L_HALO = 0
L_X = 4 * BLK
L_W = 10 * BLK
L_SCR = 39 * BLK
SCR_TB = L_SCR
SCR_HP = L_SCR + 1280
SCR_R = L_SCR + 1792
SCR_CS = L_SCR
def f2u(x): return struct.unpack('<I', struct.pack('<f', x))[0]
def fhex(x): return hex(f2u(x))
LOG2E = 1.4426950408889634

DEF = dict(mirror=True, mix23=False, clean=False, nt_tags=('gst4', 'gst5'), wd_light=None, ackl=(500, 850, 500), st_lead=0, w2pre0=99, b_aft1=0, b_aft2=3, ymean=True, cen_rd=0, cen_ck=160, selby='x', xrot=True, sp1=14, perm3=True, hyst=0, hyst_from=150, quad_out='lds', out_aux='nt', one_poll=True, one_poll3=True, bwait=(100, 0, 0, 0), merge34=False, pk_units=[5], budu={'2': 8, '3': 8, '4': 10}, khalf=False, c1_from=110, sp0b=10, v0_at=-2, salu16=1, minlg_until=6, ktab=[list(range(8))]*4, b_pre1=4, b_pre2=4, topup=8, n1a=0, n1b=7, HS=6, k0=7, vgap0=2, vgap=3, cs_lead={'S2': (16, 1), 'S3': (20, 2)}, plead=(99, 99, 99, 99), TL=4, cs_pre=24, q_early=False, LATH=380, LATD=580, LATS=700, WE=4, VC=72, PW=True, poll_after=(900, 900, 800, 800), WIN=99, dma_lead=16, VMIN=10, BMIN=10, FMIN=5, barc=32, vmargin=300, visit={'v0': [1, 2, 3], 'v1': [4, 5, 6]}, jump_at=72,
           stamps=False, order='pair', BI=16, LA=7, GLA=8, NG=20, NR=12, bud=7, b_epi=0, b_post1=4, b_o=5, b_post2=4,
           pub_delay=10, poll_lead=8, force_slow=False, w2pre=7, LO=5, HL=5, sp0=2, g_sc1=False, o_in_ws=False,
           pf={'q3': 'c1', 'o3': 2, 'o': 4, 'w3': 4, 'h': 4, 'wd': 4}, vslack=200, w2a=0, w2b=3, rot2=0, rot3=0, ws_base=0, n_stats=56, gt_at=40)

def cost(x):
    if x.kind in ('pseudo', 'label', 'dir'): return 0
    if x.is_trans() or x.mn.startswith('v_permlane') or x.kind == 'mfma': return 2
    return 1

def safe_points(code):
    ok = []; exec_part = False
    EX = {('s', 126), ('s', 127)}
    n = len(code)
    for i in range(n + 1):
        scc_live = False
        for k in range(i, n):
            x = code[k]
            if x.kind == 'label': scc_live = True; break
            if x.mn.startswith('s_cselect') or x.mn.startswith('s_cbranch') or x.mn.startswith('s_addc'): scc_live = True; break
            if x.kind == 'salu' and not x.mn.startswith(('s_mov', 's_mul', 's_nop', 's_waitcnt', 's_barrier', 's_getreg')): break
        for k in range(i, n):
            x = code[k]
            if x.kind == 'vmem' and x.arg == 'dma': scc_live = True
            if scc_live or (('s', 124) in x.defs and ('s', 124) not in x.uses): break
        if not exec_part and not scc_live: ok.append(i)
        if i < n and code[i].defs & EX:
            exec_part = not (code[i].mn.startswith('s_mov') and code[i].text.endswith(', -1'))
    return ok

def sprinkle(code, groups, spacing, start=0):
    code = list(code.L if isinstance(code, Asm) else code); groups = list(groups)
    ok = set(safe_points(code)); out = []; since = spacing - start
    for i, x in enumerate(code):
        if groups and since >= spacing and i in ok:
            g = groups.pop(0); since = 0
            if len(g) == 2 and g[1].arg == 'dma' and x.kind in ('valu', 'ds') and i + 1 in ok:
                out += [g[0], x, g[1]]; continue
            out += g
        out.append(x); since += cost(x)
    for g in groups: out += g
    return out

class Gen:
    def __init__(self, **kw):
        self.o = dict(DEF); self.o.update(kw)
        self.A = Asm(); self.tail = Asm()
        self.V = RegAlloc('v', 1, 254); self.AG = RegAlloc('a', 0, 256); self.S = RegAlloc('s', 60, 96)
        self.nstamp = 0; self.stamp_names = []
        self.nlabel = 0
        self.free_blocks = list(range(28, 39))
        self.loc = {}; self.issued = []
        st = [('W2', i) for i in range(16)]
        for q in range(8): st += [('F1', 2*q), ('H1', q), ('F1', 2*q + 1)]
        if self.o['mix23']:
            for q in range(8): st += [('S2', 2*q), ('S2', 2*q + 1), ('S3', q)]
        else: st += [('S2', i) for i in range(16)] + [('S3', q) for q in range(8)]
        st += [('W4', i) for i in range(43)]
        self.stream = st
        self.info = {}; self.dropped = set(); self.trace = []

    def stamp(self, name, A=None):
        if not self.o['stamps'] or (self.o['stamps'] == 'min' and name != 'end'): return
        A = A if A is not None else self.A
        k = self.nstamp
        A(f'@raw 1\n{self.o.get("clk", "s_memtime")} {self.sstamp.sub(2*(k % 2), 2)}')
        if k: A(f'v_writelane_b32 {self.vstamp}, {self.sstamp[2*((k-1) % 2)]}, {k-1}')
        A('@raw 0')
        self.stamp_names.append(name); self.nstamp += 1

    def srd(self, A, b, lo, size):
        A(f's_mov_b32 s{b}, s{lo}\ns_mov_b32 s{b+1}, s{lo+1}\ns_mov_b32 s{b+2}, {size}\ns_mov_b32 s{b+3}, 0x20000')

    def store2(self, A, w, data, voff, soff, off, tag, srd=None, wrap=False, nt=False):
        assert off < 4096
        o = f' offset:{off}' if off else ''
        v = f'{voff}, ' if voff is not None else 'off, '
        e = ' offen' if voff is not None else ''
        if wrap: A(';dual_begin')
        A(f'buffer_store_{w} {data}, {v}{srd or self.WS}, {soff}{e}{o}' + (' nt' if nt or tag in self.o['nt_tags'] else ''), tag=tag)
        if wrap: A(';dual_end')

    def expand_dual(self, L):
        out = []; tail = []; k = 0; inside = False
        for x in L:
            if x.text == ';dual_begin':
                assert not inside; inside = True
                out += [Ins(f's_cmp_lg_u32 {self.sMode}, 0'), Ins(f's_cbranch_scc1 L_wt{k}')]; tail.append(Ins(f'L_wt{k}:'))
            elif x.text == ';dual_end':
                assert inside; inside = False
                out.append(Ins(f'L_wtb{k}:')); tail.append(Ins(f's_branch L_wtb{k}')); k += 1
            else:
                out.append(x)
                if inside:
                    assert x.kind != 'label'
                    tail.append(Ins(x.text.replace(' nt', '') + ' sc1') if x.mn.startswith('buffer_store') else Ins(x.text))
        return out, tail

    def signal(self, kind):
        L = Asm()
        L(f's_mov_b64 exec, {self.mW1}')
        self.store2(L, 'dword', self.vOne, None, self.sFme, kind*128, 'flag', wrap=True)
        L('s_mov_b64 exec, -1')
        return L.L

    def poll_ld(self, addr, kind, pv): return f'buffer_load_dword {pv}, {addr}, {self.WS}, {self.s["FL"]} offen offset:{kind*128} sc1'

    def poll_block(self, A, addr, kind, mask, pv=None):
        pv = pv or self.vPv; s = self.s; n = self.nlabel; self.nlabel += 1
        A(f's_mov_b64 exec, {mask}\ns_mov_b32 {s["T3"]}, 0x20000\n@raw 1\nL_poll{n}:\n{self.poll_ld(addr, kind, pv)}\ns_waitcnt vmcnt(0)')
        A(f'v_cmp_eq_u32 vcc, 0, {pv}\ns_sub_u32 {s["T3"]}, {s["T3"]}, 1\ns_cbranch_scc1 L_pd{n}\ns_cbranch_vccnz L_poll{n}\nL_pd{n}:\n@raw 0\ns_mov_b64 exec, -1')

    def sync_wait(self, A, addr, kind, mask, n_aft, filler=()):
        if not n_aft:
            A.ext(filler); self.poll_block(A, addr, kind, mask); A('@drained_vm'); return
        k = self.nlabel; self.nlabel += 1
        A(f's_mov_b64 exec, {mask}\n{self.poll_ld(addr, kind, self.vPv)}\ns_mov_b64 exec, -1')
        A.ext(sprinkle(list(filler), self.dmas(n_aft), 8))
        A(f'v_cmp_eq_u32 vcc, 0, {self.vPv}\ns_and_b64 vcc, vcc, {mask}\ns_cbranch_vccnz L_late{k}\nL_back{k}:')
        self.tail(f'L_late{k}:')
        if self.o['stamps']: self.tail(f's_add_u32 s96, s96, {1 << (8*kind)}')
        self.poll_block(self.tail, addr, kind, mask); self.tail(f's_branch L_back{k}')

    @staticmethod
    def p4_unit(i):
        if i < 15: return 0, 6*i
        if i < 29: return 0, 6*(i - 15) + 2
        if i < 36: return 1, 12*(i - 29) + 4
        return 1, 12*(i - 36) + 5

    def dma_cost(self): return 138 if self.stream and self.stream[0][0] in ('H1', 'S3') else 69

    def dma_next(self):
        if not self.stream or not self.free_blocks: return None
        key = self.stream.pop(0); b = self.free_blocks.pop(0)
        self.loc[key] = b; self.issued.append(key)
        s, D = self.s, self.sD; kind, i = key; tag = f'{kind}_{i}'
        if kind == 'W2':
            assert 23 <= b <= 38
            pre = [f's_add_u32 {D}, {self.sC128}, {i << 15}'] if i % 2 == 0 else []
            ld = f'buffer_load_dwordx4 {self.vW2b if i & 1 else self.vW2}, {self.WO}, {D} offen lds'
        elif kind in ('F1', 'S2', 'H1', 'S3'):
            full = kind in ('F1', 'S2')
            cp = i >> 1 if full else i
            pre = []
            if key == ('F1', 0): pre.append(f's_mov_b32 s38, {self.sN3[0]}')
            if cp and cp - 1 not in self.sCP:
                self.sCP[cp - 1] = self.S.alloc(); pre.append(f's_mov_b32 {self.sCP[cp - 1]}, {cp*64*PITCH3}')
            if key == ('S2', 0): pre += [f's_mov_b32 s38, {self.sN3[1]}', f'v_add_u32 {self.vF[0]}, {self.sDl}, {self.vF[0]}', f'v_add_u32 {self.vF[1]}, {self.sDl}, {self.vF[1]}']
            if key == ('S3', 0):
                if self.o['mirror']: pre += [f's_lshl1_add_u32 {self.sD}, {self.sDl}, {hex(-3*PITCH3 & 0xffffffff)}', f'v_add_u32 {self.vH}, {self.sD}, {self.vH}']
                else: pre += [f's_sub_u32 {self.sD}, 192, {self.sDl}', f'v_add_u32 {self.vH}, {self.sD}, {self.vH}']
            ld = f'buffer_load_dwordx4 {self.vF[i & 1] if full else self.vH}, {self.W3}, {self.sCP[cp - 1] if cp else 0} offen lds'
        else:
            sel, u = self.p4_unit(i)
            k = (i if i < 15 else i - 15) & 3 if sel == 0 else 2*((i - 29 if i < 36 else i - 36) & 1)
            pre = [f's_add_u32 {D}, {self.sU[sel]}, {u*16384}'] if k == 0 else []
            mi = 4 if self.o['mirror'] else 0
            if i == 0: pre += [f'v_add_u32 {self.vD[q]}, {(q*6 + mi*(q & 1))*16384}, {self.vD[0]}' for q in range(1, 4)]
            if i == 15 and mi: pre += [f'v_add_u32 {self.vD[q]}, {q*6*16384}, {self.vD[0]}' for q in (1, 3)]
            ld = f'buffer_load_dwordx4 {self.vD[k]}, {self.WD}, {D} offen lds'
        return [Ins(f's_add_u32 m0, {s["W1K"]}, {b*BLK}')] + [Ins(x) for x in pre] + [Ins(ld, tag)]

    def dmas(self, n):
        r = []
        for _ in range(n):
            g = self.dma_next()
            if g: r.append(g)
        return r

    def p1_chunk_dma(self, i):
        s = self.s; sl = i % 3; kc, so = self.sKC, self.sSO; tag = f'ch{i}'
        I = Ins
        g = [[I(f's_bfe_u32 {kc}, {self.sTb}, {hex(0x30000 + 4*i)}'), I(f's_add_u32 m0, {self.sW2K}, {L_X + sl*8192}'), I(f's_lshl_b32 {so}, {kc}, 7'),
              I(f'buffer_load_dwordx4 {self.vXa}, {self.X}, {so} offen lds', tag)],
             [I(f's_mul_i32 {kc}, {kc}, {64*3072}'), I(f'buffer_load_dwordx4 {self.vXb}, {self.X}, {so} offen offset:1024 lds', tag)]]
        for st in range(2):
            for p in range(3):
                pre = []
                if p == 0: pre = [I(f's_add_u32 m0, {self.sW3K}, {L_W + sl*24576 + st*12288}'), I(f's_add_u32 {kc}, {kc}, {32*3072 if st else self.sH128}')]
                g.append(pre + [I(f'buffer_load_dwordx4 {self.vW1}, {self.WQ}, {kc} offen offset:{p*1024} lds', tag)])
        return g

    def p1_reads(self, i, st, buf):
        sl = i % 3; r = []
        W, X, O = buf
        r.append(Ins(f'ds_read_b128 {O}, {self.aXo[st]} offset:{sl*8192}'))
        for p in range(3):
            for a in range(2):
                r.append(Ins(f'ds_read_b64_tr_b16 {W[p].sub(2*a, 2)}, {self.aW1} offset:{sl*24576 + st*12288 + p*1024 + a*512}'))
            if p == 0:
                r.append(Ins(f'ds_read_b128 {X[0]}, {self.aX[st]} offset:{L_HALO + i*2048}'))
                for t in range(1, 5):
                    r.append(Ins(f'ds_read_b128 {X[t]}, {self.aX[st]} offset:{L_X + sl*8192 + (t-1)*2048}'))
        return r

    def p1_mfmas(self, buf, first):
        W, X, O = buf
        m = []
        c = lambda acc: '0' if first else str(acc)
        m.append(Ins(f'v_mfma_f32_16x16x32_bf16 {self.stG}, {O}, {O}, {c(self.stG)}'))
        m.append(Ins(f'v_mfma_f32_16x16x32_bf16 {self.stS}, {self.ones}, {O}, {c(self.stS)}'))
        for p, acc in enumerate((self.aQ, self.aK, self.aV)):
            for t in range(5):
                if p < 2: m.append(Ins(f'v_mfma_f32_16x16x32_bf16 {acc[t]}, {W[p]}, {X[t]}, {c(acc[t])}'))
                else: m.append(Ins(f'v_mfma_f32_16x16x32_bf16 {acc[t]}, {X[t]}, {W[p]}, {c(acc[t])}'))
        return m

    def stats_code(self, sq, sm, out4):
        L = Asm()
        L(f'v_mul_f32 {sm}, {fhex(-1/512)}, {sm}')
        L(f'v_fma_f32 {sq}, {sq}, {self.sInv512}, {self.vEps}')
        L(f'v_cvt_pk_bf16_f32 {out4[1]}, {sm}, {sm}')
        L(f'v_fma_f32 {sq}, -{sm}, {sm}, {sq}')
        L(f'v_max_f32 {sq}, {sq}, {self.vEps}')
        L(f'v_rsq_f32 {out4[2]}, {sq}')
        L(f'v_and_b32 {out4[0]}, 0xffff0000, {out4[1]}')
        L(f'v_mul_f32 {out4[3]}, {fhex(0.25*LOG2E)}, {out4[2]}')
        return L.L

    def diag_code(self, G4, dst):
        return [Ins(f'v_cndmask_b32 {G4[0]}, {G4[0]}, {G4[1]}, {self.mB0}'), Ins(f'v_cndmask_b32 {G4[2]}, {G4[2]}, {G4[3]}, {self.mB0}'),
                Ins(f'v_cndmask_b32 {dst}, {G4[0]}, {G4[2]}, {self.mB1}')]

    def weave16(self, mf, ds, misc, vgap=4, tail=4, side=None):
        A = self.A; ds = list(ds)
        nm = len(mf)
        for k, m in enumerate(mf):
            A.L.append(m); self.gap_since_vm += 1
            bud = 2
            if misc and isinstance(misc[0], Ins) and misc[0].kind == 'salu':
                A.L.append(misc.pop(0)); bud -= self.o['salu16']
            nds = 1 if ds else 0
            if len(ds) > nm - k - tail: nds = min(2, len(ds))
            for _ in range(nds): A.L.append(ds.pop(0)); bud -= 1
            while misc and bud > 0:
                it = misc[0]; l = it if isinstance(it, list) else [it]
                if l and l[0].kind == 'pseudo' and l[0].mn == '@skip':
                    misc.pop(0); break
                if any(x.kind == 'vmem' for x in l):
                    if self.gap_since_vm < vgap: break
                    self.gap_since_vm = 0
                misc.pop(0); A.ext(l); bud -= sum(cost(x) for x in l)
            while side and bud > 0 and not ds:
                it = side.pop(0); l = it if isinstance(it, list) else [it]
                A.ext(l); bud -= sum(cost(x) for x in l)
        assert not ds

    def phase1(self):
        A, V, S, AG, o = self.A, self.V, self.S, self.AG, self.o
        s = self.s = {}
        for n in 'W C M SB G BLK W1K T0 T1 T2 T3 FL PF GB'.split(): s[n] = S.alloc()
        if o['stamps']: self.sstamp = S.alloc(4, 2); self.vstamp = V.alloc()
        self.X, self.WQ, self.WO, self.W3, self.WD, self.OUT, self.WS = [f's[{24+4*i}:{27+4*i}]' for i in range(7)]
        self.sKC = S.alloc(); self.sSO = S.alloc(); self.sW2K = S.alloc(); self.sW3K = S.alloc(); self.sC128 = S.alloc(); self.sFme = S.alloc()
        sH = S.alloc(); sHm = S.alloc(); sZ = S.alloc()
        if o.get('pad_to'): A('@raw 1\n' + o.get('pad_clk', 's_memrealtime') + ' s[100:101]\n@raw 0')
        if o['stamps']: A('@raw 1\n' + o.get('clk', 's_memtime') + ' s[100:101]\ns_memrealtime s[98:99]\ns_mov_b64 s[96:97], 0\n@raw 0')
        A('s_load_dwordx2 s[24:25], s[0:1], 0\ns_load_dwordx2 s[28:29], s[0:1], 8\ns_load_dwordx2 s[48:49], s[0:1], 72\ns_load_dwordx2 s[32:33], s[0:1], 16')
        A('s_load_dwordx16 s[4:19], s[0:1], 0\ns_load_dwordx2 s[20:21], s[0:1], 64')
        A('s_cmp_lt_u32 s2, 256\ns_cbranch_scc1 L_go\ns_endpgm\nL_go:')
        vL = self.vL = V.alloc(); t0 = V.alloc(2); t1 = V.alloc(); t2 = V.alloc(); t3 = V.alloc()
        self.t1, self.t2, self.t3 = t1, t2, t3
        A(f's_getpc_b64 s[52:53]\nL_pc:')
        A(f'v_and_b32 {vL}, 63, v0\nv_lshrrev_b32 {t1}, 6, v0\ns_lshr_b32 {s["T0"]}, s2, 3\nv_readfirstlane_b32 {s["W"]}, {t1}')
        A(f'v_lshl_add_u32 {t1}, {s["T0"]}, 2, {t1}\nv_lshl_add_u32 {t1}, {t1}, 2, {vL}\nv_lshlrev_b32 {t1}, 7, {t1}\nv_min_u32 {t1}, L_code_end-L_pc-4, {t1}')
        A(f'v_add_co_u32 {t0[0]}, vcc, s52, {t1}\nv_mov_b32 {t0[1]}, s53\ns_and_b32 {s["M"]}, {s["T0"]}, 15\nv_addc_co_u32 {t0[1]}, vcc, 0, {t0[1]}, vcc')
        A(f's_mov_b64 exec, 15\nglobal_load_dword v255, {t0}, off\ns_mov_b64 exec, -1')
        t0.free()
        A(f's_and_b32 {s["C"]}, {s["T0"]}, 7\ns_lshr_b32 {s["SB"]}, {s["M"]}, 3\ns_and_b32 {s["T1"]}, s2, 7\ns_lshr_b32 {s["T0"]}, {s["T0"]}, 3')
        A(f's_lshl_b32 {s["BLK"]}, {s["T1"]}, 2\ns_add_u32 {s["BLK"]}, {s["BLK"]}, {s["T0"]}\ns_lshr_b32 {s["G"]}, {s["BLK"]}, 1')
        A(f's_lshl_b32 {self.sW2K}, {s["W"]}, 11\ns_mul_i32 {self.sW3K}, {s["W"]}, 3072\ns_lshl_b32 {self.sC128}, {s["C"]}, 7')
        self.sH128 = S.alloc()
        if o['xrot']: A(f's_add_u32 {self.sH128}, {s["C"]}, s2\ns_and_b32 {self.sH128}, {self.sH128}, 7\ns_lshl_b32 {self.sH128}, {self.sH128}, 7')
        else: A(f's_mov_b32 {self.sH128}, {self.sC128}')
        e = V.alloc(); ch = V.alloc()
        vHa = V.alloc(); self.vXa = V.alloc(); self.vXb = V.alloc(); self.vW1 = V.alloc(); self.vW2 = V.alloc()
        A(f'v_lshrrev_b32 {e}, 3, {vL}\nv_and_b32 {ch}, 7, {vL}')
        A(f'v_lshrrev_b32 {t1}, 4, {vL}\nv_xor_b32 {t1}, {t1}, {ch}\nv_lshlrev_b32 {t1}, 4, {t1}')
        A(f's_lshl_b32 {s["T0"]}, {s["BLK"]}, 6\ns_lshl_b32 {s["T1"]}, {s["W"]}, 4\ns_add_u32 {s["T1"]}, {s["T1"]}, {s["T0"]}')
        A(f'v_add_u32 {t2}, {s["T1"]}, {e}\nv_lshl_add_u32 {self.vXa}, {t2}, 10, {t1}\nv_add_u32 {self.vXb}, {7*1024}, {self.vXa}\nv_xor_b32 {self.vXb}, 64, {self.vXb}')
        A(f's_and_b32 {s["T1"]}, {s["W"]}, 1\ns_cselect_b32 {sHm}, -1, 0xffffff00\ns_lshl3_add_u32 {s["T0"]}, {s["T1"]}, {s["T0"]}\ns_sub_u32 {s["T0"]}, {s["T0"]}, 16\ns_lshl_b32 {s["T2"]}, {s["T1"]}, 6')
        A(f'v_add_u32 {t2}, {s["T0"]}, {e}\nv_max_i32 {vHa}, 0, {t2}\nv_lshl_add_u32 {vHa}, {vHa}, 10, {t1}\nv_xor_b32 {vHa}, {s["T2"]}, {vHa}')
        A(f's_lshl_b32 {s["T1"]}, {s["T1"]}, 2\ns_lshl_b32 {s["W1K"]}, {s["W"]}, 10')
        A(f'v_and_b32 {t1}, 2, {e}\nv_or_b32 {t1}, {s["T1"]}, {t1}\nv_xor_b32 {t1}, {t1}, {ch}\nv_lshlrev_b32 {t1}, 4, {t1}')
        A(f'v_lshl_add_u32 {t2}, {s["W"]}, 3, {e}')
        A(f'v_lshl_add_u32 {self.vW2}, {t2}, 10, {t1}\nv_mul_u32_u24 {t2}, 3072, {t2}\nv_add_u32 {self.vW1}, {t2}, {t1}')
        A(f's_mov_b32 s26, {2048*1024}\ns_mov_b32 s27, 0x20000\ns_mov_b32 s30, {512*3072}\ns_mov_b32 s31, 0x20000\ns_mov_b32 s50, {o["ws_base"] + WS_SIZE}\ns_mov_b32 s51, 0x20000\ns_mov_b32 s34, {512*1024}\ns_mov_b32 s35, 0x20000')
        A(f's_lshl_b32 {s["GB"]}, {s["G"]}, 20')
        if o['ws_base']: A(f's_add_u32 {s["GB"]}, {s["GB"]}, {o["ws_base"]}')
        A(f's_add_u32 {s["FL"]}, {s["GB"]}, {WS_FL}\ns_lshl2_add_u32 {self.sFme}, {s["M"]}, {s["FL"]}\nv_mov_b32 {t2}, 0')
        A(f's_cmp_eq_u32 {s["W"]}, 0\ns_cselect_b32 {sZ}, 0x3f, 0')
        self.sTb = S.alloc(); sTh = S.alloc()
        A(f's_mul_i32 {s["T0"]}, {s["C"]}, 0x11111111\ns_add_u32 {self.sTb}, {s["T0"]}, 0x76543210')
        if o['khalf']: A(f's_and_b32 {self.sTb}, {self.sTb}, 0x33333333\ns_or_b32 {self.sTb}, {self.sTb}, 0x44440000')
        A(f's_and_b32 {s["T0"]}, {s["W"]}, 2\ns_lshl_b32 {s["T0"]}, {s["T0"]}, 1\ns_lshr_b32 {sTh}, {self.sTb}, {s["T0"]}')
        v128 = self.v128 = V.alloc(); junk = V.alloc(); vT = V.alloc(); vTo = V.alloc(); sP = S.alloc(); sSel = s['PF']
        v1k = V.alloc(); self.vL16 = V.alloc(); hp = V.alloc(8, 2)
        A(f'v_lshlrev_b32 {v128}, 7, {vL}\nv_lshlrev_b32 {v1k}, 10, {vL}\nv_lshlrev_b32 {self.vL16}, 4, {vL}')
        OSRD = self.WS if o['o_in_ws'] else self.OUT
        def pf_group(kind, site=None):
            L = Asm()
            if kind == 'o': L(f's_mov_b64 exec, 0xffff\nbuffer_load_dword {junk}, {vTo}, {OSRD}, {self.sOst} offen sc1')
            elif kind == 'h': L(f's_mov_b64 exec, 0x3ffff\nbuffer_load_dword {junk}, {vT}, {self.WS}, {s["GB"]} offen sc1')
            elif kind == 'x1':
                L(f's_lshl2_add_u32 {sP}, {s["BLK"]}, {s["W"]}\ns_lshl3_add_u32 {sP}, {sP}, {s["C"]}\ns_lshl_b32 {sP}, {sP}, 11')
                L(f's_mov_b64 exec, 0xf0f0\nbuffer_load_dword {junk}, {v128}, {self.X}, {sP} offen sc1')
            elif kind in ('q3', 'o3', 'd3', 'q30', 'q31'):
                n, srd = {'q3': (12, self.WQ), 'q30': (6, self.WQ), 'q31': (6, self.WQ), 'o3': (4, self.WO), 'd3': (11, self.WD)}[kind]
                L(f's_lshr_b32 {sP}, s2, 3\ns_lshl2_add_u32 {sP}, {sP}, {s["W"]}\ns_mul_i32 {sP}, {sP}, {n*1024}')
                if kind == 'q31': L(f's_add_u32 {sP}, {sP}, {768*1024}')
                L(f's_mov_b64 exec, {hex((1 << n) - 1)}\nbuffer_load_dword {junk}, {v1k}, {srd}, {sP} offen offset:384 sc1')
            else:
                n, srd = {'wq': (12, self.WQ), 'wq0': (6, self.WQ), 'wq1': (6, self.WQ), 'wo': (4, self.WO), 'w3': (22, self.W3), 'wd': (11, self.WD)}[kind]
                if kind == 'w3': L(f's_and_b32 {sP}, {s["W"]}, 1\ns_lshl1_add_u32 {sP}, s2, {sP}')
                else: L(f's_lshl2_add_u32 {sP}, s2, {s["W"]}')
                L(f's_mul_i32 {sP}, {sP}, {n*128}')
                if kind == 'wq1': L(f's_add_u32 {sP}, {sP}, {768*1024}')
                L(f's_mov_b64 exec, {hex((1 << n) - 1)}\nbuffer_load_dword {junk}, {v128}, {srd}, {sP} offen sc1')
            L('s_mov_b64 exec, -1')
            for x in L.L:
                if x.kind == 'vmem': x.defs = set()
            if site is not None:
                mk = L.L[-3].text.split(', ')[1]
                return L.L[:-3] + [[Ins(f's_cmp_eq_u32 {sSel}, {site}'), Ins(f's_cselect_b64 exec, {mk}, 0')] + L.L[-2:]]
            return L.L[:-3] + [L.L[-3:]]
        def pf_flat(at):
            r = []
            for kind, a_ in o['pf'].items():
                if a_ == at:
                    gq = pf_group(kind); r.append(gq[:-1] + gq[-1])
            return r
        self.sOst = S.alloc(); self.sHst = S.alloc()
        c0 = self.p1_chunk_dma(0)
        A.ext(c0[0][:-1])
        A('@waitlg0')
        self.stamp('kernarg')
        if o.get('l2fill'):
            for lo, nbytes in o['l2fill']:
                per = -(-nbytes // (128*128))
                A(f's_mov_b32 s32, s{lo}\ns_mov_b32 s33, s{lo+1}\ns_mov_b32 s34, {nbytes}\ns_mov_b32 s35, 0x20000')
                A(f's_lshr_b32 {s["T0"]}, s2, 3\ns_lshl2_add_u32 {s["T0"]}, {s["T0"]}, {s["W"]}\ns_mul_i32 {s["T0"]}, {s["T0"]}, {per*128}')
                for q in range(-(-per // 64)): A(f'buffer_load_dword {t3}, {v128}, s[32:35], {s["T0"]} offen sc1\ns_add_u32 {s["T0"]}, {s["T0"]}, 8192')
                A('@waitvm0')
            A(f's_mov_b32 {s["T0"]}, 60\nL_dly:\ns_sub_u32 {s["T0"]}, {s["T0"]}, 1\ns_cmp_lg_u32 {s["T0"]}, 0\ns_cbranch_scc1 L_dly')
            self.stamp('probe done')
        if o.get('probe'):
            src, rounds, base = o['probe']
            lo = {'bx': 10, 'ws': 48, 'out': 18, 'wd': 16}[src]
            A(f's_mov_b32 s32, s{lo}\ns_mov_b32 s33, s{lo+1}\ns_mov_b32 s34, {(2 << 20) if src in ("bx", "out") else (1376*1024 if src == "wd" else 256 << 20)}\ns_mov_b32 s35, 0x20000')
            A(f'v_lshlrev_b32 {t1}, 7, {vL}\ns_lshl_b32 {s["T0"]}, s2, 2\ns_add_u32 {s["T0"]}, {s["T0"]}, {s["W"]}\ns_lshl_b32 {s["T0"]}, {s["T0"]}, 11\ns_add_u32 {s["T0"]}, {s["T0"]}, {base}')
            nl = 16 // rounds if rounds > 0 else 16
            for r in range(abs(rounds)):
                A(f's_mov_b64 exec, {hex((1 << nl) - 1)}\nbuffer_load_dword {t3}, {t1}, s[32:35], {s["T0"]} offen sc1\ns_mov_b64 exec, -1')
                if rounds > 0: A(f'@waitvm0\ns_add_u32 {s["T0"]}, {s["T0"]}, {nl*128}')
                else: A(f's_add_u32 {s["T0"]}, {s["T0"]}, {2 << 20}')
            A('@waitvm0')
            self.stamp('probe done')
        for gq in pf_flat('s0'): A.ext(gq)
        A.L.append(c0[0][-1])
        for gq in pf_flat('sx'): A.ext(gq)
        A(f's_mov_b32 exec_lo, {sZ}\ns_mov_b32 exec_hi, 0')
        A(f'buffer_store_dword {t2}, {v128}, {self.WS}, {self.sFme} offen', tag='fz')
        A('s_mov_b64 exec, -1')
        def chunk_items(i):
            gq = c0 if i == 0 else self.p1_chunk_dma(i)
            if i >= 4: return gq
            h = [Ins(f's_add_u32 m0, {s["W1K"]}, {L_HALO + i*4096}')]
            h += [Ins(f's_bfe_u32 {sH}, {sTh}, {hex(0x30000 + 8*i)}'), Ins(f's_lshl_b32 {sH}, {sH}, 7')]
            h.append([Ins(f's_mov_b32 exec_lo, {sHm}'), Ins(f'buffer_load_dwordx4 {vHa}, {self.X}, {sH} offen lds', f'hr{i}'), Ins('s_mov_b32 exec_lo, -1')])
            return gq[:5] + [h] + gq[5:]
        fl1 = lambda gq: [y for x in gq for y in (x if isinstance(x, list) else [x])]
        self.sCen = S.alloc(); self.sCoff = S.alloc(); self.sCv = sZ
        c1 = chunk_items(1); n1a, n1b = o['n1a'], o['n1b']
        g0 = [fl1(x) for x in chunk_items(0)[1:]]
        rows = Asm()
        if o['ymean']:
            rows(f's_lshl_b32 {sP}, s2, 11\ns_cmp_eq_u32 {s["W"]}, 0\ns_cselect_b64 exec, -1, 0')
            rows(f'buffer_load_dwordx4 {hp.sub(0, 4)}, {self.vL16}, {self.WO}, {sP} offen\nbuffer_load_dwordx4 {hp.sub(4, 4)}, {self.vL16}, {self.WO}, {sP} offen offset:1024\ns_mov_b64 exec, -1')
        groups = g0[:5] + ([rows.L] if rows.L else []) + pf_flat('sa') + g0[5:] + pf_flat('s1') + [fl1(x) for x in c1[:n1a]]
        B = Asm()
        B(f's_getreg_b32 {s["T0"]}, hwreg(HW_REG_XCC_ID, 0, 4)\ns_mul_i32 {s["T1"]}, {s["T0"]}, {s["T0"]}\ns_lshl_b32 {s["T1"]}, {s["T1"]}, 13\ns_lshl_b32 {s["T0"]}, {s["T0"]}, 5')
        B(f's_add_u32 {self.sCen}, {s["T0"]}, {s["T1"]}\ns_add_u32 {self.sCen}, {self.sCen}, 1\ns_lshl_b32 {self.sCoff}, {s["G"]}, 4')
        self.ones = V.alloc(4, 2)
        for k in range(4): B(f'v_mov_b32 {self.ones[k]}, 0x3f803f80')
        B(f's_lshl_b32 {s["T0"]}, {s["W"]}, 12\nv_lshlrev_b32 {t1}, 11, {e}\nv_lshl_add_u32 {t1}, {ch}, 4, {t1}\nv_add_u32 {t1}, {s["T0"]}, {t1}')
        B(f's_mov_b64 exec, 0xffff\nds_write_b128 {t1}, {self.ones} offset:{L_HALO}\ns_mov_b64 exec, -1')
        B(f'v_mov_b32 v254, {L_SCR + 4092}')
        self.srd(B, 40, 16, 1376*1024); self.srd(B, 44, 18, 2048*1024)
        B(f's_cmp_lt_u32 {s["W"]}, 2\ns_cselect_b32 s36, s12, s14\ns_cselect_b32 s37, s13, s15\ns_mov_b32 s38, {512*PITCH3}\ns_mov_b32 s39, 0x20000')
        S.free |= set(range(3, 20)) | {0, 1, 22, 23} | set(range(52, 60))
        self.sMode = S.alloc(); self.mW1 = S.alloc(2); self.mW16 = S.alloc(2)
        B(f's_mov_b32 {self.sMode}, 0\ns_cmp_eq_u32 {s["W"]}, 0\ns_cselect_b64 {self.mW1}, 1, 0\ns_cselect_b64 {self.mW16}, 0xffff, 0')
        self.sN3 = S.alloc(2); self.sInv512 = S.alloc()
        if o['perm3']:
            pi = [0, 1, 2, 14, 4, 5, 6, 7, 8, 9, 10, 15, 12, 13, 3, 11]; tb64 = sum(v << (4*q) for q, v in enumerate(pi))
            B(f's_mov_b32 {self.sN3[0]}, {hex(tb64 & 0xffffffff)}\ns_mov_b32 {self.sN3[1]}, {hex(tb64 >> 32)}\ns_lshl_b32 {s["M"]}, {s["M"]}, 2\ns_lshr_b64 {self.sN3}, {self.sN3}, {s["M"]}\ns_and_b32 {s["M"]}, {self.sN3[0]}, 15')
        B(f's_cmp_lt_u32 {s["M"]}, 15\ns_cselect_b32 {self.sN3[0]}, s38, 0\ns_cmp_lt_u32 {s["M"]}, 14\ns_cselect_b32 {self.sN3[1]}, s38, 0')
        B(f's_mov_b32 {self.sInv512}, {fhex(1/512)}')
        self.vEps = V.alloc(); B(f'v_mov_b32 {self.vEps}, {fhex(1e-5)}')
        j = self.vJ = V.alloc(); g = self.vG = V.alloc()
        B(f'v_and_b32 {j}, 15, {vL}\nv_lshrrev_b32 {g}, 4, {vL}')
        self.aX = [V.alloc(), V.alloc()]; self.aXo = [V.alloc(), V.alloc()]; self.aW1 = V.alloc(); aHs = [V.alloc(), V.alloc()]
        B(f'v_lshrrev_b32 {t1}, 1, {j}\nv_xor_b32 {t1}, {t1}, {g}\nv_lshlrev_b32 {t1}, 4, {t1}\nv_lshl_add_u32 {self.aX[0]}, {j}, 7, {t1}\nv_xor_b32 {self.aX[1]}, 64, {self.aX[0]}')
        B(f'v_add_u32 {aHs[0]}, {s["T0"]}, {self.aX[0]}\nv_add_u32 {aHs[1]}, {s["T0"]}, {self.aX[1]}')
        B(f's_add_u32 {s["T0"]}, {self.sW2K}, {L_X}\nv_add_u32 {self.aXo[0]}, {s["T0"]}, {self.aX[0]}\nv_add_u32 {self.aXo[1]}, {s["T0"]}, {self.aX[1]}')
        ra = [V.alloc() for _ in range(4)]
        B(f'v_lshrrev_b32 {t1}, 1, {j}\nv_lshrrev_b32 {t2}, 1, {g}\nv_xor_b32 {t1}, {t1}, {t2}\nv_lshlrev_b32 {t1}, 4, {t1}\nv_and_b32 {t2}, 1, {g}\nv_lshl_add_u32 {t1}, {t2}, 3, {t1}')
        B(f'v_lshl_add_u32 {t1}, {j}, 7, {t1}\nv_add_u32 {ra[0]}, {s["T0"]}, {t1}')
        for ct in range(1, 4): B(f'v_xor_b32 {ra[ct]}, {ct*32}, {ra[0]}')
        self.vTRf = V.alloc(); self.vTRb = V.alloc()
        B(f'v_and_b32 {t1}, 3, {e}\nv_lshlrev_b32 {self.vTRf}, 5, {t1}')
        B(f'v_bfe_u32 {t1}, {vL}, 2, 2\nv_and_b32 {t2}, 3, {vL}\nv_lshlrev_b32 {t2}, 3, {t2}\nv_lshl_add_u32 {self.vTRb}, {t1}, 7, {t2}')
        B(f's_lshl_b32 {s["T0"]}, {s["W"]}, 5\nv_xor_b32 {t1}, {s["T0"]}, {self.vTRf}\nv_mul_u32_u24 {t2}, 3072, {g}\nv_add3_u32 {self.aW1}, {t1}, {t2}, {self.vTRb}\nv_add_u32 {self.aW1}, {L_W}, {self.aW1}')
        self.mB0 = S.alloc(2); self.mB1 = S.alloc(2); self.mDiag = S.alloc(2); mOwnA = S.alloc(2); mOwnB = S.alloc(2)
        B(f's_mov_b32 {self.mB0[0]}, 0xaaaaaaaa\ns_mov_b32 {self.mB0[1]}, 0xaaaaaaaa\ns_mov_b32 {self.mB1[0]}, 0xcccccccc\ns_mov_b32 {self.mB1[1]}, 0xcccccccc')
        B(f's_mov_b32 {self.mDiag[0]}, 0x00f0000f\ns_mov_b32 {self.mDiag[1]}, 0xf0000f00')
        def lanemask(fn):
            v = sum(1 << l for l in range(64) if fn(l & 15, l >> 4)); return v & 0xffffffff, v >> 32
        oa = lanemask(lambda jj, gg: 4*gg + (jj & 1) <= jj); ob = lanemask(lambda jj, gg: 4*gg + 2 + (jj & 1) <= jj)
        B(f's_mov_b32 {mOwnA[0]}, {hex(oa[0])}\ns_mov_b32 {mOwnA[1]}, {hex(oa[1])}\ns_mov_b32 {mOwnB[0]}, {hex(ob[0])}\ns_mov_b32 {mOwnB[1]}, {hex(ob[1])}')
        aTB = V.alloc(); aTBw = V.alloc(); aHPw = V.alloc(); aHPr = V.alloc()
        B(f'v_lshlrev_b32 {aTB}, 4, {j}\nv_add_u32 {aTB}, {SCR_TB}, {aTB}\nv_lshl_add_u32 {aTBw}, {s["W"]}, 8, {aTB}')
        B(f'v_lshlrev_b32 {aHPr}, 5, {j}\nv_add_u32 {aHPr}, {SCR_HP}, {aHPr}\nv_lshl_add_u32 {aHPw}, {s["W"]}, 3, {aHPr}')
        ca_ = V.alloc(); sCx = S.alloc(); sRm = S.alloc(); sRo = S.alloc()
        B(f'v_lshlrev_b32 {ca_}, 4, {j}\ns_lshl_b32 {sCx}, {self.sCen}, 4\ns_lshl_b32 {sRo}, {s["W"]}, 9\ns_and_b32 {sRm}, {s["W"]}, 2\ns_lshl_b32 {sRm}, {sRm}, 5')
        B(f's_add_u32 {sRm}, {sRm}, {sRo}\ns_add_u32 {sRm}, {sRm}, {SCR_R}\ns_add_u32 {sRo}, {sRo}, {o["ws_base"] + WS_R}')
        ka = V.alloc(); kb = V.alloc(); bias = V.alloc(2); sel = V.alloc(4)
        B(f'v_and_b32 {t1}, 1, {j}\nv_lshl_add_u32 {t1}, {g}, 2, {t1}\nv_lshlrev_b32 {t1}, 4, {t1}\nv_add_u32 {t1}, {SCR_TB + 8}, {t1}\nv_add_u32 {t2}, 256, {t1}')
        B(f'v_cndmask_b32 {ka}, {t1}, {t2}, {mOwnA}\nv_cndmask_b32 {kb}, {t1}, {t2}, {mOwnB}')
        B(f's_cmp_eq_u32 {s["BLK"]}, 0\ns_cselect_b32 {s["T0"]}, {fhex(-1e30)}, 0\nv_mov_b32 {t1}, {s["T0"]}\nv_mov_b32 {t3}, 0x0c0c0c0c')
        B(f'v_cndmask_b32 {bias[0]}, {t1}, 0, {mOwnA}\nv_cndmask_b32 {bias[1]}, {t1}, 0, {mOwnB}')
        B(f'v_mov_b32 {t1}, 0x0c0c0100\nv_mov_b32 {t2}, 0x01000c0c\nv_cndmask_b32 {t1}, {t1}, {t2}, {self.mB0}')
        B(f'v_cndmask_b32 {sel[0]}, {t1}, {t3}, {mOwnA}\nv_cndmask_b32 {sel[2]}, {t3}, {t1}, {mOwnA}')
        B(f'v_mov_b32 {t1}, 0x0c0c0302\nv_mov_b32 {t2}, 0x03020c0c\nv_cndmask_b32 {t1}, {t1}, {t2}, {self.mB0}')
        B(f'v_cndmask_b32 {sel[1]}, {t1}, {t3}, {mOwnB}\nv_cndmask_b32 {sel[3]}, {t3}, {t1}, {mOwnB}')
        self.vW2b = V.alloc(); B(f'v_add_u32 {self.vW2b}, 32768, {self.vW2}')
        self.sD = S.alloc(); self.vF = V.alloc(2); self.vH = V.alloc(); self.vD = V.alloc(4)
        self.sU = S.alloc(2); self.sDl = S.alloc(); self.sCP = {}; d64 = self.sD
        if o['mirror']:
            B(f's_and_b32 {s["PF"]}, {s["M"]}, 1\ns_mul_i32 {s["T0"]}, {s["M"]}, 192\ns_lshl_b32 {d64}, {s["PF"]}, 6\ns_add_u32 {s["T2"]}, {s["T0"]}, {d64}')
            B(f's_add_u32 {s["T3"]}, {s["T2"]}, {d64}\ns_add_u32 {s["T3"]}, {s["T3"]}, {PITCH3}\ns_lshl_b32 {s["T1"]}, {d64}, 1\ns_sub_u32 {self.sDl}, {PITCH3 + 64}, {s["T1"]}')
        else:
            B(f's_and_b32 {s["PF"]}, {s["M"]}, 1\ns_mul_i32 {s["T0"]}, {s["M"]}, 192\ns_mul_i32 {s["T1"]}, {s["PF"]}, {PITCH3}')
            B(f's_add_u32 {s["T2"]}, {s["T0"]}, {s["T1"]}\ns_sub_u32 {s["T3"]}, {s["T0"]}, {s["T1"]}\ns_add_u32 {s["T3"]}, {s["T3"]}, {PITCH3}')
            B(f's_sub_u32 {self.sDl}, {s["T3"]}, {s["T2"]}\ns_add_u32 {self.sDl}, {self.sDl}, 64')
        B(f's_and_b32 {s["T0"]}, {s["W"]}, 1\ns_and_b32 {s["T1"]}, {s["W"]}, 2')
        B(f'v_and_b32 {t2}, 1, {e}\nv_lshl_add_u32 {t1}, {g}, 3, {t2}\nv_lshl_add_u32 {t1}, {s["T0"]}, 1, {t1}\nv_mul_u32_u24 {t1}, {2*PITCH3}, {t1}\nv_add_u32 {t1}, {s["T2"]}, {t1}')
        B(f'v_and_b32 {t3}, 1, {g}\nv_or_b32 {t2}, {s["T1"]}, {t3}\nv_lshlrev_b32 {t2}, 1, {t2}\nv_xor_b32 {t2}, {t2}, {ch}\nv_lshlrev_b32 {t2}, 4, {t2}')
        if o['mirror']: B(f'v_xor_b32 {t2}, {d64}, {t2}')
        B(f'v_add_u32 {self.vF[0]}, {t2}, {t1}\nv_add_u32 {self.vF[1]}, {8*PITCH3}, {self.vF[0]}')
        B(f'v_lshl_add_u32 {t1}, {s["T0"]}, 3, {e}\nv_lshlrev_b32 {t3}, 2, {t3}\nv_xor_b32 {t3}, {t3}, {ch}\nv_lshlrev_b32 {t3}, 4, {t3}\nv_lshl_add_u32 {self.vD[0]}, {t1}, 10, {t3}')
        B(f'v_and_b32 {t1}, 3, {e}\nv_lshlrev_b32 {t1}, 3, {t1}\nv_lshrrev_b32 {t2}, 5, {vL}\nv_lshl_add_u32 {t1}, {t2}, 1, {t1}\nv_bfe_u32 {t2}, {vL}, 2, 1\nv_add_u32 {t1}, {t1}, {t2}\nv_lshl_add_u32 {t1}, {s["T0"]}, 2, {t1}\nv_mul_u32_u24 {t1}, {2*PITCH3}, {t1}\nv_add_u32 {t1}, {s["T3"]}, {t1}')
        B(f'v_and_b32 {t2}, 3, {vL}\nv_xor_b32 {t2}, {s["T1"]}, {t2}\nv_lshl_add_u32 {self.vH}, {t2}, 4, {t1}')
        B(f's_lshl_b32 {s["T1"]}, {s["T1"]}, 13\ns_add_u32 {self.sU[0]}, {s["T1"]}, {self.sC128}\ns_mul_i32 {s["T1"]}, {s["T1"]}, {2 if o["mirror"] else 6}\ns_add_u32 {self.sU[1]}, {s["T1"]}, {self.sC128}')
        pass
        B(f's_lshl_b32 {self.sOst}, {s["BLK"]}, 16\ns_lshl_b32 {s["T1"]}, {self.sH128}, 5\ns_add_u32 {self.sOst}, {self.sOst}, {s["T1"]}\ns_add_u32 {self.sOst}, {self.sOst}, {s["W1K"]}')
        B(f'v_lshlrev_b32 {t1}, 7, {ch}\nv_lshl_add_u32 {vTo}, {e}, 15, {t1}')
        B(f's_lshr_b32 {s["T1"]}, {s["W"]}, 1\ns_lshl_b32 {s["T2"]}, {s["SB"]}, 1\ns_add_u32 {s["T2"]}, {s["T2"]}, {s["T1"]}\ns_lshl_b32 {s["T2"]}, {s["T2"]}, 15')
        B(f's_lshl_b32 {s["T1"]}, {s["C"]}, 12\ns_add_u32 {s["T2"]}, {s["T2"]}, {s["T1"]}\ns_add_u32 {self.sHst}, {s["T2"]}, {s["GB"]}')
        B(f's_lshl_b32 {s["T0"]}, {s["T0"]}, 11\ns_add_u32 {s["T2"]}, {s["T2"]}, {s["T0"]}\nv_add_u32 {vT}, {s["T2"]}, {v128}')
        B(f's_lshl_b32 {s["T0"]}, {s["M"]}, 2\ns_add_u32 {s["T0"]}, {s["T0"]}, {s["W"]}\ns_lshl_b32 {s["T0"]}, {s["T0"]}, 7\ns_add_u32 {s["T1"]}, {s["T0"]}, {WS_ST}\nv_writelane_b32 {vT}, {s["T1"]}, 16')
        B(f's_and_b32 {s["T0"]}, {s["T0"]}, 0x380\ns_add_u32 {s["T1"]}, {s["T0"]}, {WS_FL}\nv_writelane_b32 {vT}, {s["T1"]}, 17')
        self.info['setupB'] = len(B.L)
        k1 = max(q for q in safe_points(B.L) if q <= o['c1_from'])
        code = sprinkle(B.L[:k1], groups, o['sp0'], start=0) + (self.visit('v0') if o['v0_at'] == -2 else []) + sprinkle(B.L[k1:], pf_flat('sb') + [fl1(x) for x in c1[n1a:n1b]], o['sp0b'], start=0)
        if o['visit']:
            k = max(q for q in safe_points(code) if q <= o['jump_at'])
            code[k:k] = [Ins('s_branch L_body'), Ins('.p2align 12'), Ins('L_body:')]
        if o.get('st0'):
            sp_ = set(safe_points(code)); last = 0
            for q, x in enumerate(code):
                if q - last >= o['st0'] and q in sp_:
                    self.stamp(f'i{q}v{sum(y.kind == "vmem" for y in code[:q])}'); last = q
                A.L.append(x)
            self.stamp('ipre-visit')
        else: A.ext(code)
        for r in (e, ch): r.free()
        for gq in pf_flat('s2'): A.ext(gq)
        if o['v0_at'] == -1: A.ext(self.visit('v0'))
        self.aQ = [V.alloc(4, 2) for _ in range(5)]; self.aK = [V.alloc(4, 2) for _ in range(5)]; self.aV = [V.alloc(4, 2) for _ in range(5)]
        self.stG = V.alloc(4, 2); self.stS = V.alloc(4, 2); hG = V.alloc(4, 2); hS = V.alloc(4, 2)
        bufs = [([AG.alloc(4, 4) for _ in range(3)], [AG.alloc(4, 4) for _ in range(5)], AG.alloc(4, 4)) for _ in range(2)]
        hb = [AG.alloc(4, 4) for _ in range(4)]
        nsite = max([len(a_) for a_ in o['pf'].values() if isinstance(a_, list)] + [0])
        if nsite:
            sSel = S.alloc(); src = {'x': 's2', 'g': s['G'], 'b': s['BLK'], 'c': s['C']}[o['selby']]
            if nsite == 3: A(f's_and_b32 {sSel}, {src}, 7\ns_lshl_b32 {sSel}, {sSel}, 2\ns_lshr_b32 {sSel}, 0x10210210, {sSel}\ns_and_b32 {sSel}, {sSel}, 3')
            else: A(f's_and_b32 {sSel}, {src}, {nsite - 1}')
        self.stamp('setup done')
        A('@waitlg0\n@waitvm hr0\ns_barrier')
        self.stamp('chunk0 visible')
        A.ext(self.p1_reads(0, 0, bufs[0]))
        cen = f's_cmp_lg_u32 {s["W"]}, 0\ns_cbranch_scc1 L_nocen\n@raw 1\ns_atomic_add {self.sCen}, s[20:21], {self.sCoff}\n@raw 0\nL_nocen:\n@minlg 1'
        if not o['ymean']: A(cen)
        self.resx = V.alloc(8, 2); tb4 = V.alloc(4, 2)
        hs = Asm()
        for a_, b_ in ((0, 2), (1, 3), (4, 6), (5, 7), (0, 4), (1, 5)): hs(f'v_add_f32 {hp[a_]}, {hp[a_]}, {hp[b_]}')
        hs.ext(self.stats_code(hp[1], hp[0], tb4)); hs(f'ds_write_b128 {aTB}, {tb4}')
        flat = lambda gs: [x for gq in gs for x in gq]
        pfm = lambda at: [x for kind, a_ in o['pf'].items() if a_ == at for x in pf_group(kind)]
        misc = flat(c1[n1b:]) + pfm('c1') + flat(chunk_items(2)) + pfm('c2')
        side = []
        self.gap_since_vm = 99
        HS = o['HS']
        for n in range(16):
            i, st = n >> 1, n & 1
            if n: A('@waitlg0')
            if o.get("fine", 0) >= 16 and (st == 0 or o.get('steps')) and n: self.stamp(f'p1 chunk {i}' + ('b' if st else ''))
            if st == 1 and i < 7:
                top = []
                while any(x.tag == f'ch{i+1}' for x in fl1(misc)) or sum(x.tag == f'ch{i+2}' for x in fl1(misc)) > 8 - o['topup']:
                    if not top or any(y.kind == 'vmem' for y in top[-1]): top.append([])
                    top[-1] += fl1([misc.pop(0)])
                mk_ = len(A.L)
                if o['v0_at'] == i: A.ext(self.visit('v0'))
                if o['ymean'] and i == 0:
                    A(f'v_mfma_f32_16x16x32_bf16 {hG}, {self.ones}, {hp.sub(0, 4)}, 0\nv_mfma_f32_16x16x32_bf16 {hS}, {self.ones}, {hp.sub(4, 4)}, 0')
                    A(f's_lshl2_add_u32 {s["T0"]}, s2, {o["ws_base"] + WS_R}')
                    for ror in (8, 4, 2, 1):
                        for r_ in (hG[0], hS[0]): A(f'v_add_f32_dpp {r_}, {r_}, {r_} row_ror:{ror} row_mask:0xf bank_mask:0xf')
                    A(f'v_mul_f32 {hG[0]}, {fhex(-1/512)}, {hG[0]}\nv_mul_f32 {hS[0]}, {fhex(-1/512)}, {hS[0]}\nv_cvt_pk_bf16_f32 {hG[1]}, {hG[0]}, {hS[0]}')
                    A(f'v_lshlrev_b32 {hG[2]}, 16, {hG[1]}\nv_and_b32 {hG[3]}, 0xffff0000, {hG[1]}\nv_sub_f32 {hG[0]}, {hG[0]}, {hG[2]}\nv_sub_f32 {hS[0]}, {hS[0]}, {hG[3]}')
                    A(f'v_cvt_pk_bf16_f32 {hG[0]}, {hG[0]}, {hS[0]}\nv_cndmask_b32 {hG[0]}, {hG[1]}, {hG[0]}, {self.mB0}')
                A.L[mk_:] = sprinkle(A.L[mk_:], top, 4)
                if o['ymean'] and i == 0:
                    A(f's_and_b64 exec, {self.mW16}, 3')
                    A(f'buffer_store_dword {hG[0]}, {v1k}, {self.WS}, {s["T0"]} offen sc1', tag='rst')
                    A('s_mov_b64 exec, -1')
                A(f'@waitvm ch{i+1}\ns_barrier')
                if o['ymean'] and i == 2: A('@waitvm rst\n' + cen)
                if i == o['minlg_until']: A('@minlg 0')
                if i + 3 < 8: misc += flat(chunk_items(i + 3))
                for kind, at in o['pf'].items():
                    if at == i: misc += pf_group(kind)
                    elif isinstance(at, list) and i in at: misc += pf_group(kind, at.index(i))
                if i == 5:
                    self.free_blocks += [23, 24, 25, 26, 27]
                    misc += flat(self.dmas(o['w2a']))
                if i == 6: misc += flat(self.dmas(o['w2b']))
            mf = self.p1_mfmas(bufs[n & 1], n == 0)
            if n < 15:
                rd = self.p1_reads((n + 1) >> 1, (n + 1) & 1, bufs[(n + 1) & 1])
                if n == HS: rd += [Ins(f'ds_read_b128 {hb[q]}, {aHs[q & 1]} offset:{L_HALO + (q >> 1)*2048}') for q in range(4)]
                if n == HS + 1:
                    for q in range(4):
                        mf += [Ins(f'v_mfma_f32_16x16x32_bf16 {hG}, {hb[q]}, {hb[q]}, {hG if q else 0}'), Ins(f'v_mfma_f32_16x16x32_bf16 {hS}, {self.ones}, {hb[q]}, {hS if q else 0}')]
                    mf = mf[17:] + mf[:17]
                if n == HS + 1: side += self.diag_code(hG, hS[1]) + [[Ins(f's_mov_b64 exec, {self.mDiag}'), Ins(f'ds_write_b64 {aHPw}, {hS.sub(0, 2)}'), Ins('s_mov_b64 exec, -1')]]
                if n == HS + 3:
                    assert st == 1 and not side
                    rd += [Ins(f'ds_read_b128 {hp.sub(0, 4)}, {aHPr}'), Ins(f'ds_read_b128 {hp.sub(4, 4)}, {aHPr} offset:16')]
                if n == HS + 4: side += hs.L
                if n == 8 and o['khalf']:
                    A(f's_cmp_lt_u32 {s["C"]}, 4\ns_cselect_b64 exec, 0, -1')
                    for ct in range(4): A(f'ds_read_b64 {self.resx.sub(2*ct, 2)}, {ra[ct]} offset:{(4 % 3)*8192}')
                    A('s_mov_b64 exec, -1')
                vg = o['vgap0'] if n < 4 else o['vgap']
                if n == 0:
                    rx = [x for x in rd if 'b128' in x.mn] + [Ins(f'ds_read_b64 {self.resx.sub(2*ct, 2)}, {ra[ct]}') for ct in range(4)]
                    k0 = o['k0']
                    self.weave16(mf[:k0], rx, misc, vgap=vg, tail=0)
                    A('@waitvm ch0\ns_barrier')
                    self.weave16(mf[k0:], [x for x in rd if 'b128' not in x.mn], misc, vgap=vg)
                elif n == 14:
                    assert not side
                    m2 = self.p1_mfmas((bufs[1][0], bufs[1][1], hb[0]), False)[:2]
                    mf = mf[:2] + m2 + mf[2:]
                    code = self.diag_code(self.stG, self.stS[1]) + self.stats_code(self.stS[1], self.stS[0], tb4)
                    code.append([Ins(f's_mov_b64 exec, {self.mDiag}'), Ins(f'ds_write_b128 {aTBw}, {tb4} offset:256'), Ins('s_mov_b64 exec, -1')])
                    self.weave16(mf[:8], rd[1:], [], tail=0)
                    self.weave16(mf[8:15], [], code); assert not code
                    self.weave16(mf[15:], [], misc)
                else:
                    if n == 13: rd.append(Ins(f'ds_read_b128 {hb[0]}, {self.aXo[1]} offset:{(7 % 3)*8192}'))
                    self.weave16(mf, rd, misc, vgap=vg, side=side)
            else:
                A('s_barrier')
                for r in ra + aHs + [hG, hS, hp]: r.free()
                tb = [V.alloc(4, 2) for _ in range(5)]; rk = [None] + [V.alloc(2) for _ in range(4)]
                csq = V.alloc(4, 2); csk = V.alloc(4, 2); csv = V.alloc(2, 2)
                F = Asm()
                for t in range(5):
                    F(f'ds_read_b128 {tb[t]}, {aTB} offset:{t*256}')
                    if t: F(f'ds_read_b32 {rk[t][0]}, {ka} offset:{(t-1)*256}')
                for t in range(1, 5): F(f'ds_read_b32 {rk[t][1]}, {kb} offset:{(t-1)*256 + 32}')
                F(f'v_mov_b32 {csv[0]}, 0')
                for r in range(4): F(f'v_mov_b32_dpp {csk[r]}, {self.aK[0][r]} row_newbcast:0 row_mask:0xf bank_mask:0xf')
                for r in range(4): F(f'v_mov_b32_dpp {csq[r]}, {self.aQ[0][r]} row_newbcast:0 row_mask:0xf bank_mask:0xf')
                F(f'v_cvt_pk_bf16_f32 {t1}, {self.aV[0][0]}, {self.aV[0][0]}\nv_mov_b32 {csv[1]}, 0\nv_and_b32 {t1}, 0xffff0000, {t1}\nv_sub_f32 {t2}, {self.aV[0][0]}, {t1}')
                fl_ = F.L + [[Ins('s_mov_b64 exec, 0xffff'), Ins(f'v_cvt_pk_bf16_f32 {csv[1]}, {t1}, {t2}'), Ins('s_mov_b64 exec, -1')]]
                mm = mf[2:]
                self.weave16([mm[q] for q in (5, 0, 10, 6, 7, 8, 9, 1, 2, 3, 4, 11, 12, 13, 14)], [], fl_); assert not fl_
                A('@waitlg0')
        self.stamp('p1 gemm done')
        for b in bufs:
            for r in b[0] + b[1] + [b[2]]: r.free()
        for r in hb + [vHa, sH, sHm, sTh, self.sTb, aHPw, aHPr, aTBw, tb4, self.stG, self.aW1, self.vXa, self.vXb, self.vW1] + self.aX + self.aXo: r.free()
        left = []; cur = []
        for x in misc:
            cur += x if isinstance(x, list) else [x]
            if any(y.kind == 'vmem' for y in cur): left.append(cur); cur = []
        assert not cur
        self.info['w2_left'] = len(left)
        if left: A.ext(left.pop(0))
        nw2_left = 16 - o['w2a'] - o['w2b']
        late_free = [22, 8, 9] + list(range(10, 16)) + [4, 5] + list(range(16, 22)) + [6, 7, 0, 1, 2, 3]
        cv_ = V.alloc(); ct_ = V.alloc()
        crd = Asm(); crd(f'global_load_dword {cv_}, {ca_}, s[20:21] sc1')
        cck = Asm()
        chk = f'v_and_b32 {ct_}, 16, {cv_}\nv_readlane_b32 {self.sCv}, {cv_}, {s["G"]}\nv_cmp_eq_u32 vcc, 0, {ct_}'
        cck(chk + f'\ns_cmp_lg_u32 {sCx}, {self.sCv}')
        if o['force_slow']: cck('s_cmp_eq_u32 0, 0')
        cck('s_cselect_b64 vcc, -1, vcc\ns_cbranch_vccnz L_notfast\nL_mode_ok:')
        if o['ymean']:
            cck(f's_mov_b32 m0, {sRm}\ns_mov_b32 exec_hi, 0\nbuffer_load_dwordx4 {self.vL16}, {self.WS}, {sRo} offen sc1 lds\ns_mov_b32 exec_hi, -1')
        T = self.tail
        T(f'L_notfast:\ns_mov_b32 {s["T1"]}, 0x8000\nL_cen_loop:\nglobal_load_dword {cv_}, {ca_}, s[20:21] sc1\ns_waitcnt vmcnt(0)\n' + chk)
        T(f's_sub_u32 {s["T1"]}, {s["T1"]}, 1\ns_cbranch_scc1 L_cen_done\ns_cbranch_vccnz L_cen_loop\nL_cen_done:')
        if o['stamps']: T('s_add_u32 s97, s97, 0x1000000')
        if not o['force_slow']: T(f's_cmp_eq_u32 {sCx}, {self.sCv}\ns_cbranch_scc1 L_mode_ok')
        T(f's_mov_b32 {self.sMode}, 1\nv_mov_b32 {ca_}, {self.sCoff}')
        T(f's_add_u32 {s["FL"]}, {s["FL"]}, {FL_SLOW}\ns_add_u32 {self.sFme}, {self.sFme}, {FL_SLOW}\ns_mov_b32 {s["T1"]}, 0x8000\ns_cmp_lg_u32 {s["W"]}, 0\ns_cbranch_scc1 L_slow_loop')
        T(f's_mov_b64 exec, 0x3f\nv_mov_b32 {cv_}, 0\nbuffer_store_dword {cv_}, {v128}, {self.WS}, {self.sFme} offen sc1\ns_waitcnt vmcnt(0)\ns_mov_b64 exec, 1\nv_mov_b32 {cv_}, 1')
        T(f'global_atomic_add {ca_}, {cv_}, s[20:21] offset:4 sc1\ns_mov_b64 exec, -1')
        T(f'L_slow_loop:\nglobal_load_dword {cv_}, {ca_}, s[20:21] offset:4 sc1\ns_waitcnt vmcnt(0)\nv_readfirstlane_b32 {s["T2"]}, {cv_}')
        T(f's_sub_u32 {s["T1"]}, {s["T1"]}, 1\ns_cbranch_scc1 L_mode_ok\ns_cmp_lt_u32 {s["T2"]}, 16\ns_cbranch_scc1 L_slow_loop\ns_branch L_mode_ok')
        E = Asm()
        Kp = V.alloc(10, 2); Qp = V.alloc(10, 2); Vp = V.alloc(10, 2)
        def fixf(acc, cs, t):
            for h in range(2): E(f'v_pk_fma_f32 {acc[t].sub(2*h, 2)}, {cs.sub(2*h, 2)}, {tb[t].sub(0, 2)}, {acc[t].sub(2*h, 2)} op_sel_hi:[1,0,1]')
        fixf(self.aK, csk, 0)
        for t in range(1, 5): fixf(self.aK, csk, t); fixf(self.aQ, csq, t)
        zs = [None] + [V.alloc(2) for _ in range(4)]
        for t in range(1, 5): E(f'v_pk_mul_f32 {zs[t]}, {rk[t]}, {tb[t].sub(2, 2)} op_sel:[0,1] op_sel_hi:[1,1]')
        cv = lambda acc, dst, t: [f'v_cvt_pk_bf16_f32 {dst[2*t + h]}, {acc[t][2*h]}, {acc[t][2*h+1]}' for h in range(2)]
        vm = [f'v_mfma_f32_16x16x16_bf16 {self.aV[t]}, {tb[t].sub(0, 2)}, {csv}, {self.aV[t]}' for t in range(5)]
        cvs = cv(self.aK, Kp, 0)
        for t in range(1, 5): cvs += cv(self.aK, Kp, t) + cv(self.aQ, Qp, t)
        for t in range(5):
            E(vm[t]); E(cvs.pop(0)); E(cvs.pop(0))
        Sp, So = self.aK, self.aQ
        Sp = [None] + self.aK[0:4]; So = [None] + self.aQ[0:4]
        for t in range(1, 5):
            E(f'v_mfma_f32_16x16x16_bf16 {Sp[t]}, {Kp.sub(2*t-2, 2)}, {Qp.sub(2*t, 2)}, 0')
            for _ in range(2):
                if cvs: E(cvs.pop(0))
            E(f'v_mfma_f32_16x16x16_bf16 {So[t]}, {Kp.sub(2*t, 2)}, {Qp.sub(2*t, 2)}, 0')
            for _ in range(2):
                if cvs: E(cvs.pop(0))
        z = [None] + [V.alloc(2) for _ in range(4)]
        for t in range(1, 5):
            for h, mk in ((0, mOwnA), (1, mOwnB)):
                E(f'v_cndmask_b32 {Sp[t][2*h]}, {Sp[t][2*h]}, {Sp[t][2*h+1]}, {self.mB0}\nv_cndmask_b32 {So[t][2*h]}, {So[t][2*h]}, {So[t][2*h+1]}, {self.mB0}')
                E(f'v_cndmask_b32 {z[t][h]}, {Sp[t][2*h]}, {So[t][2*h]}, {mk}')
        E(f'v_pk_fma_f32 {z[1]}, {z[1]}, {zs[1]}, {bias}')
        for t in range(2, 5): E(f'v_pk_mul_f32 {z[t]}, {z[t]}, {zs[t]}')
        red = zs
        fl = [x for t in range(5) for x in cv(self.aV, Vp, t)]
        def fill(n):
            for _ in range(n):
                if fl: E(fl.pop(0))
        def allreduce(op, mid=None):
            r = [None] + [red[t][0] for t in range(1, 5)]
            for t in (1, 3, 2, 4): E(f'{op} {r[t]}, {z[t][0]}, {z[t][1]}')
            E(f'v_permlane32_swap_b32 {r[1]}, {r[3]}'); fill(1)
            E(f'v_permlane32_swap_b32 {r[2]}, {r[4]}')
            E(f'{op} {r[1]}, {r[1]}, {r[3]}\n{op} {r[2]}, {r[2]}, {r[4]}'); fill(2)
            E(f'v_permlane16_swap_b32 {r[1]}, {r[2]}')
            E(f'{op} {r[1]}, {r[1]}, {r[2]}')
            if mid: E(f'{mid} {r[1]}, {r[1]}'); fill(1)
            E(f'v_mov_b32 {r[2]}, {r[1]}'); fill(2)
            E(f'v_permlane16_swap_b32 {r[1]}, {r[2]}')
            E(f'v_mov_b32 {r[3]}, {r[1]}\nv_mov_b32 {r[4]}, {r[2]}'); fill(1)
            E(f'v_permlane32_swap_b32 {r[1]}, {r[3]}\nv_permlane32_swap_b32 {r[2]}, {r[4]}')
        allreduce('v_max_f32')
        for t in range(1, 5): E(f'v_pk_add_f32 {z[t]}, {z[t]}, {red[t]} op_sel_hi:[1,0] neg_lo:[0,1] neg_hi:[0,1]')
        for t in range(1, 5): E(f'v_exp_f32 {z[t][0]}, {z[t][0]}\nv_exp_f32 {z[t][1]}, {z[t][1]}')
        fl += [f'v_pk_mul_f32 {rk[t]}, {z[t]}, {rk[t]}' for t in range(1, 5)]
        allreduce('v_add_f32', 'v_rcp_f32')
        fill(20)
        for t in range(1, 5): E(f'v_pk_mul_f32 {z[t]}, {rk[t]}, {red[t]} op_sel_hi:[1,0]')
        for t in range(1, 5): E(f'v_cvt_pk_bf16_f32 {z[t][0]}, {z[t][0]}, {z[t][1]}')
        P = Sp; O = So
        for t in range(1, 5):
            for q in range(4):
                E(f'v_perm_b32 {P[t][q]}, {z[t][0]}, {z[t][0]}, {sel[q]}')
                if q == 1 and t > 1: E(f'v_mfma_f32_16x16x32_bf16 {O[t-1]}, {Vp.sub(2*t-4, 4)}, {P[t-1]}, 0')
        of = [self.aV[0], self.aV[1]]
        oc = lambda t: [f'v_cvt_pk_bf16_f32 {of[(t-1) >> 1][2*((t-1) & 1) + h]}, {O[t][2*h]}, {O[t][2*h+1]}' for h in range(2)]
        for x in oc(1): E(x)
        E(f'v_mfma_f32_16x16x32_bf16 {O[4]}, {Vp.sub(6, 4)}, {P[4]}, 0')
        groups = pf_flat('e0') + left + self.dmas(nw2_left) + pf_flat('e1')
        self.free_blocks += late_free
        groups += self.dmas(o['b_epi'])
        code = sprinkle(E, groups, o['sp1'], start=8)
        sp_ = safe_points(code)
        k2 = max(q for q in sp_ if q <= o['cen_ck']); code[k2:k2] = cck.L
        k1 = max(q for q in sp_ if q <= o['cen_rd']); code[k1:k1] = crd.L
        self.info['epi'] = len(code)
        A.ext(code)
        for r in (cv_, ca_, ct_, sCx, sRm, sRo): r.free()
        A(f's_add_u32 {s["T0"]}, {self.sOst}, 32768\n;dual_begin')
        for x in oc(2) + oc(3): A(x)
        A(f'v_permlane16_swap_b32 {of[0][0]}, {of[0][2]}\nv_permlane16_swap_b32 {of[0][1]}, {of[0][3]}')
        for x in oc(4): A(x)
        self.store2(A, 'dwordx4', of[0], self.vL16, self.sOst, 0, 'ost', self.OUT)
        A(f'v_permlane16_swap_b32 {of[1][0]}, {of[1][2]}\nv_permlane16_swap_b32 {of[1][1]}, {of[1][3]}')
        self.store2(A, 'dwordx4', of[1], self.vL16, s["T0"], 0, 'ost', self.OUT)
        A(';dual_end')
        self.stamp('o stored')
        for gq in pf_flat('e2'): A.ext(gq)
        self.pf_p2 = pf_flat('p2'); self.pf_regs = (vT, vTo, sP, v1k)
        self.junk1 = junk
        self.OSRD = OSRD
        for r in tb + rk[1:] + zs[1:] + z[1:] + [csq, csk, csv, Kp, Qp, Vp, bias, sel, aTB, ka, kb] + self.aQ + self.aK + self.aV[2:]: r.free()
        for r in (mOwnA, mOwnB, self.sCen, self.sCoff, self.sCv, self.sW3K, self.sKC, self.sSO, self.sH128): r.free()
        self.of = of

    def phase2(self):
        A, V, S, AG, s, vL, o = self.A, self.V, self.S, self.AG, self.s, self.vL, self.o
        t1, t2, t3, j, g = self.t1, self.t2, self.t3, self.vJ, self.vG
        self.vOne = V.alloc(); self.vPv = V.alloc()
        assert ('W2', 15) in self.loc
        aw = [V.alloc() for _ in range(4)]
        mark = len(A.L)
        A(f'v_lshl_add_u32 {t1}, {g}, 10, {self.vTRb}\nv_add_u32 {t1}, {23*BLK}, {t1}')
        for ct in range(4): A(f'v_xor_b32 {t2}, {ct*32}, {self.vTRf}\nv_add_u32 {aw[ct]}, {t1}, {t2}')
        self.sR2 = S.alloc(); pa = V.alloc(); oa = V.alloc(); hv = V.alloc(); sSt = S.alloc(); vj16 = V.alloc(); aRw = V.alloc()
        A(f's_lshl_b32 {s["T0"]}, {s["SB"]}, 5\nv_and_b32 {t1}, 7, {vL}\nv_lshl_add_u32 {pa}, {t1}, 2, {s["T0"]}\nv_mov_b32 {self.vOne}, 1')
        A(f's_lshr_b32 {s["T0"]}, {s["W"]}, 1\ns_lshl_b32 {s["T0"]}, {s["T0"]}, 10\ns_and_b32 {s["T1"]}, {s["W"]}, 1\ns_lshl_b32 {s["T1"]}, {s["T1"]}, 8')
        A(f'v_lshlrev_b32 {vj16}, 4, {j}\nv_and_b32 {t1}, 1, {g}\nv_lshl_add_u32 {t1}, {t1}, 9, {vj16}\nv_add_u32 {t1}, {s["T1"]}, {t1}\nv_lshrrev_b32 {t2}, 1, {g}\nv_lshl_add_u32 {hv}, {t2}, 11, {t1}\nv_lshl_add_u32 {oa}, {t2}, 10, {t1}')
        A(f's_lshl_b32 {self.sR2}, {s["BLK"]}, 16\ns_lshl_b32 {s["T2"]}, {s["T0"]}, 5\ns_add_u32 {self.sR2}, {self.sR2}, {s["T2"]}')
        acc = [V.alloc(4, 2) for _ in range(4)]
        for ct in range(4):
            for h in range(2):
                A(f'v_lshlrev_b32 {acc[ct][2*h]}, 16, {self.resx[2*ct+h]}\nv_and_b32 {acc[ct][2*h+1]}, 0xffff0000, {self.resx[2*ct+h]}')
        accM = self.stS; aR = V.alloc()
        if o['ymean']:
            A(f's_add_u32 {sSt}, {s["T0"]}, {s["T1"]}\ns_lshl_b32 {s["T0"]}, {s["SB"]}, 11\ns_add_u32 {sSt}, {sSt}, {s["T0"]}\ns_and_b32 {s["T0"]}, {s["C"]}, 4\ns_lshl_b32 {s["T0"]}, {s["T0"]}, 7\ns_add_u32 {sSt}, {sSt}, {s["T0"]}')
            A(f's_and_b32 {s["T0"]}, {s["C"]}, 3\ns_lshl2_add_u32 {sSt}, {s["T0"]}, {sSt}\ns_add_u32 {sSt}, {sSt}, {s["GB"]}\ns_add_u32 {sSt}, {sSt}, {WS_ST}')
            A(f'v_and_b32 {t1}, 1, {j}\nv_mul_u32_u24 {t1}, 1088, {t1}\nv_lshl_add_u32 {t1}, {g}, 4, {t1}\nv_add_u32 {aR}, {SCR_R}, {t1}\nv_mov_b32 {accM[1]}, 0')
        else:
            A(f's_lshl_b32 {s["T0"]}, {s["T0"]}, 1\ns_add_u32 {sSt}, {s["T0"]}, {s["T1"]}\ns_lshl_b32 {s["T0"]}, {s["SB"]}, 12\ns_add_u32 {sSt}, {sSt}, {s["T0"]}')
            A(f's_and_b32 {s["T0"]}, {s["C"]}, 2\ns_lshl_b32 {s["T0"]}, {s["T0"]}, 9\ns_add_u32 {sSt}, {sSt}, {s["T0"]}\ns_and_b32 {s["T0"]}, {s["C"]}, 4\ns_lshl_b32 {s["T0"]}, {s["T0"]}, 7\ns_add_u32 {sSt}, {sSt}, {s["T0"]}')
            A(f's_and_b32 {s["T0"]}, {s["C"]}, 1\ns_lshl_b32 {s["T0"]}, {s["T0"]}, 3\ns_add_u32 {sSt}, {sSt}, {s["T0"]}\ns_add_u32 {sSt}, {sSt}, {s["GB"]}\ns_add_u32 {sSt}, {sSt}, {WS_ST}')
        A.L[mark:] = sprinkle(A.L[mark:], self.dmas(o['b_pre1']), o.get('sp3', 12))
        A('@waitvm ost')
        for r in self.of: r.free()
        self.stamp('o drained')
        A('@waitvm W2_15\ns_barrier')
        A.ext(self.signal(0))
        Wf = [[AG.alloc(4, 4) for _ in range(4)] for _ in range(16)]
        def rd(i):
            off = (self.loc[('W2', i)] - 23)*BLK
            return [Ins(f'ds_read_b64_tr_b16 {Wf[i][ct].sub(2*a, 2)}, {aw[ct]} offset:{off + a*512}') for ct in range(4) for a in range(2)] + \
                   ([Ins(f'ds_read_b128 {Rf[i]}, {aR} offset:{i*64}')] if o['ymean'] else [])
        Rf = [V.alloc(4, 2) for _ in range(16 if o['ymean'] else 0)]
        npre = o['w2pre']
        n0 = min(npre, o['w2pre0'])
        A.ext(sprinkle([x for i in range(n0) for x in rd(i)], self.dmas(o['b_post1']), 8))
        A.ext(self.visit('v1'))
        self.sync_wait(A, pa, 0, self.mW16 if o['one_poll'] else '0xff', o['b_aft1'], [x for i in range(n0, npre) for x in rd(i)])
        if o['one_poll']: A('s_barrier')
        self.stamp('sync1 done')
        Of = [V.alloc(4, 2) for _ in range(16)]
        ld = [([Ins(f's_add_u32 {self.sR2}, {self.sR2}, 4096')] if i and i % 2 == 0 else []) + [Ins(f'buffer_load_dwordx4 {Of[i]}, {oa}, {self.OSRD}, {self.sR2} offen offset:{(i & 1)*2048} sc1')] for i in range(16)]
        rest = [x for i in range(npre, 16) for x in rd(i)]
        LO = o['LO']
        for i in range(LO):
            A.ext(ld[i]); A.ext(rest[:5]); rest = rest[5:]
        misc = [x for gq in ld[LO:] for x in gq] + self.pf_p2 + [x for gq in self.dmas(o['b_o']) for x in gq]
        mf = []
        for i in range(16):
            if o['ymean']: mf.append(Ins(f'v_mfma_f32_16x16x32_bf16 {accM}, {Rf[i]}, {Of[i]}, {accM}'))
            mf += [Ins(f'v_mfma_f32_16x16x32_bf16 {acc[ct]}, {Wf[i][ct]}, {Of[i]}, {acc[ct]}') for ct in range(4)]
        mark2 = len(A.L)
        self.gap_since_vm = 99
        self.weave16(mf, rest, misc)
        for x in misc: A.ext(x if isinstance(x, list) else [x])
        for r in self.pf_regs: r.free()
        used = set()
        for x in A.L[mark2:]:
            if x.kind == 'mfma': used |= x.srcAB
            elif x.kind in ('ds', 'vmem'): assert not (x.defs & used), x.text
        self.stamp('p2 gemm done')
        w2b = sorted(self.loc[('W2', i)] for i in range(16))
        self.resb = w2b[0]; assert w2b[1] == w2b[0] + 1
        A(f's_add_u32 {s["T0"]}, {self.sW2K}, {self.resb*BLK}\nv_lshlrev_b32 {t1}, 7, {j}\nv_lshl_add_u32 {t1}, {g}, 3, {t1}')
        A(f'v_bfe_u32 {t2}, {j}, 0, 2\nv_lshl_add_u32 {t1}, {t2}, 5, {t1}\nv_add_u32 {aRw}, {s["T0"]}, {t1}\ns_barrier')
        self.free_blocks += w2b[2:]
        hf = [Of[0], Of[1]]; G4, S4 = Of[2], Of[3]
        A(';dual_begin')
        hc = acc
        if o['ymean']:
            hc = Of[6:10]
            A(f'v_add_f32 {accM[0]}, {accM[0]}, {accM[1]}')
            for ct in range(4):
                for h in range(2): A(f'v_pk_add_f32 {hc[ct].sub(2*h, 2)}, {acc[ct].sub(2*h, 2)}, {accM.sub(0, 2)} op_sel_hi:[1,0]')
        for par in range(2):
            for ct in range(4): A(f'v_cvt_pk_bf16_f32 {hf[par][ct]}, {hc[ct][par]}, {hc[ct][2+par]}')
        rp = Reg('v', Of[4].b, 8); assert Of[5].b == Of[4].b + 4
        rc = [f'v_cvt_pk_bf16_f32 {rp[2*ct+h]}, {acc[ct][2*h]}, {acc[ct][2*h+1]}' for ct in range(4) for h in range(2)]
        A(f'v_mfma_f32_16x16x32_bf16 {G4}, {hf[0]}, {hf[0]}, 0')
        self.store2(A, 'dwordx4', hf[0], hv, self.sHst, 0, 'hst')
        A(f'v_mfma_f32_16x16x32_bf16 {G4}, {hf[1]}, {hf[1]}, {G4}')
        d = self.diag_code(G4, S4[1])
        if o['ymean']:
            self.store2(A, 'dwordx4', hf[1], hv, self.sHst, 1024, 'hst')
            A('\n'.join(rc[:7])); A.ext(d); rc = rc[7:]
            A(f's_mov_b64 exec, {self.mDiag}')
            self.store2(A, 'dword', S4[1], vj16, sSt, 0, 'hst', nt='sst' in o['nt_tags'])
        else:
            A(f'v_mfma_f32_16x16x32_bf16 {S4}, {self.ones}, {hf[0]}, 0')
            A(f'v_mfma_f32_16x16x32_bf16 {S4}, {self.ones}, {hf[1]}, {S4}')
            self.store2(A, 'dwordx4', hf[1], hv, self.sHst, 1024, 'hst')
            A('\n'.join(rc[:3])); A.ext(d[:2]); A(rc[3]); A.ext(d[2:]); rc = rc[4:]
            A(f's_mov_b64 exec, {self.mDiag}')
            self.store2(A, 'dwordx2', S4.sub(0, 2), vj16, sSt, 0, 'hst')
        A('s_mov_b64 exec, -1\n;dual_end')
        self.stamp('h stored')
        A('\n'.join(rc))
        A(f'ds_write_b64 {aRw}, {rp.sub(0, 2)}')
        for ct in range(1, 4): A(f'v_xor_b32 {t1}, {ct*32}, {aRw}\nds_write_b64 {t1}, {rp.sub(2*ct, 2)}')
        for r in aw + Rf + [pa, oa, hv, vj16, aRw, aR, accM] + acc + Of[6:] + [x for y in Wf for x in y] + [self.vW2, self.vW2b, self.mB0, self.mB1, self.mDiag, self.sR2, sSt, self.sOst, self.sHst, self.ones]: r.free()
        self.late_free = Of[:6] + [self.junk1]

    def phase34(self):
        A, V, S, AG, s, vL, o = self.A, self.V, self.S, self.AG, self.s, self.vL, self.o
        t1, t2, t3, j, g = self.t1, self.t2, self.t3, self.vJ, self.vG
        P = Asm()
        Q = Asm()
        class Win:
            def __init__(w, base): w.r = {0: base}
            def need(w, k):
                if k in w.r: return []
                w.r[k] = V.alloc()
                return [Ins(f'v_add_u32 {w.r[k]}, {k << 16}, {w.r[0]}')]
        aF, aH, aD = [], [], []
        P(f'v_and_b32 {t1}, 1, {g}\nv_lshlrev_b32 {t1}, 11, {t1}\nv_lshrrev_b32 {t2}, 1, {g}\nv_lshl_add_u32 {t3}, {t2}, 10, {t1}')
        b0 = V.alloc(); P(f'v_add3_u32 {b0}, {t3}, {self.vTRb}, {self.vTRf}'); aF.append(Win(b0))
        for uu in range(1, 4):
            b = V.alloc(); P(f'v_xor_b32 {b}, {uu*32}, {b0}'); aF.append(Win(b))
        b0 = V.alloc(); b1 = V.alloc()
        P(f'v_lshl_add_u32 {t3}, {t2}, 9, {t1}\nv_bfe_u32 {t1}, {vL}, 2, 2\nv_lshl_add_u32 {t3}, {t1}, 6, {t3}\nv_and_b32 {t1}, 3, {vL}\nv_lshl_add_u32 {t3}, {t1}, 3, {t3}\nv_and_b32 {t1}, 1, {g}\nv_lshl_add_u32 {b0}, {t1}, 5, {t3}\nv_xor_b32 {b1}, 32, {b0}')
        aH = [Win(b0), Win(b1)]
        aCF = aCH = delta = None
        if not o['ymean']:
            P(f's_and_b32 {s["T1"]}, {s["W"]}, 2\nv_or_b32 {t1}, {s["T1"]}, {t1}\nv_lshlrev_b32 {t1}, 5, {t1}')
            b = V.alloc(); P(f'v_xor_b32 {b}, {t1}, {self.vL16}\nv_add_u32 {b}, {s["W1K"]}, {b}'); aCF = Win(b)
            b = V.alloc(); P(f's_lshl_b32 {s["T1"]}, {s["T1"]}, 4\nv_xor_b32 {b}, {s["T1"]}, {self.vL16}\nv_add_u32 {b}, {s["W1K"]}, {b}'); aCH = Win(b)
            delta = V.alloc(4, 2)
            P(f'v_and_b32 {t1}, 1, {j}\nv_lshlrev_b32 {t1}, 4, {t1}\nv_mov_b32 {t2}, 0x3f80\nv_lshlrev_b32 {t1}, {t1}, {t2}')
            for d in range(4):
                mk = 0x00030003 << (2*d)
                P(f's_mov_b32 vcc_lo, {hex(mk)}\ns_mov_b32 vcc_hi, {hex(mk)}\nv_cndmask_b32 {delta[d]}, 0, {t1}, vcc')
        pa2 = V.alloc(); pa3 = V.alloc(); aRes = V.alloc(); vHl = {'F': V.alloc(), 'H': V.alloc()}
        sT4 = S.alloc(); sGa = S.alloc(); sGb = S.alloc(); sGl = S.alloc(); sHl = S.alloc(); sKH = S.alloc(); sTH = S.alloc(); sSl = S.alloc(); sGo = S.alloc(); sTs = S.alloc(); sLo = S.alloc(); sLw = S.alloc()
        P(f's_lshr_b32 {sKH}, {s["W"]}, 1\ns_and_b32 {sTH}, {s["W"]}, 1')
        P(f'v_lshlrev_b32 {pa3}, 2, {j}\nv_lshl_add_u32 {pa2}, {sKH}, 5, {pa3}')
        P(f's_lshl_b32 {s["T1"]}, {s["W"]}, 15\ns_add_u32 {sHl}, {s["T1"]}, {s["GB"]}\nv_lshl_add_u32 {vHl["F"]}, {0 if o["mirror"] else s["PF"]}, 10, {self.vL16}\nv_xor_b32 {vHl["H"]}, 1024, {vHl["F"]}')
        P(f's_lshl_b32 {s["T2"]}, {sTH}, 12\ns_add_u32 {s["T2"]}, {s["T2"]}, {self.resb*BLK}\nv_lshrrev_b32 {t2}, 5, {vL}\nv_lshl_add_u32 {t2}, {sKH}, 1, {t2}\nv_and_b32 {t1}, 3, {vL}\nv_xor_b32 {t2}, {t2}, {t1}')
        P(f'v_and_b32 {t1}, 31, {vL}\nv_lshl_add_u32 {t1}, {t1}, 7, {s["T2"]}\nv_lshl_add_u32 {aRes}, {t2}, 5, {t1}')
        Q(f's_add_u32 {sSl}, {s["W1K"] if o["ymean"] else self.sW2K}, {s["GB"]}\ns_add_u32 {sSl}, {sSl}, {WS_ST}')
        Q(f's_lshl_b32 {s["T3"]}, {s["W"]}, 15\ns_lshl_b32 {s["T2"]}, {s["M"]}, 10\ns_add_u32 {s["T2"]}, {s["T2"]}, {s["T3"]}\ns_add_u32 {sGa}, {s["T2"]}, {s["GB"]}')
        Q(f's_lshl_b32 {sLo}, {s["G"]}, 17\ns_add_u32 {sGo}, {sLo}, {s["T2"]}')
        Q(f's_mul_i32 {s["T2"]}, {s["PF"]}, {16*KB - 512}\ns_add_u32 {sGb}, {s["T3"]}, {s["T2"]}\ns_lshl_b32 {s["T2"]}, {s["M"]}, 9\ns_add_u32 {sGb}, {sGb}, {s["T2"]}\ns_add_u32 {sGb}, {sGb}, {s["GB"]}')
        Q(f's_lshl1_add_u32 {sT4}, {s["SB"]}, {sTH}\ns_lshl1_add_u32 {s["T2"]}, {sT4}, {sKH}\ns_lshl_b32 {s["T2"]}, {s["T2"]}, 14\ns_add_u32 {sLo}, {sLo}, {s["T2"]}\ns_add_u32 {sLw}, {s["GB"]}, {s["T2"]}')
        Q(f'v_bfe_u32 {t1}, {vL}, 2, 2\nv_lshrrev_b32 {t2}, 1, {g}\nv_lshl_add_u32 {t1}, {t2}, 2, {t1}\nv_lshlrev_b32 {t3}, 7, {t1}\nv_bfe_u32 {t1}, {vL}, 3, 1\nv_lshl_add_u32 {t3}, {t1}, 6, {t3}')
        Q(f'v_and_b32 {t1}, 1, {vL}\nv_lshl_add_u32 {t3}, {t1}, 5, {t3}\nv_and_b32 {t1}, 1, {g}\nv_lshl_add_u32 {t3}, {t1}, 4, {t3}\nv_bfe_u32 {t1}, {vL}, 1, 1\nv_lshl_add_u32 {t3}, {t1}, 3, {t3}')
        b0 = V.alloc(); b1 = V.alloc()
        Q(f's_mul_i32 {s["T2"]}, {sKH}, {2048 + 64}\nv_xor_b32 {b0}, {s["T2"]}, {t3}\nv_xor_b32 {b1}, 64, {b0}')
        aD = [Win(b0), Win(b1)]
        if not o['ymean']:
            aCW = V.alloc(); aCR = V.alloc()
            Q(f's_lshl_b32 {s["T2"]}, {sTH}, 10\ns_lshl_b32 {s["T3"]}, {sKH}, 9\ns_add_u32 {s["T2"]}, {s["T2"]}, {s["T3"]}\ns_add_u32 {s["T2"]}, {s["T2"]}, {SCR_CS}')
            Q(f'v_lshl_add_u32 {t1}, {g}, 4, {s["T2"]}\nv_lshl_add_u32 {aCW}, {j}, 5, {t1}')
            Q(f'v_and_b32 {t1}, 1, {g}\nv_lshlrev_b32 {t1}, 9, {t1}\nv_lshl_add_u32 {t1}, {j}, 2, {t1}\nv_lshl_add_u32 {t1}, {t2}, 11, {t1}\nv_add_u32 {aCR}, {SCR_CS}, {t1}')
            cA = V.alloc(4, 2); cB = V.alloc(4, 2); cT = V.alloc(2)
            for r in (cA, cB):
                for k in range(1, 4): Q(f'v_mov_b32 {r[k]}, 0')
        self.info['setupP'] = len(P.L); self.info['setupQ'] = len(Q.L)
        HB = {('F', i): AG.at(8*i, 4) for i in range(16)}; HB.update({('H', i): AG.at(8*i + 4, 4) for i in range(16)})
        ops = []
        def op3(u, ty, i):
            if ty == 'F':
                if u < 4: key, ad, st, ex = ('F1', i), aF[u], 512, 0
                else: key, ad, st, ex = ('S3', i >> 1), aH[u - 4], 256, (i & 1)*1024
            else:
                if u < 2: key, ad, st, ex = ('H1', i >> 1), aH[u], 256, (i & 1)*1024
                else: key, ad, st, ex = ('S2', i), aF[u - 2], 512, 0
            ops.append(dict(k='m', u=u, key=key, ad=ad, st=st, ex=ex, B=HB[(ty, i)], hk=(ty, i)))
        if o['order'] == 'pair':
            for i in range(16):
                for ty in 'FH':
                    for u in (0, 1): op3(u, ty, i)
            if o.get('o23') != 'seq':
                for i in range(16):
                    for u in (2, 3): op3(u, 'F', i)
        else:
            for i in range(16):
                for u in range(4): op3(u, 'F', i)
                for u in (0, 1): op3(u, 'H', i)
        if o.get('o45') == 'all':
            for i in range(16):
                for u in (2, 3, 4, 5): op3(u, 'H', i)
            for u in (4, 5):
                for i in range(16): op3(u, 'F', i)
        elif o.get('o23') == 'seq':
            for u in (2, 3):
                for ty in 'FH':
                    for i in range(16): op3(u, ty, i)
        elif o.get('o23') == 'mix':
            for i in range(16):
                for u in (2, 3): op3(u, 'H', i)
        else:
            for u in (2, 3):
                for i in range(16): op3(u, 'H', i)
        if o.get('o45') == 'all': pass
        elif o.get('o45') == 'mix2':
            for ty in 'HF':
                for i in range(16):
                    for u in (4, 5): op3(u, ty, i)
        elif o.get('o45', 'mix') == 'mix':
            for i in range(16):
                for u in (4, 5): op3(u, 'H', i)
            for u in (4, 5):
                for i in range(16): op3(u, 'F', i)
        else:
            for u in (4, 5):
                for ty in 'HF':
                    for i in range(16): op3(u, ty, i)
        NG, NR, LA = o['NG'], o['NR'], o['LA']
        GB = [AG.alloc(4, 4) for _ in range(NG)]
        TL = o['TL']
        o4 = lambda i, k: ops.append(dict(k='m', u=6 + k, key=('W4', i), ad=aD[k], st=1024, ex=0, B=None, hk=('g', i)))
        for i in range(43 - TL):
            for k in range(2): o4(i, k)
        for k in (1, 0):
            for i in range(43 - TL, 43): o4(i, k)
        RB = [AG.alloc(4, 4) for _ in range(NR)]
        csacc = {} if o['ymean'] else {c: V.alloc(4, 2) for c in ('F1', 'H1', 'S2', 'S3')}
        cnt = {}
        def cs_op(key):
            c = key[0]; cnt[c] = cnt.get(c, 0) + 1
            return dict(k='c', key=key, ad=aCF if c in ('F1', 'S2') else aCH, first=cnt[c] == 1, last=cnt[c] == (16 if c in ('F1', 'S2') else 8))
        pre_keys = [k for k in self.issued if k[0] != 'W2'][:o['cs_pre']]
        pre_ops = [cs_op(k) for k in pre_keys]
        seen = set(pre_keys); ops2 = []; at = {}; fc = {}; nth = {}
        if o['ymean']: seen = {p['key'] for p in ops}; pre_ops = []
        for n, p in enumerate(ops):
            if p['key'][0] != 'W4' and p['key'] not in seen:
                seen.add(p['key']); c = p['key'][0]; fc.setdefault(c, n); nth[c] = nth.get(c, -1) + 1
                lead, spc = o['cs_lead'].get(c, (0, 99))
                at.setdefault(max(0, min(n, fc[c] - lead + spc*nth[c])), []).append(p['key'])
        for n, p in enumerate(ops):
            ops2 += [cs_op(k) for k in at.get(n, [])] + [p]
        ops = ops2
        for n, p in enumerate(ops): p['R'] = RB[n % NR]; p['n'] = n
        for n, p in enumerate(pre_ops): p['R'] = Reg('a', 4*n, 4); p['n'] = -1
        N = len(ops)
        last_use = {p['key']: p['n'] for p in ops}
        last_op = {p['u']: p['n'] for p in ops if p['k'] == 'm'}
        first4 = min(p['n'] for p in ops if p.get('u', 0) >= 6)
        def reads(p):
            b = self.loc[p['key']]; w, off = b >> 4, (b & 15)*BLK
            pre = p['ad'].need(w); ad = p['ad'].r[w]
            if p['k'] == 'c': return pre + [Ins(f'ds_read_b128 {p["R"]}, {ad} offset:{off}', f'r{p["n"]}')]
            return pre + [Ins(f'ds_read_b64_tr_b16 {p["R"].sub(2*a, 2)}, {ad} offset:{off + p["ex"] + a*p["st"]}', f'r{p["n"]}') for a in range(2)]
        started = set()
        def mfma(p):
            if p['k'] == 'c':
                c = csacc[p['key'][0]]
                return Ins(f'v_mfma_f32_16x16x32_bf16 {c}, {delta}, {p["R"]}, {0 if p["first"] else c}')
            a = acc[p['u']] if p['u'] < 6 else (accK, accS)[p['u'] - 6]
            z = p['u'] not in started and p['u'] != 6
            started.add(p['u'])
            return Ins(f'v_mfma_f32_32x32x16_bf16 {a}, {p["R"]}, {p["B"] or slot[p["hk"]]}, {0 if z else a}')
        visible = set(self.issued)
        A.ext(sprinkle(P, self.dmas(o['b_pre2']), o.get('sp3', 12)))
        for p in pre_ops: A.ext(p['ad'].need(self.loc[p['key']] >> 4))
        A('@waitvm hst')
        self.stamp('h drained')
        for r in self.late_free + [self.vTRb, self.vTRf]: r.free()
        A('@waitlg0\ns_barrier')
        A.ext(self.signal(1))
        res = self.resx
        E = Asm()
        E(f'ds_read_b128 {res.sub(0, 4)}, {aRes}\nds_read_b128 {res.sub(4, 4)}, {aRes} offset:16')
        for q in range(len(pre_ops) + 4):
            if q < len(pre_ops): E.ext(reads(pre_ops[q]))
            if q >= 4: E.L.append(mfma(pre_ops[q - 4]))
        for q in range(LA):
            assert ops[q]['key'] in visible
            E.ext(reads(ops[q]))
        if o['q_early']: E.ext(Q); Q = Asm()
        A.ext(sprinkle(E, self.dmas(o['b_post2']), o.get('sp2', 14)))
        if o.get('l2fill2'):
            for srd in o['l2fill2']:
                if srd == 'W3': A(f's_lshr_b32 {s["T0"]}, s2, 3\ns_and_b32 {s["T1"]}, {s["W"]}, 1\ns_lshl1_add_u32 {s["T0"]}, {s["T0"]}, {s["T1"]}\ns_mul_i32 {s["T0"]}, {s["T0"]}, {172*128}\ns_mov_b32 {s["T2"]}, s38\ns_mov_b32 s38, {512*PITCH3}')
                else: A(f's_lshr_b32 {s["T0"]}, s2, 3\ns_lshl2_add_u32 {s["T0"]}, {s["T0"]}, {s["W"]}\ns_mul_i32 {s["T0"]}, {s["T0"]}, {86*128}')
                for q in range(3 if srd == 'W3' else 2): A(f'buffer_load_dword {self.vPv}, {self.v128}, {getattr(self, srd)}, {s["T0"]} offen sc1\ns_add_u32 {s["T0"]}, {s["T0"]}, 8192')
                A('@waitvm0')
                if srd == 'W3': A(f's_mov_b32 s38, {s["T2"]}')
            A(f's_mov_b32 {s["T0"]}, 60\nL_dly2:\ns_sub_u32 {s["T0"]}, {s["T0"]}, 1\ns_cmp_lg_u32 {s["T0"]}, 0\ns_cbranch_scc1 L_dly2')
        A.ext(self.visit('v2'))
        n_before = len(self.issued)
        if o['one_poll']: self.sync_wait(A, pa3, 1, self.mW16, o['b_aft2']); A('s_barrier')
        else: self.sync_wait(A, pa2, 1, '0xff', o['b_aft2'], Q.L if o['b_aft2'] else ())
        if o['b_aft2'] and not o['one_poll']: Q = Asm()
        inflight = self.issued[n_before:]
        self.stamp('sync2 done')
        self.mark34 = len(A.L)
        acc = [V.alloc(16, 2) for _ in range(6)]
        accK, accS = acc[0], acc[1]
        LATH, LATD, LATS, VS, WE, VC = o['LATH'], o['LATD'], o['LATS'], o['vslack'], o['WE'], o['VC']
        horder = []; hfirst = {}; hlast = {}
        for p in ops:
            if 'hk' in p:
                if p['hk'] not in hfirst: hfirst[p['hk']] = p['n']; horder.append(p['hk'])
                hlast[p['hk']] = p['n']
        first_use = {}
        for p in ops: first_use.setdefault(p['key'], p['n'])
        sp = V.alloc(8, 2)
        cc = V.alloc(2); c1, c3 = cc[0], cc[1]; iv2 = V.alloc(2); iv = iv2[0]; tt = V.alloc(8, 2); go = [V.alloc(4, 2), V.alloc(4, 2)]
        cs_last = {p['key'][0]: p['n'] for p in pre_ops + ops if p['k'] == 'c' and p['last']}
        I = lambda text, tag=None: [Ins(x, tag) for x in text.split('\n')]
        tagof = lambda k: f'{k[0]}_{k[1]}'
        stage_of = lambda i: 1 if i < 15 else 2 if i < 29 else 3 if i < 36 else 4
        rq = []; pairw = {}
        for q, hk in enumerate(horder):
            ty, i = hk
            if ty == 'g':
                sg = stage_of(i); k = i - (0, 15, 29, 36)[sg - 1]
                code = I(f's_add_u32 {sGl}, {sLo if sg == 1 else sLw}, {(0, WS_G, WS_H, WS_H + 8192)[sg - 1] + (k >> 2)*4096}') if k % 4 == 0 else []
                rq.append(dict(id=hk, dl=hfirst[hk], cost=VC, stage=min(sg, 3) if o['merge34'] else sg, lat=LATD if sg == 2 else LATH, code=code, srd=self.OUT if sg == 1 else self.WS, off=(k & 3)*1024))
                if o['PW'] and hk not in pairw and i < 42 and stage_of(i) == stage_of(i + 1): pairw[hk] = ('g', i + 1); pairw[('g', i + 1)] = None
            else:
                code = I(f's_add_u32 {sHl}, {sHl}, 4096') if q and q % 4 == 0 else []
                assert i >> 1 == q >> 2
                code += I(f'buffer_load_dwordx4 {HB[hk]}, {vHl[ty]}, {self.WS}, {sHl} offen offset:{(i & 1)*2048} sc1', tagof(hk))
                rq.append(dict(id=hk, dl=hfirst[hk], cost=VC, code=code))
                if o['PW'] and q >= 4 and q % 2 == 0: pairw[hk] = horder[q + 1]
        for k in range(1 if o['ymean'] else 2):
            rq.append(dict(id=('st', k), dl=last_op[0] - o.get('st_lead', 10), cost=VC, ev='Q', code=I(f'buffer_load_dwordx4 {sp.sub(4*k, 4)}, {self.vL16}, {self.WS}, {sSl} offen offset:{k*1024} sc1')))
        rq.sort(key=lambda r: r['dl'])
        K1 = -2*math.sqrt(2/math.pi)*LOG2E
        chA = []
        def cs_items(c):
            a = csacc[c]; full = c in ('F1', 'S2')
            off = {'F1': 0, 'H1': 2048, 'S2': 2048 + 128, 'S3': 256}[c]
            for ror in ((8,) if full else (8, 4)):
                for r in range(4): chA.append(('v', ('op', cs_last[c] + 2), I(f'v_add_f32_dpp {a[r]}, {a[r]}, {a[r]} row_ror:{ror} row_mask:0xf bank_mask:0xf'), None))
            L = Asm(); L(f's_mov_b64 exec, {"0x00ff00ff" if full else "0x000f000f"}'); L(f'ds_write_b128 {aCW}, {a} offset:{off}', 'wr' + c); L('s_mov_b64 exec, -1')
            chA.append(('d', None, L.L, 'wr' + c))
        def corr_items(u, cls):
            chA.append(('d', ('ev', ['bar_wr' + c for c in cls], 0), I(f'ds_read_b32 {cT[0]}, {aCR} offset:{u*64}\nds_read_b32 {cT[1]}, {aCR} offset:{u*64 + 1024}'), f'crd{u}'))
            for k, x in enumerate((f'v_add_f32 {cT[0]}, {cT[0]}, {cT[1]}', f'v_cvt_pk_bf16_f32 {cT[1]}, {cT[0]}, {cT[0]}', f'v_and_b32 {cT[1]}, 0xffff0000, {cT[1]}',
                                   f'v_sub_f32 {cT[0]}, {cT[0]}, {cT[1]}', f'v_cvt_pk_bf16_f32 {cA[0]}, {cT[1]}, {cT[0]}')):
                chA.append(('v', ('ev', [f'crd{u}'], 100), I(x), None))
            chA.append(('m', ('both', first_op[u], 'stats'), I(f'v_mfma_f32_32x32x16_bf16 {acc[u]}, {cA}, {cB}, {acc[u]}'), f'corr{u}'))
        first_op = {}
        for p in ops:
            if p['k'] == 'm': first_op.setdefault(p['u'], p['n'])
        ev = {}; arr = {}; evop = {}
        for x in Q.L: chA.append(('v', None, [x], None))
        if Q.L: chA[-1] = chA[-1][:3] + ('Q',)
        else: ev['Q'] = 0
        if o['ymean']: ev.update({f'corr{u}': 0 for u in range(6)})
        else:
            for c in sorted(('F1', 'H1'), key=cs_last.get): cs_items(c)
            corr_items(0, ('F1', 'H1')); corr_items(1, ('F1', 'H1'))
            cs_items('S2'); corr_items(2, ('F1', 'S2')); corr_items(3, ('F1', 'S2'))
            cs_items('S3'); corr_items(4, ('S2', 'S3')); corr_items(5, ('S2', 'S3'))
        chB = []; chC = []; chD = []; chP = []; vP = [self.vPv] + [V.alloc() for _ in range(3)]
        if o['ymean']: stc = (f'v_add_f32 {sp[0]}, {sp[0]}, {sp[1]}\nv_add_f32 {sp[2]}, {sp[2]}, {sp[3]}\nv_add_f32 {sp[1]}, {sp[0]}, {sp[2]}\nv_add_f32 {sp[0]}, {sp[0]}, {sp[2]}\nv_nop\nv_nop\n'
               f'v_permlane32_swap_b32 {sp[0]}, {sp[1]}\nv_add_f32 {sp[0]}, {sp[0]}, {sp[1]}\nv_fma_f32 {iv}, {sp[0]}, {self.sInv512}, {self.vEps}\n'
               f'v_rsq_f32 {sp[2]}, {iv}\nv_nop\nv_mul_f32 {c1}, {fhex(K1)}, {sp[2]}\nv_mul_f32 {sp[3]}, {sp[2]}, {sp[2]}\nv_mul_f32 {c3}, {fhex(0.044715)}, {c1}\nv_mul_f32 {c3}, {c3}, {sp[3]}')
        else: stc = (f'v_add_f32 {sp[0]}, {sp[0]}, {sp[2]}\nv_add_f32 {sp[1]}, {sp[1]}, {sp[3]}\nv_add_f32 {sp[4]}, {sp[4]}, {sp[6]}\nv_add_f32 {sp[5]}, {sp[5]}, {sp[7]}\n'
               f'v_add_f32 {sp[0]}, {sp[0]}, {sp[4]}\nv_add_f32 {sp[1]}, {sp[1]}, {sp[5]}\nv_mov_b32 {sp[2]}, {sp[0]}\nv_mov_b32 {sp[3]}, {sp[1]}\nv_nop\n'
               f'v_permlane32_swap_b32 {sp[0]}, {sp[2]}\nv_permlane32_swap_b32 {sp[1]}, {sp[3]}\nv_add_f32 {sp[0]}, {sp[0]}, {sp[2]}\nv_add_f32 {sp[1]}, {sp[1]}, {sp[3]}\n'
               f'v_mul_f32 {sp[0]}, {fhex(-1/512)}, {sp[0]}\nv_fma_f32 {sp[1]}, {sp[1]}, {self.sInv512}, {self.vEps}\nv_fma_f32 {iv}, -{sp[0]}, {sp[0]}, {sp[1]}\nv_max_f32 {iv}, {iv}, {self.vEps}\n'
               f'v_rsq_f32 {sp[2]}, {iv}\nv_cvt_pk_bf16_f32 {cB[0]}, {sp[0]}, {sp[0]}\nv_mul_f32 {c1}, {fhex(K1)}, {sp[2]}\nv_mul_f32 {sp[3]}, {sp[2]}, {sp[2]}\nv_mul_f32 {c3}, {fhex(0.044715)}, {c1}\nv_mul_f32 {c3}, {c3}, {sp[3]}')
        for x in I(stc): chB.append(('v', ('arr', ('st', 0 if o['ymean'] else 1)), [x], None))
        chB[-1] = chB[-1][:3] + ('stats',)
        pubs = {1: 1, 3: 2, 5: 3} if o['merge34'] else {1: 1, 3: 2, 4: 3, 5: 4}
        for u in range(6):
            a = acc[u]; out = go[u & 1]
            st = []
            for txt in ('v_mul_f32 {t}, {a}, {a}', 'v_fma_f32 {t}, {t}, {c3}, {c1}', 'v_mul_f32 {t}, {t}, {a}', 'v_exp_f32 {t}, {t}', 'v_mul_f32 {b}, {a}, {b}', 'v_fma_f32 {t}, {t}, {iv}, {iv}', 'v_rcp_f32 {t}, {t}', 'v_mul_f32 {b}, {b}, {t}'):
                st.append([txt.format(t=tt[v], a=a[v], b=a[8+v], c1=c1, c3=c3, iv=iv) for v in range(8)])
            seq = st[0] + st[1][:2] + st[2][:1]
            for v in range(8):
                if v + 2 < 8: seq.append(st[1][v+2])
                if v + 1 < 8: seq.append(st[2][v+1])
                seq.append(st[3][v])
            seq += [st[5][0]]
            for v in range(8):
                if v + 1 < 8: seq.append(st[5][v+1])
                seq += [st[4][v], st[6][v]]
            seq += st[7] + [f'v_cvt_pk_bf16_f32 {out[d]}, {a[8+2*d]}, {a[9+2*d]}' for d in range(4)]
            if u in o['pk_units']:
                P2 = lambda r, v: r.sub(2*v, 2)
                t_ = [P2(tt, v) for v in range(4)]; a2 = [P2(a, v) for v in range(4)]; b2 = [a.sub(8 + 2*v, 2) for v in range(4)]
                seq = [f'v_pk_mul_f32 {t_[v]}, {a2[v]}, {a2[v]}' for v in range(4)]
                seq += [f'v_pk_fma_f32 {t_[v]}, {t_[v]}, {cc}, {cc} op_sel:[0,1,0] op_sel_hi:[1,1,0]' for v in range(4)]
                seq += [f'v_pk_mul_f32 {t_[v]}, {t_[v]}, {a2[v]}' for v in range(4)] + st[3]
                seq += [f'v_pk_fma_f32 {t_[v]}, {t_[v]}, {iv2}, {iv2} op_sel_hi:[1,0,0]' for v in range(4)] + st[6]
                seq += [f'v_pk_mul_f32 {b2[v]}, {a2[v]}, {b2[v]}' for v in range(4)]
                seq += [f'v_pk_mul_f32 {b2[v]}, {b2[v]}, {t_[v]}' for v in range(4)]
                seq += [f'v_cvt_pk_bf16_f32 {out[d]}, {a[8+2*d]}, {a[9+2*d]}' for d in range(4)]
            for ln in seq: chB.append(('v', ('ev', [f'corr{u}', f'done{u}'], 56), I(ln), None, u))
            L = Asm()
            base = (sGo, sGa, sGb)[u >> 1]; add = (0, 16*KB, WS_G, WS_G + 16*KB, WS_H, WS_H + 8*KB)[u]
            if add: L(f's_add_u32 {sTs}, {base}, {add}')
            so = sTs if add else base
            if u in (2, 3): L(f'buffer_store_dwordx4 {out}, {self.vL16}, {self.WS}, {so} offen sc1', tag=f'gst{u}')
            else: self.store2(L, 'dwordx4', out, self.vL16, so, 0, f'gst{u}', self.OUT if u < 2 else None, wrap=True)
            chB.append(('s', {4: ('ev', ['stage1'], 0), 5: ('iss', ('g', 14))}.get(u), L.L, f'gst{u}', u))
            if u == o.get('res_after', 3):
                for d in range(8):
                    for x in I(f'v_lshlrev_b32 {accK[2*d]}, 16, {res[d]}\nv_and_b32 {accK[2*d+1]}, 0xffff0000, {res[d]}'): chB.append(('v', None, [x], None))
                chB[-1] = chB[-1][:3] + ('acc4',)
            if u in pubs:
                sg = pubs[u]; k = self.nlabel; self.nlabel += 1
                pm = self.mW16 if o['one_poll3'] else '0xffff'
                chC.append(('f', ('ev', [f'bar_gst{u}'], 0), self.signal(1 + sg), f'pub{sg}'))
                chP.append(('v', ('op', first4 + 2*(0, 15, 29, 36)[sg - 1] - o['plead'][sg - 1]), [], None))
                chP.append(('f', ('ev', [f'pub{sg}'], o['poll_after'][sg - 1]), I(f's_mov_b64 exec, {pm}\n{self.poll_ld(pa3, 1 + sg, vP[4 - sg])}\ns_mov_b64 exec, -1'), f'poll{sg}'))
                chD.append(('v', ('arr', f'poll{sg}'), I(f'v_cmp_eq_u32 vcc, 0, {vP[4 - sg]}\ns_and_b64 vcc, vcc, {pm}\ns_cbranch_vccnz L_late{k}\nL_back{k}:'), f'chk{sg}' if o['one_poll3'] else f'stage{sg}'))
                self.tail(f'L_late{k}:')
                if o['stamps']: self.tail(f's_add_u32 s97, s97, {(4 if o["one_poll3"] else 1) << (8*(sg - 1))}')
                self.poll_block(self.tail, pa3, 1 + sg, pm, vP[4 - sg]); self.tail(f's_branch L_back{k}')
        chW = []; aT = [V.alloc() for _ in range(3)]
        if o['clean']:
            sCl = S.alloc(2); jk2 = V.alloc(); v8k = V.alloc()
            X = Asm()
            X(f's_lshl2_add_u32 {sCl[0]}, {s["M"]}, {s["W"]}\ns_and_b32 {sCl[1]}, {sCl[0]}, 7\ns_lshr_b32 {sCl[0]}, {sCl[0]}, 3\ns_lshl_b32 {sCl[0]}, {sCl[0]}, 7\ns_add_u32 {sCl[0]}, {sCl[0]}, {sCl[1]}\ns_lshl_b32 {sCl[0]}, {sCl[0]}, 7')
            X(f's_add_u32 {sCl[1]}, {sCl[0]}, {s["GB"]}\ns_add_u32 {sCl[1]}, {sCl[1]}, {WS_H + 7*KB}\ns_lshl_b32 {sTs}, {s["G"]}, 17\ns_add_u32 {sCl[0]}, {sCl[0]}, {sTs}\ns_add_u32 {sCl[0]}, {sCl[0]}, {15*KB}\nv_lshlrev_b32 {v8k}, 13, {vL}')
            chW += [('v', None, [x], None) for x in X.L]
            for q, (e_, txt) in enumerate((('stage1', f's_mov_b64 exec, 1\nbuffer_load_dword {jk2}, off, {self.OUT}, {sCl[0]} sc1'), (f'stage{max(pubs.values())}', f's_mov_b64 exec, 3\nbuffer_load_dword {jk2}, {v8k}, {self.WS}, {sCl[1]} offen sc1'))):
                c_ = I(txt + '\ns_mov_b64 exec, -1'); c_[1].defs = set()
                chW.append(('v', ('ev', [e_], 200), c_, None))
        if o['wd_light']:
            nd = len(o['wd_light']); nl = -(-86 // nd); sWd = S.alloc(); mL = S.alloc(2); jk = V.alloc()
            X = Asm()
            X(f's_lshl1_add_u32 {sWd}, {s["G"]}, {s["PF"]}\ns_lshl2_add_u32 {sWd}, {sWd}, {s["W"]}\ns_mul_i32 {sWd}, {sWd}, {86*128}')
            chW += [('v', None, [x], None) for x in X.L]
            chW.append(('v', None, I(f's_cmp_ge_u32 {s["M"]}, 14\ns_cselect_b32 {mL[0]}, {hex(((1 << nl) - 1) & 0xffffffff)}, 0\ns_cselect_b32 {mL[1]}, {hex(((1 << nl) - 1) >> 32)}, 0'), None))
            for q, at_ in enumerate(o['wd_light']):
                c_ = I(f's_mov_b64 exec, {mL}\nbuffer_load_dword {jk}, {self.v128}, {self.WD}, {sWd} offen sc1\ns_mov_b64 exec, -1\ns_add_u32 {sWd}, {sWd}, {nl*128}')
                c_[1].defs = set()
                chW.append(('v', ('op', at_), c_, None))
        chE = []
        for k in self.issued: arr[k] = 0
        now = 0; vm_free = 0; last_arr = 0; mf_free = 0; n_done = -1; last_bar = 0; nbar = 0
        for k in inflight:
            last_arr += VC*(2 if k[0] in ('H1', 'S3') else 1); arr[k] = last_arr
        vm_free = max(0, last_arr - LATD)
        cur = []; freed = set(); est = {}; idle = 0; win = []; slot = {}; pool = list(GB); lastc = ['H']
        def emit(code):
            nonlocal now
            A.ext(code); now += 4*sum(max(cost(x), 1 if x.mn.startswith('@wait') else 0) + (2 if x.mn.startswith('s_cbranch') else 4 if x.text == ';dual_begin' else 0) for x in code)
        def vm_issue(idk, c, lat):
            nonlocal vm_free, last_arr
            st_ = max(vm_free, now); tot = c
            for (c_, a_) in reversed(win):
                tot += c_
                if tot > o['WIN']*VC: st_ = max(st_, a_); break
            vm_free = st_ + c
            last_arr = max(last_arr + c, st_ + lat); arr[idk] = last_arr; win.append((c, last_arr))
            self.trace.append((n_done, now, idk, last_arr))
        def ready_time(cond):
            if cond is None: return 0
            if cond[0] == 'op': return 0 if n_done >= cond[1] else None
            if cond[0] == 'both': return ev[cond[2]] + 8 if n_done >= cond[1] and cond[2] in ev else None
            if cond[0] == 'arr': return arr.get(cond[1])
            if cond[0] == 'iss': return 0 if cond[1] in arr else None
            if all(e in ev for e in cond[1]): return max(ev[e] for e in cond[1]) + cond[2]
            return None
        def pick_request():
            best = None
            for r in rq:
                if 'stage' in r and (f'stage{r["stage"]}' not in ev or not pool): break
                if 'ev' in r and r['ev'] not in ev: continue
                best = r; break
            if self.stream and self.free_blocks:
                dl = min(first_use[k_] for k_ in self.stream[:3]) - LA - o['dma_lead']
                if best is not None and best.get('lat', LATH) == LATH and n_done >= o['hyst_from']: dl += o['hyst'] if lastc[0] == 'H' else -o['hyst']
                if best is None or dl < best['dl']:
                    lastc[0] = 'M'
                    key = self.stream[0]; c = VC*(2 if key[0] in ('H1', 'S3') else 1)
                    cur.extend([(key, c, LATD)] + self.dma_next()); return True
            if best is None: return False
            lastc[0] = 'H' if best.get('lat', LATH) == LATH else 'M'
            if 'stage' in best:
                slot[best['id']] = pool.pop(0)
                best['code'] = best['code'] + I(f'buffer_load_dwordx4 {slot[best["id"]]}, {self.vL16}, {best["srd"]}, {sGl} offen offset:{best["off"]} sc1', tagof(best['id']))
            rq.remove(best); cur.extend([(best['id'], best['cost'], best.get('lat', LATH))] + best['code'])
            return True
        def step_vm(prefix=False):
            if not cur:
                if vm_free > now + VS or not pick_request(): return False
                if prefix or len(cur) > 2:
                    emit(cur[1:-1]); del cur[1:-1]
                    if prefix: return True
                    step_chain(chB, 'v', 8) or step_chain(chA, 'v', 8)
            meta, code = cur; del cur[:]
            emit([code]); vm_issue(*meta); return True
        def step_chain(ch, kinds, room):
            if not ch or ch[0][0] not in kinds: return False
            k, cond, code, e = ch[0][:4]; t = ready_time(cond)
            if t is None or t > now: return False
            if k == 'v' and 4*sum(cost(x) for x in code) > room + 3 and len(code) == 1: return False
            ch.pop(0); emit(code)
            if k == 's': vm_issue(e, VC, LATS if e in ('gst2', 'gst3') else LATH)
            if k == 'f': vm_issue(e, 20, LATH)
            if k in 'sf' and o['ackl']: arr[e] = min(arr[e], now + o['ackl'][2 if k == 'f' else 1 if e in ('gst2', 'gst3') else 0])
            if e: ev[e] = now; evop[e] = n_done
            return True
        def bar_need(n):
            if n + LA < N and ops[n + LA]['key'] not in visible:
                return {ops[q_]['key'] for q_ in range(n + LA, min(N, n + LA + o['VMIN']))}
            for u_ in pubs:
                if f'bar_gst{u_}' not in ev and arr.get(f'gst{u_}', 1 << 30) + o['bwait'][pubs[u_] - 1] <= now: return set()
                if f'stage{pubs[u_]}' not in ev and ev.get(f'chk{pubs[u_]}', 1 << 30) + o['bwait'][pubs[u_] - 1] <= now: return set()
            if n - last_bar < o['BMIN']: return None
            nfree = sum(1 for k, lu in last_use.items() if lu < n and k not in freed and k in self.loc) + (0 if 'res' in freed else 2)
            if self.stream and len(self.free_blocks) <= o.get('FLOW', 1) and nfree >= min(o['FMIN'], len(self.stream)): return set()
            if chA and chA[0][1] and chA[0][1][0] == 'ev' and chA[0][1][1][0].startswith('bar_wr') and ready_time(chA[0][1]) is None and now >= max(ev.get(e[4:], 0) for e in chA[0][1][1]) + 60: return set()
            if not self.stream and 'xb' not in ev and n >= N - 2*TL - 8: return set()
            return None
        def op_ready(n):
            p = ops[n]; t = mf_free
            k = p.get('hk')
            if k is not None:
                k = pairw.get(k) or k
                if k not in arr: return None
                t = max(t, arr[k])
            if n == first4 and 'acc4' not in ev: return None
            for k in bar_need(n) or ():
                if k not in arr: return None
                t = max(t, arr[k])
            return t
        def do_barrier(n, need):
            nonlocal now, last_bar, nbar, chE
            L = Asm()
            for c in ('F1', 'H1', 'S2', 'S3'):
                if 'wr' + c in ev and 'bar_wr' + c not in ev: L(f'@waitlg wr{c}'); ev['bar_wr' + c] = now
            for u_ in pubs:
                if f'bar_gst{u_}' not in ev and arr.get(f'gst{u_}', 1 << 30) <= now: L(f'@waitvm gst{u_}'); ev[f'bar_gst{u_}'] = now
                if f'stage{pubs[u_]}' not in ev and f'chk{pubs[u_]}' in ev: ev[f'stage{pubs[u_]}'] = now; evop[f'stage{pubs[u_]}'] = n_done
            vis = [k for k in self.issued if k not in visible and (k in need or arr[k] <= now - o['vmargin'])]
            if vis:
                newest = max(vis, key=self.issued.index)
                visible.update(self.issued[:self.issued.index(newest) + 1]); L(f'@waitvm {tagof(newest)}')
            L('s_barrier'); self.trace.append((n_done, now, 'BAR', newest if vis else None)); emit(L.L); now += o['barc'] - 8; last_bar = n; nbar += 1
            for k, lu in last_use.items():
                if lu < n and k not in freed and k in self.loc:
                    freed.add(k); self.free_blocks.append(self.loc[k])
            if 'res' not in freed and n > 0:
                freed.add('res'); self.free_blocks += [self.resb, self.resb + 1]
            if not self.stream and 'xb' not in ev:
                fb = sorted(self.free_blocks)
                xb = next((b for b in fb if all(b + k in fb for k in range(6))), None)
                if xb is not None:
                    ev['xb'] = now
                    X = Asm()
                    X(f's_lshl_b32 {s["T0"]}, {s["W"]}, 12\ns_add_u32 {s["T0"]}, {s["T0"]}, {xb*BLK}\nv_add_u32 {t1}, {s["T0"]}, {self.vL16}')
                    X(f's_xor_b32 {s["T1"]}, {s["W"]}, 2\ns_lshl_b32 {s["T1"]}, {s["T1"]}, 12\ns_add_u32 {s["T1"]}, {s["T1"]}, {xb*BLK}\nv_add_u32 {t2}, {s["T1"]}, {self.vL16}')
                    if o['quad_out'] == 'lds':
                        tb_ = (xb + 4)*BLK
                        X(f'v_lshrrev_b32 {aT[0]}, 5, {vL}\nv_lshl_add_u32 {aT[0]}, {sKH}, 1, {aT[0]}\nv_lshlrev_b32 {aT[0]}, 1, {aT[0]}\nv_and_b32 {aRes}, 7, {vL}\nv_xor_b32 {aT[0]}, {aT[0]}, {aRes}')
                        X(f's_lshl_b32 {s["T0"]}, {sTH}, 12\ns_add_u32 {s["T0"]}, {s["T0"]}, {tb_}\nv_and_b32 {aT[1]}, 31, {vL}\nv_lshl_add_u32 {aT[1]}, {aT[1]}, 7, {s["T0"]}\nv_lshl_add_u32 {aT[0]}, {aT[0]}, 4, {aT[1]}\nv_xor_b32 {aT[1]}, 16, {aT[0]}')
                        X(f's_add_u32 {s["T0"]}, {self.sW2K}, {tb_}\nv_add_u32 {aT[2]}, {s["T0"]}, {self.vL16}')
                        X(f'v_lshrrev_b32 {t3}, 3, {vL}\nv_xor_b32 {aRes}, {aRes}, {t3}\nv_lshlrev_b32 {aRes}, 4, {aRes}\nv_lshl_add_u32 {t3}, {t3}, 10, {aRes}')
                        X(f's_lshl2_add_u32 {s["T0"]}, {s["BLK"]}, {s["W"]}\ns_lshl_b32 {s["T0"]}, {s["T0"]}, 14\ns_add_u32 {s["T0"]}, {s["T0"]}, {self.sC128}\ns_add_u32 {s["T1"]}, {s["T0"]}, 8192')
                    else:
                        if o['quad_out']: X(f'v_and_b32 {t3}, 28, {vL}\nv_lshrrev_b32 {aRes}, 5, {vL}\nv_add_lshl_u32 {t3}, {t3}, {aRes}, 10\nv_and_b32 {aRes}, 3, {vL}\nv_lshl_add_u32 {t3}, {aRes}, 4, {t3}')
                        else: X(f'v_and_b32 {t3}, 31, {vL}\nv_lshlrev_b32 {t3}, 10, {t3}\nv_lshrrev_b32 {aRes}, 5, {vL}\nv_lshl_add_u32 {t3}, {aRes}, 5, {t3}')
                        X(f's_lshl2_add_u32 {s["T0"]}, {s["G"]}, {sT4}\ns_lshl_b32 {s["T0"]}, {s["T0"]}, 15\ns_add_u32 {s["T0"]}, {s["T0"]}, {self.sC128}\ns_lshl_b32 {s["T1"]}, {sKH}, 6\ns_add_u32 {s["T0"]}, {s["T0"]}, {s["T1"]}')
                    chE += [('v', None, [x], None) for x in X.L]
                    chE += [('d', ('op', min(N - 1, last_op[7] + 2)), I(f'ds_write_b128 {t1}, {accS.sub(4*k, 4)} offset:{k*1024}'), None) for k in range(4)]
        for n in range(N):
            p = ops[n]
            guard = 0
            while True:
                guard += 1; assert guard < 100000, f'scheduler stuck at op {n}'
                slack = 0
                if chB and ready_time(chB[0][1]) is not None:
                    u_ = chB[0][4] if len(chB[0]) > 4 else None
                    slack = 4*(o['budu'].get(str(u_), o['bud']) - 6)
                    if u_ in o['pk_units'] and ready_time(chB[0][1]) <= now: slack = 4000
                t = op_ready(n)
                if t is not None and t == mf_free and bar_need(n) is not None: t -= o['barc']
                if t is not None and now >= t + slack: break
                room = (t + slack - now) if t is not None else 1000
                if chA and chA[0][0] == 'm' and now >= mf_free - 4:
                    t0_ = max(now, mf_free)
                    if step_chain(chA, 'm', 0): now = t0_ + 8; mf_free = t0_ + 32; continue
                if room > 100 and bar_need(n) == set(): do_barrier(n, set()); continue
                if room > 40 and step_vm(): continue
                if step_chain(chC, 'fv', 1000) or step_chain(chP, 'fv', 1000) or step_chain(chD, 'fv', 1000) or step_chain(chW, 'v', 1000): continue
                if step_chain(chA, 'v' if room <= 40 else 'vd', room): continue
                if step_chain(chB, 'vs', room) or step_chain(chE, 'v', room): continue
                if t is not None and now >= t: break
                now += 4; idle += 4
            if chA and chA[0][0] == 'm' and bar_need(n) is None:
                t0_ = max(now, mf_free)
                if step_chain(chA, 'm', 0):
                    now = t0_ + 8; mf_free = t0_ + 32
                    while now < mf_free and (step_chain(chA, 'vd', mf_free - now) or step_vm() or step_chain(chB, 'vs', mf_free - now)): pass
            need = bar_need(n)
            if need is not None: do_barrier(n, need)
            if n == first4: self.stamp('p3 mfma done'); est['p3'] = now; est['idle3'] = idle
            elif o.get('fine') and n % o['fine'] == 0 and n and o.get('ffrom', 0) <= n <= o.get('fto', 999): self.stamp(f'op {n}'); est[n] = now
            if pairw.get(p.get('hk')) and hfirst[p['hk']] == n: A(f'@waitvm {tagof(pairw[p["hk"]])}')
            if p.get('hk') and hfirst[p['hk']] == n and pairw.get(p['hk'], 1): now += 4
            t0_ = now = max(now, mf_free)
            A.L.append(mfma(p)); n_done = n; now += o.get('mfc', 6)
            mf_free = t0_ + (32 if p['k'] == 'm' else 16)
            if p['k'] == 'm' and last_op[p['u']] == n: ev[f'done{p["u"]}'] = now
            if n and 'hk' in ops[n - 1] and hlast[ops[n - 1]['hk']] == n - 1: pool.append(ops[n - 1]['B'] or slot[ops[n - 1]['hk']])
            if (n + 1) % WE == 0 and n + 1 < N: emit([Ins(f'@waitlg r{min(N - 1, n + WE)}')])
            step_vm(prefix=True)
            now = max(now, t0_ + 8)
            if n + LA < N: emit(reads(ops[n + LA]))
            if cur: step_vm()
            else: step_chain(chA, 'd', 0) or step_chain(chE, 'd', 0) or step_chain(chC, 'f', 0) or step_chain(chP, 'fv', 1000) or step_chain(chD, 'fv', 1000)
            if n + LA + 1 < N and ops[n + LA + 1]['key'] in self.loc: emit(ops[n + LA + 1]['ad'].need(self.loc[ops[n + LA + 1]['key']] >> 4))
        if o.get('wb'):
            where, sel = o['wb']
            W = Asm()
            if sel == 'one': W(f's_lshr_b32 {s["T2"]}, s2, 3\ns_lshl2_add_u32 {s["T2"]}, {s["T2"]}, {s["W"]}\ns_cmp_lg_u32 {s["T2"]}, 60')
            elif sel == 'grp': W(f's_lshl2_add_u32 {s["T2"]}, {s["M"]}, {s["W"]}\ns_cmp_lg_u32 {s["T2"]}, 60')
            else: W(f's_cmp_lg_u32 {s["W"]}, 0')
            W('s_cbranch_scc1 L_nowb\n@raw 1\nbuffer_wbl2 sc1\n@raw 0\nL_nowb:')
            if where == 'end': self.wb_end = W.L
            else:
                k = max(q for q, x in enumerate(A.L) if x.tag == where)
                assert where == 'g_42'
                self.wb_mid = W.L
        assert 'xb' in ev
        for it in chE: emit(it[2])
        assert not (chA or chB or chC or chD or chP or chW or rq or cur or self.stream), (len(chA), len(chB), len(chC), len(rq), len(self.stream))
        est['p4'] = now; est['idle'] = idle
        self.info.update(N=N, first4=first4, nbar=nbar, npre=len(pre_keys), est=est, evop={k: v for k, v in evop.items() if k[:3] in ('cor', 'gst', 'sta')})
        dbg = o.get('dbg', '')
        if dbg:
            new = []; nv = 0
            for x in A.L[self.mark34:]:
                if 'W' in dbg:
                    if x.kind in ('mfma', 'ds') or x.mn in ('s_barrier', '@waitvm', '@waitlg') or x.mn.startswith('s_cbranch') or (x.kind == 'valu' and ('_f32' in x.mn or 'cmp' in x.mn or 'permlane' in x.mn)): continue
                    if x.kind == 'vmem':
                        k_ = (x.tag or 'x_').split('_')[0]
                        cls = {'F1': '3', 'H1': '3', 'S2': '3', 'S3': '3', 'W4': '4', 'F': 'h', 'H': 'h', 'g': 'g'}.get(k_, 's')
                        sub = 'b' if x.tag in ('gst2', 'gst3') else 'a' if (x.tag or '').startswith('gst') else 'f' if x.tag == 'flag' else 'p' if x.mn == 'buffer_load_dword' else 't'
                        if cls == 'g' and 15 <= int(x.tag[2:]) < 29 and '2' in dbg: continue
                        if cls in dbg or (cls == 's' and sub in dbg): continue
                        x.defs = set(); x.tag = f'z{nv}'; nv += 1; new.append(x)
                        if nv > 30: new.append(Ins(f'@waitvm z{nv - 30}'))
                        continue
                if 'K' in dbg and x.kind == 'vmem' and (x.tag or '').startswith('W4_') and int(x.tag[3:]) % 2 == 0 and x.tag != 'W4_42':
                    self.dropped.add(x.tag); continue
                if 'M' in dbg and x.kind == 'mfma':
                    y = Ins('s_nop 0'); y.uses = set(x.srcAB); new.append(y); continue
                if 'V' in dbg and x.kind == 'valu' and '_f32' in x.mn: continue
                if 'R' in dbg and x.kind == 'ds' and x.mn.startswith('ds_read_b64_tr'):
                    self.dropped.add(x.tag); continue
                if 'D' in dbg and x.kind == 'vmem' and x.arg == 'dma':
                    self.dropped.add(x.tag); continue
                if 'L' in dbg and x.kind == 'vmem' and x.mn == 'buffer_load_dwordx4' and x.arg != 'dma':
                    self.dropped.add(x.tag); continue
                if 'T' in dbg and x.kind == 'vmem' and x.mn == 'buffer_load_dword' and not x.defs: continue
                if 'B' in dbg and x.mn == 's_barrier': continue
                if x.kind == 'pseudo' and x.mn in ('@waitvm', '@waitlg') and x.arg[0] in self.dropped: continue
                new.append(x)
            if 'W' in dbg: new.append(Ins('@waitvm0'))
            A.L[self.mark34:] = new
        self.stamp('p4 mfma done')
        A.ext(getattr(self, 'wb_mid', []))
        A('@waitlg0\ns_barrier')
        rx = acc[2]
        for k in range(4): A(f'ds_read_b128 {rx.sub(4*k, 4)}, {t2} offset:{k*1024}')
        if o['quad_out'] is True: A('s_mov_b32 vcc_lo, 0x55555555\ns_mov_b32 vcc_hi, 0x55555555')
        for h in range(2):
            for d in range(4*h, 4*h + 4): A(f'v_pk_add_f32 {accK.sub(2*d, 2)}, {accK.sub(2*d, 2)}, {rx.sub(2*d, 2)}')
            for d in range(4): A(f'v_cvt_pk_bf16_f32 {go[h][d]}, {accK[8*h + 2*d]}, {accK[8*h + 2*d + 1]}')
            if not o['quad_out']: A(f'buffer_store_dwordx4 {go[h]}, {t3}, {self.OUT}, {s["T0"]} offen offset:{16*h} {o["out_aux"]}')
            if o['quad_out'] == 'lds': A(f'ds_write_b128 {aT[h]}, {go[h]}')
        if o['quad_out'] == 'lds':
            A('@waitlg0\ns_barrier')
            for h in range(2): A(f'ds_read_b128 {rx.sub(4*h, 4)}, {aT[2]} offset:{h*1024}')
            for h in range(2): A(f'buffer_store_dwordx4 {rx.sub(4*h, 4)}, {t3}, {self.OUT}, {s["T1" if h else "T0"]} offen {o["out_aux"]}')
        elif o['quad_out']:
            R0, R1, T = go[0], go[1], tt.sub(0, 4)
            dp = lambda dst, a_, b_, qp: f'v_cndmask_b32_dpp {dst}, {a_}, {b_}, vcc quad_perm:{qp} row_mask:0xf bank_mask:0xf'
            for d in range(4): A(dp(T[d], R1[d], R0[d], '[1,0,3,2]'))
            A('s_not_b64 vcc, vcc')
            for d in range(4): A(dp(R1[d], R0[d], R1[d], '[1,0,3,2]'))
            A('s_mov_b32 vcc_lo, 0x33333333\ns_mov_b32 vcc_hi, 0x33333333')
            for d in range(4): A(f'v_permlane32_swap_b32 {T[d]}, {R1[d]}')
            for d in range(4): A(dp(R0[d], R1[d], T[d], '[2,3,0,1]'))
            A('s_not_b64 vcc, vcc')
            A(f'buffer_store_dwordx4 {R0}, {t3}, {self.OUT}, {s["T0"]} offen {o["out_aux"]}')
            for d in range(4): A(dp(R1[d], T[d], R1[d], '[2,3,0,1]'))
            A(f'buffer_store_dwordx4 {R1}, {t3}, {self.OUT}, {s["T0"]} offen offset:2048 {o["out_aux"]}')
        A.ext(getattr(self, 'wb_end', []))
        self.stamp('out stored')

    def visit(self, name):
        if name not in (self.o['visit'] or {}): return []
        L = Asm()
        L('s_mov_b64 exec, 0')
        for k in range(len(self.o['visit'][name])): L(f's_cmp_eq_u32 {self.s["W"]}, {k}\ns_cbranch_scc1 L_vis_{name}_{k}')
        L(f'L_ret_{name}:\ns_mov_b64 exec, -1')
        return L.L

    def place_stubs(self, L):
        import subprocess, re
        txt = '.amdgcn_target "amdgcn-amd-amdhsa--gfx950"\n.text\n' + '\n'.join(x.text for x in L if x.kind != 'dir') + '\nL_code_end:\n'
        txt += ''.join(f'L_vis_{n}_{k}:\n' for n, ps in self.o['visit'].items() for k in range(len(ps)))
        open('_sz.s', 'w').write(txt)
        subprocess.run(['clang', '-x', 'assembler', '-target', 'amdgcn-amd-amdhsa', '-mcpu=gfx950', '-c', '_sz.s', '-o', '_sz.o'], check=True)
        d = subprocess.run(['llvm-objdump', '-d', '--mcpu=gfx950', '_sz.o'], capture_output=True, text=True).stdout
        sizes = [4*len(m.group(1).split()) for m in re.finditer(r'// [0-9A-F]{12}: ([0-9A-F ]+)', d)]
        real = [x for x in L if x.kind not in ('dir', 'label')]
        assert len(sizes) == len(real), (len(sizes), len(real))
        size = {id(x): z for x, z in zip(real, sizes)}
        owner = {p: n for n, ps in self.o['visit'].items() for p in ps}
        end = max(i for i, x in enumerate(L) if x.text == 'L_main_end:')
        out = []; addr = None; page = 0; stubs = {}; full = True
        EX = {('s', 126), ('s', 127)}
        for i, x in enumerate(L):
            if x.text == 'L_body:': addr = 0; self.info['pre_bytes'] = sum(size.get(id(y), 0) for y in L[:i])
            if addr is not None and x.kind not in ('dir', 'label') and i < end:
                if addr >= page*4096 and full:
                    if page in owner:
                        stubs.setdefault(owner[page], []).append(len(out)); out.append(None); addr += 4
                    page += 1
                addr += size[id(x)]
                if x.defs & EX: full = x.mn.startswith('s_mov') and x.text.endswith(', -1')
            out.append(x)
        res = []
        where = {}
        for n in self.o['visit']:
            for k, pos in enumerate(stubs.get(n, [])): where[pos] = (n, k, len(stubs[n]))
        for i, x in enumerate(out):
            if x is None:
                n, k, tot = where[i]
                res += [Ins(f'L_vis_{n}_{k}:'), Ins(f's_cbranch_execz L_ret_{n}')]
            else: res.append(x)
        for n in self.o['visit']:
            for k in range(len(stubs.get(n, [])), 4): res = [Ins('s_nop 0') if x.text == f's_cbranch_scc1 L_vis_{n}_{k}' else x for x in res]
        self.info['pages'] = page
        return res

    def finish(self):
        A, s, o = self.A, self.s, self.o
        if o['stamps']:
            A('@waitvm0')
            self.stamp('end')
            k = self.nstamp - 1
            A(f'@raw 1\nv_writelane_b32 {self.vstamp}, s96, 59\nv_writelane_b32 {self.vstamp}, s97, 60\nv_writelane_b32 {self.vstamp}, s98, 61\ns_memrealtime s[98:99]\ns_waitcnt lgkmcnt(0)\nv_writelane_b32 {self.vstamp}, s98, 62\nv_writelane_b32 {self.vstamp}, {self.sstamp[2*(k % 2)]}, {k}\nv_writelane_b32 {self.vstamp}, s100, 63\n@raw 0')
            A(f's_lshl_b32 {s["T0"]}, s2, 10\ns_lshl_b32 {s["T1"]}, {s["W"]}, 8\ns_add_u32 {s["T0"]}, {s["T0"]}, {s["T1"]}\ns_add_u32 {s["T0"]}, {s["T0"]}, {o["ws_base"] + WS_TS}')
            A(f'v_lshlrev_b32 {self.t1}, 2, {self.vL}\nbuffer_store_dword {self.vstamp}, {self.t1}, {self.WS}, {s["T0"]} offen')
        if o.get('pad_to'):
            A(f'@raw 1\ns_waitcnt vmcnt(0)\nL_padloop:\n{o.get("pad_clk", "s_memrealtime")} s[98:99]\ns_waitcnt lgkmcnt(0)\ns_sub_u32 s98, s98, s100\ns_cmp_lt_u32 s98, {o["pad_to"]}\ns_cbranch_scc1 L_padloop\n@raw 0')
        A('L_main_end:\ns_endpgm')

    def build(self):
        self.phase1(); self.phase2(); self.phase34(); self.finish()
        L = resolve_waits(self.A.L)
        L, nn = pad_hazards(L)
        L, T2 = self.expand_dual(L)
        T = [x for x in self.tail.L if x.kind != 'pseudo'] + T2
        if self.o['visit']: L = self.place_stubs(L + T); T = []
        body = '\n'.join(('' if x.kind == 'label' else '    ') + x.text for x in L + T)
        hdr = open('cdna_kernels/' + NAME + '.s.ref').read().split('; Override launch')[0]
        txt = hdr + f'; @launch grid=(256,1,1) block=(256,1,1) lds=163840\n.amdgcn_target "amdgcn-amd-amdhsa--gfx950"\n.text\n.globl {NAME}_kernel\n.p2align 8\n.type {NAME}_kernel,@function\n{NAME}_kernel:\n'
        txt += body + '\n    s_endpgm\nL_code_end:\n'
        txt += f'.section .rodata,"a"\n.p2align 6\n.amdhsa_kernel {NAME}_kernel\n  .amdhsa_next_free_vgpr 512\n  .amdhsa_next_free_sgpr 102\n  .amdhsa_accum_offset 256\n  .amdhsa_group_segment_fixed_size 0\n  .amdhsa_kernarg_size 80\n  .amdhsa_user_sgpr_count 2\n  .amdhsa_user_sgpr_kernarg_segment_ptr 1\n  .amdhsa_system_sgpr_workgroup_id_x 1\n  .amdhsa_float_denorm_mode_32 3\n.end_amdhsa_kernel\n'
        self.info.update(ninstr=len(L), nops=nn, vmax=self.V.hi, amax=self.AG.hi, smax=self.S.hi)
        return txt

if __name__ == '__main__':
    import json
    kw = json.loads(sys.argv[2]) if len(sys.argv) > 2 else {}
    G = Gen(**kw); txt = G.build()
    open(sys.argv[1], 'w').write(txt)
    print(G.info)
    if kw.get('trace'):
        for t in G.trace: print(t)
```

```python
import re

_REG = re.compile(r'^(-|abs\()?([vas])(\d+)\)?$')
_RNG = re.compile(r'^(-|abs\()?([vas])\[(\d+):(\d+)\]\)?$')

def regs_of(tok):
    tok = tok.strip()
    m = _REG.match(tok)
    if m: return [(m.group(2), int(m.group(3)))]
    m = _RNG.match(tok)
    if m: return [(m.group(2), i) for i in range(int(m.group(3)), int(m.group(4)) + 1)]
    if tok in ('vcc',): return [('s', 106), ('s', 107)]
    if tok == 'vcc_lo': return [('s', 106)]
    if tok == 'vcc_hi': return [('s', 107)]
    if tok == 'm0': return [('s', 124)]
    if tok == 'exec': return [('s', 126), ('s', 127)]
    if tok == 'exec_lo': return [('s', 126)]
    if tok == 'exec_hi': return [('s', 127)]
    return []

def split_ops(s):
    out, depth, cur = [], 0, ''
    for ch in s:
        if ch in '[(': depth += 1
        if ch in '])': depth -= 1
        if ch == ',' and depth == 0:
            out.append(cur.strip()); cur = ''
        else: cur += ch
    if cur.strip(): out.append(cur.strip())
    return out

TRANS = ('v_exp_f32', 'v_log_f32', 'v_rcp_f32', 'v_rsq_f32', 'v_sqrt_f32')

class Ins:
    __slots__ = ('text', 'mn', 'kind', 'defs', 'uses', 'tag', 'srcC', 'srcAB', 'passes', 'dpp', 'wide_store', 'arg', 'store_data')
    def __init__(self, text, tag=None):
        self.text = text.strip(); self.tag = tag
        self.defs = set(); self.uses = set(); self.srcC = set(); self.srcAB = set()
        self.passes = 0; self.dpp = False; self.wide_store = False; self.arg = None; self.store_data = set()
        t = self.text
        if t.startswith('@'):
            p = t.split()
            self.mn = p[0]; self.kind = 'pseudo'; self.arg = p[1:]
            return
        if t.endswith(':') or t.startswith('.') or t.startswith(';'):
            self.mn = t; self.kind = 'label' if t.endswith(':') else 'dir'
            return
        p = t.split(None, 1)
        mn = self.mn = p[0]
        rest = p[1] if len(p) > 1 else ''
        ops = split_ops(rest)
        mods = []
        if ops:
            q = ops[-1].split()
            ops[-1] = q[0]; mods = q[1:]
        R = lambda i: set(regs_of(ops[i])) if i < len(ops) else set()
        allr = lambda a: set().union(*[R(i) for i in range(a, len(ops))]) if len(ops) > a else set()
        if mn.startswith('v_mfma'):
            self.kind = 'mfma'
            self.defs = R(0); self.srcAB = R(1) | R(2); self.srcC = R(3); self.uses = self.srcAB | self.srcC
            self.passes = 8 if '32x32' in mn else (2 if '4x4x4' in mn else 4)
        elif mn.startswith('ds_'):
            self.kind = 'ds'
            if mn.startswith('ds_read') or mn.startswith('ds_bpermute') or mn.startswith('ds_swizzle'):
                self.defs = R(0); self.uses = allr(1)
            else:
                self.uses = allr(0)
        elif mn.startswith('buffer_') or mn.startswith('global_'):
            self.kind = 'vmem'
            if 'lds' in mods:
                self.uses = allr(0) | {('s', 124)}
                self.arg = 'dma'
            elif '_load' in mn:
                self.defs = R(0); self.uses = allr(1)
            else:
                self.uses = allr(0)
                if mn.startswith('buffer_store'): self.store_data = R(0)
                elif mn.startswith('global_store'): self.store_data = R(1)
                self.wide_store = mn.endswith('x4') or mn.endswith('x3')
        elif mn.startswith('s_load') or mn.startswith('s_memtime') or mn.startswith('s_memrealtime') or mn.startswith('s_atomic'):
            self.kind = 'smem'
            if mn.startswith('s_atomic'):
                self.uses = allr(0); self.defs = R(0) if 'glc' in mods else set()
            else:
                self.defs = R(0); self.uses = allr(1)
        elif mn.startswith('s_'):
            self.kind = 'salu'
            if mn in ('s_waitcnt', 's_nop', 's_barrier', 's_endpgm', 's_setprio', 's_sleep', 's_branch') or mn.startswith('s_cbranch'):
                if 'vcc' in mn: self.uses = {('s', 106), ('s', 107)}
            elif mn.startswith('s_cmp') or mn.startswith('s_bitcmp'):
                self.uses = allr(0)
            else:
                self.defs = R(0); self.uses = allr(1)
                if mn.startswith('s_addk') or mn.startswith('s_mulk') or mn.startswith('s_cmov'): self.uses |= R(0)
                if 'saveexec' in mn: self.defs |= {('s', 126), ('s', 127)}
        elif mn.startswith('v_'):
            self.kind = 'valu'
            self.dpp = mn.endswith('_dpp')
            self.defs = R(0); self.uses = allr(1)
            if mn.startswith('v_fmac') or mn.startswith('v_dot2c') or mn.startswith('v_writelane') or self.dpp: self.uses |= R(0)
            if mn.startswith('v_permlane'):
                self.defs |= R(1); self.uses |= R(0)
            if '_co_' in mn: self.defs |= R(1)
        else:
            raise ValueError('unknown instruction: ' + t)
    def is_trans(self): return self.mn.split('_e32')[0] in TRANS
    def slots(self):
        if self.kind in ('pseudo', 'label', 'dir'): return 0
        if self.mn == 's_nop': return int(self.text.split()[1]) + 1
        return 1

class Asm:
    def __init__(self):
        self.L = []
    def __call__(self, text, tag=None):
        for ln in text.split('\n'):
            ln = ln.strip()
            if ln: self.L.append(Ins(ln, tag))
        return self
    def ext(self, other):
        self.L.extend(other.L if isinstance(other, Asm) else other)

def resolve_waits(L, junk='v255', junkaddr='v254'):
    out = []
    vm = []
    lg = []
    minlg = 0
    raw = False
    done_tags = set()
    def do_wait(nvm, nlg):
        nonlocal vm, lg
        parts = []
        if nlg is not None and nlg == 0 and minlg and not any(e[2] for e in lg):
            d = Ins(f'ds_read_b32 {junk}, {junkaddr}')
            out.append(d); lg.append((set(), None, False)); nlg = 1
        if nvm is not None:
            nvm = min(nvm, 62); parts.append(f'vmcnt({nvm})')
            k = len(vm) - nvm
            if k > 0:
                for e in vm[:k]: done_tags.add(e[1])
                vm = vm[k:]
        if nlg is not None:
            nlg = min(nlg, 14); parts.append(f'lgkmcnt({nlg})')
            if nlg == 0:
                for e in lg: done_tags.add(e[1])
                lg = []
            else:
                lds = [e for e in lg if not e[2]]
                k = len(lds) - nlg
                if k > 0:
                    rm = lds[:k]
                    for e in rm: done_tags.add(e[1])
                    lg = [e for e in lg if not any(e is r for r in rm)]
        if parts:
            if out and out[-1].mn == 's_waitcnt' and out[-1].tag == '_auto':
                old = dict(re.findall(r'(\w+)\((\d+)\)', out[-1].text)); new = dict(re.findall(r'(\w+)\((\d+)\)', ' '.join(parts)))
                for k_, v_ in new.items(): old[k_] = str(min(int(v_), int(old.get(k_, v_))))
                out.pop(); parts = [f'{k_}({old[k_]})' for k_ in ('vmcnt', 'lgkmcnt') if k_ in old]
            out.append(Ins('s_waitcnt ' + ' '.join(parts), '_auto'))
    def need_lg(idx):
        if lg[idx][2]: return 0
        return sum(1 for e in lg[idx+1:] if not e[2])
    for ins in L:
        if ins.kind == 'pseudo':
            a = ins.arg
            if ins.mn == '@waitvm':
                idx = [i for i, e in enumerate(vm) if e[1] == a[0]]
                if idx: do_wait(len(vm) - 1 - idx[-1], None)
                else: assert a[0] in done_tags, 'unknown tag ' + a[0]
            elif ins.mn == '@waitlg':
                idx = [i for i, e in enumerate(lg) if e[1] == a[0]]
                if idx: do_wait(None, need_lg(idx[-1]))
                else: assert a[0] in done_tags, 'unknown tag ' + a[0]
            elif ins.mn == '@waitvm0':
                if vm: do_wait(0, None)
            elif ins.mn == '@waitlg0':
                if lg: do_wait(None, 0)
            elif ins.mn == '@drained_vm':
                for e in vm: done_tags.add(e[1])
                vm = []
            elif ins.mn == '@drained_lg':
                for e in lg: done_tags.add(e[1])
                lg = []
            elif ins.mn == '@minlg': minlg = int(a[0])
            elif ins.mn == '@raw': raw = bool(int(a[0]))
            elif ins.mn == '@assert_lg_done':
                assert not any(e[1] == a[0] for e in lg), 'lg tag still outstanding ' + a[0]
            else: raise ValueError(ins.text)
            continue
        if raw:
            out.append(ins); continue
        touch = ins.defs | ins.uses
        nvm = nlg = None
        if touch:
            for i in range(len(vm) - 1, -1, -1):
                if vm[i][0] & touch:
                    nvm = len(vm) - 1 - i; break
            for i in range(len(lg)):
                if lg[i][0] & touch:
                    n = need_lg(i)
                    nlg = n if nlg is None else min(nlg, n)
        if nvm is not None or nlg is not None: do_wait(nvm, nlg)
        out.append(ins)
        if ins.kind == 'vmem':
            vm.append((set(ins.defs), ins.tag))
            assert len(vm) <= 63, 'too many outstanding vmem ops'
        elif ins.kind == 'ds': lg.append((set(ins.defs), ins.tag, False))
        elif ins.kind == 'smem': lg.append((set(ins.defs), ins.tag, True))
    return out

XDL_VALU = {2: 5, 4: 8, 8: 12}
XDL_COVL = {2: 4, 4: 6, 8: 10}
XDL_CWAR = {2: 1, 4: 3, 8: 7}

def required_gap(p, c):
    need = 0
    vd = {r for r in p.defs if r[0] in 'va'}
    sd = {r for r in p.defs if r[0] == 's'}
    if p.kind == 'mfma':
        if c.kind == 'mfma':
            if vd & c.srcAB: need = max(need, XDL_VALU[p.passes])
            if vd & c.srcC:
                if vd == c.srcC and p.passes == c.passes: need = max(need, 2 if p.passes == 2 else 0)
                else: need = max(need, XDL_COVL[p.passes])
            elif vd & c.defs: need = max(need, XDL_COVL[p.passes])
        elif c.kind in ('valu', 'vmem', 'ds'):
            if vd & (c.uses | c.defs): need = max(need, XDL_VALU[p.passes])
            if p.srcC & c.defs: need = max(need, XDL_CWAR[p.passes])
    elif p.kind == 'valu':
        if c.kind == 'mfma':
            if vd & c.uses: need = max(need, 2)
            if sd & {('s', 126), ('s', 127)}: need = max(need, 4)
        if c.kind == 'valu':
            if c.dpp and vd & c.uses: need = max(need, 2)
            if c.mn.startswith('v_permlane') and vd & c.uses: need = max(need, 2)
            if (c.mn.startswith('v_readfirstlane') or c.mn.startswith('v_readlane')) and vd & c.uses: need = max(need, 1)
            if p.is_trans() and vd & c.uses: need = max(need, 1)
            if sd & c.uses: need = max(need, 4 if 'lane' in c.mn else 2)
            if ('sdwa' in p.mn or 'op_sel' in p.text) and not p.mn.startswith('v_pk') and vd & (c.uses | c.defs): need = max(need, 1)
        if c.kind == 'vmem' and sd & c.uses: need = max(need, 5)
        if c.kind in ('salu', 'smem') and sd & c.uses: need = max(need, 1)
        if p.is_trans() and c.kind in ('vmem', 'ds') and vd & c.uses: need = max(need, 1)
    elif p.kind == 'salu':
        if ('s', 124) in sd and c.kind == 'vmem' and c.arg == 'dma': need = max(need, 1)
    elif p.kind == 'vmem':
        if p.wide_store and (p.store_data & c.defs): need = max(need, 2)
    elif p.kind == 'ds':
        pass
    return need

def pad_hazards(L):
    out = []
    nn = 0
    for ins in L:
        if ins.kind in ('label', 'dir'):
            out.append(ins); continue
        need = 0; dist = 0
        for p in reversed(out):
            if dist >= 12: break
            if p.kind in ('label', 'dir'): continue
            g = required_gap(p, ins)
            if g - dist > need: need = g - dist
            dist += p.slots()
        if need > 0:
            out.append(Ins(f's_nop {need-1}')); nn += need
        out.append(ins)
    return out, nn

class RegAlloc:
    def __init__(self, pfx, lo, hi):
        self.pfx = pfx; self.free = set(range(lo, hi)); self.hi = 0
    def alloc(self, n=1, align=1):
        if n >= 2 and align == 1: align = 2
        for b in sorted(self.free):
            if b % align == 0 and all((b + i) in self.free for i in range(n)):
                for i in range(n): self.free.discard(b + i)
                self.hi = max(self.hi, b + n)
                return Reg(self.pfx, b, n, self)
        raise RuntimeError(f'out of {self.pfx} registers (n={n})')
    def at(self, b, n):
        assert all((b + i) in self.free for i in range(n)), f'{self.pfx}{b}+{n} busy'
        for i in range(n): self.free.discard(b + i)
        self.hi = max(self.hi, b + n)
        return Reg(self.pfx, b, n, self)

class Reg:
    def __init__(self, pfx, b, n, owner=None):
        self.pfx, self.b, self.n, self.owner = pfx, b, n, owner
    def __str__(self):
        return f'{self.pfx}{self.b}' if self.n == 1 else f'{self.pfx}[{self.b}:{self.b+self.n-1}]'
    __repr__ = __str__
    def __format__(self, spec): return str(self)
    def __getitem__(self, i):
        if isinstance(i, slice):
            a, b = i.start or 0, self.n if i.stop is None else i.stop
            assert 0 <= a < b <= self.n
            return Reg(self.pfx, self.b + a, b - a)
        assert 0 <= i < self.n, (i, self.n)
        return Reg(self.pfx, self.b + i, 1)
    def sub(self, a, n): return self[a:a+n]
    def free(self):
        for i in range(self.n):
            assert (self.b + i) not in self.owner.free
            self.owner.free.add(self.b + i)
```

```python
import sys, math, struct
from asmlib import *

NAME = 'sequential_preLN__sliding_local_dilated__geglu_ffn__prompt'
KB = 1024
WS_H, WS_ST, WS_FL, WS_G, WS_O = 0, 128*KB, 136*KB, 256*KB, 640*KB
FL_SLOW = 2*KB
WS_R = 768*KB
WS_TS = 16 << 20
WS_SIZE = 17 << 20
PITCH3 = 2752
BLK = 4096
L_HALO = 0
L_X = 4 * BLK
L_W = 10 * BLK
L_SCR = 39 * BLK
SCR_TB = L_SCR
SCR_HP = L_SCR + 1280
SCR_R = L_SCR + 1792
SCR_CS = L_SCR
def f2u(x): return struct.unpack('<I', struct.pack('<f', x))[0]
def fhex(x): return hex(f2u(x))
LOG2E = 1.4426950408889634

DEF = dict(split=True, sp2=6, sp3=8, pf_aux={}, x_aux='', alt_rd=True, hide_x=0, retouch=False, mirror=True, mix23=False, clean=False, nt_tags=('gst4', 'gst5'), wd_light=None, ackl=(600, 850, 600), st_lead=0, w2pre0=99, b_aft1=0, b_aft2=5, ymean=True, cen_rd=0, cen_ck=160, selby='x', xrot=True, sp1=14, perm3=True, hyst=0, hyst_from=150, quad_out='lds', out_aux='nt', one_poll=True, one_poll3=True, bwait=(100, 0, 0, 0), merge34=False, pk_units=[5], budu={'2': 8, '3': 8, '4': 10}, khalf=False, c1_from=110, sp0b=10, v0_at=-2, salu16=1, minlg_until=4, ktab=[list(range(8))]*4, b_pre1=4, b_pre2=4, topup=8, n1a=0, n1b=7, HS=6, k0=7, vgap0=2, vgap=3, cs_lead={'S2': (16, 1), 'S3': (20, 2)}, plead=(99, 99, 99, 99), TL=4, cs_pre=24, q_early=False, LATH=380, LATD=580, LATS=700, WE=4, VC=72, PW=True, poll_after=(900, 900, 800, 800), WIN=99, dma_lead=16, VMIN=10, BMIN=10, FMIN=5, barc=32, vmargin=300, visit={'v0': [1, 2, 3], 'v1': [4, 5, 6]}, jump_at=78,
           stamps=False, order='pair', BI=16, LA=7, GLA=8, NG=20, NR=12, bud=7, b_epi=0, b_post1=4, b_o=5, b_post2=4,
           pub_delay=10, poll_lead=8, force_slow=False, w2pre=8, LO=5, HL=5, sp0=2, g_sc1=False, o_in_ws=False,
           pf={'q3': 'sb', 'o3': 2, 'o': 4, 'w3': 4, 'h': 4, 'wd': 4}, vslack=200, w2a=0, w2b=3, rot2=0, rot3=0, ws_base=0, n_stats=56, gt_at=40)

def cost(x):
    if x.kind in ('pseudo', 'label', 'dir'): return 0
    if x.is_trans() or x.mn.startswith('v_permlane') or x.kind == 'mfma': return 2
    return 1

def safe_points(code):
    ok = []; exec_part = False
    EX = {('s', 126), ('s', 127)}
    n = len(code)
    for i in range(n + 1):
        scc_live = False
        for k in range(i, n):
            x = code[k]
            if x.kind == 'label': scc_live = True; break
            if x.mn.startswith('s_cselect') or x.mn.startswith('s_cbranch') or x.mn.startswith('s_addc'): scc_live = True; break
            if x.kind == 'salu' and not x.mn.startswith(('s_mov', 's_mul', 's_nop', 's_waitcnt', 's_barrier', 's_getreg')): break
        for k in range(i, n):
            x = code[k]
            if x.kind == 'vmem' and x.arg == 'dma': scc_live = True
            if scc_live or (('s', 124) in x.defs and ('s', 124) not in x.uses): break
        if not exec_part and not scc_live: ok.append(i)
        if i < n and code[i].defs & EX:
            exec_part = not (code[i].mn.startswith('s_mov') and code[i].text.endswith(', -1'))
    return ok

def sprinkle(code, groups, spacing, start=0):
    code = list(code.L if isinstance(code, Asm) else code); groups = list(groups)
    ok = set(safe_points(code)); out = []; since = spacing - start
    for i, x in enumerate(code):
        if groups and since >= spacing and i in ok:
            g = groups.pop(0); since = 0
            if len(g) == 2 and g[1].arg == 'dma' and x.kind in ('valu', 'ds') and i + 1 in ok:
                out += [g[0], x, g[1]]; continue
            out += g
        out.append(x); since += cost(x)
    for g in groups: out += g
    return out

class Gen:
    def __init__(self, **kw):
        self.o = dict(DEF); self.o.update(kw)
        self.A = Asm(); self.tail = Asm()
        self.V = RegAlloc('v', 1, 254); self.AG = RegAlloc('a', 0, 256); self.S = RegAlloc('s', 60, 96)
        self.nstamp = 0; self.stamp_names = []
        self.nlabel = 0
        self.free_blocks = list(range(28, 39))
        self.loc = {}; self.issued = []
        st = [('W2', i) for i in range(16)]
        for q in range(8): st += [('F1', 2*q), ('H1', q), ('F1', 2*q + 1)]
        if self.o['mix23']:
            for q in range(8): st += [('S2', 2*q), ('S2', 2*q + 1), ('S3', q)]
        else: st += [('S2', i) for i in range(16)] + [('S3', q) for q in range(8)]
        st += [('W4', i) for i in range(43)]
        self.stream = st
        self.info = {}; self.dropped = set(); self.trace = []

    def stamp(self, name, A=None):
        if not self.o['stamps'] or (self.o['stamps'] == 'min' and name != 'end'): return
        if self.o.get('only') and name not in self.o['only']: return
        A = A if A is not None else self.A
        k = self.nstamp
        A(f'@raw 1\n{self.o.get("clk", "s_memtime")} {self.sstamp.sub(2*(k % 2), 2)}')
        if k: A(f'v_writelane_b32 {self.vstamp}, {self.sstamp[2*((k-1) % 2)]}, {k-1}')
        A('@raw 0')
        self.stamp_names.append(name); self.nstamp += 1

    def srd(self, A, b, lo, size):
        A(f's_mov_b32 s{b}, s{lo}\ns_mov_b32 s{b+1}, s{lo+1}\ns_mov_b32 s{b+2}, {size}\ns_mov_b32 s{b+3}, 0x20000')

    def store2(self, A, w, data, voff, soff, off, tag, srd=None, wrap=False, nt=False):
        assert off < 4096
        o = f' offset:{off}' if off else ''
        v = f'{voff}, ' if voff is not None else 'off, '
        e = ' offen' if voff is not None else ''
        if wrap: A(';dual_begin')
        A(f'buffer_store_{w} {data}, {v}{srd or self.WS}, {soff}{e}{o}' + (' nt' if nt or tag in self.o['nt_tags'] else ''), tag=tag)
        if wrap: A(';dual_end')

    def expand_dual(self, L):
        out = []; tail = []; k = 0; inside = False
        for x in L:
            if x.text == ';dual_begin':
                assert not inside; inside = True
                out += [Ins(f's_cmp_lg_u32 {self.sMode}, 0'), Ins(f's_cbranch_scc1 L_wt{k}')]; tail.append(Ins(f'L_wt{k}:'))
            elif x.text == ';dual_end':
                assert inside; inside = False
                out.append(Ins(f'L_wtb{k}:')); tail.append(Ins(f's_branch L_wtb{k}')); k += 1
            else:
                out.append(x)
                if inside:
                    assert x.kind != 'label'
                    tail.append(Ins(x.text.replace(' nt', '') + ' sc1') if x.mn.startswith('buffer_store') else Ins(x.text))
        return out, tail

    def split_modes(self, L, T):
        import re
        k = next(i for i, x in enumerate(L) if x.text == 'L_mode_ok:')
        e = next(i for i, x in enumerate(T) if x.text.startswith('L_late'))
        ren = lambda t: re.sub(r'\b(L_(?:late|back|poll|pd|ret_v|padloop|nowb|dly|main_end)\w*)', r'\1_w', t)
        slow = [Ins('L_slow_body:')]; inside = False
        for x in L[k + 1:] + T[e:]:
            if x.text == ';dual_begin': inside = True
            elif x.text == ';dual_end': inside = False
            elif 'L_vis_' in x.text: slow.append(Ins('s_nop 0'))
            elif inside and x.mn.startswith('buffer_store'): slow.append(Ins(x.text.replace(' nt', '') + ' sc1'))
            else: slow.append(Ins(ren(x.text)))
        return [x for x in L if not x.text.startswith(';dual')], T + [Ins('L_code_end:')] + slow

    def signal(self, kind):
        L = Asm()
        L(f's_mov_b64 exec, {self.mW1}')
        self.store2(L, 'dword', self.vOne, None, self.sFme, kind*128, 'flag', wrap=True)
        L('s_mov_b64 exec, -1')
        return L.L

    def poll_ld(self, addr, kind, pv): return f'buffer_load_dword {pv}, {addr}, {self.WS}, {self.s["FL"]} offen offset:{kind*128} sc1'

    def poll_block(self, A, addr, kind, mask, pv=None):
        pv = pv or self.vPv; s = self.s; n = self.nlabel; self.nlabel += 1
        A(f's_mov_b64 exec, {mask}\ns_mov_b32 {s["T3"]}, 0x20000\n@raw 1\nL_poll{n}:\n{self.poll_ld(addr, kind, pv)}\ns_waitcnt vmcnt(0)')
        A(f'v_cmp_eq_u32 vcc, 0, {pv}\ns_sub_u32 {s["T3"]}, {s["T3"]}, 1\ns_cbranch_scc1 L_pd{n}\ns_cbranch_vccnz L_poll{n}\nL_pd{n}:\n@raw 0\ns_mov_b64 exec, -1')

    def sync_wait(self, A, addr, kind, mask, n_aft, filler=()):
        if not n_aft:
            A.ext(filler); self.poll_block(A, addr, kind, mask); A('@drained_vm'); return
        k = self.nlabel; self.nlabel += 1
        A(f's_mov_b64 exec, {mask}\n{self.poll_ld(addr, kind, self.vPv)}\ns_mov_b64 exec, -1')
        A.ext(sprinkle(list(filler), self.dmas(n_aft), 8))
        A(f'v_cmp_eq_u32 vcc, 0, {self.vPv}\ns_and_b64 vcc, vcc, {mask}\ns_cbranch_vccnz L_late{k}\nL_back{k}:')
        self.tail(f'L_late{k}:')
        if self.o['stamps']: self.tail(f's_add_u32 s96, s96, {1 << (8*kind)}')
        self.poll_block(self.tail, addr, kind, mask); self.tail(f's_branch L_back{k}')

    @staticmethod
    def p4_unit(i):
        if i < 15: return 0, 6*i
        if i < 29: return 0, 6*(i - 15) + 2
        if i < 36: return 1, 12*(i - 29) + 4
        return 1, 12*(i - 36) + 5

    def dma_cost(self): return 138 if self.stream and self.stream[0][0] in ('H1', 'S3') else 69

    def dma_next(self):
        if not self.stream or not self.free_blocks: return None
        key = self.stream.pop(0); b = self.free_blocks.pop(0)
        self.loc[key] = b; self.issued.append(key)
        s, D = self.s, self.sD; kind, i = key; tag = f'{kind}_{i}'
        if kind == 'W2':
            assert 23 <= b <= 38
            pre = [f's_add_u32 {D}, {self.sC128}, {i << 15}'] if i % 2 == 0 else []
            ld = f'buffer_load_dwordx4 {self.vW2b if i & 1 else self.vW2}, {self.WO}, {D} offen lds'
        elif kind in ('F1', 'S2', 'H1', 'S3'):
            full = kind in ('F1', 'S2')
            cp = i >> 1 if full else i
            pre = []
            if key == ('F1', 0): pre.append(f's_mov_b32 s38, {self.sN3[0]}')
            if cp and cp - 1 not in self.sCP:
                self.sCP[cp - 1] = self.S.alloc(); pre.append(f's_mov_b32 {self.sCP[cp - 1]}, {cp*64*PITCH3}')
            if key == ('S2', 0): pre += [f's_mov_b32 s38, {self.sN3[1]}', f'v_add_u32 {self.vF[0]}, {self.sDl}, {self.vF[0]}', f'v_add_u32 {self.vF[1]}, {self.sDl}, {self.vF[1]}']
            if key == ('S3', 0):
                if self.o['mirror']: pre += [f's_lshl1_add_u32 {self.sD}, {self.sDl}, {hex(-3*PITCH3 & 0xffffffff)}', f'v_add_u32 {self.vH}, {self.sD}, {self.vH}']
                else: pre += [f's_sub_u32 {self.sD}, 192, {self.sDl}', f'v_add_u32 {self.vH}, {self.sD}, {self.vH}']
            ld = f'buffer_load_dwordx4 {self.vF[i & 1] if full else self.vH}, {self.W3}, {self.sCP[cp - 1] if cp else 0} offen lds'
        else:
            sel, u = self.p4_unit(i)
            k = (i if i < 15 else i - 15) & 3 if sel == 0 else 2*((i - 29 if i < 36 else i - 36) & 1)
            pre = [f's_add_u32 {D}, {self.sU[sel]}, {u*16384}'] if k == 0 else []
            mi = 4 if self.o['mirror'] else 0
            if i == 0: pre += [f'v_add_u32 {self.vD[q]}, {(q*6 + mi*(q & 1))*16384}, {self.vD[0]}' for q in range(1, 4)]
            if i == 15 and mi: pre += [f'v_add_u32 {self.vD[q]}, {q*6*16384}, {self.vD[0]}' for q in (1, 3)]
            ld = f'buffer_load_dwordx4 {self.vD[k]}, {self.WD}, {D} offen lds'
        return [Ins(f's_add_u32 m0, {s["W1K"]}, {b*BLK}')] + [Ins(x) for x in pre] + [Ins(ld, tag)]

    def dmas(self, n):
        r = []
        for _ in range(n):
            g = self.dma_next()
            if g: r.append(g)
        return r

    def p1_chunk_dma(self, i):
        s = self.s; sl = i % 3; kc, so = self.sKC, self.sSO; tag = f'ch{i}'
        I = Ins
        g = [[I(f's_bfe_u32 {kc}, {self.sTb}, {hex(0x30000 + 4*i)}'), I(f's_add_u32 m0, {self.sW2K}, {L_X + sl*8192}'), I(f's_lshl_b32 {so}, {kc}, 7'),
              I(f'buffer_load_dwordx4 {self.vXa}, {self.X}, {so} offen {self.o["x_aux"] if i == 0 else ""} lds', tag)],
             [I(f's_mul_i32 {kc}, {kc}, {64*3072}'), I(f'buffer_load_dwordx4 {self.vXb}, {self.X}, {so} offen offset:1024 {self.o["x_aux"] if i == 0 else ""} lds', tag)]]
        for st in range(2):
            for p in range(3):
                pre = []
                if p == 0: pre = [I(f's_add_u32 m0, {self.sW3K}, {L_W + sl*24576 + st*12288}'), I(f's_add_u32 {kc}, {kc}, {32*3072 if st else self.sH128}')]
                g.append(pre + [I(f'buffer_load_dwordx4 {self.vW1}, {self.WQ}, {kc} offen offset:{p*1024} lds', tag)])
        return g

    def p1_reads(self, i, st, buf):
        sl = i % 3; r = []
        W, X, O = buf
        r.append(Ins(f'ds_read_b128 {O}, {self.aXo[st]} offset:{sl*8192}'))
        for p in range(3):
            for a in range(2):
                r.append(Ins(f'ds_read_b64_tr_b16 {W[p].sub(2*a, 2)}, {self.aW1} offset:{sl*24576 + st*12288 + p*1024 + a*512}'))
            if p == 0:
                r.append(Ins(f'ds_read_b128 {X[0]}, {self.aX[st]} offset:{L_HALO + i*2048}'))
                for t in range(1, 5):
                    r.append(Ins(f'ds_read_b128 {X[t]}, {self.aX[st]} offset:{L_X + sl*8192 + (t-1)*2048}'))
        return r

    def p1_mfmas(self, buf, first):
        W, X, O = buf
        m = []
        c = lambda acc: '0' if first else str(acc)
        m.append(Ins(f'v_mfma_f32_16x16x32_bf16 {self.stG}, {O}, {O}, {c(self.stG)}'))
        m.append(Ins(f'v_mfma_f32_16x16x32_bf16 {self.stS}, {self.ones}, {O}, {c(self.stS)}'))
        for p, acc in enumerate((self.aQ, self.aK, self.aV)):
            for t in range(5):
                if p < 2: m.append(Ins(f'v_mfma_f32_16x16x32_bf16 {acc[t]}, {W[p]}, {X[t]}, {c(acc[t])}'))
                else: m.append(Ins(f'v_mfma_f32_16x16x32_bf16 {acc[t]}, {X[t]}, {W[p]}, {c(acc[t])}'))
        return m

    def stats_code(self, sq, sm, out4):
        L = Asm()
        L(f'v_mul_f32 {sm}, {fhex(-1/512)}, {sm}')
        L(f'v_fma_f32 {sq}, {sq}, {self.sInv512}, {self.vEps}')
        L(f'v_cvt_pk_bf16_f32 {out4[1]}, {sm}, {sm}')
        L(f'v_fma_f32 {sq}, -{sm}, {sm}, {sq}')
        L(f'v_max_f32 {sq}, {sq}, {self.vEps}')
        L(f'v_rsq_f32 {out4[2]}, {sq}')
        L(f'v_and_b32 {out4[0]}, 0xffff0000, {out4[1]}')
        L(f'v_mul_f32 {out4[3]}, {fhex(0.25*LOG2E)}, {out4[2]}')
        return L.L

    def diag_code(self, G4, dst):
        return [Ins(f'v_cndmask_b32 {G4[0]}, {G4[0]}, {G4[1]}, {self.mB0}'), Ins(f'v_cndmask_b32 {G4[2]}, {G4[2]}, {G4[3]}, {self.mB0}'),
                Ins(f'v_cndmask_b32 {dst}, {G4[0]}, {G4[2]}, {self.mB1}')]

    def weave16(self, mf, ds, misc, vgap=4, tail=4, side=None):
        A = self.A; ds = list(ds)
        nm = len(mf)
        for k, m in enumerate(mf):
            A.L.append(m); self.gap_since_vm += 1
            bud = 2
            if misc and isinstance(misc[0], Ins) and misc[0].kind == 'salu':
                A.L.append(misc.pop(0)); bud -= self.o['salu16']
            nds = 1 if ds else 0
            if len(ds) > nm - k - tail: nds = min(2, len(ds))
            for _ in range(nds): A.L.append(ds.pop(0)); bud -= 1
            while misc and bud > 0:
                it = misc[0]; l = it if isinstance(it, list) else [it]
                if l and l[0].kind == 'pseudo' and l[0].mn == '@skip':
                    misc.pop(0); break
                if any(x.kind == 'vmem' for x in l):
                    if self.gap_since_vm < vgap: break
                    self.gap_since_vm = 0
                misc.pop(0); A.ext(l); bud -= sum(cost(x) for x in l)
            while side and bud > 0 and not ds:
                it = side.pop(0); l = it if isinstance(it, list) else [it]
                A.ext(l); bud -= sum(cost(x) for x in l)
        assert not ds

    def phase1(self):
        A, V, S, AG, o = self.A, self.V, self.S, self.AG, self.o
        s = self.s = {}
        for n in 'W C M SB G BLK W1K T0 T1 T2 T3 FL PF GB'.split(): s[n] = S.alloc()
        if o['stamps']: self.sstamp = S.alloc(4, 2); self.vstamp = V.alloc()
        self.X, self.WQ, self.WO, self.W3, self.WD, self.OUT, self.WS = [f's[{24+4*i}:{27+4*i}]' for i in range(7)]
        self.sKC = S.alloc(); self.sSO = S.alloc(); self.sW2K = S.alloc(); self.sW3K = S.alloc(); self.sC128 = S.alloc(); self.sFme = S.alloc()
        sH = S.alloc(); sHm = S.alloc(); sZ = S.alloc()
        if o.get('pad_to'): A('@raw 1\n' + o.get('pad_clk', 's_memrealtime') + ' s[100:101]\n@raw 0')
        if o['stamps']: A('@raw 1\n' + o.get('clk', 's_memtime') + ' s[100:101]\ns_memrealtime s[98:99]\ns_mov_b64 s[96:97], 0\n@raw 0')
        A('s_load_dwordx2 s[24:25], s[0:1], 0\ns_load_dwordx2 s[28:29], s[0:1], 8\ns_load_dwordx2 s[48:49], s[0:1], 72\ns_load_dwordx2 s[32:33], s[0:1], 16')
        A('s_load_dwordx16 s[4:19], s[0:1], 0\ns_load_dwordx2 s[20:21], s[0:1], 64')
        A('s_cmp_lt_u32 s2, 256\ns_cbranch_scc1 L_go\ns_endpgm\nL_go:')
        vL = self.vL = V.alloc(); t0 = V.alloc(2); t1 = V.alloc(); t2 = V.alloc(); t3 = V.alloc()
        self.t1, self.t2, self.t3 = t1, t2, t3
        A(f's_getpc_b64 s[52:53]\nL_pc:')
        A(f'v_and_b32 {vL}, 63, v0\nv_lshrrev_b32 {t1}, 6, v0\ns_lshr_b32 {s["T0"]}, s2, 3\nv_readfirstlane_b32 {s["W"]}, {t1}')
        A(f'v_lshl_add_u32 {t1}, {s["T0"]}, 2, {t1}\nv_lshl_add_u32 {t1}, {t1}, 1, {vL}\nv_lshlrev_b32 {t1}, 7, {t1}\nv_min_u32 {t1}, L_code_end-L_pc-4, {t1}')
        A(f'v_add_co_u32 {t0[0]}, vcc, s52, {t1}\nv_mov_b32 {t0[1]}, s53\ns_and_b32 {s["M"]}, {s["T0"]}, 15\nv_addc_co_u32 {t0[1]}, vcc, 0, {t0[1]}, vcc')
        A(f's_mov_b64 exec, 3\nglobal_load_dword v255, {t0}, off\ns_mov_b64 exec, -1')
        t0.free()
        A(f's_and_b32 {s["C"]}, {s["T0"]}, 7\ns_lshr_b32 {s["SB"]}, {s["M"]}, 3\ns_and_b32 {s["T1"]}, s2, 7\ns_lshr_b32 {s["T0"]}, {s["T0"]}, 3')
        A(f's_lshl_b32 {s["BLK"]}, {s["T1"]}, 2\ns_add_u32 {s["BLK"]}, {s["BLK"]}, {s["T0"]}\ns_lshr_b32 {s["G"]}, {s["BLK"]}, 1')
        A(f's_lshl_b32 {self.sW2K}, {s["W"]}, 11\ns_mul_i32 {self.sW3K}, {s["W"]}, 3072\ns_lshl_b32 {self.sC128}, {s["C"]}, 7')
        self.sH128 = S.alloc()
        if o['xrot']: A(f's_add_u32 {self.sH128}, {s["C"]}, s2\ns_and_b32 {self.sH128}, {self.sH128}, 7\ns_lshl_b32 {self.sH128}, {self.sH128}, 7')
        else: A(f's_mov_b32 {self.sH128}, {self.sC128}')
        e = V.alloc(); ch = V.alloc()
        vHa = V.alloc(); self.vXa = V.alloc(); self.vXb = V.alloc(); self.vW1 = V.alloc(); self.vW2 = V.alloc()
        A(f'v_lshrrev_b32 {e}, 3, {vL}\nv_and_b32 {ch}, 7, {vL}')
        A(f'v_lshrrev_b32 {t1}, 4, {vL}\nv_xor_b32 {t1}, {t1}, {ch}\nv_lshlrev_b32 {t1}, 4, {t1}')
        A(f's_lshl_b32 {s["T0"]}, {s["BLK"]}, 6\ns_lshl_b32 {s["T1"]}, {s["W"]}, 4\ns_add_u32 {s["T1"]}, {s["T1"]}, {s["T0"]}')
        A(f'v_add_u32 {t2}, {s["T1"]}, {e}\nv_lshl_add_u32 {self.vXa}, {t2}, 10, {t1}\nv_add_u32 {self.vXb}, {7*1024}, {self.vXa}\nv_xor_b32 {self.vXb}, 64, {self.vXb}')
        A(f's_and_b32 {s["T1"]}, {s["W"]}, 1\ns_cselect_b32 {sHm}, -1, 0xffffff00\ns_lshl3_add_u32 {s["T0"]}, {s["T1"]}, {s["T0"]}\ns_sub_u32 {s["T0"]}, {s["T0"]}, 16\ns_lshl_b32 {s["T2"]}, {s["T1"]}, 6')
        A(f'v_add_u32 {t2}, {s["T0"]}, {e}\nv_max_i32 {vHa}, 0, {t2}\nv_lshl_add_u32 {vHa}, {vHa}, 10, {t1}\nv_xor_b32 {vHa}, {s["T2"]}, {vHa}')
        A(f's_lshl_b32 {s["T1"]}, {s["T1"]}, 2\ns_lshl_b32 {s["W1K"]}, {s["W"]}, 10')
        A(f'v_and_b32 {t1}, 2, {e}\nv_or_b32 {t1}, {s["T1"]}, {t1}\nv_xor_b32 {t1}, {t1}, {ch}\nv_lshlrev_b32 {t1}, 4, {t1}')
        A(f'v_lshl_add_u32 {t2}, {s["W"]}, 3, {e}')
        A(f'v_lshl_add_u32 {self.vW2}, {t2}, 10, {t1}\nv_mul_u32_u24 {t2}, 3072, {t2}\nv_add_u32 {self.vW1}, {t2}, {t1}')
        A(f's_mov_b32 s26, {2048*1024}\ns_mov_b32 s27, 0x20000\ns_mov_b32 s30, {512*3072}\ns_mov_b32 s31, 0x20000\ns_mov_b32 s50, {o["ws_base"] + WS_SIZE}\ns_mov_b32 s51, 0x20000\ns_mov_b32 s34, {512*1024}\ns_mov_b32 s35, 0x20000')
        A(f's_lshl_b32 {s["GB"]}, {s["G"]}, 20')
        if o['ws_base']: A(f's_add_u32 {s["GB"]}, {s["GB"]}, {o["ws_base"]}')
        A(f's_add_u32 {s["FL"]}, {s["GB"]}, {WS_FL}\ns_lshl2_add_u32 {self.sFme}, {s["M"]}, {s["FL"]}\nv_mov_b32 {t2}, 0')
        A(f's_cmp_eq_u32 {s["W"]}, 0\ns_cselect_b32 {sZ}, 0x3f, 0')
        self.sTb = S.alloc(); sTh = S.alloc()
        A(f's_mul_i32 {s["T0"]}, {s["C"]}, 0x11111111\ns_add_u32 {self.sTb}, {s["T0"]}, 0x76543210')
        if o['khalf']: A(f's_and_b32 {self.sTb}, {self.sTb}, 0x33333333\ns_or_b32 {self.sTb}, {self.sTb}, 0x44440000')
        A(f's_and_b32 {s["T0"]}, {s["W"]}, 2\ns_lshl_b32 {s["T0"]}, {s["T0"]}, 1\ns_lshr_b32 {sTh}, {self.sTb}, {s["T0"]}')
        v128 = self.v128 = V.alloc(); junk = V.alloc(); vT = V.alloc(); vTo = V.alloc(); sP = S.alloc(); sSel = s['PF']
        v1k = V.alloc(); self.vL16 = V.alloc(); hp = V.alloc(8, 2)
        A(f'v_lshlrev_b32 {v128}, 7, {vL}\nv_lshlrev_b32 {v1k}, 10, {vL}\nv_lshlrev_b32 {self.vL16}, 4, {vL}')
        OSRD = self.WS if o['o_in_ws'] else self.OUT
        def pf_group(kind, site=None):
            L = Asm()
            if kind == 'o': L(f's_mov_b64 exec, 0xffff\nbuffer_load_dword {junk}, {vTo}, {OSRD}, {self.sOst} offen sc1')
            elif kind == 'h': L(f's_mov_b64 exec, 0x3ffff\nbuffer_load_dword {junk}, {vT}, {self.WS}, {s["GB"]} offen sc1')
            elif kind == 'x1':
                L(f's_lshl2_add_u32 {sP}, {s["BLK"]}, {s["W"]}\ns_lshl3_add_u32 {sP}, {sP}, {s["C"]}\ns_lshl_b32 {sP}, {sP}, 11')
                L(f's_mov_b64 exec, 0xf0f0\nbuffer_load_dword {junk}, {v128}, {self.X}, {sP} offen sc1')
            elif kind in ('q3', 'o3', 'd3', 'q30', 'q31'):
                n, srd = {'q3': (12, self.WQ), 'q30': (6, self.WQ), 'q31': (6, self.WQ), 'o3': (4, self.WO), 'd3': (11, self.WD)}[kind]
                L(f's_lshr_b32 {sP}, s2, 3\ns_lshl2_add_u32 {sP}, {sP}, {s["W"]}\ns_mul_i32 {sP}, {sP}, {n*1024}')
                if kind == 'q31': L(f's_add_u32 {sP}, {sP}, {768*1024}')
                L(f's_mov_b64 exec, {hex((1 << n) - 1)}\nbuffer_load_dword {junk}, {v1k}, {srd}, {sP} offen offset:384 sc1')
            else:
                n, srd = {'wq': (12, self.WQ), 'wq0': (6, self.WQ), 'wq1': (6, self.WQ), 'wo': (4, self.WO), 'w3': (22, self.W3), 'wd': (11, self.WD)}[kind]
                if kind == 'w3': L(f's_and_b32 {sP}, {s["W"]}, 1\ns_lshl1_add_u32 {sP}, s2, {sP}')
                else: L(f's_lshl2_add_u32 {sP}, s2, {s["W"]}')
                L(f's_mul_i32 {sP}, {sP}, {n*128}')
                if kind == 'wq1': L(f's_add_u32 {sP}, {sP}, {768*1024}')
                L(f's_mov_b64 exec, {hex((1 << n) - 1)}\nbuffer_load_dword {junk}, {v128}, {srd}, {sP} offen sc1')
            L('s_mov_b64 exec, -1')
            for x in L.L:
                if x.kind == 'vmem':
                    x.defs = set()
                    if kind in o['pf_aux']: x.text = x.text.replace(' sc1', ' ' + o['pf_aux'][kind])
            if site is not None:
                mk = L.L[-3].text.split(', ')[1]
                return L.L[:-3] + [[Ins(f's_cmp_eq_u32 {sSel}, {site}'), Ins(f's_cselect_b64 exec, {mk}, 0')] + L.L[-2:]]
            return L.L[:-3] + [L.L[-3:]]
        def pf_flat(at):
            r = []
            for kind, a_ in o['pf'].items():
                if a_ == at:
                    gq = pf_group(kind); r.append(gq[:-1] + gq[-1])
            return r
        self.sOst = S.alloc(); self.sHst = S.alloc()
        c0 = self.p1_chunk_dma(0)
        A.ext(c0[0][:-1])
        A('@waitlg0')
        self.stamp('kernarg')
        if o.get('l2fill'):
            for lo, nbytes in o['l2fill']:
                per = -(-nbytes // (128*128))
                A(f's_mov_b32 s32, s{lo}\ns_mov_b32 s33, s{lo+1}\ns_mov_b32 s34, {nbytes}\ns_mov_b32 s35, 0x20000')
                A(f's_lshr_b32 {s["T0"]}, s2, 3\ns_lshl2_add_u32 {s["T0"]}, {s["T0"]}, {s["W"]}\ns_mul_i32 {s["T0"]}, {s["T0"]}, {per*128}')
                for q in range(-(-per // 64)): A(f'buffer_load_dword {t3}, {v128}, s[32:35], {s["T0"]} offen sc1\ns_add_u32 {s["T0"]}, {s["T0"]}, 8192')
                A('@waitvm0')
            A(f's_mov_b32 {s["T0"]}, 60\nL_dly:\ns_sub_u32 {s["T0"]}, {s["T0"]}, 1\ns_cmp_lg_u32 {s["T0"]}, 0\ns_cbranch_scc1 L_dly')
            self.stamp('probe done')
        if o.get('probe'):
            src, rounds, base = o['probe']
            lo = {'bx': 10, 'ws': 48, 'out': 18, 'wd': 16}[src]
            A(f's_mov_b32 s32, s{lo}\ns_mov_b32 s33, s{lo+1}\ns_mov_b32 s34, {(2 << 20) if src in ("bx", "out") else (1376*1024 if src == "wd" else 256 << 20)}\ns_mov_b32 s35, 0x20000')
            A(f'v_lshlrev_b32 {t1}, 7, {vL}\ns_lshl_b32 {s["T0"]}, s2, 2\ns_add_u32 {s["T0"]}, {s["T0"]}, {s["W"]}\ns_lshl_b32 {s["T0"]}, {s["T0"]}, 11\ns_add_u32 {s["T0"]}, {s["T0"]}, {base}')
            nl = 16 // rounds if rounds > 0 else 16
            for r in range(abs(rounds)):
                A(f's_mov_b64 exec, {hex((1 << nl) - 1)}\nbuffer_load_dword {t3}, {t1}, s[32:35], {s["T0"]} offen sc1\ns_mov_b64 exec, -1')
                if rounds > 0: A(f'@waitvm0\ns_add_u32 {s["T0"]}, {s["T0"]}, {nl*128}')
                else: A(f's_add_u32 {s["T0"]}, {s["T0"]}, {2 << 20}')
            A('@waitvm0')
            self.stamp('probe done')
        for gq in pf_flat('s0'): A.ext(gq)
        A.L.append(c0[0][-1])
        for gq in pf_flat('sx'): A.ext(gq)
        A(f's_mov_b32 exec_lo, {sZ}\ns_mov_b32 exec_hi, 0')
        A(f'buffer_store_dword {t2}, {v128}, {self.WS}, {self.sFme} offen', tag='fz')
        A('s_mov_b64 exec, -1')
        def chunk_items(i):
            gq = c0 if i == 0 else self.p1_chunk_dma(i)
            if i >= 4: return gq
            h = [Ins(f's_add_u32 m0, {s["W1K"]}, {L_HALO + i*4096}')]
            h += [Ins(f's_bfe_u32 {sH}, {sTh}, {hex(0x30000 + 8*i)}'), Ins(f's_lshl_b32 {sH}, {sH}, 7')]
            h.append([Ins(f's_mov_b32 exec_lo, {sHm}'), Ins(f'buffer_load_dwordx4 {vHa}, {self.X}, {sH} offen lds', f'hr{i}'), Ins('s_mov_b32 exec_lo, -1')])
            return gq[:5] + [h] + gq[5:]
        fl1 = lambda gq: [y for x in gq for y in (x if isinstance(x, list) else [x])]
        self.sCen = S.alloc(); self.sCoff = S.alloc(); self.sCv = sZ
        c1 = chunk_items(1); n1a, n1b = o['n1a'], o['n1b']
        g0 = [fl1(x) for x in chunk_items(0)[1:]]
        rows = Asm()
        if o['ymean']:
            rows(f's_lshl_b32 {sP}, s2, 11\ns_cmp_eq_u32 {s["W"]}, 0\ns_cselect_b64 exec, -1, 0')
            rows(f'buffer_load_dwordx4 {hp.sub(0, 4)}, {self.vL16}, {self.WO}, {sP} offen\nbuffer_load_dwordx4 {hp.sub(4, 4)}, {self.vL16}, {self.WO}, {sP} offen offset:1024\ns_mov_b64 exec, -1')
        groups = g0[:5] + ([rows.L] if rows.L else []) + pf_flat('sa') + g0[5:] + pf_flat('s1') + [fl1(x) for x in c1[:n1a]]
        B = Asm()
        B(f's_getreg_b32 {s["T0"]}, hwreg(HW_REG_XCC_ID, 0, 4)\ns_mul_i32 {s["T1"]}, {s["T0"]}, {s["T0"]}\ns_lshl_b32 {s["T1"]}, {s["T1"]}, 13\ns_lshl_b32 {s["T0"]}, {s["T0"]}, 5')
        B(f's_add_u32 {self.sCen}, {s["T0"]}, {s["T1"]}\ns_add_u32 {self.sCen}, {self.sCen}, 1\ns_lshl_b32 {self.sCoff}, {s["G"]}, 4')
        self.ones = V.alloc(4, 2)
        for k in range(4): B(f'v_mov_b32 {self.ones[k]}, 0x3f803f80')
        B(f's_lshl_b32 {s["T0"]}, {s["W"]}, 12\nv_lshlrev_b32 {t1}, 11, {e}\nv_lshl_add_u32 {t1}, {ch}, 4, {t1}\nv_add_u32 {t1}, {s["T0"]}, {t1}')
        B(f's_mov_b64 exec, 0xffff\nds_write_b128 {t1}, {self.ones} offset:{L_HALO}\ns_mov_b64 exec, -1')
        B(f'v_mov_b32 v254, {L_SCR + 4092}')
        self.srd(B, 40, 16, 1376*1024); self.srd(B, 44, 18, 2048*1024)
        B(f's_cmp_lt_u32 {s["W"]}, 2\ns_cselect_b32 s36, s12, s14\ns_cselect_b32 s37, s13, s15\ns_mov_b32 s38, {512*PITCH3}\ns_mov_b32 s39, 0x20000')
        S.free |= set(range(3, 20)) | {0, 1, 22, 23} | set(range(52, 60))
        self.sMode = S.alloc(); self.mW1 = S.alloc(2); self.mW16 = S.alloc(2)
        B(f's_mov_b32 {self.sMode}, 0\ns_cmp_eq_u32 {s["W"]}, 0\ns_cselect_b64 {self.mW1}, 1, 0\ns_cselect_b64 {self.mW16}, 0xffff, 0')
        self.sN3 = S.alloc(2); self.sInv512 = S.alloc()
        if o['perm3']:
            pi = [0, 1, 2, 14, 4, 5, 6, 7, 8, 9, 10, 15, 12, 13, 3, 11]; tb64 = sum(v << (4*q) for q, v in enumerate(pi))
            B(f's_mov_b32 {self.sN3[0]}, {hex(tb64 & 0xffffffff)}\ns_mov_b32 {self.sN3[1]}, {hex(tb64 >> 32)}\ns_lshl_b32 {s["M"]}, {s["M"]}, 2\ns_lshr_b64 {self.sN3}, {self.sN3}, {s["M"]}\ns_and_b32 {s["M"]}, {self.sN3[0]}, 15')
        B(f's_cmp_lt_u32 {s["M"]}, 15\ns_cselect_b32 {self.sN3[0]}, s38, 0\ns_cmp_lt_u32 {s["M"]}, 14\ns_cselect_b32 {self.sN3[1]}, s38, 0')
        B(f's_mov_b32 {self.sInv512}, {fhex(1/512)}')
        self.vEps = V.alloc(); B(f'v_mov_b32 {self.vEps}, {fhex(1e-5)}')
        j = self.vJ = V.alloc(); g = self.vG = V.alloc()
        B(f'v_and_b32 {j}, 15, {vL}\nv_lshrrev_b32 {g}, 4, {vL}')
        self.aX = [V.alloc(), V.alloc()]; self.aXo = [V.alloc(), V.alloc()]; self.aW1 = V.alloc(); aHs = [V.alloc(), V.alloc()]
        B(f'v_lshrrev_b32 {t1}, 1, {j}\nv_xor_b32 {t1}, {t1}, {g}\nv_lshlrev_b32 {t1}, 4, {t1}\nv_lshl_add_u32 {self.aX[0]}, {j}, 7, {t1}\nv_xor_b32 {self.aX[1]}, 64, {self.aX[0]}')
        B(f'v_add_u32 {aHs[0]}, {s["T0"]}, {self.aX[0]}\nv_add_u32 {aHs[1]}, {s["T0"]}, {self.aX[1]}')
        B(f's_add_u32 {s["T0"]}, {self.sW2K}, {L_X}\nv_add_u32 {self.aXo[0]}, {s["T0"]}, {self.aX[0]}\nv_add_u32 {self.aXo[1]}, {s["T0"]}, {self.aX[1]}')
        ra = [V.alloc() for _ in range(4)]
        B(f'v_lshrrev_b32 {t1}, 1, {j}\nv_lshrrev_b32 {t2}, 1, {g}\nv_xor_b32 {t1}, {t1}, {t2}\nv_lshlrev_b32 {t1}, 4, {t1}\nv_and_b32 {t2}, 1, {g}\nv_lshl_add_u32 {t1}, {t2}, 3, {t1}')
        B(f'v_lshl_add_u32 {t1}, {j}, 7, {t1}\nv_add_u32 {ra[0]}, {s["T0"]}, {t1}')
        for ct in range(1, 4): B(f'v_xor_b32 {ra[ct]}, {ct*32}, {ra[0]}')
        self.vTRf = V.alloc(); self.vTRb = V.alloc()
        B(f'v_and_b32 {t1}, 3, {e}\nv_lshlrev_b32 {self.vTRf}, 5, {t1}')
        B(f'v_bfe_u32 {t1}, {vL}, 2, 2\nv_and_b32 {t2}, 3, {vL}\nv_lshlrev_b32 {t2}, 3, {t2}\nv_lshl_add_u32 {self.vTRb}, {t1}, 7, {t2}')
        B(f's_lshl_b32 {s["T0"]}, {s["W"]}, 5\nv_xor_b32 {t1}, {s["T0"]}, {self.vTRf}\nv_mul_u32_u24 {t2}, 3072, {g}\nv_add3_u32 {self.aW1}, {t1}, {t2}, {self.vTRb}\nv_add_u32 {self.aW1}, {L_W}, {self.aW1}')
        self.mB0 = S.alloc(2); self.mB1 = S.alloc(2); self.mDiag = S.alloc(2); mOwnA = S.alloc(2); mOwnB = S.alloc(2)
        B(f's_mov_b32 {self.mB0[0]}, 0xaaaaaaaa\ns_mov_b32 {self.mB0[1]}, 0xaaaaaaaa\ns_mov_b32 {self.mB1[0]}, 0xcccccccc\ns_mov_b32 {self.mB1[1]}, 0xcccccccc')
        B(f's_mov_b32 {self.mDiag[0]}, 0x00f0000f\ns_mov_b32 {self.mDiag[1]}, 0xf0000f00')
        def lanemask(fn):
            v = sum(1 << l for l in range(64) if fn(l & 15, l >> 4)); return v & 0xffffffff, v >> 32
        oa = lanemask(lambda jj, gg: 4*gg + (jj & 1) <= jj); ob = lanemask(lambda jj, gg: 4*gg + 2 + (jj & 1) <= jj)
        B(f's_mov_b32 {mOwnA[0]}, {hex(oa[0])}\ns_mov_b32 {mOwnA[1]}, {hex(oa[1])}\ns_mov_b32 {mOwnB[0]}, {hex(ob[0])}\ns_mov_b32 {mOwnB[1]}, {hex(ob[1])}')
        aTB = V.alloc(); aTBw = V.alloc(); aHPw = V.alloc(); aHPr = V.alloc()
        B(f'v_lshlrev_b32 {aTB}, 4, {j}\nv_add_u32 {aTB}, {SCR_TB}, {aTB}\nv_lshl_add_u32 {aTBw}, {s["W"]}, 8, {aTB}')
        B(f'v_lshlrev_b32 {aHPr}, 5, {j}\nv_add_u32 {aHPr}, {SCR_HP}, {aHPr}\nv_lshl_add_u32 {aHPw}, {s["W"]}, 3, {aHPr}')
        ca_ = V.alloc(); sCx = S.alloc(); sRm = S.alloc(); sRo = S.alloc()
        B(f'v_lshlrev_b32 {ca_}, 4, {j}\ns_lshl_b32 {sCx}, {self.sCen}, 4\ns_lshl_b32 {sRo}, {s["W"]}, 9\ns_and_b32 {sRm}, {s["W"]}, 2\ns_lshl_b32 {sRm}, {sRm}, 5')
        B(f's_add_u32 {sRm}, {sRm}, {sRo}\ns_add_u32 {sRm}, {sRm}, {SCR_R}\ns_add_u32 {sRo}, {sRo}, {o["ws_base"] + WS_R}')
        ka = V.alloc(); kb = V.alloc(); bias = V.alloc(2); sel = V.alloc(4)
        B(f'v_and_b32 {t1}, 1, {j}\nv_lshl_add_u32 {t1}, {g}, 2, {t1}\nv_lshlrev_b32 {t1}, 4, {t1}\nv_add_u32 {t1}, {SCR_TB + 8}, {t1}\nv_add_u32 {t2}, 256, {t1}')
        B(f'v_cndmask_b32 {ka}, {t1}, {t2}, {mOwnA}\nv_cndmask_b32 {kb}, {t1}, {t2}, {mOwnB}')
        B(f's_cmp_eq_u32 {s["BLK"]}, 0\ns_cselect_b32 {s["T0"]}, {fhex(-1e30)}, 0\nv_mov_b32 {t1}, {s["T0"]}\nv_mov_b32 {t3}, 0x0c0c0c0c')
        B(f'v_cndmask_b32 {bias[0]}, {t1}, 0, {mOwnA}\nv_cndmask_b32 {bias[1]}, {t1}, 0, {mOwnB}')
        B(f'v_mov_b32 {t1}, 0x0c0c0100\nv_mov_b32 {t2}, 0x01000c0c\nv_cndmask_b32 {t1}, {t1}, {t2}, {self.mB0}')
        B(f'v_cndmask_b32 {sel[0]}, {t1}, {t3}, {mOwnA}\nv_cndmask_b32 {sel[2]}, {t3}, {t1}, {mOwnA}')
        B(f'v_mov_b32 {t1}, 0x0c0c0302\nv_mov_b32 {t2}, 0x03020c0c\nv_cndmask_b32 {t1}, {t1}, {t2}, {self.mB0}')
        B(f'v_cndmask_b32 {sel[1]}, {t1}, {t3}, {mOwnB}\nv_cndmask_b32 {sel[3]}, {t3}, {t1}, {mOwnB}')
        self.vW2b = V.alloc(); B(f'v_add_u32 {self.vW2b}, 32768, {self.vW2}')
        self.sD = S.alloc(); self.vF = V.alloc(2); self.vH = V.alloc(); self.vD = V.alloc(4)
        self.sU = S.alloc(2); self.sDl = S.alloc(); self.sCP = {}; d64 = self.sD
        if o['mirror']:
            B(f's_and_b32 {s["PF"]}, {s["M"]}, 1\ns_mul_i32 {s["T0"]}, {s["M"]}, 192\ns_lshl_b32 {d64}, {s["PF"]}, 6\ns_add_u32 {s["T2"]}, {s["T0"]}, {d64}')
            B(f's_add_u32 {s["T3"]}, {s["T2"]}, {d64}\ns_add_u32 {s["T3"]}, {s["T3"]}, {PITCH3}\ns_lshl_b32 {s["T1"]}, {d64}, 1\ns_sub_u32 {self.sDl}, {PITCH3 + 64}, {s["T1"]}')
        else:
            B(f's_and_b32 {s["PF"]}, {s["M"]}, 1\ns_mul_i32 {s["T0"]}, {s["M"]}, 192\ns_mul_i32 {s["T1"]}, {s["PF"]}, {PITCH3}')
            B(f's_add_u32 {s["T2"]}, {s["T0"]}, {s["T1"]}\ns_sub_u32 {s["T3"]}, {s["T0"]}, {s["T1"]}\ns_add_u32 {s["T3"]}, {s["T3"]}, {PITCH3}')
            B(f's_sub_u32 {self.sDl}, {s["T3"]}, {s["T2"]}\ns_add_u32 {self.sDl}, {self.sDl}, 64')
        B(f's_and_b32 {s["T0"]}, {s["W"]}, 1\ns_and_b32 {s["T1"]}, {s["W"]}, 2')
        B(f'v_and_b32 {t2}, 1, {e}\nv_lshl_add_u32 {t1}, {g}, 3, {t2}\nv_lshl_add_u32 {t1}, {s["T0"]}, 1, {t1}\nv_mul_u32_u24 {t1}, {2*PITCH3}, {t1}\nv_add_u32 {t1}, {s["T2"]}, {t1}')
        B(f'v_and_b32 {t3}, 1, {g}\nv_or_b32 {t2}, {s["T1"]}, {t3}\nv_lshlrev_b32 {t2}, 1, {t2}\nv_xor_b32 {t2}, {t2}, {ch}\nv_lshlrev_b32 {t2}, 4, {t2}')
        if o['mirror']: B(f'v_xor_b32 {t2}, {d64}, {t2}')
        B(f'v_add_u32 {self.vF[0]}, {t2}, {t1}\nv_add_u32 {self.vF[1]}, {8*PITCH3}, {self.vF[0]}')
        B(f'v_lshl_add_u32 {t1}, {s["T0"]}, 3, {e}\nv_lshlrev_b32 {t3}, 2, {t3}\nv_xor_b32 {t3}, {t3}, {ch}\nv_lshlrev_b32 {t3}, 4, {t3}\nv_lshl_add_u32 {self.vD[0]}, {t1}, 10, {t3}')
        B(f'v_and_b32 {t1}, 3, {e}\nv_lshlrev_b32 {t1}, 3, {t1}\nv_lshrrev_b32 {t2}, 5, {vL}\nv_lshl_add_u32 {t1}, {t2}, 1, {t1}\nv_bfe_u32 {t2}, {vL}, 2, 1\nv_add_u32 {t1}, {t1}, {t2}\nv_lshl_add_u32 {t1}, {s["T0"]}, 2, {t1}\nv_mul_u32_u24 {t1}, {2*PITCH3}, {t1}\nv_add_u32 {t1}, {s["T3"]}, {t1}')
        B(f'v_and_b32 {t2}, 3, {vL}\nv_xor_b32 {t2}, {s["T1"]}, {t2}\nv_lshl_add_u32 {self.vH}, {t2}, 4, {t1}')
        B(f's_lshl_b32 {s["T1"]}, {s["T1"]}, 13\ns_add_u32 {self.sU[0]}, {s["T1"]}, {self.sC128}\ns_mul_i32 {s["T1"]}, {s["T1"]}, {2 if o["mirror"] else 6}\ns_add_u32 {self.sU[1]}, {s["T1"]}, {self.sC128}')
        pass
        B(f's_lshl_b32 {self.sOst}, {s["BLK"]}, 16\ns_lshl_b32 {s["T1"]}, {self.sH128}, 5\ns_add_u32 {self.sOst}, {self.sOst}, {s["T1"]}\ns_add_u32 {self.sOst}, {self.sOst}, {s["W1K"]}')
        B(f'v_lshlrev_b32 {t1}, 7, {ch}\nv_lshl_add_u32 {vTo}, {e}, 15, {t1}')
        B(f's_lshr_b32 {s["T1"]}, {s["W"]}, 1\ns_lshl_b32 {s["T2"]}, {s["SB"]}, 1\ns_add_u32 {s["T2"]}, {s["T2"]}, {s["T1"]}\ns_lshl_b32 {s["T2"]}, {s["T2"]}, 15')
        B(f's_lshl_b32 {s["T1"]}, {s["C"]}, 12\ns_add_u32 {s["T2"]}, {s["T2"]}, {s["T1"]}\ns_add_u32 {self.sHst}, {s["T2"]}, {s["GB"]}')
        B(f's_lshl_b32 {s["T0"]}, {s["T0"]}, 11\ns_add_u32 {s["T2"]}, {s["T2"]}, {s["T0"]}\nv_add_u32 {vT}, {s["T2"]}, {v128}')
        B(f's_lshl_b32 {s["T0"]}, {s["M"]}, 2\ns_add_u32 {s["T0"]}, {s["T0"]}, {s["W"]}\ns_lshl_b32 {s["T0"]}, {s["T0"]}, 7\ns_add_u32 {s["T1"]}, {s["T0"]}, {WS_ST}\nv_writelane_b32 {vT}, {s["T1"]}, 16')
        B(f's_and_b32 {s["T0"]}, {s["T0"]}, 0x380\ns_add_u32 {s["T1"]}, {s["T0"]}, {WS_FL}\nv_writelane_b32 {vT}, {s["T1"]}, 17')
        self.info['setupB'] = len(B.L)
        k1 = max(q for q in safe_points(B.L) if q <= o['c1_from'])
        code = sprinkle(B.L[:k1], groups, o['sp0'], start=0) + (self.visit('v0') if o['v0_at'] == -2 else []) + sprinkle(B.L[k1:], pf_flat('sb') + [fl1(x) for x in c1[n1a:n1b]], o['sp0b'], start=0)
        if o['visit']:
            k = max(q for q in safe_points(code) if q <= o['jump_at'])
            code[k:k] = [Ins('s_branch L_body'), Ins('.p2align 12'), Ins('L_body:')]
        if o.get('st0'):
            sp_ = set(safe_points(code)); last = 0
            for q, x in enumerate(code):
                if q - last >= o['st0'] and q in sp_:
                    self.stamp(f'i{q}v{sum(y.kind == "vmem" for y in code[:q])}'); last = q
                A.L.append(x)
            self.stamp('ipre-visit')
        else: A.ext(code)
        for r in (e, ch): r.free()
        for gq in pf_flat('s2'): A.ext(gq)
        if o['v0_at'] == -1: A.ext(self.visit('v0'))
        self.aQ = [V.alloc(4, 2) for _ in range(5)]; self.aK = [V.alloc(4, 2) for _ in range(5)]; self.aV = [V.alloc(4, 2) for _ in range(5)]
        self.stG = V.alloc(4, 2); self.stS = V.alloc(4, 2); hG = V.alloc(4, 2); hS = V.alloc(4, 2)
        bufs = [([AG.alloc(4, 4) for _ in range(3)], [AG.alloc(4, 4) for _ in range(5)], AG.alloc(4, 4)) for _ in range(2)]
        hb = [AG.alloc(4, 4) for _ in range(4)]
        nsite = max([len(a_) for a_ in o['pf'].values() if isinstance(a_, list)] + [0])
        if nsite:
            sSel = S.alloc(); src = {'x': 's2', 'g': s['G'], 'b': s['BLK'], 'c': s['C']}[o['selby']]
            if nsite == 3: A(f's_and_b32 {sSel}, {src}, 7\ns_lshl_b32 {sSel}, {sSel}, 2\ns_lshr_b32 {sSel}, 0x10210210, {sSel}\ns_and_b32 {sSel}, {sSel}, 3')
            else: A(f's_and_b32 {sSel}, {src}, {nsite - 1}')
        self.stamp('setup done')
        A('@waitlg0\n@waitvm hr0\ns_barrier')
        self.stamp('chunk0 visible')
        A.ext(self.p1_reads(0, 0, bufs[0]))
        cen = f's_cmp_lg_u32 {s["W"]}, 0\ns_cbranch_scc1 L_nocen\n@raw 1\ns_atomic_add {self.sCen}, s[20:21], {self.sCoff}\n@raw 0\nL_nocen:\n@minlg 1'
        if not o['ymean']: A(cen)
        self.resx = V.alloc(8, 2); tb4 = V.alloc(4, 2)
        hs = Asm()
        for a_, b_ in ((0, 2), (1, 3), (4, 6), (5, 7), (0, 4), (1, 5)): hs(f'v_add_f32 {hp[a_]}, {hp[a_]}, {hp[b_]}')
        hs.ext(self.stats_code(hp[1], hp[0], tb4)); hs(f'ds_write_b128 {aTB}, {tb4}')
        flat = lambda gs: [x for gq in gs for x in gq]
        pfm = lambda at: [x for kind, a_ in o['pf'].items() if a_ == at for x in pf_group(kind)]
        misc = flat(c1[n1b:]) + pfm('c1') + flat(chunk_items(2)) + pfm('c2')
        side = []
        self.gap_since_vm = 99
        HS = o['HS']
        for n in range(16):
            i, st = n >> 1, n & 1
            if n: A('@waitlg0')
            if o.get("fine", 0) >= 16 and (st == 0 or o.get('steps')) and n: self.stamp(f'p1 chunk {i}' + ('b' if st else ''))
            if st == 1 and i < 7:
                top = []
                while any(x.tag == f'ch{i+1}' for x in fl1(misc)) or sum(x.tag == f'ch{i+2}' for x in fl1(misc)) > 8 - o['topup']:
                    if not top or any(y.kind == 'vmem' for y in top[-1]): top.append([])
                    top[-1] += fl1([misc.pop(0)])
                mk_ = len(A.L)
                if o['v0_at'] == i: A.ext(self.visit('v0'))
                if o['ymean'] and i == 0:
                    A(f'v_mfma_f32_16x16x32_bf16 {hG}, {self.ones}, {hp.sub(0, 4)}, 0\nv_mfma_f32_16x16x32_bf16 {hS}, {self.ones}, {hp.sub(4, 4)}, 0')
                    A(f's_lshl2_add_u32 {s["T0"]}, s2, {o["ws_base"] + WS_R}')
                    for ror in (8, 4, 2, 1):
                        for r_ in (hG[0], hS[0]): A(f'v_add_f32_dpp {r_}, {r_}, {r_} row_ror:{ror} row_mask:0xf bank_mask:0xf')
                    A(f'v_mul_f32 {hG[0]}, {fhex(-1/512)}, {hG[0]}\nv_mul_f32 {hS[0]}, {fhex(-1/512)}, {hS[0]}\nv_cvt_pk_bf16_f32 {hG[1]}, {hG[0]}, {hS[0]}')
                    A(f'v_lshlrev_b32 {hG[2]}, 16, {hG[1]}\nv_and_b32 {hG[3]}, 0xffff0000, {hG[1]}\nv_sub_f32 {hG[0]}, {hG[0]}, {hG[2]}\nv_sub_f32 {hS[0]}, {hS[0]}, {hG[3]}')
                    A(f'v_cvt_pk_bf16_f32 {hG[0]}, {hG[0]}, {hS[0]}\nv_cndmask_b32 {hG[0]}, {hG[1]}, {hG[0]}, {self.mB0}')
                A.L[mk_:] = sprinkle(A.L[mk_:], top, 4)
                if o['ymean'] and i == 0:
                    A(f's_and_b64 exec, {self.mW16}, 3')
                    A(f'buffer_store_dword {hG[0]}, {v1k}, {self.WS}, {s["T0"]} offen sc1', tag='rst')
                    A('s_mov_b64 exec, -1')
                A(f'@waitvm ch{i+1}\ns_barrier')
                if o['ymean'] and i == 2: A('@waitvm rst\n' + cen)
                if i == o['minlg_until']: A('@minlg 0')
                if i + 3 < 8: misc += flat(chunk_items(i + 3))
                for kind, at in o['pf'].items():
                    if at == i: misc += pf_group(kind)
                    elif isinstance(at, list) and i in at: misc += pf_group(kind, at.index(i))
                if i == 5:
                    self.free_blocks += [23, 24, 25, 26, 27]
                    misc += flat(self.dmas(o['w2a']))
                if i == 6: misc += flat(self.dmas(o['w2b']))
            mf = self.p1_mfmas(bufs[n & 1], n == 0)
            if n < 15:
                rd = self.p1_reads((n + 1) >> 1, (n + 1) & 1, bufs[(n + 1) & 1])
                if o['alt_rd']: rd = [x for pr in zip([y for y in rd if 'b128' in y.mn], [y for y in rd if 'b128' not in y.mn]) for x in pr]
                if n == HS: rd += [Ins(f'ds_read_b128 {hb[q]}, {aHs[q & 1]} offset:{L_HALO + (q >> 1)*2048}') for q in range(4)]
                if n == HS + 1:
                    for q in range(4):
                        mf += [Ins(f'v_mfma_f32_16x16x32_bf16 {hG}, {hb[q]}, {hb[q]}, {hG if q else 0}'), Ins(f'v_mfma_f32_16x16x32_bf16 {hS}, {self.ones}, {hb[q]}, {hS if q else 0}')]
                    mf = mf[17:] + mf[:17]
                if n == HS + 1: side += self.diag_code(hG, hS[1]) + [[Ins(f's_mov_b64 exec, {self.mDiag}'), Ins(f'ds_write_b64 {aHPw}, {hS.sub(0, 2)}'), Ins('s_mov_b64 exec, -1')]]
                if n == HS + 3:
                    assert st == 1 and not side
                    rd += [Ins(f'ds_read_b128 {hp.sub(0, 4)}, {aHPr}'), Ins(f'ds_read_b128 {hp.sub(4, 4)}, {aHPr} offset:16')]
                if n == HS + 4: side += hs.L
                if n == 8 and o['khalf']:
                    A(f's_cmp_lt_u32 {s["C"]}, 4\ns_cselect_b64 exec, 0, -1')
                    for ct in range(4): A(f'ds_read_b64 {self.resx.sub(2*ct, 2)}, {ra[ct]} offset:{(4 % 3)*8192}')
                    A('s_mov_b64 exec, -1')
                vg = o['vgap0'] if n < 4 else o['vgap']
                if n == 0:
                    rx = [x for x in rd if 'b128' in x.mn] + [Ins(f'ds_read_b64 {self.resx.sub(2*ct, 2)}, {ra[ct]}') for ct in range(4)]
                    k0 = o['k0']
                    self.weave16(mf[:k0], rx, misc, vgap=vg, tail=0)
                    A('@waitvm ch0\ns_barrier')
                    self.weave16(mf[k0:], [x for x in rd if 'b128' not in x.mn], misc, vgap=vg)
                elif n == 14:
                    assert not side
                    m2 = self.p1_mfmas((bufs[1][0], bufs[1][1], hb[0]), False)[:2]
                    mf = mf[:2] + m2 + mf[2:]
                    code = self.diag_code(self.stG, self.stS[1]) + self.stats_code(self.stS[1], self.stS[0], tb4)
                    code.append([Ins(f's_mov_b64 exec, {self.mDiag}'), Ins(f'ds_write_b128 {aTBw}, {tb4} offset:256'), Ins('s_mov_b64 exec, -1')])
                    self.weave16(mf[:8], rd[1:], [], tail=0)
                    self.weave16(mf[8:15], [], code); assert not code
                    self.weave16(mf[15:], [], misc)
                else:
                    if n == 13: rd.append(Ins(f'ds_read_b128 {hb[0]}, {self.aXo[1]} offset:{(7 % 3)*8192}'))
                    self.weave16(mf, rd, misc, vgap=vg, side=side)
            else:
                A('s_barrier')
                for r in ra + aHs + [hG, hS, hp]: r.free()
                tb = [V.alloc(4, 2) for _ in range(5)]; rk = [None] + [V.alloc(2) for _ in range(4)]
                csq = V.alloc(4, 2); csk = V.alloc(4, 2); csv = V.alloc(2, 2)
                F = Asm()
                for t in range(5):
                    F(f'ds_read_b128 {tb[t]}, {aTB} offset:{t*256}')
                    if t: F(f'ds_read_b32 {rk[t][0]}, {ka} offset:{(t-1)*256}')
                for t in range(1, 5): F(f'ds_read_b32 {rk[t][1]}, {kb} offset:{(t-1)*256 + 32}')
                F(f'v_mov_b32 {csv[0]}, 0')
                for r in range(4): F(f'v_mov_b32_dpp {csk[r]}, {self.aK[0][r]} row_newbcast:0 row_mask:0xf bank_mask:0xf')
                for r in range(4): F(f'v_mov_b32_dpp {csq[r]}, {self.aQ[0][r]} row_newbcast:0 row_mask:0xf bank_mask:0xf')
                F(f'v_cvt_pk_bf16_f32 {t1}, {self.aV[0][0]}, {self.aV[0][0]}\nv_mov_b32 {csv[1]}, 0\nv_and_b32 {t1}, 0xffff0000, {t1}\nv_sub_f32 {t2}, {self.aV[0][0]}, {t1}')
                fl_ = F.L + [[Ins('s_mov_b64 exec, 0xffff'), Ins(f'v_cvt_pk_bf16_f32 {csv[1]}, {t1}, {t2}'), Ins('s_mov_b64 exec, -1')]]
                mm = mf[2:]
                self.weave16([mm[q] for q in (5, 0, 10, 6, 7, 8, 9, 1, 2, 3, 4, 11, 12, 13, 14)], [], fl_); assert not fl_
                A('@waitlg0')
        self.stamp('p1 gemm done')
        for b in bufs:
            for r in b[0] + b[1] + [b[2]]: r.free()
        for r in hb + [vHa, sH, sHm, sTh, self.sTb, aHPw, aHPr, aTBw, tb4, self.stG, self.aW1, self.vXa, self.vXb, self.vW1] + self.aX + self.aXo: r.free()
        left = []; cur = []
        for x in misc:
            cur += x if isinstance(x, list) else [x]
            if any(y.kind == 'vmem' for y in cur): left.append(cur); cur = []
        assert not cur
        self.info['w2_left'] = len(left)
        if left: A.ext(left.pop(0))
        nw2_left = 16 - o['w2a'] - o['w2b']
        late_free = [22, 8, 9] + list(range(10, 16)) + [4, 5] + list(range(16, 22)) + [6, 7, 0, 1, 2, 3]
        cv_ = V.alloc(); ct_ = V.alloc()
        crd = Asm(); crd(f'global_load_dword {cv_}, {ca_}, s[20:21] sc1')
        cck = Asm()
        chk = f'v_and_b32 {ct_}, 16, {cv_}\nv_readlane_b32 {self.sCv}, {cv_}, {s["G"]}\nv_cmp_eq_u32 vcc, 0, {ct_}'
        cck(chk + f'\ns_cmp_lg_u32 {sCx}, {self.sCv}')
        if o['force_slow']: cck('s_cmp_eq_u32 0, 0')
        cck('s_cselect_b64 vcc, -1, vcc\ns_cbranch_vccnz L_notfast\nL_mode_ok:')
        if o['ymean']:
            cck(f's_mov_b32 m0, {sRm}\ns_mov_b32 exec_hi, 0\nbuffer_load_dwordx4 {self.vL16}, {self.WS}, {sRo} offen sc1 lds\ns_mov_b32 exec_hi, -1')
        T = self.tail
        T(f'L_notfast:\ns_mov_b32 {s["T1"]}, 0x8000\nL_cen_loop:\nglobal_load_dword {cv_}, {ca_}, s[20:21] sc1\ns_waitcnt vmcnt(0)\n' + chk)
        T(f's_sub_u32 {s["T1"]}, {s["T1"]}, 1\ns_cbranch_scc1 L_cen_done\ns_cbranch_vccnz L_cen_loop\nL_cen_done:')
        if o['stamps']: T('s_add_u32 s97, s97, 0x1000000')
        if not o['force_slow']: T(f's_cmp_eq_u32 {sCx}, {self.sCv}\ns_cbranch_scc1 L_mode_ok')
        T(f's_mov_b32 {self.sMode}, 1\nv_mov_b32 {ca_}, {self.sCoff}')
        T(f's_add_u32 {s["FL"]}, {s["FL"]}, {FL_SLOW}\ns_add_u32 {self.sFme}, {self.sFme}, {FL_SLOW}\ns_mov_b32 {s["T1"]}, 0x8000\ns_cmp_lg_u32 {s["W"]}, 0\ns_cbranch_scc1 L_slow_loop')
        T(f's_mov_b64 exec, 0x3f\nv_mov_b32 {cv_}, 0\nbuffer_store_dword {cv_}, {v128}, {self.WS}, {self.sFme} offen sc1\ns_waitcnt vmcnt(0)\ns_mov_b64 exec, 1\nv_mov_b32 {cv_}, 1')
        T(f'global_atomic_add {ca_}, {cv_}, s[20:21] offset:4 sc1\ns_mov_b64 exec, -1')
        T(f'L_slow_loop:\nglobal_load_dword {cv_}, {ca_}, s[20:21] offset:4 sc1\ns_waitcnt vmcnt(0)\nv_readfirstlane_b32 {s["T2"]}, {cv_}')
        sb_ = 'L_slow_body' if o['split'] else 'L_mode_ok'
        T(f's_sub_u32 {s["T1"]}, {s["T1"]}, 1\ns_cbranch_scc1 {sb_}\ns_cmp_lt_u32 {s["T2"]}, 16\ns_cbranch_scc1 L_slow_loop\ns_branch {sb_}')
        E = Asm()
        Kp = V.alloc(10, 2); Qp = V.alloc(10, 2); Vp = V.alloc(10, 2)
        def fixf(acc, cs, t):
            for h in range(2): E(f'v_pk_fma_f32 {acc[t].sub(2*h, 2)}, {cs.sub(2*h, 2)}, {tb[t].sub(0, 2)}, {acc[t].sub(2*h, 2)} op_sel_hi:[1,0,1]')
        fixf(self.aK, csk, 0)
        for t in range(1, 5): fixf(self.aK, csk, t); fixf(self.aQ, csq, t)
        zs = [None] + [V.alloc(2) for _ in range(4)]
        for t in range(1, 5): E(f'v_pk_mul_f32 {zs[t]}, {rk[t]}, {tb[t].sub(2, 2)} op_sel:[0,1] op_sel_hi:[1,1]')
        cv = lambda acc, dst, t: [f'v_cvt_pk_bf16_f32 {dst[2*t + h]}, {acc[t][2*h]}, {acc[t][2*h+1]}' for h in range(2)]
        vm = [f'v_mfma_f32_16x16x16_bf16 {self.aV[t]}, {tb[t].sub(0, 2)}, {csv}, {self.aV[t]}' for t in range(5)]
        cvs = cv(self.aK, Kp, 0)
        for t in range(1, 5): cvs += cv(self.aK, Kp, t) + cv(self.aQ, Qp, t)
        for t in range(5):
            E(vm[t]); E(cvs.pop(0)); E(cvs.pop(0))
        Sp, So = self.aK, self.aQ
        Sp = [None] + self.aK[0:4]; So = [None] + self.aQ[0:4]
        for t in range(1, 5):
            E(f'v_mfma_f32_16x16x16_bf16 {Sp[t]}, {Kp.sub(2*t-2, 2)}, {Qp.sub(2*t, 2)}, 0')
            for _ in range(2):
                if cvs: E(cvs.pop(0))
            E(f'v_mfma_f32_16x16x16_bf16 {So[t]}, {Kp.sub(2*t, 2)}, {Qp.sub(2*t, 2)}, 0')
            for _ in range(2):
                if cvs: E(cvs.pop(0))
        z = [None] + [V.alloc(2) for _ in range(4)]
        for t in range(1, 5):
            for h, mk in ((0, mOwnA), (1, mOwnB)):
                E(f'v_cndmask_b32 {Sp[t][2*h]}, {Sp[t][2*h]}, {Sp[t][2*h+1]}, {self.mB0}\nv_cndmask_b32 {So[t][2*h]}, {So[t][2*h]}, {So[t][2*h+1]}, {self.mB0}')
                E(f'v_cndmask_b32 {z[t][h]}, {Sp[t][2*h]}, {So[t][2*h]}, {mk}')
        E(f'v_pk_fma_f32 {z[1]}, {z[1]}, {zs[1]}, {bias}')
        for t in range(2, 5): E(f'v_pk_mul_f32 {z[t]}, {z[t]}, {zs[t]}')
        red = zs
        fl = [x for t in range(5) for x in cv(self.aV, Vp, t)]
        def fill(n):
            for _ in range(n):
                if fl: E(fl.pop(0))
        def allreduce(op, mid=None):
            r = [None] + [red[t][0] for t in range(1, 5)]
            for t in (1, 3, 2, 4): E(f'{op} {r[t]}, {z[t][0]}, {z[t][1]}')
            E(f'v_permlane32_swap_b32 {r[1]}, {r[3]}'); fill(1)
            E(f'v_permlane32_swap_b32 {r[2]}, {r[4]}')
            E(f'{op} {r[1]}, {r[1]}, {r[3]}\n{op} {r[2]}, {r[2]}, {r[4]}'); fill(2)
            E(f'v_permlane16_swap_b32 {r[1]}, {r[2]}')
            E(f'{op} {r[1]}, {r[1]}, {r[2]}')
            if mid: E(f'{mid} {r[1]}, {r[1]}'); fill(1)
            E(f'v_mov_b32 {r[2]}, {r[1]}'); fill(2)
            E(f'v_permlane16_swap_b32 {r[1]}, {r[2]}')
            E(f'v_mov_b32 {r[3]}, {r[1]}\nv_mov_b32 {r[4]}, {r[2]}'); fill(1)
            E(f'v_permlane32_swap_b32 {r[1]}, {r[3]}\nv_permlane32_swap_b32 {r[2]}, {r[4]}')
        allreduce('v_max_f32')
        for t in range(1, 5): E(f'v_pk_add_f32 {z[t]}, {z[t]}, {red[t]} op_sel_hi:[1,0] neg_lo:[0,1] neg_hi:[0,1]')
        for t in range(1, 5): E(f'v_exp_f32 {z[t][0]}, {z[t][0]}\nv_exp_f32 {z[t][1]}, {z[t][1]}')
        fl += [f'v_pk_mul_f32 {rk[t]}, {z[t]}, {rk[t]}' for t in range(1, 5)]
        allreduce('v_add_f32', 'v_rcp_f32')
        fill(20)
        for t in range(1, 5): E(f'v_pk_mul_f32 {z[t]}, {rk[t]}, {red[t]} op_sel_hi:[1,0]')
        for t in range(1, 5): E(f'v_cvt_pk_bf16_f32 {z[t][0]}, {z[t][0]}, {z[t][1]}')
        P = Sp; O = So
        for t in range(1, 5):
            for q in range(4):
                E(f'v_perm_b32 {P[t][q]}, {z[t][0]}, {z[t][0]}, {sel[q]}')
                if q == 1 and t > 1: E(f'v_mfma_f32_16x16x32_bf16 {O[t-1]}, {Vp.sub(2*t-4, 4)}, {P[t-1]}, 0')
        of = [self.aV[0], self.aV[1]]
        oc = lambda t: [f'v_cvt_pk_bf16_f32 {of[(t-1) >> 1][2*((t-1) & 1) + h]}, {O[t][2*h]}, {O[t][2*h+1]}' for h in range(2)]
        for x in oc(1): E(x)
        E(f'v_mfma_f32_16x16x32_bf16 {O[4]}, {Vp.sub(6, 4)}, {P[4]}, 0')
        groups = pf_flat('e0') + left + self.dmas(nw2_left) + pf_flat('e1')
        self.free_blocks += late_free
        groups += self.dmas(o['b_epi'])
        code = sprinkle(E, groups, o['sp1'], start=8)
        sp_ = safe_points(code)
        k2 = max(q for q in sp_ if q <= o['cen_ck']); code[k2:k2] = cck.L
        k1 = max(q for q in sp_ if q <= o['cen_rd']); code[k1:k1] = crd.L
        self.info['epi'] = len(code)
        A.ext(code)
        for r in (cv_, ca_, ct_, sCx, sRm, sRo): r.free()
        A(f's_add_u32 {s["T0"]}, {self.sOst}, 32768\n;dual_begin')
        for x in oc(2) + oc(3): A(x)
        A(f'v_permlane16_swap_b32 {of[0][0]}, {of[0][2]}\nv_permlane16_swap_b32 {of[0][1]}, {of[0][3]}')
        for x in oc(4): A(x)
        self.store2(A, 'dwordx4', of[0], self.vL16, self.sOst, 0, 'ost', self.OUT)
        A(f'v_permlane16_swap_b32 {of[1][0]}, {of[1][2]}\nv_permlane16_swap_b32 {of[1][1]}, {of[1][3]}')
        self.store2(A, 'dwordx4', of[1], self.vL16, s["T0"], 0, 'ost', self.OUT)
        A(';dual_end')
        self.stamp('o stored')
        for gq in pf_flat('e2'): A.ext(gq)
        self.pf_p2 = pf_flat('p2'); self.pf_regs = (vT, vTo, sP, v1k)
        self.junk1 = junk
        self.OSRD = OSRD
        for r in tb + rk[1:] + zs[1:] + z[1:] + [csq, csk, csv, Kp, Qp, Vp, bias, sel, aTB, ka, kb] + self.aQ + self.aK + self.aV[2:]: r.free()
        for r in (mOwnA, mOwnB, self.sCen, self.sCoff, self.sCv, self.sW3K, self.sKC, self.sSO, self.sH128): r.free()
        self.of = of

    def phase2(self):
        A, V, S, AG, s, vL, o = self.A, self.V, self.S, self.AG, self.s, self.vL, self.o
        t1, t2, t3, j, g = self.t1, self.t2, self.t3, self.vJ, self.vG
        self.vOne = V.alloc(); self.vPv = V.alloc()
        assert ('W2', 15) in self.loc
        aw = [V.alloc() for _ in range(4)]
        mark = len(A.L)
        A(f'v_lshl_add_u32 {t1}, {g}, 10, {self.vTRb}\nv_add_u32 {t1}, {23*BLK}, {t1}')
        for ct in range(4): A(f'v_xor_b32 {t2}, {ct*32}, {self.vTRf}\nv_add_u32 {aw[ct]}, {t1}, {t2}')
        self.sR2 = S.alloc(); pa = V.alloc(); oa = V.alloc(); hv = V.alloc(); sSt = S.alloc(); vj16 = V.alloc(); aRw = V.alloc()
        A(f's_lshl_b32 {s["T0"]}, {s["SB"]}, 5\nv_and_b32 {t1}, 7, {vL}\nv_lshl_add_u32 {pa}, {t1}, 2, {s["T0"]}\nv_mov_b32 {self.vOne}, 1')
        A(f's_lshr_b32 {s["T0"]}, {s["W"]}, 1\ns_lshl_b32 {s["T0"]}, {s["T0"]}, 10\ns_and_b32 {s["T1"]}, {s["W"]}, 1\ns_lshl_b32 {s["T1"]}, {s["T1"]}, 8')
        A(f'v_lshlrev_b32 {vj16}, 4, {j}\nv_and_b32 {t1}, 1, {g}\nv_lshl_add_u32 {t1}, {t1}, 9, {vj16}\nv_add_u32 {t1}, {s["T1"]}, {t1}\nv_lshrrev_b32 {t2}, 1, {g}\nv_lshl_add_u32 {hv}, {t2}, 11, {t1}\nv_lshl_add_u32 {oa}, {t2}, 10, {t1}')
        A(f's_lshl_b32 {self.sR2}, {s["BLK"]}, 16\ns_lshl_b32 {s["T2"]}, {s["T0"]}, 5\ns_add_u32 {self.sR2}, {self.sR2}, {s["T2"]}')
        acc = [V.alloc(4, 2) for _ in range(4)]
        for ct in range(4):
            for h in range(2):
                A(f'v_lshlrev_b32 {acc[ct][2*h]}, 16, {self.resx[2*ct+h]}\nv_and_b32 {acc[ct][2*h+1]}, 0xffff0000, {self.resx[2*ct+h]}')
        accM = self.stS; aR = V.alloc()
        if o['ymean']:
            A(f's_add_u32 {sSt}, {s["T0"]}, {s["T1"]}\ns_lshl_b32 {s["T0"]}, {s["SB"]}, 11\ns_add_u32 {sSt}, {sSt}, {s["T0"]}\ns_and_b32 {s["T0"]}, {s["C"]}, 4\ns_lshl_b32 {s["T0"]}, {s["T0"]}, 7\ns_add_u32 {sSt}, {sSt}, {s["T0"]}')
            A(f's_and_b32 {s["T0"]}, {s["C"]}, 3\ns_lshl2_add_u32 {sSt}, {s["T0"]}, {sSt}\ns_add_u32 {sSt}, {sSt}, {s["GB"]}\ns_add_u32 {sSt}, {sSt}, {WS_ST}')
            A(f'v_and_b32 {t1}, 1, {j}\nv_mul_u32_u24 {t1}, 1088, {t1}\nv_lshl_add_u32 {t1}, {g}, 4, {t1}\nv_add_u32 {aR}, {SCR_R}, {t1}\nv_mov_b32 {accM[1]}, 0')
        else:
            A(f's_lshl_b32 {s["T0"]}, {s["T0"]}, 1\ns_add_u32 {sSt}, {s["T0"]}, {s["T1"]}\ns_lshl_b32 {s["T0"]}, {s["SB"]}, 12\ns_add_u32 {sSt}, {sSt}, {s["T0"]}')
            A(f's_and_b32 {s["T0"]}, {s["C"]}, 2\ns_lshl_b32 {s["T0"]}, {s["T0"]}, 9\ns_add_u32 {sSt}, {sSt}, {s["T0"]}\ns_and_b32 {s["T0"]}, {s["C"]}, 4\ns_lshl_b32 {s["T0"]}, {s["T0"]}, 7\ns_add_u32 {sSt}, {sSt}, {s["T0"]}')
            A(f's_and_b32 {s["T0"]}, {s["C"]}, 1\ns_lshl_b32 {s["T0"]}, {s["T0"]}, 3\ns_add_u32 {sSt}, {sSt}, {s["T0"]}\ns_add_u32 {sSt}, {sSt}, {s["GB"]}\ns_add_u32 {sSt}, {sSt}, {WS_ST}')
        A.L[mark:] = sprinkle(A.L[mark:], self.dmas(o['b_pre1']), o.get('sp3', 12))
        A('@waitvm ost')
        for r in self.of: r.free()
        self.stamp('o drained')
        A('@waitvm W2_15\ns_barrier')
        A.ext(self.signal(0))
        Wf = [[AG.alloc(4, 4) for _ in range(4)] for _ in range(16)]
        def rd(i):
            off = (self.loc[('W2', i)] - 23)*BLK
            return [Ins(f'ds_read_b64_tr_b16 {Wf[i][ct].sub(2*a, 2)}, {aw[ct]} offset:{off + a*512}') for ct in range(4) for a in range(2)] + \
                   ([Ins(f'ds_read_b128 {Rf[i]}, {aR} offset:{i*64}')] if o['ymean'] else [])
        Rf = [V.alloc(4, 2) for _ in range(16 if o['ymean'] else 0)]
        npre = o['w2pre']
        n0 = min(npre, o['w2pre0'])
        A.ext(sprinkle([x for i in range(n0) for x in rd(i)], self.dmas(o['b_post1']), 8))
        A.ext(self.visit('v1'))
        self.sync_wait(A, pa, 0, self.mW16 if o['one_poll'] else '0xff', o['b_aft1'], [x for i in range(n0, npre) for x in rd(i)])
        if o['one_poll']: A('s_barrier')
        self.stamp('sync1 done')
        Of = [V.alloc(4, 2) for _ in range(16)]
        ld = [([Ins(f's_add_u32 {self.sR2}, {self.sR2}, 4096')] if i and i % 2 == 0 else []) + [Ins(f'buffer_load_dwordx4 {Of[i]}, {oa}, {self.OSRD}, {self.sR2} offen offset:{(i & 1)*2048} sc1')] for i in range(16)]
        rest = [x for i in range(npre, 16) for x in rd(i)]
        LO = o['LO']
        for i in range(LO):
            A.ext(ld[i]); A.ext(rest[:5]); rest = rest[5:]
        misc = [x for gq in ld[LO:] for x in gq] + self.pf_p2 + [x for gq in self.dmas(o['b_o']) for x in gq]
        mf = []
        for i in range(16):
            if o['ymean']: mf.append(Ins(f'v_mfma_f32_16x16x32_bf16 {accM}, {Rf[i]}, {Of[i]}, {accM}'))
            mf += [Ins(f'v_mfma_f32_16x16x32_bf16 {acc[ct]}, {Wf[i][ct]}, {Of[i]}, {acc[ct]}') for ct in range(4)]
        mark2 = len(A.L)
        self.gap_since_vm = 99
        self.weave16(mf, rest, misc)
        for x in misc: A.ext(x if isinstance(x, list) else [x])
        for r in self.pf_regs: r.free()
        used = set()
        for x in A.L[mark2:]:
            if x.kind == 'mfma': used |= x.srcAB
            elif x.kind in ('ds', 'vmem'): assert not (x.defs & used), x.text
        self.stamp('p2 gemm done')
        w2b = sorted(self.loc[('W2', i)] for i in range(16))
        self.resb = w2b[0]; assert w2b[1] == w2b[0] + 1
        A(f's_add_u32 {s["T0"]}, {self.sW2K}, {self.resb*BLK}\nv_lshlrev_b32 {t1}, 7, {j}\nv_lshl_add_u32 {t1}, {g}, 3, {t1}')
        A(f'v_bfe_u32 {t2}, {j}, 0, 2\nv_lshl_add_u32 {t1}, {t2}, 5, {t1}\nv_add_u32 {aRw}, {s["T0"]}, {t1}\ns_barrier')
        self.free_blocks += w2b[2:]
        hf = [Of[0], Of[1]]; G4, S4 = Of[2], Of[3]
        A(';dual_begin')
        hc = acc
        if o['ymean']:
            hc = Of[6:10]
            A(f'v_add_f32 {accM[0]}, {accM[0]}, {accM[1]}')
            for ct in range(4):
                for h in range(2): A(f'v_pk_add_f32 {hc[ct].sub(2*h, 2)}, {acc[ct].sub(2*h, 2)}, {accM.sub(0, 2)} op_sel_hi:[1,0]')
        for par in range(2):
            for ct in range(4): A(f'v_cvt_pk_bf16_f32 {hf[par][ct]}, {hc[ct][par]}, {hc[ct][2+par]}')
        rp = Reg('v', Of[4].b, 8); assert Of[5].b == Of[4].b + 4
        rc = [f'v_cvt_pk_bf16_f32 {rp[2*ct+h]}, {acc[ct][2*h]}, {acc[ct][2*h+1]}' for ct in range(4) for h in range(2)]
        A(f'v_mfma_f32_16x16x32_bf16 {G4}, {hf[0]}, {hf[0]}, 0')
        self.store2(A, 'dwordx4', hf[0], hv, self.sHst, 0, 'hst')
        A(f'v_mfma_f32_16x16x32_bf16 {G4}, {hf[1]}, {hf[1]}, {G4}')
        d = self.diag_code(G4, S4[1])
        if o['ymean']:
            self.store2(A, 'dwordx4', hf[1], hv, self.sHst, 1024, 'hst')
            A('\n'.join(rc[:7])); A.ext(d); rc = rc[7:]
            A(f's_mov_b64 exec, {self.mDiag}')
            self.store2(A, 'dword', S4[1], vj16, sSt, 0, 'hst', nt='sst' in o['nt_tags'])
        else:
            A(f'v_mfma_f32_16x16x32_bf16 {S4}, {self.ones}, {hf[0]}, 0')
            A(f'v_mfma_f32_16x16x32_bf16 {S4}, {self.ones}, {hf[1]}, {S4}')
            self.store2(A, 'dwordx4', hf[1], hv, self.sHst, 1024, 'hst')
            A('\n'.join(rc[:3])); A.ext(d[:2]); A(rc[3]); A.ext(d[2:]); rc = rc[4:]
            A(f's_mov_b64 exec, {self.mDiag}')
            self.store2(A, 'dwordx2', S4.sub(0, 2), vj16, sSt, 0, 'hst')
        A('s_mov_b64 exec, -1\n;dual_end')
        self.stamp('h stored')
        A('\n'.join(rc))
        A(f'ds_write_b64 {aRw}, {rp.sub(0, 2)}')
        for ct in range(1, 4): A(f'v_xor_b32 {t1}, {ct*32}, {aRw}\nds_write_b64 {t1}, {rp.sub(2*ct, 2)}')
        for r in aw + Rf + [pa, oa, hv, vj16, aRw, aR, accM] + acc + Of[6:] + [x for y in Wf for x in y] + [self.vW2, self.vW2b, self.mB0, self.mB1, self.mDiag, self.sR2, sSt, self.sOst, self.sHst, self.ones]: r.free()
        self.late_free = Of[:6] + [self.junk1]

    def phase34(self):
        A, V, S, AG, s, vL, o = self.A, self.V, self.S, self.AG, self.s, self.vL, self.o
        t1, t2, t3, j, g = self.t1, self.t2, self.t3, self.vJ, self.vG
        P = Asm()
        Q = Asm()
        class Win:
            def __init__(w, base): w.r = {0: base}
            def need(w, k):
                if k in w.r: return []
                w.r[k] = V.alloc()
                return [Ins(f'v_add_u32 {w.r[k]}, {k << 16}, {w.r[0]}')]
        aF, aH, aD = [], [], []
        P(f'v_and_b32 {t1}, 1, {g}\nv_lshlrev_b32 {t1}, 11, {t1}\nv_lshrrev_b32 {t2}, 1, {g}\nv_lshl_add_u32 {t3}, {t2}, 10, {t1}')
        b0 = V.alloc(); P(f'v_add3_u32 {b0}, {t3}, {self.vTRb}, {self.vTRf}'); aF.append(Win(b0))
        for uu in range(1, 4):
            b = V.alloc(); P(f'v_xor_b32 {b}, {uu*32}, {b0}'); aF.append(Win(b))
        b0 = V.alloc(); b1 = V.alloc()
        P(f'v_lshl_add_u32 {t3}, {t2}, 9, {t1}\nv_bfe_u32 {t1}, {vL}, 2, 2\nv_lshl_add_u32 {t3}, {t1}, 6, {t3}\nv_and_b32 {t1}, 3, {vL}\nv_lshl_add_u32 {t3}, {t1}, 3, {t3}\nv_and_b32 {t1}, 1, {g}\nv_lshl_add_u32 {b0}, {t1}, 5, {t3}\nv_xor_b32 {b1}, 32, {b0}')
        aH = [Win(b0), Win(b1)]
        aCF = aCH = delta = None
        if not o['ymean']:
            P(f's_and_b32 {s["T1"]}, {s["W"]}, 2\nv_or_b32 {t1}, {s["T1"]}, {t1}\nv_lshlrev_b32 {t1}, 5, {t1}')
            b = V.alloc(); P(f'v_xor_b32 {b}, {t1}, {self.vL16}\nv_add_u32 {b}, {s["W1K"]}, {b}'); aCF = Win(b)
            b = V.alloc(); P(f's_lshl_b32 {s["T1"]}, {s["T1"]}, 4\nv_xor_b32 {b}, {s["T1"]}, {self.vL16}\nv_add_u32 {b}, {s["W1K"]}, {b}'); aCH = Win(b)
            delta = V.alloc(4, 2)
            P(f'v_and_b32 {t1}, 1, {j}\nv_lshlrev_b32 {t1}, 4, {t1}\nv_mov_b32 {t2}, 0x3f80\nv_lshlrev_b32 {t1}, {t1}, {t2}')
            for d in range(4):
                mk = 0x00030003 << (2*d)
                P(f's_mov_b32 vcc_lo, {hex(mk)}\ns_mov_b32 vcc_hi, {hex(mk)}\nv_cndmask_b32 {delta[d]}, 0, {t1}, vcc')
        pa2 = V.alloc(); pa3 = V.alloc(); aRes = V.alloc(); vHl = {'F': V.alloc(), 'H': V.alloc()}
        sT4 = S.alloc(); sGa = S.alloc(); sGb = S.alloc(); sGl = S.alloc(); sHl = S.alloc(); sKH = S.alloc(); sTH = S.alloc(); sSl = S.alloc(); sGo = S.alloc(); sTs = S.alloc(); sLo = S.alloc(); sLw = S.alloc()
        P(f's_lshr_b32 {sKH}, {s["W"]}, 1\ns_and_b32 {sTH}, {s["W"]}, 1')
        P(f'v_lshlrev_b32 {pa3}, 2, {j}\nv_lshl_add_u32 {pa2}, {sKH}, 5, {pa3}')
        P(f's_lshl_b32 {s["T1"]}, {s["W"]}, 15\ns_add_u32 {sHl}, {s["T1"]}, {s["GB"]}\nv_lshl_add_u32 {vHl["F"]}, {0 if o["mirror"] else s["PF"]}, 10, {self.vL16}\nv_xor_b32 {vHl["H"]}, 1024, {vHl["F"]}')
        P(f's_lshl_b32 {s["T2"]}, {sTH}, 12\ns_add_u32 {s["T2"]}, {s["T2"]}, {self.resb*BLK}\nv_lshrrev_b32 {t2}, 5, {vL}\nv_lshl_add_u32 {t2}, {sKH}, 1, {t2}\nv_and_b32 {t1}, 3, {vL}\nv_xor_b32 {t2}, {t2}, {t1}')
        P(f'v_and_b32 {t1}, 31, {vL}\nv_lshl_add_u32 {t1}, {t1}, 7, {s["T2"]}\nv_lshl_add_u32 {aRes}, {t2}, 5, {t1}')
        Q(f's_add_u32 {sSl}, {s["W1K"] if o["ymean"] else self.sW2K}, {s["GB"]}\ns_add_u32 {sSl}, {sSl}, {WS_ST}')
        Q(f's_lshl_b32 {s["T3"]}, {s["W"]}, 15\ns_lshl_b32 {s["T2"]}, {s["M"]}, 10\ns_add_u32 {s["T2"]}, {s["T2"]}, {s["T3"]}\ns_add_u32 {sGa}, {s["T2"]}, {s["GB"]}')
        Q(f's_lshl_b32 {sLo}, {s["G"]}, 17\ns_add_u32 {sGo}, {sLo}, {s["T2"]}')
        Q(f's_mul_i32 {s["T2"]}, {s["PF"]}, {16*KB - 512}\ns_add_u32 {sGb}, {s["T3"]}, {s["T2"]}\ns_lshl_b32 {s["T2"]}, {s["M"]}, 9\ns_add_u32 {sGb}, {sGb}, {s["T2"]}\ns_add_u32 {sGb}, {sGb}, {s["GB"]}')
        Q(f's_lshl1_add_u32 {sT4}, {s["SB"]}, {sTH}\ns_lshl1_add_u32 {s["T2"]}, {sT4}, {sKH}\ns_lshl_b32 {s["T2"]}, {s["T2"]}, 14\ns_add_u32 {sLo}, {sLo}, {s["T2"]}\ns_add_u32 {sLw}, {s["GB"]}, {s["T2"]}')
        Q(f'v_bfe_u32 {t1}, {vL}, 2, 2\nv_lshrrev_b32 {t2}, 1, {g}\nv_lshl_add_u32 {t1}, {t2}, 2, {t1}\nv_lshlrev_b32 {t3}, 7, {t1}\nv_bfe_u32 {t1}, {vL}, 3, 1\nv_lshl_add_u32 {t3}, {t1}, 6, {t3}')
        Q(f'v_and_b32 {t1}, 1, {vL}\nv_lshl_add_u32 {t3}, {t1}, 5, {t3}\nv_and_b32 {t1}, 1, {g}\nv_lshl_add_u32 {t3}, {t1}, 4, {t3}\nv_bfe_u32 {t1}, {vL}, 1, 1\nv_lshl_add_u32 {t3}, {t1}, 3, {t3}')
        b0 = V.alloc(); b1 = V.alloc()
        Q(f's_mul_i32 {s["T2"]}, {sKH}, {2048 + 64}\nv_xor_b32 {b0}, {s["T2"]}, {t3}\nv_xor_b32 {b1}, 64, {b0}')
        aD = [Win(b0), Win(b1)]
        if not o['ymean']:
            aCW = V.alloc(); aCR = V.alloc()
            Q(f's_lshl_b32 {s["T2"]}, {sTH}, 10\ns_lshl_b32 {s["T3"]}, {sKH}, 9\ns_add_u32 {s["T2"]}, {s["T2"]}, {s["T3"]}\ns_add_u32 {s["T2"]}, {s["T2"]}, {SCR_CS}')
            Q(f'v_lshl_add_u32 {t1}, {g}, 4, {s["T2"]}\nv_lshl_add_u32 {aCW}, {j}, 5, {t1}')
            Q(f'v_and_b32 {t1}, 1, {g}\nv_lshlrev_b32 {t1}, 9, {t1}\nv_lshl_add_u32 {t1}, {j}, 2, {t1}\nv_lshl_add_u32 {t1}, {t2}, 11, {t1}\nv_add_u32 {aCR}, {SCR_CS}, {t1}')
            cA = V.alloc(4, 2); cB = V.alloc(4, 2); cT = V.alloc(2)
            for r in (cA, cB):
                for k in range(1, 4): Q(f'v_mov_b32 {r[k]}, 0')
        self.info['setupP'] = len(P.L); self.info['setupQ'] = len(Q.L)
        HB = {('F', i): AG.at(8*i, 4) for i in range(16)}; HB.update({('H', i): AG.at(8*i + 4, 4) for i in range(16)})
        ops = []
        def op3(u, ty, i):
            if ty == 'F':
                if u < 4: key, ad, st, ex = ('F1', i), aF[u], 512, 0
                else: key, ad, st, ex = ('S3', i >> 1), aH[u - 4], 256, (i & 1)*1024
            else:
                if u < 2: key, ad, st, ex = ('H1', i >> 1), aH[u], 256, (i & 1)*1024
                else: key, ad, st, ex = ('S2', i), aF[u - 2], 512, 0
            ops.append(dict(k='m', u=u, key=key, ad=ad, st=st, ex=ex, B=HB[(ty, i)], hk=(ty, i)))
        if o['order'] == 'pair':
            for i in range(16):
                for ty in 'FH':
                    for u in (0, 1): op3(u, ty, i)
            if o.get('o23') != 'seq':
                for i in range(16):
                    for u in (2, 3): op3(u, 'F', i)
        else:
            for i in range(16):
                for u in range(4): op3(u, 'F', i)
                for u in (0, 1): op3(u, 'H', i)
        if o.get('o45') == 'all':
            for i in range(16):
                for u in (2, 3, 4, 5): op3(u, 'H', i)
            for u in (4, 5):
                for i in range(16): op3(u, 'F', i)
        elif o.get('o23') == 'seq':
            for u in (2, 3):
                for ty in 'FH':
                    for i in range(16): op3(u, ty, i)
        elif o.get('o23') == 'mix':
            for i in range(16):
                for u in (2, 3): op3(u, 'H', i)
        else:
            for u in (2, 3):
                for i in range(16): op3(u, 'H', i)
        if o.get('o45') == 'all': pass
        elif o.get('o45') == 'mix2':
            for ty in 'HF':
                for i in range(16):
                    for u in (4, 5): op3(u, ty, i)
        elif o.get('o45', 'mix') == 'mix':
            for i in range(16):
                for u in (4, 5): op3(u, 'H', i)
            for u in (4, 5):
                for i in range(16): op3(u, 'F', i)
        else:
            for u in (4, 5):
                for ty in 'HF':
                    for i in range(16): op3(u, ty, i)
        NG, NR, LA = o['NG'], o['NR'], o['LA']
        GB = [AG.alloc(4, 4) for _ in range(NG)]
        TL = o['TL']
        o4 = lambda i, k: ops.append(dict(k='m', u=6 + k, key=('W4', i), ad=aD[k], st=1024, ex=0, B=None, hk=('g', i)))
        for i in range(43 - TL):
            for k in range(2): o4(i, k)
        for k in (1, 0):
            for i in range(43 - TL, 43): o4(i, k)
        RB = [AG.alloc(4, 4) for _ in range(NR)]
        csacc = {} if o['ymean'] else {c: V.alloc(4, 2) for c in ('F1', 'H1', 'S2', 'S3')}
        cnt = {}
        def cs_op(key):
            c = key[0]; cnt[c] = cnt.get(c, 0) + 1
            return dict(k='c', key=key, ad=aCF if c in ('F1', 'S2') else aCH, first=cnt[c] == 1, last=cnt[c] == (16 if c in ('F1', 'S2') else 8))
        pre_keys = [k for k in self.issued if k[0] != 'W2'][:o['cs_pre']]
        pre_ops = [cs_op(k) for k in pre_keys]
        seen = set(pre_keys); ops2 = []; at = {}; fc = {}; nth = {}
        if o['ymean']: seen = {p['key'] for p in ops}; pre_ops = []
        for n, p in enumerate(ops):
            if p['key'][0] != 'W4' and p['key'] not in seen:
                seen.add(p['key']); c = p['key'][0]; fc.setdefault(c, n); nth[c] = nth.get(c, -1) + 1
                lead, spc = o['cs_lead'].get(c, (0, 99))
                at.setdefault(max(0, min(n, fc[c] - lead + spc*nth[c])), []).append(p['key'])
        for n, p in enumerate(ops):
            ops2 += [cs_op(k) for k in at.get(n, [])] + [p]
        ops = ops2
        for n, p in enumerate(ops): p['R'] = RB[n % NR]; p['n'] = n
        for n, p in enumerate(pre_ops): p['R'] = Reg('a', 4*n, 4); p['n'] = -1
        N = len(ops)
        last_use = {p['key']: p['n'] for p in ops}
        last_op = {p['u']: p['n'] for p in ops if p['k'] == 'm'}
        first4 = min(p['n'] for p in ops if p.get('u', 0) >= 6)
        def reads(p):
            b = self.loc[p['key']]; w, off = b >> 4, (b & 15)*BLK
            pre = p['ad'].need(w); ad = p['ad'].r[w]
            if p['k'] == 'c': return pre + [Ins(f'ds_read_b128 {p["R"]}, {ad} offset:{off}', f'r{p["n"]}')]
            return pre + [Ins(f'ds_read_b64_tr_b16 {p["R"].sub(2*a, 2)}, {ad} offset:{off + p["ex"] + a*p["st"]}', f'r{p["n"]}') for a in range(2)]
        started = set()
        def mfma(p):
            if p['k'] == 'c':
                c = csacc[p['key'][0]]
                return Ins(f'v_mfma_f32_16x16x32_bf16 {c}, {delta}, {p["R"]}, {0 if p["first"] else c}')
            a = acc[p['u']] if p['u'] < 6 else (accK, accS)[p['u'] - 6]
            z = p['u'] not in started and p['u'] != 6
            started.add(p['u'])
            return Ins(f'v_mfma_f32_32x32x16_bf16 {a}, {p["R"]}, {p["B"] or slot[p["hk"]]}, {0 if z else a}')
        visible = set(self.issued)
        A.ext(sprinkle(P, self.dmas(o['b_pre2']), o.get('sp3', 12)))
        for p in pre_ops: A.ext(p['ad'].need(self.loc[p['key']] >> 4))
        A('@waitvm hst')
        self.stamp('h drained')
        for r in self.late_free + [self.vTRb, self.vTRf]: r.free()
        A('@waitlg0\ns_barrier')
        A.ext(self.signal(1))
        res = self.resx
        E = Asm()
        E(f'ds_read_b128 {res.sub(0, 4)}, {aRes}\nds_read_b128 {res.sub(4, 4)}, {aRes} offset:16')
        for q in range(len(pre_ops) + 4):
            if q < len(pre_ops): E.ext(reads(pre_ops[q]))
            if q >= 4: E.L.append(mfma(pre_ops[q - 4]))
        for q in range(LA):
            assert ops[q]['key'] in visible
            E.ext(reads(ops[q]))
        if o['q_early']: E.ext(Q); Q = Asm()
        A.ext(sprinkle(E, self.dmas(o['b_post2']), o.get('sp2', 14)))
        if o.get('l2fill2'):
            for srd in o['l2fill2']:
                if srd == 'W3': A(f's_lshr_b32 {s["T0"]}, s2, 3\ns_and_b32 {s["T1"]}, {s["W"]}, 1\ns_lshl1_add_u32 {s["T0"]}, {s["T0"]}, {s["T1"]}\ns_mul_i32 {s["T0"]}, {s["T0"]}, {172*128}\ns_mov_b32 {s["T2"]}, s38\ns_mov_b32 s38, {512*PITCH3}')
                else: A(f's_lshr_b32 {s["T0"]}, s2, 3\ns_lshl2_add_u32 {s["T0"]}, {s["T0"]}, {s["W"]}\ns_mul_i32 {s["T0"]}, {s["T0"]}, {86*128}')
                for q in range(3 if srd == 'W3' else 2): A(f'buffer_load_dword {self.vPv}, {self.v128}, {getattr(self, srd)}, {s["T0"]} offen sc1\ns_add_u32 {s["T0"]}, {s["T0"]}, 8192')
                A('@waitvm0')
                if srd == 'W3': A(f's_mov_b32 s38, {s["T2"]}')
            A(f's_mov_b32 {s["T0"]}, 60\nL_dly2:\ns_sub_u32 {s["T0"]}, {s["T0"]}, 1\ns_cmp_lg_u32 {s["T0"]}, 0\ns_cbranch_scc1 L_dly2')
        A.ext(self.visit('v2'))
        n_before = len(self.issued)
        if o['one_poll']: self.sync_wait(A, pa3, 1, self.mW16, o['b_aft2']); A('s_barrier')
        else: self.sync_wait(A, pa2, 1, '0xff', o['b_aft2'], Q.L if o['b_aft2'] else ())
        if o['b_aft2'] and not o['one_poll']: Q = Asm()
        inflight = self.issued[n_before:]
        self.stamp('sync2 done')
        self.mark34 = len(A.L)
        acc = [V.alloc(16, 2) for _ in range(6)]
        accK, accS = acc[0], acc[1]
        LATH, LATD, LATS, VS, WE, VC = o['LATH'], o['LATD'], o['LATS'], o['vslack'], o['WE'], o['VC']
        horder = []; hfirst = {}; hlast = {}
        for p in ops:
            if 'hk' in p:
                if p['hk'] not in hfirst: hfirst[p['hk']] = p['n']; horder.append(p['hk'])
                hlast[p['hk']] = p['n']
        first_use = {}
        for p in ops: first_use.setdefault(p['key'], p['n'])
        sp = V.alloc(8, 2)
        cc = V.alloc(2); c1, c3 = cc[0], cc[1]; iv2 = V.alloc(2); iv = iv2[0]; tt = V.alloc(8, 2); go = [V.alloc(4, 2), V.alloc(4, 2)]
        cs_last = {p['key'][0]: p['n'] for p in pre_ops + ops if p['k'] == 'c' and p['last']}
        I = lambda text, tag=None: [Ins(x, tag) for x in text.split('\n')]
        tagof = lambda k: f'{k[0]}_{k[1]}'
        stage_of = lambda i: 1 if i < 15 else 2 if i < 29 else 3 if i < 36 else 4
        rq = []; pairw = {}
        for q, hk in enumerate(horder):
            ty, i = hk
            if ty == 'g':
                sg = stage_of(i); k = i - (0, 15, 29, 36)[sg - 1]
                code = I(f's_add_u32 {sGl}, {sLo if sg == 1 else sLw}, {(0, WS_G, WS_H, WS_H + 8192)[sg - 1] + (k >> 2)*4096}') if k % 4 == 0 else []
                rq.append(dict(id=hk, dl=hfirst[hk], cost=VC, stage=min(sg, 3) if o['merge34'] else sg, lat=LATD if sg == 2 and not o['retouch'] else LATH, code=code, srd=self.OUT if sg == 1 else self.WS, off=(k & 3)*1024))
                if o['PW'] and hk not in pairw and i < 42 and stage_of(i) == stage_of(i + 1): pairw[hk] = ('g', i + 1); pairw[('g', i + 1)] = None
            else:
                code = I(f's_add_u32 {sHl}, {sHl}, 4096') if q and q % 4 == 0 else []
                assert i >> 1 == q >> 2
                code += I(f'buffer_load_dwordx4 {HB[hk]}, {vHl[ty]}, {self.WS}, {sHl} offen offset:{(i & 1)*2048} sc1', tagof(hk))
                rq.append(dict(id=hk, dl=hfirst[hk], cost=VC, code=code))
                if o['PW'] and q >= 4 and q % 2 == 0: pairw[hk] = horder[q + 1]
        for k in range(1 if o['ymean'] else 2):
            rq.append(dict(id=('st', k), dl=last_op[0] - o.get('st_lead', 10), cost=VC, ev='Q', code=I(f'buffer_load_dwordx4 {sp.sub(4*k, 4)}, {self.vL16}, {self.WS}, {sSl} offen offset:{k*1024} sc1')))
        rq.sort(key=lambda r: r['dl'])
        K1 = -2*math.sqrt(2/math.pi)*LOG2E
        chA = []
        def cs_items(c):
            a = csacc[c]; full = c in ('F1', 'S2')
            off = {'F1': 0, 'H1': 2048, 'S2': 2048 + 128, 'S3': 256}[c]
            for ror in ((8,) if full else (8, 4)):
                for r in range(4): chA.append(('v', ('op', cs_last[c] + 2), I(f'v_add_f32_dpp {a[r]}, {a[r]}, {a[r]} row_ror:{ror} row_mask:0xf bank_mask:0xf'), None))
            L = Asm(); L(f's_mov_b64 exec, {"0x00ff00ff" if full else "0x000f000f"}'); L(f'ds_write_b128 {aCW}, {a} offset:{off}', 'wr' + c); L('s_mov_b64 exec, -1')
            chA.append(('d', None, L.L, 'wr' + c))
        def corr_items(u, cls):
            chA.append(('d', ('ev', ['bar_wr' + c for c in cls], 0), I(f'ds_read_b32 {cT[0]}, {aCR} offset:{u*64}\nds_read_b32 {cT[1]}, {aCR} offset:{u*64 + 1024}'), f'crd{u}'))
            for k, x in enumerate((f'v_add_f32 {cT[0]}, {cT[0]}, {cT[1]}', f'v_cvt_pk_bf16_f32 {cT[1]}, {cT[0]}, {cT[0]}', f'v_and_b32 {cT[1]}, 0xffff0000, {cT[1]}',
                                   f'v_sub_f32 {cT[0]}, {cT[0]}, {cT[1]}', f'v_cvt_pk_bf16_f32 {cA[0]}, {cT[1]}, {cT[0]}')):
                chA.append(('v', ('ev', [f'crd{u}'], 100), I(x), None))
            chA.append(('m', ('both', first_op[u], 'stats'), I(f'v_mfma_f32_32x32x16_bf16 {acc[u]}, {cA}, {cB}, {acc[u]}'), f'corr{u}'))
        first_op = {}
        for p in ops:
            if p['k'] == 'm': first_op.setdefault(p['u'], p['n'])
        ev = {}; arr = {}; evop = {}
        for x in Q.L: chA.append(('v', None, [x], None))
        if Q.L: chA[-1] = chA[-1][:3] + ('Q',)
        else: ev['Q'] = 0
        if o['ymean']: ev.update({f'corr{u}': 0 for u in range(6)})
        else:
            for c in sorted(('F1', 'H1'), key=cs_last.get): cs_items(c)
            corr_items(0, ('F1', 'H1')); corr_items(1, ('F1', 'H1'))
            cs_items('S2'); corr_items(2, ('F1', 'S2')); corr_items(3, ('F1', 'S2'))
            cs_items('S3'); corr_items(4, ('S2', 'S3')); corr_items(5, ('S2', 'S3'))
        chB = []; chC = []; chD = []; chP = []; vP = [self.vPv] + [V.alloc() for _ in range(3)]
        if o['ymean']: stc = (f'v_add_f32 {sp[0]}, {sp[0]}, {sp[1]}\nv_add_f32 {sp[2]}, {sp[2]}, {sp[3]}\nv_add_f32 {sp[1]}, {sp[0]}, {sp[2]}\nv_add_f32 {sp[0]}, {sp[0]}, {sp[2]}\nv_nop\nv_nop\n'
               f'v_permlane32_swap_b32 {sp[0]}, {sp[1]}\nv_add_f32 {sp[0]}, {sp[0]}, {sp[1]}\nv_fma_f32 {iv}, {sp[0]}, {self.sInv512}, {self.vEps}\n'
               f'v_rsq_f32 {sp[2]}, {iv}\nv_nop\nv_mul_f32 {c1}, {fhex(K1)}, {sp[2]}\nv_mul_f32 {sp[3]}, {sp[2]}, {sp[2]}\nv_mul_f32 {c3}, {fhex(0.044715)}, {c1}\nv_mul_f32 {c3}, {c3}, {sp[3]}')
        else: stc = (f'v_add_f32 {sp[0]}, {sp[0]}, {sp[2]}\nv_add_f32 {sp[1]}, {sp[1]}, {sp[3]}\nv_add_f32 {sp[4]}, {sp[4]}, {sp[6]}\nv_add_f32 {sp[5]}, {sp[5]}, {sp[7]}\n'
               f'v_add_f32 {sp[0]}, {sp[0]}, {sp[4]}\nv_add_f32 {sp[1]}, {sp[1]}, {sp[5]}\nv_mov_b32 {sp[2]}, {sp[0]}\nv_mov_b32 {sp[3]}, {sp[1]}\nv_nop\n'
               f'v_permlane32_swap_b32 {sp[0]}, {sp[2]}\nv_permlane32_swap_b32 {sp[1]}, {sp[3]}\nv_add_f32 {sp[0]}, {sp[0]}, {sp[2]}\nv_add_f32 {sp[1]}, {sp[1]}, {sp[3]}\n'
               f'v_mul_f32 {sp[0]}, {fhex(-1/512)}, {sp[0]}\nv_fma_f32 {sp[1]}, {sp[1]}, {self.sInv512}, {self.vEps}\nv_fma_f32 {iv}, -{sp[0]}, {sp[0]}, {sp[1]}\nv_max_f32 {iv}, {iv}, {self.vEps}\n'
               f'v_rsq_f32 {sp[2]}, {iv}\nv_cvt_pk_bf16_f32 {cB[0]}, {sp[0]}, {sp[0]}\nv_mul_f32 {c1}, {fhex(K1)}, {sp[2]}\nv_mul_f32 {sp[3]}, {sp[2]}, {sp[2]}\nv_mul_f32 {c3}, {fhex(0.044715)}, {c1}\nv_mul_f32 {c3}, {c3}, {sp[3]}')
        for x in I(stc): chB.append(('v', ('arr', ('st', 0 if o['ymean'] else 1)), [x], None))
        chB[-1] = chB[-1][:3] + ('stats',)
        pubs = {1: 1, 3: 2, 5: 3} if o['merge34'] else {1: 1, 3: 2, 4: 3, 5: 4}
        for u in range(6):
            a = acc[u]; out = go[u & 1]
            st = []
            for txt in ('v_mul_f32 {t}, {a}, {a}', 'v_fma_f32 {t}, {t}, {c3}, {c1}', 'v_mul_f32 {t}, {t}, {a}', 'v_exp_f32 {t}, {t}', 'v_mul_f32 {b}, {a}, {b}', 'v_fma_f32 {t}, {t}, {iv}, {iv}', 'v_rcp_f32 {t}, {t}', 'v_mul_f32 {b}, {b}, {t}'):
                st.append([txt.format(t=tt[v], a=a[v], b=a[8+v], c1=c1, c3=c3, iv=iv) for v in range(8)])
            seq = st[0] + st[1][:2] + st[2][:1]
            for v in range(8):
                if v + 2 < 8: seq.append(st[1][v+2])
                if v + 1 < 8: seq.append(st[2][v+1])
                seq.append(st[3][v])
            seq += [st[5][0]]
            for v in range(8):
                if v + 1 < 8: seq.append(st[5][v+1])
                seq += [st[4][v], st[6][v]]
            seq += st[7] + [f'v_cvt_pk_bf16_f32 {out[d]}, {a[8+2*d]}, {a[9+2*d]}' for d in range(4)]
            if u in o['pk_units']:
                P2 = lambda r, v: r.sub(2*v, 2)
                t_ = [P2(tt, v) for v in range(4)]; a2 = [P2(a, v) for v in range(4)]; b2 = [a.sub(8 + 2*v, 2) for v in range(4)]
                seq = [f'v_pk_mul_f32 {t_[v]}, {a2[v]}, {a2[v]}' for v in range(4)]
                seq += [f'v_pk_fma_f32 {t_[v]}, {t_[v]}, {cc}, {cc} op_sel:[0,1,0] op_sel_hi:[1,1,0]' for v in range(4)]
                seq += [f'v_pk_mul_f32 {t_[v]}, {t_[v]}, {a2[v]}' for v in range(4)] + st[3]
                seq += [f'v_pk_fma_f32 {t_[v]}, {t_[v]}, {iv2}, {iv2} op_sel_hi:[1,0,0]' for v in range(4)] + st[6]
                seq += [f'v_pk_mul_f32 {b2[v]}, {a2[v]}, {b2[v]}' for v in range(4)]
                seq += [f'v_pk_mul_f32 {b2[v]}, {b2[v]}, {t_[v]}' for v in range(4)]
                seq += [f'v_cvt_pk_bf16_f32 {out[d]}, {a[8+2*d]}, {a[9+2*d]}' for d in range(4)]
            for ln in seq: chB.append(('v', ('ev', [f'corr{u}', f'done{u}'], 56), I(ln), None, u))
            L = Asm()
            base = (sGo, sGa, sGb)[u >> 1]; add = (0, 16*KB, WS_G, WS_G + 16*KB, WS_H, WS_H + 8*KB)[u]
            if add: L(f's_add_u32 {sTs}, {base}, {add}')
            so = sTs if add else base
            if u in (2, 3): L(f'buffer_store_dwordx4 {out}, {self.vL16}, {self.WS}, {so} offen sc1', tag=f'gst{u}')
            else: self.store2(L, 'dwordx4', out, self.vL16, so, 0, f'gst{u}', self.OUT if u < 2 else None, wrap=True)
            chB.append(('s', {4: ('ev', ['stage1'], 0), 5: ('iss', ('g', 14))}.get(u), L.L, f'gst{u}', u))
            if u == o.get('res_after', 3):
                for d in range(8):
                    for x in I(f'v_lshlrev_b32 {accK[2*d]}, 16, {res[d]}\nv_and_b32 {accK[2*d+1]}, 0xffff0000, {res[d]}'): chB.append(('v', None, [x], None))
                chB[-1] = chB[-1][:3] + ('acc4',)
            if u in pubs:
                sg = pubs[u]; k = self.nlabel; self.nlabel += 1
                pm = self.mW16 if o['one_poll3'] else '0xffff'
                chC.append(('f', ('ev', [f'bar_gst{u}'], 0), self.signal(1 + sg), f'pub{sg}'))
                chP.append(('v', ('op', first4 + 2*(0, 15, 29, 36)[sg - 1] - o['plead'][sg - 1]), [], None))
                chP.append(('f', ('ev', [f'pub{sg}'], o['poll_after'][sg - 1]), I(f's_mov_b64 exec, {pm}\n{self.poll_ld(pa3, 1 + sg, vP[4 - sg])}\ns_mov_b64 exec, -1'), f'poll{sg}'))
                chD.append(('v', ('arr', f'poll{sg}'), I(f'v_cmp_eq_u32 vcc, 0, {vP[4 - sg]}\ns_and_b64 vcc, vcc, {pm}\ns_cbranch_vccnz L_late{k}\nL_back{k}:'), f'chk{sg}' if o['one_poll3'] else f'stage{sg}'))
                self.tail(f'L_late{k}:')
                if o['stamps']: self.tail(f's_add_u32 s97, s97, {(4 if o["one_poll3"] else 1) << (8*(sg - 1))}')
                self.poll_block(self.tail, pa3, 1 + sg, pm, vP[4 - sg]); self.tail(f's_branch L_back{k}')
        chW = []; aT = [V.alloc() for _ in range(3)]
        if o['retouch']:
            jk3 = V.alloc(); vRt = V.alloc(); sRt = S.alloc()
            chW += [('v', ('ev', ['Q'], 0), [x], None) for x in I(f'v_lshrrev_b32 {jk3}, 3, {vL}\nv_mul_u32_u24 {jk3}, {16*KB - 1024}, {jk3}\nv_add_u32 {vRt}, {jk3}, {self.v128}\ns_add_u32 {sRt}, {sGa}, {WS_G}')]
            c_ = I(f's_mov_b64 exec, 0xffff\nbuffer_load_dword {jk3}, {vRt}, {self.WS}, {sRt} offen sc1\ns_mov_b64 exec, -1'); c_[1].defs = set()
            chW.append(('t', ('ev', ['pub2'], 0), c_, 'rt'))
        if o['clean']:
            sCl = S.alloc(2); jk2 = V.alloc(); v8k = V.alloc()
            X = Asm()
            X(f's_lshl2_add_u32 {sCl[0]}, {s["M"]}, {s["W"]}\ns_and_b32 {sCl[1]}, {sCl[0]}, 7\ns_lshr_b32 {sCl[0]}, {sCl[0]}, 3\ns_lshl_b32 {sCl[0]}, {sCl[0]}, 7\ns_add_u32 {sCl[0]}, {sCl[0]}, {sCl[1]}\ns_lshl_b32 {sCl[0]}, {sCl[0]}, 7')
            X(f's_add_u32 {sCl[1]}, {sCl[0]}, {s["GB"]}\ns_add_u32 {sCl[1]}, {sCl[1]}, {WS_H + 7*KB}\ns_lshl_b32 {sTs}, {s["G"]}, 17\ns_add_u32 {sCl[0]}, {sCl[0]}, {sTs}\ns_add_u32 {sCl[0]}, {sCl[0]}, {15*KB}\nv_lshlrev_b32 {v8k}, 13, {vL}')
            chW += [('v', None, [x], None) for x in X.L]
            for q, (e_, txt) in enumerate((('stage1', f's_mov_b64 exec, 1\nbuffer_load_dword {jk2}, off, {self.OUT}, {sCl[0]} sc1'), (f'stage{max(pubs.values())}', f's_mov_b64 exec, 3\nbuffer_load_dword {jk2}, {v8k}, {self.WS}, {sCl[1]} offen sc1'))):
                c_ = I(txt + '\ns_mov_b64 exec, -1'); c_[1].defs = set()
                chW.append(('v', ('ev', [e_], 200), c_, None))
        if o['wd_light']:
            nd = len(o['wd_light']); nl = -(-86 // nd); sWd = S.alloc(); mL = S.alloc(2); jk = V.alloc()
            X = Asm()
            X(f's_lshl1_add_u32 {sWd}, {s["G"]}, {s["PF"]}\ns_lshl2_add_u32 {sWd}, {sWd}, {s["W"]}\ns_mul_i32 {sWd}, {sWd}, {86*128}')
            chW += [('v', None, [x], None) for x in X.L]
            chW.append(('v', None, I(f's_cmp_ge_u32 {s["M"]}, 14\ns_cselect_b32 {mL[0]}, {hex(((1 << nl) - 1) & 0xffffffff)}, 0\ns_cselect_b32 {mL[1]}, {hex(((1 << nl) - 1) >> 32)}, 0'), None))
            for q, at_ in enumerate(o['wd_light']):
                c_ = I(f's_mov_b64 exec, {mL}\nbuffer_load_dword {jk}, {self.v128}, {self.WD}, {sWd} offen sc1\ns_mov_b64 exec, -1\ns_add_u32 {sWd}, {sWd}, {nl*128}')
                c_[1].defs = set()
                chW.append(('v', ('op', at_), c_, None))
        chE = []
        for k in self.issued: arr[k] = 0
        now = 0; vm_free = 0; last_arr = 0; mf_free = 0; n_done = -1; last_bar = 0; nbar = 0
        for k in inflight:
            last_arr += VC*(2 if k[0] in ('H1', 'S3') else 1); arr[k] = last_arr
        vm_free = max(0, last_arr - LATD)
        cur = []; freed = set(); est = {}; idle = 0; win = []; slot = {}; pool = list(GB); lastc = ['H']
        def emit(code):
            nonlocal now
            A.ext(code); now += 4*sum(max(cost(x), 1 if x.mn.startswith('@wait') else 0) + (2 if x.mn.startswith('s_cbranch') else 4 if x.text == ';dual_begin' and not o['split'] else 0) for x in code)
        def vm_issue(idk, c, lat):
            nonlocal vm_free, last_arr
            st_ = max(vm_free, now); tot = c
            for (c_, a_) in reversed(win):
                tot += c_
                if tot > o['WIN']*VC: st_ = max(st_, a_); break
            vm_free = st_ + c
            last_arr = max(last_arr + c, st_ + lat); arr[idk] = last_arr; win.append((c, last_arr))
            self.trace.append((n_done, now, idk, last_arr))
        def ready_time(cond):
            if cond is None: return 0
            if cond[0] == 'op': return 0 if n_done >= cond[1] else None
            if cond[0] == 'both': return ev[cond[2]] + 8 if n_done >= cond[1] and cond[2] in ev else None
            if cond[0] == 'arr': return arr.get(cond[1])
            if cond[0] == 'iss': return 0 if cond[1] in arr else None
            if all(e in ev for e in cond[1]): return max(ev[e] for e in cond[1]) + cond[2]
            return None
        def pick_request():
            best = None
            for r in rq:
                if 'stage' in r and (f'stage{r["stage"]}' not in ev or not pool): break
                if 'ev' in r and r['ev'] not in ev: continue
                best = r; break
            if self.stream and self.free_blocks:
                dl = min(first_use[k_] for k_ in self.stream[:3]) - LA - o['dma_lead']
                if best is not None and best.get('lat', LATH) == LATH and n_done >= o['hyst_from']: dl += o['hyst'] if lastc[0] == 'H' else -o['hyst']
                if best is None or dl < best['dl']:
                    lastc[0] = 'M'
                    key = self.stream[0]; c = VC*(2 if key[0] in ('H1', 'S3') else 1)
                    cur.extend([(key, c, LATD)] + self.dma_next()); return True
            if best is None: return False
            lastc[0] = 'H' if best.get('lat', LATH) == LATH else 'M'
            if 'stage' in best:
                slot[best['id']] = pool.pop(0)
                best['code'] = best['code'] + I(f'buffer_load_dwordx4 {slot[best["id"]]}, {self.vL16}, {best["srd"]}, {sGl} offen offset:{best["off"]} sc1', tagof(best['id']))
            rq.remove(best); cur.extend([(best['id'], best['cost'], best.get('lat', LATH))] + best['code'])
            return True
        def step_vm(prefix=False):
            if not cur:
                if vm_free > now + VS or not pick_request(): return False
                if prefix or len(cur) > 2:
                    emit(cur[1:-1]); del cur[1:-1]
                    if prefix: return True
                    step_chain(chB, 'v', 8) or step_chain(chA, 'v', 8)
            meta, code = cur; del cur[:]
            emit([code]); vm_issue(*meta); return True
        def step_chain(ch, kinds, room):
            if not ch or ch[0][0] not in kinds: return False
            k, cond, code, e = ch[0][:4]; t = ready_time(cond)
            if t is None or t > now: return False
            if k == 'v' and 4*sum(cost(x) for x in code) > room + 3 and len(code) == 1: return False
            ch.pop(0); emit(code)
            if k == 's': vm_issue(e, VC, LATS if e in ('gst2', 'gst3') else LATH)
            if k == 'f': vm_issue(e, 20, LATH)
            if k == 't': vm_issue(e, 2*VC, LATD)
            if k in 'sf' and o['ackl']: arr[e] = min(arr[e], now + o['ackl'][2 if k == 'f' else 1 if e in ('gst2', 'gst3') else 0])
            if e: ev[e] = now; evop[e] = n_done
            return True
        def bar_need(n):
            if n + LA < N and ops[n + LA]['key'] not in visible:
                return {ops[q_]['key'] for q_ in range(n + LA, min(N, n + LA + o['VMIN']))}
            for u_ in pubs:
                if f'bar_gst{u_}' not in ev and arr.get(f'gst{u_}', 1 << 30) + o['bwait'][pubs[u_] - 1] <= now: return set()
                if f'stage{pubs[u_]}' not in ev and ev.get(f'chk{pubs[u_]}', 1 << 30) + o['bwait'][pubs[u_] - 1] <= now: return set()
            if n - last_bar < o['BMIN']: return None
            nfree = sum(1 for k, lu in last_use.items() if lu < n and k not in freed and k in self.loc) + (0 if 'res' in freed else 2)
            if self.stream and len(self.free_blocks) <= o.get('FLOW', 1) and nfree >= min(o['FMIN'], len(self.stream)): return set()
            if chA and chA[0][1] and chA[0][1][0] == 'ev' and chA[0][1][1][0].startswith('bar_wr') and ready_time(chA[0][1]) is None and now >= max(ev.get(e[4:], 0) for e in chA[0][1][1]) + 60: return set()
            if not self.stream and 'xb' not in ev and n >= N - 2*TL - 8: return set()
            return None
        def op_ready(n):
            p = ops[n]; t = mf_free
            k = p.get('hk')
            if k is not None:
                k = pairw.get(k) or k
                if k not in arr: return None
                t = max(t, arr[k])
            if n == first4 and 'acc4' not in ev: return None
            for k in bar_need(n) or ():
                if k not in arr: return None
                t = max(t, arr[k])
            return t
        def do_barrier(n, need):
            nonlocal now, last_bar, nbar, chE
            L = Asm()
            for c in ('F1', 'H1', 'S2', 'S3'):
                if 'wr' + c in ev and 'bar_wr' + c not in ev: L(f'@waitlg wr{c}'); ev['bar_wr' + c] = now
            for u_ in pubs:
                if f'bar_gst{u_}' not in ev and arr.get(f'gst{u_}', 1 << 30) <= now: L(f'@waitvm gst{u_}'); ev[f'bar_gst{u_}'] = now
                if f'stage{pubs[u_]}' not in ev and f'chk{pubs[u_]}' in ev: ev[f'stage{pubs[u_]}'] = now; evop[f'stage{pubs[u_]}'] = n_done
            vis = [k for k in self.issued if k not in visible and (k in need or arr[k] <= now - o['vmargin'])]
            if vis:
                newest = max(vis, key=self.issued.index)
                visible.update(self.issued[:self.issued.index(newest) + 1]); L(f'@waitvm {tagof(newest)}')
            L('s_barrier'); self.trace.append((n_done, now, 'BAR', newest if vis else None)); emit(L.L); now += o['barc'] - 8; last_bar = n; nbar += 1
            for k, lu in last_use.items():
                if lu < n and k not in freed and k in self.loc:
                    freed.add(k); self.free_blocks.append(self.loc[k])
            if 'res' not in freed and n > 0:
                freed.add('res'); self.free_blocks += [self.resb, self.resb + 1]
            if not self.stream and 'xb' not in ev:
                fb = sorted(self.free_blocks)
                xb = next((b for b in fb if all(b + k in fb for k in range(6))), None)
                if xb is not None:
                    ev['xb'] = now
                    X = Asm()
                    X(f's_lshl_b32 {s["T0"]}, {s["W"]}, 12\ns_add_u32 {s["T0"]}, {s["T0"]}, {xb*BLK}\nv_add_u32 {t1}, {s["T0"]}, {self.vL16}')
                    X(f's_xor_b32 {s["T1"]}, {s["W"]}, 2\ns_lshl_b32 {s["T1"]}, {s["T1"]}, 12\ns_add_u32 {s["T1"]}, {s["T1"]}, {xb*BLK}\nv_add_u32 {t2}, {s["T1"]}, {self.vL16}')
                    if o['quad_out'] == 'lds':
                        tb_ = (xb + 4)*BLK
                        X(f'v_lshrrev_b32 {aT[0]}, 5, {vL}\nv_lshl_add_u32 {aT[0]}, {sKH}, 1, {aT[0]}\nv_lshlrev_b32 {aT[0]}, 1, {aT[0]}\nv_and_b32 {aRes}, 7, {vL}\nv_xor_b32 {aT[0]}, {aT[0]}, {aRes}')
                        X(f's_lshl_b32 {s["T0"]}, {sTH}, 12\ns_add_u32 {s["T0"]}, {s["T0"]}, {tb_}\nv_and_b32 {aT[1]}, 31, {vL}\nv_lshl_add_u32 {aT[1]}, {aT[1]}, 7, {s["T0"]}\nv_lshl_add_u32 {aT[0]}, {aT[0]}, 4, {aT[1]}\nv_xor_b32 {aT[1]}, 16, {aT[0]}')
                        X(f's_add_u32 {s["T0"]}, {self.sW2K}, {tb_}\nv_add_u32 {aT[2]}, {s["T0"]}, {self.vL16}')
                        X(f'v_lshrrev_b32 {t3}, 3, {vL}\nv_xor_b32 {aRes}, {aRes}, {t3}\nv_lshlrev_b32 {aRes}, 4, {aRes}\nv_lshl_add_u32 {t3}, {t3}, 10, {aRes}')
                        X(f's_lshl2_add_u32 {s["T0"]}, {s["BLK"]}, {s["W"]}\ns_lshl_b32 {s["T0"]}, {s["T0"]}, 14\ns_add_u32 {s["T0"]}, {s["T0"]}, {self.sC128}\ns_add_u32 {s["T1"]}, {s["T0"]}, 8192')
                    else:
                        if o['quad_out']: X(f'v_and_b32 {t3}, 28, {vL}\nv_lshrrev_b32 {aRes}, 5, {vL}\nv_add_lshl_u32 {t3}, {t3}, {aRes}, 10\nv_and_b32 {aRes}, 3, {vL}\nv_lshl_add_u32 {t3}, {aRes}, 4, {t3}')
                        else: X(f'v_and_b32 {t3}, 31, {vL}\nv_lshlrev_b32 {t3}, 10, {t3}\nv_lshrrev_b32 {aRes}, 5, {vL}\nv_lshl_add_u32 {t3}, {aRes}, 5, {t3}')
                        X(f's_lshl2_add_u32 {s["T0"]}, {s["G"]}, {sT4}\ns_lshl_b32 {s["T0"]}, {s["T0"]}, 15\ns_add_u32 {s["T0"]}, {s["T0"]}, {self.sC128}\ns_lshl_b32 {s["T1"]}, {sKH}, 6\ns_add_u32 {s["T0"]}, {s["T0"]}, {s["T1"]}')
                    chE += [('v', None, [x], None) for x in X.L]
                    l7 = last_op[7]
                    if o['hide_x']:
                        chE += [('d', ('op', l7), I('s_nop 3'), None), ('d', ('op', l7 + 1), I('s_nop 3'), None)]
                        chE += [('d', ('op', l7 + 2 + k), I(f'ds_write_b128 {t1}, {accS.sub(4*k, 4)} offset:{k*1024}', 'xw'), None) for k in range(4)]
                        chE += [('d', ('op', l7 + o['hide_x']), I('@waitlg xw\ns_barrier') + I('\n'.join(f'ds_read_b128 {acc[2].sub(4*k, 4)}, {t2} offset:{k*1024}' for k in range(4))), None)]
                    else: chE += [('d', ('op', min(N - 1, l7 + 2)), I(f'ds_write_b128 {t1}, {accS.sub(4*k, 4)} offset:{k*1024}'), None) for k in range(4)]
        for n in range(N):
            p = ops[n]
            guard = 0
            while True:
                guard += 1; assert guard < 100000, f'scheduler stuck at op {n}'
                slack = 0
                if chB and ready_time(chB[0][1]) is not None:
                    u_ = chB[0][4] if len(chB[0]) > 4 else None
                    slack = 4*(o['budu'].get(str(u_), o['bud']) - 6)
                    if u_ in o['pk_units'] and ready_time(chB[0][1]) <= now: slack = 4000
                t = op_ready(n)
                if t is not None and t == mf_free and bar_need(n) is not None: t -= o['barc']
                if t is not None and now >= t + slack: break
                room = (t + slack - now) if t is not None else 1000
                if chA and chA[0][0] == 'm' and now >= mf_free - 4:
                    t0_ = max(now, mf_free)
                    if step_chain(chA, 'm', 0): now = t0_ + 8; mf_free = t0_ + 32; continue
                if room > 100 and bar_need(n) == set(): do_barrier(n, set()); continue
                if room > 40 and step_vm(): continue
                if step_chain(chC, 'fv', 1000) or step_chain(chP, 'fv', 1000) or step_chain(chD, 'fv', 1000) or step_chain(chW, 'vt', 1000): continue
                if step_chain(chA, 'v' if room <= 40 else 'vd', room): continue
                if step_chain(chB, 'vs', room) or step_chain(chE, 'v', room): continue
                if t is not None and now >= t: break
                now += 4; idle += 4
            if chA and chA[0][0] == 'm' and bar_need(n) is None:
                t0_ = max(now, mf_free)
                if step_chain(chA, 'm', 0):
                    now = t0_ + 8; mf_free = t0_ + 32
                    while now < mf_free and (step_chain(chA, 'vd', mf_free - now) or step_vm() or step_chain(chB, 'vs', mf_free - now)): pass
            need = bar_need(n)
            if need is not None: do_barrier(n, need)
            if n == first4: self.stamp('p3 mfma done'); est['p3'] = now; est['idle3'] = idle
            elif o.get('fine') and n % o['fine'] == 0 and n and o.get('ffrom', 0) <= n <= o.get('fto', 999): self.stamp(f'op {n}'); est[n] = now
            if pairw.get(p.get('hk')) and hfirst[p['hk']] == n: A(f'@waitvm {tagof(pairw[p["hk"]])}')
            if p.get('hk') and hfirst[p['hk']] == n and pairw.get(p['hk'], 1): now += 4
            t0_ = now = max(now, mf_free)
            A.L.append(mfma(p)); n_done = n; now += o.get('mfc', 6)
            mf_free = t0_ + (32 if p['k'] == 'm' else 16)
            if p['k'] == 'm' and last_op[p['u']] == n: ev[f'done{p["u"]}'] = now
            if n and 'hk' in ops[n - 1] and hlast[ops[n - 1]['hk']] == n - 1: pool.append(ops[n - 1]['B'] or slot[ops[n - 1]['hk']])
            if (n + 1) % WE == 0 and n + 1 < N: emit([Ins(f'@waitlg r{min(N - 1, n + WE)}')])
            step_vm(prefix=True)
            now = max(now, t0_ + 8)
            if n + LA < N: emit(reads(ops[n + LA]))
            if cur: step_vm()
            else: step_chain(chA, 'd', 0) or step_chain(chE, 'd', 0) or step_chain(chC, 'f', 0) or step_chain(chP, 'fv', 1000) or step_chain(chD, 'fv', 1000)
            if n + LA + 1 < N and ops[n + LA + 1]['key'] in self.loc: emit(ops[n + LA + 1]['ad'].need(self.loc[ops[n + LA + 1]['key']] >> 4))
        if o.get('wb'):
            where, sel = o['wb']
            W = Asm()
            if sel == 'one': W(f's_lshr_b32 {s["T2"]}, s2, 3\ns_lshl2_add_u32 {s["T2"]}, {s["T2"]}, {s["W"]}\ns_cmp_lg_u32 {s["T2"]}, 60')
            elif sel == 'grp': W(f's_lshl2_add_u32 {s["T2"]}, {s["M"]}, {s["W"]}\ns_cmp_lg_u32 {s["T2"]}, 60')
            else: W(f's_cmp_lg_u32 {s["W"]}, 0')
            W('s_cbranch_scc1 L_nowb\n@raw 1\nbuffer_wbl2 sc1\n@raw 0\nL_nowb:')
            if where == 'end': self.wb_end = W.L
            else:
                k = max(q for q, x in enumerate(A.L) if x.tag == where)
                assert where == 'g_42'
                self.wb_mid = W.L
        assert 'xb' in ev
        for it in chE: emit(it[2])
        assert not (chA or chB or chC or chD or chP or chW or rq or cur or self.stream), (len(chA), len(chB), len(chC), len(rq), len(self.stream))
        est['p4'] = now; est['idle'] = idle
        self.info.update(N=N, first4=first4, nbar=nbar, npre=len(pre_keys), est=est, evop={k: v for k, v in evop.items() if k[:3] in ('cor', 'gst', 'sta')})
        dbg = o.get('dbg', '')
        if dbg:
            new = []; nv = 0
            for x in A.L[self.mark34:]:
                if 'W' in dbg:
                    if x.kind in ('mfma', 'ds') or x.mn in ('s_barrier', '@waitvm', '@waitlg') or x.mn.startswith('s_cbranch') or (x.kind == 'valu' and ('_f32' in x.mn or 'cmp' in x.mn or 'permlane' in x.mn)): continue
                    if x.kind == 'vmem':
                        k_ = (x.tag or 'x_').split('_')[0]
                        cls = {'F1': '3', 'H1': '3', 'S2': '3', 'S3': '3', 'W4': '4', 'F': 'h', 'H': 'h', 'g': 'g'}.get(k_, 's')
                        sub = 'b' if x.tag in ('gst2', 'gst3') else 'a' if (x.tag or '').startswith('gst') else 'f' if x.tag == 'flag' else 'p' if x.mn == 'buffer_load_dword' else 't'
                        if cls == 'g' and 15 <= int(x.tag[2:]) < 29 and '2' in dbg: continue
                        if cls in dbg or (cls == 's' and sub in dbg): continue
                        x.defs = set(); x.tag = f'z{nv}'; nv += 1; new.append(x)
                        if nv > 30: new.append(Ins(f'@waitvm z{nv - 30}'))
                        continue
                if 'K' in dbg and x.kind == 'vmem' and (x.tag or '').startswith('W4_') and int(x.tag[3:]) % 2 == 0 and x.tag != 'W4_42':
                    self.dropped.add(x.tag); continue
                if 'M' in dbg and x.kind == 'mfma':
                    y = Ins('s_nop 0'); y.uses = set(x.srcAB); new.append(y); continue
                if 'V' in dbg and x.kind == 'valu' and '_f32' in x.mn: continue
                if 'R' in dbg and x.kind == 'ds' and x.mn.startswith('ds_read_b64_tr'):
                    self.dropped.add(x.tag); continue
                if 'D' in dbg and x.kind == 'vmem' and x.arg == 'dma':
                    self.dropped.add(x.tag); continue
                if 'L' in dbg and x.kind == 'vmem' and x.mn == 'buffer_load_dwordx4' and x.arg != 'dma':
                    self.dropped.add(x.tag); continue
                if 'T' in dbg and x.kind == 'vmem' and x.mn == 'buffer_load_dword' and not x.defs: continue
                if 'B' in dbg and x.mn == 's_barrier': continue
                if x.kind == 'pseudo' and x.mn in ('@waitvm', '@waitlg') and x.arg[0] in self.dropped: continue
                new.append(x)
            if 'Q' in dbg:
                import re
                gaps = [[]]
                for x in new:
                    if x.kind == 'mfma': gaps.append([])
                    gaps[-1].append(x)
                new = list(gaps[0]); cntq = 0; prevB = None
                for gp_ in gaps[1:]:
                    m_ = re.match(r'\S+ v\[(\d+):\d+\], (\S+), (\S+), (\S+)', gp_[0].text); b0 = int(m_.group(1)); cntq += 1
                    mk = lambda q, B_: Ins(f'v_mfma_f32_16x16x32_bf16 v[{b0+4*q}:{b0+4*q+3}], {m_.group(2)}, {B_}, v[{b0+4*q}:{b0+4*q+3}]')
                    q0 = 2*((cntq >> 1) & 1); rest = gp_[1:]; ok_ = safe_points(rest); tot = sum(cost(y) for y in rest)
                    inside = False; k_ = 0; acc_ = 0
                    for q, y in enumerate(rest):
                        if acc_ >= min(2, tot) and acc_ >= min(tot, 8)/2 and not inside and y.kind != 'label' and not y.mn.startswith('s_cbranch'): break
                        if y.text == ';dual_begin' or y.text == '@raw 1': inside = True
                        if y.text == ';dual_end' or y.text == '@raw 0': inside = False
                        acc_ += cost(y); k_ = q + 1
                    new += [mk(q0, m_.group(3))] + rest[:k_] + [mk(q0 + 1, m_.group(3))] + rest[k_:]
            if 'W' in dbg: new.append(Ins('@waitvm0'))
            A.L[self.mark34:] = new
        self.stamp('p4 mfma done')
        A.ext(getattr(self, 'wb_mid', []))
        rx = acc[2]
        if o['hide_x']: A('@waitlg0')
        else:
            A('@waitlg0\ns_barrier')
            for k in range(4): A(f'ds_read_b128 {rx.sub(4*k, 4)}, {t2} offset:{k*1024}')
        if o['quad_out'] is True: A('s_mov_b32 vcc_lo, 0x55555555\ns_mov_b32 vcc_hi, 0x55555555')
        for h in range(2):
            for d in range(4*h, 4*h + 4): A(f'v_pk_add_f32 {accK.sub(2*d, 2)}, {accK.sub(2*d, 2)}, {rx.sub(2*d, 2)}')
            for d in range(4): A(f'v_cvt_pk_bf16_f32 {go[h][d]}, {accK[8*h + 2*d]}, {accK[8*h + 2*d + 1]}')
            if not o['quad_out']: A(f'buffer_store_dwordx4 {go[h]}, {t3}, {self.OUT}, {s["T0"]} offen offset:{16*h} {o["out_aux"]}')
            if o['quad_out'] == 'lds': A(f'ds_write_b128 {aT[h]}, {go[h]}')
        if o['quad_out'] == 'lds':
            A('@waitlg0\ns_barrier')
            for h in range(2): A(f'ds_read_b128 {rx.sub(4*h, 4)}, {aT[2]} offset:{h*1024}')
            for h in range(2): A(f'buffer_store_dwordx4 {rx.sub(4*h, 4)}, {t3}, {self.OUT}, {s["T1" if h else "T0"]} offen {o["out_aux"]}')
        elif o['quad_out']:
            R0, R1, T = go[0], go[1], tt.sub(0, 4)
            dp = lambda dst, a_, b_, qp: f'v_cndmask_b32_dpp {dst}, {a_}, {b_}, vcc quad_perm:{qp} row_mask:0xf bank_mask:0xf'
            for d in range(4): A(dp(T[d], R1[d], R0[d], '[1,0,3,2]'))
            A('s_not_b64 vcc, vcc')
            for d in range(4): A(dp(R1[d], R0[d], R1[d], '[1,0,3,2]'))
            A('s_mov_b32 vcc_lo, 0x33333333\ns_mov_b32 vcc_hi, 0x33333333')
            for d in range(4): A(f'v_permlane32_swap_b32 {T[d]}, {R1[d]}')
            for d in range(4): A(dp(R0[d], R1[d], T[d], '[2,3,0,1]'))
            A('s_not_b64 vcc, vcc')
            A(f'buffer_store_dwordx4 {R0}, {t3}, {self.OUT}, {s["T0"]} offen {o["out_aux"]}')
            for d in range(4): A(dp(R1[d], T[d], R1[d], '[2,3,0,1]'))
            A(f'buffer_store_dwordx4 {R1}, {t3}, {self.OUT}, {s["T0"]} offen offset:2048 {o["out_aux"]}')
        A.ext(getattr(self, 'wb_end', []))
        self.stamp('out stored')

    def visit(self, name):
        if name not in (self.o['visit'] or {}): return []
        L = Asm()
        L('s_mov_b64 exec, 0')
        for k in range(len(self.o['visit'][name])): L(f's_cmp_eq_u32 {self.s["W"]}, {k}\ns_cbranch_scc1 L_vis_{name}_{k}')
        L(f'L_ret_{name}:\ns_mov_b64 exec, -1')
        return L.L

    def place_stubs(self, L):
        import subprocess, re
        txt = '.amdgcn_target "amdgcn-amd-amdhsa--gfx950"\n.text\n' + '\n'.join(x.text for x in L if x.kind != 'dir') + '\n'
        txt += ''.join(f'L_vis_{n}_{k}:\n' for n, ps in self.o['visit'].items() for k in range(len(ps)))
        open('_sz.s', 'w').write(txt)
        subprocess.run(['clang', '-x', 'assembler', '-target', 'amdgcn-amd-amdhsa', '-mcpu=gfx950', '-c', '_sz.s', '-o', '_sz.o'], check=True)
        d = subprocess.run(['llvm-objdump', '-d', '--mcpu=gfx950', '_sz.o'], capture_output=True, text=True).stdout
        sizes = [4*len(m.group(1).split()) for m in re.finditer(r'// [0-9A-F]{12}: ([0-9A-F ]+)', d)]
        real = [x for x in L if x.kind not in ('dir', 'label')]
        assert len(sizes) == len(real), (len(sizes), len(real))
        size = {id(x): z for x, z in zip(real, sizes)}
        owner = {p: n for n, ps in self.o['visit'].items() for p in ps}
        end = max(i for i, x in enumerate(L) if x.text == 'L_main_end:')
        out = []; addr = None; page = 0; stubs = {}; full = True
        EX = {('s', 126), ('s', 127)}
        for i, x in enumerate(L):
            if x.text == 'L_body:': addr = 0; self.info['pre_bytes'] = sum(size.get(id(y), 0) for y in L[:i])
            if addr is not None and x.kind not in ('dir', 'label') and i < end:
                if addr >= page*4096 and full:
                    if page in owner:
                        stubs.setdefault(owner[page], []).append(len(out)); out.append(None); addr += 4
                    page += 1
                addr += size[id(x)]
                if x.defs & EX: full = x.mn.startswith('s_mov') and x.text.endswith(', -1')
            out.append(x)
        res = []
        where = {}
        for n in self.o['visit']:
            for k, pos in enumerate(stubs.get(n, [])): where[pos] = (n, k, len(stubs[n]))
        for i, x in enumerate(out):
            if x is None:
                n, k, tot = where[i]
                res += [Ins(f'L_vis_{n}_{k}:'), Ins(f's_cbranch_execz L_ret_{n}')]
            else: res.append(x)
        for n in self.o['visit']:
            for k in range(len(stubs.get(n, [])), 4): res = [Ins('s_nop 0') if x.text == f's_cbranch_scc1 L_vis_{n}_{k}' else x for x in res]
        self.info['pages'] = page
        return res

    def finish(self):
        A, s, o = self.A, self.s, self.o
        if o['stamps']:
            A('@waitvm0')
            self.stamp('end')
            k = self.nstamp - 1
            A(f'@raw 1\nv_writelane_b32 {self.vstamp}, s96, 59\nv_writelane_b32 {self.vstamp}, s97, 60\nv_writelane_b32 {self.vstamp}, s98, 61\ns_memrealtime s[98:99]\ns_waitcnt lgkmcnt(0)\nv_writelane_b32 {self.vstamp}, s98, 62\nv_writelane_b32 {self.vstamp}, {self.sstamp[2*(k % 2)]}, {k}\nv_writelane_b32 {self.vstamp}, s100, 63\n@raw 0')
            A(f's_lshl_b32 {s["T0"]}, s2, 10\ns_lshl_b32 {s["T1"]}, {s["W"]}, 8\ns_add_u32 {s["T0"]}, {s["T0"]}, {s["T1"]}\ns_add_u32 {s["T0"]}, {s["T0"]}, {o["ws_base"] + WS_TS}')
            A(f'v_lshlrev_b32 {self.t1}, 2, {self.vL}\nbuffer_store_dword {self.vstamp}, {self.t1}, {self.WS}, {s["T0"]} offen')
        if o.get('pad_to'):
            A(f'@raw 1\ns_waitcnt vmcnt(0)\nL_padloop:\n{o.get("pad_clk", "s_memrealtime")} s[98:99]\ns_waitcnt lgkmcnt(0)\ns_sub_u32 s98, s98, s100\ns_cmp_lt_u32 s98, {o["pad_to"]}\ns_cbranch_scc1 L_padloop\n@raw 0')
        A('L_main_end:\ns_endpgm')

    def build(self):
        self.phase1(); self.phase2(); self.phase34(); self.finish()
        L = resolve_waits(self.A.L)
        L, nn = pad_hazards(L)
        T = [x for x in self.tail.L if x.kind != 'pseudo']
        if self.o['split']: L, T = self.split_modes(L, T)
        else:
            L, T2 = self.expand_dual(L); T += T2 + [Ins('L_code_end:')]
        if self.o['visit']: L = self.place_stubs(L + T); T = []
        body = '\n'.join(('' if x.kind == 'label' else '    ') + x.text for x in L + T)
        hdr = open('cdna_kernels/' + NAME + '.s.ref').read().split('; Override launch')[0]
        txt = hdr + f'; @launch grid=(256,1,1) block=(256,1,1) lds=163840\n.amdgcn_target "amdgcn-amd-amdhsa--gfx950"\n.text\n.globl {NAME}_kernel\n.p2align 8\n.type {NAME}_kernel,@function\n{NAME}_kernel:\n'
        txt += body + '\n    s_endpgm\n'
        txt += f'.section .rodata,"a"\n.p2align 6\n.amdhsa_kernel {NAME}_kernel\n  .amdhsa_next_free_vgpr 512\n  .amdhsa_next_free_sgpr 102\n  .amdhsa_accum_offset 256\n  .amdhsa_group_segment_fixed_size 0\n  .amdhsa_kernarg_size 80\n  .amdhsa_user_sgpr_count 2\n  .amdhsa_user_sgpr_kernarg_segment_ptr 1\n  .amdhsa_system_sgpr_workgroup_id_x 1\n  .amdhsa_float_denorm_mode_32 3\n.end_amdhsa_kernel\n'
        self.info.update(ninstr=len(L), nops=nn, vmax=self.V.hi, amax=self.AG.hi, smax=self.S.hi)
        return txt

if __name__ == '__main__':
    import json
    kw = json.loads(sys.argv[2]) if len(sys.argv) > 2 else {}
    G = Gen(**kw); txt = G.build()
    open(sys.argv[1], 'w').write(txt)
    print(G.info)
    if kw.get('trace'):
        for t in G.trace: print(t)
```
